```python
import torch

def _softmax(x, axis=-1):
    return torch.softmax(x, dim=axis)
def _gelu(x):
    return torch.nn.functional.gelu(x, approximate="tanh")
def _silu(x):
    return torch.nn.functional.silu(x)
def _sigmoid(x):
    return torch.sigmoid(x)
def _layernorm(x, axis=-1, eps=1e-5):
    m = x.mean(dim=axis, keepdim=True)
    v = x.var(dim=axis, keepdim=True, unbiased=False)
    return (x - m) / torch.sqrt(v + eps)
def _scatter_add(tgt, idx, src, axis=0):
    return tgt.clone().index_add_(axis, idx, src)
def _segment_sum(src, seg, n):
    out = torch.zeros((n,) + src.shape[1:], dtype=src.dtype)
    return out.index_add_(0, seg, src)
def _pad(x, pw):
    flat = tuple(v for pair in reversed(pw) for v in pair)
    return torch.nn.functional.pad(x, flat)

kernel_name = 'sequential_preLN__compressed_kv_cla__mixer_token_mlp__decode'

def setup_inputs():

    _w = (lambda a: (lambda t: t.to(torch.bfloat16) if t.is_floating_point() else t)(torch.as_tensor(a)))
    def _A_setup():
        B, H, Sq, Sk, D, M = 1, 32, 1, 4096, 128, 640
        Dc = 4 * D
        return {
            "x": _w((lambda *s: torch.randn(*s, dtype=torch.bfloat16) * 0.05)(B, Sq, M)),
            "c_kv": _w((lambda *s: torch.randn(*s, dtype=torch.bfloat16) * 0.8)(B, Sk, Dc)),
            "w_q": _w((lambda *s: torch.randn(*s, dtype=torch.bfloat16) * 0.8)(M, H, D) * (M ** -0.5)),
            "w_uk": _w((lambda *s: torch.randn(*s, dtype=torch.bfloat16) * 0.8)(Dc, H, D) * (Dc ** -0.5)),
            "w_uv": _w((lambda *s: torch.randn(*s, dtype=torch.bfloat16) * 0.8)(Dc, H, D) * (Dc ** -0.5)),
            "w_o": _w((lambda *s: torch.randn(*s, dtype=torch.bfloat16) * 0.8)(H, D, M) * ((H * D) ** -0.5)),
        }
    _A_in = _A_setup()

    def _B_setup():
        B, S, D, F = 1, 1, 640, 1728
        return {
            "x": _w((lambda *s: torch.randn(*s, dtype=torch.bfloat16) * 0.05)(B, S, D)),
            "w1": _w((lambda *s: torch.randn(*s, dtype=torch.bfloat16) * 0.2)(S, F) * (S ** -0.5)),
            "b1": _w((lambda *s: torch.randn(*s, dtype=torch.bfloat16) * 0.2)(F) * 0.02),
            "w2": _w((lambda *s: torch.randn(*s, dtype=torch.bfloat16) * 0.2)(F, S) * (F ** -0.5)),
            "b2": _w((lambda *s: torch.randn(*s, dtype=torch.bfloat16) * 0.2)(S) * 0.02),
        }
    _B_in = _B_setup()

    return {
        "A_x": _A_in["x"],
        "A_c_kv": _A_in["c_kv"],
        "A_w_q": _A_in["w_q"],
        "A_w_uk": _A_in["w_uk"],
        "A_w_uv": _A_in["w_uv"],
        "A_w_o": _A_in["w_o"],
        "B_x": _B_in["x"],
        "B_w1": _B_in["w1"],
        "B_b1": _B_in["b1"],
        "B_w2": _B_in["w2"],
        "B_b2": _B_in["b2"],
    }

def reference(A_x, A_c_kv, A_w_q, A_w_uk, A_w_uv, A_w_o, B_x, B_w1, B_b1, B_w2, B_b2):
    def _A_ref(x, c_kv, w_q, w_uk, w_uv, w_o):
        B, Sq, M = x.shape[0], x.shape[1], x.shape[2]
        Sk = c_kv.shape[1]
        H, D = w_q.shape[1], w_q.shape[2]
        q = torch.einsum("bqm,mhd->bhqd", x, w_q)
        k = torch.einsum("bkc,chd->bhkd", c_kv, w_uk)
        v = torch.einsum("bkc,chd->bhkd", c_kv, w_uv)
        scores = torch.einsum("bhqd,bhkd->bhqk", q, k) * (D ** -0.5)
        off = Sk - Sq
        qi = torch.arange(Sq)[:, None]
        kj = torch.arange(Sk)[None, :]
        cmask = kj <= (qi + off)
        scores = torch.where(cmask[None, None], scores, -1e9)
        p = _softmax(scores, axis=-1)
        ctx = torch.einsum("bhqk,bhkd->bhqd", p, v)
        return torch.einsum("bhqd,hdm->bqm", ctx, w_o)

    def _B_ref(x, w1, b1, w2, b2):
        B, S, D = x.shape
        h = _layernorm(x, axis=-1)
        u = torch.einsum("bsd,sf->bdf", h, w1) + b1
        u = _gelu(u)
        y = torch.einsum("bdf,fs->bds", u, w2) + b2
        return (lambda x, *d: x.permute(*d))(y, 0, 2, 1)

    x = A_x
    h = x + _A_ref(_layernorm(x, axis=-1), A_c_kv, A_w_q, A_w_uk, A_w_uv, A_w_o)
    h2 = h + _B_ref(_layernorm(h, axis=-1), B_w1, B_b1, B_w2, B_b2)
    return h2
```

```python
import re

class Emit:
    def __init__(self):
        self.lines = []
    def __call__(self, s):
        for ln in s.strip("\n").split("\n"):
            self.lines.append("    " + ln.strip() if not ln.strip().endswith(":") else ln.strip())
    def label(self, l):
        self.lines.append(l + ":")
    def comment(self, c):
        self.lines.append("    ; " + c)
    def nop(self, n):
        while n > 0:
            k = min(n, 16)
            self.lines.append(f"    s_nop {k-1}")
            n -= k
    def text(self):
        return "\n".join(self.lines) + "\n"

def vr(base, n=1):
    return f"v{base}" if n == 1 else f"v[{base}:{base+n-1}]"
def sr(base, n=1):
    return f"s{base}" if n == 1 else f"s[{base}:{base+n-1}]"

REG = re.compile(r"\b([vsa])(\d+)\b|\b([vsa])\[(\d+):(\d+)\]")
def regs_of(tok):
    out = set()
    for m in REG.finditer(tok):
        if m.group(1):
            out.add((m.group(1), int(m.group(2))))
        else:
            for i in range(int(m.group(4)), int(m.group(5)) + 1):
                out.add((m.group(3), i))
    if re.search(r"\bvcc\b", tok): out.add(("x", "vcc"))
    if re.search(r"\bexec\b", tok): out.add(("x", "exec"))
    if re.search(r"\bm0\b", tok): out.add(("x", "m0"))
    return out

TRANS = ("v_exp_f32", "v_log_f32", "v_rcp_f32", "v_rsq_f32", "v_sqrt_f32", "v_sin_f32", "v_cos_f32")
def parse(line):
    s = line.split(";")[0].strip()
    if not s or s.endswith(":") or s.startswith("."):
        return None
    parts = s.split(None, 1)
    op = parts[0]
    args = parts[1] if len(parts) > 1 else ""
    ops = [a.strip() for a in args.split(",")]
    return op, ops, s

def classify(op, ops, s):
    d = dict(op=op, defs=set(), uses=set(), kind="other", s=s)
    allregs = [regs_of(o.split(" ")[0] if not o.startswith(("v[", "s[", "a[")) else o.split(" ")[0]) for o in ops]
    if op.startswith("v_mfma"):
        d["kind"] = "mfma"; d["defs"] = allregs[0]; d["A"] = allregs[1]; d["B"] = allregs[2]; d["C"] = allregs[3]
        d["uses"] = allregs[1] | allregs[2] | allregs[3]
    elif op.startswith("v_cmp"):
        d["kind"] = "valu"; d["defs"] = allregs[0]; d["uses"] = set().union(*allregs[1:])
        if op.startswith("v_cmpx"): d["defs"] |= {("x", "exec")}
    elif op.startswith(("v_readlane", "v_readfirstlane")):
        d["kind"] = "valu"; d["defs"] = allregs[0]; d["uses"] = set().union(*allregs[1:]); d["readlane"] = True
    elif op.startswith("v_permlane"):
        d["kind"] = "valu"; d["defs"] = allregs[0] | allregs[1]; d["uses"] = allregs[0] | allregs[1]; d["permlane"] = True
    elif op.startswith("v_"):
        d["kind"] = "valu"; d["defs"] = set(allregs[0]); d["uses"] = set().union(*allregs[1:]) if len(allregs) > 1 else set()
        if op.startswith(("v_add_co", "v_addc_co", "v_sub_co")):
            d["defs"] |= allregs[1]
        if op.startswith(("v_fmac", "v_dot2c", "v_pk_fmac")) or "_dpp" in op:
            d["uses"] |= allregs[0]
        if op.startswith("v_cndmask") and len(ops) == 3: d["uses"] |= {("x", "vcc")}
        if "_dpp" in op: d["dpp"] = True; d["dppsrc"] = allregs[1]
        if op.split("_e32")[0].split("_e64")[0] in TRANS: d["trans"] = True
    elif op.startswith(("global_load", "buffer_load", "ds_read", "ds_bpermute", "ds_swizzle")):
        d["kind"] = "vmem" if not op.startswith("ds_") else "ds"
        if "lds" in s.split() or op.startswith("global_load_lds"):
            d["uses"] = set().union(*allregs) | {("x", "m0")}; d["ldsdma"] = True
        else:
            d["defs"] = allregs[0]; d["uses"] = set().union(*allregs[1:])
    elif op.startswith(("global_store", "buffer_store", "ds_write", "ds_add", "global_atomic")):
        d["kind"] = "vmem" if not op.startswith("ds_") else "ds"
        d["uses"] = set().union(*allregs)
        if op.endswith(("x4", "x3")) and not op.startswith("ds_"):
            d["widestore"] = allregs[0] if op.startswith("buffer") else allregs[1]
    elif op.startswith("s_"):
        d["kind"] = "salu"
        if op in ("s_nop",):
            d["nop"] = int(ops[0]) + 1
        elif op.startswith(("s_cmp", "s_cbranch", "s_branch", "s_waitcnt", "s_barrier", "s_sleep", "s_endpgm", "s_setprio")):
            d["uses"] = set().union(*allregs) if allregs else set()
        else:
            d["defs"] = allregs[0] if allregs else set(); d["uses"] = set().union(*allregs[1:]) if len(allregs) > 1 else set()
    return d

def check_hazards(text):
    ins = []
    for ln, line in enumerate(text.split("\n"), 1):
        p = parse(line)
        if p is None:
            continue
        d = classify(*p); d["ln"] = ln
        ins.append(d)
    probs = []
    def need(i, j, n, why):
        ws = 0
        for k in range(i + 1, j):
            ws += ins[k].get("nop", 1)
        if ws < n:
            probs.append(f"line {ins[j]['ln']}: {why}: need {n} have {ws}: [{ins[i]['s']}] -> [{ins[j]['s']}]")
    for j, c in enumerate(ins):
        for i in range(j - 1, max(-1, j - 24), -1):
            p = ins[i]
            if p["op"].startswith(("s_branch", "s_endpgm")):
                break
            vdefs = {r for r in p["defs"] if r[0] in "va"}
            sdefs = {r for r in p["defs"] if r[0] == "s" or r == ("x", "vcc")}
            if p["kind"] == "valu":
                if c.get("dpp") and vdefs & c["dppsrc"]: need(i, j, 2, "VALU->DPP")
                if c.get("permlane") and vdefs & c["uses"]: need(i, j, 2, "VALU->permlane")
                if c.get("readlane") and vdefs & c["uses"]: need(i, j, 1, "VALU->readlane")
                if c["kind"] == "mfma" and vdefs & c["uses"]: need(i, j, 2, "VALU->MFMA")
                if p.get("trans") and c["kind"] in ("valu", "mfma") and not c.get("trans") and vdefs & c["uses"]: need(i, j, 1, "trans->VALU")
                if p.get("trans") and c.get("trans") and vdefs & c["uses"]: need(i, j, 1, "trans->trans(safe)")
                if sdefs & c["uses"]:
                    if c["kind"] == "valu": need(i, j, 2 if not c.get("readlane") else 4, "VALU sgpr->VALU")
                    if c["kind"] == "vmem": need(i, j, 5, "VALU sgpr->VMEM")
                if ("x", "exec") in p["defs"] and c.get("dpp"): need(i, j, 5, "VALU exec->DPP")
            if p["kind"] == "mfma":
                if c["kind"] == "mfma":
                    if p["defs"] & (c["A"] | c["B"]): need(i, j, 8, "MFMA D->MFMA AB")
                    if p["defs"] & c["C"] and p["defs"] != c["C"]: need(i, j, 6, "MFMA D->C partial")
                elif p["defs"] & (c["uses"] | c["defs"]): need(i, j, 8, "MFMA D->use")
                if c["kind"] == "valu" and (p["C"] & c["defs"]): need(i, j, 3, "MFMA C WAR")
            if p["kind"] == "salu" and ("x", "m0") in p["defs"] and c.get("ldsdma"): need(i, j, 1, "m0->ldsdma")
            if p.get("widestore") and c["kind"] == "valu" and (p["widestore"] & c["defs"]): need(i, j, 2, "wide store WAR")
    return probs
```

```python
import sys
from asmlib import Emit, vr, sr, check_hazards

NAME = "sequential_preLN__compressed_kv_cla__mixer_token_mlp__decode_kernel"

WS_Q1, WS_QA, WS_CTX, WS_OP, WS_ST, WS_PART, WS_DBG = 0x10000, 0x50000, 0x60000, 0x70000, 0x80000, 0x100000, 0x400000
L_CKV = 0
L_WQ = 131072
L_QAS = 131072
QAS_STRIDE = 1056
L_PEX = L_QAS + 8 * QAS_STRIDE
L_MX = L_PEX + 4096
L_QSUM = 151552
L_CTXS = 152064
L_BNC = 152320
L_ORED = 154368
L_HS = 155392
L_ST7 = 157952
L_YRED = 158016
LDS_BYTES = 158208

S_W, S_X, S_I, S_ISB = 4, 5, 6, 7
P_X, P_CKV, P_WQ, P_WUK, P_WUV, P_WO, P_W1, P_B1, P_W2, P_B2, P_OUT, P_DBG, P_WS = 8, 10, 12, 14, 16, 18, 22, 24, 26, 28, 30, 32, 34
S_TAG, S_H1, S_J8 = 36, 37, 38
SRD_WQ, SRD_A, SRD_WO, SRD_W1, SRD_B1, SRD_W2 = 40, 44, 48, 52, 56, 60
S_T0 = 64
S_SPIN = 80
S_STAMP = 82

F32 = lambda x: "0x%08x" % __import__("struct").unpack("<I", __import__("struct").pack("<f", x))[0]

class Cfg:
    stamps = False
    npre = 4
    nt = True
    spin = 1 << 17

def gen(cfg):
    e = Emit()
    NT = " nt" if cfg.nt else ""
    nstamp = [0]
    def stamp(k):
        if cfg.stamps:
            e(f"s_memrealtime s[78:79]\ns_waitcnt lgkmcnt(0)\ns_mov_b32 s{S_STAMP+k}, s78")
    def dpp_reduce(regs, op="v_add_f32"):
        steps = ["row_shr:1 row_mask:0xf bank_mask:0xf bound_ctrl:0", "row_shr:2 row_mask:0xf bank_mask:0xf bound_ctrl:0",
                 "row_shr:4 row_mask:0xf bank_mask:0xf bound_ctrl:0", "row_shr:8 row_mask:0xf bank_mask:0xf bound_ctrl:0",
                 "row_bcast:15 row_mask:0xa bank_mask:0xf", "row_bcast:31 row_mask:0xc bank_mask:0xf"]
        pad = max(0, 2 - (len(regs) - 1))
        e.nop(2)
        for k, st in enumerate(steps):
            for r in regs:
                e(f"{op}_dpp v{r}, v{r}, v{r} {st}")
            if k < len(steps) - 1 and pad: e.nop(pad)
    def tagchk(acc, tags, first=True):
        for k, t in enumerate(tags):
            if first and k == 0:
                e(f"v_xor_b32 v{acc}, s{S_TAG}, v{t}")
            else:
                e(f"v_bitop3_b32 v{acc}, v{acc}, v{t}, s{S_TAG} bitop3:0xf6")
    def poll_tail(lbl_loop, lbl_done, acc):
        e(f"v_cmp_ne_u32 vcc, 0, v{acc}")
        e(f"s_cbranch_vccz {lbl_done}")
        e(f"s_sub_u32 s{S_SPIN}, s{S_SPIN}, 1")
        e(f"s_cbranch_scc0 {lbl_loop}")
        e("s_branch L_fail")
        e.label(lbl_done)

    e(f"""
    s_cmp_ge_u32 s2, 256
    s_cbranch_scc1 L_exit
    s_load_dwordx16 s[8:23], s[0:1], 0
    s_load_dwordx8 s[24:31], s[0:1], 64
    s_load_dwordx4 s[32:35], s[0:1], 96
    """)
    if cfg.stamps:
        e(f"s_memrealtime s[78:79]\ns_waitcnt lgkmcnt(0)\ns_mov_b32 s{S_STAMP}, s78")
    e(f"""
    v_and_b32 v1, 63, v0
    v_lshrrev_b32 v4, 6, v0
    v_lshrrev_b32 v2, 4, v1
    v_readfirstlane_b32 s{S_W}, v4
    v_and_b32 v3, 15, v1
    s_and_b32 s{S_X}, s2, 7
    s_bfe_u32 s{S_I}, s2, 0x40003
    s_lshr_b32 s{S_ISB}, s2, 7
    s_lshr_b32 s{S_H1}, s{S_I}, 2
    s_lshl_b32 s3, s{S_X}, 2
    s_add_u32 s{S_H1}, s{S_H1}, s3
    s_and_b32 s{S_J8}, s{S_I}, 3
    s_lshl_b32 s3, s{S_ISB}, 2
    s_add_u32 s{S_J8}, s{S_J8}, s3
    s_mul_i32 s3, s{S_J8}, 160
    v_lshl_add_u32 v5, v2, 3, s3
    v_lshlrev_b32 v6, 2, v1
    s_lshl_b32 s3, s{S_W}, 1
    v_add_u32 v4, s3, v2
    v_and_b32 v4, 7, v4
    v_lshlrev_b32 v4, 1, v4
    v_xor_b32 v4, v4, v3
    v_lshlrev_b32 v4, 4, v4
    v_lshl_add_u32 v7, v2, 13, v4
    v_xor_b32 v13, 128, v7
    s_mul_i32 s64, s{S_J8}, 80
    s_mul_i32 s65, s{S_W}, 10
    s_add_u32 s64, s64, s65
    s_lshl_b32 s64, s64, 13
    s_lshl_b32 s65, s{S_H1}, 8
    s_add_u32 s64, s64, s65
    s_add_u32 s65, s64, 32768
    s_add_u32 s66, s64, 65536
    s_mul_i32 s67, s{S_W}, 2560
    s_add_u32 s67, s67, {L_WQ}
    s_mov_b32 s{SRD_WQ+2}, 5242880
    s_mov_b32 s{SRD_WQ+3}, 0x20000
    s_mov_b32 s{S_SPIN}, {cfg.spin}
    """)
    e(f"""
    s_lshl_b32 s68, s{S_J8}, 7
    s_lshl_b32 s69, s{S_W}, 4
    s_add_u32 s68, s68, s69
    s_lshl_b32 s68, s68, 13
    s_lshl_b32 s69, s{S_H1}, 8
    s_add_u32 s68, s68, s69
    v_lshlrev_b32 v4, 13, v3
    v_lshl_add_u32 v4, v2, 4, v4
    v_add_u32 v4, s68, v4
    v_mov_b32 v60, 0
    v_add_u32 v61, {L_QSUM}, v6
    ds_write2st64_b32 v61, v60, v60 offset0:0 offset1:1
    s_waitcnt lgkmcnt(0)
    s_mov_b32 s{SRD_WQ}, s{P_WQ}
    s_mov_b32 s{SRD_WQ+1}, s{P_WQ+1}
    s_load_dword s{S_TAG}, s[{P_WS}:{P_WS+1}], 0
    """)
    for k in range(5):
        e(f"global_load_dword v{8+k}, v6, s[{P_X}:{P_X+1}] offset:{256*k}")
    for k in range(5):
        e(f"global_load_dwordx2 v[{14+2*k}:{15+2*k}], v5, s[{P_X}:{P_X+1}] offset:{32*k}")
    e(f"""
    s_mov_b32 m0, s67
    s_add_u32 s67, s67, 1024
    buffer_load_dwordx4 v7, s[{SRD_WQ}:{SRD_WQ+3}], s64 offen{NT} lds
    s_mov_b32 m0, s67
    s_add_u32 s67, s67, 1024
    buffer_load_dwordx4 v13, s[{SRD_WQ}:{SRD_WQ+3}], s65 offen{NT} lds
    s_mov_b32 m0, s67
    s_mov_b64 exec, 0xffffffff
    buffer_load_dwordx4 v7, s[{SRD_WQ}:{SRD_WQ+3}], s66 offen{NT} lds
    s_mov_b64 exec, -1
    s_cmp_eq_u32 s{S_ISB}, 0
    s_cbranch_scc0 L_s1_bwait
    """)
    for t in range(4):
        e(f"global_load_dwordx4 v[{24+4*t}:{27+4*t}], v4, s[{P_WUK}:{P_WUK+1}] offset:{64*t}{NT}")
    stamp(1)
    e("""
    s_waitcnt vmcnt(7)
    s_branch L_s1_ln
    """)
    e.label("L_s1_bwait")
    stamp(1)
    e("s_waitcnt vmcnt(3)")
    e.label("L_s1_ln")
    stamp(2)
    for k in range(5):
        e(f"v_lshlrev_b32 v{40+2*k}, 16, v{8+k}")
        e(f"v_and_b32 v{41+2*k}, 0xffff0000, v{8+k}")
    e("""
    v_add_f32 v50, v40, v41
    v_add_f32 v51, v42, v43
    v_add_f32 v52, v44, v45
    v_add_f32 v53, v46, v47
    v_add_f32 v54, v48, v49
    v_add_f32 v50, v50, v51
    v_add_f32 v52, v52, v53
    v_add_f32 v50, v50, v54
    v_add_f32 v50, v50, v52
    """)
    dpp_reduce([50])
    e.nop(1)
    e("v_readlane_b32 s70, v50, 63")
    e(f"v_mov_b32 v51, {F32(1.0/640)}")
    e.nop(1)
    e("v_mul_f32 v51, s70, v51")
    for k in range(10):
        e(f"v_sub_f32 v{40+k}, v{40+k}, v51")
    e("v_mul_f32 v52, v40, v40\nv_mul_f32 v53, v41, v41")
    for k in range(2, 10):
        e(f"v_fmac_f32 v{52+(k&1)}, v{40+k}, v{40+k}")
    e("v_add_f32 v52, v52, v53")
    dpp_reduce([52])
    e.nop(1)
    e("v_readlane_b32 s71, v52, 63")
    e(f"v_mov_b32 v53, {F32(1.0/640)}\nv_mov_b32 v54, {F32(1e-5)}")
    e("v_fma_f32 v52, s71, v53, v54")
    e("v_rsq_f32 v52, v52")
    e.nop(1)
    e("v_mul_f32 v53, v51, v52\nv_sub_f32 v53, 0, v53")
    for ks in range(5):
        a, b = 14 + 2 * ks, 15 + 2 * ks
        e(f"""
        v_lshlrev_b32 v54, 16, v{a}
        v_and_b32 v55, 0xffff0000, v{a}
        v_lshlrev_b32 v56, 16, v{b}
        v_and_b32 v57, 0xffff0000, v{b}
        v_fma_f32 v54, v54, v52, v53
        v_fma_f32 v55, v55, v52, v53
        v_fma_f32 v56, v56, v52, v53
        v_fma_f32 v57, v57, v52, v53
        v_cvt_pk_bf16_f32 v{40+2*ks}, v54, v55
        v_cvt_pk_bf16_f32 v{41+2*ks}, v56, v57
        """)
    def tr_common():
        e("""
        v_bfe_u32 v62, v1, 2, 2
        v_bfe_u32 v63, v1, 1, 1
        v_and_b32 v59, 1, v1
        v_lshlrev_b32 v59, 3, v59
        """)
    tr_common()
    e(f"""
    v_lshl_add_u32 v58, v2, 2, v62
    v_and_b32 v5, 7, v58
    v_lshlrev_b32 v5, 1, v5
    s_lshl_b32 s3, s{S_W}, 1
    v_add_u32 v6, s3, v63
    v_xor_b32 v5, v5, v6
    v_lshl_add_u32 v5, v5, 4, v59
    v_lshl_add_u32 v5, v58, 8, v5
    v_add_u32 v5, {L_WQ}, v5
    """)
    e(f"""
    s_lshl_b32 s3, s{S_H1}, 3
    s_add_u32 s3, s3, s{S_J8}
    s_lshl_b32 s3, s3, 10
    s_lshl_b32 s64, s{S_W}, 7
    s_add_u32 s3, s3, s64
    s_add_u32 s3, s3, {WS_Q1}
    v_and_b32 v6, 1, v1
    v_lshlrev_b32 v6, 4, v6
    v_lshl_add_u32 v6, v2, 5, v6
    v_add_u32 v6, s3, v6
    s_cmp_eq_u32 s{S_ISB}, 0
    s_cbranch_scc0 L_s1_bw2
    s_waitcnt vmcnt(4)
    s_branch L_s1_go
    """)
    e.label("L_s1_bw2")
    e(f"""
    s_mov_b32 s{SRD_A}, s{P_CKV}
    s_mov_b32 s{SRD_A+1}, s{P_CKV+1}
    s_mov_b32 s{SRD_A+2}, 4194304
    s_mov_b32 s{SRD_A+3}, 0x20000
    s_lshl_b32 s3, s{S_W}, 1
    v_xor_b32 v7, s3, v1
    v_lshlrev_b32 v7, 4, v7
    s_lshl_b32 s72, s{S_X}, 2
    s_and_b32 s3, s{S_I}, 3
    s_add_u32 s72, s72, s3
    s_lshl_b32 s73, s72, 17
    s_and_b32 s74, s{S_I}, 12
    s_waitcnt vmcnt(0)
    """)
    def ckv_dma(n):
        for _ in range(n):
            e(f"""
            s_lshl_b32 s75, s74, 3
            s_add_u32 s75, s75, s{S_W}
            s_lshl_b32 s75, s75, 10
            s_mov_b32 m0, s75
            s_add_u32 s76, s75, s73
            s_add_u32 s74, s74, 1
            buffer_load_dwordx4 v7, s[{SRD_A}:{SRD_A+3}], s76 offen{NT} lds
            s_and_b32 s74, s74, 15
            """)
    ckv_dma(cfg.npre)
    e.label("L_s1_go")
    e("s_waitcnt lgkmcnt(0)\ns_barrier")
    stamp(3)
    for ks in range(5):
        e(f"ds_read_b64_tr_b16 v[{64+2*ks}:{65+2*ks}], v5 offset:{4096*ks}")
    e("s_waitcnt lgkmcnt(0)")
    e("v_mfma_f32_16x16x16_bf16 v[76:79], v[64:65], v[40:41], 0")
    for ks in range(1, 5):
        e(f"v_mfma_f32_16x16x16_bf16 v[76:79], v[{64+2*ks}:{65+2*ks}], v[{40+2*ks}:{41+2*ks}], v[76:79]")
    e(f"""
    s_mov_b32 s64, 0xaaaaaaaa
    s_mov_b32 s65, 0xaaaaaaaa
    v_mov_b32 v81, s{S_TAG}
    v_mov_b32 v83, s{S_TAG}
    """)
    e.nop(4)
    e("""
    v_cndmask_b32 v80, v76, v78, s[64:65]
    v_cndmask_b32 v82, v77, v79, s[64:65]
    s_mov_b32 exec_lo, 0x00030003
    s_mov_b32 exec_hi, 0x00030003
    """)
    e(f"global_store_dwordx4 v6, v[80:83], s[{P_WS}:{P_WS+1}] sc1")
    e("s_mov_b64 exec, -1")
    stamp(4)
    e(f"s_cmp_eq_u32 s{S_ISB}, 0\ns_cbranch_scc0 L_B")

    e(f"""
    s_lshl_b32 s3, s{S_H1}, 3
    s_add_u32 s3, s3, s{S_W}
    s_lshl_b32 s3, s3, 10
    s_add_u32 s3, s3, {WS_Q1}
    v_lshl_add_u32 v5, v1, 4, s3
    """)
    e.label("L_h1")
    e(f"global_load_dwordx4 v[40:43], v5, s[{P_WS}:{P_WS+1}] sc1\ns_waitcnt vmcnt(0)")
    tagchk(44, [41, 43])
    poll_tail("L_h1", "L_h1_done", 44)
    stamp(5)
    e(f"""
    v_lshlrev_b32 v6, 2, v1
    v_add_u32 v6, {L_QSUM}, v6
    ds_add_f32 v6, v40
    ds_add_f32 v6, v42 offset:256
    """)
    e(f"""
    s_mov_b32 s{SRD_A}, s{P_WUV}
    s_mov_b32 s{SRD_A+1}, s{P_WUV+1}
    s_mov_b32 s{SRD_A+2}, 4194304
    s_mov_b32 s{SRD_A+3}, 0x20000
    s_lshl_b32 s3, s{S_W}, 2
    s_and_b32 s3, s3, 8
    v_lshlrev_b32 v7, 1, v2
    v_add_u32 v7, s3, v7
    v_xor_b32 v7, v7, v3
    v_lshlrev_b32 v7, 4, v7
    v_lshl_add_u32 v7, v2, 13, v7
    s_lshl_b32 s64, s{S_J8}, 5
    s_add_u32 s64, s64, s{S_W}
    s_lshl_b32 s64, s64, 15
    s_lshl_b32 s65, s{S_H1}, 8
    s_add_u32 s64, s64, s65
    s_lshl_b32 s65, s{S_W}, 10
    s_waitcnt lgkmcnt(0)
    s_barrier
    """)
    for ii in range(4):
        e(f"""
        s_mov_b32 m0, s65
        s_add_u32 s65, s65, 8192
        buffer_load_dwordx4 v7, s[{SRD_A}:{SRD_A+3}], s64 offen{NT} lds
        s_add_u32 s64, s64, {8*4*8192}
        """)
    e(f"v_lshlrev_b32 v6, 4, v2\nv_add_u32 v6, {L_QSUM}, v6")
    for t in range(4):
        e(f"ds_read_b128 v[{80+8*t}:{83+8*t}], v6 offset:{64*t}")
        e(f"ds_read_b128 v[{84+8*t}:{87+8*t}], v6 offset:{256+64*t}")
    for t in range(4):
        e(f"s_waitcnt lgkmcnt({6-2*t})")
        for i in range(4):
            e(f"v_cvt_pk_bf16_f32 v{112+4*t+i}, v{80+8*t+i}, v{84+8*t+i}")
    e.nop(1)
    e("v_mfma_f32_16x16x32_bf16 v[76:79], v[24:27], v[112:115], 0")
    for t in range(1, 4):
        e(f"v_mfma_f32_16x16x32_bf16 v[76:79], v[{24+4*t}:{27+4*t}], v[{112+4*t}:{115+4*t}], v[76:79]")
    e(f"""
    s_lshl_b32 s3, s{S_H1}, 11
    s_lshl_b32 s64, s{S_J8}, 9
    s_add_u32 s3, s3, s64
    s_lshl_b32 s64, s{S_W}, 6
    s_add_u32 s3, s3, s64
    s_add_u32 s3, s3, {WS_QA}
    v_lshl_add_u32 v6, v2, 4, s3
    v_mov_b32 v84, {F32(128**-0.5 * 1.4426950408889634)}
    v_mov_b32 v81, s{S_TAG}
    v_mov_b32 v83, s{S_TAG}
    """)
    e.nop(1)
    e("""
    v_mul_f32 v76, v76, v84
    v_mul_f32 v77, v77, v84
    v_mul_f32 v78, v78, v84
    v_mul_f32 v79, v79, v84
    v_cvt_pk_bf16_f32 v80, v76, v77
    v_cvt_pk_bf16_f32 v82, v78, v79
    s_mov_b32 exec_lo, 0x00010001
    s_mov_b32 exec_hi, 0x00010001
    """)
    e(f"global_store_dwordx4 v6, v[80:83], s[{P_WS}:{P_WS+1}] sc1\ns_mov_b64 exec, -1")
    stamp(6)
    def s7_loads():
        e(f"""
        s_mov_b32 s{SRD_W1}, s{P_W1}
        s_mov_b32 s{SRD_W1+1}, s{P_W1+1}
        s_mov_b32 s{SRD_W1+2}, 3456
        s_mov_b32 s{SRD_W1+3}, 0x20000
        s_mov_b32 s{SRD_B1}, s{P_B1}
        s_mov_b32 s{SRD_B1+1}, s{P_B1+1}
        s_mov_b32 s{SRD_B1+2}, 3456
        s_mov_b32 s{SRD_B1+3}, 0x20000
        s_mov_b32 s{SRD_W2}, s{P_W2}
        s_mov_b32 s{SRD_W2+1}, s{P_W2+1}
        s_mov_b32 s{SRD_W2+2}, 3456
        s_mov_b32 s{SRD_W2+3}, 0x20000
        s_lshl_b32 s3, s{S_W}, 8
        v_lshl_add_u32 v4, v1, 2, s3
        buffer_load_dword v224, v4, s[{SRD_W1}:{SRD_W1+3}], 0 offen
        buffer_load_dword v225, v4, s[{SRD_W1}:{SRD_W1+3}], 0 offen offset:2048
        buffer_load_dword v226, v4, s[{SRD_B1}:{SRD_B1+3}], 0 offen
        buffer_load_dword v227, v4, s[{SRD_B1}:{SRD_B1+3}], 0 offen offset:2048
        buffer_load_dword v228, v4, s[{SRD_W2}:{SRD_W2+3}], 0 offen
        buffer_load_dword v229, v4, s[{SRD_W2}:{SRD_W2+3}], 0 offen offset:2048
        v_mov_b32 v4, 0
        global_load_ushort v231, v4, s[{P_B2}:{P_B2+1}]
        """)
        e(f"""
        s_min_u32 s3, s{S_W}, 4
        s_lshl_b32 s3, s3, 8
        v_and_b32 v4, 31, v1
        v_lshlrev_b32 v4, 3, v4
        v_lshrrev_b32 v230, 5, v1
        v_lshl_add_u32 v4, v230, 2, v4
        v_add_u32 v4, s3, v4
        global_load_dword v230, v4, s[{P_X}:{P_X+1}]
        """)
    def s7_unpack():
        for k, (raw, dst) in enumerate([(224, 232), (225, 234), (226, 236), (227, 238), (228, 240), (229, 242)]):
            e(f"v_lshlrev_b32 v{dst}, 16, v{raw}\nv_and_b32 v{dst+1}, 0xffff0000, v{raw}")
    s7_loads()
    e(f"""
    s_lshl_b32 s3, s{S_H1}, 11
    s_lshl_b32 s64, s{S_J8}, 9
    s_add_u32 s3, s3, s64
    s_lshl_b32 s64, s{S_W}, 6
    s_add_u32 s3, s3, s64
    s_add_u32 s3, s3, {WS_PART}
    v_lshrrev_b32 v8, 2, v1
    v_and_b32 v9, 3, v1
    v_lshlrev_b32 v5, 16, v8
    v_lshl_add_u32 v5, v9, 4, v5
    v_add_u32 v5, s3, v5
    v_add_u32 v6, 0x100000, v5
    s_lshl_b32 s3, s{S_H1}, 9
    s_add_u32 s3, s3, {WS_ST}
    v_lshl_add_u32 v7, v8, 4, s3
    """)
    def h3_loads():
        e(f"""
        global_load_dwordx4 v[48:51], v7, s[{P_WS}:{P_WS+1}] sc1
        global_load_dwordx4 v[52:55], v7, s[{P_WS}:{P_WS+1}] offset:256 sc1
        global_load_dwordx4 v[40:43], v5, s[{P_WS}:{P_WS+1}] sc1
        global_load_dwordx4 v[44:47], v6, s[{P_WS}:{P_WS+1}] sc1
        """)
    h3_loads()
    tr_common()
    e(f"""
    v_and_b32 v10, 1, v2
    v_lshl_add_u32 v10, v10, 2, v62
    v_lshlrev_b32 v10, 1, v10
    s_lshl_b32 s3, s{S_W}, 1
    v_add_u32 v11, s3, v63
    v_xor_b32 v10, v10, v11
    v_lshl_add_u32 v10, v10, 4, v59
    v_lshl_add_u32 v11, v2, 3, v62
    v_lshl_add_u32 v10, v11, 8, v10
    s_waitcnt vmcnt(0)
    s_barrier
    """)
    for ks in range(4):
        e(f"ds_read_b64_tr_b16 v[{128+4*ks}:{129+4*ks}], v10 offset:{8192*ks}")
        e(f"ds_read_b64_tr_b16 v[{130+4*ks}:{131+4*ks}], v10 offset:{8192*ks+1024}")
    s7_unpack()
    e("s_branch L_h3_chk")
    e.label("L_h3")
    h3_loads()
    e("s_waitcnt vmcnt(0)")
    e.label("L_h3_chk")
    tagchk(56, [49, 51, 53, 55, 41, 43, 45, 47])
    poll_tail("L_h3", "L_h3_done", 56)
    stamp(8)
    e("v_max_f32 v56, v48, v52")
    e.nop(2)
    e("v_max_f32_dpp v56, v56, v56 row_ror:4 row_mask:0xf bank_mask:0xf")
    e("""
    v_lshlrev_b32 v60, 16, v40
    v_and_b32 v61, 0xffff0000, v40
    """)
    e("v_max_f32_dpp v56, v56, v56 row_ror:8 row_mask:0xf bank_mask:0xf")
    e("""
    v_lshlrev_b32 v62, 16, v42
    v_mov_b32 v57, v56
    v_and_b32 v63, 0xffff0000, v42
    v_lshlrev_b32 v64, 16, v44
    v_permlane16_swap_b32 v56, v57
    v_and_b32 v65, 0xffff0000, v44
    v_lshlrev_b32 v66, 16, v46
    v_max_f32 v56, v56, v57
    v_and_b32 v67, 0xffff0000, v46
    v_mov_b32 v57, v56
    """)
    e.nop(2)
    e("v_permlane32_swap_b32 v56, v57")
    e.nop(1)
    e("""
    v_max_f32 v56, v56, v57
    v_sub_f32 v48, v48, v56
    v_sub_f32 v52, v52, v56
    v_exp_f32 v48, v48
    v_exp_f32 v52, v52
    """)
    e.nop(1)
    e("""
    v_mul_f32 v57, v48, v50
    v_mul_f32 v60, v48, v60
    v_mul_f32 v61, v48, v61
    v_mul_f32 v62, v48, v62
    v_mul_f32 v63, v48, v63
    v_fmac_f32 v57, v52, v54
    v_fmac_f32 v60, v52, v64
    v_fmac_f32 v61, v52, v65
    v_fmac_f32 v62, v52, v66
    v_fmac_f32 v63, v52, v67
    """)
    for st in ("row_ror:4", "row_ror:8"):
        for r in (57, 60, 61, 62, 63):
            e(f"v_add_f32_dpp v{r}, v{r}, v{r} {st} row_mask:0xf bank_mask:0xf")
    e("""
    v_mov_b32 v58, v57
    s_nop 0
    v_permlane16_swap_b32 v60, v62
    v_permlane16_swap_b32 v61, v63
    v_permlane16_swap_b32 v57, v58
    s_nop 0
    v_add_f32 v60, v60, v62
    v_add_f32 v61, v61, v63
    v_add_f32 v57, v57, v58
    s_nop 0
    v_mov_b32 v58, v57
    v_permlane32_swap_b32 v60, v61
    s_nop 0
    v_permlane32_swap_b32 v57, v58
    s_nop 0
    v_add_f32 v60, v60, v61
    v_add_f32 v57, v57, v58
    v_rcp_f32 v57, v57
    """)
    e(f"""
    v_and_b32 v58, 1, v2
    v_lshlrev_b32 v58, 1, v58
    v_lshrrev_b32 v59, 1, v2
    v_or_b32 v58, v58, v59
    v_and_b32 v59, 3, v1
    v_lshl_add_u32 v58, v59, 2, v58
    s_lshl_b32 s3, s{S_W}, 4
    v_add_u32 v58, s3, v58
    v_lshlrev_b32 v58, 1, v58
    v_add_u32 v58, {L_CTXS}, v58
    v_mul_f32 v60, v60, v57
    v_cvt_pk_bf16_f32 v60, v60, v60
    s_mov_b32 exec_lo, 0x000f000f
    s_mov_b32 exec_hi, 0x000f000f
    ds_write_b16 v58, v60
    s_mov_b64 exec, -1
    v_lshlrev_b32 v6, 4, v2
    v_add_u32 v6, {L_CTXS}, v6
    s_waitcnt lgkmcnt(0)
    s_barrier
    """)
    for ks in range(4):
        e(f"ds_read_b128 v[{112+4*ks}:{115+4*ks}], v6 offset:{64*ks}")
    for ks in range(4):
        e(f"s_waitcnt lgkmcnt({3-ks})")
        c = "0" if ks == 0 else "v[76:79]"
        e(f"v_mfma_f32_16x16x32_bf16 v[76:79], v[{128+4*ks}:{131+4*ks}], v[{112+4*ks}:{115+4*ks}], {c}")
    e(f"""
    s_lshl_b32 s3, s{S_H1}, 2
    s_add_u32 s3, s3, s{S_J8}
    s_lshl_b32 s3, s3, 9
    s_lshl_b32 s64, s{S_W}, 6
    s_add_u32 s3, s3, s64
    s_add_u32 s3, s3, {WS_CTX}
    v_lshl_add_u32 v6, v2, 4, s3
    v_mov_b32 v81, s{S_TAG}
    v_mov_b32 v83, s{S_TAG}
    """)
    e.nop(1)
    e("""
    v_cvt_pk_bf16_f32 v80, v76, v77
    v_cvt_pk_bf16_f32 v82, v78, v79
    s_mov_b32 exec_lo, 0x00010001
    s_mov_b32 exec_hi, 0x00010001
    """)
    e(f"global_store_dwordx4 v6, v[80:83], s[{P_WS}:{P_WS+1}] sc1\ns_mov_b64 exec, -1")
    stamp(9)
    e("s_branch L_S7")

    e.label("L_B")
    ckv_dma(16 - cfg.npre)
    e(f"""
    s_lshr_b32 s3, s{S_I}, 2
    s_lshl_b32 s3, s3, 3
    s_add_u32 s3, s3, s{S_W}
    s_lshl_b32 s3, s3, 11
    s_add_u32 s3, s3, {WS_QA}
    v_lshl_add_u32 v5, v1, 5, s3
    global_load_dwordx4 v[40:43], v5, s[{P_WS}:{P_WS+1}] sc1
    global_load_dwordx4 v[44:47], v5, s[{P_WS}:{P_WS+1}] offset:16 sc1
    """)
    e(f"""
    s_lshl_b32 s3, s{S_W}, 4
    v_add_u32 v12, s3, v3
    v_lshlrev_b32 v12, 10, v12
    v_and_b32 v13, 7, v1
    v_lshlrev_b32 v13, 1, v13
    """)
    for jj in range(4):
        e(f"""
        v_add_u32 v{8+jj}, {4*jj}, v2
        v_xor_b32 v{8+jj}, v{8+jj}, v13
        v_lshl_add_u32 v{8+jj}, v{8+jj}, 4, v12
        """)
    tr_common()
    e(f"""
    v_lshl_add_u32 v58, v2, 2, v62
    v_and_b32 v13, 7, v58
    v_lshlrev_b32 v13, 1, v13
    v_lshlrev_b32 v58, 10, v58
    v_add_u32 v58, v58, v59
    s_lshl_b32 s3, s{S_W}, 3
    v_add_u32 v12, s3, v63
    """)
    for tt in range(4):
        e(f"""
        v_add_u32 v{16+tt}, {2*tt}, v12
        v_xor_b32 v{16+tt}, v{16+tt}, v13
        v_lshl_add_u32 v{16+tt}, v{16+tt}, 4, v58
        """)
    e("s_waitcnt vmcnt(0)\ns_barrier")
    stamp(14)
    for j in range(16):
        e(f"ds_read_b128 v[{64+4*j}:{67+4*j}], v{8+(j&3)} offset:{256*(j>>2)}")
    for half in range(2):
        for tt in range(4):
            for k2 in range(2):
                ks = 2 * half + k2
                for eb in range(2):
                    r = 128 + 16 * tt + 4 * ks + 2 * eb
                    e(f"ds_read_b64_tr_b16 v[{r}:{r+1}], v{16+tt} offset:{32768*k2+16384*eb}")
        if half == 0:
            for tt in range(4):
                e(f"v_add_u32 v{16+tt}, 0x10000, v{16+tt}")
    e("s_branch L_h2_chk")
    e.label("L_h2")
    e(f"""
    global_load_dwordx4 v[40:43], v5, s[{P_WS}:{P_WS+1}] sc1
    global_load_dwordx4 v[44:47], v5, s[{P_WS}:{P_WS+1}] offset:16 sc1
    s_waitcnt vmcnt(0)
    """)
    e.label("L_h2_chk")
    tagchk(48, [41, 43, 45, 47])
    poll_tail("L_h2", "L_h2_done", 48)
    stamp(5)
    e(f"""
    v_mov_b32 v41, v42
    v_mov_b32 v42, v44
    v_mov_b32 v43, v46
    s_mul_i32 s3, s{S_W}, {QAS_STRIDE}
    s_add_u32 s3, s3, {L_QAS}
    v_lshl_add_u32 v6, v1, 4, s3
    ds_write_b128 v6, v[40:43]
    v_and_b32 v6, 7, v3
    v_mul_u32_u24 v6, {QAS_STRIDE}, v6
    v_lshl_add_u32 v6, v2, 4, v6
    v_add_u32 v6, {L_QAS}, v6
    s_waitcnt lgkmcnt(0)
    s_barrier
    """)
    def qb(j): return 192 + 4 * j if j < 8 else 32 + 4 * (j - 8)
    for j in range(16):
        e(f"ds_read_b128 v[{qb(j)}:{qb(j)+3}], v6 offset:{64*j}")
    e(f"s_cmp_lt_u32 s{S_I}, 10\ns_cbranch_scc0 L_b_nowo")
    e(f"""
    s_mov_b32 s{SRD_WO}, s{P_WO}
    s_mov_b32 s{SRD_WO+1}, s{P_WO+1}
    s_mov_b32 s{SRD_WO+2}, 5242880
    s_mov_b32 s{SRD_WO+3}, 0x20000
    s_lshr_b32 s64, s{S_X}, 1
    s_lshl_b32 s64, s64, 3
    s_add_u32 s64, s64, s{S_W}
    s_mul_i32 s64, s64, {128*1280}
    s_and_b32 s65, s{S_X}, 1
    s_mul_i32 s65, s65, 10
    s_add_u32 s65, s65, s{S_I}
    s_lshl_b32 s65, s65, 6
    s_add_u32 s64, s64, s65
    s_lshl_b32 s65, s{S_W}, 13
    v_lshrrev_b32 v12, 2, v1
    v_mul_u32_u24 v12, 1280, v12
    v_lshrrev_b32 v13, 5, v1
    v_lshlrev_b32 v13, 1, v13
    v_and_b32 v14, 3, v1
    v_xor_b32 v13, v13, v14
    v_lshl_add_u32 v12, v13, 4, v12
    """)
    for ii in range(8):
        e(f"""
        s_mov_b32 m0, s65
        s_add_u32 s65, s65, 1024
        buffer_load_dwordx4 v12, s[{SRD_WO}:{SRD_WO+3}], s64 offen{NT} lds
        s_add_u32 s64, s64, {16*1280}
        """)
    e.label("L_b_nowo")
    for j in range(16):
        if j == 0: e("s_waitcnt lgkmcnt(12)")
        elif j % 4 == 0: e(f"s_waitcnt lgkmcnt({12-j})")
        c = "0" if j == 0 else "v[8:11]"
        e(f"v_mfma_f32_16x16x32_bf16 v[8:11], v[{64+4*j}:{67+4*j}], v[{qb(j)}:{qb(j)+3}], {c}")
    s7_loads()
    e(f"""
    v_and_b32 v6, 7, v3
    v_lshlrev_b32 v6, 5, v6
    v_add_u32 v6, {L_MX}, v6
    s_lshl_b32 s3, s{S_W}, 2
    v_add_u32 v7, s3, v6
    v_max_f32 v12, v8, v9
    v_max3_f32 v12, v10, v11, v12
    v_mov_b32 v13, v12
    """)
    e.nop(2)
    e("v_permlane16_swap_b32 v12, v13")
    e.nop(1)
    e("v_max_f32 v12, v12, v13\nv_mov_b32 v13, v12")
    e.nop(2)
    e("v_permlane32_swap_b32 v12, v13")
    e.nop(1)
    e("""
    v_max_f32 v12, v12, v13
    s_mov_b64 exec, 0xff
    ds_write_b32 v7, v12
    s_mov_b64 exec, -1
    s_waitcnt lgkmcnt(0)
    s_barrier
    ds_read_b128 v[16:19], v6
    ds_read_b128 v[20:23], v6 offset:16
    """)
    e(f"""
    s_lshl_b32 s3, s{S_W}, 9
    s_add_u32 s3, s3, {L_PEX}
    v_lshl_add_u32 v7, v1, 3, s3
    v_lshlrev_b32 v6, 3, v1
    v_add_u32 v6, {L_PEX}, v6
    s_waitcnt lgkmcnt(0)
    v_max3_f32 v12, v16, v17, v18
    v_max3_f32 v13, v19, v20, v21
    v_max3_f32 v12, v22, v23, v12
    v_max_f32 v12, v12, v13
    v_sub_f32 v8, v8, v12
    v_sub_f32 v9, v9, v12
    v_sub_f32 v10, v10, v12
    v_sub_f32 v11, v11, v12
    v_exp_f32 v8, v8
    v_exp_f32 v9, v9
    v_exp_f32 v10, v10
    v_exp_f32 v11, v11
    s_nop 0
    v_cvt_pk_bf16_f32 v14, v8, v9
    v_cvt_pk_bf16_f32 v15, v10, v11
    ds_write_b64 v7, v[14:15]
    v_mov_b32 v212, 0x3f803f80
    v_mov_b32 v213, 0x3f803f80
    v_mov_b32 v214, 0x3f803f80
    v_mov_b32 v215, 0x3f803f80
    s_waitcnt lgkmcnt(0)
    s_barrier
    """)
    for t in range(8):
        e(f"ds_read_b64 v[{16+2*t}:{17+2*t}], v6 offset:{512*t}")
    stamp(6)
    for ks in range(4):
        e(f"s_waitcnt lgkmcnt({6-2*ks})")
        for tt in range(4):
            c = "0" if ks == 0 else f"v[{192+4*tt}:{195+4*tt}]"
            r = 128 + 16 * tt + 4 * ks
            e(f"v_mfma_f32_16x16x32_bf16 v[{192+4*tt}:{195+4*tt}], v[{r}:{r+3}], v[{16+4*ks}:{19+4*ks}], {c}")
        c = "0" if ks == 0 else "v[208:211]"
        e(f"v_mfma_f32_16x16x32_bf16 v[208:211], v[212:215], v[{16+4*ks}:{19+4*ks}], {c}")
    e(f"""
    s_lshl_b32 s3, s72, 16
    s_lshr_b32 s64, s{S_I}, 2
    s_lshl_b32 s65, s64, 14
    s_add_u32 s3, s3, s65
    s_lshl_b32 s65, s{S_W}, 8
    s_add_u32 s3, s3, s65
    s_add_u32 s3, s3, {WS_PART}
    v_lshlrev_b32 v6, 11, v3
    v_lshl_add_u32 v6, v2, 4, v6
    v_add_u32 v6, s3, v6
    s_lshl_b32 s64, s64, 12
    s_lshl_b32 s65, s72, 4
    s_add_u32 s64, s64, s65
    s_add_u32 s64, s64, {WS_ST}
    v_lshlrev_b32 v7, 9, v3
    v_add_u32 v7, s64, v7
    """)
    for tt in range(4):
        e(f"v_mov_b32 v{33+4*tt}, s{S_TAG}\nv_mov_b32 v{35+4*tt}, s{S_TAG}")
    e("s_mov_b32 exec_lo, 0x00ff00ff\ns_mov_b32 exec_hi, 0x00ff00ff")
    for tt in range(4):
        a = 192 + 4 * tt
        e(f"v_cvt_pk_bf16_f32 v{32+4*tt}, v{a}, v{a+1}\nv_cvt_pk_bf16_f32 v{34+4*tt}, v{a+2}, v{a+3}")
        e(f"global_store_dwordx4 v6, v[{32+4*tt}:{35+4*tt}], s[{P_WS}:{P_WS+1}] offset:{64*tt} sc1")
    e(f"""
    s_cmp_eq_u32 s{S_W}, 0
    s_cbranch_scc0 L_b_nostat
    v_mov_b32 v48, v12
    v_mov_b32 v49, s{S_TAG}
    v_mov_b32 v50, v208
    v_mov_b32 v51, s{S_TAG}
    s_mov_b64 exec, 0xff
    global_store_dwordx4 v7, v[48:51], s[{P_WS}:{P_WS+1}] sc1
    """)
    e.label("L_b_nostat")
    e("s_mov_b64 exec, -1")
    stamp(7)
    s7_unpack_done = False
    e(f"s_cmp_lt_u32 s{S_I}, 10\ns_cbranch_scc1 L_s6\ns_waitcnt vmcnt(0)")
    s7_unpack()
    e("s_branch L_S7")
    e.label("L_s6")
    e(f"""
    s_lshr_b32 s3, s{S_X}, 1
    s_lshl_b32 s3, s3, 3
    s_add_u32 s3, s3, s{S_W}
    s_lshl_b32 s3, s3, 11
    s_add_u32 s3, s3, {WS_CTX}
    v_lshlrev_b32 v5, 9, v2
    v_lshl_add_u32 v5, v3, 5, v5
    v_add_u32 v5, s3, v5
    global_load_dwordx4 v[40:43], v5, s[{P_WS}:{P_WS+1}] sc1
    global_load_dwordx4 v[44:47], v5, s[{P_WS}:{P_WS+1}] offset:16 sc1
    """)
    tr_common()
    e(f"""
    v_lshl_add_u32 v58, v2, 3, v62
    v_lshlrev_b32 v58, 6, v58
    v_add_u32 v58, v58, v59
    s_lshl_b32 s3, s{S_W}, 13
    v_add_u32 v58, s3, v58
    v_and_b32 v13, 1, v2
    v_lshlrev_b32 v13, 1, v13
    v_xor_b32 v8, v63, v13
    v_xor_b32 v9, 2, v8
    v_lshl_add_u32 v8, v8, 4, v58
    v_lshl_add_u32 v9, v9, 4, v58
    s_waitcnt vmcnt(0)
    """)
    for tt in range(2):
        for ks in range(4):
            r = 64 + 16 * tt + 4 * ks
            e(f"ds_read_b64_tr_b16 v[{r}:{r+1}], v{8+tt} offset:{2048*ks}")
            e(f"ds_read_b64_tr_b16 v[{r+2}:{r+3}], v{8+tt} offset:{2048*ks+256}")
    s7_unpack()
    e("s_branch L_h4_chk")
    e.label("L_h4")
    e(f"""
    global_load_dwordx4 v[40:43], v5, s[{P_WS}:{P_WS+1}] sc1
    global_load_dwordx4 v[44:47], v5, s[{P_WS}:{P_WS+1}] offset:16 sc1
    s_waitcnt vmcnt(0)
    """)
    e.label("L_h4_chk")
    tagchk(48, [41, 43, 45, 47])
    poll_tail("L_h4", "L_h4_done", 48)
    stamp(10)
    for k, src in enumerate([40, 42, 44, 46]):
        e(f"v_lshlrev_b32 v{50+2*k}, 16, v{src}\nv_and_b32 v{51+2*k}, 0xffff0000, v{src}")
    e(f"""
    s_lshl_b32 s3, s{S_W}, 8
    s_add_u32 s3, s3, {L_BNC}
    v_lshl_add_u32 v6, v3, 2, v2
    v_lshlrev_b32 v6, 2, v6
    v_add_u32 v6, s3, v6
    v_lshl_add_u32 v7, v2, 4, s3
    """)
    for i in range(4):
        e(f"v_permlane32_swap_b32 v{50+i}, v{54+i}")
    e.nop(1)
    for i in range(4):
        e(f"v_add_f32 v{50+i}, v{50+i}, v{54+i}")
    e.nop(1)
    e("v_permlane16_swap_b32 v50, v52\nv_permlane16_swap_b32 v51, v53")
    e.nop(1)
    e("""
    v_add_f32 v50, v50, v52
    v_add_f32 v51, v51, v53
    v_cvt_pk_bf16_f32 v50, v50, v51
    ds_write_b32 v6, v50
    s_waitcnt lgkmcnt(0)
    """)
    for ks in range(4):
        e(f"ds_read_b128 v[{112+4*ks}:{115+4*ks}], v7 offset:{64*ks}")
    for ks in range(4):
        e(f"s_waitcnt lgkmcnt({3-ks})")
        for tt in range(2):
            c = "0" if ks == 0 else f"v[{32+4*tt}:{35+4*tt}]"
            r = 64 + 16 * tt + 4 * ks
            e(f"v_mfma_f32_16x16x32_bf16 v[{32+4*tt}:{35+4*tt}], v[{r}:{r+3}], v[{112+4*ks}:{115+4*ks}], {c}")
    e(f"""
    s_lshl_b32 s3, s{S_W}, 7
    s_add_u32 s3, s3, {L_ORED}
    v_lshl_add_u32 v6, v2, 4, s3
    v_lshlrev_b32 v7, 3, v1
    v_add_u32 v7, {L_ORED}, v7
    s_mov_b32 exec_lo, 0x00010001
    s_mov_b32 exec_hi, 0x00010001
    """)
    e.nop(4)
    e(f"""
    ds_write_b128 v6, v[32:35]
    ds_write_b128 v6, v[36:39] offset:64
    s_mov_b64 exec, -1
    s_waitcnt lgkmcnt(0)
    s_barrier
    s_cmp_eq_u32 s{S_W}, 0
    s_cbranch_scc0 L_S7
    s_mov_b64 exec, 0xffff
    """)
    for w in range(8):
        e(f"ds_read_b64 v[{40+2*w}:{41+2*w}], v7 offset:{128*w}")
    e(f"""
    s_lshr_b32 s3, s{S_X}, 1
    s_mul_i32 s3, s3, 2560
    s_and_b32 s64, s{S_X}, 1
    s_mul_i32 s64, s64, 10
    s_add_u32 s64, s64, s{S_I}
    s_lshl_b32 s64, s64, 7
    s_add_u32 s3, s3, s64
    s_add_u32 s3, s3, {WS_OP}
    v_lshl_add_u32 v6, v1, 3, s3
    s_waitcnt lgkmcnt(0)
    v_pk_add_f32 v[40:41], v[40:41], v[42:43]
    v_pk_add_f32 v[44:45], v[44:45], v[46:47]
    v_pk_add_f32 v[48:49], v[48:49], v[50:51]
    v_pk_add_f32 v[52:53], v[52:53], v[54:55]
    v_pk_add_f32 v[40:41], v[40:41], v[44:45]
    v_pk_add_f32 v[48:49], v[48:49], v[52:53]
    v_pk_add_f32 v[40:41], v[40:41], v[48:49]
    v_cvt_pk_bf16_f32 v40, v40, v41
    v_mov_b32 v41, s{S_TAG}
    global_store_dwordx2 v6, v[40:41], s[{P_WS}:{P_WS+1}] sc1
    s_mov_b64 exec, -1
    """)
    stamp(11)

    e.label("L_S7")
    e(f"s_cmp_lt_u32 s{S_W}, 5\ns_cbranch_scc0 L_s7_bar")
    e(f"""
    v_lshrrev_b32 v8, 5, v1
    v_mul_u32_u24 v5, 2560, v8
    v_and_b32 v9, 31, v1
    v_lshl_add_u32 v5, v9, 4, v5
    s_lshl_b32 s3, s{S_W}, 9
    s_add_u32 s3, s3, {WS_OP}
    v_add_u32 v5, s3, v5
    v_add_u32 v6, 5120, v5
    """)
    e.label("L_h5")
    e(f"""
    global_load_dwordx4 v[40:43], v5, s[{P_WS}:{P_WS+1}] sc1
    global_load_dwordx4 v[44:47], v6, s[{P_WS}:{P_WS+1}] sc1
    s_waitcnt vmcnt(0)
    """)
    tagchk(48, [41, 43, 45, 47])
    poll_tail("L_h5", "L_h5_done", 48)
    stamp(12)
    for k, src in enumerate([40, 42, 44, 46]):
        e(f"v_lshlrev_b32 v{50+2*k}, 16, v{src}\nv_and_b32 v{51+2*k}, 0xffff0000, v{src}")
    e(f"""
    v_pk_add_f32 v[50:51], v[50:51], v[54:55]
    v_pk_add_f32 v[52:53], v[52:53], v[56:57]
    v_lshlrev_b32 v58, 16, v230
    v_and_b32 v59, 0xffff0000, v230
    v_permlane32_swap_b32 v50, v52
    v_permlane32_swap_b32 v51, v53
    s_lshl_b32 s3, s{S_W}, 9
    s_add_u32 s3, s3, {L_HS}
    v_lshlrev_b32 v6, 4, v9
    v_lshl_add_u32 v6, v8, 3, v6
    v_add_u32 v6, s3, v6
    v_add_f32 v50, v50, v52
    v_add_f32 v51, v51, v53
    v_pk_add_f32 v[50:51], v[50:51], v[58:59]
    ds_write_b64 v6, v[50:51]
    v_add_f32 v52, v50, v51
    v_mul_f32 v53, v50, v50
    v_fmac_f32 v53, v51, v51
    """)
    dpp_reduce([52, 53])
    e(f"""
    s_lshl_b32 s3, s{S_W}, 3
    s_add_u32 s3, s3, {L_ST7}
    v_mov_b32 v6, s3
    s_mov_b32 exec_lo, 0
    s_mov_b32 exec_hi, 0x80000000
    ds_write_b64 v6, v[52:53]
    s_mov_b64 exec, -1
    """)
    e.label("L_s7_bar")
    e(f"""
    s_waitcnt vmcnt(0) lgkmcnt(0)
    s_barrier
    s_cmp_lt_u32 s2, 214
    s_cbranch_scc0 L_fin
    v_mov_b32 v6, {L_ST7}
    s_mul_i32 s3, s2, 12
    s_add_u32 s3, s3, {L_HS}
    v_mov_b32 v7, s3
    ds_read_b128 v[40:43], v6
    ds_read_b128 v[44:47], v6 offset:16
    ds_read_b64 v[48:49], v6 offset:32
    ds_read_b32 v50, v7
    ds_read_b32 v52, v7 offset:4
    ds_read_b32 v54, v7 offset:8
    v_mov_b32 v60, {F32(1.0/640)}
    v_mov_b32 v61, {F32(1e-5)}
    v_mov_b32 v64, {F32(-2.0*0.7978845608028654*1.4426950408889634)}
    v_mov_b32 v66, {F32(-2.0*0.7978845608028654*1.4426950408889634*0.044715)}
    s_waitcnt lgkmcnt(3)
    v_pk_add_f32 v[40:41], v[40:41], v[42:43]
    v_pk_add_f32 v[44:45], v[44:45], v[46:47]
    v_pk_add_f32 v[40:41], v[40:41], v[48:49]
    v_pk_add_f32 v[40:41], v[40:41], v[44:45]
    v_mul_f32 v40, v40, v60
    v_mul_f32 v41, v41, v60
    v_fma_f32 v41, -v40, v40, v41
    v_max_f32 v41, 0, v41
    v_add_f32 v42, v41, v61
    v_rsq_f32 v42, v42
    s_nop 0
    v_mul_f32 v43, v42, v42
    v_fma_f32 v43, v43, v41, v61
    v_rsq_f32 v43, v43
    s_nop 0
    v_mul_f32 v42, v42, v43
    s_waitcnt lgkmcnt(0)
    v_sub_f32 v70, v50, v40
    v_sub_f32 v72, v52, v40
    v_sub_f32 v74, v54, v40
    v_mul_f32 v70, v70, v42
    v_mul_f32 v72, v72, v42
    v_mul_f32 v74, v74, v42
    """)
    combos = [(r, o) for o in range(3) for r in range(2)]
    for c, (r, o) in enumerate(combos):
        e(f"v_pk_fma_f32 v[{80+2*c}:{81+2*c}], v[{70+2*o}:{71+2*o}], v[{232+2*r}:{233+2*r}], v[{236+2*r}:{237+2*r}] op_sel_hi:[0,1,1]")
    for c in range(6):
        e(f"v_pk_mul_f32 v[{92+2*c}:{93+2*c}], v[{80+2*c}:{81+2*c}], v[{80+2*c}:{81+2*c}]")
    for c in range(6):
        e(f"v_pk_fma_f32 v[{92+2*c}:{93+2*c}], v[{92+2*c}:{93+2*c}], v[66:67], v[64:65] op_sel_hi:[1,0,0]")
    for c in range(6):
        e(f"v_pk_mul_f32 v[{92+2*c}:{93+2*c}], v[{92+2*c}:{93+2*c}], v[{80+2*c}:{81+2*c}]")
    for c in range(12):
        e(f"v_exp_f32 v{92+c}, v{92+c}")
    for c in range(6):
        e(f"v_pk_add_f32 v[{92+2*c}:{93+2*c}], v[{92+2*c}:{93+2*c}], 1.0 op_sel_hi:[1,0]")
    for c in range(12):
        e(f"v_rcp_f32 v{92+c}, v{92+c}")
    for c in range(6):
        e(f"v_pk_mul_f32 v[{80+2*c}:{81+2*c}], v[{80+2*c}:{81+2*c}], v[{92+2*c}:{93+2*c}]")
    for o in range(3):
        e(f"v_pk_mul_f32 v[{104+2*o}:{105+2*o}], v[{80+4*o}:{81+4*o}], v[240:241]")
    for o in range(3):
        e(f"v_pk_fma_f32 v[{104+2*o}:{105+2*o}], v[{82+4*o}:{83+4*o}], v[242:243], v[{104+2*o}:{105+2*o}]")
    e("v_add_f32 v110, v104, v105\nv_add_f32 v111, v106, v107\nv_add_f32 v112, v108, v109\nv_mov_b32 v113, 0")
    dpp_reduce([110, 111, 112])
    e(f"""
    s_lshl_b32 s3, s{S_W}, 4
    s_add_u32 s3, s3, {L_YRED}
    v_mov_b32 v6, s3
    s_mov_b32 exec_lo, 0
    s_mov_b32 exec_hi, 0x80000000
    ds_write_b128 v6, v[110:113]
    s_mov_b64 exec, -1
    s_waitcnt lgkmcnt(0)
    s_barrier
    s_cmp_eq_u32 s{S_W}, 0
    s_cbranch_scc0 L_fin
    s_mul_i32 s3, s2, 3
    v_add_u32 v8, s3, v1
    v_cmp_gt_u32 vcc, 640, v8
    s_and_b64 vcc, vcc, 7
    s_and_saveexec_b64 s[64:65], vcc
    s_cbranch_execz L_fin0
    v_lshlrev_b32 v6, 2, v1
    v_add_u32 v6, {L_YRED}, v6
    v_lshlrev_b32 v7, 2, v8
    v_add_u32 v7, {L_HS}, v7
    """)
    for w in range(8):
        e(f"ds_read_b32 v{40+w}, v6 offset:{16*w}")
    e(f"""
    ds_read_b32 v48, v7
    v_lshlrev_b32 v49, 16, v231
    v_lshlrev_b32 v8, 1, v8
    s_waitcnt lgkmcnt(0)
    v_add_f32 v40, v40, v41
    v_add_f32 v42, v42, v43
    v_add_f32 v44, v44, v45
    v_add_f32 v46, v46, v47
    v_add_f32 v40, v40, v42
    v_add_f32 v44, v44, v46
    v_add_f32 v40, v40, v44
    v_add_f32 v40, v40, v49
    v_add_f32 v40, v40, v48
    v_cvt_pk_bf16_f32 v40, v40, v40
    global_store_short v8, v40, s[{P_OUT}:{P_OUT+1}]
    """)
    e.label("L_fin0")
    e("s_mov_b64 exec, s[64:65]")
    e.label("L_fin")
    stamp(13)
    e(f"""
    s_cmp_eq_u32 s2, 0
    s_cbranch_scc0 L_noepoch
    s_cmp_eq_u32 s{S_W}, 0
    s_cbranch_scc0 L_noepoch
    v_mov_b32 v6, 0
    v_mov_b32 v7, s{S_TAG}
    s_mov_b64 exec, 1
    global_store_dword v6, v7, s[{P_WS}:{P_WS+1}] sc1
    s_mov_b64 exec, -1
    """)
    e.label("L_noepoch")
    if cfg.stamps:
        e(f"""
        s_lshl_b32 s3, s2, 3
        s_add_u32 s3, s3, s{S_W}
        s_lshl_b32 s3, s3, 6
        s_add_u32 s3, s3, {WS_DBG}
        v_mov_b32 v6, s3
        s_mov_b64 exec, 1
        """)
        for q in range(4):
            for k in range(4):
                e(f"v_mov_b32 v{8+k}, s{S_STAMP+4*q+k}")
            e(f"global_store_dwordx4 v6, v[8:11], s[{P_WS}:{P_WS+1}] offset:{16*q}")
            e.nop(2)
        e("s_mov_b64 exec, -1")
    e("s_waitcnt vmcnt(0)")
    e.label("L_exit")
    e("s_endpgm")
    e.label("L_fail")
    e("s_endpgm")
    return e

def tag_fix(e):
    pass

def render(cfg):
    e = gen(cfg)
    body = e.text()
    marker = "L_s1_go:\n    s_waitcnt lgkmcnt(0)\n"
    assert marker in body
    body = body.replace(marker, marker + f"    s_mul_i32 s{S_TAG}, s{S_TAG}, 1664525\n    s_add_u32 s{S_TAG}, s{S_TAG}, 1013904223\n")
    hdr = open("cdna_kernels/" + NAME[:-7] + ".s.ref").read().split("; Override launch geometry")[0]
    out = hdr + f"; @launch grid=(256,1,1) block=(512,1,1) lds={LDS_BYTES}\n"
    out += f""".amdgcn_target "amdgcn-amd-amdhsa--gfx950"
.text
.globl {NAME}
.p2align 8
.type {NAME},@function
{NAME}:
{body}.section .rodata,"a"
.p2align 6
.amdhsa_kernel {NAME}
  .amdhsa_next_free_vgpr 256
  .amdhsa_next_free_sgpr 102
  .amdhsa_accum_offset 256
  .amdhsa_group_segment_fixed_size 0
  .amdhsa_kernarg_size 112
  .amdhsa_user_sgpr_count 2
  .amdhsa_user_sgpr_kernarg_segment_ptr 1
  .amdhsa_system_sgpr_workgroup_id_x 1
.end_amdhsa_kernel
"""
    return out, body

if __name__ == "__main__":
    cfg = Cfg()
    outp = sys.argv[1] if len(sys.argv) > 1 else "cdna_kernels/" + NAME[:-7] + ".s"
    for a in sys.argv[2:]:
        k, v = a.split("=")
        setattr(cfg, k, type(getattr(cfg, k))(int(v)))
    out, body = render(cfg)
    probs = check_hazards(body)
    for p in probs: print("HAZARD", p)
    open(outp, "w").write(out)
    print("wrote", outp, len(out), "bytes;", len(body.splitlines()), "lines")
```

```python
import sys
from asmlib import Emit, vr, sr, check_hazards

NAME = "sequential_preLN__compressed_kv_cla__mixer_token_mlp__decode_kernel"

WS_Q1, WS_QA, WS_CTX, WS_OP, WS_ST, WS_PART, WS_DBG = 0x10000, 0x50000, 0x60000, 0x70000, 0x80000, 0x100000, 0x400000
L_CKV = 0
L_WQ = 131072
L_QAS = 131072
QAS_STRIDE = 1056
L_PEX = L_QAS + 8 * QAS_STRIDE
L_MX = L_PEX + 4096
L_QSUM = 151552
L_CTXS = 152064
L_BNC = 152320
L_ORED = 154368
L_HS = 155392
L_ST7 = 157952
L_YRED = 158016
LDS_BYTES = 158208

S_W, S_X, S_I, S_ISB = 4, 5, 6, 7
P_X, P_CKV, P_WQ, P_WUK, P_WUV, P_WO, P_W1, P_B1, P_W2, P_B2, P_OUT, P_DBG, P_WS = 8, 10, 12, 14, 16, 18, 22, 24, 26, 28, 30, 32, 34
S_TAG, S_H1, S_J8 = 36, 37, 38
SRD_WQ, SRD_A, SRD_WO, SRD_W1, SRD_B1, SRD_W2 = 40, 44, 48, 52, 56, 60
S_T0 = 64
S_SPIN = 100
S_STAMP = 70

F32 = lambda x: "0x%08x" % __import__("struct").unpack("<I", __import__("struct").pack("<f", x))[0]

class Cfg:
    stamps = False
    npre = 4
    nt = True
    spin = 1 << 17
    sleep = 0
    dbgstamps = 0

def gen(cfg):
    e = Emit()
    NT = " nt" if cfg.nt else ""
    nstamp = [0]
    def stamp(k):
        if cfg.stamps:
            e(f"s_memrealtime s[{S_STAMP+2*k}:{S_STAMP+2*k+1}]")
    def dpp_reduce(regs, op="v_add_f32"):
        steps = ["row_shr:1 row_mask:0xf bank_mask:0xf bound_ctrl:0", "row_shr:2 row_mask:0xf bank_mask:0xf bound_ctrl:0",
                 "row_shr:4 row_mask:0xf bank_mask:0xf bound_ctrl:0", "row_shr:8 row_mask:0xf bank_mask:0xf bound_ctrl:0",
                 "row_bcast:15 row_mask:0xa bank_mask:0xf", "row_bcast:31 row_mask:0xc bank_mask:0xf"]
        pad = max(0, 2 - (len(regs) - 1))
        e.nop(2)
        for k, st in enumerate(steps):
            for r in regs:
                e(f"{op}_dpp v{r}, v{r}, v{r} {st}")
            if k < len(steps) - 1 and pad: e.nop(pad)
    def tagchk(acc, tags, first=True):
        for k, t in enumerate(tags):
            if first and k == 0:
                e(f"v_xor_b32 v{acc}, s{S_TAG}, v{t}")
            else:
                e(f"v_bitop3_b32 v{acc}, v{acc}, v{t}, s{S_TAG} bitop3:0xf6")
    def poll_tail(lbl_loop, lbl_done, acc):
        e(f"v_cmp_ne_u32 vcc, 0, v{acc}")
        e(f"s_cbranch_vccz {lbl_done}")
        if cfg.sleep: e(f"s_sleep {cfg.sleep}")
        e(f"s_sub_u32 s{S_SPIN}, s{S_SPIN}, 1")
        e(f"s_cbranch_scc0 {lbl_loop}")
        e("s_branch L_fail")
        e.label(lbl_done)

    e(f"""
    s_cmp_ge_u32 s2, 256
    s_cbranch_scc1 L_exit
    s_load_dwordx16 s[8:23], s[0:1], 0
    s_load_dwordx8 s[24:31], s[0:1], 64
    s_load_dwordx4 s[32:35], s[0:1], 96
    """)
    if cfg.stamps:
        e(f"s_memrealtime s[{S_STAMP}:{S_STAMP+1}]")
        for k in range(1, 15): e(f"s_mov_b32 s{S_STAMP+2*k}, 0")
    e(f"""
    v_and_b32 v1, 63, v0
    v_lshrrev_b32 v4, 6, v0
    v_lshrrev_b32 v2, 4, v1
    v_readfirstlane_b32 s{S_W}, v4
    v_and_b32 v3, 15, v1
    s_and_b32 s{S_X}, s2, 7
    s_bfe_u32 s{S_I}, s2, 0x40003
    s_lshr_b32 s{S_ISB}, s2, 7
    s_lshr_b32 s{S_H1}, s{S_I}, 2
    s_lshl_b32 s3, s{S_X}, 2
    s_add_u32 s{S_H1}, s{S_H1}, s3
    s_and_b32 s{S_J8}, s{S_I}, 3
    s_lshl_b32 s3, s{S_ISB}, 2
    s_add_u32 s{S_J8}, s{S_J8}, s3
    s_mul_i32 s3, s{S_J8}, 160
    v_lshl_add_u32 v5, v2, 3, s3
    v_lshlrev_b32 v6, 2, v1
    s_lshl_b32 s3, s{S_W}, 1
    v_add_u32 v4, s3, v2
    v_and_b32 v4, 7, v4
    v_lshlrev_b32 v4, 1, v4
    v_xor_b32 v4, v4, v3
    v_lshlrev_b32 v4, 4, v4
    v_lshl_add_u32 v7, v2, 13, v4
    v_xor_b32 v13, 128, v7
    s_mul_i32 s64, s{S_J8}, 80
    s_mul_i32 s65, s{S_W}, 10
    s_add_u32 s64, s64, s65
    s_lshl_b32 s64, s64, 13
    s_lshl_b32 s65, s{S_H1}, 8
    s_add_u32 s64, s64, s65
    s_add_u32 s65, s64, 32768
    s_add_u32 s66, s64, 65536
    s_mul_i32 s67, s{S_W}, 2560
    s_add_u32 s67, s67, {L_WQ}
    s_mov_b32 s{SRD_WQ+2}, 5242880
    s_mov_b32 s{SRD_WQ+3}, 0x20000
    s_mov_b32 s{S_SPIN}, {cfg.spin}
    """)
    e(f"""
    s_lshl_b32 s68, s{S_J8}, 7
    s_lshl_b32 s69, s{S_W}, 4
    s_add_u32 s68, s68, s69
    s_lshl_b32 s68, s68, 13
    s_lshl_b32 s69, s{S_H1}, 8
    s_add_u32 s68, s68, s69
    v_lshlrev_b32 v4, 13, v3
    v_lshl_add_u32 v4, v2, 4, v4
    v_add_u32 v4, s68, v4
    v_mov_b32 v60, 0
    v_add_u32 v61, {L_QSUM}, v6
    ds_write2st64_b32 v61, v60, v60 offset0:0 offset1:1
    s_waitcnt lgkmcnt(0)
    s_mov_b32 s{SRD_WQ}, s{P_WQ}
    s_mov_b32 s{SRD_WQ+1}, s{P_WQ+1}
    s_load_dword s{S_TAG}, s[{P_WS}:{P_WS+1}], 0
    """)
    for k in range(5):
        e(f"global_load_dword v{8+k}, v6, s[{P_X}:{P_X+1}] offset:{256*k}")
    for k in range(5):
        e(f"global_load_dwordx2 v[{14+2*k}:{15+2*k}], v5, s[{P_X}:{P_X+1}] offset:{32*k}")
    e(f"""
    s_mov_b32 m0, s67
    s_add_u32 s67, s67, 1024
    buffer_load_dwordx4 v7, s[{SRD_WQ}:{SRD_WQ+3}], s64 offen{NT} lds
    s_mov_b32 m0, s67
    s_add_u32 s67, s67, 1024
    buffer_load_dwordx4 v13, s[{SRD_WQ}:{SRD_WQ+3}], s65 offen{NT} lds
    s_mov_b32 m0, s67
    s_mov_b64 exec, 0xffffffff
    buffer_load_dwordx4 v7, s[{SRD_WQ}:{SRD_WQ+3}], s66 offen{NT} lds
    s_mov_b64 exec, -1
    s_cmp_eq_u32 s{S_ISB}, 0
    s_cbranch_scc0 L_s1_bwait
    """)
    for t in range(4):
        e(f"global_load_dwordx4 v[{24+4*t}:{27+4*t}], v4, s[{P_WUK}:{P_WUK+1}] offset:{64*t}{NT}")
    stamp(1)
    e("""
    s_waitcnt vmcnt(7)
    s_branch L_s1_ln
    """)
    e.label("L_s1_bwait")
    stamp(1)
    e("s_waitcnt vmcnt(3)")
    e.label("L_s1_ln")
    stamp(2)
    for k in range(5):
        e(f"v_lshlrev_b32 v{40+2*k}, 16, v{8+k}")
        e(f"v_and_b32 v{41+2*k}, 0xffff0000, v{8+k}")
    e("""
    v_add_f32 v50, v40, v41
    v_add_f32 v51, v42, v43
    v_add_f32 v52, v44, v45
    v_add_f32 v53, v46, v47
    v_add_f32 v54, v48, v49
    v_add_f32 v50, v50, v51
    v_add_f32 v52, v52, v53
    v_add_f32 v50, v50, v54
    v_add_f32 v50, v50, v52
    """)
    dpp_reduce([50])
    e.nop(1)
    e("v_readlane_b32 s20, v50, 63")
    e(f"v_mov_b32 v51, {F32(1.0/640)}")
    e.nop(1)
    e("v_mul_f32 v51, s20, v51")
    for k in range(10):
        e(f"v_sub_f32 v{40+k}, v{40+k}, v51")
    e("v_mul_f32 v52, v40, v40\nv_mul_f32 v53, v41, v41")
    for k in range(2, 10):
        e(f"v_fmac_f32 v{52+(k&1)}, v{40+k}, v{40+k}")
    e("v_add_f32 v52, v52, v53")
    dpp_reduce([52])
    e.nop(1)
    e("v_readlane_b32 s21, v52, 63")
    e(f"v_mov_b32 v53, {F32(1.0/640)}\nv_mov_b32 v54, {F32(1e-5)}")
    e("v_fma_f32 v52, s21, v53, v54")
    e("v_rsq_f32 v52, v52")
    e.nop(1)
    e("v_mul_f32 v53, v51, v52\nv_sub_f32 v53, 0, v53")
    for ks in range(5):
        a, b = 14 + 2 * ks, 15 + 2 * ks
        e(f"""
        v_lshlrev_b32 v54, 16, v{a}
        v_and_b32 v55, 0xffff0000, v{a}
        v_lshlrev_b32 v56, 16, v{b}
        v_and_b32 v57, 0xffff0000, v{b}
        v_fma_f32 v54, v54, v52, v53
        v_fma_f32 v55, v55, v52, v53
        v_fma_f32 v56, v56, v52, v53
        v_fma_f32 v57, v57, v52, v53
        v_cvt_pk_bf16_f32 v{40+2*ks}, v54, v55
        v_cvt_pk_bf16_f32 v{41+2*ks}, v56, v57
        """)
    def tr_common():
        e("""
        v_bfe_u32 v62, v1, 2, 2
        v_bfe_u32 v63, v1, 1, 1
        v_and_b32 v59, 1, v1
        v_lshlrev_b32 v59, 3, v59
        """)
    tr_common()
    e(f"""
    v_lshl_add_u32 v58, v2, 2, v62
    v_and_b32 v5, 7, v58
    v_lshlrev_b32 v5, 1, v5
    s_lshl_b32 s3, s{S_W}, 1
    v_add_u32 v6, s3, v63
    v_xor_b32 v5, v5, v6
    v_lshl_add_u32 v5, v5, 4, v59
    v_lshl_add_u32 v5, v58, 8, v5
    v_add_u32 v5, {L_WQ}, v5
    """)
    e(f"""
    s_lshl_b32 s3, s{S_H1}, 3
    s_add_u32 s3, s3, s{S_J8}
    s_lshl_b32 s3, s3, 10
    s_lshl_b32 s64, s{S_W}, 7
    s_add_u32 s3, s3, s64
    s_add_u32 s3, s3, {WS_Q1}
    v_and_b32 v6, 1, v1
    v_lshlrev_b32 v6, 4, v6
    v_lshl_add_u32 v6, v2, 5, v6
    v_add_u32 v6, s3, v6
    s_cmp_eq_u32 s{S_ISB}, 0
    s_cbranch_scc0 L_s1_bw2
    s_waitcnt vmcnt(4)
    s_branch L_s1_go
    """)
    e.label("L_s1_bw2")
    e(f"""
    s_mov_b32 s{SRD_A}, s{P_CKV}
    s_mov_b32 s{SRD_A+1}, s{P_CKV+1}
    s_mov_b32 s{SRD_A+2}, 4194304
    s_mov_b32 s{SRD_A+3}, 0x20000
    s_lshl_b32 s3, s{S_W}, 1
    v_xor_b32 v7, s3, v1
    v_lshlrev_b32 v7, 4, v7
    s_lshl_b32 s39, s{S_X}, 2
    s_and_b32 s3, s{S_I}, 3
    s_add_u32 s39, s39, s3
    s_lshl_b32 s20, s39, 17
    s_and_b32 s21, s{S_I}, 12
    s_waitcnt vmcnt(0)
    """)
    def ckv_dma(n):
        for _ in range(n):
            e(f"""
            s_lshl_b32 s68, s21, 3
            s_add_u32 s68, s68, s{S_W}
            s_lshl_b32 s68, s68, 10
            s_mov_b32 m0, s68
            s_add_u32 s69, s68, s20
            s_add_u32 s21, s21, 1
            buffer_load_dwordx4 v7, s[{SRD_A}:{SRD_A+3}], s69 offen{NT} lds
            s_and_b32 s21, s21, 15
            """)
    ckv_dma(cfg.npre)
    e.label("L_s1_go")
    e("s_waitcnt lgkmcnt(0)\ns_barrier")
    stamp(3)
    for ks in range(5):
        e(f"ds_read_b64_tr_b16 v[{64+2*ks}:{65+2*ks}], v5 offset:{4096*ks}")
    e("s_waitcnt lgkmcnt(0)")
    e("v_mfma_f32_16x16x16_bf16 v[76:79], v[64:65], v[40:41], 0")
    for ks in range(1, 5):
        e(f"v_mfma_f32_16x16x16_bf16 v[76:79], v[{64+2*ks}:{65+2*ks}], v[{40+2*ks}:{41+2*ks}], v[76:79]")
    e(f"""
    s_mov_b32 s64, 0xaaaaaaaa
    s_mov_b32 s65, 0xaaaaaaaa
    v_mov_b32 v81, s{S_TAG}
    v_mov_b32 v83, s{S_TAG}
    """)
    e.nop(4)
    e("""
    v_cndmask_b32 v80, v76, v78, s[64:65]
    v_cndmask_b32 v82, v77, v79, s[64:65]
    s_mov_b32 exec_lo, 0x00030003
    s_mov_b32 exec_hi, 0x00030003
    """)
    e(f"global_store_dwordx4 v6, v[80:83], s[{P_WS}:{P_WS+1}] sc1")
    e("s_mov_b64 exec, -1")
    stamp(4)
    e(f"s_cmp_eq_u32 s{S_ISB}, 0\ns_cbranch_scc0 L_B")

    e(f"""
    s_lshl_b32 s3, s{S_H1}, 3
    s_add_u32 s3, s3, s{S_W}
    s_lshl_b32 s3, s3, 10
    s_add_u32 s3, s3, {WS_Q1}
    v_lshl_add_u32 v5, v1, 4, s3
    """)
    e.label("L_h1")
    e(f"global_load_dwordx4 v[40:43], v5, s[{P_WS}:{P_WS+1}] sc1\ns_waitcnt vmcnt(0)")
    tagchk(44, [41, 43])
    poll_tail("L_h1", "L_h1_done", 44)
    stamp(5)
    e(f"""
    v_lshlrev_b32 v6, 2, v1
    v_add_u32 v6, {L_QSUM}, v6
    ds_add_f32 v6, v40
    ds_add_f32 v6, v42 offset:256
    """)
    e(f"""
    s_mov_b32 s{SRD_A}, s{P_WUV}
    s_mov_b32 s{SRD_A+1}, s{P_WUV+1}
    s_mov_b32 s{SRD_A+2}, 4194304
    s_mov_b32 s{SRD_A+3}, 0x20000
    s_lshl_b32 s3, s{S_W}, 2
    s_and_b32 s3, s3, 8
    v_lshlrev_b32 v7, 1, v2
    v_add_u32 v7, s3, v7
    v_xor_b32 v7, v7, v3
    v_lshlrev_b32 v7, 4, v7
    v_lshl_add_u32 v7, v2, 13, v7
    s_lshl_b32 s64, s{S_J8}, 5
    s_add_u32 s64, s64, s{S_W}
    s_lshl_b32 s64, s64, 15
    s_lshl_b32 s65, s{S_H1}, 8
    s_add_u32 s64, s64, s65
    s_lshl_b32 s65, s{S_W}, 10
    s_waitcnt lgkmcnt(0)
    s_barrier
    """)
    stamp(7)
    for ii in range(4):
        e(f"""
        s_mov_b32 m0, s65
        s_add_u32 s65, s65, 8192
        buffer_load_dwordx4 v7, s[{SRD_A}:{SRD_A+3}], s64 offen{NT} lds
        s_add_u32 s64, s64, {8*4*8192}
        """)
    stamp(10)
    e(f"v_lshlrev_b32 v6, 4, v2\nv_add_u32 v6, {L_QSUM}, v6")
    for t in range(4):
        e(f"ds_read_b128 v[{80+8*t}:{83+8*t}], v6 offset:{64*t}")
        e(f"ds_read_b128 v[{84+8*t}:{87+8*t}], v6 offset:{256+64*t}")
    for t in range(4):
        e(f"s_waitcnt lgkmcnt({6-2*t})")
        for i in range(4):
            e(f"v_cvt_pk_bf16_f32 v{112+4*t+i}, v{80+8*t+i}, v{84+8*t+i}")
    stamp(11)
    e.nop(1)
    e("v_mfma_f32_16x16x32_bf16 v[76:79], v[24:27], v[112:115], 0")
    for t in range(1, 4):
        e(f"v_mfma_f32_16x16x32_bf16 v[76:79], v[{24+4*t}:{27+4*t}], v[{112+4*t}:{115+4*t}], v[76:79]")
    e(f"""
    s_lshl_b32 s3, s{S_H1}, 11
    s_lshl_b32 s64, s{S_J8}, 9
    s_add_u32 s3, s3, s64
    s_lshl_b32 s64, s{S_W}, 6
    s_add_u32 s3, s3, s64
    s_add_u32 s3, s3, {WS_QA}
    v_lshl_add_u32 v6, v2, 4, s3
    v_mov_b32 v84, {F32(128**-0.5 * 1.4426950408889634)}
    v_mov_b32 v81, s{S_TAG}
    v_mov_b32 v83, s{S_TAG}
    """)
    e.nop(1)
    e("""
    v_mul_f32 v76, v76, v84
    v_mul_f32 v77, v77, v84
    v_mul_f32 v78, v78, v84
    v_mul_f32 v79, v79, v84
    v_cvt_pk_bf16_f32 v80, v76, v77
    v_cvt_pk_bf16_f32 v82, v78, v79
    s_mov_b32 exec_lo, 0x00010001
    s_mov_b32 exec_hi, 0x00010001
    """)
    e(f"global_store_dwordx4 v6, v[80:83], s[{P_WS}:{P_WS+1}] sc1\ns_mov_b64 exec, -1")
    stamp(6)
    def s7_loads():
        e(f"""
        s_mov_b32 s{SRD_W1}, s{P_W1}
        s_mov_b32 s{SRD_W1+1}, s{P_W1+1}
        s_mov_b32 s{SRD_W1+2}, 3456
        s_mov_b32 s{SRD_W1+3}, 0x20000
        s_mov_b32 s{SRD_B1}, s{P_B1}
        s_mov_b32 s{SRD_B1+1}, s{P_B1+1}
        s_mov_b32 s{SRD_B1+2}, 3456
        s_mov_b32 s{SRD_B1+3}, 0x20000
        s_mov_b32 s{SRD_W2}, s{P_W2}
        s_mov_b32 s{SRD_W2+1}, s{P_W2+1}
        s_mov_b32 s{SRD_W2+2}, 3456
        s_mov_b32 s{SRD_W2+3}, 0x20000
        s_lshl_b32 s3, s{S_W}, 8
        v_lshl_add_u32 v4, v1, 2, s3
        buffer_load_dword v224, v4, s[{SRD_W1}:{SRD_W1+3}], 0 offen
        buffer_load_dword v225, v4, s[{SRD_W1}:{SRD_W1+3}], 0 offen offset:2048
        buffer_load_dword v226, v4, s[{SRD_B1}:{SRD_B1+3}], 0 offen
        buffer_load_dword v227, v4, s[{SRD_B1}:{SRD_B1+3}], 0 offen offset:2048
        buffer_load_dword v228, v4, s[{SRD_W2}:{SRD_W2+3}], 0 offen
        buffer_load_dword v229, v4, s[{SRD_W2}:{SRD_W2+3}], 0 offen offset:2048
        v_mov_b32 v4, 0
        global_load_ushort v231, v4, s[{P_B2}:{P_B2+1}]
        """)
        e(f"""
        s_min_u32 s3, s{S_W}, 4
        s_lshl_b32 s3, s3, 8
        v_and_b32 v4, 31, v1
        v_lshlrev_b32 v4, 3, v4
        v_lshrrev_b32 v230, 5, v1
        v_lshl_add_u32 v4, v230, 2, v4
        v_add_u32 v4, s3, v4
        global_load_dword v230, v4, s[{P_X}:{P_X+1}]
        """)
    def s7_unpack():
        for k, (raw, dst) in enumerate([(224, 232), (225, 234), (226, 236), (227, 238), (228, 240), (229, 242)]):
            e(f"v_lshlrev_b32 v{dst}, 16, v{raw}\nv_and_b32 v{dst+1}, 0xffff0000, v{raw}")
    s7_loads()
    e(f"""
    s_lshl_b32 s3, s{S_H1}, 11
    s_lshl_b32 s64, s{S_J8}, 9
    s_add_u32 s3, s3, s64
    s_lshl_b32 s64, s{S_W}, 6
    s_add_u32 s3, s3, s64
    s_add_u32 s3, s3, {WS_PART}
    v_lshrrev_b32 v8, 2, v1
    v_and_b32 v9, 3, v1
    v_lshlrev_b32 v5, 16, v8
    v_lshl_add_u32 v5, v9, 4, v5
    v_add_u32 v5, s3, v5
    v_add_u32 v6, 0x100000, v5
    s_lshl_b32 s3, s{S_H1}, 9
    s_add_u32 s3, s3, {WS_ST}
    v_lshl_add_u32 v7, v8, 4, s3
    """)
    def h3_loads():
        e(f"""
        global_load_dwordx4 v[48:51], v7, s[{P_WS}:{P_WS+1}] sc1
        global_load_dwordx4 v[52:55], v7, s[{P_WS}:{P_WS+1}] offset:256 sc1
        global_load_dwordx4 v[40:43], v5, s[{P_WS}:{P_WS+1}] sc1
        global_load_dwordx4 v[44:47], v6, s[{P_WS}:{P_WS+1}] sc1
        """)
    h3_loads()
    tr_common()
    e(f"""
    v_and_b32 v10, 1, v2
    v_lshl_add_u32 v10, v10, 2, v62
    v_lshlrev_b32 v10, 1, v10
    s_lshl_b32 s3, s{S_W}, 1
    v_add_u32 v11, s3, v63
    v_xor_b32 v10, v10, v11
    v_lshl_add_u32 v10, v10, 4, v59
    v_lshl_add_u32 v11, v2, 3, v62
    v_lshl_add_u32 v10, v11, 8, v10
    s_waitcnt vmcnt(0)
    s_barrier
    """)
    for ks in range(4):
        e(f"ds_read_b64_tr_b16 v[{128+4*ks}:{129+4*ks}], v10 offset:{8192*ks}")
        e(f"ds_read_b64_tr_b16 v[{130+4*ks}:{131+4*ks}], v10 offset:{8192*ks+1024}")
    s7_unpack()
    e("s_branch L_h3_chk")
    e.label("L_h3")
    h3_loads()
    e("s_waitcnt vmcnt(0)")
    e.label("L_h3_chk")
    tagchk(56, [49, 51, 53, 55, 41, 43, 45, 47])
    poll_tail("L_h3", "L_h3_done", 56)
    stamp(8)
    e("v_max_f32 v56, v48, v52")
    e.nop(2)
    e("v_max_f32_dpp v56, v56, v56 row_ror:4 row_mask:0xf bank_mask:0xf")
    e("""
    v_lshlrev_b32 v60, 16, v40
    v_and_b32 v61, 0xffff0000, v40
    """)
    e("v_max_f32_dpp v56, v56, v56 row_ror:8 row_mask:0xf bank_mask:0xf")
    e("""
    v_lshlrev_b32 v62, 16, v42
    v_mov_b32 v57, v56
    v_and_b32 v63, 0xffff0000, v42
    v_lshlrev_b32 v64, 16, v44
    v_permlane16_swap_b32 v56, v57
    v_and_b32 v65, 0xffff0000, v44
    v_lshlrev_b32 v66, 16, v46
    v_max_f32 v56, v56, v57
    v_and_b32 v67, 0xffff0000, v46
    v_mov_b32 v57, v56
    """)
    e.nop(2)
    e("v_permlane32_swap_b32 v56, v57")
    e.nop(1)
    e("""
    v_max_f32 v56, v56, v57
    v_sub_f32 v48, v48, v56
    v_sub_f32 v52, v52, v56
    v_exp_f32 v48, v48
    v_exp_f32 v52, v52
    """)
    e.nop(1)
    e("""
    v_mul_f32 v57, v48, v50
    v_mul_f32 v60, v48, v60
    v_mul_f32 v61, v48, v61
    v_mul_f32 v62, v48, v62
    v_mul_f32 v63, v48, v63
    v_fmac_f32 v57, v52, v54
    v_fmac_f32 v60, v52, v64
    v_fmac_f32 v61, v52, v65
    v_fmac_f32 v62, v52, v66
    v_fmac_f32 v63, v52, v67
    """)
    for st in ("row_ror:4", "row_ror:8"):
        for r in (57, 60, 61, 62, 63):
            e(f"v_add_f32_dpp v{r}, v{r}, v{r} {st} row_mask:0xf bank_mask:0xf")
    e("""
    v_mov_b32 v58, v57
    s_nop 0
    v_permlane16_swap_b32 v60, v62
    v_permlane16_swap_b32 v61, v63
    v_permlane16_swap_b32 v57, v58
    s_nop 0
    v_add_f32 v60, v60, v62
    v_add_f32 v61, v61, v63
    v_add_f32 v57, v57, v58
    s_nop 0
    v_mov_b32 v58, v57
    v_permlane32_swap_b32 v60, v61
    s_nop 0
    v_permlane32_swap_b32 v57, v58
    s_nop 0
    v_add_f32 v60, v60, v61
    v_add_f32 v57, v57, v58
    v_rcp_f32 v57, v57
    """)
    e(f"""
    v_and_b32 v58, 1, v2
    v_lshlrev_b32 v58, 1, v58
    v_lshrrev_b32 v59, 1, v2
    v_or_b32 v58, v58, v59
    v_and_b32 v59, 3, v1
    v_lshl_add_u32 v58, v59, 2, v58
    s_lshl_b32 s3, s{S_W}, 4
    v_add_u32 v58, s3, v58
    v_lshlrev_b32 v58, 1, v58
    v_add_u32 v58, {L_CTXS}, v58
    v_mul_f32 v60, v60, v57
    v_cvt_pk_bf16_f32 v60, v60, v60
    s_mov_b32 exec_lo, 0x000f000f
    s_mov_b32 exec_hi, 0x000f000f
    ds_write_b16 v58, v60
    s_mov_b64 exec, -1
    v_lshlrev_b32 v6, 4, v2
    v_add_u32 v6, {L_CTXS}, v6
    s_waitcnt lgkmcnt(0)
    s_barrier
    """)
    for ks in range(4):
        e(f"ds_read_b128 v[{112+4*ks}:{115+4*ks}], v6 offset:{64*ks}")
    for ks in range(4):
        e(f"s_waitcnt lgkmcnt({3-ks})")
        c = "0" if ks == 0 else "v[76:79]"
        e(f"v_mfma_f32_16x16x32_bf16 v[76:79], v[{128+4*ks}:{131+4*ks}], v[{112+4*ks}:{115+4*ks}], {c}")
    e(f"""
    s_lshl_b32 s3, s{S_H1}, 2
    s_add_u32 s3, s3, s{S_J8}
    s_lshl_b32 s3, s3, 9
    s_lshl_b32 s64, s{S_W}, 6
    s_add_u32 s3, s3, s64
    s_add_u32 s3, s3, {WS_CTX}
    v_lshl_add_u32 v6, v2, 4, s3
    v_mov_b32 v81, s{S_TAG}
    v_mov_b32 v83, s{S_TAG}
    """)
    e.nop(1)
    e("""
    v_cvt_pk_bf16_f32 v80, v76, v77
    v_cvt_pk_bf16_f32 v82, v78, v79
    s_mov_b32 exec_lo, 0x00010001
    s_mov_b32 exec_hi, 0x00010001
    """)
    e(f"global_store_dwordx4 v6, v[80:83], s[{P_WS}:{P_WS+1}] sc1\ns_mov_b64 exec, -1")
    stamp(9)
    e("s_branch L_S7")

    e.label("L_B")
    ckv_dma(16 - cfg.npre)
    e(f"""
    s_lshr_b32 s3, s{S_I}, 2
    s_lshl_b32 s3, s3, 3
    s_add_u32 s3, s3, s{S_W}
    s_lshl_b32 s3, s3, 11
    s_add_u32 s3, s3, {WS_QA}
    v_lshl_add_u32 v5, v1, 5, s3
    global_load_dwordx4 v[40:43], v5, s[{P_WS}:{P_WS+1}] sc1
    global_load_dwordx4 v[44:47], v5, s[{P_WS}:{P_WS+1}] offset:16 sc1
    """)
    e(f"""
    s_lshl_b32 s3, s{S_W}, 4
    v_add_u32 v12, s3, v3
    v_lshlrev_b32 v12, 10, v12
    v_and_b32 v13, 7, v1
    v_lshlrev_b32 v13, 1, v13
    """)
    for jj in range(4):
        e(f"""
        v_add_u32 v{8+jj}, {4*jj}, v2
        v_xor_b32 v{8+jj}, v{8+jj}, v13
        v_lshl_add_u32 v{8+jj}, v{8+jj}, 4, v12
        """)
    tr_common()
    e(f"""
    v_lshl_add_u32 v58, v2, 2, v62
    v_and_b32 v13, 7, v58
    v_lshlrev_b32 v13, 1, v13
    v_lshlrev_b32 v58, 10, v58
    v_add_u32 v58, v58, v59
    s_lshl_b32 s3, s{S_W}, 3
    v_add_u32 v12, s3, v63
    """)
    for tt in range(4):
        e(f"""
        v_add_u32 v{16+tt}, {2*tt}, v12
        v_xor_b32 v{16+tt}, v{16+tt}, v13
        v_lshl_add_u32 v{16+tt}, v{16+tt}, 4, v58
        """)
    e("s_waitcnt vmcnt(0)\ns_barrier")
    stamp(14)
    for j in range(16):
        e(f"ds_read_b128 v[{64+4*j}:{67+4*j}], v{8+(j&3)} offset:{256*(j>>2)}")
    for half in range(2):
        for tt in range(4):
            for k2 in range(2):
                ks = 2 * half + k2
                for eb in range(2):
                    r = 128 + 16 * tt + 4 * ks + 2 * eb
                    e(f"ds_read_b64_tr_b16 v[{r}:{r+1}], v{16+tt} offset:{32768*k2+16384*eb}")
        if half == 0:
            for tt in range(4):
                e(f"v_add_u32 v{16+tt}, 0x10000, v{16+tt}")
    e("s_branch L_h2_chk")
    e.label("L_h2")
    e(f"""
    global_load_dwordx4 v[40:43], v5, s[{P_WS}:{P_WS+1}] sc1
    global_load_dwordx4 v[44:47], v5, s[{P_WS}:{P_WS+1}] offset:16 sc1
    s_waitcnt vmcnt(0)
    """)
    e.label("L_h2_chk")
    tagchk(48, [41, 43, 45, 47])
    poll_tail("L_h2", "L_h2_done", 48)
    stamp(5)
    e(f"""
    v_mov_b32 v41, v42
    v_mov_b32 v42, v44
    v_mov_b32 v43, v46
    s_mul_i32 s3, s{S_W}, {QAS_STRIDE}
    s_add_u32 s3, s3, {L_QAS}
    v_lshl_add_u32 v6, v1, 4, s3
    ds_write_b128 v6, v[40:43]
    v_and_b32 v6, 7, v3
    v_mul_u32_u24 v6, {QAS_STRIDE}, v6
    v_lshl_add_u32 v6, v2, 4, v6
    v_add_u32 v6, {L_QAS}, v6
    s_waitcnt lgkmcnt(0)
    s_barrier
    """)
    def qb(j): return 192 + 4 * j if j < 8 else 32 + 4 * (j - 8)
    for j in range(16):
        e(f"ds_read_b128 v[{qb(j)}:{qb(j)+3}], v6 offset:{64*j}")
    e(f"s_cmp_lt_u32 s{S_I}, 10\ns_cbranch_scc0 L_b_nowo")
    e(f"""
    s_mov_b32 s{SRD_WO}, s{P_WO}
    s_mov_b32 s{SRD_WO+1}, s{P_WO+1}
    s_mov_b32 s{SRD_WO+2}, 5242880
    s_mov_b32 s{SRD_WO+3}, 0x20000
    s_lshr_b32 s64, s{S_X}, 1
    s_lshl_b32 s64, s64, 3
    s_add_u32 s64, s64, s{S_W}
    s_mul_i32 s64, s64, {128*1280}
    s_and_b32 s65, s{S_X}, 1
    s_mul_i32 s65, s65, 10
    s_add_u32 s65, s65, s{S_I}
    s_lshl_b32 s65, s65, 6
    s_add_u32 s64, s64, s65
    s_lshl_b32 s65, s{S_W}, 13
    v_lshrrev_b32 v12, 2, v1
    v_mul_u32_u24 v12, 1280, v12
    v_lshrrev_b32 v13, 5, v1
    v_lshlrev_b32 v13, 1, v13
    v_and_b32 v14, 3, v1
    v_xor_b32 v13, v13, v14
    v_lshl_add_u32 v12, v13, 4, v12
    """)
    for ii in range(8):
        e(f"""
        s_mov_b32 m0, s65
        s_add_u32 s65, s65, 1024
        buffer_load_dwordx4 v12, s[{SRD_WO}:{SRD_WO+3}], s64 offen{NT} lds
        s_add_u32 s64, s64, {16*1280}
        """)
    e.label("L_b_nowo")
    for j in range(16):
        if j == 0: e("s_waitcnt lgkmcnt(12)")
        elif j % 4 == 0: e(f"s_waitcnt lgkmcnt({12-j})")
        c = "0" if j == 0 else "v[8:11]"
        e(f"v_mfma_f32_16x16x32_bf16 v[8:11], v[{64+4*j}:{67+4*j}], v[{qb(j)}:{qb(j)+3}], {c}")
    s7_loads()
    e(f"""
    v_and_b32 v6, 7, v3
    v_lshlrev_b32 v6, 5, v6
    v_add_u32 v6, {L_MX}, v6
    s_lshl_b32 s3, s{S_W}, 2
    v_add_u32 v7, s3, v6
    v_max_f32 v12, v8, v9
    v_max3_f32 v12, v10, v11, v12
    v_mov_b32 v13, v12
    """)
    e.nop(2)
    e("v_permlane16_swap_b32 v12, v13")
    e.nop(1)
    e("v_max_f32 v12, v12, v13\nv_mov_b32 v13, v12")
    e.nop(2)
    e("v_permlane32_swap_b32 v12, v13")
    e.nop(1)
    e("""
    v_max_f32 v12, v12, v13
    s_mov_b64 exec, 0xff
    ds_write_b32 v7, v12
    s_mov_b64 exec, -1
    s_waitcnt lgkmcnt(0)
    s_barrier
    ds_read_b128 v[16:19], v6
    ds_read_b128 v[20:23], v6 offset:16
    """)
    e(f"""
    s_lshl_b32 s3, s{S_W}, 9
    s_add_u32 s3, s3, {L_PEX}
    v_lshl_add_u32 v7, v1, 3, s3
    v_lshlrev_b32 v6, 3, v1
    v_add_u32 v6, {L_PEX}, v6
    s_waitcnt lgkmcnt(0)
    v_max3_f32 v12, v16, v17, v18
    v_max3_f32 v13, v19, v20, v21
    v_max3_f32 v12, v22, v23, v12
    v_max_f32 v12, v12, v13
    v_sub_f32 v8, v8, v12
    v_sub_f32 v9, v9, v12
    v_sub_f32 v10, v10, v12
    v_sub_f32 v11, v11, v12
    v_exp_f32 v8, v8
    v_exp_f32 v9, v9
    v_exp_f32 v10, v10
    v_exp_f32 v11, v11
    s_nop 0
    v_cvt_pk_bf16_f32 v14, v8, v9
    v_cvt_pk_bf16_f32 v15, v10, v11
    ds_write_b64 v7, v[14:15]
    v_mov_b32 v212, 0x3f803f80
    v_mov_b32 v213, 0x3f803f80
    v_mov_b32 v214, 0x3f803f80
    v_mov_b32 v215, 0x3f803f80
    s_waitcnt lgkmcnt(0)
    s_barrier
    """)
    for t in range(8):
        e(f"ds_read_b64 v[{16+2*t}:{17+2*t}], v6 offset:{512*t}")
    stamp(6)
    for ks in range(4):
        e(f"s_waitcnt lgkmcnt({6-2*ks})")
        for tt in range(4):
            c = "0" if ks == 0 else f"v[{192+4*tt}:{195+4*tt}]"
            r = 128 + 16 * tt + 4 * ks
            e(f"v_mfma_f32_16x16x32_bf16 v[{192+4*tt}:{195+4*tt}], v[{r}:{r+3}], v[{16+4*ks}:{19+4*ks}], {c}")
        c = "0" if ks == 0 else "v[208:211]"
        e(f"v_mfma_f32_16x16x32_bf16 v[208:211], v[212:215], v[{16+4*ks}:{19+4*ks}], {c}")
    e(f"""
    s_lshl_b32 s3, s39, 16
    s_lshr_b32 s64, s{S_I}, 2
    s_lshl_b32 s65, s64, 14
    s_add_u32 s3, s3, s65
    s_lshl_b32 s65, s{S_W}, 8
    s_add_u32 s3, s3, s65
    s_add_u32 s3, s3, {WS_PART}
    v_lshlrev_b32 v6, 11, v3
    v_lshl_add_u32 v6, v2, 4, v6
    v_add_u32 v6, s3, v6
    s_lshl_b32 s64, s64, 12
    s_lshl_b32 s65, s39, 4
    s_add_u32 s64, s64, s65
    s_add_u32 s64, s64, {WS_ST}
    v_lshlrev_b32 v7, 9, v3
    v_add_u32 v7, s64, v7
    """)
    for tt in range(4):
        e(f"v_mov_b32 v{33+4*tt}, s{S_TAG}\nv_mov_b32 v{35+4*tt}, s{S_TAG}")
    e("s_mov_b32 exec_lo, 0x00ff00ff\ns_mov_b32 exec_hi, 0x00ff00ff")
    for tt in range(4):
        a = 192 + 4 * tt
        e(f"v_cvt_pk_bf16_f32 v{32+4*tt}, v{a}, v{a+1}\nv_cvt_pk_bf16_f32 v{34+4*tt}, v{a+2}, v{a+3}")
        e(f"global_store_dwordx4 v6, v[{32+4*tt}:{35+4*tt}], s[{P_WS}:{P_WS+1}] offset:{64*tt} sc1")
    e(f"""
    s_cmp_eq_u32 s{S_W}, 0
    s_cbranch_scc0 L_b_nostat
    v_mov_b32 v48, v12
    v_mov_b32 v49, s{S_TAG}
    v_mov_b32 v50, v208
    v_mov_b32 v51, s{S_TAG}
    s_mov_b64 exec, 0xff
    global_store_dwordx4 v7, v[48:51], s[{P_WS}:{P_WS+1}] sc1
    """)
    e.label("L_b_nostat")
    e("s_mov_b64 exec, -1")
    stamp(7)
    s7_unpack_done = False
    e(f"s_cmp_lt_u32 s{S_I}, 10\ns_cbranch_scc1 L_s6\ns_waitcnt vmcnt(0)")
    s7_unpack()
    e("s_branch L_S7")
    e.label("L_s6")
    e(f"""
    s_lshr_b32 s3, s{S_X}, 1
    s_lshl_b32 s3, s3, 3
    s_add_u32 s3, s3, s{S_W}
    s_lshl_b32 s3, s3, 11
    s_add_u32 s3, s3, {WS_CTX}
    v_lshlrev_b32 v5, 9, v2
    v_lshl_add_u32 v5, v3, 5, v5
    v_add_u32 v5, s3, v5
    global_load_dwordx4 v[40:43], v5, s[{P_WS}:{P_WS+1}] sc1
    global_load_dwordx4 v[44:47], v5, s[{P_WS}:{P_WS+1}] offset:16 sc1
    """)
    tr_common()
    e(f"""
    v_lshl_add_u32 v58, v2, 3, v62
    v_lshlrev_b32 v58, 6, v58
    v_add_u32 v58, v58, v59
    s_lshl_b32 s3, s{S_W}, 13
    v_add_u32 v58, s3, v58
    v_and_b32 v13, 1, v2
    v_lshlrev_b32 v13, 1, v13
    v_xor_b32 v8, v63, v13
    v_xor_b32 v9, 2, v8
    v_lshl_add_u32 v8, v8, 4, v58
    v_lshl_add_u32 v9, v9, 4, v58
    s_waitcnt vmcnt(0)
    """)
    for tt in range(2):
        for ks in range(4):
            r = 64 + 16 * tt + 4 * ks
            e(f"ds_read_b64_tr_b16 v[{r}:{r+1}], v{8+tt} offset:{2048*ks}")
            e(f"ds_read_b64_tr_b16 v[{r+2}:{r+3}], v{8+tt} offset:{2048*ks+256}")
    s7_unpack()
    e("s_branch L_h4_chk")
    e.label("L_h4")
    e(f"""
    global_load_dwordx4 v[40:43], v5, s[{P_WS}:{P_WS+1}] sc1
    global_load_dwordx4 v[44:47], v5, s[{P_WS}:{P_WS+1}] offset:16 sc1
    s_waitcnt vmcnt(0)
    """)
    e.label("L_h4_chk")
    tagchk(48, [41, 43, 45, 47])
    poll_tail("L_h4", "L_h4_done", 48)
    stamp(10)
    for k, src in enumerate([40, 42, 44, 46]):
        e(f"v_lshlrev_b32 v{50+2*k}, 16, v{src}\nv_and_b32 v{51+2*k}, 0xffff0000, v{src}")
    e(f"""
    s_lshl_b32 s3, s{S_W}, 8
    s_add_u32 s3, s3, {L_BNC}
    v_lshl_add_u32 v6, v3, 2, v2
    v_lshlrev_b32 v6, 2, v6
    v_add_u32 v6, s3, v6
    v_lshl_add_u32 v7, v2, 4, s3
    """)
    for i in range(4):
        e(f"v_permlane32_swap_b32 v{50+i}, v{54+i}")
    e.nop(1)
    for i in range(4):
        e(f"v_add_f32 v{50+i}, v{50+i}, v{54+i}")
    e.nop(1)
    e("v_permlane16_swap_b32 v50, v52\nv_permlane16_swap_b32 v51, v53")
    e.nop(1)
    e("""
    v_add_f32 v50, v50, v52
    v_add_f32 v51, v51, v53
    v_cvt_pk_bf16_f32 v50, v50, v51
    ds_write_b32 v6, v50
    s_waitcnt lgkmcnt(0)
    """)
    for ks in range(4):
        e(f"ds_read_b128 v[{112+4*ks}:{115+4*ks}], v7 offset:{64*ks}")
    for ks in range(4):
        e(f"s_waitcnt lgkmcnt({3-ks})")
        for tt in range(2):
            c = "0" if ks == 0 else f"v[{32+4*tt}:{35+4*tt}]"
            r = 64 + 16 * tt + 4 * ks
            e(f"v_mfma_f32_16x16x32_bf16 v[{32+4*tt}:{35+4*tt}], v[{r}:{r+3}], v[{112+4*ks}:{115+4*ks}], {c}")
    e(f"""
    s_lshl_b32 s3, s{S_W}, 7
    s_add_u32 s3, s3, {L_ORED}
    v_lshl_add_u32 v6, v2, 4, s3
    v_lshlrev_b32 v7, 3, v1
    v_add_u32 v7, {L_ORED}, v7
    s_mov_b32 exec_lo, 0x00010001
    s_mov_b32 exec_hi, 0x00010001
    """)
    e.nop(4)
    e(f"""
    ds_write_b128 v6, v[32:35]
    ds_write_b128 v6, v[36:39] offset:64
    s_mov_b64 exec, -1
    s_waitcnt lgkmcnt(0)
    s_barrier
    s_cmp_eq_u32 s{S_W}, 0
    s_cbranch_scc0 L_S7
    s_mov_b64 exec, 0xffff
    """)
    for w in range(8):
        e(f"ds_read_b64 v[{40+2*w}:{41+2*w}], v7 offset:{128*w}")
    e(f"""
    s_lshr_b32 s3, s{S_X}, 1
    s_mul_i32 s3, s3, 2560
    s_and_b32 s64, s{S_X}, 1
    s_mul_i32 s64, s64, 10
    s_add_u32 s64, s64, s{S_I}
    s_lshl_b32 s64, s64, 7
    s_add_u32 s3, s3, s64
    s_add_u32 s3, s3, {WS_OP}
    v_lshl_add_u32 v6, v1, 3, s3
    s_waitcnt lgkmcnt(0)
    v_pk_add_f32 v[40:41], v[40:41], v[42:43]
    v_pk_add_f32 v[44:45], v[44:45], v[46:47]
    v_pk_add_f32 v[48:49], v[48:49], v[50:51]
    v_pk_add_f32 v[52:53], v[52:53], v[54:55]
    v_pk_add_f32 v[40:41], v[40:41], v[44:45]
    v_pk_add_f32 v[48:49], v[48:49], v[52:53]
    v_pk_add_f32 v[40:41], v[40:41], v[48:49]
    v_cvt_pk_bf16_f32 v40, v40, v41
    v_mov_b32 v41, s{S_TAG}
    global_store_dwordx2 v6, v[40:41], s[{P_WS}:{P_WS+1}] sc1
    s_mov_b64 exec, -1
    """)
    stamp(11)

    e.label("L_S7")
    e(f"s_cmp_lt_u32 s{S_W}, 5\ns_cbranch_scc0 L_s7_bar")
    e(f"""
    v_lshrrev_b32 v8, 5, v1
    v_mul_u32_u24 v5, 2560, v8
    v_and_b32 v9, 31, v1
    v_lshl_add_u32 v5, v9, 4, v5
    s_lshl_b32 s3, s{S_W}, 9
    s_add_u32 s3, s3, {WS_OP}
    v_add_u32 v5, s3, v5
    v_add_u32 v6, 5120, v5
    """)
    e.label("L_h5")
    e(f"""
    global_load_dwordx4 v[40:43], v5, s[{P_WS}:{P_WS+1}] sc1
    global_load_dwordx4 v[44:47], v6, s[{P_WS}:{P_WS+1}] sc1
    s_waitcnt vmcnt(0)
    """)
    tagchk(48, [41, 43, 45, 47])
    poll_tail("L_h5", "L_h5_done", 48)
    stamp(12)
    for k, src in enumerate([40, 42, 44, 46]):
        e(f"v_lshlrev_b32 v{50+2*k}, 16, v{src}\nv_and_b32 v{51+2*k}, 0xffff0000, v{src}")
    e(f"""
    v_pk_add_f32 v[50:51], v[50:51], v[54:55]
    v_pk_add_f32 v[52:53], v[52:53], v[56:57]
    v_lshlrev_b32 v58, 16, v230
    v_and_b32 v59, 0xffff0000, v230
    v_permlane32_swap_b32 v50, v52
    v_permlane32_swap_b32 v51, v53
    s_lshl_b32 s3, s{S_W}, 9
    s_add_u32 s3, s3, {L_HS}
    v_lshlrev_b32 v6, 4, v9
    v_lshl_add_u32 v6, v8, 3, v6
    v_add_u32 v6, s3, v6
    v_add_f32 v50, v50, v52
    v_add_f32 v51, v51, v53
    v_pk_add_f32 v[50:51], v[50:51], v[58:59]
    ds_write_b64 v6, v[50:51]
    v_add_f32 v52, v50, v51
    v_mul_f32 v53, v50, v50
    v_fmac_f32 v53, v51, v51
    """)
    dpp_reduce([52, 53])
    e(f"""
    s_lshl_b32 s3, s{S_W}, 3
    s_add_u32 s3, s3, {L_ST7}
    v_mov_b32 v6, s3
    s_mov_b32 exec_lo, 0
    s_mov_b32 exec_hi, 0x80000000
    ds_write_b64 v6, v[52:53]
    s_mov_b64 exec, -1
    """)
    e.label("L_s7_bar")
    e(f"""
    s_waitcnt vmcnt(0) lgkmcnt(0)
    s_barrier
    s_cmp_lt_u32 s2, 214
    s_cbranch_scc0 L_fin
    v_mov_b32 v6, {L_ST7}
    s_mul_i32 s3, s2, 12
    s_add_u32 s3, s3, {L_HS}
    v_mov_b32 v7, s3
    ds_read_b128 v[40:43], v6
    ds_read_b128 v[44:47], v6 offset:16
    ds_read_b64 v[48:49], v6 offset:32
    ds_read_b32 v50, v7
    ds_read_b32 v52, v7 offset:4
    ds_read_b32 v54, v7 offset:8
    v_mov_b32 v60, {F32(1.0/640)}
    v_mov_b32 v61, {F32(1e-5)}
    v_mov_b32 v64, {F32(-2.0*0.7978845608028654*1.4426950408889634)}
    v_mov_b32 v66, {F32(-2.0*0.7978845608028654*1.4426950408889634*0.044715)}
    s_waitcnt lgkmcnt(3)
    v_pk_add_f32 v[40:41], v[40:41], v[42:43]
    v_pk_add_f32 v[44:45], v[44:45], v[46:47]
    v_pk_add_f32 v[40:41], v[40:41], v[48:49]
    v_pk_add_f32 v[40:41], v[40:41], v[44:45]
    v_mul_f32 v40, v40, v60
    v_mul_f32 v41, v41, v60
    v_fma_f32 v41, -v40, v40, v41
    v_max_f32 v41, 0, v41
    v_add_f32 v42, v41, v61
    v_rsq_f32 v42, v42
    s_nop 0
    v_mul_f32 v43, v42, v42
    v_fma_f32 v43, v43, v41, v61
    v_rsq_f32 v43, v43
    s_nop 0
    v_mul_f32 v42, v42, v43
    s_waitcnt lgkmcnt(0)
    v_sub_f32 v70, v50, v40
    v_sub_f32 v72, v52, v40
    v_sub_f32 v74, v54, v40
    v_mul_f32 v70, v70, v42
    v_mul_f32 v72, v72, v42
    v_mul_f32 v74, v74, v42
    """)
    combos = [(r, o) for o in range(3) for r in range(2)]
    for c, (r, o) in enumerate(combos):
        e(f"v_pk_fma_f32 v[{80+2*c}:{81+2*c}], v[{70+2*o}:{71+2*o}], v[{232+2*r}:{233+2*r}], v[{236+2*r}:{237+2*r}] op_sel_hi:[0,1,1]")
    for c in range(6):
        e(f"v_pk_mul_f32 v[{92+2*c}:{93+2*c}], v[{80+2*c}:{81+2*c}], v[{80+2*c}:{81+2*c}]")
    for c in range(6):
        e(f"v_pk_fma_f32 v[{92+2*c}:{93+2*c}], v[{92+2*c}:{93+2*c}], v[66:67], v[64:65] op_sel_hi:[1,0,0]")
    for c in range(6):
        e(f"v_pk_mul_f32 v[{92+2*c}:{93+2*c}], v[{92+2*c}:{93+2*c}], v[{80+2*c}:{81+2*c}]")
    for c in range(12):
        e(f"v_exp_f32 v{92+c}, v{92+c}")
    for c in range(6):
        e(f"v_pk_add_f32 v[{92+2*c}:{93+2*c}], v[{92+2*c}:{93+2*c}], 1.0 op_sel_hi:[1,0]")
    for c in range(12):
        e(f"v_rcp_f32 v{92+c}, v{92+c}")
    for c in range(6):
        e(f"v_pk_mul_f32 v[{80+2*c}:{81+2*c}], v[{80+2*c}:{81+2*c}], v[{92+2*c}:{93+2*c}]")
    for o in range(3):
        e(f"v_pk_mul_f32 v[{104+2*o}:{105+2*o}], v[{80+4*o}:{81+4*o}], v[240:241]")
    for o in range(3):
        e(f"v_pk_fma_f32 v[{104+2*o}:{105+2*o}], v[{82+4*o}:{83+4*o}], v[242:243], v[{104+2*o}:{105+2*o}]")
    e("v_add_f32 v110, v104, v105\nv_add_f32 v111, v106, v107\nv_add_f32 v112, v108, v109\nv_mov_b32 v113, 0")
    dpp_reduce([110, 111, 112])
    e(f"""
    s_lshl_b32 s3, s{S_W}, 4
    s_add_u32 s3, s3, {L_YRED}
    v_mov_b32 v6, s3
    s_mov_b32 exec_lo, 0
    s_mov_b32 exec_hi, 0x80000000
    ds_write_b128 v6, v[110:113]
    s_mov_b64 exec, -1
    s_waitcnt lgkmcnt(0)
    s_barrier
    s_cmp_eq_u32 s{S_W}, 0
    s_cbranch_scc0 L_fin
    s_mul_i32 s3, s2, 3
    v_add_u32 v8, s3, v1
    v_cmp_gt_u32 vcc, 640, v8
    s_and_b64 vcc, vcc, 7
    s_and_saveexec_b64 s[64:65], vcc
    s_cbranch_execz L_fin0
    v_lshlrev_b32 v6, 2, v1
    v_add_u32 v6, {L_YRED}, v6
    v_lshlrev_b32 v7, 2, v8
    v_add_u32 v7, {L_HS}, v7
    """)
    for w in range(8):
        e(f"ds_read_b32 v{40+w}, v6 offset:{16*w}")
    e(f"""
    ds_read_b32 v48, v7
    v_lshlrev_b32 v49, 16, v231
    v_lshlrev_b32 v8, 1, v8
    s_waitcnt lgkmcnt(0)
    v_add_f32 v40, v40, v41
    v_add_f32 v42, v42, v43
    v_add_f32 v44, v44, v45
    v_add_f32 v46, v46, v47
    v_add_f32 v40, v40, v42
    v_add_f32 v44, v44, v46
    v_add_f32 v40, v40, v44
    v_add_f32 v40, v40, v49
    v_add_f32 v40, v40, v48
    v_cvt_pk_bf16_f32 v40, v40, v40
    global_store_short v8, v40, s[{P_OUT}:{P_OUT+1}]
    """)
    e.label("L_fin0")
    e("s_mov_b64 exec, s[64:65]")
    e.label("L_fin")
    stamp(13)
    e(f"""
    s_cmp_eq_u32 s2, 0
    s_cbranch_scc0 L_noepoch
    s_cmp_eq_u32 s{S_W}, 0
    s_cbranch_scc0 L_noepoch
    v_mov_b32 v6, 0
    v_mov_b32 v7, s{S_TAG}
    s_mov_b64 exec, 1
    global_store_dword v6, v7, s[{P_WS}:{P_WS+1}] sc1
    s_mov_b64 exec, -1
    """)
    e.label("L_noepoch")
    if cfg.stamps:
        e(f"""
        s_waitcnt lgkmcnt(0)
        s_lshl_b32 s3, s2, 3
        s_add_u32 s3, s3, s{S_W}
        s_lshl_b32 s3, s3, 6
        s_add_u32 s3, s3, {WS_DBG}
        v_mov_b32 v6, s3
        s_mov_b64 exec, 1
        """)
        for q in range(4):
            for k in range(4):
                e(f"v_mov_b32 v{8+k}, s{S_STAMP+2*min(4*q+k,14)}")
            e(f"global_store_dwordx4 v6, v[8:11], s[{P_WS}:{P_WS+1}] offset:{16*q}")
            e.nop(2)
        e("s_mov_b64 exec, -1")
    if cfg.dbgstamps:
        e("s_waitcnt lgkmcnt(0)")
        e(f"s_not_b32 s3, s{S_STAMP}")
        e("v_mov_b32 v8, 0")
        e("v_writelane_b32 v8, s3, 0")
        Fsel = {1: 1, 2: 3, 3: 5, 4: 6, 5: 8, 6: 9}
        Bsel = {7: 3, 8: 14, 9: 5, 10: 6, 11: 7, 12: 10, 13: 11}
        e(f"s_cmp_eq_u32 s{S_ISB}, 0\ns_cbranch_scc0 L_dbgB")
        for lane, k in Fsel.items(): e(f"v_writelane_b32 v8, s{S_STAMP+2*k}, {lane}")
        e("s_branch L_dbgC")
        e.label("L_dbgB")
        for lane, k in Bsel.items(): e(f"v_writelane_b32 v8, s{S_STAMP+2*k}, {lane}")
        e.label("L_dbgC")
        e(f"v_writelane_b32 v8, s{S_STAMP+24}, 14")
        e(f"v_writelane_b32 v8, s{S_STAMP+26}, 15")
        e("v_lshlrev_b32 v6, 2, v1")
        e("s_mov_b64 exec, 0xffff")
        e(f"global_atomic_umax v6, v8, s[{P_DBG}:{P_DBG+1}]")
        e("s_mov_b64 exec, -1")
    e("s_waitcnt vmcnt(0)")
    e.label("L_exit")
    e("s_endpgm")
    e.label("L_fail")
    e("s_endpgm")
    return e

def tag_fix(e):
    pass

def render(cfg):
    e = gen(cfg)
    body = e.text()
    marker = "L_s1_go:\n    s_waitcnt lgkmcnt(0)\n"
    assert marker in body
    body = body.replace(marker, marker + f"    s_mul_i32 s{S_TAG}, s{S_TAG}, 1664525\n    s_add_u32 s{S_TAG}, s{S_TAG}, 1013904223\n")
    hdr = open("cdna_kernels/" + NAME[:-7] + ".s.ref").read().split("; Override launch geometry")[0]
    out = hdr + f"; @launch grid=(256,1,1) block=(512,1,1) lds={LDS_BYTES}\n"
    out += f""".amdgcn_target "amdgcn-amd-amdhsa--gfx950"
.text
.globl {NAME}
.p2align 8
.type {NAME},@function
{NAME}:
{body}.section .rodata,"a"
.p2align 6
.amdhsa_kernel {NAME}
  .amdhsa_next_free_vgpr 256
  .amdhsa_next_free_sgpr 102
  .amdhsa_accum_offset 256
  .amdhsa_group_segment_fixed_size 0
  .amdhsa_kernarg_size 112
  .amdhsa_user_sgpr_count 2
  .amdhsa_user_sgpr_kernarg_segment_ptr 1
  .amdhsa_system_sgpr_workgroup_id_x 1
.end_amdhsa_kernel
"""
    return out, body

if __name__ == "__main__":
    cfg = Cfg()
    outp = sys.argv[1] if len(sys.argv) > 1 else "cdna_kernels/" + NAME[:-7] + ".s"
    for a in sys.argv[2:]:
        k, v = a.split("=")
        setattr(cfg, k, type(getattr(cfg, k))(int(v)))
    out, body = render(cfg)
    probs = check_hazards(body)
    for p in probs: print("HAZARD", p)
    open(outp, "w").write(out)
    print("wrote", outp, len(out), "bytes;", len(body.splitlines()), "lines")
```

```python
import sys, struct
from asmlib import Emit, check_hazards

NAME = "sequential_preLN__compressed_kv_cla__mixer_token_mlp__decode_kernel"

WS_Q1, WS_Q1F, WS_QA, WS_CTX, WS_OP, WS_CTXF, WS_ST, WS_PART, WS_DBG = 0x10000, 0x20000, 0x50000, 0x60000, 0x70000, 0x90000, 0xC0000, 0x100000, 0x400000
L_CKV = 0
L_WO = 0
L_WQ = 32768
L_WUK = 73728
L_QAS = 131072
QAS_STRIDE = 1056
L_PEX = L_QAS + 8 * QAS_STRIDE
L_MX = L_PEX + 4096
L_LNS = 143872
L_QP = 145152
QP_STRIDE = 288
L_CTXS = 146304
L_BNC = 146560
L_ORED = 147584
L_HS = 149632
L_ST7 = 152192
L_YRED = 152256
LDS_BYTES = 152384

S_W, S_X, S_I, S_ISB = 4, 5, 6, 7
P_X, P_CKV, P_WQ, P_WUK, P_WUV, P_WO, P_W1, P_B1, P_W2, P_B2, P_OUT, P_DBG, P_WS = 8, 10, 12, 14, 16, 18, 22, 24, 26, 28, 30, 32, 34
S_TAG, S_H, S_J, S_CH = 36, 37, 38, 39
SRD_0, SRD_A, SRD_WO, SRD_W1, SRD_B1, SRD_W2 = 40, 44, 48, 52, 56, 60
S_SPIN = 100
S_STAMP = 70

def F32(x): return "0x%08x" % struct.unpack("<I", struct.pack("<f", x))[0]
WS = f"s[{P_WS}:{P_WS+1}]"

class Cfg:
    stamps = 0
    nt = 1
    spin = 1 << 17
    h3sleep = 24
    fast1 = 1
    fast4 = 1
    codepf = 8
    bdelay = 0
    exp_nob = 0
    ckvnt = 1
    ukbar = 1
    bsleep = 0
    uvpf = 1
    h5sleep = 0
    h4sleep = 0
    h2sleep = 0
    exp_nowuv = 0

def gen(cfg):
    e = Emit()
    NT = " nt" if cfg.nt else ""
    def stamp(k):
        if cfg.stamps:
            e(f"s_memrealtime s[{S_STAMP+2*k}:{S_STAMP+2*k+1}]")
    def dpp_reduce(regs, op="v_add_f32"):
        steps = ["row_shr:1 row_mask:0xf bank_mask:0xf bound_ctrl:0", "row_shr:2 row_mask:0xf bank_mask:0xf bound_ctrl:0",
                 "row_shr:4 row_mask:0xf bank_mask:0xf bound_ctrl:0", "row_shr:8 row_mask:0xf bank_mask:0xf bound_ctrl:0",
                 "row_bcast:15 row_mask:0xa bank_mask:0xf", "row_bcast:31 row_mask:0xc bank_mask:0xf"]
        pad = max(0, 2 - (len(regs) - 1))
        e.nop(2)
        for k, st in enumerate(steps):
            for r in regs:
                e(f"{op}_dpp v{r}, v{r}, v{r} {st}")
            if k < len(steps) - 1 and pad: e.nop(pad)
    def tagchk(acc, tags):
        for k, t in enumerate(tags):
            if k == 0:
                e(f"v_xor_b32 v{acc}, s{S_TAG}, v{t}")
            else:
                e(f"v_bitop3_b32 v{acc}, v{acc}, v{t}, s{S_TAG} bitop3:0xf6")
    def spin_back(lbl_loop):
        e(f"s_sub_u32 s{S_SPIN}, s{S_SPIN}, 1")
        e(f"s_cbranch_scc0 {lbl_loop}")
        e("s_branch L_fail")
    def poll_tail(lbl_loop, lbl_done, acc, sleep=0):
        e(f"v_cmp_ne_u32 vcc, 0, v{acc}")
        e(f"s_cbranch_vccz {lbl_done}")
        if sleep: e(f"s_sleep {sleep}")
        spin_back(lbl_loop)
        e.label(lbl_done)
    def tr_common():
        e("""
        v_bfe_u32 v62, v1, 2, 2
        v_bfe_u32 v63, v1, 1, 1
        v_and_b32 v59, 1, v1
        v_lshlrev_b32 v59, 3, v59
        """)
    def tr256_addr(dst, tmp):
        e(f"""
        v_and_b32 v{dst}, 1, v2
        v_lshl_add_u32 v{dst}, v{dst}, 2, v62
        v_lshlrev_b32 v{dst}, 1, v{dst}
        s_lshl_b32 s3, s{S_W}, 1
        v_add_u32 v{tmp}, s3, v63
        v_xor_b32 v{dst}, v{dst}, v{tmp}
        v_lshl_add_u32 v{dst}, v{dst}, 4, v59
        v_lshl_add_u32 v{tmp}, v2, 3, v62
        v_lshl_add_u32 v{dst}, v{tmp}, 8, v{dst}
        """)
    def mk_tag():
        e(f"s_mul_i32 s{S_TAG}, s{S_TAG}, 1664525\ns_add_u32 s{S_TAG}, s{S_TAG}, 1013904223")
    def s7_loads():
        e(f"""
        s_mov_b32 s{SRD_W1}, s{P_W1}
        s_mov_b32 s{SRD_W1+1}, s{P_W1+1}
        s_mov_b32 s{SRD_W1+2}, 3456
        s_mov_b32 s{SRD_W1+3}, 0x20000
        s_mov_b32 s{SRD_B1}, s{P_B1}
        s_mov_b32 s{SRD_B1+1}, s{P_B1+1}
        s_mov_b32 s{SRD_B1+2}, 3456
        s_mov_b32 s{SRD_B1+3}, 0x20000
        s_mov_b32 s{SRD_W2}, s{P_W2}
        s_mov_b32 s{SRD_W2+1}, s{P_W2+1}
        s_mov_b32 s{SRD_W2+2}, 3456
        s_mov_b32 s{SRD_W2+3}, 0x20000
        s_lshl_b32 s3, s{S_W}, 8
        v_lshl_add_u32 v4, v1, 2, s3
        buffer_load_dword v224, v4, s[{SRD_W1}:{SRD_W1+3}], 0 offen
        buffer_load_dword v225, v4, s[{SRD_W1}:{SRD_W1+3}], 0 offen offset:2048
        buffer_load_dword v226, v4, s[{SRD_B1}:{SRD_B1+3}], 0 offen
        buffer_load_dword v227, v4, s[{SRD_B1}:{SRD_B1+3}], 0 offen offset:2048
        buffer_load_dword v228, v4, s[{SRD_W2}:{SRD_W2+3}], 0 offen
        buffer_load_dword v229, v4, s[{SRD_W2}:{SRD_W2+3}], 0 offen offset:2048
        v_mov_b32 v4, 0
        global_load_ushort v231, v4, s[{P_B2}:{P_B2+1}]
        s_min_u32 s3, s{S_W}, 4
        s_lshl_b32 s3, s3, 8
        v_and_b32 v4, 31, v1
        v_lshlrev_b32 v4, 3, v4
        v_lshrrev_b32 v230, 5, v1
        v_lshl_add_u32 v4, v230, 2, v4
        v_add_u32 v4, s3, v4
        global_load_dword v230, v4, s[{P_X}:{P_X+1}]
        """)
    def s7_prep():
        for k, (raw, dst) in enumerate([(224, 232), (225, 234), (226, 236), (227, 238), (228, 240), (229, 242)]):
            e(f"v_lshlrev_b32 v{dst}, 16, v{raw}\nv_and_b32 v{dst+1}, 0xffff0000, v{raw}")
        e(f"""
        v_lshrrev_b32 v57, 5, v1
        v_mul_u32_u24 v244, 2560, v57
        v_and_b32 v58, 31, v1
        v_lshl_add_u32 v244, v58, 4, v244
        s_lshl_b32 s3, s{S_W}, 9
        s_add_u32 s64, s3, {WS_OP}
        v_add_u32 v244, s64, v244
        v_add_u32 v245, 5120, v244
        v_add_u32 v246, 10240, v244
        v_add_u32 v247, 15360, v244
        s_add_u32 s3, s3, {L_HS}
        v_lshlrev_b32 v248, 4, v58
        v_lshl_add_u32 v248, v57, 3, v248
        v_add_u32 v248, s3, v248
        v_lshlrev_b32 v58, 16, v230
        v_and_b32 v59, 0xffff0000, v230
        v_mov_b32 v60, {F32(1.0/640)}
        v_mov_b32 v61, {F32(1e-5)}
        v_mov_b32 v64, {F32(-2.0*0.7978845608028654*1.4426950408889634)}
        v_mov_b32 v66, {F32(-2.0*0.7978845608028654*1.4426950408889634*0.044715)}
        v_mov_b32 v62, {L_ST7}
        s_mul_i32 s3, s2, 12
        s_add_u32 s3, s3, {L_HS}
        v_mov_b32 v63, s3
        s_lshl_b32 s3, s{S_W}, 3
        s_add_u32 s3, s3, {L_ST7}
        v_mov_b32 v68, s3
        s_lshl_b32 s3, s{S_W}, 4
        s_add_u32 s3, s3, {L_YRED}
        v_mov_b32 v69, s3
        v_mov_b32 v113, 0
        s_mul_i32 s3, s2, 3
        v_add_u32 v8, s3, v1
        v_lshlrev_b32 v6, 2, v1
        v_add_u32 v6, {L_YRED}, v6
        v_lshlrev_b32 v7, 2, v8
        v_add_u32 v7, {L_HS}, v7
        v_lshlrev_b32 v9, 16, v231
        """)

    e(f"""
    s_cmp_ge_u32 s2, 256
    s_cbranch_scc1 L_exit
    s_load_dwordx16 s[8:23], s[0:1], 0
    s_load_dwordx4 s[32:35], s[0:1], 96
    s_load_dwordx8 s[24:31], s[0:1], 64
    """)
    if cfg.codepf:
        e(f"""
        s_cmp_lt_u32 s2, {cfg.codepf}
        s_cbranch_scc0 L_nopf
        s_getpc_b64 s[64:65]
        """)
        e.label("L_pc")
        e(f"""
        s_and_b32 s64, s64, 0xffffff00
        v_lshlrev_b32 v203, 7, v0
        v_min_u32 v203, L_end-L_pc-4, v203
        v_mov_b32 v201, s65
        v_add_co_u32 v200, vcc, s64, v203
        s_nop 1
        v_addc_co_u32 v201, vcc, 0, v201, vcc
        global_load_dword v202, v[200:201], off
        """)
        e.label("L_nopf")
    if cfg.stamps:
        e(f"s_memrealtime s[{S_STAMP}:{S_STAMP+1}]")
        for k in range(1, 15): e(f"s_mov_b32 s{S_STAMP+2*k}, 0")
    e(f"""
    v_and_b32 v1, 63, v0
    v_lshrrev_b32 v4, 6, v0
    v_lshrrev_b32 v2, 4, v1
    v_readfirstlane_b32 s{S_W}, v4
    v_and_b32 v3, 15, v1
    s_and_b32 s{S_X}, s2, 7
    s_bfe_u32 s{S_I}, s2, 0x40003
    s_lshr_b32 s{S_H}, s{S_I}, 2
    s_lshl_b32 s3, s{S_X}, 2
    s_add_u32 s{S_H}, s{S_H}, s3
    s_and_b32 s{S_J}, s{S_I}, 3
    s_mov_b32 s{SRD_0+3}, 0x20000
    s_mov_b32 s{S_SPIN}, {cfg.spin}
    s_cmp_ge_u32 s2, 128
    s_cbranch_scc1 L_B0
    """)
    e(f"""
    s_lshr_b32 s66, s{S_W}, 1
    s_mov_b32 s67, {L_WUK}
    s_mov_b32 s69, 4194304
    s_cmp_lt_u32 s{S_W}, 4
    s_cselect_b32 s64, 40, 32
    s_cselect_b32 s66, s66, s{S_W}
    s_cselect_b32 s67, {L_WQ}, s67
    s_cselect_b32 s68, 9, 7
    s_cselect_b32 s{SRD_0+2}, 5242880, s69
    s_mul_i32 s64, s64, s{S_J}
    s_and_b32 s65, s{S_W}, 3
    s_add_u32 s64, s64, s65
    s_lshl_b32 s64, s64, 15
    s_lshl_b32 s65, s65, 10
    s_add_u32 s67, s67, s65
    s_lshl_b32 s65, s{S_H}, 8
    s_add_u32 s64, s64, s65
    s_and_b32 s66, s66, 1
    s_lshl_b32 s66, s66, 3
    v_lshlrev_b32 v7, 1, v2
    v_xor_b32 v7, v7, v3
    v_xor_b32 v7, s66, v7
    v_lshlrev_b32 v7, 4, v7
    v_lshl_add_u32 v7, v2, 13, v7
    v_lshlrev_b32 v6, 2, v1
    s_cmp_lt_u32 s{S_W}, 4
    s_waitcnt lgkmcnt(0)
    s_cselect_b32 s{SRD_0}, s{P_WQ}, s{P_WUK}
    s_cselect_b32 s{SRD_0+1}, s{P_WQ+1}, s{P_WUK+1}
    s_cmp_eq_u32 s{S_W}, 0
    s_cbranch_scc0 L_f_nox
    """)
    for k in range(5):
        e(f"global_load_dword v{8+k}, v6, s[{P_X}:{P_X+1}] offset:{256*k}")
    e.label("L_f_nox")
    if cfg.ukbar:
        e(f"s_cmp_lt_u32 s{S_W}, 4\ns_cbranch_scc1 L_f_dma\ns_barrier")
    e.label("L_f_dma")
    e(f"""
    s_mov_b32 m0, s67
    s_add_u32 s67, s67, 4096
    buffer_load_dwordx4 v7, s[{SRD_0}:{SRD_0+3}], s64 offen{NT} lds
    s_add_u32 s64, s64, {4*4*8192}
    s_sub_u32 s68, s68, 1
    s_cbranch_scc0 L_f_dma
    """)
    if cfg.ukbar:
        e(f"s_cmp_lt_u32 s{S_W}, 4\ns_cbranch_scc0 L_f_dma2\ns_barrier")
        e.label("L_f_dma2")
    e(f"""
    s_load_dword s{S_TAG}, {WS}, 0
    s_branch L_F1
    """)
    e.label("L_B0")
    if cfg.exp_nob: e("s_endpgm")
    e(f"""
    s_lshl_b32 s3, s{S_W}, 1
    v_xor_b32 v7, s3, v1
    v_lshlrev_b32 v7, 4, v7
    s_lshl_b32 s{S_CH}, s{S_X}, 2
    s_add_u32 s{S_CH}, s{S_CH}, s{S_J}
    s_lshl_b32 s66, s{S_CH}, 17
    s_and_b32 s67, s{S_I}, 12
    s_lshl_b32 s67, s67, 13
    s_lshl_b32 s65, s{S_W}, 10
    s_add_u32 s67, s67, s65
    s_mov_b32 s{SRD_0+2}, 4194304
    s_mov_b32 s68, 15
    """)
    e(f"""
    s_waitcnt lgkmcnt(0)
    s_mov_b32 s{SRD_0}, s{P_CKV}
    s_mov_b32 s{SRD_0+1}, s{P_CKV+1}
    """)
    if cfg.bdelay: e(f"s_load_dword s{S_TAG}, {WS}, 0\ns_waitcnt lgkmcnt(0)")
    if cfg.bsleep: e(f"s_sleep {cfg.bsleep}")
    e.label("L_b_dma")
    e(f"""
    s_mov_b32 m0, s67
    s_add_u32 s69, s67, s66
    buffer_load_dwordx4 v7, s[{SRD_0}:{SRD_0+3}], s69 offen{" nt" if cfg.ckvnt else ""} lds
    s_add_u32 s67, s67, 8192
    s_and_b32 s67, s67, 0x1ffff
    s_sub_u32 s68, s68, 1
    s_cbranch_scc0 L_b_dma
    """)
    if not cfg.bdelay: e(f"s_load_dword s{S_TAG}, {WS}, 0")
    e("s_branch L_B1")

    e.label("L_F1")
    e(f"s_mov_b32 s{S_ISB}, 0")
    stamp(1)
    tr_common()
    e(f"""
    v_and_b32 v41, 1, v2
    v_lshl_add_u32 v41, v41, 2, v62
    v_lshlrev_b32 v41, 1, v41
    s_and_b32 s65, s{S_W}, 3
    s_lshl_b32 s3, s65, 2
    v_add_u32 v42, s3, v63
    v_xor_b32 v41, v41, v42
    v_lshl_add_u32 v41, v41, 4, v59
    v_lshl_add_u32 v42, v2, 3, v62
    v_lshl_add_u32 v41, v42, 8, v41
    v_add_u32 v41, {L_WQ}, v41
    v_xor_b32 v40, 32, v41
    s_mul_i32 s3, s{S_J}, 320
    s_add_u32 s3, s3, {L_LNS}
    v_lshl_add_u32 v42, v2, 4, s3
    s_lshl_b32 s3, s{S_H}, 2
    s_add_u32 s3, s3, s{S_J}
    s_lshl_b32 s3, s3, 9
    s_lshl_b32 s64, s65, 7
    s_add_u32 s3, s3, s64
    s_add_u32 s65, s3, {WS_Q1}
    v_and_b32 v43, 1, v1
    v_lshlrev_b32 v43, 6, v43
    v_lshl_add_u32 v43, v2, 4, v43
    v_add_u32 v43, s65, v43
    v_add_u32 v44, {WS_Q1F-WS_Q1}, v43
    s_lshl_b32 s64, s{S_W}, 6
    s_lshl_b32 s3, s{S_H}, 2
    s_and_b32 s65, s{S_W}, 3
    s_add_u32 s3, s3, s65
    s_lshl_b32 s3, s3, 9
    s_add_u32 s3, s3, {WS_Q1}
    v_lshl_add_u32 v45, v1, 3, s3
    v_add_u32 v49, {WS_Q1F-WS_Q1}, v45
    s_mul_i32 s3, s65, {QP_STRIDE}
    s_add_u32 s3, s3, {L_QP}
    v_lshl_add_u32 v46, v1, 2, s3
    v_and_b32 v47, 3, v3
    v_mul_u32_u24 v47, {QP_STRIDE}, v47
    v_lshl_add_u32 v47, v2, 4, v47
    v_add_u32 v47, {L_QP}, v47
    s_and_b32 s66, s{S_W}, 3
    s_lshl_b32 s3, s{S_H}, 11
    s_lshl_b32 s65, s{S_J}, 9
    s_add_u32 s3, s3, s65
    s_lshl_b32 s64, s66, 7
    s_add_u32 s3, s3, s64
    s_add_u32 s65, s3, {WS_QA}
    v_and_b32 v48, 1, v1
    v_lshlrev_b32 v48, 6, v48
    v_lshl_add_u32 v48, v2, 4, v48
    v_add_u32 v48, s65, v48
    s_lshl_b32 s3, s66, 5
    v_add_u32 v24, s3, v3
    v_lshlrev_b32 v24, 8, v24
    v_and_b32 v25, 7, v3
    v_lshlrev_b32 v25, 1, v25
    v_xor_b32 v25, v25, v2
    v_lshl_add_u32 v24, v25, 4, v24
    v_add_u32 v24, {L_WUK}, v24
    v_xor_b32 v25, 64, v24
    v_xor_b32 v26, 128, v24
    v_xor_b32 v27, 192, v24
    s_cmp_eq_u32 s{S_W}, 0
    s_cbranch_scc0 L_f_noln
    """)
    e("s_waitcnt vmcnt(10)")
    stamp(2)
    for k in range(5):
        e(f"v_lshlrev_b32 v{64+2*k}, 16, v{8+k}")
        e(f"v_and_b32 v{65+2*k}, 0xffff0000, v{8+k}")
    e(f"""
    v_pk_add_f32 v[74:75], v[64:65], v[66:67]
    v_pk_add_f32 v[76:77], v[68:69], v[70:71]
    v_pk_add_f32 v[74:75], v[74:75], v[72:73]
    v_pk_add_f32 v[74:75], v[74:75], v[76:77]
    v_mov_b32 v78, {F32(-1.0/640)}
    v_add_f32 v74, v74, v75
    """)
    dpp_reduce([74])
    e.nop(1)
    e("v_readlane_b32 s20, v74, 63")
    e(f"v_mov_b32 v80, {F32(1.0/640)}\nv_mov_b32 v81, {F32(1e-5)}")
    e("v_mul_f32 v78, s20, v78")
    for k in range(5):
        e(f"v_pk_add_f32 v[{64+2*k}:{65+2*k}], v[{64+2*k}:{65+2*k}], v[78:79] op_sel_hi:[1,0]")
    e("v_pk_mul_f32 v[74:75], v[64:65], v[64:65]")
    for k in range(1, 5):
        e(f"v_pk_fma_f32 v[74:75], v[{64+2*k}:{65+2*k}], v[{64+2*k}:{65+2*k}], v[74:75]")
    e("v_add_f32 v74, v74, v75")
    dpp_reduce([74])
    e.nop(1)
    e("v_readlane_b32 s21, v74, 63")
    e(f"v_mov_b32 v82, {F32(128**-0.5 * 1.4426950408889634)}")
    e(f"v_add_u32 v6, {L_LNS}, v6")
    e("v_fma_f32 v74, s21, v80, v81")
    e("v_rsq_f32 v74, v74")
    e.nop(1)
    e("v_mul_f32 v74, v74, v82")
    for k in range(5):
        e(f"v_pk_mul_f32 v[{64+2*k}:{65+2*k}], v[{64+2*k}:{65+2*k}], v[74:75] op_sel_hi:[1,0]")
    for k in range(5):
        e(f"v_cvt_pk_bf16_f32 v{8+k}, v{64+2*k}, v{65+2*k}")
        e(f"ds_write_b32 v6, v{8+k} offset:{256*k}")
    e.label("L_f_noln")
    e(f"s_cmp_lt_u32 s{S_W}, 4\ns_cbranch_scc0 L_f_nw\ns_waitcnt vmcnt(0)")
    e.label("L_f_nw")
    e("s_waitcnt lgkmcnt(0)")
    mk_tag()
    e("s_barrier")
    stamp(3)
    e(f"v_mov_b32 v105, s{S_TAG}\nv_mov_b32 v107, s{S_TAG}")
    e(f"s_cmp_lt_u32 s{S_W}, 4\ns_cbranch_scc1 L_h1")
    for ks in range(5):
        e(f"ds_read_b128 v[{84+4*ks}:{87+4*ks}], v42 offset:{64*ks}")
        e(f"ds_read_b64_tr_b16 v[{64+4*ks}:{65+4*ks}], v41 offset:{8192*ks}")
        e(f"ds_read_b64_tr_b16 v[{66+4*ks}:{67+4*ks}], v41 offset:{8192*ks+1024}")
        e(f"ds_read_b64_tr_b16 v[{112+4*ks}:{113+4*ks}], v40 offset:{8192*ks}")
        e(f"ds_read_b64_tr_b16 v[{114+4*ks}:{115+4*ks}], v40 offset:{8192*ks+1024}")
    e("s_mov_b32 s64, 0xaaaaaaaa\ns_mov_b32 s65, 0xaaaaaaaa")
    for ks in range(5):
        e(f"s_waitcnt lgkmcnt({min(15, 20-5*ks)})")
        c = "0" if ks == 0 else "v[108:111]"
        e(f"v_mfma_f32_16x16x32_bf16 v[108:111], v[{64+4*ks}:{67+4*ks}], v[{84+4*ks}:{87+4*ks}], {c}")
        c = "0" if ks == 0 else "v[132:135]"
        e(f"v_mfma_f32_16x16x32_bf16 v[132:135], v[{112+4*ks}:{115+4*ks}], v[{84+4*ks}:{87+4*ks}], {c}")
    e("s_mov_b32 exec_lo, 0x00030003\ns_mov_b32 exec_hi, 0x00030003")
    e.nop(6)
    for r in range(4):
        e(f"v_cndmask_b32 v{108+r}, v{108+r}, v{132+r}, s[64:65]")
    e("""
    v_cvt_pk_bf16_f32 v104, v108, v109
    v_cvt_pk_bf16_f32 v106, v110, v111
    """)
    if cfg.fast1: e(f"global_store_dwordx4 v44, v[104:107], {WS}")
    e(f"global_store_dwordx4 v43, v[104:107], {WS} sc1\ns_mov_b64 exec, -1")
    stamp(4)
    e(f"s_waitcnt vmcnt({2 if cfg.fast1 else 1})")
    stamp(7)
    e("s_branch L_h1_bar")
    e.label("L_h1")
    if cfg.fast1:
        e(f"global_load_dwordx2 v[66:67], v49, {WS} sc1")
        e(f"global_load_dwordx2 v[64:65], v45, {WS} sc1\ns_waitcnt vmcnt(0)")
        e(f"v_cmp_eq_u32 vcc, s{S_TAG}, v67")
        e.nop(2)
        e("v_cndmask_b32 v64, v64, v66, vcc\nv_cndmask_b32 v65, v65, v67, vcc")
    else:
        e(f"global_load_dwordx2 v[64:65], v45, {WS} sc1\ns_waitcnt vmcnt(0)")
    e(f"v_cmp_ne_u32 vcc, s{S_TAG}, v65")
    e(f"s_cbranch_vccz L_h1_done")
    spin_back("L_h1")
    e.label("L_h1_done")
    stamp(8)
    e("ds_write_b32 v46, v64")
    e.label("L_h1_bar")
    e("s_waitcnt lgkmcnt(0)\ns_barrier")
    stamp(5)
    e(f"s_cmp_lt_u32 s{S_W}, 4\ns_cbranch_scc1 L_f_nos2")
    for t in range(4):
        e(f"ds_read_b128 v[{64+4*t}:{67+4*t}], v47 offset:{64*t}")
        e(f"ds_read_b128 v[{80+4*t}:{83+4*t}], v{24+t}")
        e(f"ds_read_b128 v[{112+4*t}:{115+4*t}], v{24+t} offset:4096")
    e("s_mov_b32 s64, 0xaaaaaaaa\ns_mov_b32 s65, 0xaaaaaaaa")
    for t in range(4):
        e(f"s_waitcnt lgkmcnt({9-3*t})")
        c = "0" if t == 0 else "v[108:111]"
        e(f"v_mfma_f32_16x16x32_bf16 v[108:111], v[{80+4*t}:{83+4*t}], v[{64+4*t}:{67+4*t}], {c}")
        c = "0" if t == 0 else "v[132:135]"
        e(f"v_mfma_f32_16x16x32_bf16 v[132:135], v[{112+4*t}:{115+4*t}], v[{64+4*t}:{67+4*t}], {c}")
    e.nop(7)
    for st in ("row_ror:1", "row_ror:2"):
        for r in list(range(108, 112)) + list(range(132, 136)):
            e(f"v_add_f32_dpp v{r}, v{r}, v{r} {st} row_mask:0xf bank_mask:0xf")
    e("s_mov_b32 exec_lo, 0x00030003\ns_mov_b32 exec_hi, 0x00030003")
    for r in range(4):
        e(f"v_cndmask_b32 v{108+r}, v{108+r}, v{132+r}, s[64:65]")
    e("""
    v_cvt_pk_bf16_f32 v104, v108, v109
    v_cvt_pk_bf16_f32 v106, v110, v111
    """)
    e(f"global_store_dwordx4 v48, v[104:107], {WS} sc1\ns_mov_b64 exec, -1")
    stamp(6)
    e.label("L_f_nos2")
    e("s_barrier")
    if cfg.uvpf:
        e(f"""
        v_lshrrev_b32 v4, 1, v1
        s_lshl_b32 s3, s{S_J}, 7
        s_lshl_b32 s64, s{S_W}, 4
        s_add_u32 s3, s3, s64
        v_and_b32 v4, 15, v4
        v_add_u32 v4, s3, v4
        v_lshlrev_b32 v4, 13, v4
        v_and_b32 v5, 1, v1
        v_lshl_add_u32 v4, v5, 7, v4
        s_lshl_b32 s3, s{S_H}, 8
        v_add_u32 v4, s3, v4
        s_mov_b64 exec, 0xffffffff
        global_load_dword v5, v4, s[{P_WUV}:{P_WUV+1}]{NT}
        s_mov_b64 exec, -1
        """)
    e(f"s_cmp_lt_u32 s{S_I}, 10\ns_cbranch_scc1 L_s6")
    s7_loads()
    e("s_waitcnt vmcnt(0)")
    s7_prep()
    e("s_branch L_S7")
    e.label("L_s6")
    e(f"""
    s_mov_b32 s{SRD_WO}, s{P_WO}
    s_mov_b32 s{SRD_WO+1}, s{P_WO+1}
    s_mov_b32 s{SRD_WO+2}, 5242880
    s_mov_b32 s{SRD_WO+3}, 0x20000
    v_lshrrev_b32 v12, 3, v1
    v_mul_u32_u24 v50, 1280, v12
    v_and_b32 v12, 2, v12
    v_and_b32 v13, 7, v1
    v_xor_b32 v12, v12, v13
    v_lshl_add_u32 v50, v12, 4, v50
    v_xor_b32 v51, 64, v50
    s_lshl_b32 s3, s{S_X}, 3
    s_add_u32 s3, s3, s{S_W}
    s_mul_i32 s20, s3, {64*1280}
    s_lshl_b32 s65, s{S_I}, 7
    s_add_u32 s20, s20, s65
    s_lshl_b32 s21, s{S_W}, 13
    """)
    for ii in range(8):
        e(f"""
        s_mov_b32 m0, s21
        s_add_u32 s21, s21, 1024
        buffer_load_dwordx4 v{50+(ii&1)}, s[{SRD_WO}:{SRD_WO+3}], s20 offen{NT} lds
        s_add_u32 s20, s20, {8*1280}
        """)
    s7_loads()
    tr_common()
    e(f"""
    v_lshl_add_u32 v12, v2, 3, v62
    v_lshlrev_b32 v12, 7, v12
    v_add_u32 v12, v12, v59
    s_lshl_b32 s3, s{S_W}, 13
    v_add_u32 v12, s3, v12
    v_and_b32 v13, 1, v2
    v_lshlrev_b32 v13, 2, v13
    v_and_b32 v14, 2, v62
    v_or_b32 v13, v13, v14
    v_xor_b32 v13, v13, v63
    v_lshl_add_u32 v249, v13, 4, v12
    v_xor_b32 v250, 32, v249
    v_xor_b32 v251, 64, v249
    v_xor_b32 v252, 96, v249
    s_lshr_b32 s3, s{S_W}, 1
    s_lshl_b32 s64, s{S_X}, 2
    s_add_u32 s3, s3, s64
    s_lshl_b32 s3, s3, 11
    s_and_b32 s64, s{S_W}, 1
    s_lshl_b32 s64, s64, 8
    s_add_u32 s3, s3, s64
    s_add_u32 s3, s3, {WS_CTX}
    v_lshlrev_b32 v52, 9, v2
    v_lshl_add_u32 v52, v3, 4, v52
    v_add_u32 v52, s3, v52
    v_add_u32 v53, {WS_CTXF-WS_CTX}, v52
    s_lshl_b32 s3, s{S_W}, 7
    s_add_u32 s3, s3, {L_BNC}
    v_lshl_add_u32 v54, v3, 2, v2
    v_lshlrev_b32 v54, 1, v54
    v_add_u32 v54, s3, v54
    v_lshl_add_u32 v55, v2, 4, s3
    s_lshl_b32 s3, s{S_W}, 8
    s_add_u32 s3, s3, {L_ORED}
    v_lshl_add_u32 v253, v2, 4, s3
    v_lshlrev_b32 v254, 3, v1
    v_add_u32 v254, {L_ORED}, v254
    s_mul_i32 s3, s{S_X}, 2560
    s_lshl_b32 s64, s{S_I}, 8
    s_add_u32 s3, s3, s64
    s_add_u32 s3, s3, {WS_OP}
    v_lshl_add_u32 v255, v1, 3, s3
    s_waitcnt vmcnt(0)
    """)
    stamp(9)
    for tt in range(4):
        for ks in range(2):
            r = 80 + 8 * tt + 4 * ks
            e(f"ds_read_b64_tr_b16 v[{r}:{r+1}], v{249+tt} offset:{4096*ks}")
            e(f"ds_read_b64_tr_b16 v[{r+2}:{r+3}], v{249+tt} offset:{4096*ks+512}")
    s7_prep()
    e.label("L_h4")
    if cfg.fast4:
        e(f"global_load_dwordx4 v[44:47], v53, {WS} sc1")
        e(f"global_load_dwordx4 v[40:43], v52, {WS} sc1\ns_waitcnt vmcnt(0)")
        tagchk(48, [45, 47])
        e("v_cmp_eq_u32 vcc, 0, v48")
        e.nop(2)
        for k in range(4): e(f"v_cndmask_b32 v{40+k}, v{40+k}, v{44+k}, vcc")
    else:
        e(f"global_load_dwordx4 v[40:43], v52, {WS} sc1\ns_waitcnt vmcnt(0)")
    tagchk(48, [41, 43])
    poll_tail("L_h4", "L_h4_done", 48, cfg.h4sleep)
    stamp(10)
    e("""
    v_lshlrev_b32 v44, 16, v40
    v_and_b32 v45, 0xffff0000, v40
    v_lshlrev_b32 v46, 16, v42
    v_and_b32 v47, 0xffff0000, v42
    s_nop 1
    v_permlane32_swap_b32 v44, v46
    v_permlane32_swap_b32 v45, v47
    v_add_f32 v44, v44, v46
    v_add_f32 v45, v45, v47
    s_nop 1
    v_permlane16_swap_b32 v44, v45
    v_add_f32 v44, v44, v45
    v_cvt_pk_bf16_f32 v44, v44, v44
    ds_write_b16 v54, v44
    s_waitcnt lgkmcnt(0)
    ds_read_b128 v[112:115], v55
    ds_read_b128 v[116:119], v55 offset:64
    """)
    for ks in range(2):
        e(f"s_waitcnt lgkmcnt({1-ks})")
        for tt in range(4):
            c = "0" if ks == 0 else f"v[{120+4*tt}:{123+4*tt}]"
            r = 80 + 8 * tt + 4 * ks
            e(f"v_mfma_f32_16x16x32_bf16 v[{120+4*tt}:{123+4*tt}], v[{r}:{r+3}], v[{112+4*ks}:{115+4*ks}], {c}")
    e("s_mov_b32 exec_lo, 0x00010001\ns_mov_b32 exec_hi, 0x00010001")
    e.nop(3)
    for tt in range(4):
        e(f"ds_write_b128 v253, v[{120+4*tt}:{123+4*tt}] offset:{64*tt}")
    e(f"""
    s_mov_b64 exec, -1
    s_waitcnt lgkmcnt(0)
    s_barrier
    s_cmp_eq_u32 s{S_W}, 7
    s_cbranch_scc0 L_S7
    s_mov_b64 exec, 0xffffffff
    """)
    for w in range(8):
        e(f"ds_read_b64 v[{40+2*w}:{41+2*w}], v254 offset:{256*w}")
    e(f"""
    v_mov_b32 v57, s{S_TAG}
    s_waitcnt lgkmcnt(0)
    v_pk_add_f32 v[40:41], v[40:41], v[42:43]
    v_pk_add_f32 v[44:45], v[44:45], v[46:47]
    v_pk_add_f32 v[48:49], v[48:49], v[50:51]
    v_pk_add_f32 v[52:53], v[52:53], v[54:55]
    v_pk_add_f32 v[40:41], v[40:41], v[44:45]
    v_pk_add_f32 v[48:49], v[48:49], v[52:53]
    v_pk_add_f32 v[40:41], v[40:41], v[48:49]
    v_cvt_pk_bf16_f32 v56, v40, v41
    global_store_dwordx2 v255, v[56:57], {WS} sc1
    s_mov_b64 exec, -1
    """)
    stamp(11)
    e("s_branch L_S7")

    e.label("L_B1")
    e(f"s_mov_b32 s{S_ISB}, 1")
    stamp(1)
    e(f"""
    s_lshr_b32 s3, s{S_I}, 2
    s_lshl_b32 s3, s3, 3
    s_add_u32 s3, s3, s{S_W}
    s_lshl_b32 s3, s3, 11
    s_add_u32 s3, s3, {WS_QA}
    v_lshl_add_u32 v5, v1, 5, s3
    global_load_dwordx4 v[40:43], v5, {WS} sc1
    global_load_dwordx4 v[44:47], v5, {WS} offset:16 sc1
    s_mul_i32 s3, s{S_W}, {QAS_STRIDE}
    s_add_u32 s3, s3, {L_QAS}
    v_lshl_add_u32 v6, v1, 4, s3
    """)
    tr_common()
    e(f"s_cmp_lt_u32 s{S_W}, 4\ns_cbranch_scc0 L_bp_prep")
    def h2_poll(sfx):
        e("s_branch L_h2_chk" + sfx)
        e.label("L_h2" + sfx)
        e(f"""
        global_load_dwordx4 v[40:43], v5, {WS} sc1
        global_load_dwordx4 v[44:47], v5, {WS} offset:16 sc1
        s_waitcnt vmcnt(0)
        """)
        e.label("L_h2_chk" + sfx)
        tagchk(4, [41, 43, 45, 47])
        poll_tail("L_h2" + sfx, "L_h2_done" + sfx, 4, cfg.h2sleep)
        stamp(5)
        e(f"""
        v_mov_b32 v41, v42
        v_mov_b32 v42, v44
        v_mov_b32 v43, v46
        ds_write_b128 v6, v[40:43]
        s_waitcnt lgkmcnt(0)
        s_barrier
        """)
    e(f"""
    s_lshl_b32 s3, s{S_W}, 5
    v_add_u32 v12, s3, v3
    v_lshlrev_b32 v12, 10, v12
    v_and_b32 v13, 7, v1
    v_lshlrev_b32 v13, 1, v13
    v_xor_b32 v13, v13, v2
    v_lshl_add_u32 v8, v13, 4, v12
    v_xor_b32 v9, 64, v8
    v_xor_b32 v10, 128, v8
    v_xor_b32 v11, 192, v8
    v_and_b32 v216, 7, v3
    v_lshlrev_b32 v217, 4, v216
    v_mul_u32_u24 v216, {QAS_STRIDE}, v216
    v_lshl_add_u32 v216, v2, 4, v216
    v_add_u32 v216, {L_QAS}, v216
    v_add_u32 v217, {L_MX}, v217
    s_lshl_b32 s3, s{S_W}, 2
    v_add_u32 v218, s3, v217
    s_lshl_b32 s3, s{S_W}, 10
    s_add_u32 s3, s3, {L_PEX}
    v_lshl_add_u32 v219, v1, 4, s3
    v_and_b32 v220, 1, v2
    v_lshl_add_u32 v220, v220, 2, v62
    v_lshlrev_b32 v220, 1, v220
    s_lshl_b32 s3, s{S_W}, 2
    v_add_u32 v12, s3, v63
    v_xor_b32 v220, v220, v12
    v_lshl_add_u32 v220, v220, 4, v59
    v_lshl_add_u32 v12, v2, 3, v62
    v_lshl_add_u32 v220, v12, 8, v220
    v_xor_b32 v221, 32, v220
    s_lshl_b32 s3, s{S_H}, 11
    s_lshl_b32 s65, s{S_J}, 9
    s_add_u32 s3, s3, s65
    s_lshl_b32 s64, s{S_W}, 7
    s_add_u32 s3, s3, s64
    s_add_u32 s65, s3, {WS_PART}
    v_lshrrev_b32 v12, 3, v1
    v_and_b32 v13, 7, v1
    v_lshlrev_b32 v222, 16, v12
    v_lshl_add_u32 v222, v13, 4, v222
    v_add_u32 v222, s65, v222
    s_lshl_b32 s3, s{S_H}, 7
    s_add_u32 s3, s3, {WS_ST}
    v_lshl_add_u32 v48, v12, 12, s3
    v_and_b32 v223, 1, v2
    v_lshlrev_b32 v223, 1, v223
    v_lshrrev_b32 v12, 1, v2
    v_or_b32 v223, v223, v12
    v_lshl_add_u32 v223, v13, 2, v223
    s_lshl_b32 s3, s{S_W}, 5
    v_add_u32 v223, s3, v223
    v_lshlrev_b32 v223, 1, v223
    v_add_u32 v223, {L_CTXS}, v223
    v_lshlrev_b32 v49, 4, v2
    v_add_u32 v49, {L_CTXS}, v49
    s_lshl_b32 s3, s{S_H}, 2
    s_add_u32 s3, s3, s{S_J}
    s_lshl_b32 s3, s3, 9
    s_add_u32 s3, s3, s64
    s_add_u32 s3, s3, {WS_CTX}
    v_and_b32 v50, 1, v1
    v_lshlrev_b32 v50, 6, v50
    v_lshl_add_u32 v50, v2, 4, v50
    v_add_u32 v50, s3, v50
    v_add_u32 v51, {WS_CTXF-WS_CTX}, v50
    s_waitcnt vmcnt(0) lgkmcnt(0)
    """)
    mk_tag()
    e("s_barrier")
    stamp(14)
    for t in range(2):
        for j in range(16):
            e(f"ds_read_b128 v[{64+64*t+4*j}:{67+64*t+4*j}], v{8+(j&3)} offset:{256*(j>>2)+16384*t}")
    h2_poll("q")
    def qb(j):
        if j < 6: return 192 + 4 * j
        if j < 13: return 12 + 4 * (j - 6)
        if j < 15: return 40 + 4 * (j - 13)
        return 52
    for j in range(16):
        e(f"ds_read_b128 v[{qb(j)}:{qb(j)+3}], v216 offset:{64*j}")
    for j in range(16):
        if j % 2 == 0: e(f"s_waitcnt lgkmcnt({max(0, 14-j)})")
        for t in range(2):
            acc = f"v[{56+4*t}:{59+4*t}]"
            c = "0" if j == 0 else acc
            e(f"v_mfma_f32_16x16x32_bf16 {acc}, v[{64+64*t+4*j}:{67+64*t+4*j}], v[{qb(j)}:{qb(j)+3}], {c}")
    e.nop(7)
    e("""
    v_max3_f32 v12, v56, v57, v58
    s_nop 0
    v_max3_f32 v13, v60, v61, v62
    v_max3_f32 v12, v59, v63, v12
    v_max_f32 v12, v12, v13
    v_mov_b32 v13, v12
    """)
    e.nop(2)
    e("v_permlane16_swap_b32 v12, v13")
    e("v_max_f32 v12, v12, v13\nv_mov_b32 v13, v12")
    e.nop(2)
    e("v_permlane32_swap_b32 v12, v13")
    e("""
    v_max_f32 v12, v12, v13
    s_mov_b64 exec, 0xff
    ds_write_b32 v218, v12
    s_mov_b64 exec, -1
    s_waitcnt lgkmcnt(0)
    s_barrier
    ds_read_b128 v[16:19], v217
    s_waitcnt lgkmcnt(0)
    v_max3_f32 v12, v16, v17, v18
    v_max_f32 v12, v12, v19
    """)
    for r in range(8): e(f"v_sub_f32 v{56+r}, v{56+r}, v12")
    for r in range(8): e(f"v_exp_f32 v{56+r}, v{56+r}")
    e("s_nop 0")
    for r in range(4): e(f"v_cvt_pk_bf16_f32 v{16+r}, v{56+2*r}, v{57+2*r}")
    e(f"""
    ds_write_b128 v219, v[16:19]
    s_cmp_eq_u32 s{S_W}, 0
    s_cbranch_scc0 L_bq_nom
    s_mov_b64 exec, 0xff
    ds_write_b32 v218, v12 offset:128
    s_mov_b64 exec, -1
    """)
    e.label("L_bq_nom")
    e("s_waitcnt lgkmcnt(0)\ns_barrier")
    stamp(6)
    e(f"""
    v_mov_b32 v105, s{S_TAG}
    v_mov_b32 v107, s{S_TAG}
    v_add_u32 v192, 0x80000, v222
    v_add_u32 v193, 0x100000, v222
    v_add_u32 v194, 0x180000, v222
    v_add_u32 v195, 0x8000, v48
    v_add_u32 v196, 0x10000, v48
    v_add_u32 v197, 0x18000, v48
    s_mov_b32 s64, 0xaaaaaaaa
    s_mov_b32 s65, 0xaaaaaaaa
    """)
    e("s_barrier")
    for t in range(2):
        for ks in range(4):
            r = 128 + 16 * t + 4 * ks
            e(f"ds_read_b64_tr_b16 v[{r}:{r+1}], v{220+t} offset:{8192*ks}")
            e(f"ds_read_b64_tr_b16 v[{r+2}:{r+3}], v{220+t} offset:{8192*ks+1024}")
    if cfg.h3sleep: e(f"s_sleep {cfg.h3sleep}")
    stamp(2)
    e.label("L_h3")
    for i, ar in enumerate([48, 195, 196, 197]):
        e(f"global_load_dwordx4 v[{64+4*i}:{67+4*i}], v{ar}, {WS} sc1")
    for i, ar in enumerate([222, 192, 193, 194]):
        e(f"global_load_dwordx4 v[{80+4*i}:{83+4*i}], v{ar}, {WS} sc1")
    e("s_waitcnt vmcnt(0)")
    tagchk(4, [65, 67, 69, 71, 73, 75, 77, 79, 81, 83, 85, 87, 89, 91, 93, 95])
    poll_tail("L_h3", "L_h3_done", 4)
    stamp(8)
    e("""
    v_max3_f32 v4, v64, v68, v72
    v_max_f32 v4, v4, v76
    """)
    for i in range(2):
        e(f"v_lshlrev_b32 v{12+4*i}, 16, v{80+4*i}\nv_and_b32 v{13+4*i}, 0xffff0000, v{80+4*i}")
    e("v_max_f32_dpp v4, v4, v4 row_ror:8 row_mask:0xf bank_mask:0xf")
    for i in range(2):
        e(f"v_lshlrev_b32 v{14+4*i}, 16, v{82+4*i}\nv_and_b32 v{15+4*i}, 0xffff0000, v{82+4*i}")
    e("v_mov_b32 v5, v4")
    e("v_lshlrev_b32 v20, 16, v88\nv_and_b32 v21, 0xffff0000, v88")
    e("v_permlane16_swap_b32 v4, v5")
    e("v_lshlrev_b32 v22, 16, v90\nv_and_b32 v23, 0xffff0000, v90")
    e("v_max_f32 v4, v4, v5\nv_mov_b32 v5, v4")
    e("v_lshlrev_b32 v24, 16, v92\nv_and_b32 v25, 0xffff0000, v92")
    e("v_permlane32_swap_b32 v4, v5")
    e("v_lshlrev_b32 v26, 16, v94\nv_and_b32 v27, 0xffff0000, v94")
    e("v_max_f32 v4, v4, v5")
    for i in range(4): e(f"v_sub_f32 v{64+4*i}, v{64+4*i}, v4")
    for i in range(4): e(f"v_exp_f32 v{64+4*i}, v{64+4*i}")
    e("""
    v_pk_mul_f32 v[12:13], v[12:13], v[64:65] op_sel_hi:[1,0]
    v_pk_mul_f32 v[14:15], v[14:15], v[64:65] op_sel_hi:[1,0]
    v_mul_f32 v28, v64, v66
    """)
    for i in range(1, 4):
        e(f"v_pk_fma_f32 v[12:13], v[{12+4*i}:{13+4*i}], v[{64+4*i}:{65+4*i}], v[12:13] op_sel_hi:[1,0,1]")
        e(f"v_pk_fma_f32 v[14:15], v[{14+4*i}:{15+4*i}], v[{64+4*i}:{65+4*i}], v[14:15] op_sel_hi:[1,0,1]")
        e(f"v_fmac_f32 v28, v{64+4*i}, v{66+4*i}")
    e("s_nop 0")
    for r in (12, 13, 14, 15, 28):
        e(f"v_add_f32_dpp v{r}, v{r}, v{r} row_ror:8 row_mask:0xf bank_mask:0xf")
    e("""
    v_mov_b32 v29, v28
    v_permlane16_swap_b32 v12, v14
    v_permlane16_swap_b32 v13, v15
    v_permlane16_swap_b32 v28, v29
    v_add_f32 v12, v12, v14
    v_add_f32 v13, v13, v15
    v_add_f32 v28, v28, v29
    s_nop 0
    v_mov_b32 v29, v28
    v_permlane32_swap_b32 v12, v13
    s_nop 0
    v_permlane32_swap_b32 v28, v29
    v_add_f32 v12, v12, v13
    v_add_f32 v28, v28, v29
    v_rcp_f32 v28, v28
    s_mov_b32 exec_lo, 0x00ff00ff
    s_mov_b32 exec_hi, 0x00ff00ff
    v_mul_f32 v12, v12, v28
    v_cvt_pk_bf16_f32 v12, v12, v12
    ds_write_b16 v223, v12
    s_mov_b64 exec, -1
    s_waitcnt lgkmcnt(0)
    s_barrier
    """)
    for ks in range(4):
        e(f"ds_read_b128 v[{112+4*ks}:{115+4*ks}], v49 offset:{64*ks}")
    for ks in range(4):
        e(f"s_waitcnt lgkmcnt({3-ks})")
        for t in range(2):
            acc = f"v[{96+4*t}:{99+4*t}]"
            c = "0" if ks == 0 else acc
            r = 128 + 16 * t + 4 * ks
            e(f"v_mfma_f32_16x16x32_bf16 {acc}, v[{r}:{r+3}], v[{112+4*ks}:{115+4*ks}], {c}")
    e("s_mov_b32 exec_lo, 0x00030003\ns_mov_b32 exec_hi, 0x00030003")
    e.nop(6)
    for r in range(4):
        e(f"v_cndmask_b32 v{96+r}, v{96+r}, v{100+r}, s[64:65]")
    e("""
    v_cvt_pk_bf16_f32 v104, v96, v97
    v_cvt_pk_bf16_f32 v106, v98, v99
    """)
    if cfg.fast4: e(f"global_store_dwordx4 v51, v[104:107], {WS}")
    e(f"global_store_dwordx4 v50, v[104:107], {WS} sc1\ns_mov_b64 exec, -1")
    stamp(9)
    e("s_branch L_b_tail")
    e.label("L_bp_prep")
    e(f"""
    v_lshl_add_u32 v58, v2, 2, v62
    v_and_b32 v13, 7, v58
    v_lshlrev_b32 v13, 1, v13
    v_lshlrev_b32 v58, 10, v58
    v_add_u32 v58, v58, v59
    s_and_b32 s66, s{S_W}, 3
    s_lshl_b32 s3, s66, 4
    v_add_u32 v12, s3, v63
    v_xor_b32 v12, v12, v13
    v_lshl_add_u32 v8, v12, 4, v58
    """)
    for tt in range(1, 8):
        e(f"v_xor_b32 v{8+tt}, {32*tt}, v8")
    e(f"""
    v_lshlrev_b32 v16, 4, v1
    v_add_u32 v16, {L_PEX}, v16
    s_mov_b32 s{SRD_A}, s{P_WUV}
    s_mov_b32 s{SRD_A+1}, s{P_WUV+1}
    s_mov_b32 s{SRD_A+2}, 4194304
    s_mov_b32 s{SRD_A+3}, 0x20000
    s_lshl_b32 s3, s{S_W}, 2
    s_and_b32 s3, s3, 8
    v_lshlrev_b32 v19, 1, v2
    v_xor_b32 v19, v19, v3
    v_xor_b32 v19, s3, v19
    v_lshlrev_b32 v19, 4, v19
    v_lshl_add_u32 v19, v2, 13, v19
    s_lshl_b32 s20, s{S_J}, 5
    s_add_u32 s20, s20, s66
    s_lshl_b32 s20, s20, 15
    s_lshl_b32 s21, s{S_H}, 8
    s_add_u32 s20, s20, s21
    s_lshl_b32 s21, s66, 10
    s_lshl_b32 s3, s{S_CH}, 16
    s_lshr_b32 s64, s{S_I}, 2
    s_lshl_b32 s65, s64, 14
    s_add_u32 s3, s3, s65
    s_lshl_b32 s65, s66, 9
    s_add_u32 s3, s3, s65
    s_add_u32 s3, s3, {WS_PART}
    v_and_b32 v17, 7, v3
    v_lshlrev_b32 v17, 11, v17
    v_lshl_add_u32 v17, v2, 4, v17
    v_lshrrev_b32 v20, 3, v3
    v_lshl_add_u32 v17, v20, 6, v17
    v_add_u32 v17, s3, v17
    s_lshl_b32 s64, s64, 10
    s_lshl_b32 s65, s{S_CH}, 12
    s_add_u32 s64, s64, s65
    s_add_u32 s64, s64, {WS_ST}
    v_lshlrev_b32 v18, 7, v3
    v_add_u32 v18, s64, v18
    v_mov_b32 v36, 0x3f803f80
    v_mov_b32 v37, 0x3f803f80
    v_mov_b32 v38, 0x3f803f80
    v_mov_b32 v39, 0x3f803f80
    s_waitcnt vmcnt(0) lgkmcnt(0)
    """)
    mk_tag()
    e("s_barrier")
    stamp(14)
    for half in range(2):
        for tt in range(8):
            for k2 in range(2):
                ks = 2 * half + k2
                for eb in range(2):
                    r = 64 + 16 * tt + 4 * ks + 2 * eb
                    e(f"ds_read_b64_tr_b16 v[{r}:{r+1}], v{8+tt} offset:{32768*k2+16384*eb}")
        if half == 0:
            for tt in range(8):
                e(f"v_add_u32 v{8+tt}, 0x10000, v{8+tt}")
    h2_poll("p")
    for ii in range(8):
        e(f"""
        s_mov_b32 m0, s21
        s_add_u32 s21, s21, 4096
        buffer_load_dwordx4 v19, s[{SRD_A}:{SRD_A+3}], s20 offen{NT} lds
        s_add_u32 s20, s20, {4*4*8192}
        """)
    e("s_barrier\ns_barrier")
    for ks in range(4):
        e(f"ds_read_b128 v[{20+4*ks}:{23+4*ks}], v16 offset:{1024*ks}")
    e(f"""
    v_and_b32 v4, 7, v3
    v_lshlrev_b32 v4, 4, v4
    v_add_u32 v4, {L_MX+128}, v4
    s_mov_b32 s64, 0xff00ff00
    s_mov_b32 s65, 0xff00ff00
    """)
    stamp(6)
    for ks in range(4):
        e(f"s_waitcnt lgkmcnt({3-ks})")
        for tt in range(8):
            acc = f"v[{192+4*tt}:{195+4*tt}]"
            c = "0" if ks == 0 else acc
            r = 64 + 16 * tt + 4 * ks
            e(f"v_mfma_f32_16x16x32_bf16 {acc}, v[{r}:{r+3}], v[{20+4*ks}:{23+4*ks}], {c}")
    e(f"s_cmp_eq_u32 s{S_W}, 4\ns_cbranch_scc0 L_b_nol")
    e("ds_read_b32 v44, v4")
    for ks in range(4):
        c = "0" if ks == 0 else "v[40:43]"
        e(f"v_mfma_f32_16x16x32_bf16 v[40:43], v[36:39], v[{20+4*ks}:{23+4*ks}], {c}")
    e.label("L_b_nol")
    for pr in range(4):
        e(f"v_mov_b32 v{65+4*pr}, s{S_TAG}\nv_mov_b32 v{67+4*pr}, s{S_TAG}")
    for pr in range(4):
        a0, a1 = 192 + 8 * pr, 196 + 8 * pr
        e(f"""
        v_cvt_pk_bf16_f32 v80, v{a0}, v{a0+1}
        v_cvt_pk_bf16_f32 v81, v{a0+2}, v{a0+3}
        v_cvt_pk_bf16_f32 v82, v{a1}, v{a1+1}
        v_cvt_pk_bf16_f32 v83, v{a1+2}, v{a1+3}
        v_cndmask_b32 v{64+4*pr}, v80, v82, s[64:65]
        v_cndmask_b32 v{66+4*pr}, v81, v83, s[64:65]
        global_store_dwordx4 v17, v[{64+4*pr}:{67+4*pr}], {WS} offset:{128*pr} sc1
        """)
    e(f"""
    s_cmp_eq_u32 s{S_W}, 4
    s_cbranch_scc0 L_b_nostat
    v_mov_b32 v45, s{S_TAG}
    v_mov_b32 v46, v40
    v_mov_b32 v47, s{S_TAG}
    s_mov_b64 exec, 0xff
    s_waitcnt lgkmcnt(0)
    global_store_dwordx4 v18, v[44:47], {WS} sc1
    s_mov_b64 exec, -1
    """)
    stamp(7)
    e("s_waitcnt vmcnt(5)\ns_branch L_b_st2")
    e.label("L_b_nostat")
    stamp(7)
    e("s_waitcnt vmcnt(4)")
    e.label("L_b_st2")
    e("s_barrier\ns_barrier")
    e.label("L_b_tail")
    e("s_barrier")
    s7_loads()
    e("s_waitcnt vmcnt(0)")
    s7_prep()

    e.label("L_S7")
    e(f"s_cmp_lt_u32 s{S_W}, 5\ns_cbranch_scc0 L_s7_bar")
    e.label("L_h5")
    e(f"""
    global_load_dwordx4 v[40:43], v244, {WS} sc1
    global_load_dwordx4 v[44:47], v245, {WS} sc1
    global_load_dwordx4 v[48:51], v246, {WS} sc1
    global_load_dwordx4 v[52:55], v247, {WS} sc1
    s_waitcnt vmcnt(0)
    """)
    tagchk(56, [41, 43, 45, 47, 49, 51, 53, 55])
    poll_tail("L_h5", "L_h5_done", 56, cfg.h5sleep)
    stamp(12)
    for k, src in enumerate([40, 44, 48, 52]):
        e(f"v_lshlrev_b32 v{80+8*k}, 16, v{src}\nv_and_b32 v{81+8*k}, 0xffff0000, v{src}")
        e(f"v_lshlrev_b32 v{82+8*k}, 16, v{src+2}\nv_and_b32 v{83+8*k}, 0xffff0000, v{src+2}")
    e(f"""
    v_pk_add_f32 v[80:81], v[80:81], v[88:89]
    v_pk_add_f32 v[96:97], v[96:97], v[104:105]
    v_pk_add_f32 v[82:83], v[82:83], v[90:91]
    v_pk_add_f32 v[98:99], v[98:99], v[106:107]
    v_pk_add_f32 v[80:81], v[80:81], v[96:97]
    v_pk_add_f32 v[82:83], v[82:83], v[98:99]
    s_nop 1
    v_permlane32_swap_b32 v80, v82
    v_permlane32_swap_b32 v81, v83
    v_add_f32 v50, v80, v82
    v_add_f32 v51, v81, v83
    v_pk_add_f32 v[50:51], v[50:51], v[58:59]
    ds_write_b64 v248, v[50:51]
    v_add_f32 v52, v50, v51
    v_mul_f32 v53, v50, v50
    v_fmac_f32 v53, v51, v51
    """)
    dpp_reduce([52, 53])
    e(f"""
    s_mov_b32 exec_lo, 0
    s_mov_b32 exec_hi, 0x80000000
    ds_write_b64 v68, v[52:53]
    s_mov_b64 exec, -1
    """)
    e.label("L_s7_bar")
    e(f"""
    s_waitcnt lgkmcnt(0)
    s_barrier
    s_cmp_lt_u32 s2, 214
    s_cbranch_scc0 L_fin
    ds_read_b128 v[40:43], v62
    ds_read_b128 v[44:47], v62 offset:16
    ds_read_b64 v[48:49], v62 offset:32
    ds_read_b32 v50, v63
    ds_read_b32 v52, v63 offset:4
    ds_read_b32 v54, v63 offset:8
    s_waitcnt lgkmcnt(3)
    v_pk_add_f32 v[40:41], v[40:41], v[42:43]
    v_pk_add_f32 v[44:45], v[44:45], v[46:47]
    v_pk_add_f32 v[40:41], v[40:41], v[48:49]
    v_pk_add_f32 v[40:41], v[40:41], v[44:45]
    v_pk_mul_f32 v[40:41], v[40:41], v[60:61] op_sel_hi:[1,0]
    v_fma_f32 v41, -v40, v40, v41
    v_max_f32 v41, 0, v41
    v_add_f32 v42, v41, v61
    v_rsq_f32 v42, v42
    s_nop 0
    v_mul_f32 v43, v42, v42
    v_fma_f32 v43, v43, v41, v61
    v_rsq_f32 v43, v43
    s_waitcnt lgkmcnt(0)
    v_sub_f32 v70, v50, v40
    v_sub_f32 v72, v52, v40
    v_mul_f32 v42, v42, v43
    v_sub_f32 v74, v54, v40
    v_mul_f32 v70, v70, v42
    v_mul_f32 v72, v72, v42
    v_mul_f32 v74, v74, v42
    """)
    combos = [(r, o) for o in range(3) for r in range(2)]
    for c, (r, o) in enumerate(combos):
        e(f"v_pk_fma_f32 v[{80+2*c}:{81+2*c}], v[{70+2*o}:{71+2*o}], v[{232+2*r}:{233+2*r}], v[{236+2*r}:{237+2*r}] op_sel_hi:[0,1,1]")
    for c in range(6):
        e(f"v_pk_mul_f32 v[{92+2*c}:{93+2*c}], v[{80+2*c}:{81+2*c}], v[{80+2*c}:{81+2*c}]")
    for c in range(6):
        e(f"v_pk_fma_f32 v[{92+2*c}:{93+2*c}], v[{92+2*c}:{93+2*c}], v[66:67], v[64:65] op_sel_hi:[1,0,0]")
    for c in range(6):
        e(f"v_pk_mul_f32 v[{92+2*c}:{93+2*c}], v[{92+2*c}:{93+2*c}], v[{80+2*c}:{81+2*c}]")
    for c in range(12):
        e(f"v_exp_f32 v{92+c}, v{92+c}")
    for c in range(6):
        e(f"v_pk_add_f32 v[{92+2*c}:{93+2*c}], v[{92+2*c}:{93+2*c}], 1.0 op_sel_hi:[1,0]")
    for c in range(12):
        e(f"v_rcp_f32 v{92+c}, v{92+c}")
    for c in range(6):
        e(f"v_pk_mul_f32 v[{80+2*c}:{81+2*c}], v[{80+2*c}:{81+2*c}], v[{92+2*c}:{93+2*c}]")
    for o in range(3):
        e(f"v_pk_mul_f32 v[{104+2*o}:{105+2*o}], v[{80+4*o}:{81+4*o}], v[240:241]")
    for o in range(3):
        e(f"v_pk_fma_f32 v[{104+2*o}:{105+2*o}], v[{82+4*o}:{83+4*o}], v[242:243], v[{104+2*o}:{105+2*o}]")
    e("v_add_f32 v110, v104, v105\nv_add_f32 v111, v106, v107\nv_add_f32 v112, v108, v109")
    dpp_reduce([110, 111, 112])
    e(f"""
    s_mov_b32 exec_lo, 0
    s_mov_b32 exec_hi, 0x80000000
    ds_write_b128 v69, v[110:113]
    s_mov_b64 exec, -1
    v_cmp_gt_u32 vcc, 640, v8
    v_lshlrev_b32 v8, 1, v8
    s_waitcnt lgkmcnt(0)
    s_barrier
    s_cmp_eq_u32 s{S_W}, 0
    s_cbranch_scc0 L_fin
    s_and_b64 vcc, vcc, 7
    s_and_saveexec_b64 s[64:65], vcc
    s_cbranch_execz L_fin0
    """)
    for w in range(8):
        e(f"ds_read_b32 v{40+w}, v6 offset:{16*w}")
    e(f"""
    ds_read_b32 v48, v7
    s_waitcnt lgkmcnt(0)
    v_add_f32 v40, v40, v41
    v_add_f32 v42, v42, v43
    v_add_f32 v44, v44, v45
    v_add_f32 v46, v46, v47
    v_add_f32 v48, v48, v9
    v_add_f32 v40, v40, v42
    v_add_f32 v44, v44, v46
    v_add_f32 v40, v40, v48
    v_add_f32 v40, v40, v44
    v_cvt_pk_bf16_f32 v40, v40, v40
    global_store_short v8, v40, s[{P_OUT}:{P_OUT+1}]
    """)
    e.label("L_fin0")
    e("s_mov_b64 exec, s[64:65]")
    e.label("L_fin")
    stamp(13)
    e(f"""
    s_cmp_eq_u32 s2, 0
    s_cbranch_scc0 L_noepoch
    s_cmp_eq_u32 s{S_W}, 0
    s_cbranch_scc0 L_noepoch
    v_mov_b32 v6, 0
    v_mov_b32 v7, s{S_TAG}
    s_mov_b64 exec, 1
    global_store_dword v6, v7, {WS} sc1
    s_mov_b64 exec, -1
    """)
    e.label("L_noepoch")
    if cfg.stamps:
        e(f"""
        s_waitcnt lgkmcnt(0)
        s_lshl_b32 s3, s2, 3
        s_add_u32 s3, s3, s{S_W}
        s_lshl_b32 s3, s3, 6
        s_add_u32 s3, s3, {WS_DBG}
        v_mov_b32 v6, s3
        s_mov_b64 exec, 1
        """)
        for q in range(4):
            for k in range(4):
                e(f"v_mov_b32 v{8+k}, s{S_STAMP+2*min(4*q+k,14)}")
            e(f"global_store_dwordx4 v6, v[8:11], {WS} offset:{16*q}")
            e.nop(2)
        e("s_mov_b64 exec, -1")
    e.label("L_exit")
    e("s_endpgm")
    e.label("L_fail")
    if cfg.stamps: e("s_mov_b64 exec, -1\ns_branch L_noepoch")
    e("s_endpgm")
    e.label("L_end")
    return e

def render(cfg):
    e = gen(cfg)
    body = e.text()
    hdr = open("cdna_kernels/" + NAME[:-7] + ".s.ref").read().split("; Override launch geometry")[0]
    out = hdr + f"; @launch grid=(256,1,1) block=(512,1,1) lds={LDS_BYTES}\n"
    out += f""".amdgcn_target "amdgcn-amd-amdhsa--gfx950"
.text
.globl {NAME}
.p2align 8
.type {NAME},@function
{NAME}:
{body}.section .rodata,"a"
.p2align 6
.amdhsa_kernel {NAME}
  .amdhsa_next_free_vgpr 256
  .amdhsa_next_free_sgpr 102
  .amdhsa_accum_offset 256
  .amdhsa_group_segment_fixed_size 0
  .amdhsa_kernarg_size 112
  .amdhsa_user_sgpr_count 2
  .amdhsa_user_sgpr_kernarg_segment_ptr 1
  .amdhsa_system_sgpr_workgroup_id_x 1
.end_amdhsa_kernel
"""
    return out, body

if __name__ == "__main__":
    cfg = Cfg()
    outp = sys.argv[1] if len(sys.argv) > 1 else "cdna_kernels/" + NAME[:-7] + ".s"
    for a in sys.argv[2:]:
        k, v = a.split("=")
        setattr(cfg, k, int(v))
    out, body = render(cfg)
    probs = check_hazards(body)
    for p in probs: print("HAZARD", p)
    open(outp, "w").write(out)
    print("wrote", outp, len(out), "bytes;", len(body.splitlines()), "lines")
```

```python
import re

class Emit:
    def __init__(self):
        self.lines = []
    def __call__(self, s):
        for ln in s.strip("\n").split("\n"):
            self.lines.append("    " + ln.strip() if not ln.strip().endswith(":") else ln.strip())
    def label(self, l):
        self.lines.append(l + ":")
    def comment(self, c):
        self.lines.append("    ; " + c)
    def nop(self, n):
        while n > 0:
            k = min(n, 16)
            self.lines.append(f"    s_nop {k-1}")
            n -= k
    def text(self):
        return "\n".join(self.lines) + "\n"

def vr(base, n=1):
    return f"v{base}" if n == 1 else f"v[{base}:{base+n-1}]"
def sr(base, n=1):
    return f"s{base}" if n == 1 else f"s[{base}:{base+n-1}]"

REG = re.compile(r"\b([vsa])(\d+)\b|\b([vsa])\[(\d+):(\d+)\]")
def regs_of(tok):
    out = set()
    for m in REG.finditer(tok):
        if m.group(1):
            out.add((m.group(1), int(m.group(2))))
        else:
            for i in range(int(m.group(4)), int(m.group(5)) + 1):
                out.add((m.group(3), i))
    if re.search(r"\bvcc\b", tok): out.add(("x", "vcc"))
    if re.search(r"\bexec\b", tok): out.add(("x", "exec"))
    if re.search(r"\bm0\b", tok): out.add(("x", "m0"))
    return out

TRANS = ("v_exp_f32", "v_log_f32", "v_rcp_f32", "v_rsq_f32", "v_sqrt_f32", "v_sin_f32", "v_cos_f32")
def parse(line):
    s = line.split(";")[0].strip()
    if not s or s.endswith(":") or s.startswith("."):
        return None
    parts = s.split(None, 1)
    op = parts[0]
    args = parts[1] if len(parts) > 1 else ""
    ops = [a.strip() for a in args.split(",")]
    return op, ops, s

def classify(op, ops, s):
    d = dict(op=op, defs=set(), uses=set(), kind="other", s=s)
    allregs = [regs_of(o.split(" ")[0] if not o.startswith(("v[", "s[", "a[")) else o.split(" ")[0]) for o in ops]
    if op.startswith("v_mfma"):
        d["kind"] = "mfma"; d["defs"] = allregs[0]; d["A"] = allregs[1]; d["B"] = allregs[2]; d["C"] = allregs[3]
        d["uses"] = allregs[1] | allregs[2] | allregs[3]
    elif op.startswith("v_cmp"):
        d["kind"] = "valu"; d["defs"] = allregs[0]; d["uses"] = set().union(*allregs[1:])
        if op.startswith("v_cmpx"): d["defs"] |= {("x", "exec")}
    elif op.startswith(("v_readlane", "v_readfirstlane")):
        d["kind"] = "valu"; d["defs"] = allregs[0]; d["uses"] = set().union(*allregs[1:]); d["readlane"] = True
    elif op.startswith("v_permlane"):
        d["kind"] = "valu"; d["defs"] = allregs[0] | allregs[1]; d["uses"] = allregs[0] | allregs[1]; d["permlane"] = True
    elif op.startswith("v_"):
        d["kind"] = "valu"; d["defs"] = set(allregs[0]); d["uses"] = set().union(*allregs[1:]) if len(allregs) > 1 else set()
        if op.startswith(("v_add_co", "v_addc_co", "v_sub_co")):
            d["defs"] |= allregs[1]
        if op.startswith(("v_fmac", "v_dot2c", "v_pk_fmac")) or "_dpp" in op:
            d["uses"] |= allregs[0]
        if op.startswith("v_cndmask") and len(ops) == 3: d["uses"] |= {("x", "vcc")}
        if "_dpp" in op: d["dpp"] = True; d["dppsrc"] = allregs[1]
        if op.split("_e32")[0].split("_e64")[0] in TRANS: d["trans"] = True
    elif op.startswith(("global_load", "buffer_load", "ds_read", "ds_bpermute", "ds_swizzle")):
        d["kind"] = "vmem" if not op.startswith("ds_") else "ds"
        if "lds" in s.split() or op.startswith("global_load_lds"):
            d["uses"] = set().union(*allregs) | {("x", "m0")}; d["ldsdma"] = True
        else:
            d["defs"] = allregs[0]; d["uses"] = set().union(*allregs[1:])
    elif op.startswith(("global_store", "buffer_store", "ds_write", "ds_add", "global_atomic")):
        d["kind"] = "vmem" if not op.startswith("ds_") else "ds"
        d["uses"] = set().union(*allregs)
        if op.endswith(("x4", "x3")) and not op.startswith("ds_"):
            d["widestore"] = allregs[0] if op.startswith("buffer") else allregs[1]
    elif op.startswith("s_"):
        d["kind"] = "salu"
        if op in ("s_nop",):
            d["nop"] = int(ops[0]) + 1
        elif op.startswith(("s_cmp", "s_cbranch", "s_branch", "s_waitcnt", "s_barrier", "s_sleep", "s_endpgm", "s_setprio")):
            d["uses"] = set().union(*allregs) if allregs else set()
        else:
            d["defs"] = allregs[0] if allregs else set(); d["uses"] = set().union(*allregs[1:]) if len(allregs) > 1 else set()
    return d

def check_hazards(text):
    ins = []
    for ln, line in enumerate(text.split("\n"), 1):
        p = parse(line)
        if p is None:
            continue
        d = classify(*p); d["ln"] = ln
        ins.append(d)
    probs = []
    def need(i, j, n, why):
        ws = 0
        for k in range(i + 1, j):
            ws += ins[k].get("nop", 1)
        if ws < n:
            probs.append(f"line {ins[j]['ln']}: {why}: need {n} have {ws}: [{ins[i]['s']}] -> [{ins[j]['s']}]")
    for j, c in enumerate(ins):
        for i in range(j - 1, max(-1, j - 24), -1):
            p = ins[i]
            if p["op"].startswith(("s_branch", "s_endpgm")):
                break
            vdefs = {r for r in p["defs"] if r[0] in "va"}
            sdefs = {r for r in p["defs"] if r[0] == "s" or r == ("x", "vcc")}
            if p["kind"] == "valu":
                if c.get("dpp") and vdefs & c["dppsrc"]: need(i, j, 2, "VALU->DPP")
                if c.get("permlane") and vdefs & c["uses"]: need(i, j, 2, "VALU->permlane")
                if c.get("readlane") and vdefs & c["uses"]: need(i, j, 1, "VALU->readlane")
                if c["kind"] == "mfma" and vdefs & c["uses"]: need(i, j, 2, "VALU->MFMA")
                if p.get("trans") and c["kind"] in ("valu", "mfma") and not c.get("trans") and vdefs & c["uses"]: need(i, j, 1, "trans->VALU")
                if p.get("trans") and c.get("trans") and vdefs & c["uses"]: need(i, j, 1, "trans->trans(safe)")
                if sdefs & c["uses"]:
                    if c["kind"] == "valu": need(i, j, 2 if not c.get("readlane") else 4, "VALU sgpr->VALU")
                    if c["kind"] == "vmem": need(i, j, 5, "VALU sgpr->VMEM")
                if ("x", "exec") in p["defs"] and c.get("dpp"): need(i, j, 5, "VALU exec->DPP")
            if p["kind"] == "mfma":
                if c["kind"] == "mfma":
                    if p["defs"] & (c["A"] | c["B"]): need(i, j, 8, "MFMA D->MFMA AB")
                    if p["defs"] & c["C"] and p["defs"] != c["C"]: need(i, j, 6, "MFMA D->C partial")
                elif p["defs"] & (c["uses"] | c["defs"]): need(i, j, 8, "MFMA D->use")
                if c["kind"] == "valu" and (p["C"] & c["defs"]): need(i, j, 3, "MFMA C WAR")
            if p["kind"] == "salu" and ("x", "m0") in p["defs"] and c.get("ldsdma"): need(i, j, 1, "m0->ldsdma")
            if p.get("widestore") and c["kind"] == "valu" and (p["widestore"] & c["defs"]): need(i, j, 2, "wide store WAR")
    return probs

def check_kernarg_race(text):
    probs = []; pending = True
    lines = text.split("\n")
    def scan(start):
        for ln in range(start, len(lines)):
            p = parse(lines[ln])
            if p is None: continue
            op, ops, s = p
            if op == "s_waitcnt" and "lgkmcnt(0)" in s: return
            if op.startswith("s_load"): continue
            d = classify(op, ops, s)
            for r in d["defs"]:
                if r[0] == "s" and 8 <= r[1] <= 35: probs.append(f"line {ln+1}: writes s{r[1]} while kernarg load in flight: {s}")
    scan(0)
    for i, l in enumerate(lines):
        if l.strip() == "L_B0:": scan(i)
    return probs
```

```python
import sys, struct
from asmlib import Emit, check_hazards, check_kernarg_race

NAME = "sequential_preLN__compressed_kv_cla__mixer_token_mlp__decode_kernel"

WS_Q1, WS_Q1F, WS_QA, WS_CTX, WS_OP, WS_CTXF, WS_ST, WS_PART, WS_DBG = 0x10000, 0x20000, 0x50000, 0x60000, 0x70000, 0x90000, 0xC0000, 0x100000, 0x400000
L_CKV = 0
L_WO = 0
L_WQ = 32768
L_WUK = 73728
L_QAS = 131072
QAS_STRIDE = 1056
L_PEX = L_QAS + 8 * QAS_STRIDE
L_MX = L_PEX + 4096
L_LNS = 143872
L_QP = 145152
QP_STRIDE = 288
L_CTXS = 146304
L_BNC = 146560
L_ORED = 147584
L_HS = 149632
L_ST7 = 152192
L_YRED = 152256
LDS_BYTES = 152384

S_W, S_X, S_I, S_ISB = 4, 5, 6, 7
P_X, P_CKV, P_WQ, P_WUK, P_WUV, P_WO, P_W1, P_B1, P_W2, P_B2, P_OUT, P_DBG, P_WS = 8, 10, 12, 14, 16, 18, 22, 24, 26, 28, 30, 32, 34
S_TAG, S_H, S_J, S_CH = 36, 37, 38, 39
SRD_0, SRD_A, SRD_WO, SRD_W1, SRD_B1, SRD_W2 = 40, 44, 48, 52, 56, 60
S_SPIN = 100
S_STAMP = 70

def F32(x): return "0x%08x" % struct.unpack("<I", struct.pack("<f", x))[0]
WS = f"s[{P_WS}:{P_WS+1}]"

class Cfg:
    stamps = 0
    nt = 1
    spin = 1 << 17
    h3sleep = 24
    fast1 = 1
    fast4 = 1
    codepf = 8
    bdelay = 0
    exp_nob = 0
    outmap = 1
    noepoch = 0
    s7stamps = 0
    touch = 0
    uknt = 1
    tsleep = 0
    planeorder = 1
    hperm = 0
    h3psleep = 0
    b5sleep = 36
    f5sleep = 12
    n5sleep = 36
    ckvnt = 1
    ukbar = 1
    bsleep = 0
    uvpf = 1
    h5sleep = 0
    h4sleep = 0
    h2sleep = 0
    exp_nowuv = 0

def gen(cfg):
    e = Emit()
    NT = " nt" if cfg.nt else ""
    def stamp(k):
        if cfg.stamps:
            e(f"s_memrealtime s[{S_STAMP+2*k}:{S_STAMP+2*k+1}]")
    def dpp_reduce(regs, op="v_add_f32"):
        steps = ["row_shr:1 row_mask:0xf bank_mask:0xf bound_ctrl:0", "row_shr:2 row_mask:0xf bank_mask:0xf bound_ctrl:0",
                 "row_shr:4 row_mask:0xf bank_mask:0xf bound_ctrl:0", "row_shr:8 row_mask:0xf bank_mask:0xf bound_ctrl:0",
                 "row_bcast:15 row_mask:0xa bank_mask:0xf", "row_bcast:31 row_mask:0xc bank_mask:0xf"]
        pad = max(0, 2 - (len(regs) - 1))
        e.nop(2)
        for k, st in enumerate(steps):
            for r in regs:
                e(f"{op}_dpp v{r}, v{r}, v{r} {st}")
            if k < len(steps) - 1 and pad: e.nop(pad)
    def tagchk(acc, tags):
        for k, t in enumerate(tags):
            if k == 0:
                e(f"v_xor_b32 v{acc}, s{S_TAG}, v{t}")
            else:
                e(f"v_bitop3_b32 v{acc}, v{acc}, v{t}, s{S_TAG} bitop3:0xf6")
    def spin_back(lbl_loop):
        e(f"s_sub_u32 s{S_SPIN}, s{S_SPIN}, 1")
        e(f"s_cbranch_scc0 {lbl_loop}")
        e("s_branch L_fail")
    def poll_tail(lbl_loop, lbl_done, acc, sleep=0):
        e(f"v_cmp_ne_u32 vcc, 0, v{acc}")
        e(f"s_cbranch_vccz {lbl_done}")
        if sleep: e(f"s_sleep {sleep}")
        spin_back(lbl_loop)
        e.label(lbl_done)
    def tr_common():
        e("""
        v_bfe_u32 v62, v1, 2, 2
        v_bfe_u32 v63, v1, 1, 1
        v_and_b32 v59, 1, v1
        v_lshlrev_b32 v59, 3, v59
        """)
    def tr256_addr(dst, tmp):
        e(f"""
        v_and_b32 v{dst}, 1, v2
        v_lshl_add_u32 v{dst}, v{dst}, 2, v62
        v_lshlrev_b32 v{dst}, 1, v{dst}
        s_lshl_b32 s3, s{S_W}, 1
        v_add_u32 v{tmp}, s3, v63
        v_xor_b32 v{dst}, v{dst}, v{tmp}
        v_lshl_add_u32 v{dst}, v{dst}, 4, v59
        v_lshl_add_u32 v{tmp}, v2, 3, v62
        v_lshl_add_u32 v{dst}, v{tmp}, 8, v{dst}
        """)
    def mk_tag():
        e(f"s_mul_i32 s{S_TAG}, s{S_TAG}, 1664525\ns_add_u32 s{S_TAG}, s{S_TAG}, 1013904223")
    def s7_loads():
        e(f"""
        s_mov_b32 s{SRD_W1}, s{P_W1}
        s_mov_b32 s{SRD_W1+1}, s{P_W1+1}
        s_mov_b32 s{SRD_W1+2}, 3456
        s_mov_b32 s{SRD_W1+3}, 0x20000
        s_mov_b32 s{SRD_B1}, s{P_B1}
        s_mov_b32 s{SRD_B1+1}, s{P_B1+1}
        s_mov_b32 s{SRD_B1+2}, 3456
        s_mov_b32 s{SRD_B1+3}, 0x20000
        s_mov_b32 s{SRD_W2}, s{P_W2}
        s_mov_b32 s{SRD_W2+1}, s{P_W2+1}
        s_mov_b32 s{SRD_W2+2}, 3456
        s_mov_b32 s{SRD_W2+3}, 0x20000
        s_lshl_b32 s3, s{S_W}, 8
        v_lshl_add_u32 v4, v1, 2, s3
        buffer_load_dword v224, v4, s[{SRD_W1}:{SRD_W1+3}], 0 offen
        buffer_load_dword v225, v4, s[{SRD_W1}:{SRD_W1+3}], 0 offen offset:2048
        buffer_load_dword v226, v4, s[{SRD_B1}:{SRD_B1+3}], 0 offen
        buffer_load_dword v227, v4, s[{SRD_B1}:{SRD_B1+3}], 0 offen offset:2048
        buffer_load_dword v228, v4, s[{SRD_W2}:{SRD_W2+3}], 0 offen
        buffer_load_dword v229, v4, s[{SRD_W2}:{SRD_W2+3}], 0 offen offset:2048
        v_mov_b32 v4, 0
        global_load_ushort v231, v4, s[{P_B2}:{P_B2+1}]
        s_min_u32 s3, s{S_W}, 4
        s_lshl_b32 s3, s3, 8
        v_and_b32 v4, 31, v1
        v_lshlrev_b32 v4, 3, v4
        v_lshrrev_b32 v230, 5, v1
        v_lshl_add_u32 v4, v230, 2, v4
        v_add_u32 v4, s3, v4
        global_load_dword v230, v4, s[{P_X}:{P_X+1}]
        """)
    OUTIDX = ("s_lshr_b32 s101, s2, 3\ns_mul_i32 s101, s101, 3\ns_mul_i32 s3, s5, 80\ns_add_u32 s101, s101, s3" if cfg.outmap else "s_mul_i32 s101, s2, 3")
    def s7_prep():
        for k, (raw, dst) in enumerate([(224, 232), (225, 234), (226, 236), (227, 238), (228, 240), (229, 242)]):
            e(f"v_lshlrev_b32 v{dst}, 16, v{raw}\nv_and_b32 v{dst+1}, 0xffff0000, v{raw}")
        e(f"""
        v_lshrrev_b32 v57, 5, v1
        v_mul_u32_u24 v244, 2560, v57
        v_and_b32 v58, 31, v1
        v_lshl_add_u32 v244, v58, 4, v244
        s_lshl_b32 s3, s{S_W}, 9
        s_add_u32 s64, s3, {WS_OP}
        v_add_u32 v244, s64, v244
        v_add_u32 v245, 5120, v244
        v_add_u32 v246, 10240, v244
        v_add_u32 v247, 15360, v244
        s_add_u32 s3, s3, {L_HS}
        v_lshlrev_b32 v248, 4, v58
        v_lshl_add_u32 v248, v57, 3, v248
        v_add_u32 v248, s3, v248
        v_lshlrev_b32 v58, 16, v230
        v_and_b32 v59, 0xffff0000, v230
        v_mov_b32 v60, {F32(1.0/640)}
        v_mov_b32 v61, {F32(1.0 + 1e-5)}
        v_mov_b32 v65, {F32(1e-10)}
        v_mov_b32 v64, {F32(-2.0*0.7978845608028654*1.4426950408889634)}
        v_mov_b32 v66, {F32(-2.0*0.7978845608028654*1.4426950408889634*0.044715)}
        v_mov_b32 v62, {L_ST7}
        {OUTIDX}
        s_lshl_b32 s3, s101, 2
        s_add_u32 s3, s3, {L_HS}
        v_mov_b32 v63, s3
        s_lshl_b32 s3, s{S_W}, 3
        s_add_u32 s3, s3, {L_ST7}
        v_mov_b32 v68, s3
        s_lshl_b32 s3, s{S_W}, 4
        s_add_u32 s3, s3, {L_YRED}
        v_mov_b32 v69, s3
        v_mov_b32 v113, 0
        v_add_u32 v8, s101, v1
        v_lshlrev_b32 v6, 2, v1
        v_add_u32 v6, {L_YRED}, v6
        v_lshlrev_b32 v7, 2, v8
        v_add_u32 v7, {L_HS}, v7
        v_lshlrev_b32 v9, 16, v231
        """)

    e(f"""
    s_cmp_ge_u32 s2, 256
    s_cbranch_scc1 L_exit
    s_load_dwordx16 s[8:23], s[0:1], 0
    s_load_dwordx4 s[32:35], s[0:1], 96
    s_load_dwordx8 s[24:31], s[0:1], 64
    """)
    if cfg.codepf:
        e(f"""
        s_cmp_lt_u32 s2, {cfg.codepf}
        s_cbranch_scc0 L_nopf
        s_getpc_b64 s[64:65]
        """)
        e.label("L_pc")
        e(f"""
        s_and_b32 s64, s64, 0xffffff00
        v_lshlrev_b32 v203, 7, v0
        v_min_u32 v203, L_end-L_pc-4, v203
        v_mov_b32 v201, s65
        v_add_co_u32 v200, vcc, s64, v203
        s_nop 1
        v_addc_co_u32 v201, vcc, 0, v201, vcc
        global_load_dword v202, v[200:201], off
        """)
        e.label("L_nopf")
    if cfg.stamps:
        e(f"s_memrealtime s[{S_STAMP}:{S_STAMP+1}]")
        for k in range(1, 15): e(f"s_mov_b32 s{S_STAMP+2*k}, 0")
    e(f"""
    v_and_b32 v1, 63, v0
    v_lshrrev_b32 v4, 6, v0
    v_lshrrev_b32 v2, 4, v1
    v_readfirstlane_b32 s{S_W}, v4
    v_and_b32 v3, 15, v1
    s_and_b32 s{S_X}, s2, 7
    s_bfe_u32 s{S_I}, s2, 0x40003
    s_lshr_b32 s{S_H}, s{S_I}, 2
    s_xor_b32 s{S_H}, s{S_H}, {cfg.hperm}
    s_lshl_b32 s3, s{S_X}, 2
    s_add_u32 s{S_H}, s{S_H}, s3
    s_and_b32 s{S_J}, s{S_I}, 3
    s_mov_b32 s{SRD_0+3}, 0x20000
    s_mov_b32 s{S_SPIN}, {cfg.spin}
    s_cmp_ge_u32 s2, 128
    s_cbranch_scc1 L_B0
    """)
    e(f"""
    s_lshl_b32 s66, s{S_W}, 2
    s_and_b32 s66, s66, 8
    s_mul_i32 s64, s{S_J}, 40
    s_add_u32 s64, s64, s{S_W}
    s_lshl_b32 s64, s64, 15
    s_lshl_b32 s65, s{S_H}, 8
    s_add_u32 s64, s64, s65
    s_lshl_b32 s67, s{S_W}, 10
    s_add_u32 s67, s67, {L_WQ}
    s_mov_b32 s{SRD_0+2}, 5242880
    v_lshlrev_b32 v7, 1, v2
    v_xor_b32 v7, v7, v3
    v_xor_b32 v7, s66, v7
    v_lshlrev_b32 v7, 4, v7
    v_lshl_add_u32 v7, v2, 13, v7
    v_lshlrev_b32 v6, 2, v1
    s_cmp_eq_u32 s{S_W}, 0
    s_waitcnt lgkmcnt(0)
    s_mov_b32 s{SRD_0}, s{P_WQ}
    s_mov_b32 s{SRD_0+1}, s{P_WQ+1}
    s_cbranch_scc0 L_f_nox
    """)
    for k in range(5):
        e(f"global_load_dword v{8+k}, v6, s[{P_X}:{P_X+1}] offset:{256*k}")
    e.label("L_f_nox")
    for ii in range(5):
        e(f"""
        s_mov_b32 m0, s67
        s_add_u32 s67, s67, 8192
        buffer_load_dwordx4 v7, s[{SRD_0}:{SRD_0+3}], s64 offen{NT} lds
        s_add_u32 s64, s64, {8*4*8192}
        """)
    e(f"""
    s_load_dword s{S_TAG}, {WS}, 0
    s_branch L_F1
    """)
    e.label("L_B0")
    if cfg.exp_nob: e("s_endpgm")
    e(f"""
    s_lshl_b32 s3, s{S_W}, 1
    v_xor_b32 v7, s3, v1
    v_lshlrev_b32 v7, 4, v7
    s_lshl_b32 s{S_CH}, s{S_X}, 2
    s_add_u32 s{S_CH}, s{S_CH}, s{S_J}
    s_lshl_b32 s66, s{S_CH}, 17
    s_and_b32 s67, s{S_I}, 12
    s_lshl_b32 s67, s67, 13
    s_lshl_b32 s65, s{S_W}, 10
    s_add_u32 s67, s67, s65
    s_mov_b32 s{SRD_0+2}, 4194304
    s_mov_b32 s68, 15
    v_bfe_u32 v4, v1, 1, 4
    s_lshl_b32 s3, s{S_J}, 7
    s_lshl_b32 s64, s{S_W}, 4
    s_add_u32 s3, s3, s64
    v_add_u32 v4, s3, v4
    v_lshlrev_b32 v4, 13, v4
    v_and_b32 v5, 1, v1
    v_lshl_add_u32 v4, v5, 7, v4
    s_lshl_b32 s3, s{S_H}, 8
    v_add_u32 v4, s3, v4
    s_waitcnt lgkmcnt(0)
    s_mov_b32 s{SRD_0}, s{P_CKV}
    s_mov_b32 s{SRD_0+1}, s{P_CKV+1}
    """)
    if cfg.tsleep: e(f"s_sleep {cfg.tsleep}")
    if cfg.touch: e(f"""
    s_mov_b64 exec, 0xffffffff
    global_load_dword v200, v4, s[{P_WUK}:{P_WUK+1}]{" nt" if cfg.uknt else ""}
    s_mov_b64 exec, -1
    """)
    if cfg.bdelay: e(f"s_load_dword s{S_TAG}, {WS}, 0\ns_waitcnt lgkmcnt(0)")
    if cfg.bsleep: e(f"s_sleep {cfg.bsleep}")
    e.label("L_b_dma")
    e(f"""
    s_mov_b32 m0, s67
    s_add_u32 s69, s67, s66
    buffer_load_dwordx4 v7, s[{SRD_0}:{SRD_0+3}], s69 offen{" nt" if cfg.ckvnt else ""} lds
    s_add_u32 s67, s67, 8192
    s_and_b32 s67, s67, 0x1ffff
    s_sub_u32 s68, s68, 1
    s_cbranch_scc0 L_b_dma
    """)
    if not cfg.bdelay: e(f"s_load_dword s{S_TAG}, {WS}, 0")
    e("s_branch L_B1")

    e.label("L_F1")
    e(f"s_mov_b32 s{S_ISB}, 0")
    stamp(1)
    tr_common()
    e(f"""
    v_and_b32 v41, 1, v2
    v_lshl_add_u32 v41, v41, 2, v62
    v_lshlrev_b32 v41, 1, v41
    s_and_b32 s65, s{S_W}, 3
    s_lshl_b32 s3, s65, 2
    v_add_u32 v42, s3, v63
    v_xor_b32 v41, v41, v42
    v_lshl_add_u32 v41, v41, 4, v59
    v_lshl_add_u32 v42, v2, 3, v62
    v_lshl_add_u32 v41, v42, 8, v41
    v_add_u32 v41, {L_WQ}, v41
    v_xor_b32 v40, 32, v41
    s_mul_i32 s3, s{S_J}, 320
    s_add_u32 s3, s3, {L_LNS}
    v_lshl_add_u32 v42, v2, 4, s3
    s_lshl_b32 s3, s{S_H}, 2
    s_add_u32 s3, s3, s{S_J}
    s_lshl_b32 s3, s3, 9
    s_lshl_b32 s64, s65, 7
    s_add_u32 s3, s3, s64
    s_add_u32 s65, s3, {WS_Q1}
    v_and_b32 v43, 1, v1
    v_lshlrev_b32 v43, 6, v43
    v_lshl_add_u32 v43, v2, 4, v43
    v_add_u32 v43, s65, v43
    v_add_u32 v44, {WS_Q1F-WS_Q1}, v43
    s_lshl_b32 s64, s{S_W}, 6
    s_lshl_b32 s3, s{S_H}, 2
    s_and_b32 s65, s{S_W}, 3
    s_add_u32 s3, s3, s65
    s_lshl_b32 s3, s3, 9
    s_add_u32 s3, s3, {WS_Q1}
    v_lshl_add_u32 v45, v1, 3, s3
    v_add_u32 v49, {WS_Q1F-WS_Q1}, v45
    s_mul_i32 s3, s65, {QP_STRIDE}
    s_add_u32 s3, s3, {L_QP}
    v_lshl_add_u32 v46, v1, 2, s3
    v_and_b32 v47, 3, v3
    v_mul_u32_u24 v47, {QP_STRIDE}, v47
    v_lshl_add_u32 v47, v2, 4, v47
    v_add_u32 v47, {L_QP}, v47
    s_and_b32 s66, s{S_W}, 3
    s_lshl_b32 s3, s{S_H}, 11
    s_lshl_b32 s65, s{S_J}, 9
    s_add_u32 s3, s3, s65
    s_lshl_b32 s64, s66, 7
    s_add_u32 s3, s3, s64
    s_add_u32 s65, s3, {WS_QA}
    v_and_b32 v48, 1, v1
    v_lshlrev_b32 v48, 6, v48
    v_lshl_add_u32 v48, v2, 4, v48
    v_add_u32 v48, s65, v48
    s_lshl_b32 s3, s66, 5
    v_add_u32 v24, s3, v3
    v_lshlrev_b32 v24, 8, v24
    v_and_b32 v25, 7, v3
    v_lshlrev_b32 v25, 1, v25
    v_xor_b32 v25, v25, v2
    v_lshl_add_u32 v24, v25, 4, v24
    v_add_u32 v24, {L_WUK}, v24
    v_xor_b32 v25, 64, v24
    v_xor_b32 v26, 128, v24
    v_xor_b32 v27, 192, v24
    s_cmp_eq_u32 s{S_W}, 0
    s_cbranch_scc0 L_f_noln
    """)
    e("s_waitcnt vmcnt(5)")
    stamp(2)
    for k in range(5):
        e(f"v_lshlrev_b32 v{64+2*k}, 16, v{8+k}")
        e(f"v_and_b32 v{65+2*k}, 0xffff0000, v{8+k}")
    e(f"""
    v_pk_add_f32 v[74:75], v[64:65], v[66:67]
    v_pk_add_f32 v[76:77], v[68:69], v[70:71]
    v_pk_add_f32 v[74:75], v[74:75], v[72:73]
    v_pk_add_f32 v[74:75], v[74:75], v[76:77]
    v_mov_b32 v78, {F32(-1.0/640)}
    v_add_f32 v74, v74, v75
    """)
    dpp_reduce([74])
    e.nop(1)
    e("v_readlane_b32 s20, v74, 63")
    e(f"v_mov_b32 v80, {F32(1.0/640)}\nv_mov_b32 v81, {F32(1e-5)}")
    e("v_mul_f32 v78, s20, v78")
    for k in range(5):
        e(f"v_pk_add_f32 v[{64+2*k}:{65+2*k}], v[{64+2*k}:{65+2*k}], v[78:79] op_sel_hi:[1,0]")
    e("v_pk_mul_f32 v[74:75], v[64:65], v[64:65]")
    for k in range(1, 5):
        e(f"v_pk_fma_f32 v[74:75], v[{64+2*k}:{65+2*k}], v[{64+2*k}:{65+2*k}], v[74:75]")
    e("v_add_f32 v74, v74, v75")
    dpp_reduce([74])
    e.nop(1)
    e("v_readlane_b32 s21, v74, 63")
    e(f"v_mov_b32 v82, {F32(128**-0.5 * 1.4426950408889634)}")
    e(f"v_add_u32 v6, {L_LNS}, v6")
    e("v_fma_f32 v74, s21, v80, v81")
    e("v_rsq_f32 v74, v74")
    e.nop(1)
    e("v_mul_f32 v74, v74, v82")
    for k in range(5):
        e(f"v_pk_mul_f32 v[{64+2*k}:{65+2*k}], v[{64+2*k}:{65+2*k}], v[74:75] op_sel_hi:[1,0]")
    for k in range(5):
        e(f"v_cvt_pk_bf16_f32 v{8+k}, v{64+2*k}, v{65+2*k}")
        e(f"ds_write_b32 v6, v{8+k} offset:{256*k}")
    e.label("L_f_noln")
    e("s_waitcnt vmcnt(0) lgkmcnt(0)")
    mk_tag()
    e("s_barrier")
    stamp(3)
    e(f"v_mov_b32 v105, s{S_TAG}\nv_mov_b32 v107, s{S_TAG}")
    e(f"s_cmp_lt_u32 s{S_W}, 4\ns_cbranch_scc1 L_f_uk")
    for ks in range(5):
        e(f"ds_read_b128 v[{84+4*ks}:{87+4*ks}], v42 offset:{64*ks}")
        e(f"ds_read_b64_tr_b16 v[{64+4*ks}:{65+4*ks}], v41 offset:{8192*ks}")
        e(f"ds_read_b64_tr_b16 v[{66+4*ks}:{67+4*ks}], v41 offset:{8192*ks+1024}")
        e(f"ds_read_b64_tr_b16 v[{112+4*ks}:{113+4*ks}], v40 offset:{8192*ks}")
        e(f"ds_read_b64_tr_b16 v[{114+4*ks}:{115+4*ks}], v40 offset:{8192*ks+1024}")
    e("s_mov_b32 s64, 0xaaaaaaaa\ns_mov_b32 s65, 0xaaaaaaaa")
    for ks in range(5):
        e(f"s_waitcnt lgkmcnt({min(15, 20-5*ks)})")
        c = "0" if ks == 0 else "v[108:111]"
        e(f"v_mfma_f32_16x16x32_bf16 v[108:111], v[{64+4*ks}:{67+4*ks}], v[{84+4*ks}:{87+4*ks}], {c}")
        c = "0" if ks == 0 else "v[132:135]"
        e(f"v_mfma_f32_16x16x32_bf16 v[132:135], v[{112+4*ks}:{115+4*ks}], v[{84+4*ks}:{87+4*ks}], {c}")
    e("s_mov_b32 exec_lo, 0x00030003\ns_mov_b32 exec_hi, 0x00030003")
    e.nop(6)
    for r in range(4):
        e(f"v_cndmask_b32 v{108+r}, v{108+r}, v{132+r}, s[64:65]")
    e("""
    v_cvt_pk_bf16_f32 v104, v108, v109
    v_cvt_pk_bf16_f32 v106, v110, v111
    """)
    if cfg.fast1: e(f"global_store_dwordx4 v44, v[104:107], {WS}")
    e(f"global_store_dwordx4 v43, v[104:107], {WS} sc1\ns_mov_b64 exec, -1")
    stamp(4)
    e("s_barrier\ns_branch L_h1_bar")
    e.label("L_f_uk")
    e(f"""
    s_mov_b32 s{SRD_A}, s{P_WUK}
    s_mov_b32 s{SRD_A+1}, s{P_WUK+1}
    s_mov_b32 s{SRD_A+2}, 4194304
    s_mov_b32 s{SRD_A+3}, 0x20000
    s_and_b32 s66, s{S_W}, 1
    s_lshl_b32 s66, s66, 3
    v_lshlrev_b32 v7, 1, v2
    v_xor_b32 v7, v7, v3
    v_xor_b32 v7, s66, v7
    v_lshlrev_b32 v7, 4, v7
    v_lshl_add_u32 v7, v2, 13, v7
    s_lshl_b32 s64, s{S_J}, 5
    s_add_u32 s64, s64, s{S_W}
    s_lshl_b32 s64, s64, 15
    s_lshl_b32 s65, s{S_H}, 8
    s_add_u32 s64, s64, s65
    s_lshl_b32 s67, s{S_W}, 10
    s_add_u32 s67, s67, {L_WUK}
    s_barrier
    """)
    for ii in range(8):
        e(f"""
        s_mov_b32 m0, s67
        s_add_u32 s67, s67, 4096
        buffer_load_dwordx4 v7, s[{SRD_A}:{SRD_A+3}], s64 offen{NT} lds
        s_add_u32 s64, s64, {4*4*8192}
        """)
    e.label("L_h1")
    if cfg.fast1:
        e(f"global_load_dwordx2 v[66:67], v49, {WS} sc1")
        e(f"global_load_dwordx2 v[64:65], v45, {WS} sc1\ns_waitcnt vmcnt(0)")
        e(f"v_cmp_eq_u32 vcc, s{S_TAG}, v67")
        e.nop(2)
        e("v_cndmask_b32 v64, v64, v66, vcc\nv_cndmask_b32 v65, v65, v67, vcc")
    else:
        e(f"global_load_dwordx2 v[64:65], v45, {WS} sc1\ns_waitcnt vmcnt(0)")
    e(f"v_cmp_ne_u32 vcc, s{S_TAG}, v65")
    e(f"s_cbranch_vccz L_h1_done")
    spin_back("L_h1")
    e.label("L_h1_done")
    stamp(8)
    stamp(7)
    e("ds_write_b32 v46, v64")
    e.label("L_h1_bar")
    e("s_waitcnt lgkmcnt(0)\ns_barrier")
    stamp(5)
    e(f"s_cmp_lt_u32 s{S_W}, 4\ns_cbranch_scc1 L_f_nos2")
    for t in range(4):
        e(f"ds_read_b128 v[{64+4*t}:{67+4*t}], v47 offset:{64*t}")
        e(f"ds_read_b128 v[{80+4*t}:{83+4*t}], v{24+t}")
        e(f"ds_read_b128 v[{112+4*t}:{115+4*t}], v{24+t} offset:4096")
    e("s_mov_b32 s64, 0xaaaaaaaa\ns_mov_b32 s65, 0xaaaaaaaa")
    for t in range(4):
        e(f"s_waitcnt lgkmcnt({9-3*t})")
        c = "0" if t == 0 else "v[108:111]"
        e(f"v_mfma_f32_16x16x32_bf16 v[108:111], v[{80+4*t}:{83+4*t}], v[{64+4*t}:{67+4*t}], {c}")
        c = "0" if t == 0 else "v[132:135]"
        e(f"v_mfma_f32_16x16x32_bf16 v[132:135], v[{112+4*t}:{115+4*t}], v[{64+4*t}:{67+4*t}], {c}")
    e.nop(7)
    for st in ("row_ror:1", "row_ror:2"):
        for r in list(range(108, 112)) + list(range(132, 136)):
            e(f"v_add_f32_dpp v{r}, v{r}, v{r} {st} row_mask:0xf bank_mask:0xf")
    e("s_mov_b32 exec_lo, 0x00030003\ns_mov_b32 exec_hi, 0x00030003")
    for r in range(4):
        e(f"v_cndmask_b32 v{108+r}, v{108+r}, v{132+r}, s[64:65]")
    e("""
    v_cvt_pk_bf16_f32 v104, v108, v109
    v_cvt_pk_bf16_f32 v106, v110, v111
    """)
    e(f"global_store_dwordx4 v48, v[104:107], {WS} sc1\ns_mov_b64 exec, -1")
    stamp(6)
    e.label("L_f_nos2")
    e("s_barrier")
    if cfg.uvpf:
        e(f"""
        v_lshrrev_b32 v4, 1, v1
        s_lshl_b32 s3, s{S_J}, 7
        s_lshl_b32 s64, s{S_W}, 4
        s_add_u32 s3, s3, s64
        v_and_b32 v4, 15, v4
        v_add_u32 v4, s3, v4
        v_lshlrev_b32 v4, 13, v4
        v_and_b32 v5, 1, v1
        v_lshl_add_u32 v4, v5, 7, v4
        s_lshl_b32 s3, s{S_H}, 8
        v_add_u32 v4, s3, v4
        s_mov_b64 exec, 0xffffffff
        global_load_dword v5, v4, s[{P_WUV}:{P_WUV+1}]{NT}
        s_mov_b64 exec, -1
        """)
    e(f"s_cmp_lt_u32 s{S_I}, 10\ns_cbranch_scc1 L_s6")
    s7_loads()
    e("s_waitcnt vmcnt(0)")
    s7_prep()
    if cfg.n5sleep:
        e(f"""
        s_cmp_lt_u32 s{S_W}, 5
        s_cbranch_scc0 L_S7
        s_lshl_b32 s3, s{S_H}, 2
        s_add_u32 s3, s3, s{S_J}
        s_lshl_b32 s3, s3, 9
        s_add_u32 s3, s3, {WS_CTX}
        v_mov_b32 v40, s3
        """)
        e.label("L_sent")
        e(f"""
        global_load_dwordx2 v[42:43], v40, {WS} sc1
        s_waitcnt vmcnt(0)
        v_cmp_ne_u32 vcc, s{S_TAG}, v43
        s_cbranch_vccz L_sent_done
        s_sleep 8
        """)
        spin_back("L_sent")
        e.label("L_sent_done")
        e(f"s_sleep {cfg.n5sleep}")
    e("s_branch L_S7")
    e.label("L_s6")
    e(f"""
    s_mov_b32 s{SRD_WO}, s{P_WO}
    s_mov_b32 s{SRD_WO+1}, s{P_WO+1}
    s_mov_b32 s{SRD_WO+2}, 5242880
    s_mov_b32 s{SRD_WO+3}, 0x20000
    v_lshrrev_b32 v12, 3, v1
    v_mul_u32_u24 v50, 1280, v12
    v_and_b32 v12, 2, v12
    v_and_b32 v13, 7, v1
    v_xor_b32 v12, v12, v13
    v_lshl_add_u32 v50, v12, 4, v50
    v_xor_b32 v51, 64, v50
    s_lshl_b32 s3, s{S_X}, 3
    s_add_u32 s3, s3, s{S_W}
    s_mul_i32 s20, s3, {64*1280}
    s_lshl_b32 s65, s{S_I}, 7
    s_add_u32 s20, s20, s65
    s_lshl_b32 s21, s{S_W}, 13
    """)
    for ii in range(8):
        e(f"""
        s_mov_b32 m0, s21
        s_add_u32 s21, s21, 1024
        buffer_load_dwordx4 v{50+(ii&1)}, s[{SRD_WO}:{SRD_WO+3}], s20 offen{NT} lds
        s_add_u32 s20, s20, {8*1280}
        """)
    s7_loads()
    tr_common()
    e(f"""
    v_lshl_add_u32 v12, v2, 3, v62
    v_lshlrev_b32 v12, 7, v12
    v_add_u32 v12, v12, v59
    s_lshl_b32 s3, s{S_W}, 13
    v_add_u32 v12, s3, v12
    v_and_b32 v13, 1, v2
    v_lshlrev_b32 v13, 2, v13
    v_and_b32 v14, 2, v62
    v_or_b32 v13, v13, v14
    v_xor_b32 v13, v13, v63
    v_lshl_add_u32 v249, v13, 4, v12
    v_xor_b32 v250, 32, v249
    v_xor_b32 v251, 64, v249
    v_xor_b32 v252, 96, v249
    s_lshr_b32 s3, s{S_W}, 1
    s_lshl_b32 s64, s{S_X}, 2
    s_add_u32 s3, s3, s64
    s_lshl_b32 s3, s3, 11
    s_and_b32 s64, s{S_W}, 1
    s_lshl_b32 s64, s64, 8
    s_add_u32 s3, s3, s64
    s_add_u32 s3, s3, {WS_CTX}
    v_lshlrev_b32 v52, 9, v2
    v_lshl_add_u32 v52, v3, 4, v52
    v_add_u32 v52, s3, v52
    v_add_u32 v53, {WS_CTXF-WS_CTX}, v52
    s_lshl_b32 s3, s{S_W}, 7
    s_add_u32 s3, s3, {L_BNC}
    v_lshl_add_u32 v54, v3, 2, v2
    v_lshlrev_b32 v54, 1, v54
    v_add_u32 v54, s3, v54
    v_lshl_add_u32 v55, v2, 4, s3
    s_lshl_b32 s3, s{S_W}, 8
    s_add_u32 s3, s3, {L_ORED}
    v_lshl_add_u32 v253, v2, 4, s3
    v_lshlrev_b32 v254, 3, v1
    v_add_u32 v254, {L_ORED}, v254
    s_mul_i32 s3, s{S_X}, 2560
    s_lshl_b32 s64, s{S_I}, 8
    s_add_u32 s3, s3, s64
    s_add_u32 s3, s3, {WS_OP}
    v_lshl_add_u32 v255, v1, 3, s3
    s_waitcnt vmcnt(0)
    """)
    stamp(9)
    for tt in range(4):
        for ks in range(2):
            r = 80 + 8 * tt + 4 * ks
            e(f"ds_read_b64_tr_b16 v[{r}:{r+1}], v{249+tt} offset:{4096*ks}")
            e(f"ds_read_b64_tr_b16 v[{r+2}:{r+3}], v{249+tt} offset:{4096*ks+512}")
    s7_prep()
    e.label("L_h4")
    if cfg.fast4:
        e(f"global_load_dwordx4 v[44:47], v53, {WS} sc1")
        e(f"global_load_dwordx4 v[40:43], v52, {WS} sc1\ns_waitcnt vmcnt(0)")
        tagchk(48, [45, 47])
        e("v_cmp_eq_u32 vcc, 0, v48")
        e.nop(2)
        for k in range(4): e(f"v_cndmask_b32 v{40+k}, v{40+k}, v{44+k}, vcc")
    else:
        e(f"global_load_dwordx4 v[40:43], v52, {WS} sc1\ns_waitcnt vmcnt(0)")
    tagchk(48, [41, 43])
    poll_tail("L_h4", "L_h4_done", 48, cfg.h4sleep)
    stamp(10)
    e("""
    v_lshlrev_b32 v44, 16, v40
    v_and_b32 v45, 0xffff0000, v40
    v_lshlrev_b32 v46, 16, v42
    v_and_b32 v47, 0xffff0000, v42
    s_nop 1
    v_permlane32_swap_b32 v44, v46
    v_permlane32_swap_b32 v45, v47
    v_add_f32 v44, v44, v46
    v_add_f32 v45, v45, v47
    s_nop 1
    v_permlane16_swap_b32 v44, v45
    v_add_f32 v44, v44, v45
    v_cvt_pk_bf16_f32 v44, v44, v44
    ds_write_b16 v54, v44
    s_waitcnt lgkmcnt(0)
    ds_read_b128 v[112:115], v55
    ds_read_b128 v[116:119], v55 offset:64
    """)
    for ks in range(2):
        e(f"s_waitcnt lgkmcnt({1-ks})")
        for tt in range(4):
            c = "0" if ks == 0 else f"v[{120+4*tt}:{123+4*tt}]"
            r = 80 + 8 * tt + 4 * ks
            e(f"v_mfma_f32_16x16x32_bf16 v[{120+4*tt}:{123+4*tt}], v[{r}:{r+3}], v[{112+4*ks}:{115+4*ks}], {c}")
    e("s_mov_b32 exec_lo, 0x00010001\ns_mov_b32 exec_hi, 0x00010001")
    e.nop(3)
    for tt in range(4):
        e(f"ds_write_b128 v253, v[{120+4*tt}:{123+4*tt}] offset:{64*tt}")
    e(f"""
    s_mov_b64 exec, -1
    s_waitcnt lgkmcnt(0)
    s_barrier
    s_cmp_eq_u32 s{S_W}, 7
    s_cbranch_scc0 L_s6_w
    s_mov_b64 exec, 0xffffffff
    """)
    for w in range(8):
        e(f"ds_read_b64 v[{40+2*w}:{41+2*w}], v254 offset:{256*w}")
    e(f"""
    v_mov_b32 v57, s{S_TAG}
    s_waitcnt lgkmcnt(0)
    v_pk_add_f32 v[40:41], v[40:41], v[42:43]
    v_pk_add_f32 v[44:45], v[44:45], v[46:47]
    v_pk_add_f32 v[48:49], v[48:49], v[50:51]
    v_pk_add_f32 v[52:53], v[52:53], v[54:55]
    v_pk_add_f32 v[40:41], v[40:41], v[44:45]
    v_pk_add_f32 v[48:49], v[48:49], v[52:53]
    v_pk_add_f32 v[40:41], v[40:41], v[48:49]
    v_cvt_pk_bf16_f32 v56, v40, v41
    global_store_dwordx2 v255, v[56:57], {WS} sc1
    s_mov_b64 exec, -1
    """)
    stamp(11)
    e("s_branch L_S7")
    e.label("L_s6_w")
    if cfg.f5sleep: e(f"s_sleep {cfg.f5sleep}")
    e("s_branch L_S7")

    e.label("L_B1")
    e(f"s_mov_b32 s{S_ISB}, 1")
    stamp(1)
    e(f"""
    s_lshr_b32 s3, s{S_I}, 2
    s_lshl_b32 s3, s3, 3
    s_add_u32 s3, s3, s{S_W}
    s_lshl_b32 s3, s3, 11
    s_add_u32 s3, s3, {WS_QA}
    v_lshl_add_u32 v5, v1, 5, s3
    s_mul_i32 s3, s{S_W}, {QAS_STRIDE}
    s_add_u32 s3, s3, {L_QAS}
    v_lshl_add_u32 v6, v1, 4, s3
    """)
    tr_common()
    e(f"s_cmp_lt_u32 s{S_W}, 4\ns_cbranch_scc0 L_bp_prep")
    def h2_poll(sfx):
        e("s_waitcnt vmcnt(0)\ns_branch L_h2_chk" + sfx)
        e.label("L_h2" + sfx)
        e(f"""
        global_load_dwordx4 v[40:43], v5, {WS} sc1
        global_load_dwordx4 v[44:47], v5, {WS} offset:16 sc1
        s_waitcnt vmcnt(0)
        """)
        e.label("L_h2_chk" + sfx)
        tagchk(4, [41, 43, 45, 47])
        poll_tail("L_h2" + sfx, "L_h2_done" + sfx, 4, cfg.h2sleep)
        stamp(5)
        e(f"""
        v_mov_b32 v41, v42
        v_mov_b32 v42, v44
        v_mov_b32 v43, v46
        ds_write_b128 v6, v[40:43]
        s_waitcnt lgkmcnt(0)
        s_barrier
        """)
    e(f"""
    s_lshl_b32 s3, s{S_W}, 5
    v_add_u32 v12, s3, v3
    v_lshlrev_b32 v12, 10, v12
    v_and_b32 v13, 7, v1
    v_lshlrev_b32 v13, 1, v13
    v_xor_b32 v13, v13, v2
    v_lshl_add_u32 v8, v13, 4, v12
    v_xor_b32 v9, 64, v8
    v_xor_b32 v10, 128, v8
    v_xor_b32 v11, 192, v8
    v_and_b32 v216, 7, v3
    v_lshlrev_b32 v217, 4, v216
    v_mul_u32_u24 v216, {QAS_STRIDE}, v216
    v_lshl_add_u32 v216, v2, 4, v216
    v_add_u32 v216, {L_QAS}, v216
    v_add_u32 v217, {L_MX}, v217
    s_lshl_b32 s3, s{S_W}, 2
    v_add_u32 v218, s3, v217
    s_lshl_b32 s3, s{S_W}, 10
    s_add_u32 s3, s3, {L_PEX}
    v_lshl_add_u32 v219, v1, 4, s3
    v_and_b32 v220, 1, v2
    v_lshl_add_u32 v220, v220, 2, v62
    v_lshlrev_b32 v220, 1, v220
    s_lshl_b32 s3, s{S_W}, 2
    v_add_u32 v12, s3, v63
    v_xor_b32 v220, v220, v12
    v_lshl_add_u32 v220, v220, 4, v59
    v_lshl_add_u32 v12, v2, 3, v62
    v_lshl_add_u32 v220, v12, 8, v220
    v_xor_b32 v221, 32, v220
    s_lshl_b32 s3, s{S_H}, 11
    s_lshl_b32 s65, s{S_J}, 9
    s_add_u32 s3, s3, s65
    s_lshl_b32 s64, s{S_W}, 7
    s_add_u32 s3, s3, s64
    s_add_u32 s65, s3, {WS_PART}
    v_lshrrev_b32 v12, 3, v1
    v_and_b32 v13, 7, v1
    v_lshlrev_b32 v222, 16, v12
    v_lshl_add_u32 v222, v13, 4, v222
    v_add_u32 v222, s65, v222
    s_lshl_b32 s3, s{S_H}, 7
    s_add_u32 s3, s3, {WS_ST}
    v_lshl_add_u32 v48, v12, 12, s3
    v_and_b32 v223, 1, v2
    v_lshlrev_b32 v223, 1, v223
    v_lshrrev_b32 v12, 1, v2
    v_or_b32 v223, v223, v12
    v_lshl_add_u32 v223, v13, 2, v223
    s_lshl_b32 s3, s{S_W}, 5
    v_add_u32 v223, s3, v223
    v_lshlrev_b32 v223, 1, v223
    v_add_u32 v223, {L_CTXS}, v223
    v_lshlrev_b32 v49, 4, v2
    v_add_u32 v49, {L_CTXS}, v49
    s_lshl_b32 s3, s{S_H}, 2
    s_add_u32 s3, s3, s{S_J}
    s_lshl_b32 s3, s3, 9
    s_add_u32 s3, s3, s64
    s_add_u32 s3, s3, {WS_CTX}
    v_and_b32 v50, 1, v1
    v_lshlrev_b32 v50, 6, v50
    v_lshl_add_u32 v50, v2, 4, v50
    v_add_u32 v50, s3, v50
    v_add_u32 v51, {WS_CTXF-WS_CTX}, v50
    s_waitcnt vmcnt(0) lgkmcnt(0)
    global_load_dwordx4 v[40:43], v5, {WS} sc1
    global_load_dwordx4 v[44:47], v5, {WS} offset:16 sc1
    """)
    mk_tag()
    e("s_barrier")
    stamp(14)
    for t in range(2):
        for j in range(16):
            e(f"ds_read_b128 v[{64+64*t+4*j}:{67+64*t+4*j}], v{8+(j&3)} offset:{256*(j>>2)+16384*t}")
    h2_poll("q")
    def qb(j):
        if j < 6: return 192 + 4 * j
        if j < 13: return 12 + 4 * (j - 6)
        if j < 15: return 40 + 4 * (j - 13)
        return 52
    stamp(4)
    for j in range(16):
        e(f"ds_read_b128 v[{qb(j)}:{qb(j)+3}], v216 offset:{64*j}")
    for j in range(16):
        if j % 2 == 0: e(f"s_waitcnt lgkmcnt({max(0, 14-j)})")
        for t in range(2):
            acc = f"v[{56+4*t}:{59+4*t}]"
            c = "0" if j == 0 else acc
            e(f"v_mfma_f32_16x16x32_bf16 {acc}, v[{64+64*t+4*j}:{67+64*t+4*j}], v[{qb(j)}:{qb(j)+3}], {c}")
    e.nop(7)
    stamp(10)
    e("""
    v_max3_f32 v12, v56, v57, v58
    s_nop 0
    v_max3_f32 v13, v60, v61, v62
    v_max3_f32 v12, v59, v63, v12
    v_max_f32 v12, v12, v13
    v_mov_b32 v13, v12
    """)
    e.nop(2)
    e("v_permlane16_swap_b32 v12, v13")
    e("v_max_f32 v12, v12, v13\nv_mov_b32 v13, v12")
    e.nop(2)
    e("v_permlane32_swap_b32 v12, v13")
    e("""
    v_max_f32 v12, v12, v13
    s_mov_b64 exec, 0xff
    ds_write_b32 v218, v12
    s_mov_b64 exec, -1
    s_waitcnt lgkmcnt(0)
    s_barrier
    """)
    stamp(11)
    e("""
    ds_read_b128 v[16:19], v217
    s_waitcnt lgkmcnt(0)
    v_max3_f32 v12, v16, v17, v18
    v_max_f32 v12, v12, v19
    """)
    for r in range(8): e(f"v_sub_f32 v{56+r}, v{56+r}, v12")
    for r in range(8): e(f"v_exp_f32 v{56+r}, v{56+r}")
    e("s_nop 0")
    for r in range(4): e(f"v_cvt_pk_bf16_f32 v{16+r}, v{56+2*r}, v{57+2*r}")
    e(f"""
    ds_write_b128 v219, v[16:19]
    s_cmp_eq_u32 s{S_W}, 0
    s_cbranch_scc0 L_bq_nom
    s_mov_b64 exec, 0xff
    ds_write_b32 v218, v12 offset:128
    s_mov_b64 exec, -1
    """)
    e.label("L_bq_nom")
    e("s_waitcnt lgkmcnt(0)\ns_barrier")
    stamp(6)
    e(f"""
    v_mov_b32 v105, s{S_TAG}
    v_mov_b32 v107, s{S_TAG}
    v_add_u32 v192, 0x80000, v222
    v_add_u32 v193, 0x100000, v222
    v_add_u32 v194, 0x180000, v222
    v_add_u32 v195, 0x8000, v48
    v_add_u32 v196, 0x10000, v48
    v_add_u32 v197, 0x18000, v48
    s_mov_b32 s64, 0xaaaaaaaa
    s_mov_b32 s65, 0xaaaaaaaa
    """)
    e("s_barrier")
    for t in range(2):
        for ks in range(4):
            r = 128 + 16 * t + 4 * ks
            e(f"ds_read_b64_tr_b16 v[{r}:{r+1}], v{220+t} offset:{8192*ks}")
            e(f"ds_read_b64_tr_b16 v[{r+2}:{r+3}], v{220+t} offset:{8192*ks+1024}")
    if cfg.h3sleep: e(f"s_sleep {cfg.h3sleep}")
    stamp(2)
    e.label("L_h3")
    for i, ar in enumerate([48, 195, 196, 197]):
        e(f"global_load_dwordx4 v[{64+4*i}:{67+4*i}], v{ar}, {WS} sc1")
    for i, ar in enumerate([222, 192, 193, 194]):
        e(f"global_load_dwordx4 v[{80+4*i}:{83+4*i}], v{ar}, {WS} sc1")
    e("s_waitcnt vmcnt(4)")
    tagchk(4, [65, 67, 69, 71, 73, 75, 77, 79])
    e("v_cmp_ne_u32 vcc, 0, v4\ns_cbranch_vccz L_h3_st\ns_waitcnt vmcnt(0)")
    if cfg.h3psleep: e(f"s_sleep {cfg.h3psleep}")
    spin_back("L_h3")
    e.label("L_h3_st")
    stamp(3)
    e("""
    v_max3_f32 v4, v64, v68, v72
    v_max_f32 v4, v4, v76
    s_nop 1
    v_max_f32_dpp v4, v4, v4 row_ror:8 row_mask:0xf bank_mask:0xf
    s_nop 0
    v_mov_b32 v5, v4
    s_nop 1
    v_permlane16_swap_b32 v4, v5
    v_max_f32 v4, v4, v5
    v_mov_b32 v5, v4
    s_nop 1
    v_permlane32_swap_b32 v4, v5
    v_max_f32 v4, v4, v5
    """)
    for i in range(4): e(f"v_sub_f32 v{64+4*i}, v{64+4*i}, v4")
    for i in range(4): e(f"v_exp_f32 v{64+4*i}, v{64+4*i}")
    e("v_nop\nv_mul_f32 v28, v64, v66")
    for i in range(1, 4): e(f"v_fmac_f32 v28, v{64+4*i}, v{66+4*i}")
    e("""
    s_nop 1
    v_add_f32_dpp v28, v28, v28 row_ror:8 row_mask:0xf bank_mask:0xf
    s_nop 0
    v_mov_b32 v29, v28
    s_nop 1
    v_permlane16_swap_b32 v28, v29
    v_add_f32 v28, v28, v29
    v_mov_b32 v29, v28
    s_nop 1
    v_permlane32_swap_b32 v28, v29
    v_add_f32 v28, v28, v29
    v_rcp_f32 v28, v28
    s_nop 0
    """)
    for i in range(4): e(f"v_mul_f32 v{64+4*i}, v{64+4*i}, v28")
    e("s_waitcnt vmcnt(0)\ns_branch L_h3_dchk")
    e.label("L_h3d")
    for i, ar in enumerate([222, 192, 193, 194]):
        e(f"global_load_dwordx4 v[{80+4*i}:{83+4*i}], v{ar}, {WS} sc1")
    e("s_waitcnt vmcnt(0)")
    e.label("L_h3_dchk")
    tagchk(4, [81, 83, 85, 87, 89, 91, 93, 95])
    poll_tail("L_h3d", "L_h3_done", 4)
    stamp(8)
    for i in range(4):
        e(f"v_lshlrev_b32 v{12+4*i}, 16, v{80+4*i}\nv_and_b32 v{13+4*i}, 0xffff0000, v{80+4*i}")
        e(f"v_lshlrev_b32 v{14+4*i}, 16, v{82+4*i}\nv_and_b32 v{15+4*i}, 0xffff0000, v{82+4*i}")
        if i == 0:
            e("v_pk_mul_f32 v[12:13], v[12:13], v[64:65] op_sel_hi:[1,0]\nv_pk_mul_f32 v[14:15], v[14:15], v[64:65] op_sel_hi:[1,0]")
        else:
            e(f"v_pk_fma_f32 v[12:13], v[{12+4*i}:{13+4*i}], v[{64+4*i}:{65+4*i}], v[12:13] op_sel_hi:[1,0,1]")
            e(f"v_pk_fma_f32 v[14:15], v[{14+4*i}:{15+4*i}], v[{64+4*i}:{65+4*i}], v[14:15] op_sel_hi:[1,0,1]")
    e("s_nop 0")
    for r in (12, 13, 14, 15):
        e(f"v_add_f32_dpp v{r}, v{r}, v{r} row_ror:8 row_mask:0xf bank_mask:0xf")
    e("""
    s_nop 0
    v_permlane16_swap_b32 v12, v14
    v_permlane16_swap_b32 v13, v15
    v_add_f32 v12, v12, v14
    v_add_f32 v13, v13, v15
    s_nop 1
    v_permlane32_swap_b32 v12, v13
    s_mov_b32 exec_lo, 0x00ff00ff
    s_mov_b32 exec_hi, 0x00ff00ff
    v_add_f32 v12, v12, v13
    v_cvt_pk_bf16_f32 v12, v12, v12
    ds_write_b16 v223, v12
    s_mov_b64 exec, -1
    s_waitcnt lgkmcnt(0)
    s_barrier
    """)
    for ks in range(4):
        e(f"ds_read_b128 v[{112+4*ks}:{115+4*ks}], v49 offset:{64*ks}")
    for ks in range(4):
        e(f"s_waitcnt lgkmcnt({3-ks})")
        for t in range(2):
            acc = f"v[{96+4*t}:{99+4*t}]"
            c = "0" if ks == 0 else acc
            r = 128 + 16 * t + 4 * ks
            e(f"v_mfma_f32_16x16x32_bf16 {acc}, v[{r}:{r+3}], v[{112+4*ks}:{115+4*ks}], {c}")
    e("s_mov_b32 exec_lo, 0x00030003\ns_mov_b32 exec_hi, 0x00030003")
    e.nop(6)
    for r in range(4):
        e(f"v_cndmask_b32 v{96+r}, v{96+r}, v{100+r}, s[64:65]")
    e("""
    v_cvt_pk_bf16_f32 v104, v96, v97
    v_cvt_pk_bf16_f32 v106, v98, v99
    """)
    if cfg.fast4: e(f"global_store_dwordx4 v51, v[104:107], {WS}")
    e(f"global_store_dwordx4 v50, v[104:107], {WS} sc1\ns_mov_b64 exec, -1")
    stamp(9)
    e("s_branch L_b_tail")
    e.label("L_bp_prep")
    e(f"""
    v_lshl_add_u32 v58, v2, 2, v62
    v_and_b32 v13, 7, v58
    v_lshlrev_b32 v13, 1, v13
    v_lshlrev_b32 v58, 10, v58
    v_add_u32 v58, v58, v59
    s_and_b32 s66, s{S_W}, 3
    s_lshl_b32 s3, s66, 4
    v_add_u32 v12, s3, v63
    v_xor_b32 v12, v12, v13
    v_lshl_add_u32 v8, v12, 4, v58
    """)
    for tt in range(1, 8):
        e(f"v_xor_b32 v{8+tt}, {32*tt}, v8")
    e(f"""
    v_lshlrev_b32 v16, 4, v1
    v_add_u32 v16, {L_PEX}, v16
    s_mov_b32 s{SRD_A}, s{P_WUV}
    s_mov_b32 s{SRD_A+1}, s{P_WUV+1}
    s_mov_b32 s{SRD_A+2}, 4194304
    s_mov_b32 s{SRD_A+3}, 0x20000
    s_lshl_b32 s3, s{S_W}, 2
    s_and_b32 s3, s3, 8
    v_lshlrev_b32 v19, 1, v2
    v_xor_b32 v19, v19, v3
    v_xor_b32 v19, s3, v19
    v_lshlrev_b32 v19, 4, v19
    v_lshl_add_u32 v19, v2, 13, v19
    s_lshl_b32 s20, s{S_J}, 5
    s_add_u32 s20, s20, s66
    s_lshl_b32 s20, s20, 15
    s_lshl_b32 s21, s{S_H}, 8
    s_add_u32 s20, s20, s21
    s_lshl_b32 s21, s66, 10
    v_lshl_add_u32 v56, v1, 4, s21
    s_lshl_b32 s3, s{S_CH}, 16
    s_lshr_b32 s64, s{S_I}, 2
    s_lshl_b32 s65, s64, 14
    s_add_u32 s3, s3, s65
    s_lshl_b32 s65, s66, 9
    s_add_u32 s3, s3, s65
    s_add_u32 s3, s3, {WS_PART}
    v_and_b32 v17, 7, v3
    v_lshlrev_b32 v17, 11, v17
    v_lshl_add_u32 v17, v2, 4, v17
    v_lshrrev_b32 v20, 3, v3
    v_lshl_add_u32 v17, v20, 6, v17
    v_add_u32 v17, s3, v17
    s_lshl_b32 s64, s64, 10
    s_lshl_b32 s65, s{S_CH}, 12
    s_add_u32 s64, s64, s65
    s_add_u32 s64, s64, {WS_ST}
    v_lshrrev_b32 v18, 2, v1
    v_lshlrev_b32 v18, 7, v18
    v_and_b32 v20, 3, v1
    v_lshl_add_u32 v18, v20, 4, v18
    v_add_u32 v18, s64, v18
    v_mov_b32 v36, 0x3f803f80
    v_mov_b32 v37, 0x3f803f80
    v_mov_b32 v38, 0x3f803f80
    v_mov_b32 v39, 0x3f803f80
    s_waitcnt vmcnt(0) lgkmcnt(0)
    global_load_dwordx4 v[40:43], v5, {WS} sc1
    global_load_dwordx4 v[44:47], v5, {WS} offset:16 sc1
    """)
    mk_tag()
    e(f"v_mov_b32 v53, s{S_TAG}\nv_mov_b32 v55, s{S_TAG}")
    e("s_barrier")
    stamp(14)
    for half in range(2):
        for tt in range(8):
            for k2 in range(2):
                ks = 2 * half + k2
                for eb in range(2):
                    r = 64 + 16 * tt + 4 * ks + 2 * eb
                    e(f"ds_read_b64_tr_b16 v[{r}:{r+1}], v{8+tt} offset:{32768*k2+16384*eb}")
        if half == 0:
            for tt in range(8):
                e(f"v_add_u32 v{8+tt}, 0x10000, v{8+tt}")
    h2_poll("p")
    for ii in range(8):
        e(f"""
        s_mov_b32 m0, s21
        s_add_u32 s21, s21, 4096
        buffer_load_dwordx4 v19, s[{SRD_A}:{SRD_A+3}], s20 offen{NT} lds
        s_add_u32 s20, s20, {4*4*8192}
        """)
    e("s_barrier\ns_barrier")
    for ks in range(4):
        e(f"ds_read_b128 v[{20+4*ks}:{23+4*ks}], v16 offset:{1024*ks}")
    e(f"""
    v_bfe_u32 v5, v1, 2, 3
    v_lshlrev_b32 v4, 4, v5
    v_add_u32 v4, {L_MX+128}, v4
    v_lshlrev_b32 v5, 2, v5
    s_mov_b32 s64, 0xff00ff00
    s_mov_b32 s65, 0xff00ff00
    """)
    stamp(6)
    for pr in range(4):
        e(f"v_mov_b32 v{37+0}, v{37}") if False else None
    def epi(pr):
        a0, a1 = 192 + 8 * pr, 196 + 8 * pr
        g = 64 + 32 * pr
        return [f"v_mov_b32 v{g+1}, s{S_TAG}", f"v_mov_b32 v{g+3}, s{S_TAG}", f"v_cvt_pk_bf16_f32 v44, v{a0}, v{a0+1}", f"v_cvt_pk_bf16_f32 v45, v{a0+2}, v{a0+3}",
                f"v_cvt_pk_bf16_f32 v46, v{a1}, v{a1+1}", f"v_cvt_pk_bf16_f32 v47, v{a1+2}, v{a1+3}",
                f"v_cndmask_b32 v{g}, v44, v46, s[64:65]", f"v_cndmask_b32 v{g+2}, v45, v47, s[64:65]",
                f"global_store_dwordx4 v17, v[{g}:{g+3}], {WS} offset:{128*pr} sc1"]
    for pr in range(4):
        pend = epi(pr - 1) if pr >= 2 or pr == 1 else []
        if pr == 1: pend = []
        seq = []
        for ks in range(4):
            for t2 in range(2):
                tt = 2 * pr + t2
                acc = f"v[{192+4*tt}:{195+4*tt}]"
                c = "0" if ks == 0 else acc
                r = 64 + 16 * tt + 4 * ks
                pre = f"s_waitcnt lgkmcnt({3-ks})" if (pr == 0 and t2 == 0) else None
                seq.append((pre, f"v_mfma_f32_16x16x32_bf16 {acc}, v[{r}:{r+3}], v[{20+4*ks}:{23+4*ks}], {c}"))
        ep = epi(pr - 1) if pr >= 1 else []
        for k, (pre, m) in enumerate(seq):
            if pre: e(pre)
            e(m)
            if pr >= 1 and k == 7: pass
        if pr >= 1:
            for ins in ep: e(ins)
    e(f"s_cmp_eq_u32 s{S_W}, 4\ns_cbranch_scc0 L_b_nol")
    e("ds_read_b32 v52, v4")
    for ks in range(4):
        c = "0" if ks == 0 else "v[40:43]"
        e(f"v_mfma_f32_16x16x32_bf16 v[40:43], v[36:39], v[{20+4*ks}:{23+4*ks}], {c}")
    e.label("L_b_nol")
    e.nop(6)
    for ins in epi(3): e(ins)
    e(f"""
    s_cmp_eq_u32 s{S_W}, 4
    s_cbranch_scc0 L_b_nostat
    ds_bpermute_b32 v54, v5, v40
    s_mov_b64 exec, 0xffffffff
    s_waitcnt lgkmcnt(0)
    global_store_dwordx4 v18, v[52:55], {WS} sc1
    s_mov_b64 exec, -1
    """)
    stamp(7)
    e("s_waitcnt vmcnt(5)\ns_branch L_b_st2")
    e.label("L_b_nostat")
    stamp(7)
    e("s_waitcnt vmcnt(4)")
    e.label("L_b_st2")
    e("s_barrier\ns_barrier")
    e.label("L_b_tail")
    e("s_barrier")
    s7_loads()
    e("s_waitcnt vmcnt(0)")
    s7_prep()
    if cfg.b5sleep: e(f"s_sleep {cfg.b5sleep}")

    e.label("L_S7")
    e(f"s_cmp_lt_u32 s{S_W}, 5\ns_cbranch_scc0 L_s7_bar")
    e.label("L_h5")
    e(f"""
    global_load_dwordx4 v[40:43], v244, {WS} sc1
    global_load_dwordx4 v[44:47], v245, {WS} sc1
    global_load_dwordx4 v[48:51], v246, {WS} sc1
    global_load_dwordx4 v[52:55], v247, {WS} sc1
    s_waitcnt vmcnt(0)
    """)
    tagchk(56, [41, 43, 45, 47, 49, 51, 53, 55])
    poll_tail("L_h5", "L_h5_done", 56, cfg.h5sleep)
    stamp(12)
    for k, src in enumerate([40, 44, 48, 52]):
        e(f"v_lshlrev_b32 v{80+8*k}, 16, v{src}\nv_and_b32 v{81+8*k}, 0xffff0000, v{src}")
        e(f"v_lshlrev_b32 v{82+8*k}, 16, v{src+2}\nv_and_b32 v{83+8*k}, 0xffff0000, v{src+2}")
    e(f"""
    v_pk_add_f32 v[80:81], v[80:81], v[88:89]
    v_pk_add_f32 v[96:97], v[96:97], v[104:105]
    v_pk_add_f32 v[82:83], v[82:83], v[90:91]
    v_pk_add_f32 v[98:99], v[98:99], v[106:107]
    v_pk_add_f32 v[80:81], v[80:81], v[96:97]
    v_pk_add_f32 v[82:83], v[82:83], v[98:99]
    s_nop 1
    v_permlane32_swap_b32 v80, v82
    v_permlane32_swap_b32 v81, v83
    v_add_f32 v50, v80, v82
    v_add_f32 v51, v81, v83
    v_pk_add_f32 v[50:51], v[50:51], v[58:59]
    ds_write_b64 v248, v[50:51]
    v_add_f32 v52, v50, v51
    v_mul_f32 v53, v50, v50
    v_fmac_f32 v53, v51, v51
    """)
    dpp_reduce([52, 53])
    e(f"""
    s_mov_b32 exec_lo, 0
    s_mov_b32 exec_hi, 0x80000000
    ds_write_b64 v68, v[52:53]
    s_mov_b64 exec, -1
    """)
    e.label("L_s7_bar")
    e(f"""
    s_waitcnt lgkmcnt(0)
    s_barrier
    """)
    if cfg.s7stamps: stamp(1)
    e(f"""
    s_cmp_lt_u32 s2, {216 if cfg.outmap else 214}
    s_cbranch_scc0 L_fin
    ds_read_b128 v[40:43], v62
    ds_read_b128 v[44:47], v62 offset:16
    ds_read_b64 v[48:49], v62 offset:32
    ds_read_b32 v50, v63
    ds_read_b32 v52, v63 offset:4
    ds_read_b32 v54, v63 offset:8
    s_waitcnt lgkmcnt(3)
    v_pk_add_f32 v[40:41], v[40:41], v[42:43]
    v_pk_add_f32 v[44:45], v[44:45], v[46:47]
    v_pk_add_f32 v[40:41], v[40:41], v[48:49]
    v_pk_add_f32 v[40:41], v[40:41], v[44:45]
    v_pk_mul_f32 v[40:41], v[40:41], v[60:61] op_sel_hi:[1,0]
    v_fma_f32 v41, -v40, v40, v41
    v_max_f32 v41, 0, v41
    v_fma_f32 v42, v41, v61, v65
    s_waitcnt lgkmcnt(0)
    v_rsq_f32 v42, v42
    v_sub_f32 v70, v50, v40
    v_sub_f32 v72, v52, v40
    v_sub_f32 v74, v54, v40
    v_mul_f32 v70, v70, v42
    v_mul_f32 v72, v72, v42
    v_mul_f32 v74, v74, v42
    """)
    if cfg.s7stamps: stamp(2)
    combos = [(r, o) for o in range(3) for r in range(2)]
    for c, (r, o) in enumerate(combos):
        e(f"v_pk_fma_f32 v[{80+2*c}:{81+2*c}], v[{70+2*o}:{71+2*o}], v[{232+2*r}:{233+2*r}], v[{236+2*r}:{237+2*r}] op_sel_hi:[0,1,1]")
    for c in range(6):
        e(f"v_pk_mul_f32 v[{92+2*c}:{93+2*c}], v[{80+2*c}:{81+2*c}], v[{80+2*c}:{81+2*c}]")
    for c in range(6):
        e(f"v_pk_fma_f32 v[{92+2*c}:{93+2*c}], v[{92+2*c}:{93+2*c}], v[66:67], v[64:65] op_sel_hi:[1,0,0]")
    for c in range(6):
        e(f"v_pk_mul_f32 v[{92+2*c}:{93+2*c}], v[{92+2*c}:{93+2*c}], v[{80+2*c}:{81+2*c}]")
    for c in range(12):
        e(f"v_exp_f32 v{92+c}, v{92+c}")
    for c in range(6):
        e(f"v_pk_add_f32 v[{92+2*c}:{93+2*c}], v[{92+2*c}:{93+2*c}], 1.0 op_sel_hi:[1,0]")
    for c in range(12):
        e(f"v_rcp_f32 v{92+c}, v{92+c}")
    for c in range(6):
        e(f"v_pk_mul_f32 v[{80+2*c}:{81+2*c}], v[{80+2*c}:{81+2*c}], v[{92+2*c}:{93+2*c}]")
    for o in range(3):
        e(f"v_pk_mul_f32 v[{104+2*o}:{105+2*o}], v[{80+4*o}:{81+4*o}], v[240:241]")
    for o in range(3):
        e(f"v_pk_fma_f32 v[{104+2*o}:{105+2*o}], v[{82+4*o}:{83+4*o}], v[242:243], v[{104+2*o}:{105+2*o}]")
    if cfg.s7stamps: stamp(3)
    e("v_add_f32 v110, v104, v105\nv_add_f32 v111, v106, v107\nv_add_f32 v112, v108, v109")
    dpp_reduce([110, 111, 112])
    e(f"""
    s_mov_b32 exec_lo, 0
    s_mov_b32 exec_hi, 0x80000000
    ds_write_b128 v69, v[110:113]
    s_mov_b64 exec, -1
    {"s_mul_i32 s3, s5, 80" if cfg.outmap else "s_mov_b32 s3, 560"}
    s_add_u32 s3, s3, 80
    v_cmp_gt_u32 vcc, s3, v8
    v_lshlrev_b32 v8, 1, v8
    s_waitcnt lgkmcnt(0)
    s_barrier
    """)
    if cfg.s7stamps: stamp(4)
    e(f"""
    s_cmp_eq_u32 s{S_W}, 0
    s_cbranch_scc0 L_fin
    s_and_b64 vcc, vcc, 7
    s_and_saveexec_b64 s[64:65], vcc
    s_cbranch_execz L_fin0
    """)
    for w in range(8):
        e(f"ds_read_b32 v{40+w}, v6 offset:{16*w}")
    e(f"""
    ds_read_b32 v48, v7
    s_waitcnt lgkmcnt(0)
    v_add_f32 v40, v40, v41
    v_add_f32 v42, v42, v43
    v_add_f32 v44, v44, v45
    v_add_f32 v46, v46, v47
    v_add_f32 v48, v48, v9
    v_add_f32 v40, v40, v42
    v_add_f32 v44, v44, v46
    v_add_f32 v40, v40, v48
    v_add_f32 v40, v40, v44
    v_cvt_pk_bf16_f32 v40, v40, v40
    global_store_short v8, v40, s[{P_OUT}:{P_OUT+1}]
    """)
    e.label("L_fin0")
    e("s_mov_b64 exec, s[64:65]")
    e.label("L_fin")
    stamp(13)
    e(f"""
    s_cmp_eq_u32 s2, {0 if not cfg.noepoch else 100000}
    s_cbranch_scc0 L_noepoch
    s_cmp_eq_u32 s{S_W}, 0
    s_cbranch_scc0 L_noepoch
    v_lshlrev_b32 v6, 2, v1
    v_mov_b32 v7, s{S_TAG}
    s_mov_b64 exec, 0xffff
    global_store_dword v6, v7, {WS} sc1
    s_mov_b64 exec, -1
    """)
    e.label("L_noepoch")
    if cfg.stamps:
        e(f"""
        s_waitcnt lgkmcnt(0)
        s_lshl_b32 s3, s2, 3
        s_add_u32 s3, s3, s{S_W}
        s_lshl_b32 s3, s3, 6
        s_add_u32 s3, s3, {WS_DBG}
        v_mov_b32 v6, s3
        s_mov_b64 exec, 1
        """)
        for q in range(4):
            for k in range(4):
                e(f"v_mov_b32 v{8+k}, s{S_STAMP+2*min(4*q+k,14)}")
            e(f"global_store_dwordx4 v6, v[8:11], {WS} offset:{16*q}")
            e.nop(2)
        e("s_mov_b64 exec, -1")
    e.label("L_exit")
    e("s_endpgm")
    e.label("L_fail")
    if cfg.stamps: e("s_mov_b64 exec, -1\ns_branch L_noepoch")
    e("s_endpgm")
    e.label("L_end")
    return e

def render(cfg):
    e = gen(cfg)
    body = e.text()
    hdr = open("cdna_kernels/" + NAME[:-7] + ".s.ref").read().split("; Override launch geometry")[0]
    out = hdr + f"; @launch grid=(256,1,1) block=(512,1,1) lds={LDS_BYTES}\n"
    out += f""".amdgcn_target "amdgcn-amd-amdhsa--gfx950"
.text
.globl {NAME}
.p2align 8
.type {NAME},@function
{NAME}:
{body}.section .rodata,"a"
.p2align 6
.amdhsa_kernel {NAME}
  .amdhsa_next_free_vgpr 256
  .amdhsa_next_free_sgpr 102
  .amdhsa_accum_offset 256
  .amdhsa_group_segment_fixed_size 0
  .amdhsa_kernarg_size 112
  .amdhsa_user_sgpr_count 2
  .amdhsa_user_sgpr_kernarg_segment_ptr 1
  .amdhsa_system_sgpr_workgroup_id_x 1
.end_amdhsa_kernel
"""
    return out, body

if __name__ == "__main__":
    cfg = Cfg()
    outp = sys.argv[1] if len(sys.argv) > 1 else "cdna_kernels/" + NAME[:-7] + ".s"
    for a in sys.argv[2:]:
        k, v = a.split("=")
        setattr(cfg, k, int(v))
    out, body = render(cfg)
    probs = check_hazards(body) + check_kernarg_race(body)
    for p in probs: print("HAZARD", p)
    open(outp, "w").write(out)
    print("wrote", outp, len(out), "bytes;", len(body.splitlines()), "lines")
```

```python
import sys, struct
from asmlib import Emit, check_hazards, check_kernarg_race

NAME = "sequential_preLN__compressed_kv_cla__mixer_token_mlp__decode_kernel"

WS_Q1, WS_Q1F, WS_QA, WS_CTX, WS_OP, WS_CTXF, WS_ST, WS_PART, WS_DBG = 0x10000, 0x20000, 0x50000, 0x60000, 0x70000, 0x90000, 0xC0000, 0x100000, 0x400000
L_CKV = 0
L_WO = 0
L_WQ = 32768
L_WUK = 73728
L_QAS = 131072
QAS_STRIDE = 1056
L_PEX = L_QAS + 8 * QAS_STRIDE
L_MX = L_PEX + 4096
L_LNS = 143872
L_QP = 145152
QP_STRIDE = 288
L_CTXS = 146304
L_BNC = 146560
L_ORED = 147584
L_HS = 149632
L_ST7 = 152192
L_YRED = 152256
LDS_BYTES = 152384

S_W, S_X, S_I, S_ISB = 4, 5, 6, 7
P_X, P_CKV, P_WQ, P_WUK, P_WUV, P_WO, P_W1, P_B1, P_W2, P_B2, P_OUT, P_DBG, P_WS = 8, 10, 12, 14, 16, 18, 22, 24, 26, 28, 30, 32, 34
S_TAG, S_H, S_J, S_CH = 36, 37, 38, 39
SRD_0, SRD_A, SRD_WO, SRD_W1, SRD_B1, SRD_W2 = 40, 44, 48, 52, 56, 60
S_SPIN = 100
S_STAMP = 70

def F32(x): return "0x%08x" % struct.unpack("<I", struct.pack("<f", x))[0]
WS = f"s[{P_WS}:{P_WS+1}]"

class Cfg:
    stamps = 0
    nt = 1
    spin = 1 << 17
    h3sleep = 16
    fast1 = 1
    fast4 = 1
    codepf = 8
    bdelay = 0
    exp_nob = 0
    selftouch = 0
    lsb3 = 1
    ukearly = 0
    outmap = 1
    noepoch = 0
    s7stamps = 0
    touch = 0
    uknt = 1
    tsleep = 0
    planeorder = 1
    hperm = 0
    h3psleep = 0
    b5sleep = 36
    f5sleep = 12
    n5sleep = 36
    ckvnt = 1
    ukbar = 1
    bsleep = 8
    uvpf = 1
    h5sleep = 0
    h4sleep = 0
    h2sleep = 0
    exp_nowuv = 0

def gen(cfg):
    e = Emit()
    NT = " nt" if cfg.nt else ""
    def stamp(k):
        if cfg.stamps:
            e(f"s_memrealtime s[{S_STAMP+2*k}:{S_STAMP+2*k+1}]")
    def dpp_reduce(regs, op="v_add_f32"):
        steps = ["row_shr:1 row_mask:0xf bank_mask:0xf bound_ctrl:0", "row_shr:2 row_mask:0xf bank_mask:0xf bound_ctrl:0",
                 "row_shr:4 row_mask:0xf bank_mask:0xf bound_ctrl:0", "row_shr:8 row_mask:0xf bank_mask:0xf bound_ctrl:0",
                 "row_bcast:15 row_mask:0xa bank_mask:0xf", "row_bcast:31 row_mask:0xc bank_mask:0xf"]
        pad = max(0, 2 - (len(regs) - 1))
        e.nop(2)
        for k, st in enumerate(steps):
            for r in regs:
                e(f"{op}_dpp v{r}, v{r}, v{r} {st}")
            if k < len(steps) - 1 and pad: e.nop(pad)
    def tagchk(acc, tags):
        for k, t in enumerate(tags):
            if k == 0:
                e(f"v_xor_b32 v{acc}, s{S_TAG}, v{t}")
            else:
                e(f"v_bitop3_b32 v{acc}, v{acc}, v{t}, s{S_TAG} bitop3:0xf6")
    def spin_back(lbl_loop):
        e(f"s_sub_u32 s{S_SPIN}, s{S_SPIN}, 1")
        e(f"s_cbranch_scc0 {lbl_loop}")
        e("s_branch L_fail")
    def poll_tail(lbl_loop, lbl_done, acc, sleep=0):
        e(f"v_cmp_ne_u32 vcc, 0, v{acc}")
        e(f"s_cbranch_vccz {lbl_done}")
        if sleep: e(f"s_sleep {sleep}")
        spin_back(lbl_loop)
        e.label(lbl_done)
    def tr_common():
        e("""
        v_bfe_u32 v62, v1, 2, 2
        v_bfe_u32 v63, v1, 1, 1
        v_and_b32 v59, 1, v1
        v_lshlrev_b32 v59, 3, v59
        """)
    def tr256_addr(dst, tmp):
        e(f"""
        v_and_b32 v{dst}, 1, v2
        v_lshl_add_u32 v{dst}, v{dst}, 2, v62
        v_lshlrev_b32 v{dst}, 1, v{dst}
        s_lshl_b32 s3, s{S_W}, 1
        v_add_u32 v{tmp}, s3, v63
        v_xor_b32 v{dst}, v{dst}, v{tmp}
        v_lshl_add_u32 v{dst}, v{dst}, 4, v59
        v_lshl_add_u32 v{tmp}, v2, 3, v62
        v_lshl_add_u32 v{dst}, v{tmp}, 8, v{dst}
        """)
    def tagpat(dst, vsel, tmp):
        e(f"v_lshlrev_b32 v{tmp}, 3, v{vsel}")
        e(f"v_lshrrev_b32 v{tmp}, v{tmp}, s{S_TAG}") if False else e(f"v_mov_b32 v{tmp+1}, s{S_TAG}\nv_lshrrev_b32 v{tmp}, v{tmp}, v{tmp+1}")
        for i in range(4):
            e(f"v_bfe_u32 v{dst+i}, v{tmp}, {2*i}, 1")
            e(f"v_bfe_u32 v{tmp+1}, v{tmp}, {2*i+1}, 1")
            e(f"v_lshl_or_b32 v{dst+i}, v{tmp+1}, 16, v{dst+i}")
    def mk_tag():
        e(f"s_mul_i32 s{S_TAG}, s{S_TAG}, 1664525\ns_add_u32 s{S_TAG}, s{S_TAG}, 1013904223")
    def s7_loads():
        e(f"""
        s_mov_b32 s{SRD_W1}, s{P_W1}
        s_mov_b32 s{SRD_W1+1}, s{P_W1+1}
        s_mov_b32 s{SRD_W1+2}, 3456
        s_mov_b32 s{SRD_W1+3}, 0x20000
        s_mov_b32 s{SRD_B1}, s{P_B1}
        s_mov_b32 s{SRD_B1+1}, s{P_B1+1}
        s_mov_b32 s{SRD_B1+2}, 3456
        s_mov_b32 s{SRD_B1+3}, 0x20000
        s_mov_b32 s{SRD_W2}, s{P_W2}
        s_mov_b32 s{SRD_W2+1}, s{P_W2+1}
        s_mov_b32 s{SRD_W2+2}, 3456
        s_mov_b32 s{SRD_W2+3}, 0x20000
        s_lshl_b32 s3, s{S_W}, 8
        v_lshl_add_u32 v4, v1, 2, s3
        buffer_load_dword v224, v4, s[{SRD_W1}:{SRD_W1+3}], 0 offen
        buffer_load_dword v225, v4, s[{SRD_W1}:{SRD_W1+3}], 0 offen offset:2048
        buffer_load_dword v226, v4, s[{SRD_B1}:{SRD_B1+3}], 0 offen
        buffer_load_dword v227, v4, s[{SRD_B1}:{SRD_B1+3}], 0 offen offset:2048
        buffer_load_dword v228, v4, s[{SRD_W2}:{SRD_W2+3}], 0 offen
        buffer_load_dword v229, v4, s[{SRD_W2}:{SRD_W2+3}], 0 offen offset:2048
        v_mov_b32 v4, 0
        global_load_ushort v231, v4, s[{P_B2}:{P_B2+1}]
        s_min_u32 s3, s{S_W}, 4
        s_lshl_b32 s3, s3, 8
        v_and_b32 v4, 31, v1
        v_lshlrev_b32 v4, 3, v4
        v_lshrrev_b32 v230, 5, v1
        v_lshl_add_u32 v4, v230, 2, v4
        v_add_u32 v4, s3, v4
        global_load_dword v230, v4, s[{P_X}:{P_X+1}]
        """)
    OUTIDX = ("s_lshr_b32 s101, s2, 3\ns_mul_i32 s101, s101, 3\ns_mul_i32 s3, s5, 80\ns_add_u32 s101, s101, s3" if cfg.outmap else "s_mul_i32 s101, s2, 3")
    def s7_prep():
        for k, (raw, dst) in enumerate([(224, 232), (225, 234), (226, 236), (227, 238), (228, 240), (229, 242)]):
            e(f"v_lshlrev_b32 v{dst}, 16, v{raw}\nv_and_b32 v{dst+1}, 0xffff0000, v{raw}")
        e(f"""
        v_lshrrev_b32 v57, 5, v1
        v_mul_u32_u24 v244, 2560, v57
        v_and_b32 v58, 31, v1
        v_lshl_add_u32 v244, v58, 4, v244
        s_lshl_b32 s3, s{S_W}, 9
        s_add_u32 s64, s3, {WS_OP}
        v_add_u32 v244, s64, v244
        v_add_u32 v245, 5120, v244
        v_add_u32 v246, 10240, v244
        v_add_u32 v247, 15360, v244
        s_add_u32 s3, s3, {L_HS}
        v_lshlrev_b32 v248, 4, v58
        v_lshl_add_u32 v248, v57, 3, v248
        v_add_u32 v248, s3, v248
        v_lshlrev_b32 v58, 16, v230
        v_and_b32 v59, 0xffff0000, v230
        v_mov_b32 v60, {F32(1.0/640)}
        v_mov_b32 v61, {F32(1.0 + 1e-5)}
        v_mov_b32 v65, {F32(1e-10)}
        v_mov_b32 v64, {F32(-2.0*0.7978845608028654*1.4426950408889634)}
        v_mov_b32 v66, {F32(-2.0*0.7978845608028654*1.4426950408889634*0.044715)}
        v_mov_b32 v62, {L_ST7}
        {OUTIDX}
        s_lshl_b32 s3, s101, 2
        s_add_u32 s3, s3, {L_HS}
        v_mov_b32 v63, s3
        s_lshl_b32 s3, s{S_W}, 3
        s_add_u32 s3, s3, {L_ST7}
        v_mov_b32 v68, s3
        s_lshl_b32 s3, s{S_W}, 4
        s_add_u32 s3, s3, {L_YRED}
        v_mov_b32 v69, s3
        v_mov_b32 v113, 0
        v_add_u32 v8, s101, v1
        v_lshlrev_b32 v6, 2, v1
        v_add_u32 v6, {L_YRED}, v6
        v_lshlrev_b32 v7, 2, v8
        v_add_u32 v7, {L_HS}, v7
        v_lshlrev_b32 v9, 16, v231
        """)

    def uk_dma(bar):
        e(f"""
        s_mov_b32 s{SRD_A}, s{P_WUK}
        s_mov_b32 s{SRD_A+1}, s{P_WUK+1}
        s_mov_b32 s{SRD_A+2}, 4194304
        s_mov_b32 s{SRD_A+3}, 0x20000
        s_and_b32 s66, s{S_W}, 1
        s_lshl_b32 s66, s66, 3
        v_lshlrev_b32 v7, 1, v2
        v_xor_b32 v7, v7, v3
        v_xor_b32 v7, s66, v7
        v_lshlrev_b32 v7, 4, v7
        v_lshl_add_u32 v7, v2, 13, v7
        s_lshl_b32 s64, s{S_J}, 5
        s_add_u32 s64, s64, s{S_W}
        s_lshl_b32 s64, s64, 15
        s_lshl_b32 s65, s{S_H}, 8
        s_add_u32 s64, s64, s65
        s_lshl_b32 s67, s{S_W}, 10
        s_add_u32 s67, s67, {L_WUK}
        """)
        if bar: e("s_barrier")
        for ii in range(8):
            e(f"""
            s_mov_b32 m0, s67
            s_add_u32 s67, s67, 4096
            buffer_load_dwordx4 v7, s[{SRD_A}:{SRD_A+3}], s64 offen{NT} lds
            s_add_u32 s64, s64, {4*4*8192}
            """)

    e(f"""
    s_cmp_ge_u32 s2, 256
    s_cbranch_scc1 L_exit
    s_load_dwordx16 s[8:23], s[0:1], 0
    s_load_dwordx4 s[32:35], s[0:1], 96
    s_load_dwordx8 s[24:31], s[0:1], 64
    """)
    if cfg.codepf:
        e(f"""
        s_cmp_lt_u32 s2, {cfg.codepf}
        s_cbranch_scc0 L_nopf
        s_getpc_b64 s[64:65]
        """)
        e.label("L_pc")
        e(f"""
        s_and_b32 s64, s64, 0xffffff00
        v_lshlrev_b32 v203, 7, v0
        v_min_u32 v203, L_end-L_pc-4, v203
        v_mov_b32 v201, s65
        v_add_co_u32 v200, vcc, s64, v203
        s_nop 1
        v_addc_co_u32 v201, vcc, 0, v201, vcc
        global_load_dword v202, v[200:201], off
        """)
        e.label("L_nopf")
    if cfg.stamps:
        e(f"s_memrealtime s[{S_STAMP}:{S_STAMP+1}]")
        for k in range(1, 15): e(f"s_mov_b32 s{S_STAMP+2*k}, 0")
    e(f"""
    v_and_b32 v1, 63, v0
    v_lshrrev_b32 v4, 6, v0
    v_lshrrev_b32 v2, 4, v1
    v_readfirstlane_b32 s{S_W}, v4
    v_and_b32 v3, 15, v1
    s_and_b32 s{S_X}, s2, 7
    s_bfe_u32 s{S_I}, s2, 0x40003
    s_lshr_b32 s{S_H}, s{S_I}, 2
    s_xor_b32 s{S_H}, s{S_H}, {cfg.hperm}
    s_lshl_b32 s3, s{S_X}, 2
    s_add_u32 s{S_H}, s{S_H}, s3
    s_and_b32 s{S_J}, s{S_I}, 3
    s_mov_b32 s{SRD_0+3}, 0x20000
    s_mov_b32 s{S_SPIN}, {cfg.spin}
    s_cmp_ge_u32 s2, 128
    s_cbranch_scc1 L_B0
    """)
    e(f"""
    s_lshl_b32 s66, s{S_W}, 2
    s_and_b32 s66, s66, 8
    s_mul_i32 s64, s{S_J}, 40
    s_add_u32 s64, s64, s{S_W}
    s_lshl_b32 s64, s64, 15
    s_lshl_b32 s65, s{S_H}, 8
    s_add_u32 s64, s64, s65
    s_lshl_b32 s67, s{S_W}, 10
    s_add_u32 s67, s67, {L_WQ}
    s_mov_b32 s{SRD_0+2}, 5242880
    v_lshlrev_b32 v7, 1, v2
    v_xor_b32 v7, v7, v3
    v_xor_b32 v7, s66, v7
    v_lshlrev_b32 v7, 4, v7
    v_lshl_add_u32 v7, v2, 13, v7
    v_lshlrev_b32 v6, 2, v1
    s_cmp_eq_u32 s{S_W}, 0
    s_waitcnt lgkmcnt(0)
    s_mov_b32 s{SRD_0}, s{P_WQ}
    s_mov_b32 s{SRD_0+1}, s{P_WQ+1}
    s_cbranch_scc0 L_f_nox
    """)
    for k in range(5):
        e(f"global_load_dword v{8+k}, v6, s[{P_X}:{P_X+1}] offset:{256*k}")
    e.label("L_f_nox")
    for ii in range(5):
        e(f"""
        s_mov_b32 m0, s67
        s_add_u32 s67, s67, 8192
        buffer_load_dwordx4 v7, s[{SRD_0}:{SRD_0+3}], s64 offen{NT} lds
        s_add_u32 s64, s64, {8*4*8192}
        """)
    if cfg.selftouch:
        e(f"""
        v_bfe_u32 v4, v1, 1, 4
        s_lshl_b32 s3, s{S_J}, 7
        s_lshl_b32 s64, s{S_W}, 4
        s_add_u32 s3, s3, s64
        v_add_u32 v4, s3, v4
        v_lshlrev_b32 v4, 13, v4
        v_and_b32 v5, 1, v1
        v_lshl_add_u32 v4, v5, 7, v4
        s_lshl_b32 s3, s{S_H}, 8
        v_add_u32 v4, s3, v4
        s_mov_b64 exec, 0xffffffff
        global_load_dword v200, v4, s[{P_WUK}:{P_WUK+1}] nt
        s_mov_b64 exec, -1
        """)
    if cfg.ukearly:
        e("s_barrier")
        e(f"s_cmp_lt_u32 s{S_W}, 4\ns_cbranch_scc0 L_f_nouk")
        uk_dma(False)
        e.label("L_f_nouk")
    e(f"""
    s_load_dword s{S_TAG}, {WS}, 0
    s_branch L_F1
    """)
    e.label("L_B0")
    if cfg.exp_nob: e("s_endpgm")
    e(f"""
    s_lshl_b32 s3, s{S_W}, 1
    v_xor_b32 v7, s3, v1
    v_lshlrev_b32 v7, 4, v7
    s_lshl_b32 s{S_CH}, s{S_X}, 2
    s_add_u32 s{S_CH}, s{S_CH}, s{S_J}
    s_lshl_b32 s66, s{S_CH}, 17
    s_and_b32 s67, s{S_I}, 12
    s_lshl_b32 s67, s67, 13
    s_lshl_b32 s65, s{S_W}, 10
    s_add_u32 s67, s67, s65
    s_mov_b32 s{SRD_0+2}, 4194304
    s_mov_b32 s68, 15
    v_bfe_u32 v4, v1, 1, 4
    s_lshl_b32 s3, s{S_J}, 7
    s_lshl_b32 s64, s{S_W}, 4
    s_add_u32 s3, s3, s64
    v_add_u32 v4, s3, v4
    v_lshlrev_b32 v4, 13, v4
    v_and_b32 v5, 1, v1
    v_lshl_add_u32 v4, v5, 7, v4
    s_lshl_b32 s3, s{S_H}, 8
    v_add_u32 v4, s3, v4
    s_waitcnt lgkmcnt(0)
    s_mov_b32 s{SRD_0}, s{P_CKV}
    s_mov_b32 s{SRD_0+1}, s{P_CKV+1}
    """)
    if cfg.tsleep: e(f"s_sleep {cfg.tsleep}")
    if cfg.touch: e(f"""
    s_mov_b64 exec, 0xffffffff
    global_load_dword v200, v4, s[{P_WUK}:{P_WUK+1}]{" nt" if cfg.uknt else ""}
    s_mov_b64 exec, -1
    """)
    if cfg.bdelay: e(f"s_load_dword s{S_TAG}, {WS}, 0\ns_waitcnt lgkmcnt(0)")
    if cfg.bsleep: e(f"s_sleep {cfg.bsleep}")
    e.label("L_b_dma")
    e(f"""
    s_mov_b32 m0, s67
    s_add_u32 s69, s67, s66
    buffer_load_dwordx4 v7, s[{SRD_0}:{SRD_0+3}], s69 offen{" nt" if cfg.ckvnt else ""} lds
    s_add_u32 s67, s67, 8192
    s_and_b32 s67, s67, 0x1ffff
    s_sub_u32 s68, s68, 1
    s_cbranch_scc0 L_b_dma
    """)
    if not cfg.bdelay: e(f"s_load_dword s{S_TAG}, {WS}, 0")
    e("s_branch L_B1")

    e.label("L_F1")
    e(f"s_mov_b32 s{S_ISB}, 0")
    stamp(1)
    tr_common()
    e(f"""
    v_and_b32 v41, 1, v2
    v_lshl_add_u32 v41, v41, 2, v62
    v_lshlrev_b32 v41, 1, v41
    s_and_b32 s65, s{S_W}, 3
    s_lshl_b32 s3, s65, 2
    v_add_u32 v42, s3, v63
    v_xor_b32 v41, v41, v42
    v_lshl_add_u32 v41, v41, 4, v59
    v_lshl_add_u32 v42, v2, 3, v62
    v_lshl_add_u32 v41, v42, 8, v41
    v_add_u32 v41, {L_WQ}, v41
    v_xor_b32 v40, 32, v41
    s_mul_i32 s3, s{S_J}, 320
    s_add_u32 s3, s3, {L_LNS}
    v_lshl_add_u32 v42, v2, 4, s3
    s_lshl_b32 s3, s{S_H}, 2
    s_add_u32 s3, s3, s{S_J}
    s_lshl_b32 s3, s3, 9
    s_lshl_b32 s64, s65, 7
    s_add_u32 s3, s3, s64
    s_add_u32 s65, s3, {WS_Q1}
    v_and_b32 v43, 1, v1
    v_lshlrev_b32 v43, 6, v43
    v_lshl_add_u32 v43, v2, 4, v43
    v_add_u32 v43, s65, v43
    v_add_u32 v44, {WS_Q1F-WS_Q1}, v43
    s_lshl_b32 s64, s{S_W}, 6
    s_lshl_b32 s3, s{S_H}, 2
    s_and_b32 s65, s{S_W}, 3
    s_add_u32 s3, s3, s65
    s_lshl_b32 s3, s3, 9
    s_add_u32 s3, s3, {WS_Q1}
    v_lshl_add_u32 v45, v1, 3, s3
    v_add_u32 v49, {WS_Q1F-WS_Q1}, v45
    s_mul_i32 s3, s65, {QP_STRIDE}
    s_add_u32 s3, s3, {L_QP}
    v_lshl_add_u32 v46, v1, 2, s3
    v_and_b32 v47, 3, v3
    v_mul_u32_u24 v47, {QP_STRIDE}, v47
    v_lshl_add_u32 v47, v2, 4, v47
    v_add_u32 v47, {L_QP}, v47
    s_and_b32 s66, s{S_W}, 3
    s_lshl_b32 s3, s{S_H}, 11
    s_lshl_b32 s65, s{S_J}, 9
    s_add_u32 s3, s3, s65
    s_lshl_b32 s64, s66, 7
    s_add_u32 s3, s3, s64
    s_add_u32 s65, s3, {WS_QA}
    v_and_b32 v48, 1, v1
    v_lshlrev_b32 v48, 6, v48
    v_lshl_add_u32 v48, v2, 4, v48
    v_add_u32 v48, s65, v48
    s_lshl_b32 s3, s66, 5
    v_add_u32 v24, s3, v3
    v_lshlrev_b32 v24, 8, v24
    v_and_b32 v25, 7, v3
    v_lshlrev_b32 v25, 1, v25
    v_xor_b32 v25, v25, v2
    v_lshl_add_u32 v24, v25, 4, v24
    v_add_u32 v24, {L_WUK}, v24
    v_xor_b32 v25, 64, v24
    v_xor_b32 v26, 128, v24
    v_xor_b32 v27, 192, v24
    s_cmp_eq_u32 s{S_W}, 0
    s_cbranch_scc0 L_f_noln
    """)
    e(f"s_waitcnt vmcnt({13 if cfg.ukearly else 5 + cfg.selftouch})")
    stamp(2)
    for k in range(5):
        e(f"v_lshlrev_b32 v{64+2*k}, 16, v{8+k}")
        e(f"v_and_b32 v{65+2*k}, 0xffff0000, v{8+k}")
    e(f"""
    v_pk_add_f32 v[74:75], v[64:65], v[66:67]
    v_pk_add_f32 v[76:77], v[68:69], v[70:71]
    v_pk_add_f32 v[74:75], v[74:75], v[72:73]
    v_pk_add_f32 v[74:75], v[74:75], v[76:77]
    v_mov_b32 v78, {F32(-1.0/640)}
    v_add_f32 v74, v74, v75
    """)
    dpp_reduce([74])
    e.nop(1)
    e("v_readlane_b32 s20, v74, 63")
    e(f"v_mov_b32 v80, {F32(1.0/640)}\nv_mov_b32 v81, {F32(1e-5)}")
    e("v_mul_f32 v78, s20, v78")
    for k in range(5):
        e(f"v_pk_add_f32 v[{64+2*k}:{65+2*k}], v[{64+2*k}:{65+2*k}], v[78:79] op_sel_hi:[1,0]")
    e("v_pk_mul_f32 v[74:75], v[64:65], v[64:65]")
    for k in range(1, 5):
        e(f"v_pk_fma_f32 v[74:75], v[{64+2*k}:{65+2*k}], v[{64+2*k}:{65+2*k}], v[74:75]")
    e("v_add_f32 v74, v74, v75")
    dpp_reduce([74])
    e.nop(1)
    e("v_readlane_b32 s21, v74, 63")
    e(f"v_mov_b32 v82, {F32(128**-0.5 * 1.4426950408889634)}")
    e(f"v_add_u32 v6, {L_LNS}, v6")
    e("v_fma_f32 v74, s21, v80, v81")
    e("v_rsq_f32 v74, v74")
    e.nop(1)
    e("v_mul_f32 v74, v74, v82")
    for k in range(5):
        e(f"v_pk_mul_f32 v[{64+2*k}:{65+2*k}], v[{64+2*k}:{65+2*k}], v[74:75] op_sel_hi:[1,0]")
    for k in range(5):
        e(f"v_cvt_pk_bf16_f32 v{8+k}, v{64+2*k}, v{65+2*k}")
        e(f"ds_write_b32 v6, v{8+k} offset:{256*k}")
    e.label("L_f_noln")
    if cfg.ukearly:
        e(f"s_cmp_lt_u32 s{S_W}, 4\ns_cbranch_scc0 L_f_w0\ns_waitcnt vmcnt(8)\ns_branch L_f_w1")
        e.label("L_f_w0")
        e("s_waitcnt vmcnt(0)")
        e.label("L_f_w1")
        e("s_waitcnt lgkmcnt(0)")
    else:
        e(f"s_waitcnt vmcnt({cfg.selftouch}) lgkmcnt(0)")
    mk_tag()
    e("s_barrier")
    stamp(3)
    e(f"v_mov_b32 v105, s{S_TAG}\nv_mov_b32 v107, s{S_TAG}")
    e(f"s_cmp_lt_u32 s{S_W}, 4\ns_cbranch_scc1 L_f_uk")
    for ks in range(5):
        e(f"ds_read_b128 v[{84+4*ks}:{87+4*ks}], v42 offset:{64*ks}")
        e(f"ds_read_b64_tr_b16 v[{64+4*ks}:{65+4*ks}], v41 offset:{8192*ks}")
        e(f"ds_read_b64_tr_b16 v[{66+4*ks}:{67+4*ks}], v41 offset:{8192*ks+1024}")
        e(f"ds_read_b64_tr_b16 v[{112+4*ks}:{113+4*ks}], v40 offset:{8192*ks}")
        e(f"ds_read_b64_tr_b16 v[{114+4*ks}:{115+4*ks}], v40 offset:{8192*ks+1024}")
    e("s_mov_b32 s64, 0xaaaaaaaa\ns_mov_b32 s65, 0xaaaaaaaa")
    for ks in range(5):
        e(f"s_waitcnt lgkmcnt({min(15, 20-5*ks)})")
        c = "0" if ks == 0 else "v[108:111]"
        e(f"v_mfma_f32_16x16x32_bf16 v[108:111], v[{64+4*ks}:{67+4*ks}], v[{84+4*ks}:{87+4*ks}], {c}")
        c = "0" if ks == 0 else "v[132:135]"
        e(f"v_mfma_f32_16x16x32_bf16 v[132:135], v[{112+4*ks}:{115+4*ks}], v[{84+4*ks}:{87+4*ks}], {c}")
    e("s_mov_b32 exec_lo, 0x00030003\ns_mov_b32 exec_hi, 0x00030003")
    e.nop(6)
    for r in range(4):
        e(f"v_cndmask_b32 v{108+r}, v{108+r}, v{132+r}, s[64:65]")
    e("""
    v_cvt_pk_bf16_f32 v104, v108, v109
    v_cvt_pk_bf16_f32 v106, v110, v111
    """)
    if cfg.fast1: e(f"global_store_dwordx4 v44, v[104:107], {WS}")
    e(f"global_store_dwordx4 v43, v[104:107], {WS} sc1\ns_mov_b64 exec, -1")
    stamp(4)
    e(("" if cfg.ukearly else "s_barrier\n") + "s_branch L_h1_bar")
    e.label("L_f_uk")
    if not cfg.ukearly: uk_dma(True)
    e.label("L_h1")
    if cfg.fast1:
        e(f"global_load_dwordx2 v[66:67], v49, {WS} sc1")
        e(f"global_load_dwordx2 v[64:65], v45, {WS} sc1\ns_waitcnt vmcnt(0)")
        e(f"v_cmp_eq_u32 vcc, s{S_TAG}, v67")
        e.nop(2)
        e("v_cndmask_b32 v64, v64, v66, vcc\nv_cndmask_b32 v65, v65, v67, vcc")
    else:
        e(f"global_load_dwordx2 v[64:65], v45, {WS} sc1\ns_waitcnt vmcnt(0)")
    e(f"v_cmp_ne_u32 vcc, s{S_TAG}, v65")
    e(f"s_cbranch_vccz L_h1_done")
    spin_back("L_h1")
    e.label("L_h1_done")
    stamp(8)
    stamp(7)
    e("ds_write_b32 v46, v64")
    e.label("L_h1_bar")
    e("s_waitcnt lgkmcnt(0)\ns_barrier")
    stamp(5)
    e(f"s_cmp_lt_u32 s{S_W}, 4\ns_cbranch_scc1 L_f_nos2")
    for t in range(4):
        e(f"ds_read_b128 v[{64+4*t}:{67+4*t}], v47 offset:{64*t}")
        e(f"ds_read_b128 v[{80+4*t}:{83+4*t}], v{24+t}")
        e(f"ds_read_b128 v[{112+4*t}:{115+4*t}], v{24+t} offset:4096")
    e("s_mov_b32 s64, 0xaaaaaaaa\ns_mov_b32 s65, 0xaaaaaaaa")
    for t in range(4):
        e(f"s_waitcnt lgkmcnt({9-3*t})")
        c = "0" if t == 0 else "v[108:111]"
        e(f"v_mfma_f32_16x16x32_bf16 v[108:111], v[{80+4*t}:{83+4*t}], v[{64+4*t}:{67+4*t}], {c}")
        c = "0" if t == 0 else "v[132:135]"
        e(f"v_mfma_f32_16x16x32_bf16 v[132:135], v[{112+4*t}:{115+4*t}], v[{64+4*t}:{67+4*t}], {c}")
    e.nop(7)
    for st in ("row_ror:1", "row_ror:2"):
        for r in list(range(108, 112)) + list(range(132, 136)):
            e(f"v_add_f32_dpp v{r}, v{r}, v{r} {st} row_mask:0xf bank_mask:0xf")
    e("s_mov_b32 exec_lo, 0x00030003\ns_mov_b32 exec_hi, 0x00030003")
    for r in range(4):
        e(f"v_cndmask_b32 v{108+r}, v{108+r}, v{132+r}, s[64:65]")
    e("""
    v_cvt_pk_bf16_f32 v104, v108, v109
    v_cvt_pk_bf16_f32 v106, v110, v111
    """)
    e(f"global_store_dwordx4 v48, v[104:107], {WS} sc1\ns_mov_b64 exec, -1")
    stamp(6)
    e.label("L_f_nos2")
    e("s_barrier")
    if cfg.uvpf:
        e(f"""
        v_lshrrev_b32 v4, 1, v1
        s_lshl_b32 s3, s{S_J}, 7
        s_lshl_b32 s64, s{S_W}, 4
        s_add_u32 s3, s3, s64
        v_and_b32 v4, 15, v4
        v_add_u32 v4, s3, v4
        v_lshlrev_b32 v4, 13, v4
        v_and_b32 v5, 1, v1
        v_lshl_add_u32 v4, v5, 7, v4
        s_lshl_b32 s3, s{S_H}, 8
        v_add_u32 v4, s3, v4
        s_mov_b64 exec, 0xffffffff
        global_load_dword v5, v4, s[{P_WUV}:{P_WUV+1}]{NT}
        s_mov_b64 exec, -1
        """)
    e(f"s_cmp_lt_u32 s{S_I}, 10\ns_cbranch_scc1 L_s6")
    s7_loads()
    e("s_waitcnt vmcnt(0)")
    s7_prep()
    if cfg.n5sleep:
        e(f"""
        s_cmp_lt_u32 s{S_W}, 5
        s_cbranch_scc0 L_S7
        s_lshl_b32 s3, s{S_H}, 2
        s_add_u32 s3, s3, s{S_J}
        s_lshl_b32 s3, s3, 9
        s_add_u32 s3, s3, {WS_CTX}
        v_mov_b32 v40, s3
        """)
        e.label("L_sent")
        e(f"""
        global_load_dwordx2 v[42:43], v40, {WS} sc1
        s_waitcnt vmcnt(0)
        v_cmp_ne_u32 vcc, s{S_TAG}, v43
        s_cbranch_vccz L_sent_done
        s_sleep 8
        """)
        spin_back("L_sent")
        e.label("L_sent_done")
        e(f"s_sleep {cfg.n5sleep}")
    e("s_branch L_S7")
    e.label("L_s6")
    e(f"""
    s_mov_b32 s{SRD_WO}, s{P_WO}
    s_mov_b32 s{SRD_WO+1}, s{P_WO+1}
    s_mov_b32 s{SRD_WO+2}, 5242880
    s_mov_b32 s{SRD_WO+3}, 0x20000
    v_lshrrev_b32 v12, 3, v1
    v_mul_u32_u24 v50, 1280, v12
    v_and_b32 v12, 2, v12
    v_and_b32 v13, 7, v1
    v_xor_b32 v12, v12, v13
    v_lshl_add_u32 v50, v12, 4, v50
    v_xor_b32 v51, 64, v50
    s_lshl_b32 s3, s{S_X}, 3
    s_add_u32 s3, s3, s{S_W}
    s_mul_i32 s20, s3, {64*1280}
    s_lshl_b32 s65, s{S_I}, 7
    s_add_u32 s20, s20, s65
    s_lshl_b32 s21, s{S_W}, 13
    """)
    for ii in range(8):
        e(f"""
        s_mov_b32 m0, s21
        s_add_u32 s21, s21, 1024
        buffer_load_dwordx4 v{50+(ii&1)}, s[{SRD_WO}:{SRD_WO+3}], s20 offen{NT} lds
        s_add_u32 s20, s20, {8*1280}
        """)
    s7_loads()
    tr_common()
    e(f"""
    v_lshl_add_u32 v12, v2, 3, v62
    v_lshlrev_b32 v12, 7, v12
    v_add_u32 v12, v12, v59
    s_lshl_b32 s3, s{S_W}, 13
    v_add_u32 v12, s3, v12
    v_and_b32 v13, 1, v2
    v_lshlrev_b32 v13, 2, v13
    v_and_b32 v14, 2, v62
    v_or_b32 v13, v13, v14
    v_xor_b32 v13, v13, v63
    v_lshl_add_u32 v249, v13, 4, v12
    v_xor_b32 v250, 32, v249
    v_xor_b32 v251, 64, v249
    v_xor_b32 v252, 96, v249
    s_lshr_b32 s3, s{S_W}, 1
    s_lshl_b32 s64, s{S_X}, 2
    s_add_u32 s3, s3, s64
    s_lshl_b32 s3, s3, 11
    s_and_b32 s64, s{S_W}, 1
    s_lshl_b32 s64, s64, 8
    s_add_u32 s3, s3, s64
    s_add_u32 s3, s3, {WS_CTX}
    v_lshlrev_b32 v52, 9, v2
    v_lshl_add_u32 v52, v3, 4, v52
    v_add_u32 v52, s3, v52
    v_add_u32 v53, {WS_CTXF-WS_CTX}, v52
    s_lshl_b32 s3, s{S_W}, 7
    s_add_u32 s3, s3, {L_BNC}
    v_lshl_add_u32 v54, v3, 2, v2
    v_lshlrev_b32 v54, 1, v54
    v_add_u32 v54, s3, v54
    v_lshl_add_u32 v55, v2, 4, s3
    s_lshl_b32 s3, s{S_W}, 8
    s_add_u32 s3, s3, {L_ORED}
    v_lshl_add_u32 v253, v2, 4, s3
    v_lshlrev_b32 v254, 3, v1
    v_add_u32 v254, {L_ORED}, v254
    s_mul_i32 s3, s{S_X}, 2560
    s_lshl_b32 s64, s{S_I}, 8
    s_add_u32 s3, s3, s64
    s_add_u32 s3, s3, {WS_OP}
    v_lshl_add_u32 v255, v1, 3, s3
    s_waitcnt vmcnt(0)
    """)
    stamp(9)
    for tt in range(4):
        for ks in range(2):
            r = 80 + 8 * tt + 4 * ks
            e(f"ds_read_b64_tr_b16 v[{r}:{r+1}], v{249+tt} offset:{4096*ks}")
            e(f"ds_read_b64_tr_b16 v[{r+2}:{r+3}], v{249+tt} offset:{4096*ks+512}")
    s7_prep()
    e.label("L_h4")
    if cfg.fast4:
        e(f"global_load_dwordx4 v[44:47], v53, {WS} sc1")
        e(f"global_load_dwordx4 v[40:43], v52, {WS} sc1\ns_waitcnt vmcnt(0)")
        tagchk(48, [45, 47])
        e("v_cmp_eq_u32 vcc, 0, v48")
        e.nop(2)
        for k in range(4): e(f"v_cndmask_b32 v{40+k}, v{40+k}, v{44+k}, vcc")
    else:
        e(f"global_load_dwordx4 v[40:43], v52, {WS} sc1\ns_waitcnt vmcnt(0)")
    tagchk(48, [41, 43])
    poll_tail("L_h4", "L_h4_done", 48, cfg.h4sleep)
    stamp(10)
    e("""
    v_lshlrev_b32 v44, 16, v40
    v_and_b32 v45, 0xffff0000, v40
    v_lshlrev_b32 v46, 16, v42
    v_and_b32 v47, 0xffff0000, v42
    s_nop 1
    v_permlane32_swap_b32 v44, v46
    v_permlane32_swap_b32 v45, v47
    v_add_f32 v44, v44, v46
    v_add_f32 v45, v45, v47
    s_nop 1
    v_permlane16_swap_b32 v44, v45
    v_add_f32 v44, v44, v45
    v_cvt_pk_bf16_f32 v44, v44, v44
    ds_write_b16 v54, v44
    s_waitcnt lgkmcnt(0)
    ds_read_b128 v[112:115], v55
    ds_read_b128 v[116:119], v55 offset:64
    """)
    for ks in range(2):
        e(f"s_waitcnt lgkmcnt({1-ks})")
        for tt in range(4):
            c = "0" if ks == 0 else f"v[{120+4*tt}:{123+4*tt}]"
            r = 80 + 8 * tt + 4 * ks
            e(f"v_mfma_f32_16x16x32_bf16 v[{120+4*tt}:{123+4*tt}], v[{r}:{r+3}], v[{112+4*ks}:{115+4*ks}], {c}")
    e("s_mov_b32 exec_lo, 0x00010001\ns_mov_b32 exec_hi, 0x00010001")
    e.nop(3)
    for tt in range(4):
        e(f"ds_write_b128 v253, v[{120+4*tt}:{123+4*tt}] offset:{64*tt}")
    e(f"""
    s_mov_b64 exec, -1
    s_waitcnt lgkmcnt(0)
    s_barrier
    s_cmp_eq_u32 s{S_W}, 7
    s_cbranch_scc0 L_s6_w
    s_mov_b64 exec, 0xffffffff
    """)
    for w in range(8):
        e(f"ds_read_b64 v[{40+2*w}:{41+2*w}], v254 offset:{256*w}")
    e(f"""
    v_mov_b32 v57, s{S_TAG}
    s_waitcnt lgkmcnt(0)
    v_pk_add_f32 v[40:41], v[40:41], v[42:43]
    v_pk_add_f32 v[44:45], v[44:45], v[46:47]
    v_pk_add_f32 v[48:49], v[48:49], v[50:51]
    v_pk_add_f32 v[52:53], v[52:53], v[54:55]
    v_pk_add_f32 v[40:41], v[40:41], v[44:45]
    v_pk_add_f32 v[48:49], v[48:49], v[52:53]
    v_pk_add_f32 v[40:41], v[40:41], v[48:49]
    v_cvt_pk_bf16_f32 v56, v40, v41
    global_store_dwordx2 v255, v[56:57], {WS} sc1
    s_mov_b64 exec, -1
    """)
    stamp(11)
    e("s_branch L_S7")
    e.label("L_s6_w")
    if cfg.f5sleep: e(f"s_sleep {cfg.f5sleep}")
    e("s_branch L_S7")

    e.label("L_B1")
    e(f"s_mov_b32 s{S_ISB}, 1")
    stamp(1)
    e(f"""
    s_lshr_b32 s3, s{S_I}, 2
    s_lshl_b32 s3, s3, 3
    s_add_u32 s3, s3, s{S_W}
    s_lshl_b32 s3, s3, 11
    s_add_u32 s3, s3, {WS_QA}
    v_lshl_add_u32 v5, v1, 5, s3
    s_mul_i32 s3, s{S_W}, {QAS_STRIDE}
    s_add_u32 s3, s3, {L_QAS}
    v_lshl_add_u32 v6, v1, 4, s3
    """)
    tr_common()
    e(f"s_cmp_lt_u32 s{S_W}, 4\ns_cbranch_scc0 L_bp_prep")
    def h2_poll(sfx):
        e("s_waitcnt vmcnt(0)\ns_branch L_h2_chk" + sfx)
        e.label("L_h2" + sfx)
        e(f"""
        global_load_dwordx4 v[40:43], v5, {WS} sc1
        global_load_dwordx4 v[44:47], v5, {WS} offset:16 sc1
        s_waitcnt vmcnt(0)
        """)
        e.label("L_h2_chk" + sfx)
        tagchk(4, [41, 43, 45, 47])
        poll_tail("L_h2" + sfx, "L_h2_done" + sfx, 4, cfg.h2sleep)
        stamp(5)
        e(f"""
        v_mov_b32 v41, v42
        v_mov_b32 v42, v44
        v_mov_b32 v43, v46
        ds_write_b128 v6, v[40:43]
        s_waitcnt lgkmcnt(0)
        s_barrier
        """)
    e(f"""
    s_lshl_b32 s3, s{S_W}, 5
    v_add_u32 v12, s3, v3
    v_lshlrev_b32 v12, 10, v12
    v_and_b32 v13, 7, v1
    v_lshlrev_b32 v13, 1, v13
    v_xor_b32 v13, v13, v2
    v_lshl_add_u32 v8, v13, 4, v12
    v_xor_b32 v9, 64, v8
    v_xor_b32 v10, 128, v8
    v_xor_b32 v11, 192, v8
    v_and_b32 v216, 7, v3
    v_lshlrev_b32 v217, 4, v216
    v_mul_u32_u24 v216, {QAS_STRIDE}, v216
    v_lshl_add_u32 v216, v2, 4, v216
    v_add_u32 v216, {L_QAS}, v216
    v_add_u32 v217, {L_MX}, v217
    s_lshl_b32 s3, s{S_W}, 2
    v_add_u32 v218, s3, v217
    s_lshl_b32 s3, s{S_W}, 10
    s_add_u32 s3, s3, {L_PEX}
    v_lshl_add_u32 v219, v1, 4, s3
    v_and_b32 v220, 1, v2
    v_lshl_add_u32 v220, v220, 2, v62
    v_lshlrev_b32 v220, 1, v220
    s_lshl_b32 s3, s{S_W}, 2
    v_add_u32 v12, s3, v63
    v_xor_b32 v220, v220, v12
    v_lshl_add_u32 v220, v220, 4, v59
    v_lshl_add_u32 v12, v2, 3, v62
    v_lshl_add_u32 v220, v12, 8, v220
    v_xor_b32 v221, 32, v220
    s_lshl_b32 s3, s{S_H}, 10
    s_lshl_b32 s65, s{S_J}, 8
    s_add_u32 s3, s3, s65
    s_lshl_b32 s64, s{S_W}, 6
    s_add_u32 s3, s3, s64
    s_add_u32 s65, s3, {WS_PART}
    s_lshl_b32 s64, s{S_W}, 7
    v_lshrrev_b32 v12, 2, v1
    v_and_b32 v13, 3, v1
    v_lshlrev_b32 v222, 15, v12
    v_lshl_add_u32 v222, v13, 4, v222
    v_add_u32 v222, s65, v222
    s_lshl_b32 s3, s{S_H}, 7
    s_add_u32 s3, s3, {WS_ST}
    v_lshlrev_b32 v48, 12, v12
    v_lshl_add_u32 v48, v13, 4, v48
    v_add_u32 v48, s3, v48
    v_and_b32 v223, 1, v2
    v_lshlrev_b32 v223, 4, v223
    v_lshrrev_b32 v12, 1, v2
    v_lshl_add_u32 v223, v12, 1, v223
    v_lshl_add_u32 v223, v13, 2, v223
    s_lshl_b32 s3, s{S_W}, 5
    v_add_u32 v223, s3, v223
    v_lshlrev_b32 v223, 1, v223
    v_add_u32 v223, {L_CTXS}, v223
    v_lshlrev_b32 v49, 4, v2
    v_add_u32 v49, {L_CTXS}, v49
    s_lshl_b32 s3, s{S_H}, 2
    s_add_u32 s3, s3, s{S_J}
    s_lshl_b32 s3, s3, 9
    s_add_u32 s3, s3, s64
    s_add_u32 s3, s3, {WS_CTX}
    v_and_b32 v50, 1, v1
    v_lshlrev_b32 v50, 6, v50
    v_lshl_add_u32 v50, v2, 4, v50
    v_add_u32 v50, s3, v50
    v_add_u32 v51, {WS_CTXF-WS_CTX}, v50
    s_waitcnt vmcnt(0) lgkmcnt(0)
    global_load_dwordx4 v[40:43], v5, {WS} sc1
    global_load_dwordx4 v[44:47], v5, {WS} offset:16 sc1
    """)
    mk_tag()
    e("s_barrier")
    stamp(14)
    for t in range(2):
        for j in range(16):
            e(f"ds_read_b128 v[{64+64*t+4*j}:{67+64*t+4*j}], v{8+(j&3)} offset:{256*(j>>2)+16384*t}")
    h2_poll("q")
    def qb(j):
        if j < 6: return 192 + 4 * j
        if j < 13: return 12 + 4 * (j - 6)
        if j < 15: return 40 + 4 * (j - 13)
        return 52
    stamp(4)
    for j in range(16):
        e(f"ds_read_b128 v[{qb(j)}:{qb(j)+3}], v216 offset:{64*j}")
    for j in range(16):
        if j % 2 == 0: e(f"s_waitcnt lgkmcnt({max(0, 14-j)})")
        for t in range(2):
            acc = f"v[{56+4*t}:{59+4*t}]"
            c = "0" if j == 0 else acc
            e(f"v_mfma_f32_16x16x32_bf16 {acc}, v[{64+64*t+4*j}:{67+64*t+4*j}], v[{qb(j)}:{qb(j)+3}], {c}")
    e.nop(7)
    stamp(10)
    e("""
    v_max3_f32 v12, v56, v57, v58
    s_nop 0
    v_max3_f32 v13, v60, v61, v62
    v_max3_f32 v12, v59, v63, v12
    v_max_f32 v12, v12, v13
    v_mov_b32 v13, v12
    """)
    e.nop(2)
    e("v_permlane16_swap_b32 v12, v13")
    e("v_max_f32 v12, v12, v13\nv_mov_b32 v13, v12")
    e.nop(2)
    e("v_permlane32_swap_b32 v12, v13")
    e("""
    v_max_f32 v12, v12, v13
    s_mov_b64 exec, 0xff
    ds_write_b32 v218, v12
    s_mov_b64 exec, -1
    s_waitcnt lgkmcnt(0)
    s_barrier
    """)
    stamp(11)
    e("""
    ds_read_b128 v[16:19], v217
    s_waitcnt lgkmcnt(0)
    v_max3_f32 v12, v16, v17, v18
    v_max_f32 v12, v12, v19
    """)
    for r in range(8): e(f"v_sub_f32 v{56+r}, v{56+r}, v12")
    for r in range(8): e(f"v_exp_f32 v{56+r}, v{56+r}")
    e("s_nop 0")
    for r in range(4): e(f"v_cvt_pk_bf16_f32 v{16+r}, v{56+2*r}, v{57+2*r}")
    e(f"""
    ds_write_b128 v219, v[16:19]
    s_cmp_eq_u32 s{S_W}, 0
    s_cbranch_scc0 L_bq_nom
    s_mov_b64 exec, 0xff
    ds_write_b32 v218, v12 offset:128
    s_mov_b64 exec, -1
    """)
    e.label("L_bq_nom")
    e("s_waitcnt lgkmcnt(0)\ns_barrier")
    stamp(6)
    e(f"""
    v_mov_b32 v105, s{S_TAG}
    v_mov_b32 v107, s{S_TAG}
    v_add_u32 v192, 0x80000, v222
    v_add_u32 v195, 0x10000, v48
    v_and_b32 v196, 3, v1
    s_mov_b32 s66, 0x00010001
    s_mov_b32 s64, 0xaaaaaaaa
    s_mov_b32 s65, 0xaaaaaaaa
    """)
    e("s_barrier")
    for t in range(2):
        for ks in range(4):
            r = 128 + 16 * t + 4 * ks
            e(f"ds_read_b64_tr_b16 v[{r}:{r+1}], v{220+t} offset:{8192*ks}")
            e(f"ds_read_b64_tr_b16 v[{r+2}:{r+3}], v{220+t} offset:{8192*ks+1024}")
    tagpat(198, 196, 202)
    if cfg.h3sleep: e(f"s_sleep {cfg.h3sleep}")
    stamp(2)
    def datachk():
        for i in range(8):
            e(f"v_bitop3_b32 v{20+i}, v{80+i}, v{198+(i&3)}, s66 bitop3:0x28")
        e("v_or3_b32 v4, v20, v21, v22\nv_or3_b32 v5, v23, v24, v25\nv_or3_b32 v4, v26, v27, v4\nv_or_b32 v4, v4, v5")
    e.label("L_h3")
    e(f"""
    global_load_dwordx4 v[64:67], v48, {WS} sc1
    global_load_dwordx4 v[68:71], v195, {WS} sc1
    global_load_dwordx4 v[80:83], v222, {WS} sc1
    global_load_dwordx4 v[84:87], v192, {WS} sc1
    s_waitcnt vmcnt(2)
    """)
    tagchk(4, [65, 67, 69, 71])
    e("v_cmp_ne_u32 vcc, 0, v4\ns_cbranch_vccz L_h3_st\ns_waitcnt vmcnt(0)")
    if cfg.h3psleep: e(f"s_sleep {cfg.h3psleep}")
    spin_back("L_h3")
    e.label("L_h3_st")
    stamp(3)
    e("""
    v_max_f32 v4, v64, v68
    s_nop 1
    v_max_f32_dpp v4, v4, v4 row_ror:4 row_mask:0xf bank_mask:0xf
    s_nop 1
    v_max_f32_dpp v4, v4, v4 row_ror:8 row_mask:0xf bank_mask:0xf
    s_nop 0
    v_mov_b32 v5, v4
    s_nop 1
    v_permlane16_swap_b32 v4, v5
    v_max_f32 v4, v4, v5
    v_mov_b32 v5, v4
    s_nop 1
    v_permlane32_swap_b32 v4, v5
    v_max_f32 v4, v4, v5
    v_sub_f32 v64, v64, v4
    v_sub_f32 v68, v68, v4
    v_exp_f32 v64, v64
    v_exp_f32 v68, v68
    s_nop 0
    v_mul_f32 v28, v64, v66
    v_fmac_f32 v28, v68, v70
    s_nop 1
    v_add_f32_dpp v28, v28, v28 row_ror:4 row_mask:0xf bank_mask:0xf
    s_nop 1
    v_add_f32_dpp v28, v28, v28 row_ror:8 row_mask:0xf bank_mask:0xf
    s_nop 0
    v_mov_b32 v29, v28
    s_nop 1
    v_permlane16_swap_b32 v28, v29
    v_add_f32 v28, v28, v29
    v_mov_b32 v29, v28
    s_nop 1
    v_permlane32_swap_b32 v28, v29
    v_add_f32 v28, v28, v29
    v_rcp_f32 v28, v28
    s_nop 0
    v_mul_f32 v64, v64, v28
    v_mul_f32 v68, v68, v28
    s_waitcnt vmcnt(0)
    s_branch L_h3_dchk
    """)
    e.label("L_h3d")
    e(f"""
    global_load_dwordx4 v[80:83], v222, {WS} sc1
    global_load_dwordx4 v[84:87], v192, {WS} sc1
    s_waitcnt vmcnt(0)
    """)
    e.label("L_h3_dchk")
    datachk()
    poll_tail("L_h3d", "L_h3_done", 4)
    stamp(8)
    for i in range(4):
        e(f"v_lshlrev_b32 v{12+2*i}, 16, v{80+i}\nv_and_b32 v{13+2*i}, 0xffff0000, v{80+i}")
    for i in range(4):
        e(f"v_lshlrev_b32 v{20+2*i}, 16, v{84+i}\nv_and_b32 v{21+2*i}, 0xffff0000, v{84+i}")
        e(f"v_pk_mul_f32 v[{12+2*i}:{13+2*i}], v[{12+2*i}:{13+2*i}], v[64:65] op_sel_hi:[1,0]")
    for i in range(4):
        e(f"v_pk_fma_f32 v[{12+2*i}:{13+2*i}], v[{20+2*i}:{21+2*i}], v[68:69], v[{12+2*i}:{13+2*i}] op_sel_hi:[1,0,1]")
    for st in ("row_ror:4", "row_ror:8"):
        for r in range(12, 20):
            e(f"v_add_f32_dpp v{r}, v{r}, v{r} {st} row_mask:0xf bank_mask:0xf")
    for i in range(4):
        e(f"v_permlane16_swap_b32 v{12+i}, v{16+i}")
    for i in range(4):
        e(f"v_add_f32 v{12+i}, v{12+i}, v{16+i}")
    e("""
    s_nop 0
    v_permlane32_swap_b32 v12, v14
    v_permlane32_swap_b32 v13, v15
    s_mov_b32 exec_lo, 0x000f000f
    s_mov_b32 exec_hi, 0x000f000f
    v_add_f32 v12, v12, v14
    v_add_f32 v13, v13, v15
    v_cvt_pk_bf16_f32 v12, v12, v13
    ds_write_b32 v223, v12
    s_mov_b64 exec, -1
    s_waitcnt lgkmcnt(0)
    s_barrier
    """)
    for ks in range(4):
        e(f"ds_read_b128 v[{112+4*ks}:{115+4*ks}], v49 offset:{64*ks}")
    for ks in range(4):
        e(f"s_waitcnt lgkmcnt({3-ks})")
        for t in range(2):
            acc = f"v[{96+4*t}:{99+4*t}]"
            c = "0" if ks == 0 else acc
            r = 128 + 16 * t + 4 * ks
            e(f"v_mfma_f32_16x16x32_bf16 {acc}, v[{r}:{r+3}], v[{112+4*ks}:{115+4*ks}], {c}")
    e("s_mov_b32 exec_lo, 0x00030003\ns_mov_b32 exec_hi, 0x00030003")
    e.nop(6)
    for r in range(4):
        e(f"v_cndmask_b32 v{96+r}, v{96+r}, v{100+r}, s[64:65]")
    e("""
    v_cvt_pk_bf16_f32 v104, v96, v97
    v_cvt_pk_bf16_f32 v106, v98, v99
    """)
    if cfg.fast4: e(f"global_store_dwordx4 v51, v[104:107], {WS}")
    e(f"global_store_dwordx4 v50, v[104:107], {WS} sc1\ns_mov_b64 exec, -1")
    stamp(9)
    e("s_branch L_b_tail")
    e.label("L_bp_prep")
    e(f"""
    v_lshl_add_u32 v58, v2, 2, v62
    v_and_b32 v13, 7, v58
    v_lshlrev_b32 v13, 1, v13
    v_lshlrev_b32 v58, 10, v58
    v_add_u32 v58, v58, v59
    s_and_b32 s66, s{S_W}, 3
    s_lshl_b32 s3, s66, 4
    v_add_u32 v12, s3, v63
    v_xor_b32 v12, v12, v13
    v_lshl_add_u32 v8, v12, 4, v58
    """)
    for tt in range(1, 8):
        e(f"v_xor_b32 v{8+tt}, {32*tt}, v8")
    e(f"""
    v_lshlrev_b32 v16, 4, v1
    v_add_u32 v16, {L_PEX}, v16
    s_mov_b32 s{SRD_A}, s{P_WUV}
    s_mov_b32 s{SRD_A+1}, s{P_WUV+1}
    s_mov_b32 s{SRD_A+2}, 4194304
    s_mov_b32 s{SRD_A+3}, 0x20000
    s_lshl_b32 s3, s{S_W}, 2
    s_and_b32 s3, s3, 8
    v_lshlrev_b32 v19, 1, v2
    v_xor_b32 v19, v19, v3
    v_xor_b32 v19, s3, v19
    v_lshlrev_b32 v19, 4, v19
    v_lshl_add_u32 v19, v2, 13, v19
    s_lshl_b32 s20, s{S_J}, 5
    s_add_u32 s20, s20, s66
    s_lshl_b32 s20, s20, 15
    s_lshl_b32 s21, s{S_H}, 8
    s_add_u32 s20, s20, s21
    s_lshl_b32 s21, s66, 10
    v_lshl_add_u32 v56, v1, 4, s21
    s_lshl_b32 s3, s{S_CH}, 15
    s_lshr_b32 s64, s{S_I}, 2
    s_lshl_b32 s65, s64, 13
    s_add_u32 s3, s3, s65
    s_lshl_b32 s65, s66, 8
    s_add_u32 s3, s3, s65
    s_add_u32 s3, s3, {WS_PART}
    v_and_b32 v17, 7, v3
    v_lshlrev_b32 v17, 10, v17
    v_lshl_add_u32 v17, v2, 4, v17
    v_lshrrev_b32 v20, 3, v3
    v_lshl_add_u32 v17, v20, 6, v17
    v_add_u32 v17, s3, v17
    s_lshl_b32 s64, s64, 10
    s_lshl_b32 s65, s{S_CH}, 12
    s_add_u32 s64, s64, s65
    s_add_u32 s64, s64, {WS_ST}
    v_lshrrev_b32 v18, 2, v1
    v_lshlrev_b32 v18, 7, v18
    v_and_b32 v20, 3, v1
    v_lshl_add_u32 v18, v20, 4, v18
    v_add_u32 v18, s64, v18
    v_mov_b32 v36, 0x3f803f80
    v_mov_b32 v37, 0x3f803f80
    v_mov_b32 v38, 0x3f803f80
    v_mov_b32 v39, 0x3f803f80
    s_waitcnt vmcnt(0) lgkmcnt(0)
    global_load_dwordx4 v[40:43], v5, {WS} sc1
    global_load_dwordx4 v[44:47], v5, {WS} offset:16 sc1
    """)
    mk_tag()
    e(f"v_mov_b32 v53, s{S_TAG}\nv_mov_b32 v55, s{S_TAG}")
    tagpat(57, 2, 61)
    e("s_barrier")
    stamp(14)
    for half in range(2):
        for tt in range(8):
            for k2 in range(2):
                ks = 2 * half + k2
                for eb in range(2):
                    r = 64 + 16 * tt + 4 * ks + 2 * eb
                    e(f"ds_read_b64_tr_b16 v[{r}:{r+1}], v{8+tt} offset:{32768*k2+16384*eb}")
        if half == 0:
            for tt in range(8):
                e(f"v_add_u32 v{8+tt}, 0x10000, v{8+tt}")
    h2_poll("p")
    for ii in range(8):
        e(f"""
        s_mov_b32 m0, s21
        s_add_u32 s21, s21, 4096
        buffer_load_dwordx4 v19, s[{SRD_A}:{SRD_A+3}], s20 offen{NT} lds
        s_add_u32 s20, s20, {4*4*8192}
        """)
    e("s_barrier\ns_barrier")
    for ks in range(4):
        e(f"ds_read_b128 v[{20+4*ks}:{23+4*ks}], v16 offset:{1024*ks}")
    e(f"""
    v_bfe_u32 v5, v1, 2, 3
    v_lshlrev_b32 v4, 4, v5
    v_add_u32 v4, {L_MX+128}, v4
    v_lshlrev_b32 v5, 2, v5
    s_mov_b32 s64, 0xff00ff00
    s_mov_b32 s65, 0xff00ff00
    """)
    stamp(6)
    for pr in range(4):
        e(f"v_mov_b32 v{37+0}, v{37}") if False else None
    def epi(sg):
        g = 64 + 64 * sg
        out = []
        for t in range(4):
            a0 = 192 + 16 * sg + 4 * t
            out.append(f"v_cvt_pk_bf16_f32 v{44+2*t}, v{a0}, v{a0+1}")
            out.append(f"v_cvt_pk_bf16_f32 v{45+2*t}, v{a0+2}, v{a0+3}")
        for i in range(4):
            out.append(f"v_cndmask_b32 v{g+i}, v{44+i}, v{48+i}, s[64:65]")
        for i in range(4):
            out.append(f"v_and_or_b32 v{g+i}, v{g+i}, s66, v{57+i}")
        out.append(f"global_store_dwordx4 v17, v[{g}:{g+3}], {WS} offset:{128*sg} sc1")
        return out
    e("s_mov_b32 s66, 0xfffefffe")
    ep0 = epi(0)
    for sg in range(2):
        k = 0
        for ks in range(4):
            for t in range(4):
                tt = 4 * sg + t
                acc = f"v[{192+4*tt}:{195+4*tt}]"
                c = "0" if ks == 0 else acc
                r = 64 + 16 * tt + 4 * ks
                if sg == 0 and t == 0: e(f"s_waitcnt lgkmcnt({3-ks})")
                e(f"v_mfma_f32_16x16x32_bf16 {acc}, v[{r}:{r+3}], v[{20+4*ks}:{23+4*ks}], {c}")
                k += 1
                if sg == 1 and k >= 8:
                    for _ in range(2):
                        if ep0: e(ep0.pop(0))
        if sg == 1:
            while ep0: e(ep0.pop(0))
    e(f"s_cmp_eq_u32 s{S_W}, 4\ns_cbranch_scc0 L_b_nol")
    e("ds_read_b32 v52, v4")
    for ks in range(4):
        c = "0" if ks == 0 else "v[40:43]"
        e(f"v_mfma_f32_16x16x32_bf16 v[40:43], v[36:39], v[{20+4*ks}:{23+4*ks}], {c}")
    e.label("L_b_nol")
    e.nop(6)
    for ins in epi(1): e(ins)
    e(f"""
    s_cmp_eq_u32 s{S_W}, 4
    s_cbranch_scc0 L_b_nostat
    ds_bpermute_b32 v54, v5, v40
    s_mov_b64 exec, 0xffffffff
    s_waitcnt lgkmcnt(0)
    global_store_dwordx4 v18, v[52:55], {WS} sc1
    s_mov_b64 exec, -1
    """)
    stamp(7)
    e("s_waitcnt vmcnt(3)\ns_branch L_b_st2")
    e.label("L_b_nostat")
    stamp(7)
    e("s_waitcnt vmcnt(2)")
    e.label("L_b_st2")
    e("s_barrier\ns_barrier")
    e.label("L_b_tail")
    e("s_barrier")
    s7_loads()
    e("s_waitcnt vmcnt(0)")
    s7_prep()
    if cfg.b5sleep: e(f"s_sleep {cfg.b5sleep}")

    e.label("L_S7")
    e(f"s_cmp_lt_u32 s{S_W}, 5\ns_cbranch_scc0 L_s7_bar")
    e.label("L_h5")
    e(f"""
    global_load_dwordx4 v[40:43], v244, {WS} sc1
    global_load_dwordx4 v[44:47], v245, {WS} sc1
    global_load_dwordx4 v[48:51], v246, {WS} sc1
    global_load_dwordx4 v[52:55], v247, {WS} sc1
    s_waitcnt vmcnt(0)
    """)
    tagchk(56, [41, 43, 45, 47, 49, 51, 53, 55])
    poll_tail("L_h5", "L_h5_done", 56, cfg.h5sleep)
    stamp(12)
    for k, src in enumerate([40, 44, 48, 52]):
        e(f"v_lshlrev_b32 v{80+8*k}, 16, v{src}\nv_and_b32 v{81+8*k}, 0xffff0000, v{src}")
        e(f"v_lshlrev_b32 v{82+8*k}, 16, v{src+2}\nv_and_b32 v{83+8*k}, 0xffff0000, v{src+2}")
    e(f"""
    v_pk_add_f32 v[80:81], v[80:81], v[88:89]
    v_pk_add_f32 v[96:97], v[96:97], v[104:105]
    v_pk_add_f32 v[82:83], v[82:83], v[90:91]
    v_pk_add_f32 v[98:99], v[98:99], v[106:107]
    v_pk_add_f32 v[80:81], v[80:81], v[96:97]
    v_pk_add_f32 v[82:83], v[82:83], v[98:99]
    s_nop 1
    v_permlane32_swap_b32 v80, v82
    v_permlane32_swap_b32 v81, v83
    v_add_f32 v50, v80, v82
    v_add_f32 v51, v81, v83
    v_pk_add_f32 v[50:51], v[50:51], v[58:59]
    ds_write_b64 v248, v[50:51]
    v_add_f32 v52, v50, v51
    v_mul_f32 v53, v50, v50
    v_fmac_f32 v53, v51, v51
    """)
    dpp_reduce([52, 53])
    e(f"""
    s_mov_b32 exec_lo, 0
    s_mov_b32 exec_hi, 0x80000000
    ds_write_b64 v68, v[52:53]
    s_mov_b64 exec, -1
    """)
    e.label("L_s7_bar")
    e(f"""
    s_waitcnt lgkmcnt(0)
    s_barrier
    """)
    if cfg.s7stamps: stamp(1)
    e(f"""
    s_cmp_lt_u32 s2, {216 if cfg.outmap else 214}
    s_cbranch_scc0 L_fin
    ds_read_b128 v[40:43], v62
    ds_read_b128 v[44:47], v62 offset:16
    ds_read_b64 v[48:49], v62 offset:32
    ds_read_b32 v50, v63
    ds_read_b32 v52, v63 offset:4
    ds_read_b32 v54, v63 offset:8
    s_waitcnt lgkmcnt(3)
    v_pk_add_f32 v[40:41], v[40:41], v[42:43]
    v_pk_add_f32 v[44:45], v[44:45], v[46:47]
    v_pk_add_f32 v[40:41], v[40:41], v[48:49]
    v_pk_add_f32 v[40:41], v[40:41], v[44:45]
    v_pk_mul_f32 v[40:41], v[40:41], v[60:61] op_sel_hi:[1,0]
    v_fma_f32 v41, -v40, v40, v41
    v_max_f32 v41, 0, v41
    v_fma_f32 v42, v41, v61, v65
    s_waitcnt lgkmcnt(0)
    v_rsq_f32 v42, v42
    v_sub_f32 v70, v50, v40
    v_sub_f32 v72, v52, v40
    v_sub_f32 v74, v54, v40
    v_mul_f32 v70, v70, v42
    v_mul_f32 v72, v72, v42
    v_mul_f32 v74, v74, v42
    """)
    if cfg.s7stamps: stamp(2)
    combos = [(r, o) for o in range(3) for r in range(2)]
    for c, (r, o) in enumerate(combos):
        e(f"v_pk_fma_f32 v[{80+2*c}:{81+2*c}], v[{70+2*o}:{71+2*o}], v[{232+2*r}:{233+2*r}], v[{236+2*r}:{237+2*r}] op_sel_hi:[0,1,1]")
    for c in range(6):
        e(f"v_pk_mul_f32 v[{92+2*c}:{93+2*c}], v[{80+2*c}:{81+2*c}], v[{80+2*c}:{81+2*c}]")
    for c in range(6):
        e(f"v_pk_fma_f32 v[{92+2*c}:{93+2*c}], v[{92+2*c}:{93+2*c}], v[66:67], v[64:65] op_sel_hi:[1,0,0]")
    for c in range(6):
        e(f"v_pk_mul_f32 v[{92+2*c}:{93+2*c}], v[{92+2*c}:{93+2*c}], v[{80+2*c}:{81+2*c}]")
    for c in range(12):
        e(f"v_exp_f32 v{92+c}, v{92+c}")
    for c in range(6):
        e(f"v_pk_add_f32 v[{92+2*c}:{93+2*c}], v[{92+2*c}:{93+2*c}], 1.0 op_sel_hi:[1,0]")
    for c in range(12):
        e(f"v_rcp_f32 v{92+c}, v{92+c}")
    for c in range(6):
        e(f"v_pk_mul_f32 v[{80+2*c}:{81+2*c}], v[{80+2*c}:{81+2*c}], v[{92+2*c}:{93+2*c}]")
    for o in range(3):
        e(f"v_pk_mul_f32 v[{104+2*o}:{105+2*o}], v[{80+4*o}:{81+4*o}], v[240:241]")
    for o in range(3):
        e(f"v_pk_fma_f32 v[{104+2*o}:{105+2*o}], v[{82+4*o}:{83+4*o}], v[242:243], v[{104+2*o}:{105+2*o}]")
    if cfg.s7stamps: stamp(3)
    e("v_add_f32 v110, v104, v105\nv_add_f32 v111, v106, v107\nv_add_f32 v112, v108, v109")
    dpp_reduce([110, 111, 112])
    e(f"""
    s_mov_b32 exec_lo, 0
    s_mov_b32 exec_hi, 0x80000000
    ds_write_b128 v69, v[110:113]
    s_mov_b64 exec, -1
    {"s_mul_i32 s3, s5, 80" if cfg.outmap else "s_mov_b32 s3, 560"}
    s_add_u32 s3, s3, 80
    v_cmp_gt_u32 vcc, s3, v8
    v_lshlrev_b32 v8, 1, v8
    s_waitcnt lgkmcnt(0)
    s_barrier
    """)
    if cfg.s7stamps: stamp(4)
    e(f"""
    s_cmp_eq_u32 s{S_W}, 0
    s_cbranch_scc0 L_fin
    s_and_b64 vcc, vcc, 7
    s_and_saveexec_b64 s[64:65], vcc
    s_cbranch_execz L_fin0
    """)
    for w in range(8):
        e(f"ds_read_b32 v{40+w}, v6 offset:{16*w}")
    e(f"""
    ds_read_b32 v48, v7
    s_waitcnt lgkmcnt(0)
    v_add_f32 v40, v40, v41
    v_add_f32 v42, v42, v43
    v_add_f32 v44, v44, v45
    v_add_f32 v46, v46, v47
    v_add_f32 v48, v48, v9
    v_add_f32 v40, v40, v42
    v_add_f32 v44, v44, v46
    v_add_f32 v40, v40, v48
    v_add_f32 v40, v40, v44
    v_cvt_pk_bf16_f32 v40, v40, v40
    global_store_short v8, v40, s[{P_OUT}:{P_OUT+1}]
    """)
    e.label("L_fin0")
    e("s_mov_b64 exec, s[64:65]")
    e.label("L_fin")
    stamp(13)
    e(f"""
    s_cmp_eq_u32 s2, {0 if not cfg.noepoch else 100000}
    s_cbranch_scc0 L_noepoch
    s_cmp_eq_u32 s{S_W}, 0
    s_cbranch_scc0 L_noepoch
    v_lshlrev_b32 v6, 2, v1
    v_mov_b32 v7, s{S_TAG}
    s_mov_b64 exec, 0xffff
    global_store_dword v6, v7, {WS} sc1
    s_mov_b64 exec, -1
    """)
    e.label("L_noepoch")
    if cfg.stamps:
        e(f"""
        s_waitcnt lgkmcnt(0)
        s_lshl_b32 s3, s2, 3
        s_add_u32 s3, s3, s{S_W}
        s_lshl_b32 s3, s3, 6
        s_add_u32 s3, s3, {WS_DBG}
        v_mov_b32 v6, s3
        s_mov_b64 exec, 1
        """)
        for q in range(4):
            for k in range(4):
                e(f"v_mov_b32 v{8+k}, s{S_STAMP+2*min(4*q+k,14)}")
            e(f"global_store_dwordx4 v6, v[8:11], {WS} offset:{16*q}")
            e.nop(2)
        e("s_mov_b64 exec, -1")
    e.label("L_exit")
    e("s_endpgm")
    e.label("L_fail")
    if cfg.stamps: e("s_mov_b64 exec, -1\ns_branch L_noepoch")
    e("s_endpgm")
    e.label("L_end")
    return e

def render(cfg):
    e = gen(cfg)
    body = e.text()
    hdr = open("cdna_kernels/" + NAME[:-7] + ".s.ref").read().split("; Override launch geometry")[0]
    out = hdr + f"; @launch grid=(256,1,1) block=(512,1,1) lds={LDS_BYTES}\n"
    out += f""".amdgcn_target "amdgcn-amd-amdhsa--gfx950"
.text
.globl {NAME}
.p2align 8
.type {NAME},@function
{NAME}:
{body}.section .rodata,"a"
.p2align 6
.amdhsa_kernel {NAME}
  .amdhsa_next_free_vgpr 256
  .amdhsa_next_free_sgpr 102
  .amdhsa_accum_offset 256
  .amdhsa_group_segment_fixed_size 0
  .amdhsa_kernarg_size 112
  .amdhsa_user_sgpr_count 2
  .amdhsa_user_sgpr_kernarg_segment_ptr 1
  .amdhsa_system_sgpr_workgroup_id_x 1
.end_amdhsa_kernel
"""
    return out, body

if __name__ == "__main__":
    cfg = Cfg()
    outp = sys.argv[1] if len(sys.argv) > 1 else "cdna_kernels/" + NAME[:-7] + ".s"
    for a in sys.argv[2:]:
        k, v = a.split("=")
        setattr(cfg, k, int(v))
    out, body = render(cfg)
    probs = check_hazards(body) + check_kernarg_race(body)
    for p in probs: print("HAZARD", p)
    open(outp, "w").write(out)
    print("wrote", outp, len(out), "bytes;", len(body.splitlines()), "lines")
```

```python
import sys, struct
from asmlib import Emit, check_hazards, check_kernarg_race

NAME = "sequential_preLN__compressed_kv_cla__mixer_token_mlp__decode_kernel"

WS_Q1, WS_Q1F, WS_QA, WS_CTX, WS_OP, WS_CTXF, WS_ST, WS_PART, WS_DBG = 0x10000, 0x20000, 0x50000, 0x60000, 0x70000, 0x90000, 0xC0000, 0x100000, 0x400000
L_CKV = 0
L_WO = 0
L_WQ = 32768
L_WUK = 73728
L_QAS = 131072
QAS_STRIDE = 1056
L_PEX = L_QAS + 8 * QAS_STRIDE
L_MX = L_PEX + 4096
L_LNS = 143872
L_QP = 145152
QP_STRIDE = 288
L_CTXS = 146304
L_BNC = 146560
L_ORED = 147584
L_HS = 149632
L_ST7 = 152192
L_YRED = 152256
LDS_BYTES = 152384

S_W, S_X, S_I, S_ISB = 4, 5, 6, 7
P_X, P_CKV, P_WQ, P_WUK, P_WUV, P_WO, P_W1, P_B1, P_W2, P_B2, P_OUT, P_DBG, P_WS = 8, 10, 12, 14, 16, 18, 22, 24, 26, 28, 30, 32, 34
S_TAG, S_H, S_J, S_CH = 36, 37, 38, 39
SRD_0, SRD_A, SRD_WO, SRD_W1, SRD_B1, SRD_W2 = 40, 44, 48, 52, 56, 60
S_SPIN = 100
S_STAMP = 70

def F32(x): return "0x%08x" % struct.unpack("<I", struct.pack("<f", x))[0]
WS = f"s[{P_WS}:{P_WS+1}]"

class Cfg:
    stamps = 0
    nt = 1
    spin = 1 << 17
    h3sleep = 16
    fast1 = 1
    fast4 = 1
    codepf = 8
    bdelay = 0
    exp_nob = 0
    selftouch = 0
    lsb3 = 1
    ukearly = 0
    outmap = 1
    noepoch = 0
    s7stamps = 0
    touch = 0
    uknt = 1
    tsleep = 0
    planeorder = 1
    hperm = 0
    h3psleep = 0
    b5sleep = 36
    f5sleep = 12
    n5sleep = 36
    ckvnt = 1
    ukbar = 1
    bsleep = 8
    uvpf = 1
    h5sleep = 0
    h4sleep = 0
    h2sleep = 0
    exp_nowuv = 0

def gen(cfg):
    e = Emit()
    NT = " nt" if cfg.nt else ""
    def stamp(k):
        if cfg.stamps:
            e(f"s_memrealtime s[{S_STAMP+2*k}:{S_STAMP+2*k+1}]")
    def dpp_reduce(regs, op="v_add_f32"):
        steps = ["row_shr:1 row_mask:0xf bank_mask:0xf bound_ctrl:0", "row_shr:2 row_mask:0xf bank_mask:0xf bound_ctrl:0",
                 "row_shr:4 row_mask:0xf bank_mask:0xf bound_ctrl:0", "row_shr:8 row_mask:0xf bank_mask:0xf bound_ctrl:0",
                 "row_bcast:15 row_mask:0xa bank_mask:0xf", "row_bcast:31 row_mask:0xc bank_mask:0xf"]
        pad = max(0, 2 - (len(regs) - 1))
        e.nop(2)
        for k, st in enumerate(steps):
            for r in regs:
                e(f"{op}_dpp v{r}, v{r}, v{r} {st}")
            if k < len(steps) - 1 and pad: e.nop(pad)
    def tagchk(acc, tags):
        for k, t in enumerate(tags):
            if k == 0:
                e(f"v_xor_b32 v{acc}, s{S_TAG}, v{t}")
            else:
                e(f"v_bitop3_b32 v{acc}, v{acc}, v{t}, s{S_TAG} bitop3:0xf6")
    def spin_back(lbl_loop):
        e(f"s_sub_u32 s{S_SPIN}, s{S_SPIN}, 1")
        e(f"s_cbranch_scc0 {lbl_loop}")
        e("s_branch L_fail")
    def poll_tail(lbl_loop, lbl_done, acc, sleep=0):
        e(f"v_cmp_ne_u32 vcc, 0, v{acc}")
        e(f"s_cbranch_vccz {lbl_done}")
        if sleep: e(f"s_sleep {sleep}")
        spin_back(lbl_loop)
        e.label(lbl_done)
    def tr_common():
        e("""
        v_bfe_u32 v62, v1, 2, 2
        v_bfe_u32 v63, v1, 1, 1
        v_and_b32 v59, 1, v1
        v_lshlrev_b32 v59, 3, v59
        """)
    def tr256_addr(dst, tmp):
        e(f"""
        v_and_b32 v{dst}, 1, v2
        v_lshl_add_u32 v{dst}, v{dst}, 2, v62
        v_lshlrev_b32 v{dst}, 1, v{dst}
        s_lshl_b32 s3, s{S_W}, 1
        v_add_u32 v{tmp}, s3, v63
        v_xor_b32 v{dst}, v{dst}, v{tmp}
        v_lshl_add_u32 v{dst}, v{dst}, 4, v59
        v_lshl_add_u32 v{tmp}, v2, 3, v62
        v_lshl_add_u32 v{dst}, v{tmp}, 8, v{dst}
        """)
    def tagpat(dst, vsel, tmp):
        e(f"v_lshlrev_b32 v{tmp}, 3, v{vsel}")
        e(f"v_lshrrev_b32 v{tmp}, v{tmp}, s{S_TAG}") if False else e(f"v_mov_b32 v{tmp+1}, s{S_TAG}\nv_lshrrev_b32 v{tmp}, v{tmp}, v{tmp+1}")
        for i in range(4):
            e(f"v_bfe_u32 v{dst+i}, v{tmp}, {2*i}, 1")
            e(f"v_bfe_u32 v{tmp+1}, v{tmp}, {2*i+1}, 1")
            e(f"v_lshl_or_b32 v{dst+i}, v{tmp+1}, 16, v{dst+i}")
    def mk_tag():
        e(f"s_mul_i32 s{S_TAG}, s{S_TAG}, 1664525\ns_add_u32 s{S_TAG}, s{S_TAG}, 1013904223")
    def s7_loads():
        e(f"""
        s_mov_b32 s{SRD_W1}, s{P_W1}
        s_mov_b32 s{SRD_W1+1}, s{P_W1+1}
        s_mov_b32 s{SRD_W1+2}, 3456
        s_mov_b32 s{SRD_W1+3}, 0x20000
        s_mov_b32 s{SRD_B1}, s{P_B1}
        s_mov_b32 s{SRD_B1+1}, s{P_B1+1}
        s_mov_b32 s{SRD_B1+2}, 3456
        s_mov_b32 s{SRD_B1+3}, 0x20000
        s_mov_b32 s{SRD_W2}, s{P_W2}
        s_mov_b32 s{SRD_W2+1}, s{P_W2+1}
        s_mov_b32 s{SRD_W2+2}, 3456
        s_mov_b32 s{SRD_W2+3}, 0x20000
        s_lshl_b32 s3, s{S_W}, 8
        v_lshl_add_u32 v4, v1, 2, s3
        buffer_load_dword v224, v4, s[{SRD_W1}:{SRD_W1+3}], 0 offen
        buffer_load_dword v225, v4, s[{SRD_W1}:{SRD_W1+3}], 0 offen offset:2048
        buffer_load_dword v226, v4, s[{SRD_B1}:{SRD_B1+3}], 0 offen
        buffer_load_dword v227, v4, s[{SRD_B1}:{SRD_B1+3}], 0 offen offset:2048
        buffer_load_dword v228, v4, s[{SRD_W2}:{SRD_W2+3}], 0 offen
        buffer_load_dword v229, v4, s[{SRD_W2}:{SRD_W2+3}], 0 offen offset:2048
        v_mov_b32 v4, 0
        global_load_ushort v231, v4, s[{P_B2}:{P_B2+1}]
        s_min_u32 s3, s{S_W}, 4
        s_lshl_b32 s3, s3, 8
        v_lshlrev_b32 v4, 4, v3
        v_and_b32 v230, 1, v2
        v_lshl_add_u32 v4, v230, 3, v4
        v_lshrrev_b32 v230, 1, v2
        v_lshl_add_u32 v4, v230, 2, v4
        v_add_u32 v4, s3, v4
        global_load_dword v230, v4, s[{P_X}:{P_X+1}]
        """)
    OUTIDX = ("s_lshr_b32 s101, s2, 3\ns_mul_i32 s101, s101, 3\ns_mul_i32 s3, s5, 80\ns_add_u32 s101, s101, s3" if cfg.outmap else "s_mul_i32 s101, s2, 3")
    def s7_prep():
        for k, (raw, dst) in enumerate([(224, 232), (225, 234), (226, 236), (227, 238), (228, 240), (229, 242)]):
            e(f"v_lshlrev_b32 v{dst}, 16, v{raw}\nv_and_b32 v{dst+1}, 0xffff0000, v{raw}")
        e(f"""
        v_mul_u32_u24 v244, 1280, v2
        v_lshl_add_u32 v244, v3, 4, v244
        s_lshl_b32 s3, s{S_W}, 8
        s_add_u32 s64, s3, {WS_OP}
        v_add_u32 v244, s64, v244
        v_add_u32 v245, 5120, v244
        s_lshl_b32 s3, s{S_W}, 9
        s_add_u32 s3, s3, {L_HS}
        v_lshlrev_b32 v248, 5, v3
        v_and_b32 v57, 1, v2
        v_lshl_add_u32 v248, v57, 4, v248
        v_lshrrev_b32 v57, 1, v2
        v_lshl_add_u32 v248, v57, 3, v248
        v_add_u32 v248, s3, v248
        v_lshlrev_b32 v58, 16, v230
        v_and_b32 v59, 0xffff0000, v230
        v_mov_b32 v60, {F32(1.0/640)}
        v_mov_b32 v61, {F32(1.0 + 1e-5)}
        v_mov_b32 v65, {F32(1e-10)}
        v_mov_b32 v64, {F32(-2.0*0.7978845608028654*1.4426950408889634)}
        v_mov_b32 v66, {F32(-2.0*0.7978845608028654*1.4426950408889634*0.044715)}
        v_mov_b32 v62, {L_ST7}
        {OUTIDX}
        s_lshl_b32 s3, s101, 2
        s_add_u32 s3, s3, {L_HS}
        v_mov_b32 v63, s3
        s_lshl_b32 s3, s{S_W}, 3
        s_add_u32 s3, s3, {L_ST7}
        v_mov_b32 v68, s3
        s_lshl_b32 s3, s{S_W}, 4
        s_add_u32 s3, s3, {L_YRED}
        v_mov_b32 v69, s3
        v_mov_b32 v113, 0
        v_add_u32 v8, s101, v1
        v_lshlrev_b32 v6, 2, v1
        v_add_u32 v6, {L_YRED}, v6
        v_lshlrev_b32 v7, 2, v8
        v_add_u32 v7, {L_HS}, v7
        v_lshlrev_b32 v9, 16, v231
        """)
        e("v_and_b32 v57, 3, v1")
        tagpat(10, 57, 14)

    def uk_dma(bar):
        e(f"""
        s_mov_b32 s{SRD_A}, s{P_WUK}
        s_mov_b32 s{SRD_A+1}, s{P_WUK+1}
        s_mov_b32 s{SRD_A+2}, 4194304
        s_mov_b32 s{SRD_A+3}, 0x20000
        s_and_b32 s66, s{S_W}, 1
        s_lshl_b32 s66, s66, 3
        v_lshlrev_b32 v7, 1, v2
        v_xor_b32 v7, v7, v3
        v_xor_b32 v7, s66, v7
        v_lshlrev_b32 v7, 4, v7
        v_lshl_add_u32 v7, v2, 13, v7
        s_lshl_b32 s64, s{S_J}, 5
        s_add_u32 s64, s64, s{S_W}
        s_lshl_b32 s64, s64, 15
        s_lshl_b32 s65, s{S_H}, 8
        s_add_u32 s64, s64, s65
        s_lshl_b32 s67, s{S_W}, 10
        s_add_u32 s67, s67, {L_WUK}
        """)
        if bar: e("s_barrier")
        for ii in range(8):
            e(f"""
            s_mov_b32 m0, s67
            s_add_u32 s67, s67, 4096
            buffer_load_dwordx4 v7, s[{SRD_A}:{SRD_A+3}], s64 offen{NT} lds
            s_add_u32 s64, s64, {4*4*8192}
            """)

    e(f"""
    s_cmp_ge_u32 s2, 256
    s_cbranch_scc1 L_exit
    s_load_dwordx16 s[8:23], s[0:1], 0
    s_load_dwordx4 s[32:35], s[0:1], 96
    s_load_dwordx8 s[24:31], s[0:1], 64
    """)
    if cfg.codepf:
        e(f"""
        s_cmp_lt_u32 s2, {cfg.codepf}
        s_cbranch_scc0 L_nopf
        s_getpc_b64 s[64:65]
        """)
        e.label("L_pc")
        e(f"""
        s_and_b32 s64, s64, 0xffffff00
        v_lshlrev_b32 v203, 7, v0
        v_min_u32 v203, L_end-L_pc-4, v203
        v_mov_b32 v201, s65
        v_add_co_u32 v200, vcc, s64, v203
        s_nop 1
        v_addc_co_u32 v201, vcc, 0, v201, vcc
        global_load_dword v202, v[200:201], off
        """)
        e.label("L_nopf")
    if cfg.stamps:
        e(f"s_memrealtime s[{S_STAMP}:{S_STAMP+1}]")
        for k in range(1, 15): e(f"s_mov_b32 s{S_STAMP+2*k}, 0")
    e(f"""
    v_and_b32 v1, 63, v0
    v_lshrrev_b32 v4, 6, v0
    v_lshrrev_b32 v2, 4, v1
    v_readfirstlane_b32 s{S_W}, v4
    v_and_b32 v3, 15, v1
    s_and_b32 s{S_X}, s2, 7
    s_bfe_u32 s{S_I}, s2, 0x40003
    s_lshr_b32 s{S_H}, s{S_I}, 2
    s_xor_b32 s{S_H}, s{S_H}, {cfg.hperm}
    s_lshl_b32 s3, s{S_X}, 2
    s_add_u32 s{S_H}, s{S_H}, s3
    s_and_b32 s{S_J}, s{S_I}, 3
    s_mov_b32 s{SRD_0+3}, 0x20000
    s_mov_b32 s{S_SPIN}, {cfg.spin}
    s_cmp_ge_u32 s2, 128
    s_cbranch_scc1 L_B0
    """)
    e(f"""
    s_lshl_b32 s66, s{S_W}, 2
    s_and_b32 s66, s66, 8
    s_mul_i32 s64, s{S_J}, 40
    s_add_u32 s64, s64, s{S_W}
    s_lshl_b32 s64, s64, 15
    s_lshl_b32 s65, s{S_H}, 8
    s_add_u32 s64, s64, s65
    s_lshl_b32 s67, s{S_W}, 10
    s_add_u32 s67, s67, {L_WQ}
    s_mov_b32 s{SRD_0+2}, 5242880
    v_lshlrev_b32 v7, 1, v2
    v_xor_b32 v7, v7, v3
    v_xor_b32 v7, s66, v7
    v_lshlrev_b32 v7, 4, v7
    v_lshl_add_u32 v7, v2, 13, v7
    v_lshlrev_b32 v6, 2, v1
    s_cmp_eq_u32 s{S_W}, 0
    s_waitcnt lgkmcnt(0)
    s_mov_b32 s{SRD_0}, s{P_WQ}
    s_mov_b32 s{SRD_0+1}, s{P_WQ+1}
    s_cbranch_scc0 L_f_nox
    """)
    for k in range(5):
        e(f"global_load_dword v{8+k}, v6, s[{P_X}:{P_X+1}] offset:{256*k}")
    e.label("L_f_nox")
    for ii in range(5):
        e(f"""
        s_mov_b32 m0, s67
        s_add_u32 s67, s67, 8192
        buffer_load_dwordx4 v7, s[{SRD_0}:{SRD_0+3}], s64 offen{NT} lds
        s_add_u32 s64, s64, {8*4*8192}
        """)
    if cfg.selftouch:
        e(f"""
        v_bfe_u32 v4, v1, 1, 4
        s_lshl_b32 s3, s{S_J}, 7
        s_lshl_b32 s64, s{S_W}, 4
        s_add_u32 s3, s3, s64
        v_add_u32 v4, s3, v4
        v_lshlrev_b32 v4, 13, v4
        v_and_b32 v5, 1, v1
        v_lshl_add_u32 v4, v5, 7, v4
        s_lshl_b32 s3, s{S_H}, 8
        v_add_u32 v4, s3, v4
        s_mov_b64 exec, 0xffffffff
        global_load_dword v200, v4, s[{P_WUK}:{P_WUK+1}] nt
        s_mov_b64 exec, -1
        """)
    if cfg.ukearly:
        e("s_barrier")
        e(f"s_cmp_lt_u32 s{S_W}, 4\ns_cbranch_scc0 L_f_nouk")
        uk_dma(False)
        e.label("L_f_nouk")
    e(f"""
    s_load_dword s{S_TAG}, {WS}, 0
    s_branch L_F1
    """)
    e.label("L_B0")
    if cfg.exp_nob: e("s_endpgm")
    e(f"""
    s_lshl_b32 s3, s{S_W}, 1
    v_xor_b32 v7, s3, v1
    v_lshlrev_b32 v7, 4, v7
    s_lshl_b32 s{S_CH}, s{S_X}, 2
    s_add_u32 s{S_CH}, s{S_CH}, s{S_J}
    s_lshl_b32 s66, s{S_CH}, 17
    s_and_b32 s67, s{S_I}, 12
    s_lshl_b32 s67, s67, 13
    s_lshl_b32 s65, s{S_W}, 10
    s_add_u32 s67, s67, s65
    s_mov_b32 s{SRD_0+2}, 4194304
    s_mov_b32 s68, 15
    v_bfe_u32 v4, v1, 1, 4
    s_lshl_b32 s3, s{S_J}, 7
    s_lshl_b32 s64, s{S_W}, 4
    s_add_u32 s3, s3, s64
    v_add_u32 v4, s3, v4
    v_lshlrev_b32 v4, 13, v4
    v_and_b32 v5, 1, v1
    v_lshl_add_u32 v4, v5, 7, v4
    s_lshl_b32 s3, s{S_H}, 8
    v_add_u32 v4, s3, v4
    s_waitcnt lgkmcnt(0)
    s_mov_b32 s{SRD_0}, s{P_CKV}
    s_mov_b32 s{SRD_0+1}, s{P_CKV+1}
    """)
    if cfg.tsleep: e(f"s_sleep {cfg.tsleep}")
    if cfg.touch: e(f"""
    s_mov_b64 exec, 0xffffffff
    global_load_dword v200, v4, s[{P_WUK}:{P_WUK+1}]{" nt" if cfg.uknt else ""}
    s_mov_b64 exec, -1
    """)
    if cfg.bdelay: e(f"s_load_dword s{S_TAG}, {WS}, 0\ns_waitcnt lgkmcnt(0)")
    if cfg.bsleep: e(f"s_sleep {cfg.bsleep}")
    e.label("L_b_dma")
    e(f"""
    s_mov_b32 m0, s67
    s_add_u32 s69, s67, s66
    buffer_load_dwordx4 v7, s[{SRD_0}:{SRD_0+3}], s69 offen{" nt" if cfg.ckvnt else ""} lds
    s_add_u32 s67, s67, 8192
    s_and_b32 s67, s67, 0x1ffff
    s_sub_u32 s68, s68, 1
    s_cbranch_scc0 L_b_dma
    """)
    if not cfg.bdelay: e(f"s_load_dword s{S_TAG}, {WS}, 0")
    e("s_branch L_B1")

    e.label("L_F1")
    e(f"s_mov_b32 s{S_ISB}, 0")
    stamp(1)
    tr_common()
    e(f"""
    v_and_b32 v41, 1, v2
    v_lshl_add_u32 v41, v41, 2, v62
    v_lshlrev_b32 v41, 1, v41
    s_and_b32 s65, s{S_W}, 3
    s_lshl_b32 s3, s65, 2
    v_add_u32 v42, s3, v63
    v_xor_b32 v41, v41, v42
    v_lshl_add_u32 v41, v41, 4, v59
    v_lshl_add_u32 v42, v2, 3, v62
    v_lshl_add_u32 v41, v42, 8, v41
    v_add_u32 v41, {L_WQ}, v41
    v_xor_b32 v40, 32, v41
    s_mul_i32 s3, s{S_J}, 320
    s_add_u32 s3, s3, {L_LNS}
    v_lshl_add_u32 v42, v2, 4, s3
    s_lshl_b32 s3, s{S_H}, 2
    s_add_u32 s3, s3, s{S_J}
    s_lshl_b32 s3, s3, 9
    s_lshl_b32 s64, s65, 7
    s_add_u32 s3, s3, s64
    s_add_u32 s65, s3, {WS_Q1}
    v_and_b32 v43, 1, v1
    v_lshlrev_b32 v43, 6, v43
    v_lshl_add_u32 v43, v2, 4, v43
    v_add_u32 v43, s65, v43
    v_add_u32 v44, {WS_Q1F-WS_Q1}, v43
    s_lshl_b32 s64, s{S_W}, 6
    s_lshl_b32 s3, s{S_H}, 2
    s_and_b32 s65, s{S_W}, 3
    s_add_u32 s3, s3, s65
    s_lshl_b32 s3, s3, 9
    s_add_u32 s3, s3, {WS_Q1}
    v_lshl_add_u32 v45, v1, 3, s3
    v_add_u32 v49, {WS_Q1F-WS_Q1}, v45
    s_mul_i32 s3, s65, {QP_STRIDE}
    s_add_u32 s3, s3, {L_QP}
    v_lshl_add_u32 v46, v1, 2, s3
    v_and_b32 v47, 3, v3
    v_mul_u32_u24 v47, {QP_STRIDE}, v47
    v_lshl_add_u32 v47, v2, 4, v47
    v_add_u32 v47, {L_QP}, v47
    s_and_b32 s66, s{S_W}, 3
    s_lshl_b32 s3, s{S_H}, 10
    s_lshl_b32 s65, s{S_J}, 8
    s_add_u32 s3, s3, s65
    s_lshl_b32 s64, s66, 6
    s_add_u32 s3, s3, s64
    s_add_u32 s65, s3, {WS_QA}
    v_and_b32 v50, 1, v1
    v_lshlrev_b32 v50, 1, v50
    v_lshrrev_b32 v51, 1, v2
    v_add_u32 v50, v50, v51
    v_lshl_add_u32 v48, v50, 4, s65
    s_lshl_b32 s3, s66, 5
    v_add_u32 v24, s3, v3
    v_lshlrev_b32 v24, 8, v24
    v_and_b32 v25, 7, v3
    v_lshlrev_b32 v25, 1, v25
    v_xor_b32 v25, v25, v2
    v_lshl_add_u32 v24, v25, 4, v24
    v_add_u32 v24, {L_WUK}, v24
    v_xor_b32 v25, 64, v24
    v_xor_b32 v26, 128, v24
    v_xor_b32 v27, 192, v24
    s_cmp_eq_u32 s{S_W}, 0
    s_cbranch_scc0 L_f_noln
    """)
    e(f"s_waitcnt vmcnt({13 if cfg.ukearly else 5 + cfg.selftouch})")
    stamp(2)
    for k in range(5):
        e(f"v_lshlrev_b32 v{64+2*k}, 16, v{8+k}")
        e(f"v_and_b32 v{65+2*k}, 0xffff0000, v{8+k}")
    e(f"""
    v_pk_add_f32 v[74:75], v[64:65], v[66:67]
    v_pk_add_f32 v[76:77], v[68:69], v[70:71]
    v_pk_add_f32 v[74:75], v[74:75], v[72:73]
    v_pk_add_f32 v[74:75], v[74:75], v[76:77]
    v_mov_b32 v78, {F32(-1.0/640)}
    v_add_f32 v74, v74, v75
    """)
    dpp_reduce([74])
    e.nop(1)
    e("v_readlane_b32 s20, v74, 63")
    e(f"v_mov_b32 v80, {F32(1.0/640)}\nv_mov_b32 v81, {F32(1e-5)}")
    e("v_mul_f32 v78, s20, v78")
    for k in range(5):
        e(f"v_pk_add_f32 v[{64+2*k}:{65+2*k}], v[{64+2*k}:{65+2*k}], v[78:79] op_sel_hi:[1,0]")
    e("v_pk_mul_f32 v[74:75], v[64:65], v[64:65]")
    for k in range(1, 5):
        e(f"v_pk_fma_f32 v[74:75], v[{64+2*k}:{65+2*k}], v[{64+2*k}:{65+2*k}], v[74:75]")
    e("v_add_f32 v74, v74, v75")
    dpp_reduce([74])
    e.nop(1)
    e("v_readlane_b32 s21, v74, 63")
    e(f"v_mov_b32 v82, {F32(128**-0.5 * 1.4426950408889634)}")
    e(f"v_add_u32 v6, {L_LNS}, v6")
    e("v_fma_f32 v74, s21, v80, v81")
    e("v_rsq_f32 v74, v74")
    e.nop(1)
    e("v_mul_f32 v74, v74, v82")
    for k in range(5):
        e(f"v_pk_mul_f32 v[{64+2*k}:{65+2*k}], v[{64+2*k}:{65+2*k}], v[74:75] op_sel_hi:[1,0]")
    for k in range(5):
        e(f"v_cvt_pk_bf16_f32 v{8+k}, v{64+2*k}, v{65+2*k}")
        e(f"ds_write_b32 v6, v{8+k} offset:{256*k}")
    e.label("L_f_noln")
    if cfg.ukearly:
        e(f"s_cmp_lt_u32 s{S_W}, 4\ns_cbranch_scc0 L_f_w0\ns_waitcnt vmcnt(8)\ns_branch L_f_w1")
        e.label("L_f_w0")
        e("s_waitcnt vmcnt(0)")
        e.label("L_f_w1")
        e("s_waitcnt lgkmcnt(0)")
    else:
        e(f"s_waitcnt vmcnt({cfg.selftouch}) lgkmcnt(0)")
    mk_tag()
    e("s_barrier")
    stamp(3)
    e(f"v_mov_b32 v105, s{S_TAG}\nv_mov_b32 v107, s{S_TAG}")
    tagpat(52, 50, 56)
    e(f"s_cmp_lt_u32 s{S_W}, 4\ns_cbranch_scc1 L_f_uk")
    for ks in range(5):
        e(f"ds_read_b128 v[{84+4*ks}:{87+4*ks}], v42 offset:{64*ks}")
        e(f"ds_read_b64_tr_b16 v[{64+4*ks}:{65+4*ks}], v41 offset:{8192*ks}")
        e(f"ds_read_b64_tr_b16 v[{66+4*ks}:{67+4*ks}], v41 offset:{8192*ks+1024}")
        e(f"ds_read_b64_tr_b16 v[{112+4*ks}:{113+4*ks}], v40 offset:{8192*ks}")
        e(f"ds_read_b64_tr_b16 v[{114+4*ks}:{115+4*ks}], v40 offset:{8192*ks+1024}")
    e("s_mov_b32 s64, 0xaaaaaaaa\ns_mov_b32 s65, 0xaaaaaaaa")
    for ks in range(5):
        e(f"s_waitcnt lgkmcnt({min(15, 20-5*ks)})")
        c = "0" if ks == 0 else "v[108:111]"
        e(f"v_mfma_f32_16x16x32_bf16 v[108:111], v[{64+4*ks}:{67+4*ks}], v[{84+4*ks}:{87+4*ks}], {c}")
        c = "0" if ks == 0 else "v[132:135]"
        e(f"v_mfma_f32_16x16x32_bf16 v[132:135], v[{112+4*ks}:{115+4*ks}], v[{84+4*ks}:{87+4*ks}], {c}")
    e("s_mov_b32 exec_lo, 0x00030003\ns_mov_b32 exec_hi, 0x00030003")
    e.nop(6)
    for r in range(4):
        e(f"v_cndmask_b32 v{108+r}, v{108+r}, v{132+r}, s[64:65]")
    e("""
    v_cvt_pk_bf16_f32 v104, v108, v109
    v_cvt_pk_bf16_f32 v106, v110, v111
    """)
    if cfg.fast1: e(f"global_store_dwordx4 v44, v[104:107], {WS}")
    e(f"global_store_dwordx4 v43, v[104:107], {WS} sc1\ns_mov_b64 exec, -1")
    stamp(4)
    e(("" if cfg.ukearly else "s_barrier\n") + "s_branch L_h1_bar")
    e.label("L_f_uk")
    if not cfg.ukearly: uk_dma(True)
    e.label("L_h1")
    if cfg.fast1:
        e(f"global_load_dwordx2 v[66:67], v49, {WS} sc1")
        e(f"global_load_dwordx2 v[64:65], v45, {WS} sc1\ns_waitcnt vmcnt(0)")
        e(f"v_cmp_eq_u32 vcc, s{S_TAG}, v67")
        e.nop(2)
        e("v_cndmask_b32 v64, v64, v66, vcc\nv_cndmask_b32 v65, v65, v67, vcc")
    else:
        e(f"global_load_dwordx2 v[64:65], v45, {WS} sc1\ns_waitcnt vmcnt(0)")
    e(f"v_cmp_ne_u32 vcc, s{S_TAG}, v65")
    e(f"s_cbranch_vccz L_h1_done")
    spin_back("L_h1")
    e.label("L_h1_done")
    stamp(8)
    stamp(7)
    e("ds_write_b32 v46, v64")
    e.label("L_h1_bar")
    e("s_waitcnt lgkmcnt(0)\ns_barrier")
    stamp(5)
    e(f"s_cmp_lt_u32 s{S_W}, 4\ns_cbranch_scc1 L_f_nos2")
    for t in range(4):
        e(f"ds_read_b128 v[{64+4*t}:{67+4*t}], v47 offset:{64*t}")
        e(f"ds_read_b128 v[{80+4*t}:{83+4*t}], v{24+t}")
        e(f"ds_read_b128 v[{112+4*t}:{115+4*t}], v{24+t} offset:4096")
    e("s_mov_b32 s64, 0xaaaaaaaa\ns_mov_b32 s65, 0xaaaaaaaa")
    for t in range(4):
        e(f"s_waitcnt lgkmcnt({9-3*t})")
        c = "0" if t == 0 else "v[108:111]"
        e(f"v_mfma_f32_16x16x32_bf16 v[108:111], v[{80+4*t}:{83+4*t}], v[{64+4*t}:{67+4*t}], {c}")
        c = "0" if t == 0 else "v[132:135]"
        e(f"v_mfma_f32_16x16x32_bf16 v[132:135], v[{112+4*t}:{115+4*t}], v[{64+4*t}:{67+4*t}], {c}")
    e.nop(7)
    for st in ("row_ror:1", "row_ror:2"):
        for r in list(range(108, 112)) + list(range(132, 136)):
            e(f"v_add_f32_dpp v{r}, v{r}, v{r} {st} row_mask:0xf bank_mask:0xf")
    for r in range(4):
        e(f"v_cndmask_b32 v{108+r}, v{108+r}, v{132+r}, s[64:65]")
    e("""
    v_cvt_pk_bf16_f32 v104, v108, v109
    v_cvt_pk_bf16_f32 v105, v110, v111
    s_mov_b32 s66, 0xfffefffe
    v_mov_b32 v106, v104
    v_mov_b32 v107, v105
    s_nop 1
    v_permlane16_swap_b32 v104, v106
    v_permlane16_swap_b32 v105, v107
    s_mov_b32 exec_lo, 3
    s_mov_b32 exec_hi, 3
    v_and_or_b32 v104, v104, s66, v52
    v_and_or_b32 v105, v105, s66, v53
    v_and_or_b32 v106, v106, s66, v54
    v_and_or_b32 v107, v107, s66, v55
    """)
    e(f"global_store_dwordx4 v48, v[104:107], {WS} sc1\ns_mov_b64 exec, -1")
    stamp(6)
    e.label("L_f_nos2")
    e("s_barrier")
    if cfg.uvpf:
        e(f"""
        v_lshrrev_b32 v4, 1, v1
        s_lshl_b32 s3, s{S_J}, 7
        s_lshl_b32 s64, s{S_W}, 4
        s_add_u32 s3, s3, s64
        v_and_b32 v4, 15, v4
        v_add_u32 v4, s3, v4
        v_lshlrev_b32 v4, 13, v4
        v_and_b32 v5, 1, v1
        v_lshl_add_u32 v4, v5, 7, v4
        s_lshl_b32 s3, s{S_H}, 8
        v_add_u32 v4, s3, v4
        s_mov_b64 exec, 0xffffffff
        global_load_dword v5, v4, s[{P_WUV}:{P_WUV+1}]{NT}
        s_mov_b64 exec, -1
        """)
    e(f"s_cmp_lt_u32 s{S_I}, 10\ns_cbranch_scc1 L_s6")
    s7_loads()
    e("s_waitcnt vmcnt(0)")
    s7_prep()
    if cfg.n5sleep:
        e(f"""
        s_cmp_lt_u32 s{S_W}, 5
        s_cbranch_scc0 L_S7
        s_lshl_b32 s3, s{S_H}, 2
        s_add_u32 s3, s3, s{S_J}
        s_lshl_b32 s3, s3, 9
        s_add_u32 s3, s3, {WS_CTX}
        v_mov_b32 v40, s3
        """)
        e.label("L_sent")
        e(f"""
        global_load_dwordx2 v[42:43], v40, {WS} sc1
        s_waitcnt vmcnt(0)
        v_cmp_ne_u32 vcc, s{S_TAG}, v43
        s_cbranch_vccz L_sent_done
        s_sleep 8
        """)
        spin_back("L_sent")
        e.label("L_sent_done")
        e(f"s_sleep {cfg.n5sleep}")
    e("s_branch L_S7")
    e.label("L_s6")
    e(f"""
    s_mov_b32 s{SRD_WO}, s{P_WO}
    s_mov_b32 s{SRD_WO+1}, s{P_WO+1}
    s_mov_b32 s{SRD_WO+2}, 5242880
    s_mov_b32 s{SRD_WO+3}, 0x20000
    v_lshrrev_b32 v12, 3, v1
    v_mul_u32_u24 v50, 1280, v12
    v_and_b32 v12, 2, v12
    v_and_b32 v13, 7, v1
    v_xor_b32 v12, v12, v13
    v_lshl_add_u32 v50, v12, 4, v50
    v_xor_b32 v51, 64, v50
    s_lshl_b32 s3, s{S_X}, 3
    s_add_u32 s3, s3, s{S_W}
    s_mul_i32 s20, s3, {64*1280}
    s_lshl_b32 s65, s{S_I}, 7
    s_add_u32 s20, s20, s65
    s_lshl_b32 s21, s{S_W}, 13
    """)
    for ii in range(8):
        e(f"""
        s_mov_b32 m0, s21
        s_add_u32 s21, s21, 1024
        buffer_load_dwordx4 v{50+(ii&1)}, s[{SRD_WO}:{SRD_WO+3}], s20 offen{NT} lds
        s_add_u32 s20, s20, {8*1280}
        """)
    s7_loads()
    tr_common()
    e(f"""
    v_lshl_add_u32 v12, v2, 3, v62
    v_lshlrev_b32 v12, 7, v12
    v_add_u32 v12, v12, v59
    s_lshl_b32 s3, s{S_W}, 13
    v_add_u32 v12, s3, v12
    v_and_b32 v13, 1, v2
    v_lshlrev_b32 v13, 2, v13
    v_and_b32 v14, 2, v62
    v_or_b32 v13, v13, v14
    v_xor_b32 v13, v13, v63
    v_lshl_add_u32 v249, v13, 4, v12
    v_xor_b32 v250, 32, v249
    v_xor_b32 v251, 64, v249
    v_xor_b32 v252, 96, v249
    s_lshr_b32 s3, s{S_W}, 1
    s_lshl_b32 s64, s{S_X}, 2
    s_add_u32 s3, s3, s64
    s_lshl_b32 s3, s3, 11
    s_and_b32 s64, s{S_W}, 1
    s_lshl_b32 s64, s64, 8
    s_add_u32 s3, s3, s64
    s_add_u32 s3, s3, {WS_CTX}
    v_lshlrev_b32 v52, 9, v2
    v_lshl_add_u32 v52, v3, 4, v52
    v_add_u32 v52, s3, v52
    v_add_u32 v53, {WS_CTXF-WS_CTX}, v52
    s_lshl_b32 s3, s{S_W}, 7
    s_add_u32 s3, s3, {L_BNC}
    v_lshl_add_u32 v54, v3, 2, v2
    v_lshlrev_b32 v54, 1, v54
    v_add_u32 v54, s3, v54
    v_lshl_add_u32 v55, v2, 4, s3
    s_lshl_b32 s3, s{S_W}, 8
    s_add_u32 s3, s3, {L_ORED}
    v_lshl_add_u32 v253, v2, 4, s3
    v_lshlrev_b32 v254, 3, v1
    v_add_u32 v254, {L_ORED}, v254
    s_mul_i32 s3, s{S_X}, 1280
    s_lshl_b32 s64, s{S_I}, 7
    s_add_u32 s3, s3, s64
    s_add_u32 s3, s3, {WS_OP}
    v_lshl_add_u32 v255, v1, 2, s3
    v_and_b32 v12, 15, v1
    v_lshlrev_b32 v12, 1, v12
    v_mov_b32 v13, s{S_TAG}
    v_lshrrev_b32 v12, v12, v13
    v_and_b32 v13, 1, v12
    v_and_b32 v12, 2, v12
    v_lshl_or_b32 v136, v12, 15, v13
    s_waitcnt vmcnt(0)
    """)
    stamp(9)
    for tt in range(4):
        for ks in range(2):
            r = 80 + 8 * tt + 4 * ks
            e(f"ds_read_b64_tr_b16 v[{r}:{r+1}], v{249+tt} offset:{4096*ks}")
            e(f"ds_read_b64_tr_b16 v[{r+2}:{r+3}], v{249+tt} offset:{4096*ks+512}")
    s7_prep()
    e.label("L_h4")
    if cfg.fast4:
        e(f"global_load_dwordx4 v[44:47], v53, {WS} sc1")
        e(f"global_load_dwordx4 v[40:43], v52, {WS} sc1\ns_waitcnt vmcnt(0)")
        tagchk(48, [45, 47])
        e("v_cmp_eq_u32 vcc, 0, v48")
        e.nop(2)
        for k in range(4): e(f"v_cndmask_b32 v{40+k}, v{40+k}, v{44+k}, vcc")
    else:
        e(f"global_load_dwordx4 v[40:43], v52, {WS} sc1\ns_waitcnt vmcnt(0)")
    tagchk(48, [41, 43])
    poll_tail("L_h4", "L_h4_done", 48, cfg.h4sleep)
    stamp(10)
    e("""
    v_lshlrev_b32 v44, 16, v40
    v_and_b32 v45, 0xffff0000, v40
    v_lshlrev_b32 v46, 16, v42
    v_and_b32 v47, 0xffff0000, v42
    s_nop 1
    v_permlane32_swap_b32 v44, v46
    v_permlane32_swap_b32 v45, v47
    v_add_f32 v44, v44, v46
    v_add_f32 v45, v45, v47
    s_nop 1
    v_permlane16_swap_b32 v44, v45
    v_add_f32 v44, v44, v45
    v_cvt_pk_bf16_f32 v44, v44, v44
    ds_write_b16 v54, v44
    s_waitcnt lgkmcnt(0)
    ds_read_b128 v[112:115], v55
    ds_read_b128 v[116:119], v55 offset:64
    """)
    for ks in range(2):
        e(f"s_waitcnt lgkmcnt({1-ks})")
        for tt in range(4):
            c = "0" if ks == 0 else f"v[{120+4*tt}:{123+4*tt}]"
            r = 80 + 8 * tt + 4 * ks
            e(f"v_mfma_f32_16x16x32_bf16 v[{120+4*tt}:{123+4*tt}], v[{r}:{r+3}], v[{112+4*ks}:{115+4*ks}], {c}")
    e("s_mov_b32 exec_lo, 0x00010001\ns_mov_b32 exec_hi, 0x00010001")
    e.nop(3)
    for tt in range(4):
        e(f"ds_write_b128 v253, v[{120+4*tt}:{123+4*tt}] offset:{64*tt}")
    e(f"""
    s_mov_b64 exec, -1
    s_waitcnt lgkmcnt(0)
    s_barrier
    s_cmp_eq_u32 s{S_W}, 7
    s_cbranch_scc0 L_s6_w
    s_mov_b64 exec, 0xffffffff
    """)
    for w in range(8):
        e(f"ds_read_b64 v[{40+2*w}:{41+2*w}], v254 offset:{256*w}")
    e(f"""
    s_mov_b32 s66, 0xfffefffe
    s_waitcnt lgkmcnt(0)
    v_pk_add_f32 v[40:41], v[40:41], v[42:43]
    v_pk_add_f32 v[44:45], v[44:45], v[46:47]
    v_pk_add_f32 v[48:49], v[48:49], v[50:51]
    v_pk_add_f32 v[52:53], v[52:53], v[54:55]
    v_pk_add_f32 v[40:41], v[40:41], v[44:45]
    v_pk_add_f32 v[48:49], v[48:49], v[52:53]
    v_pk_add_f32 v[40:41], v[40:41], v[48:49]
    v_cvt_pk_bf16_f32 v56, v40, v41
    v_and_or_b32 v56, v56, s66, v136
    global_store_dword v255, v56, {WS} sc1
    s_mov_b64 exec, -1
    """)
    stamp(11)
    e("s_branch L_S7")
    e.label("L_s6_w")
    if cfg.f5sleep: e(f"s_sleep {cfg.f5sleep}")
    e("s_branch L_S7")

    e.label("L_B1")
    e(f"s_mov_b32 s{S_ISB}, 1")
    stamp(1)
    e(f"""
    s_lshr_b32 s3, s{S_I}, 2
    s_lshl_b32 s3, s3, 3
    s_add_u32 s3, s3, s{S_W}
    s_lshl_b32 s3, s3, 10
    s_add_u32 s3, s3, {WS_QA}
    v_lshl_add_u32 v5, v1, 4, s3
    s_mul_i32 s3, s{S_W}, {QAS_STRIDE}
    s_add_u32 s3, s3, {L_QAS}
    v_lshl_add_u32 v6, v1, 4, s3
    """)
    tr_common()
    e(f"s_cmp_lt_u32 s{S_W}, 4\ns_cbranch_scc0 L_bp_prep")
    def h2_poll(sfx):
        msk = "s66" if sfx == "q" else "s67"
        e("s_waitcnt vmcnt(0)\ns_branch L_h2_chk" + sfx)
        e.label("L_h2" + sfx)
        e(f"""
        global_load_dwordx4 v[40:43], v5, {WS} sc1
        s_waitcnt vmcnt(0)
        """)
        e.label("L_h2_chk" + sfx)
        for i in range(4):
            e(f"v_bitop3_b32 v{48+i if sfx == 'p' else 12+i}, v{40+i}, v{44+i}, {msk} bitop3:0x28")
        t = 48 if sfx == "p" else 12
        e(f"v_or3_b32 v4, v{t}, v{t+1}, v{t+2}\nv_or_b32 v4, v4, v{t+3}")
        poll_tail("L_h2" + sfx, "L_h2_done" + sfx, 4, cfg.h2sleep)
        stamp(5)
        e(f"""
        ds_write_b128 v6, v[40:43]
        s_waitcnt lgkmcnt(0)
        s_barrier
        """)
    e(f"""
    s_lshl_b32 s3, s{S_W}, 5
    v_add_u32 v12, s3, v3
    v_lshlrev_b32 v12, 10, v12
    v_and_b32 v13, 7, v1
    v_lshlrev_b32 v13, 1, v13
    v_xor_b32 v13, v13, v2
    v_lshl_add_u32 v8, v13, 4, v12
    v_xor_b32 v9, 64, v8
    v_xor_b32 v10, 128, v8
    v_xor_b32 v11, 192, v8
    v_and_b32 v216, 7, v3
    v_lshlrev_b32 v217, 4, v216
    v_mul_u32_u24 v216, {QAS_STRIDE}, v216
    v_lshl_add_u32 v216, v2, 4, v216
    v_add_u32 v216, {L_QAS}, v216
    v_add_u32 v217, {L_MX}, v217
    s_lshl_b32 s3, s{S_W}, 2
    v_add_u32 v218, s3, v217
    s_lshl_b32 s3, s{S_W}, 10
    s_add_u32 s3, s3, {L_PEX}
    v_lshl_add_u32 v219, v1, 4, s3
    v_and_b32 v220, 1, v2
    v_lshl_add_u32 v220, v220, 2, v62
    v_lshlrev_b32 v220, 1, v220
    s_lshl_b32 s3, s{S_W}, 2
    v_add_u32 v12, s3, v63
    v_xor_b32 v220, v220, v12
    v_lshl_add_u32 v220, v220, 4, v59
    v_lshl_add_u32 v12, v2, 3, v62
    v_lshl_add_u32 v220, v12, 8, v220
    v_xor_b32 v221, 32, v220
    s_lshl_b32 s3, s{S_H}, 10
    s_lshl_b32 s65, s{S_J}, 8
    s_add_u32 s3, s3, s65
    s_lshl_b32 s64, s{S_W}, 6
    s_add_u32 s3, s3, s64
    s_add_u32 s65, s3, {WS_PART}
    s_lshl_b32 s64, s{S_W}, 7
    v_lshrrev_b32 v12, 2, v1
    v_and_b32 v13, 3, v1
    v_lshlrev_b32 v222, 15, v12
    v_lshl_add_u32 v222, v13, 4, v222
    v_add_u32 v222, s65, v222
    s_lshl_b32 s3, s{S_H}, 7
    s_add_u32 s3, s3, {WS_ST}
    v_lshlrev_b32 v48, 12, v12
    v_lshl_add_u32 v48, v13, 4, v48
    v_add_u32 v48, s3, v48
    v_and_b32 v223, 1, v2
    v_lshlrev_b32 v223, 4, v223
    v_lshrrev_b32 v12, 1, v2
    v_lshl_add_u32 v223, v12, 1, v223
    v_lshl_add_u32 v223, v13, 2, v223
    s_lshl_b32 s3, s{S_W}, 5
    v_add_u32 v223, s3, v223
    v_lshlrev_b32 v223, 1, v223
    v_add_u32 v223, {L_CTXS}, v223
    v_lshlrev_b32 v49, 4, v2
    v_add_u32 v49, {L_CTXS}, v49
    s_lshl_b32 s3, s{S_H}, 2
    s_add_u32 s3, s3, s{S_J}
    s_lshl_b32 s3, s3, 9
    s_add_u32 s3, s3, s64
    s_add_u32 s3, s3, {WS_CTX}
    v_and_b32 v50, 1, v1
    v_lshlrev_b32 v50, 6, v50
    v_lshl_add_u32 v50, v2, 4, v50
    v_add_u32 v50, s3, v50
    v_add_u32 v51, {WS_CTXF-WS_CTX}, v50
    s_waitcnt vmcnt(0) lgkmcnt(0)
    global_load_dwordx4 v[40:43], v5, {WS} sc1
    """)
    mk_tag()
    e("v_and_b32 v16, 3, v1\ns_mov_b32 s66, 0x00010001")
    tagpat(44, 16, 12)
    e("s_barrier")
    stamp(14)
    for t in range(2):
        for j in range(16):
            e(f"ds_read_b128 v[{64+64*t+4*j}:{67+64*t+4*j}], v{8+(j&3)} offset:{256*(j>>2)+16384*t}")
    h2_poll("q")
    def qb(j):
        if j < 6: return 192 + 4 * j
        if j < 13: return 12 + 4 * (j - 6)
        if j < 15: return 40 + 4 * (j - 13)
        return 52
    stamp(4)
    for j in range(16):
        e(f"ds_read_b128 v[{qb(j)}:{qb(j)+3}], v216 offset:{64*j}")
    for j in range(16):
        if j % 2 == 0: e(f"s_waitcnt lgkmcnt({max(0, 14-j)})")
        for t in range(2):
            acc = f"v[{56+4*t}:{59+4*t}]"
            c = "0" if j == 0 else acc
            e(f"v_mfma_f32_16x16x32_bf16 {acc}, v[{64+64*t+4*j}:{67+64*t+4*j}], v[{qb(j)}:{qb(j)+3}], {c}")
    e.nop(7)
    stamp(10)
    e("""
    v_max3_f32 v12, v56, v57, v58
    s_nop 0
    v_max3_f32 v13, v60, v61, v62
    v_max3_f32 v12, v59, v63, v12
    v_max_f32 v12, v12, v13
    v_mov_b32 v13, v12
    """)
    e.nop(2)
    e("v_permlane16_swap_b32 v12, v13")
    e("v_max_f32 v12, v12, v13\nv_mov_b32 v13, v12")
    e.nop(2)
    e("v_permlane32_swap_b32 v12, v13")
    e("""
    v_max_f32 v12, v12, v13
    s_mov_b64 exec, 0xff
    ds_write_b32 v218, v12
    s_mov_b64 exec, -1
    s_waitcnt lgkmcnt(0)
    s_barrier
    """)
    stamp(11)
    e("""
    ds_read_b128 v[16:19], v217
    s_waitcnt lgkmcnt(0)
    v_max3_f32 v12, v16, v17, v18
    v_max_f32 v12, v12, v19
    """)
    for r in range(8): e(f"v_sub_f32 v{56+r}, v{56+r}, v12")
    for r in range(8): e(f"v_exp_f32 v{56+r}, v{56+r}")
    e("s_nop 0")
    for r in range(4): e(f"v_cvt_pk_bf16_f32 v{16+r}, v{56+2*r}, v{57+2*r}")
    e(f"""
    ds_write_b128 v219, v[16:19]
    s_cmp_eq_u32 s{S_W}, 0
    s_cbranch_scc0 L_bq_nom
    s_mov_b64 exec, 0xff
    ds_write_b32 v218, v12 offset:128
    s_mov_b64 exec, -1
    """)
    e.label("L_bq_nom")
    e("s_waitcnt lgkmcnt(0)\ns_barrier")
    stamp(6)
    e(f"""
    v_mov_b32 v105, s{S_TAG}
    v_mov_b32 v107, s{S_TAG}
    v_add_u32 v192, 0x80000, v222
    v_add_u32 v195, 0x10000, v48
    v_and_b32 v196, 3, v1
    s_mov_b32 s66, 0x00010001
    s_mov_b32 s64, 0xaaaaaaaa
    s_mov_b32 s65, 0xaaaaaaaa
    """)
    e("s_barrier")
    for t in range(2):
        for ks in range(4):
            r = 128 + 16 * t + 4 * ks
            e(f"ds_read_b64_tr_b16 v[{r}:{r+1}], v{220+t} offset:{8192*ks}")
            e(f"ds_read_b64_tr_b16 v[{r+2}:{r+3}], v{220+t} offset:{8192*ks+1024}")
    tagpat(198, 196, 202)
    if cfg.h3sleep: e(f"s_sleep {cfg.h3sleep}")
    stamp(2)
    def datachk():
        for i in range(8):
            e(f"v_bitop3_b32 v{20+i}, v{80+i}, v{198+(i&3)}, s66 bitop3:0x28")
        e("v_or3_b32 v4, v20, v21, v22\nv_or3_b32 v5, v23, v24, v25\nv_or3_b32 v4, v26, v27, v4\nv_or_b32 v4, v4, v5")
    e.label("L_h3")
    e(f"""
    global_load_dwordx4 v[64:67], v48, {WS} sc1
    global_load_dwordx4 v[68:71], v195, {WS} sc1
    global_load_dwordx4 v[80:83], v222, {WS} sc1
    global_load_dwordx4 v[84:87], v192, {WS} sc1
    s_waitcnt vmcnt(2)
    """)
    tagchk(4, [65, 67, 69, 71])
    e("v_cmp_ne_u32 vcc, 0, v4\ns_cbranch_vccz L_h3_st\ns_waitcnt vmcnt(0)")
    if cfg.h3psleep: e(f"s_sleep {cfg.h3psleep}")
    spin_back("L_h3")
    e.label("L_h3_st")
    stamp(3)
    e("""
    v_max_f32 v4, v64, v68
    s_nop 1
    v_max_f32_dpp v4, v4, v4 row_ror:4 row_mask:0xf bank_mask:0xf
    s_nop 1
    v_max_f32_dpp v4, v4, v4 row_ror:8 row_mask:0xf bank_mask:0xf
    s_nop 0
    v_mov_b32 v5, v4
    s_nop 1
    v_permlane16_swap_b32 v4, v5
    v_max_f32 v4, v4, v5
    v_mov_b32 v5, v4
    s_nop 1
    v_permlane32_swap_b32 v4, v5
    v_max_f32 v4, v4, v5
    v_sub_f32 v64, v64, v4
    v_sub_f32 v68, v68, v4
    v_exp_f32 v64, v64
    v_exp_f32 v68, v68
    s_nop 0
    v_mul_f32 v28, v64, v66
    v_fmac_f32 v28, v68, v70
    s_nop 1
    v_add_f32_dpp v28, v28, v28 row_ror:4 row_mask:0xf bank_mask:0xf
    s_nop 1
    v_add_f32_dpp v28, v28, v28 row_ror:8 row_mask:0xf bank_mask:0xf
    s_nop 0
    v_mov_b32 v29, v28
    s_nop 1
    v_permlane16_swap_b32 v28, v29
    v_add_f32 v28, v28, v29
    v_mov_b32 v29, v28
    s_nop 1
    v_permlane32_swap_b32 v28, v29
    v_add_f32 v28, v28, v29
    v_rcp_f32 v28, v28
    s_nop 0
    v_mul_f32 v64, v64, v28
    v_mul_f32 v68, v68, v28
    s_waitcnt vmcnt(0)
    s_branch L_h3_dchk
    """)
    e.label("L_h3d")
    e(f"""
    global_load_dwordx4 v[80:83], v222, {WS} sc1
    global_load_dwordx4 v[84:87], v192, {WS} sc1
    s_waitcnt vmcnt(0)
    """)
    e.label("L_h3_dchk")
    datachk()
    poll_tail("L_h3d", "L_h3_done", 4)
    stamp(8)
    for i in range(4):
        e(f"v_lshlrev_b32 v{12+2*i}, 16, v{80+i}\nv_and_b32 v{13+2*i}, 0xffff0000, v{80+i}")
    for i in range(4):
        e(f"v_lshlrev_b32 v{20+2*i}, 16, v{84+i}\nv_and_b32 v{21+2*i}, 0xffff0000, v{84+i}")
        e(f"v_pk_mul_f32 v[{12+2*i}:{13+2*i}], v[{12+2*i}:{13+2*i}], v[64:65] op_sel_hi:[1,0]")
    for i in range(4):
        e(f"v_pk_fma_f32 v[{12+2*i}:{13+2*i}], v[{20+2*i}:{21+2*i}], v[68:69], v[{12+2*i}:{13+2*i}] op_sel_hi:[1,0,1]")
    for st in ("row_ror:4", "row_ror:8"):
        for r in range(12, 20):
            e(f"v_add_f32_dpp v{r}, v{r}, v{r} {st} row_mask:0xf bank_mask:0xf")
    for i in range(4):
        e(f"v_permlane16_swap_b32 v{12+i}, v{16+i}")
    for i in range(4):
        e(f"v_add_f32 v{12+i}, v{12+i}, v{16+i}")
    e("""
    s_nop 0
    v_permlane32_swap_b32 v12, v14
    v_permlane32_swap_b32 v13, v15
    s_mov_b32 exec_lo, 0x000f000f
    s_mov_b32 exec_hi, 0x000f000f
    v_add_f32 v12, v12, v14
    v_add_f32 v13, v13, v15
    v_cvt_pk_bf16_f32 v12, v12, v13
    ds_write_b32 v223, v12
    s_mov_b64 exec, -1
    s_waitcnt lgkmcnt(0)
    s_barrier
    """)
    for ks in range(4):
        e(f"ds_read_b128 v[{112+4*ks}:{115+4*ks}], v49 offset:{64*ks}")
    for ks in range(4):
        e(f"s_waitcnt lgkmcnt({3-ks})")
        for t in range(2):
            acc = f"v[{96+4*t}:{99+4*t}]"
            c = "0" if ks == 0 else acc
            r = 128 + 16 * t + 4 * ks
            e(f"v_mfma_f32_16x16x32_bf16 {acc}, v[{r}:{r+3}], v[{112+4*ks}:{115+4*ks}], {c}")
    e("s_mov_b32 exec_lo, 0x00030003\ns_mov_b32 exec_hi, 0x00030003")
    e.nop(6)
    for r in range(4):
        e(f"v_cndmask_b32 v{96+r}, v{96+r}, v{100+r}, s[64:65]")
    e("""
    v_cvt_pk_bf16_f32 v104, v96, v97
    v_cvt_pk_bf16_f32 v106, v98, v99
    """)
    if cfg.fast4: e(f"global_store_dwordx4 v51, v[104:107], {WS}")
    e(f"global_store_dwordx4 v50, v[104:107], {WS} sc1\ns_mov_b64 exec, -1")
    stamp(9)
    e("s_branch L_b_tail")
    e.label("L_bp_prep")
    e(f"""
    v_lshl_add_u32 v58, v2, 2, v62
    v_and_b32 v13, 7, v58
    v_lshlrev_b32 v13, 1, v13
    v_lshlrev_b32 v58, 10, v58
    v_add_u32 v58, v58, v59
    s_and_b32 s66, s{S_W}, 3
    s_lshl_b32 s3, s66, 4
    v_add_u32 v12, s3, v63
    v_xor_b32 v12, v12, v13
    v_lshl_add_u32 v8, v12, 4, v58
    """)
    for tt in range(1, 8):
        e(f"v_xor_b32 v{8+tt}, {32*tt}, v8")
    e(f"""
    v_lshlrev_b32 v16, 4, v1
    v_add_u32 v16, {L_PEX}, v16
    s_mov_b32 s{SRD_A}, s{P_WUV}
    s_mov_b32 s{SRD_A+1}, s{P_WUV+1}
    s_mov_b32 s{SRD_A+2}, 4194304
    s_mov_b32 s{SRD_A+3}, 0x20000
    s_lshl_b32 s3, s{S_W}, 2
    s_and_b32 s3, s3, 8
    v_lshlrev_b32 v19, 1, v2
    v_xor_b32 v19, v19, v3
    v_xor_b32 v19, s3, v19
    v_lshlrev_b32 v19, 4, v19
    v_lshl_add_u32 v19, v2, 13, v19
    s_lshl_b32 s20, s{S_J}, 5
    s_add_u32 s20, s20, s66
    s_lshl_b32 s20, s20, 15
    s_lshl_b32 s21, s{S_H}, 8
    s_add_u32 s20, s20, s21
    s_lshl_b32 s21, s66, 10
    v_lshl_add_u32 v56, v1, 4, s21
    s_lshl_b32 s3, s{S_CH}, 15
    s_lshr_b32 s64, s{S_I}, 2
    s_lshl_b32 s65, s64, 13
    s_add_u32 s3, s3, s65
    s_lshl_b32 s65, s66, 8
    s_add_u32 s3, s3, s65
    s_add_u32 s3, s3, {WS_PART}
    v_and_b32 v17, 7, v3
    v_lshlrev_b32 v17, 10, v17
    v_lshl_add_u32 v17, v2, 4, v17
    v_lshrrev_b32 v20, 3, v3
    v_lshl_add_u32 v17, v20, 6, v17
    v_add_u32 v17, s3, v17
    s_lshl_b32 s64, s64, 10
    s_lshl_b32 s65, s{S_CH}, 12
    s_add_u32 s64, s64, s65
    s_add_u32 s64, s64, {WS_ST}
    v_lshrrev_b32 v18, 2, v1
    v_lshlrev_b32 v18, 7, v18
    v_and_b32 v20, 3, v1
    v_lshl_add_u32 v18, v20, 4, v18
    v_add_u32 v18, s64, v18
    v_mov_b32 v36, 0x3f803f80
    v_mov_b32 v37, 0x3f803f80
    v_mov_b32 v38, 0x3f803f80
    v_mov_b32 v39, 0x3f803f80
    s_waitcnt vmcnt(0) lgkmcnt(0)
    global_load_dwordx4 v[40:43], v5, {WS} sc1
    """)
    mk_tag()
    e("v_and_b32 v50, 3, v1\ns_mov_b32 s67, 0x00010001")
    tagpat(44, 50, 48)
    e(f"v_mov_b32 v53, s{S_TAG}\nv_mov_b32 v55, s{S_TAG}")
    tagpat(57, 2, 61)
    e("s_barrier")
    stamp(14)
    for half in range(2):
        for tt in range(8):
            for k2 in range(2):
                ks = 2 * half + k2
                for eb in range(2):
                    r = 64 + 16 * tt + 4 * ks + 2 * eb
                    e(f"ds_read_b64_tr_b16 v[{r}:{r+1}], v{8+tt} offset:{32768*k2+16384*eb}")
        if half == 0:
            for tt in range(8):
                e(f"v_add_u32 v{8+tt}, 0x10000, v{8+tt}")
    h2_poll("p")
    for ii in range(8):
        e(f"""
        s_mov_b32 m0, s21
        s_add_u32 s21, s21, 4096
        buffer_load_dwordx4 v19, s[{SRD_A}:{SRD_A+3}], s20 offen{NT} lds
        s_add_u32 s20, s20, {4*4*8192}
        """)
    e("s_barrier\ns_barrier")
    for ks in range(4):
        e(f"ds_read_b128 v[{20+4*ks}:{23+4*ks}], v16 offset:{1024*ks}")
    e(f"""
    v_bfe_u32 v5, v1, 2, 3
    v_lshlrev_b32 v4, 4, v5
    v_add_u32 v4, {L_MX+128}, v4
    v_lshlrev_b32 v5, 2, v5
    s_mov_b32 s64, 0xff00ff00
    s_mov_b32 s65, 0xff00ff00
    """)
    stamp(6)
    for pr in range(4):
        e(f"v_mov_b32 v{37+0}, v{37}") if False else None
    def epi(sg):
        g = 64 + 64 * sg
        out = []
        for t in range(4):
            a0 = 192 + 16 * sg + 4 * t
            out.append(f"v_cvt_pk_bf16_f32 v{44+2*t}, v{a0}, v{a0+1}")
            out.append(f"v_cvt_pk_bf16_f32 v{45+2*t}, v{a0+2}, v{a0+3}")
        for i in range(4):
            out.append(f"v_cndmask_b32 v{g+i}, v{44+i}, v{48+i}, s[64:65]")
        for i in range(4):
            out.append(f"v_and_or_b32 v{g+i}, v{g+i}, s66, v{57+i}")
        out.append(f"global_store_dwordx4 v17, v[{g}:{g+3}], {WS} offset:{128*sg} sc1")
        return out
    e("s_mov_b32 s66, 0xfffefffe")
    ep0 = epi(0)
    for sg in range(2):
        k = 0
        for ks in range(4):
            for t in range(4):
                tt = 4 * sg + t
                acc = f"v[{192+4*tt}:{195+4*tt}]"
                c = "0" if ks == 0 else acc
                r = 64 + 16 * tt + 4 * ks
                if sg == 0 and t == 0: e(f"s_waitcnt lgkmcnt({3-ks})")
                e(f"v_mfma_f32_16x16x32_bf16 {acc}, v[{r}:{r+3}], v[{20+4*ks}:{23+4*ks}], {c}")
                k += 1
                if sg == 1 and k >= 8:
                    for _ in range(2):
                        if ep0: e(ep0.pop(0))
        if sg == 1:
            while ep0: e(ep0.pop(0))
    e(f"s_cmp_eq_u32 s{S_W}, 4\ns_cbranch_scc0 L_b_nol")
    e("ds_read_b32 v52, v4")
    for ks in range(4):
        c = "0" if ks == 0 else "v[40:43]"
        e(f"v_mfma_f32_16x16x32_bf16 v[40:43], v[36:39], v[{20+4*ks}:{23+4*ks}], {c}")
    e.label("L_b_nol")
    e.nop(6)
    for ins in epi(1): e(ins)
    e(f"""
    s_cmp_eq_u32 s{S_W}, 4
    s_cbranch_scc0 L_b_nostat
    ds_bpermute_b32 v54, v5, v40
    s_mov_b64 exec, 0xffffffff
    s_waitcnt lgkmcnt(0)
    global_store_dwordx4 v18, v[52:55], {WS} sc1
    s_mov_b64 exec, -1
    """)
    stamp(7)
    e("s_waitcnt vmcnt(3)\ns_branch L_b_st2")
    e.label("L_b_nostat")
    stamp(7)
    e("s_waitcnt vmcnt(2)")
    e.label("L_b_st2")
    e("s_barrier\ns_barrier")
    e.label("L_b_tail")
    e("s_barrier")
    s7_loads()
    e("s_waitcnt vmcnt(0)")
    s7_prep()
    if cfg.b5sleep: e(f"s_sleep {cfg.b5sleep}")

    e.label("L_S7")
    e(f"s_cmp_lt_u32 s{S_W}, 5\ns_cbranch_scc0 L_s7_bar")
    e("s_mov_b32 s66, 0x00010001")
    e.label("L_h5")
    e(f"""
    global_load_dwordx4 v[40:43], v244, {WS} sc1
    global_load_dwordx4 v[44:47], v245, {WS} sc1
    s_waitcnt vmcnt(0)
    """)
    for i in range(8):
        e(f"v_bitop3_b32 v{48+i}, v{40+i}, v{10+(i&3)}, s66 bitop3:0x28")
    e("v_or3_b32 v56, v48, v49, v50\nv_or3_b32 v57, v51, v52, v53\nv_or3_b32 v56, v54, v55, v56\nv_or_b32 v56, v56, v57")
    poll_tail("L_h5", "L_h5_done", 56, cfg.h5sleep)
    stamp(12)
    for i in range(4):
        e(f"v_lshlrev_b32 v{80+2*i}, 16, v{40+i}\nv_and_b32 v{81+2*i}, 0xffff0000, v{40+i}")
    for i in range(4):
        e(f"v_lshlrev_b32 v{88+2*i}, 16, v{44+i}\nv_and_b32 v{89+2*i}, 0xffff0000, v{44+i}")
        e(f"v_pk_add_f32 v[{80+2*i}:{81+2*i}], v[{80+2*i}:{81+2*i}], v[{88+2*i}:{89+2*i}]")
    e("s_nop 0")
    for i in range(4): e(f"v_permlane16_swap_b32 v{80+i}, v{84+i}")
    for i in range(4): e(f"v_add_f32 v{80+i}, v{80+i}, v{84+i}")
    e(f"""
    s_nop 0
    v_permlane32_swap_b32 v80, v82
    v_permlane32_swap_b32 v81, v83
    v_add_f32 v50, v80, v82
    v_add_f32 v51, v81, v83
    v_pk_add_f32 v[50:51], v[50:51], v[58:59]
    ds_write_b64 v248, v[50:51]
    v_add_f32 v52, v50, v51
    v_mul_f32 v53, v50, v50
    v_fmac_f32 v53, v51, v51
    """)
    dpp_reduce([52, 53])
    e(f"""
    s_mov_b32 exec_lo, 0
    s_mov_b32 exec_hi, 0x80000000
    ds_write_b64 v68, v[52:53]
    s_mov_b64 exec, -1
    """)
    e.label("L_s7_bar")
    e(f"""
    s_waitcnt lgkmcnt(0)
    s_barrier
    """)
    if cfg.s7stamps: stamp(1)
    e(f"""
    s_cmp_lt_u32 s2, {216 if cfg.outmap else 214}
    s_cbranch_scc0 L_fin
    ds_read_b128 v[40:43], v62
    ds_read_b128 v[44:47], v62 offset:16
    ds_read_b64 v[48:49], v62 offset:32
    ds_read_b32 v50, v63
    ds_read_b32 v52, v63 offset:4
    ds_read_b32 v54, v63 offset:8
    s_waitcnt lgkmcnt(3)
    v_pk_add_f32 v[40:41], v[40:41], v[42:43]
    v_pk_add_f32 v[44:45], v[44:45], v[46:47]
    v_pk_add_f32 v[40:41], v[40:41], v[48:49]
    v_pk_add_f32 v[40:41], v[40:41], v[44:45]
    v_pk_mul_f32 v[40:41], v[40:41], v[60:61] op_sel_hi:[1,0]
    v_fma_f32 v41, -v40, v40, v41
    v_max_f32 v41, 0, v41
    v_fma_f32 v42, v41, v61, v65
    s_waitcnt lgkmcnt(0)
    v_rsq_f32 v42, v42
    v_sub_f32 v70, v50, v40
    v_sub_f32 v72, v52, v40
    v_sub_f32 v74, v54, v40
    v_mul_f32 v70, v70, v42
    v_mul_f32 v72, v72, v42
    v_mul_f32 v74, v74, v42
    """)
    if cfg.s7stamps: stamp(2)
    combos = [(r, o) for o in range(3) for r in range(2)]
    for c, (r, o) in enumerate(combos):
        e(f"v_pk_fma_f32 v[{80+2*c}:{81+2*c}], v[{70+2*o}:{71+2*o}], v[{232+2*r}:{233+2*r}], v[{236+2*r}:{237+2*r}] op_sel_hi:[0,1,1]")
    for c in range(6):
        e(f"v_pk_mul_f32 v[{92+2*c}:{93+2*c}], v[{80+2*c}:{81+2*c}], v[{80+2*c}:{81+2*c}]")
    for c in range(6):
        e(f"v_pk_fma_f32 v[{92+2*c}:{93+2*c}], v[{92+2*c}:{93+2*c}], v[66:67], v[64:65] op_sel_hi:[1,0,0]")
    for c in range(6):
        e(f"v_pk_mul_f32 v[{92+2*c}:{93+2*c}], v[{92+2*c}:{93+2*c}], v[{80+2*c}:{81+2*c}]")
    for c in range(12):
        e(f"v_exp_f32 v{92+c}, v{92+c}")
    for c in range(6):
        e(f"v_pk_add_f32 v[{92+2*c}:{93+2*c}], v[{92+2*c}:{93+2*c}], 1.0 op_sel_hi:[1,0]")
    for c in range(12):
        e(f"v_rcp_f32 v{92+c}, v{92+c}")
    for c in range(6):
        e(f"v_pk_mul_f32 v[{80+2*c}:{81+2*c}], v[{80+2*c}:{81+2*c}], v[{92+2*c}:{93+2*c}]")
    for o in range(3):
        e(f"v_pk_mul_f32 v[{104+2*o}:{105+2*o}], v[{80+4*o}:{81+4*o}], v[240:241]")
    for o in range(3):
        e(f"v_pk_fma_f32 v[{104+2*o}:{105+2*o}], v[{82+4*o}:{83+4*o}], v[242:243], v[{104+2*o}:{105+2*o}]")
    if cfg.s7stamps: stamp(3)
    e("v_add_f32 v110, v104, v105\nv_add_f32 v111, v106, v107\nv_add_f32 v112, v108, v109")
    dpp_reduce([110, 111, 112])
    e(f"""
    s_mov_b32 exec_lo, 0
    s_mov_b32 exec_hi, 0x80000000
    ds_write_b128 v69, v[110:113]
    s_mov_b64 exec, -1
    {"s_mul_i32 s3, s5, 80" if cfg.outmap else "s_mov_b32 s3, 560"}
    s_add_u32 s3, s3, 80
    v_cmp_gt_u32 vcc, s3, v8
    v_lshlrev_b32 v8, 1, v8
    s_waitcnt lgkmcnt(0)
    s_barrier
    """)
    if cfg.s7stamps: stamp(4)
    e(f"""
    s_cmp_eq_u32 s{S_W}, 0
    s_cbranch_scc0 L_fin
    s_and_b64 vcc, vcc, 7
    s_and_saveexec_b64 s[64:65], vcc
    s_cbranch_execz L_fin0
    """)
    for w in range(8):
        e(f"ds_read_b32 v{40+w}, v6 offset:{16*w}")
    e(f"""
    ds_read_b32 v48, v7
    s_waitcnt lgkmcnt(0)
    v_add_f32 v40, v40, v41
    v_add_f32 v42, v42, v43
    v_add_f32 v44, v44, v45
    v_add_f32 v46, v46, v47
    v_add_f32 v48, v48, v9
    v_add_f32 v40, v40, v42
    v_add_f32 v44, v44, v46
    v_add_f32 v40, v40, v48
    v_add_f32 v40, v40, v44
    v_cvt_pk_bf16_f32 v40, v40, v40
    global_store_short v8, v40, s[{P_OUT}:{P_OUT+1}]
    """)
    e.label("L_fin0")
    e("s_mov_b64 exec, s[64:65]")
    e.label("L_fin")
    stamp(13)
    e(f"""
    s_cmp_eq_u32 s2, {0 if not cfg.noepoch else 100000}
    s_cbranch_scc0 L_noepoch
    s_cmp_eq_u32 s{S_W}, 0
    s_cbranch_scc0 L_noepoch
    v_lshlrev_b32 v6, 2, v1
    v_mov_b32 v7, s{S_TAG}
    s_mov_b64 exec, 0xffff
    global_store_dword v6, v7, {WS} sc1
    s_mov_b64 exec, -1
    """)
    e.label("L_noepoch")
    if cfg.stamps:
        e(f"""
        s_waitcnt lgkmcnt(0)
        s_lshl_b32 s3, s2, 3
        s_add_u32 s3, s3, s{S_W}
        s_lshl_b32 s3, s3, 6
        s_add_u32 s3, s3, {WS_DBG}
        v_mov_b32 v6, s3
        s_mov_b64 exec, 1
        """)
        for q in range(4):
            for k in range(4):
                e(f"v_mov_b32 v{8+k}, s{S_STAMP+2*min(4*q+k,14)}")
            e(f"global_store_dwordx4 v6, v[8:11], {WS} offset:{16*q}")
            e.nop(2)
        e("s_mov_b64 exec, -1")
    e.label("L_exit")
    e("s_endpgm")
    e.label("L_fail")
    if cfg.stamps: e("s_mov_b64 exec, -1\ns_branch L_noepoch")
    e("s_endpgm")
    e.label("L_end")
    return e

def render(cfg):
    e = gen(cfg)
    body = e.text()
    hdr = open("cdna_kernels/" + NAME[:-7] + ".s.ref").read().split("; Override launch geometry")[0]
    out = hdr + f"; @launch grid=(256,1,1) block=(512,1,1) lds={LDS_BYTES}\n"
    out += f""".amdgcn_target "amdgcn-amd-amdhsa--gfx950"
.text
.globl {NAME}
.p2align 8
.type {NAME},@function
{NAME}:
{body}.section .rodata,"a"
.p2align 6
.amdhsa_kernel {NAME}
  .amdhsa_next_free_vgpr 256
  .amdhsa_next_free_sgpr 102
  .amdhsa_accum_offset 256
  .amdhsa_group_segment_fixed_size 0
  .amdhsa_kernarg_size 112
  .amdhsa_user_sgpr_count 2
  .amdhsa_user_sgpr_kernarg_segment_ptr 1
  .amdhsa_system_sgpr_workgroup_id_x 1
.end_amdhsa_kernel
"""
    return out, body

if __name__ == "__main__":
    cfg = Cfg()
    outp = sys.argv[1] if len(sys.argv) > 1 else "cdna_kernels/" + NAME[:-7] + ".s"
    for a in sys.argv[2:]:
        k, v = a.split("=")
        setattr(cfg, k, int(v))
    out, body = render(cfg)
    probs = check_hazards(body) + check_kernarg_race(body)
    for p in probs: print("HAZARD", p)
    open(outp, "w").write(out)
    print("wrote", outp, len(out), "bytes;", len(body.splitlines()), "lines")
```

```python
import sys, struct
from asmlib import Emit, check_hazards, check_kernarg_race

NAME = "sequential_preLN__compressed_kv_cla__mixer_token_mlp__decode_kernel"

WS_Q1, WS_Q1F, WS_QA, WS_CTX, WS_OP, WS_CTXF, WS_ST, WS_PART, WS_DBG = 0x10000, 0x20000, 0x50000, 0x60000, 0x70000, 0x90000, 0xC0000, 0x100000, 0x400000
L_CKV = 0
L_WO = 0
L_WQ = 32768
L_WUK = 73728
L_QAS = 131072
QAS_STRIDE = 1056
L_PEX = L_QAS + 8 * QAS_STRIDE
L_MX = L_PEX + 4096
L_LNS = 143872
L_QP = 145152
QP_STRIDE = 288
L_CTXS = 146304
L_BNC = 146560
L_ORED = 147584
L_HS = 149632
L_ST7 = 152192
L_YRED = 152256
LDS_BYTES = 152384

S_W, S_X, S_I, S_ISB = 4, 5, 6, 7
P_X, P_CKV, P_WQ, P_WUK, P_WUV, P_WO, P_W1, P_B1, P_W2, P_B2, P_OUT, P_DBG, P_WS = 8, 10, 12, 14, 16, 18, 22, 24, 26, 28, 30, 32, 34
S_TAG, S_H, S_J, S_CH = 36, 37, 38, 39
SRD_0, SRD_A, SRD_WO, SRD_W1, SRD_B1, SRD_W2 = 40, 44, 48, 52, 56, 60
S_SPIN = 100
S_STAMP = 70

def F32(x): return "0x%08x" % struct.unpack("<I", struct.pack("<f", x))[0]
WS = f"s[{P_WS}:{P_WS+1}]"

class Cfg:
    stamps = 0
    nt = 1
    spin = 1 << 17
    h3sleep = 16
    fast1 = 0
    fast4 = 0
    codepf = 16
    bdelay = 0
    exp_nob = 0
    selftouch = 0
    lsb3 = 1
    ukearly = 0
    outmap = 1
    noepoch = 0
    s7stamps = 0
    touch = 0
    uknt = 1
    tsleep = 0
    planeorder = 1
    hperm = 0
    h3psleep = 0
    b5sleep = 44
    f5sleep = 16
    n5sleep = 44
    ckvnt = 1
    ukbar = 1
    bsleep = 8
    uvpf = 1
    h5sleep = 0
    h4sleep = 0
    h2sleep = 0
    exp_nowuv = 0

def gen(cfg):
    e = Emit()
    NT = " nt" if cfg.nt else ""
    def stamp(k):
        if cfg.stamps:
            e(f"s_memrealtime s[{S_STAMP+2*k}:{S_STAMP+2*k+1}]")
    def dpp_reduce(regs, op="v_add_f32"):
        steps = ["row_shr:1 row_mask:0xf bank_mask:0xf bound_ctrl:0", "row_shr:2 row_mask:0xf bank_mask:0xf bound_ctrl:0",
                 "row_shr:4 row_mask:0xf bank_mask:0xf bound_ctrl:0", "row_shr:8 row_mask:0xf bank_mask:0xf bound_ctrl:0",
                 "row_bcast:15 row_mask:0xa bank_mask:0xf", "row_bcast:31 row_mask:0xc bank_mask:0xf"]
        pad = max(0, 2 - (len(regs) - 1))
        e.nop(2)
        for k, st in enumerate(steps):
            for r in regs:
                e(f"{op}_dpp v{r}, v{r}, v{r} {st}")
            if k < len(steps) - 1 and pad: e.nop(pad)
    def tagchk(acc, tags):
        for k, t in enumerate(tags):
            if k == 0:
                e(f"v_xor_b32 v{acc}, s{S_TAG}, v{t}")
            else:
                e(f"v_bitop3_b32 v{acc}, v{acc}, v{t}, s{S_TAG} bitop3:0xf6")
    def spin_back(lbl_loop):
        e(f"s_sub_u32 s{S_SPIN}, s{S_SPIN}, 1")
        e(f"s_cbranch_scc0 {lbl_loop}")
        e("s_branch L_fail")
    def poll_tail(lbl_loop, lbl_done, acc, sleep=0):
        e(f"v_cmp_ne_u32 vcc, 0, v{acc}")
        e(f"s_cbranch_vccz {lbl_done}")
        if sleep: e(f"s_sleep {sleep}")
        spin_back(lbl_loop)
        e.label(lbl_done)
    def tr_common():
        e("""
        v_bfe_u32 v62, v1, 2, 2
        v_bfe_u32 v63, v1, 1, 1
        v_and_b32 v59, 1, v1
        v_lshlrev_b32 v59, 3, v59
        """)
    def tr256_addr(dst, tmp):
        e(f"""
        v_and_b32 v{dst}, 1, v2
        v_lshl_add_u32 v{dst}, v{dst}, 2, v62
        v_lshlrev_b32 v{dst}, 1, v{dst}
        s_lshl_b32 s3, s{S_W}, 1
        v_add_u32 v{tmp}, s3, v63
        v_xor_b32 v{dst}, v{dst}, v{tmp}
        v_lshl_add_u32 v{dst}, v{dst}, 4, v59
        v_lshl_add_u32 v{tmp}, v2, 3, v62
        v_lshl_add_u32 v{dst}, v{tmp}, 8, v{dst}
        """)
    def tagpat(dst, vsel, tmp):
        e(f"v_lshlrev_b32 v{tmp}, 3, v{vsel}")
        e(f"v_lshrrev_b32 v{tmp}, v{tmp}, s{S_TAG}") if False else e(f"v_mov_b32 v{tmp+1}, s{S_TAG}\nv_lshrrev_b32 v{tmp}, v{tmp}, v{tmp+1}")
        for i in range(4):
            e(f"v_bfe_u32 v{dst+i}, v{tmp}, {2*i}, 1")
            e(f"v_bfe_u32 v{tmp+1}, v{tmp}, {2*i+1}, 1")
            e(f"v_lshl_or_b32 v{dst+i}, v{tmp+1}, 16, v{dst+i}")
    def mk_tag():
        e(f"s_mul_i32 s{S_TAG}, s{S_TAG}, 1664525\ns_add_u32 s{S_TAG}, s{S_TAG}, 1013904223")
    def s7_loads():
        e(f"""
        s_mov_b32 s{SRD_W1}, s{P_W1}
        s_mov_b32 s{SRD_W1+1}, s{P_W1+1}
        s_mov_b32 s{SRD_W1+2}, 3456
        s_mov_b32 s{SRD_W1+3}, 0x20000
        s_mov_b32 s{SRD_B1}, s{P_B1}
        s_mov_b32 s{SRD_B1+1}, s{P_B1+1}
        s_mov_b32 s{SRD_B1+2}, 3456
        s_mov_b32 s{SRD_B1+3}, 0x20000
        s_mov_b32 s{SRD_W2}, s{P_W2}
        s_mov_b32 s{SRD_W2+1}, s{P_W2+1}
        s_mov_b32 s{SRD_W2+2}, 3456
        s_mov_b32 s{SRD_W2+3}, 0x20000
        s_lshl_b32 s3, s{S_W}, 8
        v_lshl_add_u32 v4, v1, 2, s3
        buffer_load_dword v224, v4, s[{SRD_W1}:{SRD_W1+3}], 0 offen
        buffer_load_dword v225, v4, s[{SRD_W1}:{SRD_W1+3}], 0 offen offset:2048
        buffer_load_dword v226, v4, s[{SRD_B1}:{SRD_B1+3}], 0 offen
        buffer_load_dword v227, v4, s[{SRD_B1}:{SRD_B1+3}], 0 offen offset:2048
        buffer_load_dword v228, v4, s[{SRD_W2}:{SRD_W2+3}], 0 offen
        buffer_load_dword v229, v4, s[{SRD_W2}:{SRD_W2+3}], 0 offen offset:2048
        v_mov_b32 v4, 0
        global_load_ushort v231, v4, s[{P_B2}:{P_B2+1}]
        s_min_u32 s3, s{S_W}, 4
        s_lshl_b32 s3, s3, 8
        v_lshlrev_b32 v4, 4, v3
        v_and_b32 v230, 1, v2
        v_lshl_add_u32 v4, v230, 3, v4
        v_lshrrev_b32 v230, 1, v2
        v_lshl_add_u32 v4, v230, 2, v4
        v_add_u32 v4, s3, v4
        global_load_dword v230, v4, s[{P_X}:{P_X+1}]
        """)
    OUTIDX = ("s_lshr_b32 s101, s2, 3\ns_mul_i32 s101, s101, 3\ns_mul_i32 s3, s5, 80\ns_add_u32 s101, s101, s3" if cfg.outmap else "s_mul_i32 s101, s2, 3")
    def s7_prep():
        for k, (raw, dst) in enumerate([(224, 232), (225, 234), (226, 236), (227, 238), (228, 240), (229, 242)]):
            e(f"v_lshlrev_b32 v{dst}, 16, v{raw}\nv_and_b32 v{dst+1}, 0xffff0000, v{raw}")
        e(f"""
        v_mul_u32_u24 v244, 1280, v2
        v_lshl_add_u32 v244, v3, 4, v244
        s_lshl_b32 s3, s{S_W}, 8
        s_add_u32 s64, s3, {WS_OP}
        v_add_u32 v244, s64, v244
        v_add_u32 v245, 5120, v244
        s_lshl_b32 s3, s{S_W}, 9
        s_add_u32 s3, s3, {L_HS}
        v_lshlrev_b32 v248, 5, v3
        v_and_b32 v57, 1, v2
        v_lshl_add_u32 v248, v57, 4, v248
        v_lshrrev_b32 v57, 1, v2
        v_lshl_add_u32 v248, v57, 3, v248
        v_add_u32 v248, s3, v248
        v_lshlrev_b32 v58, 16, v230
        v_and_b32 v59, 0xffff0000, v230
        v_mov_b32 v60, {F32(1.0/640)}
        v_mov_b32 v61, {F32(1.0 + 1e-5)}
        v_mov_b32 v65, {F32(1e-10)}
        v_mov_b32 v64, {F32(-2.0*0.7978845608028654*1.4426950408889634)}
        v_mov_b32 v66, {F32(-2.0*0.7978845608028654*1.4426950408889634*0.044715)}
        v_mov_b32 v62, {L_ST7}
        {OUTIDX}
        s_lshl_b32 s3, s101, 2
        s_add_u32 s3, s3, {L_HS}
        v_mov_b32 v63, s3
        s_lshl_b32 s3, s{S_W}, 3
        s_add_u32 s3, s3, {L_ST7}
        v_mov_b32 v68, s3
        s_lshl_b32 s3, s{S_W}, 4
        s_add_u32 s3, s3, {L_YRED}
        v_mov_b32 v69, s3
        v_mov_b32 v113, 0
        v_add_u32 v8, s101, v1
        v_lshlrev_b32 v6, 2, v1
        v_add_u32 v6, {L_YRED}, v6
        v_lshlrev_b32 v7, 2, v8
        v_add_u32 v7, {L_HS}, v7
        v_lshlrev_b32 v9, 16, v231
        """)
        e("v_and_b32 v57, 3, v1")
        tagpat(10, 57, 14)

    def uk_dma(bar):
        e(f"""
        s_mov_b32 s{SRD_A}, s{P_WUK}
        s_mov_b32 s{SRD_A+1}, s{P_WUK+1}
        s_mov_b32 s{SRD_A+2}, 4194304
        s_mov_b32 s{SRD_A+3}, 0x20000
        s_and_b32 s66, s{S_W}, 1
        s_lshl_b32 s66, s66, 3
        v_lshlrev_b32 v7, 1, v2
        v_xor_b32 v7, v7, v3
        v_xor_b32 v7, s66, v7
        v_lshlrev_b32 v7, 4, v7
        v_lshl_add_u32 v7, v2, 13, v7
        s_lshl_b32 s64, s{S_J}, 5
        s_add_u32 s64, s64, s{S_W}
        s_lshl_b32 s64, s64, 15
        s_lshl_b32 s65, s{S_H}, 8
        s_add_u32 s64, s64, s65
        s_lshl_b32 s67, s{S_W}, 10
        s_add_u32 s67, s67, {L_WUK}
        """)
        if bar: e("s_barrier")
        for ii in range(8):
            e(f"""
            s_mov_b32 m0, s67
            s_add_u32 s67, s67, 4096
            buffer_load_dwordx4 v7, s[{SRD_A}:{SRD_A+3}], s64 offen{NT} lds
            s_add_u32 s64, s64, {4*4*8192}
            """)

    e(f"""
    s_cmp_ge_u32 s2, 256
    s_cbranch_scc1 L_exit
    s_load_dwordx16 s[8:23], s[0:1], 0
    s_load_dwordx4 s[32:35], s[0:1], 96
    s_load_dwordx8 s[24:31], s[0:1], 64
    """)
    if cfg.codepf:
        e(f"""
        s_cmp_lt_u32 s2, {cfg.codepf}
        s_cbranch_scc0 L_nopf
        s_getpc_b64 s[64:65]
        """)
        e.label("L_pc")
        e(f"""
        s_and_b32 s64, s64, 0xffffff00
        v_lshlrev_b32 v203, 7, v0
        v_min_u32 v203, L_end-L_pc-4, v203
        v_mov_b32 v201, s65
        v_add_co_u32 v200, vcc, s64, v203
        s_nop 1
        v_addc_co_u32 v201, vcc, 0, v201, vcc
        global_load_dword v202, v[200:201], off
        """)
        e.label("L_nopf")
    if cfg.stamps:
        e(f"s_memrealtime s[{S_STAMP}:{S_STAMP+1}]")
        for k in range(1, 15): e(f"s_mov_b32 s{S_STAMP+2*k}, 0")
    e(f"""
    v_and_b32 v1, 63, v0
    v_lshrrev_b32 v4, 6, v0
    v_lshrrev_b32 v2, 4, v1
    v_readfirstlane_b32 s{S_W}, v4
    v_and_b32 v3, 15, v1
    s_and_b32 s{S_X}, s2, 7
    s_bfe_u32 s{S_I}, s2, 0x40003
    s_lshr_b32 s{S_H}, s{S_I}, 2
    s_xor_b32 s{S_H}, s{S_H}, {cfg.hperm}
    s_lshl_b32 s3, s{S_X}, 2
    s_add_u32 s{S_H}, s{S_H}, s3
    s_and_b32 s{S_J}, s{S_I}, 3
    s_mov_b32 s{SRD_0+3}, 0x20000
    s_mov_b32 s{S_SPIN}, {cfg.spin}
    s_cmp_ge_u32 s2, 128
    s_cbranch_scc1 L_B0
    """)
    e(f"""
    s_lshl_b32 s66, s{S_W}, 2
    s_and_b32 s66, s66, 8
    s_mul_i32 s64, s{S_J}, 40
    s_add_u32 s64, s64, s{S_W}
    s_lshl_b32 s64, s64, 15
    s_lshl_b32 s65, s{S_H}, 8
    s_add_u32 s64, s64, s65
    s_lshl_b32 s67, s{S_W}, 10
    s_add_u32 s67, s67, {L_WQ}
    s_mov_b32 s{SRD_0+2}, 5242880
    v_lshlrev_b32 v7, 1, v2
    v_xor_b32 v7, v7, v3
    v_xor_b32 v7, s66, v7
    v_lshlrev_b32 v7, 4, v7
    v_lshl_add_u32 v7, v2, 13, v7
    v_lshlrev_b32 v6, 2, v1
    s_cmp_eq_u32 s{S_W}, 0
    s_waitcnt lgkmcnt(0)
    s_mov_b32 s{SRD_0}, s{P_WQ}
    s_mov_b32 s{SRD_0+1}, s{P_WQ+1}
    s_cbranch_scc0 L_f_nox
    """)
    for k in range(5):
        e(f"global_load_dword v{8+k}, v6, s[{P_X}:{P_X+1}] offset:{256*k}")
    e.label("L_f_nox")
    for ii in range(5):
        e(f"""
        s_mov_b32 m0, s67
        s_add_u32 s67, s67, 8192
        buffer_load_dwordx4 v7, s[{SRD_0}:{SRD_0+3}], s64 offen{NT} lds
        s_add_u32 s64, s64, {8*4*8192}
        """)
    if cfg.selftouch:
        e(f"""
        v_bfe_u32 v4, v1, 1, 4
        s_lshl_b32 s3, s{S_J}, 7
        s_lshl_b32 s64, s{S_W}, 4
        s_add_u32 s3, s3, s64
        v_add_u32 v4, s3, v4
        v_lshlrev_b32 v4, 13, v4
        v_and_b32 v5, 1, v1
        v_lshl_add_u32 v4, v5, 7, v4
        s_lshl_b32 s3, s{S_H}, 8
        v_add_u32 v4, s3, v4
        s_mov_b64 exec, 0xffffffff
        global_load_dword v200, v4, s[{P_WUK}:{P_WUK+1}] nt
        s_mov_b64 exec, -1
        """)
    if cfg.ukearly:
        e("s_barrier")
        e(f"s_cmp_lt_u32 s{S_W}, 4\ns_cbranch_scc0 L_f_nouk")
        uk_dma(False)
        e.label("L_f_nouk")
    e(f"""
    s_load_dword s{S_TAG}, {WS}, 0
    s_branch L_F1
    """)
    e.label("L_B0")
    if cfg.exp_nob: e("s_endpgm")
    e(f"""
    s_lshl_b32 s3, s{S_W}, 1
    v_xor_b32 v7, s3, v1
    v_lshlrev_b32 v7, 4, v7
    s_lshl_b32 s{S_CH}, s{S_X}, 2
    s_add_u32 s{S_CH}, s{S_CH}, s{S_J}
    s_lshl_b32 s66, s{S_CH}, 17
    s_and_b32 s67, s{S_I}, 12
    s_lshl_b32 s67, s67, 13
    s_lshl_b32 s65, s{S_W}, 10
    s_add_u32 s67, s67, s65
    s_mov_b32 s{SRD_0+2}, 4194304
    s_mov_b32 s68, 15
    v_bfe_u32 v4, v1, 1, 4
    s_lshl_b32 s3, s{S_J}, 7
    s_lshl_b32 s64, s{S_W}, 4
    s_add_u32 s3, s3, s64
    v_add_u32 v4, s3, v4
    v_lshlrev_b32 v4, 13, v4
    v_and_b32 v5, 1, v1
    v_lshl_add_u32 v4, v5, 7, v4
    s_lshl_b32 s3, s{S_H}, 8
    v_add_u32 v4, s3, v4
    s_waitcnt lgkmcnt(0)
    s_mov_b32 s{SRD_0}, s{P_CKV}
    s_mov_b32 s{SRD_0+1}, s{P_CKV+1}
    """)
    if cfg.tsleep: e(f"s_sleep {cfg.tsleep}")
    if cfg.touch: e(f"""
    s_mov_b64 exec, 0xffffffff
    global_load_dword v200, v4, s[{P_WUK}:{P_WUK+1}]{" nt" if cfg.uknt else ""}
    s_mov_b64 exec, -1
    """)
    if cfg.bdelay: e(f"s_load_dword s{S_TAG}, {WS}, 0\ns_waitcnt lgkmcnt(0)")
    if cfg.bsleep: e(f"s_sleep {cfg.bsleep}")
    e.label("L_b_dma")
    e(f"""
    s_mov_b32 m0, s67
    s_add_u32 s69, s67, s66
    buffer_load_dwordx4 v7, s[{SRD_0}:{SRD_0+3}], s69 offen{" nt" if cfg.ckvnt else ""} lds
    s_add_u32 s67, s67, 8192
    s_and_b32 s67, s67, 0x1ffff
    s_sub_u32 s68, s68, 1
    s_cbranch_scc0 L_b_dma
    """)
    if not cfg.bdelay: e(f"s_load_dword s{S_TAG}, {WS}, 0")
    e("s_branch L_B1")

    e.label("L_F1")
    e(f"s_mov_b32 s{S_ISB}, 0")
    stamp(1)
    tr_common()
    e(f"""
    v_and_b32 v41, 1, v2
    v_lshl_add_u32 v41, v41, 2, v62
    v_lshlrev_b32 v41, 1, v41
    s_and_b32 s65, s{S_W}, 3
    s_lshl_b32 s3, s65, 2
    v_add_u32 v42, s3, v63
    v_xor_b32 v41, v41, v42
    v_lshl_add_u32 v41, v41, 4, v59
    v_lshl_add_u32 v42, v2, 3, v62
    v_lshl_add_u32 v41, v42, 8, v41
    v_add_u32 v41, {L_WQ}, v41
    v_xor_b32 v40, 32, v41
    s_mul_i32 s3, s{S_J}, 320
    s_add_u32 s3, s3, {L_LNS}
    v_lshl_add_u32 v42, v2, 4, s3
    s_lshl_b32 s3, s{S_H}, 2
    s_add_u32 s3, s3, s{S_J}
    s_lshl_b32 s3, s3, 9
    s_lshl_b32 s64, s65, 7
    s_add_u32 s3, s3, s64
    s_add_u32 s65, s3, {WS_Q1}
    v_and_b32 v43, 1, v1
    v_lshlrev_b32 v43, 6, v43
    v_lshl_add_u32 v43, v2, 4, v43
    v_add_u32 v43, s65, v43
    v_add_u32 v44, {WS_Q1F-WS_Q1}, v43
    s_lshl_b32 s64, s{S_W}, 6
    s_lshl_b32 s3, s{S_H}, 2
    s_and_b32 s65, s{S_W}, 3
    s_add_u32 s3, s3, s65
    s_lshl_b32 s3, s3, 9
    s_add_u32 s3, s3, {WS_Q1}
    v_lshl_add_u32 v45, v1, 3, s3
    v_add_u32 v49, {WS_Q1F-WS_Q1}, v45
    s_mul_i32 s3, s65, {QP_STRIDE}
    s_add_u32 s3, s3, {L_QP}
    v_lshl_add_u32 v46, v1, 2, s3
    v_and_b32 v47, 3, v3
    v_mul_u32_u24 v47, {QP_STRIDE}, v47
    v_lshl_add_u32 v47, v2, 4, v47
    v_add_u32 v47, {L_QP}, v47
    s_and_b32 s66, s{S_W}, 3
    s_lshl_b32 s3, s{S_H}, 10
    s_lshl_b32 s65, s{S_J}, 8
    s_add_u32 s3, s3, s65
    s_lshl_b32 s64, s66, 6
    s_add_u32 s3, s3, s64
    s_add_u32 s65, s3, {WS_QA}
    v_and_b32 v50, 1, v1
    v_lshlrev_b32 v50, 1, v50
    v_lshrrev_b32 v51, 1, v2
    v_add_u32 v50, v50, v51
    v_lshl_add_u32 v48, v50, 4, s65
    s_lshl_b32 s3, s66, 5
    v_add_u32 v24, s3, v3
    v_lshlrev_b32 v24, 8, v24
    v_and_b32 v25, 7, v3
    v_lshlrev_b32 v25, 1, v25
    v_xor_b32 v25, v25, v2
    v_lshl_add_u32 v24, v25, 4, v24
    v_add_u32 v24, {L_WUK}, v24
    v_xor_b32 v25, 64, v24
    v_xor_b32 v26, 128, v24
    v_xor_b32 v27, 192, v24
    s_waitcnt lgkmcnt(0)
    """)
    mk_tag()
    e(f"v_mov_b32 v105, s{S_TAG}\nv_mov_b32 v107, s{S_TAG}")
    tagpat(52, 50, 56)
    e(f"""
    s_cmp_eq_u32 s{S_W}, 0
    s_cbranch_scc0 L_f_noln
    """)
    e(f"s_waitcnt vmcnt({13 if cfg.ukearly else 5 + cfg.selftouch})")
    stamp(2)
    for k in range(5):
        e(f"v_lshlrev_b32 v{64+2*k}, 16, v{8+k}")
        e(f"v_and_b32 v{65+2*k}, 0xffff0000, v{8+k}")
    e(f"""
    v_pk_add_f32 v[74:75], v[64:65], v[66:67]
    v_pk_add_f32 v[76:77], v[68:69], v[70:71]
    v_pk_add_f32 v[74:75], v[74:75], v[72:73]
    v_pk_add_f32 v[74:75], v[74:75], v[76:77]
    v_mov_b32 v78, {F32(-1.0/640)}
    v_add_f32 v74, v74, v75
    """)
    dpp_reduce([74])
    e.nop(1)
    e("v_readlane_b32 s20, v74, 63")
    e(f"v_mov_b32 v80, {F32(1.0/640)}\nv_mov_b32 v81, {F32(1e-5)}")
    e("v_mul_f32 v78, s20, v78")
    for k in range(5):
        e(f"v_pk_add_f32 v[{64+2*k}:{65+2*k}], v[{64+2*k}:{65+2*k}], v[78:79] op_sel_hi:[1,0]")
    e("v_pk_mul_f32 v[74:75], v[64:65], v[64:65]")
    for k in range(1, 5):
        e(f"v_pk_fma_f32 v[74:75], v[{64+2*k}:{65+2*k}], v[{64+2*k}:{65+2*k}], v[74:75]")
    e("v_add_f32 v74, v74, v75")
    dpp_reduce([74])
    e.nop(1)
    e("v_readlane_b32 s21, v74, 63")
    e(f"v_mov_b32 v82, {F32(128**-0.5 * 1.4426950408889634)}")
    e(f"v_add_u32 v6, {L_LNS}, v6")
    e("v_fma_f32 v74, s21, v80, v81")
    e("v_rsq_f32 v74, v74")
    e.nop(1)
    e("v_mul_f32 v74, v74, v82")
    for k in range(5):
        e(f"v_pk_mul_f32 v[{64+2*k}:{65+2*k}], v[{64+2*k}:{65+2*k}], v[74:75] op_sel_hi:[1,0]")
    for k in range(5):
        e(f"v_cvt_pk_bf16_f32 v{8+k}, v{64+2*k}, v{65+2*k}")
        e(f"ds_write_b32 v6, v{8+k} offset:{256*k}")
    e.label("L_f_noln")
    if cfg.ukearly:
        e(f"s_cmp_lt_u32 s{S_W}, 4\ns_cbranch_scc0 L_f_w0\ns_waitcnt vmcnt(8)\ns_branch L_f_w1")
        e.label("L_f_w0")
        e("s_waitcnt vmcnt(0)")
        e.label("L_f_w1")
        e("s_waitcnt lgkmcnt(0)")
    else:
        e(f"s_waitcnt vmcnt({cfg.selftouch}) lgkmcnt(0)")
    e("s_barrier")
    stamp(3)
    e(f"s_cmp_lt_u32 s{S_W}, 4\ns_cbranch_scc1 L_f_uk")
    for ks in range(5):
        e(f"ds_read_b128 v[{84+4*ks}:{87+4*ks}], v42 offset:{64*ks}")
        e(f"ds_read_b64_tr_b16 v[{64+4*ks}:{65+4*ks}], v41 offset:{8192*ks}")
        e(f"ds_read_b64_tr_b16 v[{66+4*ks}:{67+4*ks}], v41 offset:{8192*ks+1024}")
        e(f"ds_read_b64_tr_b16 v[{112+4*ks}:{113+4*ks}], v40 offset:{8192*ks}")
        e(f"ds_read_b64_tr_b16 v[{114+4*ks}:{115+4*ks}], v40 offset:{8192*ks+1024}")
    e("s_mov_b32 s64, 0xaaaaaaaa\ns_mov_b32 s65, 0xaaaaaaaa")
    for ks in range(5):
        e(f"s_waitcnt lgkmcnt({min(15, 20-5*ks)})")
        c = "0" if ks == 0 else "v[108:111]"
        e(f"v_mfma_f32_16x16x32_bf16 v[108:111], v[{64+4*ks}:{67+4*ks}], v[{84+4*ks}:{87+4*ks}], {c}")
        c = "0" if ks == 0 else "v[132:135]"
        e(f"v_mfma_f32_16x16x32_bf16 v[132:135], v[{112+4*ks}:{115+4*ks}], v[{84+4*ks}:{87+4*ks}], {c}")
    e("s_mov_b32 exec_lo, 0x00030003\ns_mov_b32 exec_hi, 0x00030003")
    e.nop(6)
    for r in range(4):
        e(f"v_cndmask_b32 v{108+r}, v{108+r}, v{132+r}, s[64:65]")
    e("""
    v_cvt_pk_bf16_f32 v104, v108, v109
    v_cvt_pk_bf16_f32 v106, v110, v111
    """)
    if cfg.fast1: e(f"global_store_dwordx4 v44, v[104:107], {WS}")
    e(f"global_store_dwordx4 v43, v[104:107], {WS} sc1\ns_mov_b64 exec, -1")
    stamp(4)
    e(("" if cfg.ukearly else "s_barrier\n") + "s_branch L_h1_bar")
    e.label("L_f_uk")
    if not cfg.ukearly: uk_dma(True)
    e.label("L_h1")
    if cfg.fast1:
        e(f"global_load_dwordx2 v[66:67], v49, {WS} sc1")
        e(f"global_load_dwordx2 v[64:65], v45, {WS} sc1\ns_waitcnt vmcnt(0)")
        e(f"v_cmp_eq_u32 vcc, s{S_TAG}, v67")
        e.nop(2)
        e("v_cndmask_b32 v64, v64, v66, vcc\nv_cndmask_b32 v65, v65, v67, vcc")
    else:
        e(f"global_load_dwordx2 v[64:65], v45, {WS} sc1\ns_waitcnt vmcnt(0)")
    e(f"v_cmp_ne_u32 vcc, s{S_TAG}, v65")
    e(f"s_cbranch_vccz L_h1_done")
    spin_back("L_h1")
    e.label("L_h1_done")
    stamp(8)
    stamp(7)
    e("ds_write_b32 v46, v64")
    e.label("L_h1_bar")
    e("s_waitcnt lgkmcnt(0)\ns_barrier")
    stamp(5)
    e(f"s_cmp_lt_u32 s{S_W}, 4\ns_cbranch_scc1 L_f_nos2")
    for t in range(4):
        e(f"ds_read_b128 v[{64+4*t}:{67+4*t}], v47 offset:{64*t}")
        e(f"ds_read_b128 v[{80+4*t}:{83+4*t}], v{24+t}")
        e(f"ds_read_b128 v[{112+4*t}:{115+4*t}], v{24+t} offset:4096")
    e("s_mov_b32 s64, 0xaaaaaaaa\ns_mov_b32 s65, 0xaaaaaaaa")
    for t in range(4):
        e(f"s_waitcnt lgkmcnt({9-3*t})")
        c = "0" if t == 0 else "v[108:111]"
        e(f"v_mfma_f32_16x16x32_bf16 v[108:111], v[{80+4*t}:{83+4*t}], v[{64+4*t}:{67+4*t}], {c}")
        c = "0" if t == 0 else "v[132:135]"
        e(f"v_mfma_f32_16x16x32_bf16 v[132:135], v[{112+4*t}:{115+4*t}], v[{64+4*t}:{67+4*t}], {c}")
    e.nop(7)
    for st in ("row_ror:1", "row_ror:2"):
        for r in list(range(108, 112)) + list(range(132, 136)):
            e(f"v_add_f32_dpp v{r}, v{r}, v{r} {st} row_mask:0xf bank_mask:0xf")
    for r in range(4):
        e(f"v_cndmask_b32 v{108+r}, v{108+r}, v{132+r}, s[64:65]")
    e("""
    v_cvt_pk_bf16_f32 v104, v108, v109
    v_cvt_pk_bf16_f32 v105, v110, v111
    s_mov_b32 s66, 0xfffefffe
    v_mov_b32 v106, v104
    v_mov_b32 v107, v105
    s_nop 1
    v_permlane16_swap_b32 v104, v106
    v_permlane16_swap_b32 v105, v107
    s_mov_b32 exec_lo, 3
    s_mov_b32 exec_hi, 3
    v_and_or_b32 v104, v104, s66, v52
    v_and_or_b32 v105, v105, s66, v53
    v_and_or_b32 v106, v106, s66, v54
    v_and_or_b32 v107, v107, s66, v55
    """)
    e(f"global_store_dwordx4 v48, v[104:107], {WS} sc1\ns_mov_b64 exec, -1")
    stamp(6)
    e.label("L_f_nos2")
    e("s_barrier")
    if cfg.uvpf:
        e(f"""
        v_lshrrev_b32 v4, 1, v1
        s_lshl_b32 s3, s{S_J}, 7
        s_lshl_b32 s64, s{S_W}, 4
        s_add_u32 s3, s3, s64
        v_and_b32 v4, 15, v4
        v_add_u32 v4, s3, v4
        v_lshlrev_b32 v4, 13, v4
        v_and_b32 v5, 1, v1
        v_lshl_add_u32 v4, v5, 7, v4
        s_lshl_b32 s3, s{S_H}, 8
        v_add_u32 v4, s3, v4
        s_mov_b64 exec, 0xffffffff
        global_load_dword v5, v4, s[{P_WUV}:{P_WUV+1}]{NT}
        s_mov_b64 exec, -1
        """)
    e(f"s_cmp_lt_u32 s{S_I}, 10\ns_cbranch_scc1 L_s6")
    s7_loads()
    e("s_waitcnt vmcnt(0)")
    s7_prep()
    if cfg.n5sleep:
        e(f"""
        s_cmp_lt_u32 s{S_W}, 5
        s_cbranch_scc0 L_S7
        s_lshl_b32 s3, s{S_H}, 2
        s_add_u32 s3, s3, s{S_J}
        s_lshl_b32 s3, s3, 9
        s_add_u32 s3, s3, {WS_CTX}
        v_mov_b32 v40, s3
        """)
        e.label("L_sent")
        e(f"""
        global_load_dwordx2 v[42:43], v40, {WS} sc1
        s_waitcnt vmcnt(0)
        v_cmp_ne_u32 vcc, s{S_TAG}, v43
        s_cbranch_vccz L_sent_done
        s_sleep 8
        """)
        spin_back("L_sent")
        e.label("L_sent_done")
        e(f"s_sleep {cfg.n5sleep}")
    e("s_branch L_S7")
    e.label("L_s6")
    e(f"""
    s_mov_b32 s{SRD_WO}, s{P_WO}
    s_mov_b32 s{SRD_WO+1}, s{P_WO+1}
    s_mov_b32 s{SRD_WO+2}, 5242880
    s_mov_b32 s{SRD_WO+3}, 0x20000
    v_lshrrev_b32 v12, 3, v1
    v_mul_u32_u24 v50, 1280, v12
    v_and_b32 v12, 2, v12
    v_and_b32 v13, 7, v1
    v_xor_b32 v12, v12, v13
    v_lshl_add_u32 v50, v12, 4, v50
    v_xor_b32 v51, 64, v50
    s_lshl_b32 s3, s{S_X}, 3
    s_add_u32 s3, s3, s{S_W}
    s_mul_i32 s20, s3, {64*1280}
    s_lshl_b32 s65, s{S_I}, 7
    s_add_u32 s20, s20, s65
    s_lshl_b32 s21, s{S_W}, 13
    """)
    for ii in range(8):
        e(f"""
        s_mov_b32 m0, s21
        s_add_u32 s21, s21, 1024
        buffer_load_dwordx4 v{50+(ii&1)}, s[{SRD_WO}:{SRD_WO+3}], s20 offen{NT} lds
        s_add_u32 s20, s20, {8*1280}
        """)
    s7_loads()
    tr_common()
    e(f"""
    v_lshl_add_u32 v12, v2, 3, v62
    v_lshlrev_b32 v12, 7, v12
    v_add_u32 v12, v12, v59
    s_lshl_b32 s3, s{S_W}, 13
    v_add_u32 v12, s3, v12
    v_and_b32 v13, 1, v2
    v_lshlrev_b32 v13, 2, v13
    v_and_b32 v14, 2, v62
    v_or_b32 v13, v13, v14
    v_xor_b32 v13, v13, v63
    v_lshl_add_u32 v249, v13, 4, v12
    v_xor_b32 v250, 32, v249
    v_xor_b32 v251, 64, v249
    v_xor_b32 v252, 96, v249
    s_lshr_b32 s3, s{S_W}, 1
    s_lshl_b32 s64, s{S_X}, 2
    s_add_u32 s3, s3, s64
    s_lshl_b32 s3, s3, 11
    s_and_b32 s64, s{S_W}, 1
    s_lshl_b32 s64, s64, 8
    s_add_u32 s3, s3, s64
    s_add_u32 s3, s3, {WS_CTX}
    v_lshlrev_b32 v52, 9, v2
    v_lshl_add_u32 v52, v3, 4, v52
    v_add_u32 v52, s3, v52
    v_add_u32 v53, {WS_CTXF-WS_CTX}, v52
    s_lshl_b32 s3, s{S_W}, 7
    s_add_u32 s3, s3, {L_BNC}
    v_lshl_add_u32 v54, v3, 2, v2
    v_lshlrev_b32 v54, 1, v54
    v_add_u32 v54, s3, v54
    v_lshl_add_u32 v55, v2, 4, s3
    s_lshl_b32 s3, s{S_W}, 8
    s_add_u32 s3, s3, {L_ORED}
    v_lshl_add_u32 v253, v2, 4, s3
    v_lshlrev_b32 v254, 3, v1
    v_add_u32 v254, {L_ORED}, v254
    s_mul_i32 s3, s{S_X}, 1280
    s_lshl_b32 s64, s{S_I}, 7
    s_add_u32 s3, s3, s64
    s_add_u32 s3, s3, {WS_OP}
    v_lshl_add_u32 v255, v1, 2, s3
    v_and_b32 v12, 15, v1
    v_lshlrev_b32 v12, 1, v12
    v_mov_b32 v13, s{S_TAG}
    v_lshrrev_b32 v12, v12, v13
    v_and_b32 v13, 1, v12
    v_and_b32 v12, 2, v12
    v_lshl_or_b32 v136, v12, 15, v13
    s_waitcnt vmcnt(0)
    """)
    stamp(9)
    for tt in range(4):
        for ks in range(2):
            r = 80 + 8 * tt + 4 * ks
            e(f"ds_read_b64_tr_b16 v[{r}:{r+1}], v{249+tt} offset:{4096*ks}")
            e(f"ds_read_b64_tr_b16 v[{r+2}:{r+3}], v{249+tt} offset:{4096*ks+512}")
    s7_prep()
    e.label("L_h4")
    if cfg.fast4:
        e(f"global_load_dwordx4 v[44:47], v53, {WS} sc1")
        e(f"global_load_dwordx4 v[40:43], v52, {WS} sc1\ns_waitcnt vmcnt(0)")
        tagchk(48, [45, 47])
        e("v_cmp_eq_u32 vcc, 0, v48")
        e.nop(2)
        for k in range(4): e(f"v_cndmask_b32 v{40+k}, v{40+k}, v{44+k}, vcc")
    else:
        e(f"global_load_dwordx4 v[40:43], v52, {WS} sc1\ns_waitcnt vmcnt(0)")
    tagchk(48, [41, 43])
    poll_tail("L_h4", "L_h4_done", 48, cfg.h4sleep)
    stamp(10)
    e("""
    v_lshlrev_b32 v44, 16, v40
    v_and_b32 v45, 0xffff0000, v40
    v_lshlrev_b32 v46, 16, v42
    v_and_b32 v47, 0xffff0000, v42
    s_nop 1
    v_permlane32_swap_b32 v44, v46
    v_permlane32_swap_b32 v45, v47
    v_add_f32 v44, v44, v46
    v_add_f32 v45, v45, v47
    s_nop 1
    v_permlane16_swap_b32 v44, v45
    v_add_f32 v44, v44, v45
    v_cvt_pk_bf16_f32 v44, v44, v44
    ds_write_b16 v54, v44
    s_waitcnt lgkmcnt(0)
    ds_read_b128 v[112:115], v55
    ds_read_b128 v[116:119], v55 offset:64
    """)
    for ks in range(2):
        e(f"s_waitcnt lgkmcnt({1-ks})")
        for tt in range(4):
            c = "0" if ks == 0 else f"v[{120+4*tt}:{123+4*tt}]"
            r = 80 + 8 * tt + 4 * ks
            e(f"v_mfma_f32_16x16x32_bf16 v[{120+4*tt}:{123+4*tt}], v[{r}:{r+3}], v[{112+4*ks}:{115+4*ks}], {c}")
    e("s_mov_b32 exec_lo, 0x00010001\ns_mov_b32 exec_hi, 0x00010001")
    e.nop(3)
    for tt in range(4):
        e(f"ds_write_b128 v253, v[{120+4*tt}:{123+4*tt}] offset:{64*tt}")
    e(f"""
    s_mov_b64 exec, -1
    s_waitcnt lgkmcnt(0)
    s_barrier
    s_cmp_eq_u32 s{S_W}, 7
    s_cbranch_scc0 L_s6_w
    s_mov_b64 exec, 0xffffffff
    """)
    for w in range(8):
        e(f"ds_read_b64 v[{40+2*w}:{41+2*w}], v254 offset:{256*w}")
    e(f"""
    s_mov_b32 s66, 0xfffefffe
    s_waitcnt lgkmcnt(0)
    v_pk_add_f32 v[40:41], v[40:41], v[42:43]
    v_pk_add_f32 v[44:45], v[44:45], v[46:47]
    v_pk_add_f32 v[48:49], v[48:49], v[50:51]
    v_pk_add_f32 v[52:53], v[52:53], v[54:55]
    v_pk_add_f32 v[40:41], v[40:41], v[44:45]
    v_pk_add_f32 v[48:49], v[48:49], v[52:53]
    v_pk_add_f32 v[40:41], v[40:41], v[48:49]
    v_cvt_pk_bf16_f32 v56, v40, v41
    v_and_or_b32 v56, v56, s66, v136
    global_store_dword v255, v56, {WS} sc1
    s_mov_b64 exec, -1
    """)
    stamp(11)
    e("s_branch L_S7")
    e.label("L_s6_w")
    if cfg.f5sleep: e(f"s_sleep {cfg.f5sleep}")
    e("s_branch L_S7")

    e.label("L_B1")
    e(f"s_mov_b32 s{S_ISB}, 1")
    stamp(1)
    e(f"""
    s_lshr_b32 s3, s{S_I}, 2
    s_lshl_b32 s3, s3, 3
    s_add_u32 s3, s3, s{S_W}
    s_lshl_b32 s3, s3, 10
    s_add_u32 s3, s3, {WS_QA}
    v_lshl_add_u32 v5, v1, 4, s3
    s_mul_i32 s3, s{S_W}, {QAS_STRIDE}
    s_add_u32 s3, s3, {L_QAS}
    v_lshl_add_u32 v6, v1, 4, s3
    """)
    tr_common()
    e(f"s_cmp_lt_u32 s{S_W}, 4\ns_cbranch_scc0 L_bp_prep")
    def h2_poll(sfx):
        msk = "s66" if sfx == "q" else "s67"
        e("s_waitcnt vmcnt(0)\ns_branch L_h2_chk" + sfx)
        e.label("L_h2" + sfx)
        e(f"""
        global_load_dwordx4 v[40:43], v5, {WS} sc1
        s_waitcnt vmcnt(0)
        """)
        e.label("L_h2_chk" + sfx)
        for i in range(4):
            e(f"v_xor_b32 v{40+i}, v{40+i}, v{44+i}")
        e(f"v_or3_b32 v4, v40, v41, v42\nv_or_b32 v4, v4, v43\nv_and_b32 v4, {msk}, v4")
        poll_tail("L_h2" + sfx, "L_h2_done" + sfx, 4, cfg.h2sleep)
        stamp(5)
        e(f"""
        ds_write_b128 v6, v[40:43]
        s_waitcnt lgkmcnt(0)
        s_barrier
        """)
    e(f"""
    s_lshl_b32 s3, s{S_W}, 5
    v_add_u32 v12, s3, v3
    v_lshlrev_b32 v12, 10, v12
    v_and_b32 v13, 7, v1
    v_lshlrev_b32 v13, 1, v13
    v_xor_b32 v13, v13, v2
    v_lshl_add_u32 v8, v13, 4, v12
    v_xor_b32 v9, 64, v8
    v_xor_b32 v10, 128, v8
    v_xor_b32 v11, 192, v8
    v_and_b32 v216, 7, v3
    v_lshlrev_b32 v217, 4, v216
    v_mul_u32_u24 v216, {QAS_STRIDE}, v216
    v_lshl_add_u32 v216, v2, 4, v216
    v_add_u32 v216, {L_QAS}, v216
    v_add_u32 v217, {L_MX}, v217
    s_lshl_b32 s3, s{S_W}, 2
    v_add_u32 v218, s3, v217
    s_lshl_b32 s3, s{S_W}, 10
    s_add_u32 s3, s3, {L_PEX}
    v_lshl_add_u32 v219, v1, 4, s3
    v_and_b32 v220, 1, v2
    v_lshl_add_u32 v220, v220, 2, v62
    v_lshlrev_b32 v220, 1, v220
    s_lshl_b32 s3, s{S_W}, 2
    v_add_u32 v12, s3, v63
    v_xor_b32 v220, v220, v12
    v_lshl_add_u32 v220, v220, 4, v59
    v_lshl_add_u32 v12, v2, 3, v62
    v_lshl_add_u32 v220, v12, 8, v220
    v_xor_b32 v221, 32, v220
    s_lshl_b32 s3, s{S_H}, 10
    s_lshl_b32 s65, s{S_J}, 8
    s_add_u32 s3, s3, s65
    s_lshl_b32 s64, s{S_W}, 6
    s_add_u32 s3, s3, s64
    s_add_u32 s65, s3, {WS_PART}
    s_lshl_b32 s64, s{S_W}, 7
    v_lshrrev_b32 v12, 2, v1
    v_and_b32 v13, 3, v1
    v_lshlrev_b32 v222, 15, v12
    v_lshl_add_u32 v222, v13, 4, v222
    v_add_u32 v222, s65, v222
    s_lshl_b32 s3, s{S_H}, 7
    s_add_u32 s3, s3, {WS_ST}
    v_lshlrev_b32 v48, 12, v12
    v_lshl_add_u32 v48, v13, 4, v48
    v_add_u32 v48, s3, v48
    v_and_b32 v223, 1, v2
    v_lshlrev_b32 v223, 4, v223
    v_lshrrev_b32 v12, 1, v2
    v_lshl_add_u32 v223, v12, 1, v223
    v_lshl_add_u32 v223, v13, 2, v223
    s_lshl_b32 s3, s{S_W}, 5
    v_add_u32 v223, s3, v223
    v_lshlrev_b32 v223, 1, v223
    v_add_u32 v223, {L_CTXS}, v223
    v_lshlrev_b32 v49, 4, v2
    v_add_u32 v49, {L_CTXS}, v49
    s_lshl_b32 s3, s{S_H}, 2
    s_add_u32 s3, s3, s{S_J}
    s_lshl_b32 s3, s3, 9
    s_add_u32 s3, s3, s64
    s_add_u32 s3, s3, {WS_CTX}
    v_and_b32 v50, 1, v1
    v_lshlrev_b32 v50, 6, v50
    v_lshl_add_u32 v50, v2, 4, v50
    v_add_u32 v50, s3, v50
    v_add_u32 v51, {WS_CTXF-WS_CTX}, v50
    s_waitcnt lgkmcnt(0)
    """)
    mk_tag()
    e("v_and_b32 v16, 3, v1\ns_mov_b32 s66, 0x00010001")
    tagpat(44, 16, 12)
    e(f"s_waitcnt vmcnt(0)\nglobal_load_dwordx4 v[40:43], v5, {WS} sc1")
    e("s_barrier")
    stamp(14)
    for t in range(2):
        for j in range(16):
            e(f"ds_read_b128 v[{64+64*t+4*j}:{67+64*t+4*j}], v{8+(j&3)} offset:{256*(j>>2)+16384*t}")
    h2_poll("q")
    def qb(j):
        if j < 6: return 192 + 4 * j
        if j < 13: return 12 + 4 * (j - 6)
        if j < 15: return 40 + 4 * (j - 13)
        return 52
    stamp(4)
    for j in range(16):
        e(f"ds_read_b128 v[{qb(j)}:{qb(j)+3}], v216 offset:{64*j}")
    for j in range(16):
        if j % 2 == 0: e(f"s_waitcnt lgkmcnt({max(0, 14-j)})")
        for t in range(2):
            acc = f"v[{56+4*t}:{59+4*t}]"
            c = "0" if j == 0 else acc
            e(f"v_mfma_f32_16x16x32_bf16 {acc}, v[{64+64*t+4*j}:{67+64*t+4*j}], v[{qb(j)}:{qb(j)+3}], {c}")
    e.nop(7)
    stamp(10)
    e("""
    v_max3_f32 v12, v56, v57, v58
    s_nop 0
    v_max3_f32 v13, v60, v61, v62
    v_max3_f32 v12, v59, v63, v12
    v_max_f32 v12, v12, v13
    v_mov_b32 v13, v12
    """)
    e.nop(2)
    e("v_permlane16_swap_b32 v12, v13")
    e("v_max_f32 v12, v12, v13\nv_mov_b32 v13, v12")
    e.nop(2)
    e("v_permlane32_swap_b32 v12, v13")
    e("""
    v_max_f32 v12, v12, v13
    s_mov_b64 exec, 0xff
    ds_write_b32 v218, v12
    s_mov_b64 exec, -1
    s_waitcnt lgkmcnt(0)
    s_barrier
    """)
    stamp(11)
    e("""
    ds_read_b128 v[16:19], v217
    s_waitcnt lgkmcnt(0)
    v_max3_f32 v12, v16, v17, v18
    v_max_f32 v12, v12, v19
    """)
    for r in range(8): e(f"v_sub_f32 v{56+r}, v{56+r}, v12")
    for r in range(8): e(f"v_exp_f32 v{56+r}, v{56+r}")
    e("s_nop 0")
    for r in range(4): e(f"v_cvt_pk_bf16_f32 v{16+r}, v{56+2*r}, v{57+2*r}")
    e(f"""
    ds_write_b128 v219, v[16:19]
    s_cmp_eq_u32 s{S_W}, 0
    s_cbranch_scc0 L_bq_nom
    s_mov_b64 exec, 0xff
    ds_write_b32 v218, v12 offset:128
    s_mov_b64 exec, -1
    """)
    e.label("L_bq_nom")
    e("s_waitcnt lgkmcnt(0)\ns_barrier")
    stamp(6)
    e(f"""
    v_mov_b32 v105, s{S_TAG}
    v_mov_b32 v107, s{S_TAG}
    v_add_u32 v192, 0x80000, v222
    v_add_u32 v195, 0x10000, v48
    v_and_b32 v196, 3, v1
    s_mov_b32 s66, 0x00010001
    s_mov_b32 s64, 0xaaaaaaaa
    s_mov_b32 s65, 0xaaaaaaaa
    """)
    e("s_barrier")
    for t in range(2):
        for ks in range(4):
            r = 128 + 16 * t + 4 * ks
            e(f"ds_read_b64_tr_b16 v[{r}:{r+1}], v{220+t} offset:{8192*ks}")
            e(f"ds_read_b64_tr_b16 v[{r+2}:{r+3}], v{220+t} offset:{8192*ks+1024}")
    tagpat(198, 196, 202)
    if cfg.h3sleep: e(f"s_sleep {cfg.h3sleep}")
    stamp(2)
    def datachk():
        for i in range(8):
            e(f"v_xor_b32 v{80+i}, v{80+i}, v{198+(i&3)}")
        e("v_or3_b32 v4, v80, v81, v82\nv_or3_b32 v5, v83, v84, v85\nv_or3_b32 v4, v86, v87, v4\nv_or_b32 v4, v4, v5\nv_and_b32 v4, s66, v4")
    e.label("L_h3")
    e(f"""
    global_load_dwordx4 v[64:67], v48, {WS} sc1
    global_load_dwordx4 v[68:71], v195, {WS} sc1
    global_load_dwordx4 v[80:83], v222, {WS} sc1
    global_load_dwordx4 v[84:87], v192, {WS} sc1
    s_waitcnt vmcnt(2)
    """)
    tagchk(4, [65, 67, 69, 71])
    e("v_cmp_ne_u32 vcc, 0, v4\ns_cbranch_vccz L_h3_st\ns_waitcnt vmcnt(0)")
    if cfg.h3psleep: e(f"s_sleep {cfg.h3psleep}")
    spin_back("L_h3")
    e.label("L_h3_st")
    stamp(3)
    e("""
    v_max_f32 v4, v64, v68
    s_nop 1
    v_max_f32_dpp v4, v4, v4 row_ror:4 row_mask:0xf bank_mask:0xf
    s_nop 1
    v_max_f32_dpp v4, v4, v4 row_ror:8 row_mask:0xf bank_mask:0xf
    s_nop 0
    v_mov_b32 v5, v4
    s_nop 1
    v_permlane16_swap_b32 v4, v5
    v_max_f32 v4, v4, v5
    v_mov_b32 v5, v4
    s_nop 1
    v_permlane32_swap_b32 v4, v5
    v_max_f32 v4, v4, v5
    v_sub_f32 v64, v64, v4
    v_sub_f32 v68, v68, v4
    v_exp_f32 v64, v64
    v_exp_f32 v68, v68
    s_nop 0
    v_mul_f32 v28, v64, v66
    v_fmac_f32 v28, v68, v70
    s_nop 1
    v_add_f32_dpp v28, v28, v28 row_ror:4 row_mask:0xf bank_mask:0xf
    s_nop 1
    v_add_f32_dpp v28, v28, v28 row_ror:8 row_mask:0xf bank_mask:0xf
    s_nop 0
    v_mov_b32 v29, v28
    s_nop 1
    v_permlane16_swap_b32 v28, v29
    v_add_f32 v28, v28, v29
    v_mov_b32 v29, v28
    s_nop 1
    v_permlane32_swap_b32 v28, v29
    v_add_f32 v28, v28, v29
    v_rcp_f32 v28, v28
    s_nop 0
    v_mul_f32 v64, v64, v28
    v_mul_f32 v68, v68, v28
    s_waitcnt vmcnt(0)
    s_branch L_h3_dchk
    """)
    e.label("L_h3d")
    e(f"""
    global_load_dwordx4 v[80:83], v222, {WS} sc1
    global_load_dwordx4 v[84:87], v192, {WS} sc1
    s_waitcnt vmcnt(0)
    """)
    e.label("L_h3_dchk")
    datachk()
    poll_tail("L_h3d", "L_h3_done", 4)
    stamp(8)
    for i in range(4):
        e(f"v_lshlrev_b32 v{12+2*i}, 16, v{80+i}\nv_and_b32 v{13+2*i}, 0xffff0000, v{80+i}")
    for i in range(4):
        e(f"v_lshlrev_b32 v{20+2*i}, 16, v{84+i}\nv_and_b32 v{21+2*i}, 0xffff0000, v{84+i}")
        e(f"v_pk_mul_f32 v[{12+2*i}:{13+2*i}], v[{12+2*i}:{13+2*i}], v[64:65] op_sel_hi:[1,0]")
    for i in range(4):
        e(f"v_pk_fma_f32 v[{12+2*i}:{13+2*i}], v[{20+2*i}:{21+2*i}], v[68:69], v[{12+2*i}:{13+2*i}] op_sel_hi:[1,0,1]")
    for st in ("row_ror:4", "row_ror:8"):
        for r in range(12, 20):
            e(f"v_add_f32_dpp v{r}, v{r}, v{r} {st} row_mask:0xf bank_mask:0xf")
    for i in range(4):
        e(f"v_permlane16_swap_b32 v{12+i}, v{16+i}")
    for i in range(4):
        e(f"v_add_f32 v{12+i}, v{12+i}, v{16+i}")
    e("""
    s_nop 0
    v_permlane32_swap_b32 v12, v14
    v_permlane32_swap_b32 v13, v15
    s_mov_b32 exec_lo, 0x000f000f
    s_mov_b32 exec_hi, 0x000f000f
    v_add_f32 v12, v12, v14
    v_add_f32 v13, v13, v15
    v_cvt_pk_bf16_f32 v12, v12, v13
    ds_write_b32 v223, v12
    s_mov_b64 exec, -1
    s_waitcnt lgkmcnt(0)
    s_barrier
    """)
    for ks in range(4):
        e(f"ds_read_b128 v[{112+4*ks}:{115+4*ks}], v49 offset:{64*ks}")
    for ks in range(4):
        e(f"s_waitcnt lgkmcnt({3-ks})")
        for t in range(2):
            acc = f"v[{96+4*t}:{99+4*t}]"
            c = "0" if ks == 0 else acc
            r = 128 + 16 * t + 4 * ks
            e(f"v_mfma_f32_16x16x32_bf16 {acc}, v[{r}:{r+3}], v[{112+4*ks}:{115+4*ks}], {c}")
    e("s_mov_b32 exec_lo, 0x00030003\ns_mov_b32 exec_hi, 0x00030003")
    e.nop(6)
    for r in range(4):
        e(f"v_cndmask_b32 v{96+r}, v{96+r}, v{100+r}, s[64:65]")
    e("""
    v_cvt_pk_bf16_f32 v104, v96, v97
    v_cvt_pk_bf16_f32 v106, v98, v99
    """)
    if cfg.fast4: e(f"global_store_dwordx4 v51, v[104:107], {WS}")
    e(f"global_store_dwordx4 v50, v[104:107], {WS} sc1\ns_mov_b64 exec, -1")
    stamp(9)
    e("s_branch L_b_tail")
    e.label("L_bp_prep")
    e(f"""
    v_lshl_add_u32 v58, v2, 2, v62
    v_and_b32 v13, 7, v58
    v_lshlrev_b32 v13, 1, v13
    v_lshlrev_b32 v58, 10, v58
    v_add_u32 v58, v58, v59
    s_and_b32 s66, s{S_W}, 3
    s_lshl_b32 s3, s66, 4
    v_add_u32 v12, s3, v63
    v_xor_b32 v12, v12, v13
    v_lshl_add_u32 v8, v12, 4, v58
    """)
    for tt in range(1, 8):
        e(f"v_xor_b32 v{8+tt}, {32*tt}, v8")
    e(f"""
    v_lshlrev_b32 v16, 4, v1
    v_add_u32 v16, {L_PEX}, v16
    s_mov_b32 s{SRD_A}, s{P_WUV}
    s_mov_b32 s{SRD_A+1}, s{P_WUV+1}
    s_mov_b32 s{SRD_A+2}, 4194304
    s_mov_b32 s{SRD_A+3}, 0x20000
    s_lshl_b32 s3, s{S_W}, 2
    s_and_b32 s3, s3, 8
    v_lshlrev_b32 v19, 1, v2
    v_xor_b32 v19, v19, v3
    v_xor_b32 v19, s3, v19
    v_lshlrev_b32 v19, 4, v19
    v_lshl_add_u32 v19, v2, 13, v19
    s_lshl_b32 s20, s{S_J}, 5
    s_add_u32 s20, s20, s66
    s_lshl_b32 s20, s20, 15
    s_lshl_b32 s21, s{S_H}, 8
    s_add_u32 s20, s20, s21
    s_lshl_b32 s21, s66, 10
    v_lshl_add_u32 v56, v1, 4, s21
    s_lshl_b32 s3, s{S_CH}, 15
    s_lshr_b32 s64, s{S_I}, 2
    s_lshl_b32 s65, s64, 13
    s_add_u32 s3, s3, s65
    s_lshl_b32 s65, s66, 8
    s_add_u32 s3, s3, s65
    s_add_u32 s3, s3, {WS_PART}
    v_and_b32 v17, 7, v3
    v_lshlrev_b32 v17, 10, v17
    v_lshl_add_u32 v17, v2, 4, v17
    v_lshrrev_b32 v20, 3, v3
    v_lshl_add_u32 v17, v20, 6, v17
    v_add_u32 v17, s3, v17
    s_lshl_b32 s64, s64, 10
    s_lshl_b32 s65, s{S_CH}, 12
    s_add_u32 s64, s64, s65
    s_add_u32 s64, s64, {WS_ST}
    v_lshrrev_b32 v18, 2, v1
    v_lshlrev_b32 v18, 7, v18
    v_and_b32 v20, 3, v1
    v_lshl_add_u32 v18, v20, 4, v18
    v_add_u32 v18, s64, v18
    v_mov_b32 v36, 0x3f803f80
    v_mov_b32 v37, 0x3f803f80
    v_mov_b32 v38, 0x3f803f80
    v_mov_b32 v39, 0x3f803f80
    s_waitcnt lgkmcnt(0)
    """)
    mk_tag()
    e("v_and_b32 v50, 3, v1\ns_mov_b32 s67, 0x00010001")
    tagpat(44, 50, 48)
    e(f"v_mov_b32 v53, s{S_TAG}\nv_mov_b32 v55, s{S_TAG}")
    tagpat(57, 2, 61)
    e(f"s_waitcnt vmcnt(0)\nglobal_load_dwordx4 v[40:43], v5, {WS} sc1")
    e("s_barrier")
    stamp(14)
    for half in range(2):
        for tt in range(8):
            for k2 in range(2):
                ks = 2 * half + k2
                for eb in range(2):
                    r = 64 + 16 * tt + 4 * ks + 2 * eb
                    e(f"ds_read_b64_tr_b16 v[{r}:{r+1}], v{8+tt} offset:{32768*k2+16384*eb}")
        if half == 0:
            for tt in range(8):
                e(f"v_add_u32 v{8+tt}, 0x10000, v{8+tt}")
    h2_poll("p")
    for ii in range(8):
        e(f"""
        s_mov_b32 m0, s21
        s_add_u32 s21, s21, 4096
        buffer_load_dwordx4 v19, s[{SRD_A}:{SRD_A+3}], s20 offen{NT} lds
        s_add_u32 s20, s20, {4*4*8192}
        """)
    e("s_barrier\ns_barrier")
    for ks in range(4):
        e(f"ds_read_b128 v[{20+4*ks}:{23+4*ks}], v16 offset:{1024*ks}")
    e(f"""
    v_bfe_u32 v5, v1, 2, 3
    v_lshlrev_b32 v4, 4, v5
    v_add_u32 v4, {L_MX+128}, v4
    v_lshlrev_b32 v5, 2, v5
    s_mov_b32 s64, 0xff00ff00
    s_mov_b32 s65, 0xff00ff00
    """)
    stamp(6)
    for pr in range(4):
        e(f"v_mov_b32 v{37+0}, v{37}") if False else None
    def epi(sg):
        g = 64 + 64 * sg
        out = []
        for t in range(4):
            a0 = 192 + 16 * sg + 4 * t
            out.append(f"v_cvt_pk_bf16_f32 v{44+2*t}, v{a0}, v{a0+1}")
            out.append(f"v_cvt_pk_bf16_f32 v{45+2*t}, v{a0+2}, v{a0+3}")
        for i in range(4):
            out.append(f"v_cndmask_b32 v{g+i}, v{44+i}, v{48+i}, s[64:65]")
        for i in range(4):
            out.append(f"v_and_or_b32 v{g+i}, v{g+i}, s66, v{57+i}")
        out.append(f"global_store_dwordx4 v17, v[{g}:{g+3}], {WS} offset:{128*sg} sc1")
        return out
    e("s_mov_b32 s66, 0xfffefffe")
    ep0 = epi(0)
    for sg in range(2):
        k = 0
        for ks in range(4):
            for t in range(4):
                tt = 4 * sg + t
                acc = f"v[{192+4*tt}:{195+4*tt}]"
                c = "0" if ks == 0 else acc
                r = 64 + 16 * tt + 4 * ks
                if sg == 0 and t == 0: e(f"s_waitcnt lgkmcnt({3-ks})")
                e(f"v_mfma_f32_16x16x32_bf16 {acc}, v[{r}:{r+3}], v[{20+4*ks}:{23+4*ks}], {c}")
                k += 1
                if sg == 1 and k >= 8:
                    for _ in range(2):
                        if ep0: e(ep0.pop(0))
        if sg == 1:
            while ep0: e(ep0.pop(0))
    e(f"s_cmp_eq_u32 s{S_W}, 4\ns_cbranch_scc0 L_b_nol")
    e("ds_read_b32 v52, v4")
    for ks in range(4):
        c = "0" if ks == 0 else "v[40:43]"
        e(f"v_mfma_f32_16x16x32_bf16 v[40:43], v[36:39], v[{20+4*ks}:{23+4*ks}], {c}")
    e.label("L_b_nol")
    e.nop(6)
    for ins in epi(1): e(ins)
    e(f"""
    s_cmp_eq_u32 s{S_W}, 4
    s_cbranch_scc0 L_b_nostat
    ds_bpermute_b32 v54, v5, v40
    s_mov_b64 exec, 0xffffffff
    s_waitcnt lgkmcnt(0)
    global_store_dwordx4 v18, v[52:55], {WS} sc1
    s_mov_b64 exec, -1
    """)
    stamp(7)
    e("s_waitcnt vmcnt(3)\ns_branch L_b_st2")
    e.label("L_b_nostat")
    stamp(7)
    e("s_waitcnt vmcnt(2)")
    e.label("L_b_st2")
    e("s_barrier\ns_barrier")
    e.label("L_b_tail")
    e("s_barrier")
    s7_loads()
    e("s_waitcnt vmcnt(0)")
    s7_prep()
    if cfg.b5sleep: e(f"s_sleep {cfg.b5sleep}")

    e.label("L_S7")
    e(f"s_cmp_lt_u32 s{S_W}, 5\ns_cbranch_scc0 L_s7_bar")
    e("s_mov_b32 s66, 0x00010001")
    e.label("L_h5")
    e(f"""
    global_load_dwordx4 v[40:43], v244, {WS} sc1
    global_load_dwordx4 v[44:47], v245, {WS} sc1
    s_waitcnt vmcnt(0)
    """)
    for i in range(8):
        e(f"v_xor_b32 v{40+i}, v{40+i}, v{10+(i&3)}")
    e("v_or3_b32 v56, v40, v41, v42\nv_or3_b32 v57, v43, v44, v45\nv_or3_b32 v56, v46, v47, v56\nv_or_b32 v56, v56, v57\nv_and_b32 v56, s66, v56")
    poll_tail("L_h5", "L_h5_done", 56, cfg.h5sleep)
    stamp(12)
    for i in range(4):
        e(f"v_lshlrev_b32 v{80+2*i}, 16, v{40+i}\nv_and_b32 v{81+2*i}, 0xffff0000, v{40+i}")
    for i in range(4):
        e(f"v_lshlrev_b32 v{88+2*i}, 16, v{44+i}\nv_and_b32 v{89+2*i}, 0xffff0000, v{44+i}")
        e(f"v_pk_add_f32 v[{80+2*i}:{81+2*i}], v[{80+2*i}:{81+2*i}], v[{88+2*i}:{89+2*i}]")
    e("s_nop 0")
    for i in range(4): e(f"v_permlane16_swap_b32 v{80+i}, v{84+i}")
    for i in range(4): e(f"v_add_f32 v{80+i}, v{80+i}, v{84+i}")
    e(f"""
    s_nop 0
    v_permlane32_swap_b32 v80, v82
    v_permlane32_swap_b32 v81, v83
    v_add_f32 v50, v80, v82
    v_add_f32 v51, v81, v83
    v_pk_add_f32 v[50:51], v[50:51], v[58:59]
    ds_write_b64 v248, v[50:51]
    v_add_f32 v52, v50, v51
    v_mul_f32 v53, v50, v50
    v_fmac_f32 v53, v51, v51
    """)
    dpp_reduce([52, 53])
    e(f"""
    s_mov_b32 exec_lo, 0
    s_mov_b32 exec_hi, 0x80000000
    ds_write_b64 v68, v[52:53]
    s_mov_b64 exec, -1
    """)
    e.label("L_s7_bar")
    e(f"""
    s_waitcnt lgkmcnt(0)
    s_barrier
    """)
    if cfg.s7stamps: stamp(1)
    e(f"""
    s_cmp_lt_u32 s2, {216 if cfg.outmap else 214}
    s_cbranch_scc0 L_fin
    ds_read_b128 v[40:43], v62
    ds_read_b128 v[44:47], v62 offset:16
    ds_read_b64 v[48:49], v62 offset:32
    ds_read_b32 v50, v63
    ds_read_b32 v52, v63 offset:4
    ds_read_b32 v54, v63 offset:8
    s_waitcnt lgkmcnt(3)
    v_pk_add_f32 v[40:41], v[40:41], v[42:43]
    v_pk_add_f32 v[44:45], v[44:45], v[46:47]
    v_pk_add_f32 v[40:41], v[40:41], v[48:49]
    v_pk_add_f32 v[40:41], v[40:41], v[44:45]
    v_pk_mul_f32 v[40:41], v[40:41], v[60:61] op_sel_hi:[1,0]
    v_fma_f32 v41, -v40, v40, v41
    v_max_f32 v41, 0, v41
    v_fma_f32 v42, v41, v61, v65
    s_waitcnt lgkmcnt(0)
    v_rsq_f32 v42, v42
    v_sub_f32 v70, v50, v40
    v_sub_f32 v72, v52, v40
    v_sub_f32 v74, v54, v40
    v_mul_f32 v70, v70, v42
    v_mul_f32 v72, v72, v42
    v_mul_f32 v74, v74, v42
    """)
    if cfg.s7stamps: stamp(2)
    combos = [(r, o) for o in range(3) for r in range(2)]
    for c, (r, o) in enumerate(combos):
        e(f"v_pk_fma_f32 v[{80+2*c}:{81+2*c}], v[{70+2*o}:{71+2*o}], v[{232+2*r}:{233+2*r}], v[{236+2*r}:{237+2*r}] op_sel_hi:[0,1,1]")
    for c in range(6):
        e(f"v_pk_mul_f32 v[{92+2*c}:{93+2*c}], v[{80+2*c}:{81+2*c}], v[{80+2*c}:{81+2*c}]")
    for c in range(6):
        e(f"v_pk_fma_f32 v[{92+2*c}:{93+2*c}], v[{92+2*c}:{93+2*c}], v[66:67], v[64:65] op_sel_hi:[1,0,0]")
    for c in range(6):
        e(f"v_pk_mul_f32 v[{92+2*c}:{93+2*c}], v[{92+2*c}:{93+2*c}], v[{80+2*c}:{81+2*c}]")
    for c in range(12):
        e(f"v_exp_f32 v{92+c}, v{92+c}")
    for c in range(6):
        e(f"v_pk_add_f32 v[{92+2*c}:{93+2*c}], v[{92+2*c}:{93+2*c}], 1.0 op_sel_hi:[1,0]")
    for c in range(12):
        e(f"v_rcp_f32 v{92+c}, v{92+c}")
    for c in range(6):
        e(f"v_pk_mul_f32 v[{80+2*c}:{81+2*c}], v[{80+2*c}:{81+2*c}], v[{92+2*c}:{93+2*c}]")
    for o in range(3):
        e(f"v_pk_mul_f32 v[{104+2*o}:{105+2*o}], v[{80+4*o}:{81+4*o}], v[240:241]")
    for o in range(3):
        e(f"v_pk_fma_f32 v[{104+2*o}:{105+2*o}], v[{82+4*o}:{83+4*o}], v[242:243], v[{104+2*o}:{105+2*o}]")
    if cfg.s7stamps: stamp(3)
    e("v_add_f32 v110, v104, v105\nv_add_f32 v111, v106, v107\nv_add_f32 v112, v108, v109")
    dpp_reduce([110, 111, 112])
    e(f"""
    s_mov_b32 exec_lo, 0
    s_mov_b32 exec_hi, 0x80000000
    ds_write_b128 v69, v[110:113]
    s_mov_b64 exec, -1
    {"s_mul_i32 s3, s5, 80" if cfg.outmap else "s_mov_b32 s3, 560"}
    s_add_u32 s3, s3, 80
    v_cmp_gt_u32 vcc, s3, v8
    v_lshlrev_b32 v8, 1, v8
    s_waitcnt lgkmcnt(0)
    s_barrier
    """)
    if cfg.s7stamps: stamp(4)
    e(f"""
    s_cmp_eq_u32 s{S_W}, 0
    s_cbranch_scc0 L_fin
    s_and_b64 vcc, vcc, 7
    s_and_saveexec_b64 s[64:65], vcc
    s_cbranch_execz L_fin0
    """)
    for w in range(8):
        e(f"ds_read_b32 v{40+w}, v6 offset:{16*w}")
    e(f"""
    ds_read_b32 v48, v7
    s_waitcnt lgkmcnt(0)
    v_add_f32 v40, v40, v41
    v_add_f32 v42, v42, v43
    v_add_f32 v44, v44, v45
    v_add_f32 v46, v46, v47
    v_add_f32 v48, v48, v9
    v_add_f32 v40, v40, v42
    v_add_f32 v44, v44, v46
    v_add_f32 v40, v40, v48
    v_add_f32 v40, v40, v44
    v_cvt_pk_bf16_f32 v40, v40, v40
    global_store_short v8, v40, s[{P_OUT}:{P_OUT+1}]
    """)
    e.label("L_fin0")
    e("s_mov_b64 exec, s[64:65]")
    e.label("L_fin")
    stamp(13)
    e(f"""
    s_cmp_eq_u32 s2, {0 if not cfg.noepoch else 100000}
    s_cbranch_scc0 L_noepoch
    s_cmp_eq_u32 s{S_W}, 0
    s_cbranch_scc0 L_noepoch
    v_lshlrev_b32 v6, 2, v1
    v_mov_b32 v7, s{S_TAG}
    s_mov_b64 exec, 0xffff
    global_store_dword v6, v7, {WS} sc1
    s_mov_b64 exec, -1
    """)
    e.label("L_noepoch")
    if cfg.stamps:
        e(f"""
        s_waitcnt lgkmcnt(0)
        s_lshl_b32 s3, s2, 3
        s_add_u32 s3, s3, s{S_W}
        s_lshl_b32 s3, s3, 6
        s_add_u32 s3, s3, {WS_DBG}
        v_mov_b32 v6, s3
        s_mov_b64 exec, 1
        """)
        for q in range(4):
            for k in range(4):
                e(f"v_mov_b32 v{8+k}, s{S_STAMP+2*min(4*q+k,14)}")
            e(f"global_store_dwordx4 v6, v[8:11], {WS} offset:{16*q}")
            e.nop(2)
        e("s_mov_b64 exec, -1")
    e.label("L_exit")
    e("s_endpgm")
    e.label("L_fail")
    if cfg.stamps: e("s_mov_b64 exec, -1\ns_branch L_noepoch")
    e("s_endpgm")
    e.label("L_end")
    return e

def render(cfg):
    e = gen(cfg)
    body = e.text()
    hdr = open("cdna_kernels/" + NAME[:-7] + ".s.ref").read().split("; Override launch geometry")[0]
    out = hdr + f"; @launch grid=(256,1,1) block=(512,1,1) lds={LDS_BYTES}\n"
    out += f""".amdgcn_target "amdgcn-amd-amdhsa--gfx950"
.text
.globl {NAME}
.p2align 8
.type {NAME},@function
{NAME}:
{body}.section .rodata,"a"
.p2align 6
.amdhsa_kernel {NAME}
  .amdhsa_next_free_vgpr 256
  .amdhsa_next_free_sgpr 102
  .amdhsa_accum_offset 256
  .amdhsa_group_segment_fixed_size 0
  .amdhsa_kernarg_size 112
  .amdhsa_user_sgpr_count 2
  .amdhsa_user_sgpr_kernarg_segment_ptr 1
  .amdhsa_system_sgpr_workgroup_id_x 1
.end_amdhsa_kernel
"""
    return out, body

if __name__ == "__main__":
    cfg = Cfg()
    outp = sys.argv[1] if len(sys.argv) > 1 else "cdna_kernels/" + NAME[:-7] + ".s"
    for a in sys.argv[2:]:
        k, v = a.split("=")
        setattr(cfg, k, int(v))
    out, body = render(cfg)
    probs = check_hazards(body) + check_kernarg_race(body)
    for p in probs: print("HAZARD", p)
    open(outp, "w").write(out)
    print("wrote", outp, len(out), "bytes;", len(body.splitlines()), "lines")
```

```python
import sys, struct
from asmlib import Emit, check_hazards, check_kernarg_race

NAME = "sequential_preLN__compressed_kv_cla__mixer_token_mlp__decode_kernel"

WS_Q1, WS_Q1F, WS_QA, WS_CTX, WS_OP, WS_CTXF, WS_ST, WS_PART, WS_DBG = 0x10000, 0x20000, 0x50000, 0x60000, 0x70000, 0x90000, 0xC0000, 0x100000, 0x400000
L_CKV = 0
L_WO = 0
L_WQ = 32768
L_WUK = 73728
L_QAS = 131072
QAS_STRIDE = 1056
L_PEX = L_QAS + 8 * QAS_STRIDE
L_MX = L_PEX + 4096
L_LNS = 143872
L_QP = 145152
QP_STRIDE = 288
L_CTXS = 146304
L_BNC = 146560
L_ORED = 147584
L_HS = 149632
L_ST7 = 152192
L_YRED = 152256
LDS_BYTES = 152384

S_W, S_X, S_I, S_ISB = 4, 5, 6, 7
P_X, P_CKV, P_WQ, P_WUK, P_WUV, P_WO, P_W1, P_B1, P_W2, P_B2, P_OUT, P_DBG, P_WS = 8, 10, 12, 14, 16, 18, 22, 24, 26, 28, 30, 32, 34
S_TAG, S_H, S_J, S_CH = 36, 37, 38, 39
SRD_0, SRD_A, SRD_WO, SRD_W1, SRD_B1, SRD_W2 = 40, 44, 48, 52, 56, 60
S_SPIN = 100
S_STAMP = 70

def F32(x): return "0x%08x" % struct.unpack("<I", struct.pack("<f", x))[0]
WS = f"s[{P_WS}:{P_WS+1}]"

LSB_DEBIAS = 1.0 + 0.5 * 2.0**-7 * 0.7213475

class Cfg:
    stamps = 0
    nt = 1
    spin = 1 << 17
    h3sleep = 16
    fast1 = 0
    fast4 = 0
    codepf = 16
    bdelay = 0
    exp_nob = 0
    selftouch = 0
    lsb3 = 1
    ukearly = 0
    outmap = 1
    noepoch = 0
    s7stamps = 0
    touch = 0
    uknt = 1
    tsleep = 0
    planeorder = 1
    hperm = 0
    h3psleep = 0
    b5sleep = 44
    f5sleep = 16
    n5sleep = 44
    ckvnt = 1
    ukbar = 1
    bsleep = 8
    uvpf = 1
    h5sleep = 0
    h4sleep = 0
    h2sleep = 0
    exp_nowuv = 0

def gen(cfg):
    e = Emit()
    NT = " nt" if cfg.nt else ""
    def stamp(k):
        if cfg.stamps:
            e(f"s_memrealtime s[{S_STAMP+2*k}:{S_STAMP+2*k+1}]")
    def dpp_reduce(regs, op="v_add_f32"):
        steps = ["row_shr:1 row_mask:0xf bank_mask:0xf bound_ctrl:0", "row_shr:2 row_mask:0xf bank_mask:0xf bound_ctrl:0",
                 "row_shr:4 row_mask:0xf bank_mask:0xf bound_ctrl:0", "row_shr:8 row_mask:0xf bank_mask:0xf bound_ctrl:0",
                 "row_bcast:15 row_mask:0xa bank_mask:0xf", "row_bcast:31 row_mask:0xc bank_mask:0xf"]
        pad = max(0, 2 - (len(regs) - 1))
        e.nop(2)
        for k, st in enumerate(steps):
            for r in regs:
                e(f"{op}_dpp v{r}, v{r}, v{r} {st}")
            if k < len(steps) - 1 and pad: e.nop(pad)
    def tagchk(acc, tags):
        for k, t in enumerate(tags):
            if k == 0:
                e(f"v_xor_b32 v{acc}, s{S_TAG}, v{t}")
            else:
                e(f"v_bitop3_b32 v{acc}, v{acc}, v{t}, s{S_TAG} bitop3:0xf6")
    def spin_back(lbl_loop):
        e(f"s_sub_u32 s{S_SPIN}, s{S_SPIN}, 1")
        e(f"s_cbranch_scc0 {lbl_loop}")
        e("s_branch L_fail")
    def poll_tail(lbl_loop, lbl_done, acc, sleep=0):
        e(f"v_cmp_ne_u32 vcc, 0, v{acc}")
        e(f"s_cbranch_vccz {lbl_done}")
        if sleep: e(f"s_sleep {sleep}")
        spin_back(lbl_loop)
        e.label(lbl_done)
    def tr_common():
        e("""
        v_bfe_u32 v62, v1, 2, 2
        v_bfe_u32 v63, v1, 1, 1
        v_and_b32 v59, 1, v1
        v_lshlrev_b32 v59, 3, v59
        """)
    def tr256_addr(dst, tmp):
        e(f"""
        v_and_b32 v{dst}, 1, v2
        v_lshl_add_u32 v{dst}, v{dst}, 2, v62
        v_lshlrev_b32 v{dst}, 1, v{dst}
        s_lshl_b32 s3, s{S_W}, 1
        v_add_u32 v{tmp}, s3, v63
        v_xor_b32 v{dst}, v{dst}, v{tmp}
        v_lshl_add_u32 v{dst}, v{dst}, 4, v59
        v_lshl_add_u32 v{tmp}, v2, 3, v62
        v_lshl_add_u32 v{dst}, v{tmp}, 8, v{dst}
        """)
    def tagpat(dst, vsel, tmp):
        e(f"v_lshlrev_b32 v{tmp}, 3, v{vsel}")
        e(f"v_lshrrev_b32 v{tmp}, v{tmp}, s{S_TAG}") if False else e(f"v_mov_b32 v{tmp+1}, s{S_TAG}\nv_lshrrev_b32 v{tmp}, v{tmp}, v{tmp+1}")
        for i in range(4):
            e(f"v_bfe_u32 v{dst+i}, v{tmp}, {2*i}, 1")
            e(f"v_bfe_u32 v{tmp+1}, v{tmp}, {2*i+1}, 1")
            e(f"v_lshl_or_b32 v{dst+i}, v{tmp+1}, 16, v{dst+i}")
    def mk_tag():
        e(f"s_mul_i32 s{S_TAG}, s{S_TAG}, 1664525\ns_add_u32 s{S_TAG}, s{S_TAG}, 1013904223")
    def s7_loads():
        e(f"""
        s_mov_b32 s{SRD_W1}, s{P_W1}
        s_mov_b32 s{SRD_W1+1}, s{P_W1+1}
        s_mov_b32 s{SRD_W1+2}, 3456
        s_mov_b32 s{SRD_W1+3}, 0x20000
        s_mov_b32 s{SRD_B1}, s{P_B1}
        s_mov_b32 s{SRD_B1+1}, s{P_B1+1}
        s_mov_b32 s{SRD_B1+2}, 3456
        s_mov_b32 s{SRD_B1+3}, 0x20000
        s_mov_b32 s{SRD_W2}, s{P_W2}
        s_mov_b32 s{SRD_W2+1}, s{P_W2+1}
        s_mov_b32 s{SRD_W2+2}, 3456
        s_mov_b32 s{SRD_W2+3}, 0x20000
        s_lshl_b32 s3, s{S_W}, 8
        v_lshl_add_u32 v4, v1, 2, s3
        buffer_load_dword v224, v4, s[{SRD_W1}:{SRD_W1+3}], 0 offen
        buffer_load_dword v225, v4, s[{SRD_W1}:{SRD_W1+3}], 0 offen offset:2048
        buffer_load_dword v226, v4, s[{SRD_B1}:{SRD_B1+3}], 0 offen
        buffer_load_dword v227, v4, s[{SRD_B1}:{SRD_B1+3}], 0 offen offset:2048
        buffer_load_dword v228, v4, s[{SRD_W2}:{SRD_W2+3}], 0 offen
        buffer_load_dword v229, v4, s[{SRD_W2}:{SRD_W2+3}], 0 offen offset:2048
        v_mov_b32 v4, 0
        global_load_ushort v231, v4, s[{P_B2}:{P_B2+1}]
        s_min_u32 s3, s{S_W}, 4
        s_lshl_b32 s3, s3, 8
        v_lshlrev_b32 v4, 4, v3
        v_and_b32 v230, 1, v2
        v_lshl_add_u32 v4, v230, 3, v4
        v_lshrrev_b32 v230, 1, v2
        v_lshl_add_u32 v4, v230, 2, v4
        v_add_u32 v4, s3, v4
        global_load_dword v230, v4, s[{P_X}:{P_X+1}]
        """)
    OUTIDX = ("s_lshr_b32 s101, s2, 3\ns_mul_i32 s101, s101, 3\ns_mul_i32 s3, s5, 80\ns_add_u32 s101, s101, s3" if cfg.outmap else "s_mul_i32 s101, s2, 3")
    def s7_prep():
        for k, (raw, dst) in enumerate([(224, 232), (225, 234), (226, 236), (227, 238), (228, 240), (229, 242)]):
            e(f"v_lshlrev_b32 v{dst}, 16, v{raw}\nv_and_b32 v{dst+1}, 0xffff0000, v{raw}")
        e(f"""
        v_mul_u32_u24 v244, 1280, v2
        v_lshl_add_u32 v244, v3, 4, v244
        s_lshl_b32 s3, s{S_W}, 8
        s_add_u32 s64, s3, {WS_OP}
        v_add_u32 v244, s64, v244
        v_add_u32 v245, 5120, v244
        s_lshl_b32 s3, s{S_W}, 9
        s_add_u32 s3, s3, {L_HS}
        v_lshlrev_b32 v248, 5, v3
        v_and_b32 v57, 1, v2
        v_lshl_add_u32 v248, v57, 4, v248
        v_lshrrev_b32 v57, 1, v2
        v_lshl_add_u32 v248, v57, 3, v248
        v_add_u32 v248, s3, v248
        v_lshlrev_b32 v58, 16, v230
        v_and_b32 v59, 0xffff0000, v230
        v_mov_b32 v60, {F32(1.0/640)}
        v_mov_b32 v61, {F32(1.0 + 1e-5)}
        v_mov_b32 v65, {F32(1e-10)}
        v_mov_b32 v64, {F32(-2.0*0.7978845608028654*1.4426950408889634)}
        v_mov_b32 v66, {F32(-2.0*0.7978845608028654*1.4426950408889634*0.044715)}
        v_mov_b32 v62, {L_ST7}
        {OUTIDX}
        s_lshl_b32 s3, s101, 2
        s_add_u32 s3, s3, {L_HS}
        v_mov_b32 v63, s3
        s_lshl_b32 s3, s{S_W}, 3
        s_add_u32 s3, s3, {L_ST7}
        v_mov_b32 v68, s3
        s_lshl_b32 s3, s{S_W}, 4
        s_add_u32 s3, s3, {L_YRED}
        v_mov_b32 v69, s3
        v_mov_b32 v113, 0
        v_add_u32 v8, s101, v1
        v_lshlrev_b32 v6, 2, v1
        v_add_u32 v6, {L_YRED}, v6
        v_lshlrev_b32 v7, 2, v8
        v_add_u32 v7, {L_HS}, v7
        v_lshlrev_b32 v9, 16, v231
        """)
        e("v_and_b32 v57, 3, v1")
        tagpat(10, 57, 14)

    def uk_dma(bar):
        e(f"""
        s_mov_b32 s{SRD_A}, s{P_WUK}
        s_mov_b32 s{SRD_A+1}, s{P_WUK+1}
        s_mov_b32 s{SRD_A+2}, 4194304
        s_mov_b32 s{SRD_A+3}, 0x20000
        s_and_b32 s66, s{S_W}, 1
        s_lshl_b32 s66, s66, 3
        v_lshlrev_b32 v7, 1, v2
        v_xor_b32 v7, v7, v3
        v_xor_b32 v7, s66, v7
        v_lshlrev_b32 v7, 4, v7
        v_lshl_add_u32 v7, v2, 13, v7
        s_lshl_b32 s64, s{S_J}, 5
        s_add_u32 s64, s64, s{S_W}
        s_lshl_b32 s64, s64, 15
        s_lshl_b32 s65, s{S_H}, 8
        s_add_u32 s64, s64, s65
        s_lshl_b32 s67, s{S_W}, 10
        s_add_u32 s67, s67, {L_WUK}
        """)
        if bar: e("s_barrier")
        for ii in range(8):
            e(f"""
            s_mov_b32 m0, s67
            s_add_u32 s67, s67, 4096
            buffer_load_dwordx4 v7, s[{SRD_A}:{SRD_A+3}], s64 offen{NT} lds
            s_add_u32 s64, s64, {4*4*8192}
            """)

    e(f"""
    s_cmp_ge_u32 s2, 256
    s_cbranch_scc1 L_exit
    s_load_dwordx16 s[8:23], s[0:1], 0
    s_load_dwordx4 s[32:35], s[0:1], 96
    s_load_dwordx8 s[24:31], s[0:1], 64
    """)
    if cfg.codepf:
        e(f"""
        s_cmp_lt_u32 s2, {cfg.codepf}
        s_cbranch_scc0 L_nopf
        s_getpc_b64 s[64:65]
        """)
        e.label("L_pc")
        e(f"""
        s_and_b32 s64, s64, 0xffffff00
        v_lshlrev_b32 v203, 7, v0
        v_min_u32 v203, L_end-L_pc-4, v203
        v_mov_b32 v201, s65
        v_add_co_u32 v200, vcc, s64, v203
        s_nop 1
        v_addc_co_u32 v201, vcc, 0, v201, vcc
        global_load_dword v202, v[200:201], off
        """)
        e.label("L_nopf")
    if cfg.stamps:
        e(f"s_memrealtime s[{S_STAMP}:{S_STAMP+1}]")
        for k in range(1, 15): e(f"s_mov_b32 s{S_STAMP+2*k}, 0")
    e(f"""
    v_and_b32 v1, 63, v0
    v_lshrrev_b32 v4, 6, v0
    v_lshrrev_b32 v2, 4, v1
    v_readfirstlane_b32 s{S_W}, v4
    v_and_b32 v3, 15, v1
    s_and_b32 s{S_X}, s2, 7
    s_bfe_u32 s{S_I}, s2, 0x40003
    s_lshr_b32 s{S_H}, s{S_I}, 2
    s_xor_b32 s{S_H}, s{S_H}, {cfg.hperm}
    s_lshl_b32 s3, s{S_X}, 2
    s_add_u32 s{S_H}, s{S_H}, s3
    s_and_b32 s{S_J}, s{S_I}, 3
    s_mov_b32 s{SRD_0+3}, 0x20000
    s_mov_b32 s{S_SPIN}, {cfg.spin}
    s_cmp_ge_u32 s2, 128
    s_cbranch_scc1 L_B0
    """)
    e(f"""
    s_lshl_b32 s66, s{S_W}, 2
    s_and_b32 s66, s66, 8
    s_mul_i32 s64, s{S_J}, 40
    s_add_u32 s64, s64, s{S_W}
    s_lshl_b32 s64, s64, 15
    s_lshl_b32 s65, s{S_H}, 8
    s_add_u32 s64, s64, s65
    s_lshl_b32 s67, s{S_W}, 10
    s_add_u32 s67, s67, {L_WQ}
    s_mov_b32 s{SRD_0+2}, 5242880
    v_lshlrev_b32 v7, 1, v2
    v_xor_b32 v7, v7, v3
    v_xor_b32 v7, s66, v7
    v_lshlrev_b32 v7, 4, v7
    v_lshl_add_u32 v7, v2, 13, v7
    v_lshlrev_b32 v6, 2, v1
    s_cmp_eq_u32 s{S_W}, 0
    s_waitcnt lgkmcnt(0)
    s_mov_b32 s{SRD_0}, s{P_WQ}
    s_mov_b32 s{SRD_0+1}, s{P_WQ+1}
    s_cbranch_scc0 L_f_nox
    """)
    for k in range(5):
        e(f"global_load_dword v{8+k}, v6, s[{P_X}:{P_X+1}] offset:{256*k}")
    e.label("L_f_nox")
    for ii in range(5):
        e(f"""
        s_mov_b32 m0, s67
        s_add_u32 s67, s67, 8192
        buffer_load_dwordx4 v7, s[{SRD_0}:{SRD_0+3}], s64 offen{NT} lds
        s_add_u32 s64, s64, {8*4*8192}
        """)
    if cfg.selftouch:
        e(f"""
        v_bfe_u32 v4, v1, 1, 4
        s_lshl_b32 s3, s{S_J}, 7
        s_lshl_b32 s64, s{S_W}, 4
        s_add_u32 s3, s3, s64
        v_add_u32 v4, s3, v4
        v_lshlrev_b32 v4, 13, v4
        v_and_b32 v5, 1, v1
        v_lshl_add_u32 v4, v5, 7, v4
        s_lshl_b32 s3, s{S_H}, 8
        v_add_u32 v4, s3, v4
        s_mov_b64 exec, 0xffffffff
        global_load_dword v200, v4, s[{P_WUK}:{P_WUK+1}] nt
        s_mov_b64 exec, -1
        """)
    if cfg.ukearly:
        e("s_barrier")
        e(f"s_cmp_lt_u32 s{S_W}, 4\ns_cbranch_scc0 L_f_nouk")
        uk_dma(False)
        e.label("L_f_nouk")
    e(f"""
    s_load_dword s{S_TAG}, {WS}, 0
    s_branch L_F1
    """)
    e.label("L_B0")
    if cfg.exp_nob: e("s_endpgm")
    e(f"""
    s_lshl_b32 s3, s{S_W}, 1
    v_xor_b32 v7, s3, v1
    v_lshlrev_b32 v7, 4, v7
    s_lshl_b32 s{S_CH}, s{S_X}, 2
    s_add_u32 s{S_CH}, s{S_CH}, s{S_J}
    s_lshl_b32 s66, s{S_CH}, 17
    s_and_b32 s67, s{S_I}, 12
    s_lshl_b32 s67, s67, 13
    s_lshl_b32 s65, s{S_W}, 10
    s_add_u32 s67, s67, s65
    s_mov_b32 s{SRD_0+2}, 4194304
    s_mov_b32 s68, 15
    v_bfe_u32 v4, v1, 1, 4
    s_lshl_b32 s3, s{S_J}, 7
    s_lshl_b32 s64, s{S_W}, 4
    s_add_u32 s3, s3, s64
    v_add_u32 v4, s3, v4
    v_lshlrev_b32 v4, 13, v4
    v_and_b32 v5, 1, v1
    v_lshl_add_u32 v4, v5, 7, v4
    s_lshl_b32 s3, s{S_H}, 8
    v_add_u32 v4, s3, v4
    s_waitcnt lgkmcnt(0)
    s_mov_b32 s{SRD_0}, s{P_CKV}
    s_mov_b32 s{SRD_0+1}, s{P_CKV+1}
    """)
    if cfg.tsleep: e(f"s_sleep {cfg.tsleep}")
    if cfg.touch: e(f"""
    s_mov_b64 exec, 0xffffffff
    global_load_dword v200, v4, s[{P_WUK}:{P_WUK+1}]{" nt" if cfg.uknt else ""}
    s_mov_b64 exec, -1
    """)
    if cfg.bdelay: e(f"s_load_dword s{S_TAG}, {WS}, 0\ns_waitcnt lgkmcnt(0)")
    if cfg.bsleep: e(f"s_sleep {cfg.bsleep}")
    e.label("L_b_dma")
    e(f"""
    s_mov_b32 m0, s67
    s_add_u32 s69, s67, s66
    buffer_load_dwordx4 v7, s[{SRD_0}:{SRD_0+3}], s69 offen{" nt" if cfg.ckvnt else ""} lds
    s_add_u32 s67, s67, 8192
    s_and_b32 s67, s67, 0x1ffff
    s_sub_u32 s68, s68, 1
    s_cbranch_scc0 L_b_dma
    """)
    if not cfg.bdelay: e(f"s_load_dword s{S_TAG}, {WS}, 0")
    e("s_branch L_B1")

    e.label("L_F1")
    e(f"s_mov_b32 s{S_ISB}, 0")
    stamp(1)
    tr_common()
    e(f"""
    v_and_b32 v41, 1, v2
    v_lshl_add_u32 v41, v41, 2, v62
    v_lshlrev_b32 v41, 1, v41
    s_and_b32 s65, s{S_W}, 3
    s_lshl_b32 s3, s65, 2
    v_add_u32 v42, s3, v63
    v_xor_b32 v41, v41, v42
    v_lshl_add_u32 v41, v41, 4, v59
    v_lshl_add_u32 v42, v2, 3, v62
    v_lshl_add_u32 v41, v42, 8, v41
    v_add_u32 v41, {L_WQ}, v41
    v_xor_b32 v40, 32, v41
    s_mul_i32 s3, s{S_J}, 320
    s_add_u32 s3, s3, {L_LNS}
    v_lshl_add_u32 v42, v2, 4, s3
    s_lshl_b32 s3, s{S_H}, 2
    s_add_u32 s3, s3, s{S_J}
    s_lshl_b32 s3, s3, 9
    s_lshl_b32 s64, s65, 7
    s_add_u32 s3, s3, s64
    s_add_u32 s65, s3, {WS_Q1}
    v_and_b32 v43, 1, v1
    v_lshlrev_b32 v43, 6, v43
    v_lshl_add_u32 v43, v2, 4, v43
    v_add_u32 v43, s65, v43
    v_add_u32 v44, {WS_Q1F-WS_Q1}, v43
    s_lshl_b32 s64, s{S_W}, 6
    s_lshl_b32 s3, s{S_H}, 2
    s_and_b32 s65, s{S_W}, 3
    s_add_u32 s3, s3, s65
    s_lshl_b32 s3, s3, 9
    s_add_u32 s3, s3, {WS_Q1}
    v_lshl_add_u32 v45, v1, 3, s3
    v_add_u32 v49, {WS_Q1F-WS_Q1}, v45
    s_mul_i32 s3, s65, {QP_STRIDE}
    s_add_u32 s3, s3, {L_QP}
    v_lshl_add_u32 v46, v1, 2, s3
    v_and_b32 v47, 3, v3
    v_mul_u32_u24 v47, {QP_STRIDE}, v47
    v_lshl_add_u32 v47, v2, 4, v47
    v_add_u32 v47, {L_QP}, v47
    s_and_b32 s66, s{S_W}, 3
    s_lshl_b32 s3, s{S_H}, 10
    s_lshl_b32 s65, s{S_J}, 8
    s_add_u32 s3, s3, s65
    s_lshl_b32 s64, s66, 6
    s_add_u32 s3, s3, s64
    s_add_u32 s65, s3, {WS_QA}
    v_and_b32 v50, 1, v1
    v_lshlrev_b32 v50, 1, v50
    v_lshrrev_b32 v51, 1, v2
    v_add_u32 v50, v50, v51
    v_lshl_add_u32 v48, v50, 4, s65
    s_lshl_b32 s3, s66, 5
    v_add_u32 v24, s3, v3
    v_lshlrev_b32 v24, 8, v24
    v_and_b32 v25, 7, v3
    v_lshlrev_b32 v25, 1, v25
    v_xor_b32 v25, v25, v2
    v_lshl_add_u32 v24, v25, 4, v24
    v_add_u32 v24, {L_WUK}, v24
    v_xor_b32 v25, 64, v24
    v_xor_b32 v26, 128, v24
    v_xor_b32 v27, 192, v24
    s_waitcnt lgkmcnt(0)
    """)
    mk_tag()
    e(f"v_mov_b32 v105, s{S_TAG}\nv_mov_b32 v107, s{S_TAG}")
    tagpat(52, 50, 56)
    e(f"""
    s_cmp_eq_u32 s{S_W}, 0
    s_cbranch_scc0 L_f_noln
    """)
    e(f"s_waitcnt vmcnt({13 if cfg.ukearly else 5 + cfg.selftouch})")
    stamp(2)
    for k in range(5):
        e(f"v_lshlrev_b32 v{64+2*k}, 16, v{8+k}")
        e(f"v_and_b32 v{65+2*k}, 0xffff0000, v{8+k}")
    e(f"""
    v_pk_add_f32 v[74:75], v[64:65], v[66:67]
    v_pk_add_f32 v[76:77], v[68:69], v[70:71]
    v_pk_add_f32 v[74:75], v[74:75], v[72:73]
    v_pk_add_f32 v[74:75], v[74:75], v[76:77]
    v_mov_b32 v78, {F32(-1.0/640)}
    v_add_f32 v74, v74, v75
    """)
    dpp_reduce([74])
    e.nop(1)
    e("v_readlane_b32 s20, v74, 63")
    e(f"v_mov_b32 v80, {F32(1.0/640)}\nv_mov_b32 v81, {F32(1e-5)}")
    e("v_mul_f32 v78, s20, v78")
    for k in range(5):
        e(f"v_pk_add_f32 v[{64+2*k}:{65+2*k}], v[{64+2*k}:{65+2*k}], v[78:79] op_sel_hi:[1,0]")
    e("v_pk_mul_f32 v[74:75], v[64:65], v[64:65]")
    for k in range(1, 5):
        e(f"v_pk_fma_f32 v[74:75], v[{64+2*k}:{65+2*k}], v[{64+2*k}:{65+2*k}], v[74:75]")
    e("v_add_f32 v74, v74, v75")
    dpp_reduce([74])
    e.nop(1)
    e("v_readlane_b32 s21, v74, 63")
    e(f"v_mov_b32 v82, {F32(128**-0.5 * 1.4426950408889634 * LSB_DEBIAS)}")
    e(f"v_add_u32 v6, {L_LNS}, v6")
    e("v_fma_f32 v74, s21, v80, v81")
    e("v_rsq_f32 v74, v74")
    e.nop(1)
    e("v_mul_f32 v74, v74, v82")
    for k in range(5):
        e(f"v_pk_mul_f32 v[{64+2*k}:{65+2*k}], v[{64+2*k}:{65+2*k}], v[74:75] op_sel_hi:[1,0]")
    for k in range(5):
        e(f"v_cvt_pk_bf16_f32 v{8+k}, v{64+2*k}, v{65+2*k}")
        e(f"ds_write_b32 v6, v{8+k} offset:{256*k}")
    e.label("L_f_noln")
    if cfg.ukearly:
        e(f"s_cmp_lt_u32 s{S_W}, 4\ns_cbranch_scc0 L_f_w0\ns_waitcnt vmcnt(8)\ns_branch L_f_w1")
        e.label("L_f_w0")
        e("s_waitcnt vmcnt(0)")
        e.label("L_f_w1")
        e("s_waitcnt lgkmcnt(0)")
    else:
        e(f"s_waitcnt vmcnt({cfg.selftouch}) lgkmcnt(0)")
    e("s_barrier")
    stamp(3)
    e(f"s_cmp_lt_u32 s{S_W}, 4\ns_cbranch_scc1 L_f_uk")
    for ks in range(5):
        e(f"ds_read_b128 v[{84+4*ks}:{87+4*ks}], v42 offset:{64*ks}")
        e(f"ds_read_b64_tr_b16 v[{64+4*ks}:{65+4*ks}], v41 offset:{8192*ks}")
        e(f"ds_read_b64_tr_b16 v[{66+4*ks}:{67+4*ks}], v41 offset:{8192*ks+1024}")
        e(f"ds_read_b64_tr_b16 v[{112+4*ks}:{113+4*ks}], v40 offset:{8192*ks}")
        e(f"ds_read_b64_tr_b16 v[{114+4*ks}:{115+4*ks}], v40 offset:{8192*ks+1024}")
    e("s_mov_b32 s64, 0xaaaaaaaa\ns_mov_b32 s65, 0xaaaaaaaa")
    for ks in range(5):
        e(f"s_waitcnt lgkmcnt({min(15, 20-5*ks)})")
        c = "0" if ks == 0 else "v[108:111]"
        e(f"v_mfma_f32_16x16x32_bf16 v[108:111], v[{64+4*ks}:{67+4*ks}], v[{84+4*ks}:{87+4*ks}], {c}")
        c = "0" if ks == 0 else "v[132:135]"
        e(f"v_mfma_f32_16x16x32_bf16 v[132:135], v[{112+4*ks}:{115+4*ks}], v[{84+4*ks}:{87+4*ks}], {c}")
    e("s_mov_b32 exec_lo, 0x00030003\ns_mov_b32 exec_hi, 0x00030003")
    e.nop(6)
    for r in range(4):
        e(f"v_cndmask_b32 v{108+r}, v{108+r}, v{132+r}, s[64:65]")
    e("""
    v_cvt_pk_bf16_f32 v104, v108, v109
    v_cvt_pk_bf16_f32 v106, v110, v111
    """)
    if cfg.fast1: e(f"global_store_dwordx4 v44, v[104:107], {WS}")
    e(f"global_store_dwordx4 v43, v[104:107], {WS} sc1\ns_mov_b64 exec, -1")
    stamp(4)
    e(("" if cfg.ukearly else "s_barrier\n") + "s_branch L_h1_bar")
    e.label("L_f_uk")
    if not cfg.ukearly: uk_dma(True)
    e.label("L_h1")
    if cfg.fast1:
        e(f"global_load_dwordx2 v[66:67], v49, {WS} sc1")
        e(f"global_load_dwordx2 v[64:65], v45, {WS} sc1\ns_waitcnt vmcnt(0)")
        e(f"v_cmp_eq_u32 vcc, s{S_TAG}, v67")
        e.nop(2)
        e("v_cndmask_b32 v64, v64, v66, vcc\nv_cndmask_b32 v65, v65, v67, vcc")
    else:
        e(f"global_load_dwordx2 v[64:65], v45, {WS} sc1\ns_waitcnt vmcnt(0)")
    e(f"v_cmp_ne_u32 vcc, s{S_TAG}, v65")
    e(f"s_cbranch_vccz L_h1_done")
    spin_back("L_h1")
    e.label("L_h1_done")
    stamp(8)
    stamp(7)
    e("ds_write_b32 v46, v64")
    e.label("L_h1_bar")
    e("s_waitcnt lgkmcnt(0)\ns_barrier")
    stamp(5)
    e(f"s_cmp_lt_u32 s{S_W}, 4\ns_cbranch_scc1 L_f_nos2")
    for t in range(4):
        e(f"ds_read_b128 v[{64+4*t}:{67+4*t}], v47 offset:{64*t}")
        e(f"ds_read_b128 v[{80+4*t}:{83+4*t}], v{24+t}")
        e(f"ds_read_b128 v[{112+4*t}:{115+4*t}], v{24+t} offset:4096")
    e("s_mov_b32 s64, 0xaaaaaaaa\ns_mov_b32 s65, 0xaaaaaaaa")
    for t in range(4):
        e(f"s_waitcnt lgkmcnt({9-3*t})")
        c = "0" if t == 0 else "v[108:111]"
        e(f"v_mfma_f32_16x16x32_bf16 v[108:111], v[{80+4*t}:{83+4*t}], v[{64+4*t}:{67+4*t}], {c}")
        c = "0" if t == 0 else "v[132:135]"
        e(f"v_mfma_f32_16x16x32_bf16 v[132:135], v[{112+4*t}:{115+4*t}], v[{64+4*t}:{67+4*t}], {c}")
    e.nop(7)
    for st in ("row_ror:1", "row_ror:2"):
        for r in list(range(108, 112)) + list(range(132, 136)):
            e(f"v_add_f32_dpp v{r}, v{r}, v{r} {st} row_mask:0xf bank_mask:0xf")
    for r in range(4):
        e(f"v_cndmask_b32 v{108+r}, v{108+r}, v{132+r}, s[64:65]")
    e("""
    v_cvt_pk_bf16_f32 v104, v108, v109
    v_cvt_pk_bf16_f32 v105, v110, v111
    s_mov_b32 s66, 0xfffefffe
    v_mov_b32 v106, v104
    v_mov_b32 v107, v105
    s_nop 1
    v_permlane16_swap_b32 v104, v106
    v_permlane16_swap_b32 v105, v107
    s_mov_b32 exec_lo, 3
    s_mov_b32 exec_hi, 3
    v_and_or_b32 v104, v104, s66, v52
    v_and_or_b32 v105, v105, s66, v53
    v_and_or_b32 v106, v106, s66, v54
    v_and_or_b32 v107, v107, s66, v55
    """)
    e(f"global_store_dwordx4 v48, v[104:107], {WS} sc1\ns_mov_b64 exec, -1")
    stamp(6)
    e.label("L_f_nos2")
    e("s_barrier")
    if cfg.uvpf:
        e(f"""
        v_lshrrev_b32 v4, 1, v1
        s_lshl_b32 s3, s{S_J}, 7
        s_lshl_b32 s64, s{S_W}, 4
        s_add_u32 s3, s3, s64
        v_and_b32 v4, 15, v4
        v_add_u32 v4, s3, v4
        v_lshlrev_b32 v4, 13, v4
        v_and_b32 v5, 1, v1
        v_lshl_add_u32 v4, v5, 7, v4
        s_lshl_b32 s3, s{S_H}, 8
        v_add_u32 v4, s3, v4
        s_mov_b64 exec, 0xffffffff
        global_load_dword v5, v4, s[{P_WUV}:{P_WUV+1}]{NT}
        s_mov_b64 exec, -1
        """)
    e(f"s_cmp_lt_u32 s{S_I}, 10\ns_cbranch_scc1 L_s6")
    s7_loads()
    e("s_waitcnt vmcnt(0)")
    s7_prep()
    if cfg.n5sleep:
        e(f"""
        s_cmp_lt_u32 s{S_W}, 5
        s_cbranch_scc0 L_S7
        s_lshl_b32 s3, s{S_H}, 2
        s_add_u32 s3, s3, s{S_J}
        s_lshl_b32 s3, s3, 9
        s_add_u32 s3, s3, {WS_CTX}
        v_mov_b32 v40, s3
        """)
        e.label("L_sent")
        e(f"""
        global_load_dwordx2 v[42:43], v40, {WS} sc1
        s_waitcnt vmcnt(0)
        v_cmp_ne_u32 vcc, s{S_TAG}, v43
        s_cbranch_vccz L_sent_done
        s_sleep 8
        """)
        spin_back("L_sent")
        e.label("L_sent_done")
        e(f"s_sleep {cfg.n5sleep}")
    e("s_branch L_S7")
    e.label("L_s6")
    e(f"""
    s_mov_b32 s{SRD_WO}, s{P_WO}
    s_mov_b32 s{SRD_WO+1}, s{P_WO+1}
    s_mov_b32 s{SRD_WO+2}, 5242880
    s_mov_b32 s{SRD_WO+3}, 0x20000
    v_lshrrev_b32 v12, 3, v1
    v_mul_u32_u24 v50, 1280, v12
    v_and_b32 v12, 2, v12
    v_and_b32 v13, 7, v1
    v_xor_b32 v12, v12, v13
    v_lshl_add_u32 v50, v12, 4, v50
    v_xor_b32 v51, 64, v50
    s_lshl_b32 s3, s{S_X}, 3
    s_add_u32 s3, s3, s{S_W}
    s_mul_i32 s20, s3, {64*1280}
    s_lshl_b32 s65, s{S_I}, 7
    s_add_u32 s20, s20, s65
    s_lshl_b32 s21, s{S_W}, 13
    """)
    for ii in range(8):
        e(f"""
        s_mov_b32 m0, s21
        s_add_u32 s21, s21, 1024
        buffer_load_dwordx4 v{50+(ii&1)}, s[{SRD_WO}:{SRD_WO+3}], s20 offen{NT} lds
        s_add_u32 s20, s20, {8*1280}
        """)
    s7_loads()
    tr_common()
    e(f"""
    v_lshl_add_u32 v12, v2, 3, v62
    v_lshlrev_b32 v12, 7, v12
    v_add_u32 v12, v12, v59
    s_lshl_b32 s3, s{S_W}, 13
    v_add_u32 v12, s3, v12
    v_and_b32 v13, 1, v2
    v_lshlrev_b32 v13, 2, v13
    v_and_b32 v14, 2, v62
    v_or_b32 v13, v13, v14
    v_xor_b32 v13, v13, v63
    v_lshl_add_u32 v249, v13, 4, v12
    v_xor_b32 v250, 32, v249
    v_xor_b32 v251, 64, v249
    v_xor_b32 v252, 96, v249
    s_lshr_b32 s3, s{S_W}, 1
    s_lshl_b32 s64, s{S_X}, 2
    s_add_u32 s3, s3, s64
    s_lshl_b32 s3, s3, 11
    s_and_b32 s64, s{S_W}, 1
    s_lshl_b32 s64, s64, 8
    s_add_u32 s3, s3, s64
    s_add_u32 s3, s3, {WS_CTX}
    v_lshlrev_b32 v52, 9, v2
    v_lshl_add_u32 v52, v3, 4, v52
    v_add_u32 v52, s3, v52
    v_add_u32 v53, {WS_CTXF-WS_CTX}, v52
    s_lshl_b32 s3, s{S_W}, 7
    s_add_u32 s3, s3, {L_BNC}
    v_lshl_add_u32 v54, v3, 2, v2
    v_lshlrev_b32 v54, 1, v54
    v_add_u32 v54, s3, v54
    v_lshl_add_u32 v55, v2, 4, s3
    s_lshl_b32 s3, s{S_W}, 8
    s_add_u32 s3, s3, {L_ORED}
    v_lshl_add_u32 v253, v2, 4, s3
    v_lshlrev_b32 v254, 3, v1
    v_add_u32 v254, {L_ORED}, v254
    s_mul_i32 s3, s{S_X}, 1280
    s_lshl_b32 s64, s{S_I}, 7
    s_add_u32 s3, s3, s64
    s_add_u32 s3, s3, {WS_OP}
    v_lshl_add_u32 v255, v1, 2, s3
    v_and_b32 v12, 15, v1
    v_lshlrev_b32 v12, 1, v12
    v_mov_b32 v13, s{S_TAG}
    v_lshrrev_b32 v12, v12, v13
    v_and_b32 v13, 1, v12
    v_and_b32 v12, 2, v12
    v_lshl_or_b32 v136, v12, 15, v13
    s_waitcnt vmcnt(0)
    """)
    stamp(9)
    for tt in range(4):
        for ks in range(2):
            r = 80 + 8 * tt + 4 * ks
            e(f"ds_read_b64_tr_b16 v[{r}:{r+1}], v{249+tt} offset:{4096*ks}")
            e(f"ds_read_b64_tr_b16 v[{r+2}:{r+3}], v{249+tt} offset:{4096*ks+512}")
    s7_prep()
    e.label("L_h4")
    if cfg.fast4:
        e(f"global_load_dwordx4 v[44:47], v53, {WS} sc1")
        e(f"global_load_dwordx4 v[40:43], v52, {WS} sc1\ns_waitcnt vmcnt(0)")
        tagchk(48, [45, 47])
        e("v_cmp_eq_u32 vcc, 0, v48")
        e.nop(2)
        for k in range(4): e(f"v_cndmask_b32 v{40+k}, v{40+k}, v{44+k}, vcc")
    else:
        e(f"global_load_dwordx4 v[40:43], v52, {WS} sc1\ns_waitcnt vmcnt(0)")
    tagchk(48, [41, 43])
    poll_tail("L_h4", "L_h4_done", 48, cfg.h4sleep)
    stamp(10)
    e("""
    v_lshlrev_b32 v44, 16, v40
    v_and_b32 v45, 0xffff0000, v40
    v_lshlrev_b32 v46, 16, v42
    v_and_b32 v47, 0xffff0000, v42
    s_nop 1
    v_permlane32_swap_b32 v44, v46
    v_permlane32_swap_b32 v45, v47
    v_add_f32 v44, v44, v46
    v_add_f32 v45, v45, v47
    s_nop 1
    v_permlane16_swap_b32 v44, v45
    v_add_f32 v44, v44, v45
    v_cvt_pk_bf16_f32 v44, v44, v44
    ds_write_b16 v54, v44
    s_waitcnt lgkmcnt(0)
    ds_read_b128 v[112:115], v55
    ds_read_b128 v[116:119], v55 offset:64
    """)
    for ks in range(2):
        e(f"s_waitcnt lgkmcnt({1-ks})")
        for tt in range(4):
            c = "0" if ks == 0 else f"v[{120+4*tt}:{123+4*tt}]"
            r = 80 + 8 * tt + 4 * ks
            e(f"v_mfma_f32_16x16x32_bf16 v[{120+4*tt}:{123+4*tt}], v[{r}:{r+3}], v[{112+4*ks}:{115+4*ks}], {c}")
    e("s_mov_b32 exec_lo, 0x00010001\ns_mov_b32 exec_hi, 0x00010001")
    e.nop(3)
    for tt in range(4):
        e(f"ds_write_b128 v253, v[{120+4*tt}:{123+4*tt}] offset:{64*tt}")
    e(f"""
    s_mov_b64 exec, -1
    s_waitcnt lgkmcnt(0)
    s_barrier
    s_cmp_eq_u32 s{S_W}, 7
    s_cbranch_scc0 L_s6_w
    s_mov_b64 exec, 0xffffffff
    """)
    for w in range(8):
        e(f"ds_read_b64 v[{40+2*w}:{41+2*w}], v254 offset:{256*w}")
    e(f"""
    s_mov_b32 s66, 0xfffefffe
    s_waitcnt lgkmcnt(0)
    v_pk_add_f32 v[40:41], v[40:41], v[42:43]
    v_pk_add_f32 v[44:45], v[44:45], v[46:47]
    v_pk_add_f32 v[48:49], v[48:49], v[50:51]
    v_pk_add_f32 v[52:53], v[52:53], v[54:55]
    v_pk_add_f32 v[40:41], v[40:41], v[44:45]
    v_pk_add_f32 v[48:49], v[48:49], v[52:53]
    v_pk_add_f32 v[40:41], v[40:41], v[48:49]
    v_cvt_pk_bf16_f32 v56, v40, v41
    v_lshrrev_b32 v57, 1, v56
    v_and_b32 v57, 0x00010001, v57
    v_add_u32 v56, v56, v57
    v_and_or_b32 v56, v56, s66, v136
    global_store_dword v255, v56, {WS} sc1
    s_mov_b64 exec, -1
    """)
    stamp(11)
    e("s_branch L_S7")
    e.label("L_s6_w")
    if cfg.f5sleep: e(f"s_sleep {cfg.f5sleep}")
    e("s_branch L_S7")

    e.label("L_B1")
    e(f"s_mov_b32 s{S_ISB}, 1")
    stamp(1)
    e(f"""
    s_lshr_b32 s3, s{S_I}, 2
    s_lshl_b32 s3, s3, 3
    s_add_u32 s3, s3, s{S_W}
    s_lshl_b32 s3, s3, 10
    s_add_u32 s3, s3, {WS_QA}
    v_lshl_add_u32 v5, v1, 4, s3
    s_mul_i32 s3, s{S_W}, {QAS_STRIDE}
    s_add_u32 s3, s3, {L_QAS}
    v_lshl_add_u32 v6, v1, 4, s3
    """)
    tr_common()
    e(f"s_cmp_lt_u32 s{S_W}, 4\ns_cbranch_scc0 L_bp_prep")
    def h2_poll(sfx):
        msk = "s66" if sfx == "q" else "s67"
        e("s_waitcnt vmcnt(0)\ns_branch L_h2_chk" + sfx)
        e.label("L_h2" + sfx)
        e(f"""
        global_load_dwordx4 v[40:43], v5, {WS} sc1
        s_waitcnt vmcnt(0)
        """)
        e.label("L_h2_chk" + sfx)
        for i in range(4):
            e(f"v_xor_b32 v{40+i}, v{40+i}, v{44+i}")
        e(f"v_or3_b32 v4, v40, v41, v42\nv_or_b32 v4, v4, v43\nv_and_b32 v4, {msk}, v4")
        poll_tail("L_h2" + sfx, "L_h2_done" + sfx, 4, cfg.h2sleep)
        stamp(5)
        e(f"""
        ds_write_b128 v6, v[40:43]
        s_waitcnt lgkmcnt(0)
        s_barrier
        """)
    e(f"""
    s_lshl_b32 s3, s{S_W}, 5
    v_add_u32 v12, s3, v3
    v_lshlrev_b32 v12, 10, v12
    v_and_b32 v13, 7, v1
    v_lshlrev_b32 v13, 1, v13
    v_xor_b32 v13, v13, v2
    v_lshl_add_u32 v8, v13, 4, v12
    v_xor_b32 v9, 64, v8
    v_xor_b32 v10, 128, v8
    v_xor_b32 v11, 192, v8
    v_and_b32 v216, 7, v3
    v_lshlrev_b32 v217, 4, v216
    v_mul_u32_u24 v216, {QAS_STRIDE}, v216
    v_lshl_add_u32 v216, v2, 4, v216
    v_add_u32 v216, {L_QAS}, v216
    v_add_u32 v217, {L_MX}, v217
    s_lshl_b32 s3, s{S_W}, 2
    v_add_u32 v218, s3, v217
    s_lshl_b32 s3, s{S_W}, 10
    s_add_u32 s3, s3, {L_PEX}
    v_lshl_add_u32 v219, v1, 4, s3
    v_and_b32 v220, 1, v2
    v_lshl_add_u32 v220, v220, 2, v62
    v_lshlrev_b32 v220, 1, v220
    s_lshl_b32 s3, s{S_W}, 2
    v_add_u32 v12, s3, v63
    v_xor_b32 v220, v220, v12
    v_lshl_add_u32 v220, v220, 4, v59
    v_lshl_add_u32 v12, v2, 3, v62
    v_lshl_add_u32 v220, v12, 8, v220
    v_xor_b32 v221, 32, v220
    s_lshl_b32 s3, s{S_H}, 10
    s_lshl_b32 s65, s{S_J}, 8
    s_add_u32 s3, s3, s65
    s_lshl_b32 s64, s{S_W}, 6
    s_add_u32 s3, s3, s64
    s_add_u32 s65, s3, {WS_PART}
    s_lshl_b32 s64, s{S_W}, 7
    v_lshrrev_b32 v12, 2, v1
    v_and_b32 v13, 3, v1
    v_lshlrev_b32 v222, 15, v12
    v_lshl_add_u32 v222, v13, 4, v222
    v_add_u32 v222, s65, v222
    s_lshl_b32 s3, s{S_H}, 7
    s_add_u32 s3, s3, {WS_ST}
    v_lshlrev_b32 v48, 12, v12
    v_lshl_add_u32 v48, v13, 4, v48
    v_add_u32 v48, s3, v48
    v_and_b32 v223, 1, v2
    v_lshlrev_b32 v223, 4, v223
    v_lshrrev_b32 v12, 1, v2
    v_lshl_add_u32 v223, v12, 1, v223
    v_lshl_add_u32 v223, v13, 2, v223
    s_lshl_b32 s3, s{S_W}, 5
    v_add_u32 v223, s3, v223
    v_lshlrev_b32 v223, 1, v223
    v_add_u32 v223, {L_CTXS}, v223
    v_lshlrev_b32 v49, 4, v2
    v_add_u32 v49, {L_CTXS}, v49
    s_lshl_b32 s3, s{S_H}, 2
    s_add_u32 s3, s3, s{S_J}
    s_lshl_b32 s3, s3, 9
    s_add_u32 s3, s3, s64
    s_add_u32 s3, s3, {WS_CTX}
    v_and_b32 v50, 1, v1
    v_lshlrev_b32 v50, 6, v50
    v_lshl_add_u32 v50, v2, 4, v50
    v_add_u32 v50, s3, v50
    v_add_u32 v51, {WS_CTXF-WS_CTX}, v50
    s_waitcnt lgkmcnt(0)
    """)
    mk_tag()
    e("v_and_b32 v16, 3, v1\ns_mov_b32 s66, 0x00010001")
    tagpat(44, 16, 12)
    e(f"s_waitcnt vmcnt(0)\nglobal_load_dwordx4 v[40:43], v5, {WS} sc1")
    e("s_barrier")
    stamp(14)
    for t in range(2):
        for j in range(16):
            e(f"ds_read_b128 v[{64+64*t+4*j}:{67+64*t+4*j}], v{8+(j&3)} offset:{256*(j>>2)+16384*t}")
    h2_poll("q")
    def qb(j):
        if j < 6: return 192 + 4 * j
        if j < 13: return 12 + 4 * (j - 6)
        if j < 15: return 40 + 4 * (j - 13)
        return 52
    stamp(4)
    for j in range(16):
        e(f"ds_read_b128 v[{qb(j)}:{qb(j)+3}], v216 offset:{64*j}")
    for j in range(16):
        if j % 2 == 0: e(f"s_waitcnt lgkmcnt({max(0, 14-j)})")
        for t in range(2):
            acc = f"v[{56+4*t}:{59+4*t}]"
            c = "0" if j == 0 else acc
            e(f"v_mfma_f32_16x16x32_bf16 {acc}, v[{64+64*t+4*j}:{67+64*t+4*j}], v[{qb(j)}:{qb(j)+3}], {c}")
    e.nop(7)
    stamp(10)
    e("""
    v_max3_f32 v12, v56, v57, v58
    s_nop 0
    v_max3_f32 v13, v60, v61, v62
    v_max3_f32 v12, v59, v63, v12
    v_max_f32 v12, v12, v13
    v_mov_b32 v13, v12
    """)
    e.nop(2)
    e("v_permlane16_swap_b32 v12, v13")
    e("v_max_f32 v12, v12, v13\nv_mov_b32 v13, v12")
    e.nop(2)
    e("v_permlane32_swap_b32 v12, v13")
    e("""
    v_max_f32 v12, v12, v13
    s_mov_b64 exec, 0xff
    ds_write_b32 v218, v12
    s_mov_b64 exec, -1
    s_waitcnt lgkmcnt(0)
    s_barrier
    """)
    stamp(11)
    e("""
    ds_read_b128 v[16:19], v217
    s_waitcnt lgkmcnt(0)
    v_max3_f32 v12, v16, v17, v18
    v_max_f32 v12, v12, v19
    """)
    for r in range(8): e(f"v_sub_f32 v{56+r}, v{56+r}, v12")
    for r in range(8): e(f"v_exp_f32 v{56+r}, v{56+r}")
    e("s_nop 0")
    for r in range(4): e(f"v_cvt_pk_bf16_f32 v{16+r}, v{56+2*r}, v{57+2*r}")
    e(f"""
    ds_write_b128 v219, v[16:19]
    s_cmp_eq_u32 s{S_W}, 0
    s_cbranch_scc0 L_bq_nom
    s_mov_b64 exec, 0xff
    ds_write_b32 v218, v12 offset:128
    s_mov_b64 exec, -1
    """)
    e.label("L_bq_nom")
    e("s_waitcnt lgkmcnt(0)\ns_barrier")
    stamp(6)
    e(f"""
    v_mov_b32 v105, s{S_TAG}
    v_mov_b32 v107, s{S_TAG}
    v_add_u32 v192, 0x80000, v222
    v_add_u32 v195, 0x10000, v48
    v_and_b32 v196, 3, v1
    s_mov_b32 s66, 0x00010001
    s_mov_b32 s67, {F32(LSB_DEBIAS)}
    s_mov_b32 s64, 0xaaaaaaaa
    s_mov_b32 s65, 0xaaaaaaaa
    """)
    e("s_barrier")
    for t in range(2):
        for ks in range(4):
            r = 128 + 16 * t + 4 * ks
            e(f"ds_read_b64_tr_b16 v[{r}:{r+1}], v{220+t} offset:{8192*ks}")
            e(f"ds_read_b64_tr_b16 v[{r+2}:{r+3}], v{220+t} offset:{8192*ks+1024}")
    tagpat(198, 196, 202)
    if cfg.h3sleep: e(f"s_sleep {cfg.h3sleep}")
    stamp(2)
    def datachk():
        for i in range(8):
            e(f"v_xor_b32 v{80+i}, v{80+i}, v{198+(i&3)}")
        e("v_or3_b32 v4, v80, v81, v82\nv_or3_b32 v5, v83, v84, v85\nv_or3_b32 v4, v86, v87, v4\nv_or_b32 v4, v4, v5\nv_and_b32 v4, s66, v4")
    e.label("L_h3")
    e(f"""
    global_load_dwordx4 v[64:67], v48, {WS} sc1
    global_load_dwordx4 v[68:71], v195, {WS} sc1
    global_load_dwordx4 v[80:83], v222, {WS} sc1
    global_load_dwordx4 v[84:87], v192, {WS} sc1
    s_waitcnt vmcnt(2)
    """)
    tagchk(4, [65, 67, 69, 71])
    e("v_cmp_ne_u32 vcc, 0, v4\ns_cbranch_vccz L_h3_st\ns_waitcnt vmcnt(0)")
    if cfg.h3psleep: e(f"s_sleep {cfg.h3psleep}")
    spin_back("L_h3")
    e.label("L_h3_st")
    stamp(3)
    e("""
    v_max_f32 v4, v64, v68
    s_nop 1
    v_max_f32_dpp v4, v4, v4 row_ror:4 row_mask:0xf bank_mask:0xf
    s_nop 1
    v_max_f32_dpp v4, v4, v4 row_ror:8 row_mask:0xf bank_mask:0xf
    s_nop 0
    v_mov_b32 v5, v4
    s_nop 1
    v_permlane16_swap_b32 v4, v5
    v_max_f32 v4, v4, v5
    v_mov_b32 v5, v4
    s_nop 1
    v_permlane32_swap_b32 v4, v5
    v_max_f32 v4, v4, v5
    v_sub_f32 v64, v64, v4
    v_sub_f32 v68, v68, v4
    v_exp_f32 v64, v64
    v_exp_f32 v68, v68
    s_nop 0
    v_mul_f32 v28, v64, v66
    v_fmac_f32 v28, v68, v70
    s_nop 1
    v_add_f32_dpp v28, v28, v28 row_ror:4 row_mask:0xf bank_mask:0xf
    s_nop 1
    v_add_f32_dpp v28, v28, v28 row_ror:8 row_mask:0xf bank_mask:0xf
    s_nop 0
    v_mov_b32 v29, v28
    s_nop 1
    v_permlane16_swap_b32 v28, v29
    v_add_f32 v28, v28, v29
    v_mov_b32 v29, v28
    s_nop 1
    v_permlane32_swap_b32 v28, v29
    v_add_f32 v28, v28, v29
    v_rcp_f32 v28, v28
    v_mul_f32 v64, s67, v64
    v_mul_f32 v68, s67, v68
    v_mul_f32 v64, v64, v28
    v_mul_f32 v68, v68, v28
    s_waitcnt vmcnt(0)
    s_branch L_h3_dchk
    """)
    e.label("L_h3d")
    e(f"""
    global_load_dwordx4 v[80:83], v222, {WS} sc1
    global_load_dwordx4 v[84:87], v192, {WS} sc1
    s_waitcnt vmcnt(0)
    """)
    e.label("L_h3_dchk")
    datachk()
    poll_tail("L_h3d", "L_h3_done", 4)
    stamp(8)
    for i in range(4):
        e(f"v_lshlrev_b32 v{12+2*i}, 16, v{80+i}\nv_and_b32 v{13+2*i}, 0xffff0000, v{80+i}")
    for i in range(4):
        e(f"v_lshlrev_b32 v{20+2*i}, 16, v{84+i}\nv_and_b32 v{21+2*i}, 0xffff0000, v{84+i}")
        e(f"v_pk_mul_f32 v[{12+2*i}:{13+2*i}], v[{12+2*i}:{13+2*i}], v[64:65] op_sel_hi:[1,0]")
    for i in range(4):
        e(f"v_pk_fma_f32 v[{12+2*i}:{13+2*i}], v[{20+2*i}:{21+2*i}], v[68:69], v[{12+2*i}:{13+2*i}] op_sel_hi:[1,0,1]")
    for st in ("row_ror:4", "row_ror:8"):
        for r in range(12, 20):
            e(f"v_add_f32_dpp v{r}, v{r}, v{r} {st} row_mask:0xf bank_mask:0xf")
    for i in range(4):
        e(f"v_permlane16_swap_b32 v{12+i}, v{16+i}")
    for i in range(4):
        e(f"v_add_f32 v{12+i}, v{12+i}, v{16+i}")
    e("""
    s_nop 0
    v_permlane32_swap_b32 v12, v14
    v_permlane32_swap_b32 v13, v15
    s_mov_b32 exec_lo, 0x000f000f
    s_mov_b32 exec_hi, 0x000f000f
    v_add_f32 v12, v12, v14
    v_add_f32 v13, v13, v15
    v_cvt_pk_bf16_f32 v12, v12, v13
    ds_write_b32 v223, v12
    s_mov_b64 exec, -1
    s_waitcnt lgkmcnt(0)
    s_barrier
    """)
    for ks in range(4):
        e(f"ds_read_b128 v[{112+4*ks}:{115+4*ks}], v49 offset:{64*ks}")
    for ks in range(4):
        e(f"s_waitcnt lgkmcnt({3-ks})")
        for t in range(2):
            acc = f"v[{96+4*t}:{99+4*t}]"
            c = "0" if ks == 0 else acc
            r = 128 + 16 * t + 4 * ks
            e(f"v_mfma_f32_16x16x32_bf16 {acc}, v[{r}:{r+3}], v[{112+4*ks}:{115+4*ks}], {c}")
    e("s_mov_b32 exec_lo, 0x00030003\ns_mov_b32 exec_hi, 0x00030003")
    e.nop(6)
    for r in range(4):
        e(f"v_cndmask_b32 v{96+r}, v{96+r}, v{100+r}, s[64:65]")
    e("""
    v_cvt_pk_bf16_f32 v104, v96, v97
    v_cvt_pk_bf16_f32 v106, v98, v99
    """)
    if cfg.fast4: e(f"global_store_dwordx4 v51, v[104:107], {WS}")
    e(f"global_store_dwordx4 v50, v[104:107], {WS} sc1\ns_mov_b64 exec, -1")
    stamp(9)
    e("s_branch L_b_tail")
    e.label("L_bp_prep")
    e(f"""
    v_lshl_add_u32 v58, v2, 2, v62
    v_and_b32 v13, 7, v58
    v_lshlrev_b32 v13, 1, v13
    v_lshlrev_b32 v58, 10, v58
    v_add_u32 v58, v58, v59
    s_and_b32 s66, s{S_W}, 3
    s_lshl_b32 s3, s66, 4
    v_add_u32 v12, s3, v63
    v_xor_b32 v12, v12, v13
    v_lshl_add_u32 v8, v12, 4, v58
    """)
    for tt in range(1, 8):
        e(f"v_xor_b32 v{8+tt}, {32*tt}, v8")
    e(f"""
    v_lshlrev_b32 v16, 4, v1
    v_add_u32 v16, {L_PEX}, v16
    s_mov_b32 s{SRD_A}, s{P_WUV}
    s_mov_b32 s{SRD_A+1}, s{P_WUV+1}
    s_mov_b32 s{SRD_A+2}, 4194304
    s_mov_b32 s{SRD_A+3}, 0x20000
    s_lshl_b32 s3, s{S_W}, 2
    s_and_b32 s3, s3, 8
    v_lshlrev_b32 v19, 1, v2
    v_xor_b32 v19, v19, v3
    v_xor_b32 v19, s3, v19
    v_lshlrev_b32 v19, 4, v19
    v_lshl_add_u32 v19, v2, 13, v19
    s_lshl_b32 s20, s{S_J}, 5
    s_add_u32 s20, s20, s66
    s_lshl_b32 s20, s20, 15
    s_lshl_b32 s21, s{S_H}, 8
    s_add_u32 s20, s20, s21
    s_lshl_b32 s21, s66, 10
    v_lshl_add_u32 v56, v1, 4, s21
    s_lshl_b32 s3, s{S_CH}, 15
    s_lshr_b32 s64, s{S_I}, 2
    s_lshl_b32 s65, s64, 13
    s_add_u32 s3, s3, s65
    s_lshl_b32 s65, s66, 8
    s_add_u32 s3, s3, s65
    s_add_u32 s3, s3, {WS_PART}
    v_and_b32 v17, 7, v3
    v_lshlrev_b32 v17, 10, v17
    v_lshl_add_u32 v17, v2, 4, v17
    v_lshrrev_b32 v20, 3, v3
    v_lshl_add_u32 v17, v20, 6, v17
    v_add_u32 v17, s3, v17
    s_lshl_b32 s64, s64, 10
    s_lshl_b32 s65, s{S_CH}, 12
    s_add_u32 s64, s64, s65
    s_add_u32 s64, s64, {WS_ST}
    v_lshrrev_b32 v18, 2, v1
    v_lshlrev_b32 v18, 7, v18
    v_and_b32 v20, 3, v1
    v_lshl_add_u32 v18, v20, 4, v18
    v_add_u32 v18, s64, v18
    v_mov_b32 v36, 0x3f803f80
    v_mov_b32 v37, 0x3f803f80
    v_mov_b32 v38, 0x3f803f80
    v_mov_b32 v39, 0x3f803f80
    s_waitcnt lgkmcnt(0)
    """)
    mk_tag()
    e("v_and_b32 v50, 3, v1\ns_mov_b32 s67, 0x00010001")
    tagpat(44, 50, 48)
    e(f"v_mov_b32 v53, s{S_TAG}\nv_mov_b32 v55, s{S_TAG}")
    tagpat(57, 2, 61)
    e(f"s_waitcnt vmcnt(0)\nglobal_load_dwordx4 v[40:43], v5, {WS} sc1")
    e("s_barrier")
    stamp(14)
    for half in range(2):
        for tt in range(8):
            for k2 in range(2):
                ks = 2 * half + k2
                for eb in range(2):
                    r = 64 + 16 * tt + 4 * ks + 2 * eb
                    e(f"ds_read_b64_tr_b16 v[{r}:{r+1}], v{8+tt} offset:{32768*k2+16384*eb}")
        if half == 0:
            for tt in range(8):
                e(f"v_add_u32 v{8+tt}, 0x10000, v{8+tt}")
    h2_poll("p")
    for ii in range(8):
        e(f"""
        s_mov_b32 m0, s21
        s_add_u32 s21, s21, 4096
        buffer_load_dwordx4 v19, s[{SRD_A}:{SRD_A+3}], s20 offen{NT} lds
        s_add_u32 s20, s20, {4*4*8192}
        """)
    e("s_barrier\ns_barrier")
    for ks in range(4):
        e(f"ds_read_b128 v[{20+4*ks}:{23+4*ks}], v16 offset:{1024*ks}")
    e(f"""
    v_bfe_u32 v5, v1, 2, 3
    v_lshlrev_b32 v4, 4, v5
    v_add_u32 v4, {L_MX+128}, v4
    v_lshlrev_b32 v5, 2, v5
    s_mov_b32 s64, 0xff00ff00
    s_mov_b32 s65, 0xff00ff00
    """)
    stamp(6)
    for pr in range(4):
        e(f"v_mov_b32 v{37+0}, v{37}") if False else None
    def epi(sg):
        g = 64 + 64 * sg
        out = []
        for t in range(4):
            a0 = 192 + 16 * sg + 4 * t
            out.append(f"v_cvt_pk_bf16_f32 v{44+2*t}, v{a0}, v{a0+1}")
            out.append(f"v_cvt_pk_bf16_f32 v{45+2*t}, v{a0+2}, v{a0+3}")
        for i in range(4):
            out.append(f"v_cndmask_b32 v{g+i}, v{44+i}, v{48+i}, s[64:65]")
        for i in range(4):
            out.append(f"v_and_or_b32 v{g+i}, v{g+i}, s66, v{57+i}")
        out.append(f"global_store_dwordx4 v17, v[{g}:{g+3}], {WS} offset:{128*sg} sc1")
        return out
    e("s_mov_b32 s66, 0xfffefffe")
    ep0 = epi(0)
    for sg in range(2):
        k = 0
        for ks in range(4):
            for t in range(4):
                tt = 4 * sg + t
                acc = f"v[{192+4*tt}:{195+4*tt}]"
                c = "0" if ks == 0 else acc
                r = 64 + 16 * tt + 4 * ks
                if sg == 0 and t == 0: e(f"s_waitcnt lgkmcnt({3-ks})")
                e(f"v_mfma_f32_16x16x32_bf16 {acc}, v[{r}:{r+3}], v[{20+4*ks}:{23+4*ks}], {c}")
                k += 1
                if sg == 1 and k >= 8:
                    for _ in range(2):
                        if ep0: e(ep0.pop(0))
        if sg == 1:
            while ep0: e(ep0.pop(0))
    e(f"s_cmp_eq_u32 s{S_W}, 4\ns_cbranch_scc0 L_b_nol")
    e("ds_read_b32 v52, v4")
    for ks in range(4):
        c = "0" if ks == 0 else "v[40:43]"
        e(f"v_mfma_f32_16x16x32_bf16 v[40:43], v[36:39], v[{20+4*ks}:{23+4*ks}], {c}")
    e.label("L_b_nol")
    e.nop(6)
    for ins in epi(1): e(ins)
    e(f"""
    s_cmp_eq_u32 s{S_W}, 4
    s_cbranch_scc0 L_b_nostat
    ds_bpermute_b32 v54, v5, v40
    s_mov_b64 exec, 0xffffffff
    s_waitcnt lgkmcnt(0)
    global_store_dwordx4 v18, v[52:55], {WS} sc1
    s_mov_b64 exec, -1
    """)
    stamp(7)
    e("s_waitcnt vmcnt(3)\ns_branch L_b_st2")
    e.label("L_b_nostat")
    stamp(7)
    e("s_waitcnt vmcnt(2)")
    e.label("L_b_st2")
    e("s_barrier\ns_barrier")
    e.label("L_b_tail")
    e("s_barrier")
    s7_loads()
    e("s_waitcnt vmcnt(0)")
    s7_prep()
    if cfg.b5sleep: e(f"s_sleep {cfg.b5sleep}")

    e.label("L_S7")
    e(f"s_cmp_lt_u32 s{S_W}, 5\ns_cbranch_scc0 L_s7_bar")
    e("s_mov_b32 s66, 0x00010001")
    e.label("L_h5")
    e(f"""
    global_load_dwordx4 v[40:43], v244, {WS} sc1
    global_load_dwordx4 v[44:47], v245, {WS} sc1
    s_waitcnt vmcnt(0)
    """)
    for i in range(8):
        e(f"v_xor_b32 v{40+i}, v{40+i}, v{10+(i&3)}")
    e("v_or3_b32 v56, v40, v41, v42\nv_or3_b32 v57, v43, v44, v45\nv_or3_b32 v56, v46, v47, v56\nv_or_b32 v56, v56, v57\nv_and_b32 v56, s66, v56")
    poll_tail("L_h5", "L_h5_done", 56, cfg.h5sleep)
    stamp(12)
    for i in range(4):
        e(f"v_lshlrev_b32 v{80+2*i}, 16, v{40+i}\nv_and_b32 v{81+2*i}, 0xffff0000, v{40+i}")
    for i in range(4):
        e(f"v_lshlrev_b32 v{88+2*i}, 16, v{44+i}\nv_and_b32 v{89+2*i}, 0xffff0000, v{44+i}")
        e(f"v_pk_add_f32 v[{80+2*i}:{81+2*i}], v[{80+2*i}:{81+2*i}], v[{88+2*i}:{89+2*i}]")
    e("s_nop 0")
    for i in range(4): e(f"v_permlane16_swap_b32 v{80+i}, v{84+i}")
    for i in range(4): e(f"v_add_f32 v{80+i}, v{80+i}, v{84+i}")
    e(f"""
    s_nop 0
    v_permlane32_swap_b32 v80, v82
    v_permlane32_swap_b32 v81, v83
    v_add_f32 v50, v80, v82
    v_add_f32 v51, v81, v83
    v_pk_add_f32 v[50:51], v[50:51], v[58:59]
    ds_write_b64 v248, v[50:51]
    v_add_f32 v52, v50, v51
    v_mul_f32 v53, v50, v50
    v_fmac_f32 v53, v51, v51
    """)
    dpp_reduce([52, 53])
    e(f"""
    s_mov_b32 exec_lo, 0
    s_mov_b32 exec_hi, 0x80000000
    ds_write_b64 v68, v[52:53]
    s_mov_b64 exec, -1
    """)
    e.label("L_s7_bar")
    e(f"""
    s_waitcnt lgkmcnt(0)
    s_barrier
    """)
    if cfg.s7stamps: stamp(1)
    e(f"""
    s_cmp_lt_u32 s2, {216 if cfg.outmap else 214}
    s_cbranch_scc0 L_fin
    ds_read_b128 v[40:43], v62
    ds_read_b128 v[44:47], v62 offset:16
    ds_read_b64 v[48:49], v62 offset:32
    ds_read_b32 v50, v63
    ds_read_b32 v52, v63 offset:4
    ds_read_b32 v54, v63 offset:8
    s_waitcnt lgkmcnt(3)
    v_pk_add_f32 v[40:41], v[40:41], v[42:43]
    v_pk_add_f32 v[44:45], v[44:45], v[46:47]
    v_pk_add_f32 v[40:41], v[40:41], v[48:49]
    v_pk_add_f32 v[40:41], v[40:41], v[44:45]
    v_pk_mul_f32 v[40:41], v[40:41], v[60:61] op_sel_hi:[1,0]
    v_fma_f32 v41, -v40, v40, v41
    v_max_f32 v41, 0, v41
    v_fma_f32 v42, v41, v61, v65
    s_waitcnt lgkmcnt(0)
    v_rsq_f32 v42, v42
    v_sub_f32 v70, v50, v40
    v_sub_f32 v72, v52, v40
    v_sub_f32 v74, v54, v40
    v_mul_f32 v70, v70, v42
    v_mul_f32 v72, v72, v42
    v_mul_f32 v74, v74, v42
    """)
    if cfg.s7stamps: stamp(2)
    combos = [(r, o) for o in range(3) for r in range(2)]
    for c, (r, o) in enumerate(combos):
        e(f"v_pk_fma_f32 v[{80+2*c}:{81+2*c}], v[{70+2*o}:{71+2*o}], v[{232+2*r}:{233+2*r}], v[{236+2*r}:{237+2*r}] op_sel_hi:[0,1,1]")
    for c in range(6):
        e(f"v_pk_mul_f32 v[{92+2*c}:{93+2*c}], v[{80+2*c}:{81+2*c}], v[{80+2*c}:{81+2*c}]")
    for c in range(6):
        e(f"v_pk_fma_f32 v[{92+2*c}:{93+2*c}], v[{92+2*c}:{93+2*c}], v[66:67], v[64:65] op_sel_hi:[1,0,0]")
    for c in range(6):
        e(f"v_pk_mul_f32 v[{92+2*c}:{93+2*c}], v[{92+2*c}:{93+2*c}], v[{80+2*c}:{81+2*c}]")
    for c in range(12):
        e(f"v_exp_f32 v{92+c}, v{92+c}")
    for c in range(6):
        e(f"v_pk_add_f32 v[{92+2*c}:{93+2*c}], v[{92+2*c}:{93+2*c}], 1.0 op_sel_hi:[1,0]")
    for c in range(12):
        e(f"v_rcp_f32 v{92+c}, v{92+c}")
    for c in range(6):
        e(f"v_pk_mul_f32 v[{80+2*c}:{81+2*c}], v[{80+2*c}:{81+2*c}], v[{92+2*c}:{93+2*c}]")
    for o in range(3):
        e(f"v_pk_mul_f32 v[{104+2*o}:{105+2*o}], v[{80+4*o}:{81+4*o}], v[240:241]")
    for o in range(3):
        e(f"v_pk_fma_f32 v[{104+2*o}:{105+2*o}], v[{82+4*o}:{83+4*o}], v[242:243], v[{104+2*o}:{105+2*o}]")
    if cfg.s7stamps: stamp(3)
    e("v_add_f32 v110, v104, v105\nv_add_f32 v111, v106, v107\nv_add_f32 v112, v108, v109")
    dpp_reduce([110, 111, 112])
    e(f"""
    s_mov_b32 exec_lo, 0
    s_mov_b32 exec_hi, 0x80000000
    ds_write_b128 v69, v[110:113]
    s_mov_b64 exec, -1
    {"s_mul_i32 s3, s5, 80" if cfg.outmap else "s_mov_b32 s3, 560"}
    s_add_u32 s3, s3, 80
    v_cmp_gt_u32 vcc, s3, v8
    v_lshlrev_b32 v8, 1, v8
    s_waitcnt lgkmcnt(0)
    s_barrier
    """)
    if cfg.s7stamps: stamp(4)
    e(f"""
    s_cmp_eq_u32 s{S_W}, 0
    s_cbranch_scc0 L_fin
    s_and_b64 vcc, vcc, 7
    s_and_saveexec_b64 s[64:65], vcc
    s_cbranch_execz L_fin0
    """)
    for w in range(8):
        e(f"ds_read_b32 v{40+w}, v6 offset:{16*w}")
    e(f"""
    ds_read_b32 v48, v7
    s_waitcnt lgkmcnt(0)
    v_add_f32 v40, v40, v41
    v_add_f32 v42, v42, v43
    v_add_f32 v44, v44, v45
    v_add_f32 v46, v46, v47
    v_add_f32 v48, v48, v9
    v_add_f32 v40, v40, v42
    v_add_f32 v44, v44, v46
    v_add_f32 v40, v40, v48
    v_add_f32 v40, v40, v44
    v_cvt_pk_bf16_f32 v40, v40, v40
    global_store_short v8, v40, s[{P_OUT}:{P_OUT+1}]
    """)
    e.label("L_fin0")
    e("s_mov_b64 exec, s[64:65]")
    e.label("L_fin")
    stamp(13)
    e(f"""
    s_cmp_eq_u32 s2, {0 if not cfg.noepoch else 100000}
    s_cbranch_scc0 L_noepoch
    s_cmp_eq_u32 s{S_W}, 0
    s_cbranch_scc0 L_noepoch
    v_lshlrev_b32 v6, 2, v1
    v_mov_b32 v7, s{S_TAG}
    s_mov_b64 exec, 0xffff
    global_store_dword v6, v7, {WS} sc1
    s_mov_b64 exec, -1
    """)
    e.label("L_noepoch")
    if cfg.stamps:
        e(f"""
        s_waitcnt lgkmcnt(0)
        s_lshl_b32 s3, s2, 3
        s_add_u32 s3, s3, s{S_W}
        s_lshl_b32 s3, s3, 6
        s_add_u32 s3, s3, {WS_DBG}
        v_mov_b32 v6, s3
        s_mov_b64 exec, 1
        """)
        for q in range(4):
            for k in range(4):
                e(f"v_mov_b32 v{8+k}, s{S_STAMP+2*min(4*q+k,14)}")
            e(f"global_store_dwordx4 v6, v[8:11], {WS} offset:{16*q}")
            e.nop(2)
        e("s_mov_b64 exec, -1")
    e.label("L_exit")
    e("s_endpgm")
    e.label("L_fail")
    if cfg.stamps: e("s_mov_b64 exec, -1\ns_branch L_noepoch")
    e("s_endpgm")
    e.label("L_end")
    return e

def render(cfg):
    e = gen(cfg)
    body = e.text()
    hdr = open("cdna_kernels/" + NAME[:-7] + ".s.ref").read().split("; Override launch geometry")[0]
    out = hdr + f"; @launch grid=(256,1,1) block=(512,1,1) lds={LDS_BYTES}\n"
    out += f""".amdgcn_target "amdgcn-amd-amdhsa--gfx950"
.text
.globl {NAME}
.p2align 8
.type {NAME},@function
{NAME}:
{body}.section .rodata,"a"
.p2align 6
.amdhsa_kernel {NAME}
  .amdhsa_next_free_vgpr 256
  .amdhsa_next_free_sgpr 102
  .amdhsa_accum_offset 256
  .amdhsa_group_segment_fixed_size 0
  .amdhsa_kernarg_size 112
  .amdhsa_user_sgpr_count 2
  .amdhsa_user_sgpr_kernarg_segment_ptr 1
  .amdhsa_system_sgpr_workgroup_id_x 1
.end_amdhsa_kernel
"""
    return out, body

if __name__ == "__main__":
    cfg = Cfg()
    outp = sys.argv[1] if len(sys.argv) > 1 else "cdna_kernels/" + NAME[:-7] + ".s"
    for a in sys.argv[2:]:
        k, v = a.split("=")
        setattr(cfg, k, int(v))
    out, body = render(cfg)
    probs = check_hazards(body) + check_kernarg_race(body)
    for p in probs: print("HAZARD", p)
    open(outp, "w").write(out)
    print("wrote", outp, len(out), "bytes;", len(body.splitlines()), "lines")
```

```python
import sys, struct
from asmlib import Emit, check_hazards, check_kernarg_race

NAME = "sequential_preLN__compressed_kv_cla__mixer_token_mlp__decode_kernel"

WS_Q1, WS_Q1F, WS_QA, WS_CTX, WS_OP, WS_CTXF, WS_ST, WS_PART, WS_DBG = 0x10000, 0x20000, 0x50000, 0x60000, 0x70000, 0x90000, 0xC0000, 0x100000, 0x400000
L_CKV = 0
L_WO = 0
L_WQ = 32768
L_WUK = 73728
L_QAS = 131072
QAS_STRIDE = 1056
L_PEX = L_QAS + 8 * QAS_STRIDE
L_MX = L_PEX + 4096
L_LNS = 143872
L_QP = 145152
QP_STRIDE = 288
L_CTXS = 146304
L_BNC = 146560
L_ORED = 147584
L_HS = 149632
L_ST7 = 152192
L_YRED = 152256
LDS_BYTES = 152384

S_W, S_X, S_I, S_ISB = 4, 5, 6, 7
P_X, P_CKV, P_WQ, P_WUK, P_WUV, P_WO, P_W1, P_B1, P_W2, P_B2, P_OUT, P_DBG, P_WS = 8, 10, 12, 14, 16, 18, 22, 24, 26, 28, 30, 32, 34
S_TAG, S_H, S_J, S_CH = 36, 37, 38, 39
SRD_0, SRD_A, SRD_WO, SRD_W1, SRD_B1, SRD_W2 = 40, 44, 48, 52, 56, 60
S_SPIN = 100
S_STAMP = 70

def F32(x): return "0x%08x" % struct.unpack("<I", struct.pack("<f", x))[0]
WS = f"s[{P_WS}:{P_WS+1}]"

LSB_DEBIAS = 1.0 + 0.5 * 2.0**-7 * 0.7213475

class Cfg:
    stamps = 0
    nt = 1
    spin = 1 << 17
    h3sleep = 16
    fast1 = 0
    fast4 = 0
    codepf = 16
    bdelay = 0
    exp_nob = 0
    tlbw = 0
    selftouch = 0
    lsb3 = 1
    ukearly = 0
    outmap = 1
    noepoch = 0
    s7stamps = 0
    touch = 0
    uknt = 1
    tsleep = 0
    planeorder = 1
    hperm = 0
    h3psleep = 0
    b5sleep = 44
    f5sleep = 16
    n5sleep = 44
    ckvnt = 1
    ukbar = 1
    bsleep = 8
    uvpf = 1
    h5sleep = 0
    h4sleep = 0
    h2sleep = 0
    exp_nowuv = 0

def gen(cfg):
    e = Emit()
    NT = " nt" if cfg.nt else ""
    def stamp(k):
        if cfg.stamps:
            e(f"s_memrealtime s[{S_STAMP+2*k}:{S_STAMP+2*k+1}]")
    def dpp_reduce(regs, op="v_add_f32"):
        steps = ["row_shr:1 row_mask:0xf bank_mask:0xf bound_ctrl:0", "row_shr:2 row_mask:0xf bank_mask:0xf bound_ctrl:0",
                 "row_shr:4 row_mask:0xf bank_mask:0xf bound_ctrl:0", "row_shr:8 row_mask:0xf bank_mask:0xf bound_ctrl:0",
                 "row_bcast:15 row_mask:0xa bank_mask:0xf", "row_bcast:31 row_mask:0xc bank_mask:0xf"]
        pad = max(0, 2 - (len(regs) - 1))
        e.nop(2)
        for k, st in enumerate(steps):
            for r in regs:
                e(f"{op}_dpp v{r}, v{r}, v{r} {st}")
            if k < len(steps) - 1 and pad: e.nop(pad)
    def tagchk(acc, tags):
        for k, t in enumerate(tags):
            if k == 0:
                e(f"v_xor_b32 v{acc}, s{S_TAG}, v{t}")
            else:
                e(f"v_bitop3_b32 v{acc}, v{acc}, v{t}, s{S_TAG} bitop3:0xf6")
    def spin_back(lbl_loop):
        e(f"s_sub_u32 s{S_SPIN}, s{S_SPIN}, 1")
        e(f"s_cbranch_scc0 {lbl_loop}")
        e("s_branch L_fail")
    def poll_tail(lbl_loop, lbl_done, acc, sleep=0):
        e(f"v_cmp_ne_u32 vcc, 0, v{acc}")
        e(f"s_cbranch_vccz {lbl_done}")
        if sleep: e(f"s_sleep {sleep}")
        spin_back(lbl_loop)
        e.label(lbl_done)
    def tr_common():
        e("""
        v_bfe_u32 v62, v1, 2, 2
        v_bfe_u32 v63, v1, 1, 1
        v_and_b32 v59, 1, v1
        v_lshlrev_b32 v59, 3, v59
        """)
    def tr256_addr(dst, tmp):
        e(f"""
        v_and_b32 v{dst}, 1, v2
        v_lshl_add_u32 v{dst}, v{dst}, 2, v62
        v_lshlrev_b32 v{dst}, 1, v{dst}
        s_lshl_b32 s3, s{S_W}, 1
        v_add_u32 v{tmp}, s3, v63
        v_xor_b32 v{dst}, v{dst}, v{tmp}
        v_lshl_add_u32 v{dst}, v{dst}, 4, v59
        v_lshl_add_u32 v{tmp}, v2, 3, v62
        v_lshl_add_u32 v{dst}, v{tmp}, 8, v{dst}
        """)
    def tagpat(dst, vsel, tmp):
        e(f"v_lshlrev_b32 v{tmp}, 3, v{vsel}")
        e(f"v_lshrrev_b32 v{tmp}, v{tmp}, s{S_TAG}") if False else e(f"v_mov_b32 v{tmp+1}, s{S_TAG}\nv_lshrrev_b32 v{tmp}, v{tmp}, v{tmp+1}")
        for i in range(4):
            e(f"v_bfe_u32 v{dst+i}, v{tmp}, {2*i}, 1")
            e(f"v_bfe_u32 v{tmp+1}, v{tmp}, {2*i+1}, 1")
            e(f"v_lshl_or_b32 v{dst+i}, v{tmp+1}, 16, v{dst+i}")
    def mk_tag():
        e(f"s_mul_i32 s{S_TAG}, s{S_TAG}, 1664525\ns_add_u32 s{S_TAG}, s{S_TAG}, 1013904223")
    def s7_loads():
        e(f"""
        s_mov_b32 s{SRD_W1}, s{P_W1}
        s_mov_b32 s{SRD_W1+1}, s{P_W1+1}
        s_mov_b32 s{SRD_W1+2}, 3456
        s_mov_b32 s{SRD_W1+3}, 0x20000
        s_mov_b32 s{SRD_B1}, s{P_B1}
        s_mov_b32 s{SRD_B1+1}, s{P_B1+1}
        s_mov_b32 s{SRD_B1+2}, 3456
        s_mov_b32 s{SRD_B1+3}, 0x20000
        s_mov_b32 s{SRD_W2}, s{P_W2}
        s_mov_b32 s{SRD_W2+1}, s{P_W2+1}
        s_mov_b32 s{SRD_W2+2}, 3456
        s_mov_b32 s{SRD_W2+3}, 0x20000
        s_lshl_b32 s3, s{S_W}, 8
        v_lshl_add_u32 v4, v1, 2, s3
        buffer_load_dword v224, v4, s[{SRD_W1}:{SRD_W1+3}], 0 offen
        buffer_load_dword v225, v4, s[{SRD_W1}:{SRD_W1+3}], 0 offen offset:2048
        buffer_load_dword v226, v4, s[{SRD_B1}:{SRD_B1+3}], 0 offen
        buffer_load_dword v227, v4, s[{SRD_B1}:{SRD_B1+3}], 0 offen offset:2048
        buffer_load_dword v228, v4, s[{SRD_W2}:{SRD_W2+3}], 0 offen
        buffer_load_dword v229, v4, s[{SRD_W2}:{SRD_W2+3}], 0 offen offset:2048
        v_mov_b32 v4, 0
        global_load_ushort v231, v4, s[{P_B2}:{P_B2+1}]
        s_min_u32 s3, s{S_W}, 4
        s_lshl_b32 s3, s3, 8
        v_lshlrev_b32 v4, 4, v3
        v_and_b32 v230, 1, v2
        v_lshl_add_u32 v4, v230, 3, v4
        v_lshrrev_b32 v230, 1, v2
        v_lshl_add_u32 v4, v230, 2, v4
        v_add_u32 v4, s3, v4
        global_load_dword v230, v4, s[{P_X}:{P_X+1}]
        """)
    OUTIDX = ("s_lshr_b32 s101, s2, 3\ns_mul_i32 s101, s101, 3\ns_mul_i32 s3, s5, 80\ns_add_u32 s101, s101, s3" if cfg.outmap else "s_mul_i32 s101, s2, 3")
    def s7_prep():
        for k, (raw, dst) in enumerate([(224, 232), (225, 234), (226, 236), (227, 238), (228, 240), (229, 242)]):
            e(f"v_lshlrev_b32 v{dst}, 16, v{raw}\nv_and_b32 v{dst+1}, 0xffff0000, v{raw}")
        e(f"""
        v_mul_u32_u24 v244, 1280, v2
        v_lshl_add_u32 v244, v3, 4, v244
        s_lshl_b32 s3, s{S_W}, 8
        s_add_u32 s64, s3, {WS_OP}
        v_add_u32 v244, s64, v244
        v_add_u32 v245, 5120, v244
        s_lshl_b32 s3, s{S_W}, 9
        s_add_u32 s3, s3, {L_HS}
        v_lshlrev_b32 v248, 5, v3
        v_and_b32 v57, 1, v2
        v_lshl_add_u32 v248, v57, 4, v248
        v_lshrrev_b32 v57, 1, v2
        v_lshl_add_u32 v248, v57, 3, v248
        v_add_u32 v248, s3, v248
        v_lshlrev_b32 v58, 16, v230
        v_and_b32 v59, 0xffff0000, v230
        v_mov_b32 v60, {F32(1.0/640)}
        v_mov_b32 v61, {F32(1.0 + 1e-5)}
        v_mov_b32 v65, {F32(1e-10)}
        v_mov_b32 v64, {F32(-2.0*0.7978845608028654*1.4426950408889634)}
        v_mov_b32 v66, {F32(-2.0*0.7978845608028654*1.4426950408889634*0.044715)}
        v_mov_b32 v62, {L_ST7}
        {OUTIDX}
        s_lshl_b32 s3, s101, 2
        s_add_u32 s3, s3, {L_HS}
        v_mov_b32 v63, s3
        s_lshl_b32 s3, s{S_W}, 3
        s_add_u32 s3, s3, {L_ST7}
        v_mov_b32 v68, s3
        s_lshl_b32 s3, s{S_W}, 4
        s_add_u32 s3, s3, {L_YRED}
        v_mov_b32 v69, s3
        v_mov_b32 v113, 0
        v_add_u32 v8, s101, v1
        v_lshlrev_b32 v6, 2, v1
        v_add_u32 v6, {L_YRED}, v6
        v_lshlrev_b32 v7, 2, v8
        v_add_u32 v7, {L_HS}, v7
        v_lshlrev_b32 v9, 16, v231
        """)
        e("v_and_b32 v57, 3, v1")
        tagpat(10, 57, 14)

    def uk_dma(bar):
        e(f"""
        s_mov_b32 s{SRD_A}, s{P_WUK}
        s_mov_b32 s{SRD_A+1}, s{P_WUK+1}
        s_mov_b32 s{SRD_A+2}, 4194304
        s_mov_b32 s{SRD_A+3}, 0x20000
        s_and_b32 s66, s{S_W}, 1
        s_lshl_b32 s66, s66, 3
        v_lshlrev_b32 v7, 1, v2
        v_xor_b32 v7, v7, v3
        v_xor_b32 v7, s66, v7
        v_lshlrev_b32 v7, 4, v7
        v_lshl_add_u32 v7, v2, 13, v7
        s_lshl_b32 s64, s{S_J}, 5
        s_add_u32 s64, s64, s{S_W}
        s_lshl_b32 s64, s64, 15
        s_lshl_b32 s65, s{S_H}, 8
        s_add_u32 s64, s64, s65
        s_lshl_b32 s67, s{S_W}, 10
        s_add_u32 s67, s67, {L_WUK}
        """)
        if bar: e("s_barrier")
        for ii in range(8):
            e(f"""
            s_mov_b32 m0, s67
            s_add_u32 s67, s67, 4096
            buffer_load_dwordx4 v7, s[{SRD_A}:{SRD_A+3}], s64 offen{NT} lds
            s_add_u32 s64, s64, {4*4*8192}
            """)

    e(f"""
    s_cmp_ge_u32 s2, 256
    s_cbranch_scc1 L_exit
    s_load_dwordx16 s[8:23], s[0:1], 0
    s_load_dwordx4 s[32:35], s[0:1], 96
    s_load_dwordx8 s[24:31], s[0:1], 64
    """)
    if cfg.codepf:
        e(f"""
        s_cmp_lt_u32 s2, {cfg.codepf}
        s_cbranch_scc0 L_nopf
        s_getpc_b64 s[64:65]
        """)
        e.label("L_pc")
        e(f"""
        s_and_b32 s64, s64, 0xffffff00
        v_lshlrev_b32 v203, 7, v0
        v_min_u32 v203, L_end-L_pc-4, v203
        v_mov_b32 v201, s65
        v_add_co_u32 v200, vcc, s64, v203
        s_nop 1
        v_addc_co_u32 v201, vcc, 0, v201, vcc
        global_load_dword v202, v[200:201], off
        """)
        e.label("L_nopf")
    if cfg.stamps:
        e(f"s_memrealtime s[{S_STAMP}:{S_STAMP+1}]")
        for k in range(1, 15): e(f"s_mov_b32 s{S_STAMP+2*k}, 0")
    e(f"""
    v_and_b32 v1, 63, v0
    v_lshrrev_b32 v4, 6, v0
    v_lshrrev_b32 v2, 4, v1
    v_readfirstlane_b32 s{S_W}, v4
    v_and_b32 v3, 15, v1
    s_and_b32 s{S_X}, s2, 7
    s_bfe_u32 s{S_I}, s2, 0x40003
    s_lshr_b32 s{S_H}, s{S_I}, 2
    s_xor_b32 s{S_H}, s{S_H}, {cfg.hperm}
    s_lshl_b32 s3, s{S_X}, 2
    s_add_u32 s{S_H}, s{S_H}, s3
    s_and_b32 s{S_J}, s{S_I}, 3
    s_mov_b32 s{SRD_0+3}, 0x20000
    s_mov_b32 s{S_SPIN}, {cfg.spin}
    s_cmp_ge_u32 s2, 128
    s_cbranch_scc1 L_B0
    """)
    e(f"""
    s_lshl_b32 s66, s{S_W}, 2
    s_and_b32 s66, s66, 8
    s_mul_i32 s64, s{S_J}, 40
    s_add_u32 s64, s64, s{S_W}
    s_lshl_b32 s64, s64, 15
    s_lshl_b32 s65, s{S_H}, 8
    s_add_u32 s64, s64, s65
    s_lshl_b32 s67, s{S_W}, 10
    s_add_u32 s67, s67, {L_WQ}
    s_mov_b32 s{SRD_0+2}, 5242880
    v_lshlrev_b32 v7, 1, v2
    v_xor_b32 v7, v7, v3
    v_xor_b32 v7, s66, v7
    v_lshlrev_b32 v7, 4, v7
    v_lshl_add_u32 v7, v2, 13, v7
    v_lshlrev_b32 v6, 2, v1
    s_cmp_eq_u32 s{S_W}, 0
    s_waitcnt lgkmcnt(0)
    s_mov_b32 s{SRD_0}, s{P_WQ}
    s_mov_b32 s{SRD_0+1}, s{P_WQ+1}
    s_cbranch_scc0 L_f_nox
    """)
    for k in range(5):
        e(f"global_load_dword v{8+k}, v6, s[{P_X}:{P_X+1}] offset:{256*k}")
    e.label("L_f_nox")
    for ii in range(5):
        e(f"""
        s_mov_b32 m0, s67
        s_add_u32 s67, s67, 8192
        buffer_load_dwordx4 v7, s[{SRD_0}:{SRD_0+3}], s64 offen{NT} lds
        s_add_u32 s64, s64, {8*4*8192}
        """)
    if cfg.selftouch:
        e(f"""
        v_bfe_u32 v4, v1, 1, 4
        s_lshl_b32 s3, s{S_J}, 7
        s_lshl_b32 s64, s{S_W}, 4
        s_add_u32 s3, s3, s64
        v_add_u32 v4, s3, v4
        v_lshlrev_b32 v4, 13, v4
        v_and_b32 v5, 1, v1
        v_lshl_add_u32 v4, v5, 7, v4
        s_lshl_b32 s3, s{S_H}, 8
        v_add_u32 v4, s3, v4
        s_mov_b64 exec, 0xffffffff
        global_load_dword v200, v4, s[{P_WUK}:{P_WUK+1}] nt
        s_mov_b64 exec, -1
        """)
    if cfg.ukearly:
        e("s_barrier")
        e(f"s_cmp_lt_u32 s{S_W}, 4\ns_cbranch_scc0 L_f_nouk")
        uk_dma(False)
        e.label("L_f_nouk")
    e(f"""
    s_load_dword s{S_TAG}, {WS}, 0
    s_branch L_F1
    """)
    e.label("L_B0")
    if cfg.exp_nob: e("s_endpgm")
    e(f"""
    s_lshl_b32 s3, s{S_W}, 1
    v_xor_b32 v7, s3, v1
    v_lshlrev_b32 v7, 4, v7
    s_lshl_b32 s{S_CH}, s{S_X}, 2
    s_add_u32 s{S_CH}, s{S_CH}, s{S_J}
    s_lshl_b32 s66, s{S_CH}, 17
    s_and_b32 s67, s{S_I}, 12
    s_lshl_b32 s67, s67, 13
    s_lshl_b32 s65, s{S_W}, 10
    s_add_u32 s67, s67, s65
    s_mov_b32 s{SRD_0+2}, 4194304
    s_mov_b32 s68, 15
    v_bfe_u32 v4, v1, 1, 4
    s_lshl_b32 s3, s{S_J}, 7
    s_lshl_b32 s64, s{S_W}, 4
    s_add_u32 s3, s3, s64
    v_add_u32 v4, s3, v4
    v_lshlrev_b32 v4, 13, v4
    v_and_b32 v5, 1, v1
    v_lshl_add_u32 v4, v5, 7, v4
    s_lshl_b32 s3, s{S_H}, 8
    v_add_u32 v4, s3, v4
    s_waitcnt lgkmcnt(0)
    s_mov_b32 s{SRD_0}, s{P_CKV}
    s_mov_b32 s{SRD_0+1}, s{P_CKV+1}
    """)
    if cfg.tlbw:
        e(f"""
        s_cmp_eq_u32 s{S_I}, 0
        s_cselect_b32 s3, s{S_W}, 0
        s_cmp_eq_u32 s3, 7
        s_cbranch_scc0 L_notlb
        s_mov_b64 exec, 1
        v_mov_b32 v8, 0
        v_mov_b32 v9, 0x200000
        v_mov_b32 v10, 0x3ffffc
        v_mov_b32 v11, 0x4ffffc
        global_load_dword v204, v8, s[{P_WUK}:{P_WUK+1}] nt
        global_load_dword v204, v9, s[{P_WUK}:{P_WUK+1}] nt
        global_load_dword v204, v10, s[{P_WUK}:{P_WUK+1}] nt
        global_load_dword v204, v8, s[{P_WUV}:{P_WUV+1}] nt
        global_load_dword v204, v9, s[{P_WUV}:{P_WUV+1}] nt
        global_load_dword v204, v10, s[{P_WUV}:{P_WUV+1}] nt
        global_load_dword v204, v8, s[{P_WO}:{P_WO+1}] nt
        global_load_dword v204, v9, s[{P_WO}:{P_WO+1}] nt
        global_load_dword v204, v10, s[{P_WO}:{P_WO+1}] nt
        global_load_dword v204, v11, s[{P_WO}:{P_WO+1}] nt
        global_load_dword v204, v8, s[{P_W1}:{P_W1+1}]
        global_load_dword v204, v8, s[{P_B1}:{P_B1+1}]
        global_load_dword v204, v8, s[{P_W2}:{P_W2+1}]
        global_load_ushort v204, v8, s[{P_B2}:{P_B2+1}]
        global_load_dword v204, v8, s[{P_OUT}:{P_OUT+1}]
        s_mov_b64 exec, -1
        """)
        e.label("L_notlb")
    if cfg.tsleep: e(f"s_sleep {cfg.tsleep}")
    if cfg.touch: e(f"""
    s_mov_b64 exec, 0xffffffff
    global_load_dword v200, v4, s[{P_WUK}:{P_WUK+1}]{" nt" if cfg.uknt else ""}
    s_mov_b64 exec, -1
    """)
    if cfg.bdelay: e(f"s_load_dword s{S_TAG}, {WS}, 0\ns_waitcnt lgkmcnt(0)")
    if cfg.bsleep: e(f"s_sleep {cfg.bsleep}")
    e.label("L_b_dma")
    e(f"""
    s_mov_b32 m0, s67
    s_add_u32 s69, s67, s66
    buffer_load_dwordx4 v7, s[{SRD_0}:{SRD_0+3}], s69 offen{" nt" if cfg.ckvnt else ""} lds
    s_add_u32 s67, s67, 8192
    s_and_b32 s67, s67, 0x1ffff
    s_sub_u32 s68, s68, 1
    s_cbranch_scc0 L_b_dma
    """)
    if not cfg.bdelay: e(f"s_load_dword s{S_TAG}, {WS}, 0")
    e("s_branch L_B1")

    e.label("L_F1")
    e(f"s_mov_b32 s{S_ISB}, 0")
    stamp(1)
    tr_common()
    e(f"""
    v_and_b32 v41, 1, v2
    v_lshl_add_u32 v41, v41, 2, v62
    v_lshlrev_b32 v41, 1, v41
    s_and_b32 s65, s{S_W}, 3
    s_lshl_b32 s3, s65, 2
    v_add_u32 v42, s3, v63
    v_xor_b32 v41, v41, v42
    v_lshl_add_u32 v41, v41, 4, v59
    v_lshl_add_u32 v42, v2, 3, v62
    v_lshl_add_u32 v41, v42, 8, v41
    v_add_u32 v41, {L_WQ}, v41
    v_xor_b32 v40, 32, v41
    s_mul_i32 s3, s{S_J}, 320
    s_add_u32 s3, s3, {L_LNS}
    v_lshl_add_u32 v42, v2, 4, s3
    s_lshl_b32 s3, s{S_H}, 2
    s_add_u32 s3, s3, s{S_J}
    s_lshl_b32 s3, s3, 9
    s_lshl_b32 s64, s65, 7
    s_add_u32 s3, s3, s64
    s_add_u32 s65, s3, {WS_Q1}
    v_and_b32 v43, 1, v1
    v_lshlrev_b32 v43, 6, v43
    v_lshl_add_u32 v43, v2, 4, v43
    v_add_u32 v43, s65, v43
    v_add_u32 v44, {WS_Q1F-WS_Q1}, v43
    s_lshl_b32 s64, s{S_W}, 6
    s_lshl_b32 s3, s{S_H}, 2
    s_and_b32 s65, s{S_W}, 3
    s_add_u32 s3, s3, s65
    s_lshl_b32 s3, s3, 9
    s_add_u32 s3, s3, {WS_Q1}
    v_lshl_add_u32 v45, v1, 3, s3
    v_add_u32 v49, {WS_Q1F-WS_Q1}, v45
    s_mul_i32 s3, s65, {QP_STRIDE}
    s_add_u32 s3, s3, {L_QP}
    v_lshl_add_u32 v46, v1, 2, s3
    v_and_b32 v47, 3, v3
    v_mul_u32_u24 v47, {QP_STRIDE}, v47
    v_lshl_add_u32 v47, v2, 4, v47
    v_add_u32 v47, {L_QP}, v47
    s_and_b32 s66, s{S_W}, 3
    s_lshl_b32 s3, s{S_H}, 10
    s_lshl_b32 s65, s{S_J}, 8
    s_add_u32 s3, s3, s65
    s_lshl_b32 s64, s66, 6
    s_add_u32 s3, s3, s64
    s_add_u32 s65, s3, {WS_QA}
    v_and_b32 v50, 1, v1
    v_lshlrev_b32 v50, 1, v50
    v_lshrrev_b32 v51, 1, v2
    v_add_u32 v50, v50, v51
    v_lshl_add_u32 v48, v50, 4, s65
    s_lshl_b32 s3, s66, 5
    v_add_u32 v24, s3, v3
    v_lshlrev_b32 v24, 8, v24
    v_and_b32 v25, 7, v3
    v_lshlrev_b32 v25, 1, v25
    v_xor_b32 v25, v25, v2
    v_lshl_add_u32 v24, v25, 4, v24
    v_add_u32 v24, {L_WUK}, v24
    v_xor_b32 v25, 64, v24
    v_xor_b32 v26, 128, v24
    v_xor_b32 v27, 192, v24
    s_waitcnt lgkmcnt(0)
    """)
    mk_tag()
    e(f"v_mov_b32 v105, s{S_TAG}\nv_mov_b32 v107, s{S_TAG}")
    tagpat(52, 50, 56)
    e(f"""
    s_cmp_eq_u32 s{S_W}, 0
    s_cbranch_scc0 L_f_noln
    """)
    e(f"s_waitcnt vmcnt({13 if cfg.ukearly else 5 + cfg.selftouch})")
    stamp(2)
    for k in range(5):
        e(f"v_lshlrev_b32 v{64+2*k}, 16, v{8+k}")
        e(f"v_and_b32 v{65+2*k}, 0xffff0000, v{8+k}")
    e(f"""
    v_pk_add_f32 v[74:75], v[64:65], v[66:67]
    v_pk_add_f32 v[76:77], v[68:69], v[70:71]
    v_pk_add_f32 v[74:75], v[74:75], v[72:73]
    v_pk_add_f32 v[74:75], v[74:75], v[76:77]
    v_mov_b32 v78, {F32(-1.0/640)}
    v_add_f32 v74, v74, v75
    """)
    dpp_reduce([74])
    e.nop(1)
    e("v_readlane_b32 s20, v74, 63")
    e(f"v_mov_b32 v80, {F32(1.0/640)}\nv_mov_b32 v81, {F32(1e-5)}")
    e("v_mul_f32 v78, s20, v78")
    for k in range(5):
        e(f"v_pk_add_f32 v[{64+2*k}:{65+2*k}], v[{64+2*k}:{65+2*k}], v[78:79] op_sel_hi:[1,0]")
    e("v_pk_mul_f32 v[74:75], v[64:65], v[64:65]")
    for k in range(1, 5):
        e(f"v_pk_fma_f32 v[74:75], v[{64+2*k}:{65+2*k}], v[{64+2*k}:{65+2*k}], v[74:75]")
    e("v_add_f32 v74, v74, v75")
    dpp_reduce([74])
    e.nop(1)
    e("v_readlane_b32 s21, v74, 63")
    e(f"v_mov_b32 v82, {F32(128**-0.5 * 1.4426950408889634 * LSB_DEBIAS)}")
    e(f"v_add_u32 v6, {L_LNS}, v6")
    e("v_fma_f32 v74, s21, v80, v81")
    e("v_rsq_f32 v74, v74")
    e.nop(1)
    e("v_mul_f32 v74, v74, v82")
    for k in range(5):
        e(f"v_pk_mul_f32 v[{64+2*k}:{65+2*k}], v[{64+2*k}:{65+2*k}], v[74:75] op_sel_hi:[1,0]")
    for k in range(5):
        e(f"v_cvt_pk_bf16_f32 v{8+k}, v{64+2*k}, v{65+2*k}")
        e(f"ds_write_b32 v6, v{8+k} offset:{256*k}")
    e.label("L_f_noln")
    if cfg.ukearly:
        e(f"s_cmp_lt_u32 s{S_W}, 4\ns_cbranch_scc0 L_f_w0\ns_waitcnt vmcnt(8)\ns_branch L_f_w1")
        e.label("L_f_w0")
        e("s_waitcnt vmcnt(0)")
        e.label("L_f_w1")
        e("s_waitcnt lgkmcnt(0)")
    else:
        e(f"s_waitcnt vmcnt({cfg.selftouch}) lgkmcnt(0)")
    e("s_barrier")
    stamp(3)
    e(f"s_cmp_lt_u32 s{S_W}, 4\ns_cbranch_scc1 L_f_uk")
    for ks in range(5):
        e(f"ds_read_b128 v[{84+4*ks}:{87+4*ks}], v42 offset:{64*ks}")
        e(f"ds_read_b64_tr_b16 v[{64+4*ks}:{65+4*ks}], v41 offset:{8192*ks}")
        e(f"ds_read_b64_tr_b16 v[{66+4*ks}:{67+4*ks}], v41 offset:{8192*ks+1024}")
        e(f"ds_read_b64_tr_b16 v[{112+4*ks}:{113+4*ks}], v40 offset:{8192*ks}")
        e(f"ds_read_b64_tr_b16 v[{114+4*ks}:{115+4*ks}], v40 offset:{8192*ks+1024}")
    e("s_mov_b32 s64, 0xaaaaaaaa\ns_mov_b32 s65, 0xaaaaaaaa")
    for ks in range(5):
        e(f"s_waitcnt lgkmcnt({min(15, 20-5*ks)})")
        c = "0" if ks == 0 else "v[108:111]"
        e(f"v_mfma_f32_16x16x32_bf16 v[108:111], v[{64+4*ks}:{67+4*ks}], v[{84+4*ks}:{87+4*ks}], {c}")
        c = "0" if ks == 0 else "v[132:135]"
        e(f"v_mfma_f32_16x16x32_bf16 v[132:135], v[{112+4*ks}:{115+4*ks}], v[{84+4*ks}:{87+4*ks}], {c}")
    e("s_mov_b32 exec_lo, 0x00030003\ns_mov_b32 exec_hi, 0x00030003")
    e.nop(6)
    for r in range(4):
        e(f"v_cndmask_b32 v{108+r}, v{108+r}, v{132+r}, s[64:65]")
    e("""
    v_cvt_pk_bf16_f32 v104, v108, v109
    v_cvt_pk_bf16_f32 v106, v110, v111
    """)
    if cfg.fast1: e(f"global_store_dwordx4 v44, v[104:107], {WS}")
    e(f"global_store_dwordx4 v43, v[104:107], {WS} sc1\ns_mov_b64 exec, -1")
    stamp(4)
    e(("" if cfg.ukearly else "s_barrier\n") + "s_branch L_h1_bar")
    e.label("L_f_uk")
    if not cfg.ukearly: uk_dma(True)
    e.label("L_h1")
    if cfg.fast1:
        e(f"global_load_dwordx2 v[66:67], v49, {WS} sc1")
        e(f"global_load_dwordx2 v[64:65], v45, {WS} sc1\ns_waitcnt vmcnt(0)")
        e(f"v_cmp_eq_u32 vcc, s{S_TAG}, v67")
        e.nop(2)
        e("v_cndmask_b32 v64, v64, v66, vcc\nv_cndmask_b32 v65, v65, v67, vcc")
    else:
        e(f"global_load_dwordx2 v[64:65], v45, {WS} sc1\ns_waitcnt vmcnt(0)")
    e(f"v_cmp_ne_u32 vcc, s{S_TAG}, v65")
    e(f"s_cbranch_vccz L_h1_done")
    spin_back("L_h1")
    e.label("L_h1_done")
    stamp(8)
    stamp(7)
    e("ds_write_b32 v46, v64")
    e.label("L_h1_bar")
    e("s_waitcnt lgkmcnt(0)\ns_barrier")
    stamp(5)
    e(f"s_cmp_lt_u32 s{S_W}, 4\ns_cbranch_scc1 L_f_nos2")
    for t in range(4):
        e(f"ds_read_b128 v[{64+4*t}:{67+4*t}], v47 offset:{64*t}")
        e(f"ds_read_b128 v[{80+4*t}:{83+4*t}], v{24+t}")
        e(f"ds_read_b128 v[{112+4*t}:{115+4*t}], v{24+t} offset:4096")
    e("s_mov_b32 s64, 0xaaaaaaaa\ns_mov_b32 s65, 0xaaaaaaaa")
    for t in range(4):
        e(f"s_waitcnt lgkmcnt({9-3*t})")
        c = "0" if t == 0 else "v[108:111]"
        e(f"v_mfma_f32_16x16x32_bf16 v[108:111], v[{80+4*t}:{83+4*t}], v[{64+4*t}:{67+4*t}], {c}")
        c = "0" if t == 0 else "v[132:135]"
        e(f"v_mfma_f32_16x16x32_bf16 v[132:135], v[{112+4*t}:{115+4*t}], v[{64+4*t}:{67+4*t}], {c}")
    e.nop(7)
    for st in ("row_ror:1", "row_ror:2"):
        for r in list(range(108, 112)) + list(range(132, 136)):
            e(f"v_add_f32_dpp v{r}, v{r}, v{r} {st} row_mask:0xf bank_mask:0xf")
    for r in range(4):
        e(f"v_cndmask_b32 v{108+r}, v{108+r}, v{132+r}, s[64:65]")
    e("""
    v_cvt_pk_bf16_f32 v104, v108, v109
    v_cvt_pk_bf16_f32 v105, v110, v111
    s_mov_b32 s66, 0xfffefffe
    v_mov_b32 v106, v104
    v_mov_b32 v107, v105
    s_nop 1
    v_permlane16_swap_b32 v104, v106
    v_permlane16_swap_b32 v105, v107
    s_mov_b32 exec_lo, 3
    s_mov_b32 exec_hi, 3
    v_and_or_b32 v104, v104, s66, v52
    v_and_or_b32 v105, v105, s66, v53
    v_and_or_b32 v106, v106, s66, v54
    v_and_or_b32 v107, v107, s66, v55
    """)
    e(f"global_store_dwordx4 v48, v[104:107], {WS} sc1\ns_mov_b64 exec, -1")
    stamp(6)
    e.label("L_f_nos2")
    e("s_barrier")
    if cfg.uvpf:
        e(f"""
        v_lshrrev_b32 v4, 1, v1
        s_lshl_b32 s3, s{S_J}, 7
        s_lshl_b32 s64, s{S_W}, 4
        s_add_u32 s3, s3, s64
        v_and_b32 v4, 15, v4
        v_add_u32 v4, s3, v4
        v_lshlrev_b32 v4, 13, v4
        v_and_b32 v5, 1, v1
        v_lshl_add_u32 v4, v5, 7, v4
        s_lshl_b32 s3, s{S_H}, 8
        v_add_u32 v4, s3, v4
        s_mov_b64 exec, 0xffffffff
        global_load_dword v5, v4, s[{P_WUV}:{P_WUV+1}]{NT}
        s_mov_b64 exec, -1
        """)
    e(f"s_cmp_lt_u32 s{S_I}, 10\ns_cbranch_scc1 L_s6")
    s7_loads()
    e("s_waitcnt vmcnt(0)")
    s7_prep()
    if cfg.n5sleep:
        e(f"""
        s_cmp_lt_u32 s{S_W}, 5
        s_cbranch_scc0 L_S7
        s_lshl_b32 s3, s{S_H}, 2
        s_add_u32 s3, s3, s{S_J}
        s_lshl_b32 s3, s3, 9
        s_add_u32 s3, s3, {WS_CTX}
        v_mov_b32 v40, s3
        """)
        e.label("L_sent")
        e(f"""
        global_load_dwordx2 v[42:43], v40, {WS} sc1
        s_waitcnt vmcnt(0)
        v_cmp_ne_u32 vcc, s{S_TAG}, v43
        s_cbranch_vccz L_sent_done
        s_sleep 8
        """)
        spin_back("L_sent")
        e.label("L_sent_done")
        e(f"s_sleep {cfg.n5sleep}")
    e("s_branch L_S7")
    e.label("L_s6")
    e(f"""
    s_mov_b32 s{SRD_WO}, s{P_WO}
    s_mov_b32 s{SRD_WO+1}, s{P_WO+1}
    s_mov_b32 s{SRD_WO+2}, 5242880
    s_mov_b32 s{SRD_WO+3}, 0x20000
    v_lshrrev_b32 v12, 3, v1
    v_mul_u32_u24 v50, 1280, v12
    v_and_b32 v12, 2, v12
    v_and_b32 v13, 7, v1
    v_xor_b32 v12, v12, v13
    v_lshl_add_u32 v50, v12, 4, v50
    v_xor_b32 v51, 64, v50
    s_lshl_b32 s3, s{S_X}, 3
    s_add_u32 s3, s3, s{S_W}
    s_mul_i32 s20, s3, {64*1280}
    s_lshl_b32 s65, s{S_I}, 7
    s_add_u32 s20, s20, s65
    s_lshl_b32 s21, s{S_W}, 13
    """)
    for ii in range(8):
        e(f"""
        s_mov_b32 m0, s21
        s_add_u32 s21, s21, 1024
        buffer_load_dwordx4 v{50+(ii&1)}, s[{SRD_WO}:{SRD_WO+3}], s20 offen{NT} lds
        s_add_u32 s20, s20, {8*1280}
        """)
    s7_loads()
    tr_common()
    e(f"""
    v_lshl_add_u32 v12, v2, 3, v62
    v_lshlrev_b32 v12, 7, v12
    v_add_u32 v12, v12, v59
    s_lshl_b32 s3, s{S_W}, 13
    v_add_u32 v12, s3, v12
    v_and_b32 v13, 1, v2
    v_lshlrev_b32 v13, 2, v13
    v_and_b32 v14, 2, v62
    v_or_b32 v13, v13, v14
    v_xor_b32 v13, v13, v63
    v_lshl_add_u32 v249, v13, 4, v12
    v_xor_b32 v250, 32, v249
    v_xor_b32 v251, 64, v249
    v_xor_b32 v252, 96, v249
    s_lshr_b32 s3, s{S_W}, 1
    s_lshl_b32 s64, s{S_X}, 2
    s_add_u32 s3, s3, s64
    s_lshl_b32 s3, s3, 11
    s_and_b32 s64, s{S_W}, 1
    s_lshl_b32 s64, s64, 8
    s_add_u32 s3, s3, s64
    s_add_u32 s3, s3, {WS_CTX}
    v_lshlrev_b32 v52, 9, v2
    v_lshl_add_u32 v52, v3, 4, v52
    v_add_u32 v52, s3, v52
    v_add_u32 v53, {WS_CTXF-WS_CTX}, v52
    s_lshl_b32 s3, s{S_W}, 7
    s_add_u32 s3, s3, {L_BNC}
    v_lshl_add_u32 v54, v3, 2, v2
    v_lshlrev_b32 v54, 1, v54
    v_add_u32 v54, s3, v54
    v_lshl_add_u32 v55, v2, 4, s3
    s_lshl_b32 s3, s{S_W}, 8
    s_add_u32 s3, s3, {L_ORED}
    v_lshl_add_u32 v253, v2, 4, s3
    v_lshlrev_b32 v254, 3, v1
    v_add_u32 v254, {L_ORED}, v254
    s_mul_i32 s3, s{S_X}, 1280
    s_lshl_b32 s64, s{S_I}, 7
    s_add_u32 s3, s3, s64
    s_add_u32 s3, s3, {WS_OP}
    v_lshl_add_u32 v255, v1, 2, s3
    v_and_b32 v12, 15, v1
    v_lshlrev_b32 v12, 1, v12
    v_mov_b32 v13, s{S_TAG}
    v_lshrrev_b32 v12, v12, v13
    v_and_b32 v13, 1, v12
    v_and_b32 v12, 2, v12
    v_lshl_or_b32 v136, v12, 15, v13
    s_waitcnt vmcnt(0)
    """)
    stamp(9)
    for tt in range(4):
        for ks in range(2):
            r = 80 + 8 * tt + 4 * ks
            e(f"ds_read_b64_tr_b16 v[{r}:{r+1}], v{249+tt} offset:{4096*ks}")
            e(f"ds_read_b64_tr_b16 v[{r+2}:{r+3}], v{249+tt} offset:{4096*ks+512}")
    s7_prep()
    e.label("L_h4")
    if cfg.fast4:
        e(f"global_load_dwordx4 v[44:47], v53, {WS} sc1")
        e(f"global_load_dwordx4 v[40:43], v52, {WS} sc1\ns_waitcnt vmcnt(0)")
        tagchk(48, [45, 47])
        e("v_cmp_eq_u32 vcc, 0, v48")
        e.nop(2)
        for k in range(4): e(f"v_cndmask_b32 v{40+k}, v{40+k}, v{44+k}, vcc")
    else:
        e(f"global_load_dwordx4 v[40:43], v52, {WS} sc1\ns_waitcnt vmcnt(0)")
    tagchk(48, [41, 43])
    poll_tail("L_h4", "L_h4_done", 48, cfg.h4sleep)
    stamp(10)
    e("""
    v_lshlrev_b32 v44, 16, v40
    v_and_b32 v45, 0xffff0000, v40
    v_lshlrev_b32 v46, 16, v42
    v_and_b32 v47, 0xffff0000, v42
    s_nop 1
    v_permlane32_swap_b32 v44, v46
    v_permlane32_swap_b32 v45, v47
    v_add_f32 v44, v44, v46
    v_add_f32 v45, v45, v47
    s_nop 1
    v_permlane16_swap_b32 v44, v45
    v_add_f32 v44, v44, v45
    v_cvt_pk_bf16_f32 v44, v44, v44
    ds_write_b16 v54, v44
    s_waitcnt lgkmcnt(0)
    ds_read_b128 v[112:115], v55
    ds_read_b128 v[116:119], v55 offset:64
    """)
    for ks in range(2):
        e(f"s_waitcnt lgkmcnt({1-ks})")
        for tt in range(4):
            c = "0" if ks == 0 else f"v[{120+4*tt}:{123+4*tt}]"
            r = 80 + 8 * tt + 4 * ks
            e(f"v_mfma_f32_16x16x32_bf16 v[{120+4*tt}:{123+4*tt}], v[{r}:{r+3}], v[{112+4*ks}:{115+4*ks}], {c}")
    e("s_mov_b32 exec_lo, 0x00010001\ns_mov_b32 exec_hi, 0x00010001")
    e.nop(3)
    for tt in range(4):
        e(f"ds_write_b128 v253, v[{120+4*tt}:{123+4*tt}] offset:{64*tt}")
    e(f"""
    s_mov_b64 exec, -1
    s_waitcnt lgkmcnt(0)
    s_barrier
    s_cmp_eq_u32 s{S_W}, 7
    s_cbranch_scc0 L_s6_w
    s_mov_b64 exec, 0xffffffff
    """)
    for w in range(8):
        e(f"ds_read_b64 v[{40+2*w}:{41+2*w}], v254 offset:{256*w}")
    e(f"""
    s_mov_b32 s66, 0xfffefffe
    s_waitcnt lgkmcnt(0)
    v_pk_add_f32 v[40:41], v[40:41], v[42:43]
    v_pk_add_f32 v[44:45], v[44:45], v[46:47]
    v_pk_add_f32 v[48:49], v[48:49], v[50:51]
    v_pk_add_f32 v[52:53], v[52:53], v[54:55]
    v_pk_add_f32 v[40:41], v[40:41], v[44:45]
    v_pk_add_f32 v[48:49], v[48:49], v[52:53]
    v_pk_add_f32 v[40:41], v[40:41], v[48:49]
    v_cvt_pk_bf16_f32 v56, v40, v41
    v_lshrrev_b32 v57, 1, v56
    v_and_b32 v57, 0x00010001, v57
    v_add_u32 v56, v56, v57
    v_and_or_b32 v56, v56, s66, v136
    global_store_dword v255, v56, {WS} sc1
    s_mov_b64 exec, -1
    """)
    stamp(11)
    e("s_branch L_S7")
    e.label("L_s6_w")
    if cfg.f5sleep: e(f"s_sleep {cfg.f5sleep}")
    e("s_branch L_S7")

    e.label("L_B1")
    e(f"s_mov_b32 s{S_ISB}, 1")
    stamp(1)
    e(f"""
    s_lshr_b32 s3, s{S_I}, 2
    s_lshl_b32 s3, s3, 3
    s_add_u32 s3, s3, s{S_W}
    s_lshl_b32 s3, s3, 10
    s_add_u32 s3, s3, {WS_QA}
    v_lshl_add_u32 v5, v1, 4, s3
    s_mul_i32 s3, s{S_W}, {QAS_STRIDE}
    s_add_u32 s3, s3, {L_QAS}
    v_lshl_add_u32 v6, v1, 4, s3
    """)
    tr_common()
    e(f"s_cmp_lt_u32 s{S_W}, 4\ns_cbranch_scc0 L_bp_prep")
    def h2_poll(sfx):
        msk = "s66" if sfx == "q" else "s67"
        e("s_waitcnt vmcnt(0)\ns_branch L_h2_chk" + sfx)
        e.label("L_h2" + sfx)
        e(f"""
        global_load_dwordx4 v[40:43], v5, {WS} sc1
        s_waitcnt vmcnt(0)
        """)
        e.label("L_h2_chk" + sfx)
        for i in range(4):
            e(f"v_xor_b32 v{40+i}, v{40+i}, v{44+i}")
        e(f"v_or3_b32 v4, v40, v41, v42\nv_or_b32 v4, v4, v43\nv_and_b32 v4, {msk}, v4")
        poll_tail("L_h2" + sfx, "L_h2_done" + sfx, 4, cfg.h2sleep)
        stamp(5)
        e(f"""
        ds_write_b128 v6, v[40:43]
        s_waitcnt lgkmcnt(0)
        s_barrier
        """)
    e(f"""
    s_lshl_b32 s3, s{S_W}, 5
    v_add_u32 v12, s3, v3
    v_lshlrev_b32 v12, 10, v12
    v_and_b32 v13, 7, v1
    v_lshlrev_b32 v13, 1, v13
    v_xor_b32 v13, v13, v2
    v_lshl_add_u32 v8, v13, 4, v12
    v_xor_b32 v9, 64, v8
    v_xor_b32 v10, 128, v8
    v_xor_b32 v11, 192, v8
    v_and_b32 v216, 7, v3
    v_lshlrev_b32 v217, 4, v216
    v_mul_u32_u24 v216, {QAS_STRIDE}, v216
    v_lshl_add_u32 v216, v2, 4, v216
    v_add_u32 v216, {L_QAS}, v216
    v_add_u32 v217, {L_MX}, v217
    s_lshl_b32 s3, s{S_W}, 2
    v_add_u32 v218, s3, v217
    s_lshl_b32 s3, s{S_W}, 10
    s_add_u32 s3, s3, {L_PEX}
    v_lshl_add_u32 v219, v1, 4, s3
    v_and_b32 v220, 1, v2
    v_lshl_add_u32 v220, v220, 2, v62
    v_lshlrev_b32 v220, 1, v220
    s_lshl_b32 s3, s{S_W}, 2
    v_add_u32 v12, s3, v63
    v_xor_b32 v220, v220, v12
    v_lshl_add_u32 v220, v220, 4, v59
    v_lshl_add_u32 v12, v2, 3, v62
    v_lshl_add_u32 v220, v12, 8, v220
    v_xor_b32 v221, 32, v220
    s_lshl_b32 s3, s{S_H}, 10
    s_lshl_b32 s65, s{S_J}, 8
    s_add_u32 s3, s3, s65
    s_lshl_b32 s64, s{S_W}, 6
    s_add_u32 s3, s3, s64
    s_add_u32 s65, s3, {WS_PART}
    s_lshl_b32 s64, s{S_W}, 7
    v_lshrrev_b32 v12, 2, v1
    v_and_b32 v13, 3, v1
    v_lshlrev_b32 v222, 15, v12
    v_lshl_add_u32 v222, v13, 4, v222
    v_add_u32 v222, s65, v222
    s_lshl_b32 s3, s{S_H}, 7
    s_add_u32 s3, s3, {WS_ST}
    v_lshlrev_b32 v48, 12, v12
    v_lshl_add_u32 v48, v13, 4, v48
    v_add_u32 v48, s3, v48
    v_and_b32 v223, 1, v2
    v_lshlrev_b32 v223, 4, v223
    v_lshrrev_b32 v12, 1, v2
    v_lshl_add_u32 v223, v12, 1, v223
    v_lshl_add_u32 v223, v13, 2, v223
    s_lshl_b32 s3, s{S_W}, 5
    v_add_u32 v223, s3, v223
    v_lshlrev_b32 v223, 1, v223
    v_add_u32 v223, {L_CTXS}, v223
    v_lshlrev_b32 v49, 4, v2
    v_add_u32 v49, {L_CTXS}, v49
    s_lshl_b32 s3, s{S_H}, 2
    s_add_u32 s3, s3, s{S_J}
    s_lshl_b32 s3, s3, 9
    s_add_u32 s3, s3, s64
    s_add_u32 s3, s3, {WS_CTX}
    v_and_b32 v50, 1, v1
    v_lshlrev_b32 v50, 6, v50
    v_lshl_add_u32 v50, v2, 4, v50
    v_add_u32 v50, s3, v50
    v_add_u32 v51, {WS_CTXF-WS_CTX}, v50
    s_waitcnt lgkmcnt(0)
    """)
    mk_tag()
    e("v_and_b32 v16, 3, v1\ns_mov_b32 s66, 0x00010001")
    tagpat(44, 16, 12)
    e(f"s_waitcnt vmcnt(0)\nglobal_load_dwordx4 v[40:43], v5, {WS} sc1")
    e("s_barrier")
    stamp(14)
    for t in range(2):
        for j in range(16):
            e(f"ds_read_b128 v[{64+64*t+4*j}:{67+64*t+4*j}], v{8+(j&3)} offset:{256*(j>>2)+16384*t}")
    h2_poll("q")
    def qb(j):
        if j < 6: return 192 + 4 * j
        if j < 13: return 12 + 4 * (j - 6)
        if j < 15: return 40 + 4 * (j - 13)
        return 52
    stamp(4)
    for j in range(16):
        e(f"ds_read_b128 v[{qb(j)}:{qb(j)+3}], v216 offset:{64*j}")
    for j in range(16):
        if j % 2 == 0: e(f"s_waitcnt lgkmcnt({max(0, 14-j)})")
        for t in range(2):
            acc = f"v[{56+4*t}:{59+4*t}]"
            c = "0" if j == 0 else acc
            e(f"v_mfma_f32_16x16x32_bf16 {acc}, v[{64+64*t+4*j}:{67+64*t+4*j}], v[{qb(j)}:{qb(j)+3}], {c}")
    e.nop(7)
    stamp(10)
    e("""
    v_max3_f32 v12, v56, v57, v58
    s_nop 0
    v_max3_f32 v13, v60, v61, v62
    v_max3_f32 v12, v59, v63, v12
    v_max_f32 v12, v12, v13
    v_mov_b32 v13, v12
    """)
    e.nop(2)
    e("v_permlane16_swap_b32 v12, v13")
    e("v_max_f32 v12, v12, v13\nv_mov_b32 v13, v12")
    e.nop(2)
    e("v_permlane32_swap_b32 v12, v13")
    e("""
    v_max_f32 v12, v12, v13
    s_mov_b64 exec, 0xff
    ds_write_b32 v218, v12
    s_mov_b64 exec, -1
    s_waitcnt lgkmcnt(0)
    s_barrier
    """)
    stamp(11)
    e("""
    ds_read_b128 v[16:19], v217
    s_waitcnt lgkmcnt(0)
    v_max3_f32 v12, v16, v17, v18
    v_max_f32 v12, v12, v19
    """)
    for r in range(8): e(f"v_sub_f32 v{56+r}, v{56+r}, v12")
    for r in range(8): e(f"v_exp_f32 v{56+r}, v{56+r}")
    e("s_nop 0")
    for r in range(4): e(f"v_cvt_pk_bf16_f32 v{16+r}, v{56+2*r}, v{57+2*r}")
    e(f"""
    ds_write_b128 v219, v[16:19]
    s_cmp_eq_u32 s{S_W}, 0
    s_cbranch_scc0 L_bq_nom
    s_mov_b64 exec, 0xff
    ds_write_b32 v218, v12 offset:128
    s_mov_b64 exec, -1
    """)
    e.label("L_bq_nom")
    e("s_waitcnt lgkmcnt(0)\ns_barrier")
    stamp(6)
    e(f"""
    v_mov_b32 v105, s{S_TAG}
    v_mov_b32 v107, s{S_TAG}
    v_add_u32 v192, 0x80000, v222
    v_add_u32 v195, 0x10000, v48
    v_and_b32 v196, 3, v1
    s_mov_b32 s66, 0x00010001
    s_mov_b32 s67, {F32(LSB_DEBIAS)}
    s_mov_b32 s64, 0xaaaaaaaa
    s_mov_b32 s65, 0xaaaaaaaa
    """)
    e("s_barrier")
    for t in range(2):
        for ks in range(4):
            r = 128 + 16 * t + 4 * ks
            e(f"ds_read_b64_tr_b16 v[{r}:{r+1}], v{220+t} offset:{8192*ks}")
            e(f"ds_read_b64_tr_b16 v[{r+2}:{r+3}], v{220+t} offset:{8192*ks+1024}")
    tagpat(198, 196, 202)
    if cfg.h3sleep: e(f"s_sleep {cfg.h3sleep}")
    stamp(2)
    def datachk():
        for i in range(8):
            e(f"v_xor_b32 v{80+i}, v{80+i}, v{198+(i&3)}")
        e("v_or3_b32 v4, v80, v81, v82\nv_or3_b32 v5, v83, v84, v85\nv_or3_b32 v4, v86, v87, v4\nv_or_b32 v4, v4, v5\nv_and_b32 v4, s66, v4")
    e.label("L_h3")
    e(f"""
    global_load_dwordx4 v[64:67], v48, {WS} sc1
    global_load_dwordx4 v[68:71], v195, {WS} sc1
    global_load_dwordx4 v[80:83], v222, {WS} sc1
    global_load_dwordx4 v[84:87], v192, {WS} sc1
    s_waitcnt vmcnt(2)
    """)
    tagchk(4, [65, 67, 69, 71])
    e("v_cmp_ne_u32 vcc, 0, v4\ns_cbranch_vccz L_h3_st\ns_waitcnt vmcnt(0)")
    if cfg.h3psleep: e(f"s_sleep {cfg.h3psleep}")
    spin_back("L_h3")
    e.label("L_h3_st")
    stamp(3)
    e("""
    v_max_f32 v4, v64, v68
    s_nop 1
    v_max_f32_dpp v4, v4, v4 row_ror:4 row_mask:0xf bank_mask:0xf
    s_nop 1
    v_max_f32_dpp v4, v4, v4 row_ror:8 row_mask:0xf bank_mask:0xf
    s_nop 0
    v_mov_b32 v5, v4
    s_nop 1
    v_permlane16_swap_b32 v4, v5
    v_max_f32 v4, v4, v5
    v_mov_b32 v5, v4
    s_nop 1
    v_permlane32_swap_b32 v4, v5
    v_max_f32 v4, v4, v5
    v_sub_f32 v64, v64, v4
    v_sub_f32 v68, v68, v4
    v_exp_f32 v64, v64
    v_exp_f32 v68, v68
    s_nop 0
    v_mul_f32 v28, v64, v66
    v_fmac_f32 v28, v68, v70
    s_nop 1
    v_add_f32_dpp v28, v28, v28 row_ror:4 row_mask:0xf bank_mask:0xf
    s_nop 1
    v_add_f32_dpp v28, v28, v28 row_ror:8 row_mask:0xf bank_mask:0xf
    s_nop 0
    v_mov_b32 v29, v28
    s_nop 1
    v_permlane16_swap_b32 v28, v29
    v_add_f32 v28, v28, v29
    v_mov_b32 v29, v28
    s_nop 1
    v_permlane32_swap_b32 v28, v29
    v_add_f32 v28, v28, v29
    v_rcp_f32 v28, v28
    v_mul_f32 v64, s67, v64
    v_mul_f32 v68, s67, v68
    v_mul_f32 v64, v64, v28
    v_mul_f32 v68, v68, v28
    s_waitcnt vmcnt(0)
    s_branch L_h3_dchk
    """)
    e.label("L_h3d")
    e(f"""
    global_load_dwordx4 v[80:83], v222, {WS} sc1
    global_load_dwordx4 v[84:87], v192, {WS} sc1
    s_waitcnt vmcnt(0)
    """)
    e.label("L_h3_dchk")
    datachk()
    poll_tail("L_h3d", "L_h3_done", 4)
    stamp(8)
    for i in range(4):
        e(f"v_lshlrev_b32 v{12+2*i}, 16, v{80+i}\nv_and_b32 v{13+2*i}, 0xffff0000, v{80+i}")
    for i in range(4):
        e(f"v_lshlrev_b32 v{20+2*i}, 16, v{84+i}\nv_and_b32 v{21+2*i}, 0xffff0000, v{84+i}")
        e(f"v_pk_mul_f32 v[{12+2*i}:{13+2*i}], v[{12+2*i}:{13+2*i}], v[64:65] op_sel_hi:[1,0]")
    for i in range(4):
        e(f"v_pk_fma_f32 v[{12+2*i}:{13+2*i}], v[{20+2*i}:{21+2*i}], v[68:69], v[{12+2*i}:{13+2*i}] op_sel_hi:[1,0,1]")
    for st in ("row_ror:4", "row_ror:8"):
        for r in range(12, 20):
            e(f"v_add_f32_dpp v{r}, v{r}, v{r} {st} row_mask:0xf bank_mask:0xf")
    for i in range(4):
        e(f"v_permlane16_swap_b32 v{12+i}, v{16+i}")
    for i in range(4):
        e(f"v_add_f32 v{12+i}, v{12+i}, v{16+i}")
    e("""
    s_nop 0
    v_permlane32_swap_b32 v12, v14
    v_permlane32_swap_b32 v13, v15
    s_mov_b32 exec_lo, 0x000f000f
    s_mov_b32 exec_hi, 0x000f000f
    v_add_f32 v12, v12, v14
    v_add_f32 v13, v13, v15
    v_cvt_pk_bf16_f32 v12, v12, v13
    ds_write_b32 v223, v12
    s_mov_b64 exec, -1
    s_waitcnt lgkmcnt(0)
    s_barrier
    """)
    for ks in range(4):
        e(f"ds_read_b128 v[{112+4*ks}:{115+4*ks}], v49 offset:{64*ks}")
    for ks in range(4):
        e(f"s_waitcnt lgkmcnt({3-ks})")
        for t in range(2):
            acc = f"v[{96+4*t}:{99+4*t}]"
            c = "0" if ks == 0 else acc
            r = 128 + 16 * t + 4 * ks
            e(f"v_mfma_f32_16x16x32_bf16 {acc}, v[{r}:{r+3}], v[{112+4*ks}:{115+4*ks}], {c}")
    e("s_mov_b32 exec_lo, 0x00030003\ns_mov_b32 exec_hi, 0x00030003")
    e.nop(6)
    for r in range(4):
        e(f"v_cndmask_b32 v{96+r}, v{96+r}, v{100+r}, s[64:65]")
    e("""
    v_cvt_pk_bf16_f32 v104, v96, v97
    v_cvt_pk_bf16_f32 v106, v98, v99
    """)
    if cfg.fast4: e(f"global_store_dwordx4 v51, v[104:107], {WS}")
    e(f"global_store_dwordx4 v50, v[104:107], {WS} sc1\ns_mov_b64 exec, -1")
    stamp(9)
    e("s_branch L_b_tail")
    e.label("L_bp_prep")
    e(f"""
    v_lshl_add_u32 v58, v2, 2, v62
    v_and_b32 v13, 7, v58
    v_lshlrev_b32 v13, 1, v13
    v_lshlrev_b32 v58, 10, v58
    v_add_u32 v58, v58, v59
    s_and_b32 s66, s{S_W}, 3
    s_lshl_b32 s3, s66, 4
    v_add_u32 v12, s3, v63
    v_xor_b32 v12, v12, v13
    v_lshl_add_u32 v8, v12, 4, v58
    """)
    for tt in range(1, 8):
        e(f"v_xor_b32 v{8+tt}, {32*tt}, v8")
    e(f"""
    v_lshlrev_b32 v16, 4, v1
    v_add_u32 v16, {L_PEX}, v16
    s_mov_b32 s{SRD_A}, s{P_WUV}
    s_mov_b32 s{SRD_A+1}, s{P_WUV+1}
    s_mov_b32 s{SRD_A+2}, 4194304
    s_mov_b32 s{SRD_A+3}, 0x20000
    s_lshl_b32 s3, s{S_W}, 2
    s_and_b32 s3, s3, 8
    v_lshlrev_b32 v19, 1, v2
    v_xor_b32 v19, v19, v3
    v_xor_b32 v19, s3, v19
    v_lshlrev_b32 v19, 4, v19
    v_lshl_add_u32 v19, v2, 13, v19
    s_lshl_b32 s20, s{S_J}, 5
    s_add_u32 s20, s20, s66
    s_lshl_b32 s20, s20, 15
    s_lshl_b32 s21, s{S_H}, 8
    s_add_u32 s20, s20, s21
    s_lshl_b32 s21, s66, 10
    v_lshl_add_u32 v56, v1, 4, s21
    s_lshl_b32 s3, s{S_CH}, 15
    s_lshr_b32 s64, s{S_I}, 2
    s_lshl_b32 s65, s64, 13
    s_add_u32 s3, s3, s65
    s_lshl_b32 s65, s66, 8
    s_add_u32 s3, s3, s65
    s_add_u32 s3, s3, {WS_PART}
    v_and_b32 v17, 7, v3
    v_lshlrev_b32 v17, 10, v17
    v_lshl_add_u32 v17, v2, 4, v17
    v_lshrrev_b32 v20, 3, v3
    v_lshl_add_u32 v17, v20, 6, v17
    v_add_u32 v17, s3, v17
    s_lshl_b32 s64, s64, 10
    s_lshl_b32 s65, s{S_CH}, 12
    s_add_u32 s64, s64, s65
    s_add_u32 s64, s64, {WS_ST}
    v_lshrrev_b32 v18, 2, v1
    v_lshlrev_b32 v18, 7, v18
    v_and_b32 v20, 3, v1
    v_lshl_add_u32 v18, v20, 4, v18
    v_add_u32 v18, s64, v18
    v_mov_b32 v36, 0x3f803f80
    v_mov_b32 v37, 0x3f803f80
    v_mov_b32 v38, 0x3f803f80
    v_mov_b32 v39, 0x3f803f80
    s_waitcnt lgkmcnt(0)
    """)
    mk_tag()
    e("v_and_b32 v50, 3, v1\ns_mov_b32 s67, 0x00010001")
    tagpat(44, 50, 48)
    e(f"v_mov_b32 v53, s{S_TAG}\nv_mov_b32 v55, s{S_TAG}")
    tagpat(57, 2, 61)
    e(f"s_waitcnt vmcnt(0)\nglobal_load_dwordx4 v[40:43], v5, {WS} sc1")
    e("s_barrier")
    stamp(14)
    for half in range(2):
        for tt in range(8):
            for k2 in range(2):
                ks = 2 * half + k2
                for eb in range(2):
                    r = 64 + 16 * tt + 4 * ks + 2 * eb
                    e(f"ds_read_b64_tr_b16 v[{r}:{r+1}], v{8+tt} offset:{32768*k2+16384*eb}")
        if half == 0:
            for tt in range(8):
                e(f"v_add_u32 v{8+tt}, 0x10000, v{8+tt}")
    h2_poll("p")
    for ii in range(8):
        e(f"""
        s_mov_b32 m0, s21
        s_add_u32 s21, s21, 4096
        buffer_load_dwordx4 v19, s[{SRD_A}:{SRD_A+3}], s20 offen{NT} lds
        s_add_u32 s20, s20, {4*4*8192}
        """)
    e("s_barrier\ns_barrier")
    for ks in range(4):
        e(f"ds_read_b128 v[{20+4*ks}:{23+4*ks}], v16 offset:{1024*ks}")
    e(f"""
    v_bfe_u32 v5, v1, 2, 3
    v_lshlrev_b32 v4, 4, v5
    v_add_u32 v4, {L_MX+128}, v4
    v_lshlrev_b32 v5, 2, v5
    s_mov_b32 s64, 0xff00ff00
    s_mov_b32 s65, 0xff00ff00
    """)
    stamp(6)
    for pr in range(4):
        e(f"v_mov_b32 v{37+0}, v{37}") if False else None
    def epi(sg):
        g = 64 + 64 * sg
        out = []
        for t in range(4):
            a0 = 192 + 16 * sg + 4 * t
            out.append(f"v_cvt_pk_bf16_f32 v{44+2*t}, v{a0}, v{a0+1}")
            out.append(f"v_cvt_pk_bf16_f32 v{45+2*t}, v{a0+2}, v{a0+3}")
        for i in range(4):
            out.append(f"v_cndmask_b32 v{g+i}, v{44+i}, v{48+i}, s[64:65]")
        for i in range(4):
            out.append(f"v_and_or_b32 v{g+i}, v{g+i}, s66, v{57+i}")
        out.append(f"global_store_dwordx4 v17, v[{g}:{g+3}], {WS} offset:{128*sg} sc1")
        return out
    e("s_mov_b32 s66, 0xfffefffe")
    ep0 = epi(0)
    for sg in range(2):
        k = 0
        for ks in range(4):
            for t in range(4):
                tt = 4 * sg + t
                acc = f"v[{192+4*tt}:{195+4*tt}]"
                c = "0" if ks == 0 else acc
                r = 64 + 16 * tt + 4 * ks
                if sg == 0 and t == 0: e(f"s_waitcnt lgkmcnt({3-ks})")
                e(f"v_mfma_f32_16x16x32_bf16 {acc}, v[{r}:{r+3}], v[{20+4*ks}:{23+4*ks}], {c}")
                k += 1
                if sg == 1 and k >= 8:
                    for _ in range(2):
                        if ep0: e(ep0.pop(0))
        if sg == 1:
            while ep0: e(ep0.pop(0))
    e(f"s_cmp_eq_u32 s{S_W}, 4\ns_cbranch_scc0 L_b_nol")
    e("ds_read_b32 v52, v4")
    for ks in range(4):
        c = "0" if ks == 0 else "v[40:43]"
        e(f"v_mfma_f32_16x16x32_bf16 v[40:43], v[36:39], v[{20+4*ks}:{23+4*ks}], {c}")
    e.label("L_b_nol")
    e.nop(6)
    for ins in epi(1): e(ins)
    e(f"""
    s_cmp_eq_u32 s{S_W}, 4
    s_cbranch_scc0 L_b_nostat
    ds_bpermute_b32 v54, v5, v40
    s_mov_b64 exec, 0xffffffff
    s_waitcnt lgkmcnt(0)
    global_store_dwordx4 v18, v[52:55], {WS} sc1
    s_mov_b64 exec, -1
    """)
    stamp(7)
    e("s_waitcnt vmcnt(3)\ns_branch L_b_st2")
    e.label("L_b_nostat")
    stamp(7)
    e("s_waitcnt vmcnt(2)")
    e.label("L_b_st2")
    e("s_barrier\ns_barrier")
    e.label("L_b_tail")
    e("s_barrier")
    s7_loads()
    e("s_waitcnt vmcnt(0)")
    s7_prep()
    if cfg.b5sleep: e(f"s_sleep {cfg.b5sleep}")

    e.label("L_S7")
    e(f"s_cmp_lt_u32 s{S_W}, 5\ns_cbranch_scc0 L_s7_bar")
    e("s_mov_b32 s66, 0x00010001")
    e.label("L_h5")
    e(f"""
    global_load_dwordx4 v[40:43], v244, {WS} sc1
    global_load_dwordx4 v[44:47], v245, {WS} sc1
    s_waitcnt vmcnt(0)
    """)
    for i in range(8):
        e(f"v_xor_b32 v{40+i}, v{40+i}, v{10+(i&3)}")
    e("v_or3_b32 v56, v40, v41, v42\nv_or3_b32 v57, v43, v44, v45\nv_or3_b32 v56, v46, v47, v56\nv_or_b32 v56, v56, v57\nv_and_b32 v56, s66, v56")
    poll_tail("L_h5", "L_h5_done", 56, cfg.h5sleep)
    stamp(12)
    for i in range(4):
        e(f"v_lshlrev_b32 v{80+2*i}, 16, v{40+i}\nv_and_b32 v{81+2*i}, 0xffff0000, v{40+i}")
    for i in range(4):
        e(f"v_lshlrev_b32 v{88+2*i}, 16, v{44+i}\nv_and_b32 v{89+2*i}, 0xffff0000, v{44+i}")
        e(f"v_pk_add_f32 v[{80+2*i}:{81+2*i}], v[{80+2*i}:{81+2*i}], v[{88+2*i}:{89+2*i}]")
    e("s_nop 0")
    for i in range(4): e(f"v_permlane16_swap_b32 v{80+i}, v{84+i}")
    for i in range(4): e(f"v_add_f32 v{80+i}, v{80+i}, v{84+i}")
    e(f"""
    s_nop 0
    v_permlane32_swap_b32 v80, v82
    v_permlane32_swap_b32 v81, v83
    v_add_f32 v50, v80, v82
    v_add_f32 v51, v81, v83
    v_pk_add_f32 v[50:51], v[50:51], v[58:59]
    ds_write_b64 v248, v[50:51]
    v_add_f32 v52, v50, v51
    v_mul_f32 v53, v50, v50
    v_fmac_f32 v53, v51, v51
    """)
    dpp_reduce([52, 53])
    e(f"""
    s_mov_b32 exec_lo, 0
    s_mov_b32 exec_hi, 0x80000000
    ds_write_b64 v68, v[52:53]
    s_mov_b64 exec, -1
    """)
    e.label("L_s7_bar")
    e(f"""
    s_waitcnt lgkmcnt(0)
    s_barrier
    """)
    if cfg.s7stamps: stamp(1)
    e(f"""
    s_cmp_lt_u32 s2, {216 if cfg.outmap else 214}
    s_cbranch_scc0 L_fin
    ds_read_b128 v[40:43], v62
    ds_read_b128 v[44:47], v62 offset:16
    ds_read_b64 v[48:49], v62 offset:32
    ds_read_b32 v50, v63
    ds_read_b32 v52, v63 offset:4
    ds_read_b32 v54, v63 offset:8
    s_waitcnt lgkmcnt(3)
    v_pk_add_f32 v[40:41], v[40:41], v[42:43]
    v_pk_add_f32 v[44:45], v[44:45], v[46:47]
    v_pk_add_f32 v[40:41], v[40:41], v[48:49]
    v_pk_add_f32 v[40:41], v[40:41], v[44:45]
    v_pk_mul_f32 v[40:41], v[40:41], v[60:61] op_sel_hi:[1,0]
    v_fma_f32 v41, -v40, v40, v41
    v_max_f32 v41, 0, v41
    v_fma_f32 v42, v41, v61, v65
    s_waitcnt lgkmcnt(0)
    v_rsq_f32 v42, v42
    v_sub_f32 v70, v50, v40
    v_sub_f32 v72, v52, v40
    v_sub_f32 v74, v54, v40
    v_mul_f32 v70, v70, v42
    v_mul_f32 v72, v72, v42
    v_mul_f32 v74, v74, v42
    """)
    if cfg.s7stamps: stamp(2)
    combos = [(r, o) for o in range(3) for r in range(2)]
    for c, (r, o) in enumerate(combos):
        e(f"v_pk_fma_f32 v[{80+2*c}:{81+2*c}], v[{70+2*o}:{71+2*o}], v[{232+2*r}:{233+2*r}], v[{236+2*r}:{237+2*r}] op_sel_hi:[0,1,1]")
    for c in range(6):
        e(f"v_pk_mul_f32 v[{92+2*c}:{93+2*c}], v[{80+2*c}:{81+2*c}], v[{80+2*c}:{81+2*c}]")
    for c in range(6):
        e(f"v_pk_fma_f32 v[{92+2*c}:{93+2*c}], v[{92+2*c}:{93+2*c}], v[66:67], v[64:65] op_sel_hi:[1,0,0]")
    for c in range(6):
        e(f"v_pk_mul_f32 v[{92+2*c}:{93+2*c}], v[{92+2*c}:{93+2*c}], v[{80+2*c}:{81+2*c}]")
    for c in range(12):
        e(f"v_exp_f32 v{92+c}, v{92+c}")
    for c in range(6):
        e(f"v_pk_add_f32 v[{92+2*c}:{93+2*c}], v[{92+2*c}:{93+2*c}], 1.0 op_sel_hi:[1,0]")
    for c in range(12):
        e(f"v_rcp_f32 v{92+c}, v{92+c}")
    for c in range(6):
        e(f"v_pk_mul_f32 v[{80+2*c}:{81+2*c}], v[{80+2*c}:{81+2*c}], v[{92+2*c}:{93+2*c}]")
    for o in range(3):
        e(f"v_pk_mul_f32 v[{104+2*o}:{105+2*o}], v[{80+4*o}:{81+4*o}], v[240:241]")
    for o in range(3):
        e(f"v_pk_fma_f32 v[{104+2*o}:{105+2*o}], v[{82+4*o}:{83+4*o}], v[242:243], v[{104+2*o}:{105+2*o}]")
    if cfg.s7stamps: stamp(3)
    e("v_add_f32 v110, v104, v105\nv_add_f32 v111, v106, v107\nv_add_f32 v112, v108, v109")
    dpp_reduce([110, 111, 112])
    e(f"""
    s_mov_b32 exec_lo, 0
    s_mov_b32 exec_hi, 0x80000000
    ds_write_b128 v69, v[110:113]
    s_mov_b64 exec, -1
    {"s_mul_i32 s3, s5, 80" if cfg.outmap else "s_mov_b32 s3, 560"}
    s_add_u32 s3, s3, 80
    v_cmp_gt_u32 vcc, s3, v8
    v_lshlrev_b32 v8, 1, v8
    s_waitcnt lgkmcnt(0)
    s_barrier
    """)
    if cfg.s7stamps: stamp(4)
    e(f"""
    s_cmp_eq_u32 s{S_W}, 0
    s_cbranch_scc0 L_fin
    s_and_b64 vcc, vcc, 7
    s_and_saveexec_b64 s[64:65], vcc
    s_cbranch_execz L_fin0
    """)
    for w in range(8):
        e(f"ds_read_b32 v{40+w}, v6 offset:{16*w}")
    e(f"""
    ds_read_b32 v48, v7
    s_waitcnt lgkmcnt(0)
    v_add_f32 v40, v40, v41
    v_add_f32 v42, v42, v43
    v_add_f32 v44, v44, v45
    v_add_f32 v46, v46, v47
    v_add_f32 v48, v48, v9
    v_add_f32 v40, v40, v42
    v_add_f32 v44, v44, v46
    v_add_f32 v40, v40, v48
    v_add_f32 v40, v40, v44
    v_cvt_pk_bf16_f32 v40, v40, v40
    global_store_short v8, v40, s[{P_OUT}:{P_OUT+1}]
    """)
    e.label("L_fin0")
    e("s_mov_b64 exec, s[64:65]")
    e.label("L_fin")
    stamp(13)
    e(f"""
    s_cmp_eq_u32 s2, {0 if not cfg.noepoch else 100000}
    s_cbranch_scc0 L_noepoch
    s_cmp_eq_u32 s{S_W}, 0
    s_cbranch_scc0 L_noepoch
    v_lshlrev_b32 v6, 2, v1
    v_mov_b32 v7, s{S_TAG}
    s_mov_b64 exec, 0xffff
    global_store_dword v6, v7, {WS} sc1
    s_mov_b64 exec, -1
    """)
    e.label("L_noepoch")
    if cfg.stamps:
        e(f"""
        s_waitcnt lgkmcnt(0)
        s_lshl_b32 s3, s2, 3
        s_add_u32 s3, s3, s{S_W}
        s_lshl_b32 s3, s3, 6
        s_add_u32 s3, s3, {WS_DBG}
        v_mov_b32 v6, s3
        s_mov_b64 exec, 1
        """)
        for q in range(4):
            for k in range(4):
                e(f"v_mov_b32 v{8+k}, s{S_STAMP+2*min(4*q+k,14)}")
            e(f"global_store_dwordx4 v6, v[8:11], {WS} offset:{16*q}")
            e.nop(2)
        e("s_mov_b64 exec, -1")
    e.label("L_exit")
    e("s_endpgm")
    e.label("L_fail")
    if cfg.stamps: e("s_mov_b64 exec, -1\ns_branch L_noepoch")
    e("s_endpgm")
    e.label("L_end")
    return e

def render(cfg):
    e = gen(cfg)
    body = e.text()
    hdr = open("cdna_kernels/" + NAME[:-7] + ".s.ref").read().split("; Override launch geometry")[0]
    out = hdr + f"; @launch grid=(256,1,1) block=(512,1,1) lds={LDS_BYTES}\n"
    out += f""".amdgcn_target "amdgcn-amd-amdhsa--gfx950"
.text
.globl {NAME}
.p2align 8
.type {NAME},@function
{NAME}:
{body}.section .rodata,"a"
.p2align 6
.amdhsa_kernel {NAME}
  .amdhsa_next_free_vgpr 256
  .amdhsa_next_free_sgpr 102
  .amdhsa_accum_offset 256
  .amdhsa_group_segment_fixed_size 0
  .amdhsa_kernarg_size 112
  .amdhsa_user_sgpr_count 2
  .amdhsa_user_sgpr_kernarg_segment_ptr 1
  .amdhsa_system_sgpr_workgroup_id_x 1
.end_amdhsa_kernel
"""
    return out, body

if __name__ == "__main__":
    cfg = Cfg()
    outp = sys.argv[1] if len(sys.argv) > 1 else "cdna_kernels/" + NAME[:-7] + ".s"
    for a in sys.argv[2:]:
        k, v = a.split("=")
        setattr(cfg, k, int(v))
    out, body = render(cfg)
    probs = check_hazards(body) + check_kernarg_race(body)
    for p in probs: print("HAZARD", p)
    open(outp, "w").write(out)
    print("wrote", outp, len(out), "bytes;", len(body.splitlines()), "lines")
```

```python
import sys, struct
from asmlib import Emit, check_hazards, check_kernarg_race

NAME = "sequential_preLN__compressed_kv_cla__mixer_token_mlp__decode_kernel"

WS_Q1, WS_Q1F, WS_QA, WS_CTX, WS_OP, WS_CTXF, WS_ST, WS_PART, WS_DBG = 0x10000, 0x20000, 0x50000, 0x60000, 0x70000, 0x90000, 0xC0000, 0x100000, 0x400000
L_CKV = 0
L_WO = 0
L_WQ = 32768
L_WUK = 73728
L_QAS = 131072
QAS_STRIDE = 1056
L_PEX = L_QAS + 8 * QAS_STRIDE
L_MX = L_PEX + 4096
L_LNS = 143872
L_QP = 145152
QP_STRIDE = 288
L_CTXS = 146304
L_BNC = 146560
L_ORED = 147584
L_HS = 149632
L_ST7 = 152192
L_YRED = 152256
LDS_BYTES = 152384

S_W, S_X, S_I, S_ISB = 4, 5, 6, 7
P_X, P_CKV, P_WQ, P_WUK, P_WUV, P_WO, P_W1, P_B1, P_W2, P_B2, P_OUT, P_DBG, P_WS = 8, 10, 12, 14, 16, 18, 22, 24, 26, 28, 30, 32, 34
S_TAG, S_H, S_J, S_CH = 36, 37, 38, 39
SRD_0, SRD_A, SRD_WO, SRD_W1, SRD_B1, SRD_W2 = 40, 44, 48, 52, 56, 60
S_SPIN = 100
S_STAMP = 70

def F32(x): return "0x%08x" % struct.unpack("<I", struct.pack("<f", x))[0]
WS = f"s[{P_WS}:{P_WS+1}]"

LSB_DEBIAS = 1.0 + 0.5 * 2.0**-7 * 0.7213475

class Cfg:
    stamps = 0
    nt = 1
    spin = 1 << 17
    h3sleep = 16
    fast1 = 0
    fast4 = 0
    codepf = 16
    bdelay = 0
    exp_nob = 0
    tlbw = 0
    tlbo = 0
    tlbk = 0
    selftouch = 0
    lsb3 = 1
    ukearly = 0
    outmap = 1
    noepoch = 0
    s7stamps = 0
    touch = 0
    uknt = 1
    tsleep = 0
    planeorder = 1
    hperm = 0
    h3psleep = 0
    b5sleep = 44
    f5sleep = 16
    n5sleep = 44
    ckvnt = 1
    ukbar = 1
    bsleep = 8
    uvpf = 1
    h5sleep = 0
    h4sleep = 0
    h2sleep = 0
    exp_nowuv = 0

def gen(cfg):
    e = Emit()
    NT = " nt" if cfg.nt else ""
    def stamp(k):
        if cfg.stamps:
            e(f"s_memrealtime s[{S_STAMP+2*k}:{S_STAMP+2*k+1}]")
    def dpp_reduce(regs, op="v_add_f32"):
        steps = ["row_shr:1 row_mask:0xf bank_mask:0xf bound_ctrl:0", "row_shr:2 row_mask:0xf bank_mask:0xf bound_ctrl:0",
                 "row_shr:4 row_mask:0xf bank_mask:0xf bound_ctrl:0", "row_shr:8 row_mask:0xf bank_mask:0xf bound_ctrl:0",
                 "row_bcast:15 row_mask:0xa bank_mask:0xf", "row_bcast:31 row_mask:0xc bank_mask:0xf"]
        pad = max(0, 2 - (len(regs) - 1))
        e.nop(2)
        for k, st in enumerate(steps):
            for r in regs:
                e(f"{op}_dpp v{r}, v{r}, v{r} {st}")
            if k < len(steps) - 1 and pad: e.nop(pad)
    def tagchk(acc, tags):
        for k, t in enumerate(tags):
            if k == 0:
                e(f"v_xor_b32 v{acc}, s{S_TAG}, v{t}")
            else:
                e(f"v_bitop3_b32 v{acc}, v{acc}, v{t}, s{S_TAG} bitop3:0xf6")
    def spin_back(lbl_loop):
        e(f"s_sub_u32 s{S_SPIN}, s{S_SPIN}, 1")
        e(f"s_cbranch_scc0 {lbl_loop}")
        e("s_branch L_fail")
    def poll_tail(lbl_loop, lbl_done, acc, sleep=0):
        e(f"v_cmp_ne_u32 vcc, 0, v{acc}")
        e(f"s_cbranch_vccz {lbl_done}")
        if sleep: e(f"s_sleep {sleep}")
        spin_back(lbl_loop)
        e.label(lbl_done)
    def tr_common():
        e("""
        v_bfe_u32 v62, v1, 2, 2
        v_bfe_u32 v63, v1, 1, 1
        v_and_b32 v59, 1, v1
        v_lshlrev_b32 v59, 3, v59
        """)
    def tr256_addr(dst, tmp):
        e(f"""
        v_and_b32 v{dst}, 1, v2
        v_lshl_add_u32 v{dst}, v{dst}, 2, v62
        v_lshlrev_b32 v{dst}, 1, v{dst}
        s_lshl_b32 s3, s{S_W}, 1
        v_add_u32 v{tmp}, s3, v63
        v_xor_b32 v{dst}, v{dst}, v{tmp}
        v_lshl_add_u32 v{dst}, v{dst}, 4, v59
        v_lshl_add_u32 v{tmp}, v2, 3, v62
        v_lshl_add_u32 v{dst}, v{tmp}, 8, v{dst}
        """)
    def tagpat(dst, vsel, tmp):
        e(f"v_lshlrev_b32 v{tmp}, 3, v{vsel}")
        e(f"v_lshrrev_b32 v{tmp}, v{tmp}, s{S_TAG}") if False else e(f"v_mov_b32 v{tmp+1}, s{S_TAG}\nv_lshrrev_b32 v{tmp}, v{tmp}, v{tmp+1}")
        for i in range(4):
            e(f"v_bfe_u32 v{dst+i}, v{tmp}, {2*i}, 1")
            e(f"v_bfe_u32 v{tmp+1}, v{tmp}, {2*i+1}, 1")
            e(f"v_lshl_or_b32 v{dst+i}, v{tmp+1}, 16, v{dst+i}")
    def mk_tag():
        e(f"s_mul_i32 s{S_TAG}, s{S_TAG}, 1664525\ns_add_u32 s{S_TAG}, s{S_TAG}, 1013904223")
    def s7_loads():
        e(f"""
        s_mov_b32 s{SRD_W1}, s{P_W1}
        s_mov_b32 s{SRD_W1+1}, s{P_W1+1}
        s_mov_b32 s{SRD_W1+2}, 3456
        s_mov_b32 s{SRD_W1+3}, 0x20000
        s_mov_b32 s{SRD_B1}, s{P_B1}
        s_mov_b32 s{SRD_B1+1}, s{P_B1+1}
        s_mov_b32 s{SRD_B1+2}, 3456
        s_mov_b32 s{SRD_B1+3}, 0x20000
        s_mov_b32 s{SRD_W2}, s{P_W2}
        s_mov_b32 s{SRD_W2+1}, s{P_W2+1}
        s_mov_b32 s{SRD_W2+2}, 3456
        s_mov_b32 s{SRD_W2+3}, 0x20000
        s_lshl_b32 s3, s{S_W}, 8
        v_lshl_add_u32 v4, v1, 2, s3
        buffer_load_dword v224, v4, s[{SRD_W1}:{SRD_W1+3}], 0 offen
        buffer_load_dword v225, v4, s[{SRD_W1}:{SRD_W1+3}], 0 offen offset:2048
        buffer_load_dword v226, v4, s[{SRD_B1}:{SRD_B1+3}], 0 offen
        buffer_load_dword v227, v4, s[{SRD_B1}:{SRD_B1+3}], 0 offen offset:2048
        buffer_load_dword v228, v4, s[{SRD_W2}:{SRD_W2+3}], 0 offen
        buffer_load_dword v229, v4, s[{SRD_W2}:{SRD_W2+3}], 0 offen offset:2048
        v_mov_b32 v4, 0
        global_load_ushort v231, v4, s[{P_B2}:{P_B2+1}]
        {"global_load_dword v138, v4, s[%d:%d]" % (P_OUT, P_OUT+1) if cfg.tlbo else ""}
        s_min_u32 s3, s{S_W}, 4
        s_lshl_b32 s3, s3, 8
        v_lshlrev_b32 v4, 4, v3
        v_and_b32 v230, 1, v2
        v_lshl_add_u32 v4, v230, 3, v4
        v_lshrrev_b32 v230, 1, v2
        v_lshl_add_u32 v4, v230, 2, v4
        v_add_u32 v4, s3, v4
        global_load_dword v230, v4, s[{P_X}:{P_X+1}]
        """)
    OUTIDX = ("s_lshr_b32 s101, s2, 3\ns_mul_i32 s101, s101, 3\ns_mul_i32 s3, s5, 80\ns_add_u32 s101, s101, s3" if cfg.outmap else "s_mul_i32 s101, s2, 3")
    def s7_prep():
        for k, (raw, dst) in enumerate([(224, 232), (225, 234), (226, 236), (227, 238), (228, 240), (229, 242)]):
            e(f"v_lshlrev_b32 v{dst}, 16, v{raw}\nv_and_b32 v{dst+1}, 0xffff0000, v{raw}")
        e(f"""
        v_mul_u32_u24 v244, 1280, v2
        v_lshl_add_u32 v244, v3, 4, v244
        s_lshl_b32 s3, s{S_W}, 8
        s_add_u32 s64, s3, {WS_OP}
        v_add_u32 v244, s64, v244
        v_add_u32 v245, 5120, v244
        s_lshl_b32 s3, s{S_W}, 9
        s_add_u32 s3, s3, {L_HS}
        v_lshlrev_b32 v248, 5, v3
        v_and_b32 v57, 1, v2
        v_lshl_add_u32 v248, v57, 4, v248
        v_lshrrev_b32 v57, 1, v2
        v_lshl_add_u32 v248, v57, 3, v248
        v_add_u32 v248, s3, v248
        v_lshlrev_b32 v58, 16, v230
        v_and_b32 v59, 0xffff0000, v230
        v_mov_b32 v60, {F32(1.0/640)}
        v_mov_b32 v61, {F32(1.0 + 1e-5)}
        v_mov_b32 v65, {F32(1e-10)}
        v_mov_b32 v64, {F32(-2.0*0.7978845608028654*1.4426950408889634)}
        v_mov_b32 v66, {F32(-2.0*0.7978845608028654*1.4426950408889634*0.044715)}
        v_mov_b32 v62, {L_ST7}
        {OUTIDX}
        s_lshl_b32 s3, s101, 2
        s_add_u32 s3, s3, {L_HS}
        v_mov_b32 v63, s3
        s_lshl_b32 s3, s{S_W}, 3
        s_add_u32 s3, s3, {L_ST7}
        v_mov_b32 v68, s3
        s_lshl_b32 s3, s{S_W}, 4
        s_add_u32 s3, s3, {L_YRED}
        v_mov_b32 v69, s3
        v_mov_b32 v113, 0
        v_add_u32 v8, s101, v1
        v_lshlrev_b32 v6, 2, v1
        v_add_u32 v6, {L_YRED}, v6
        v_lshlrev_b32 v7, 2, v8
        v_add_u32 v7, {L_HS}, v7
        v_lshlrev_b32 v9, 16, v231
        """)
        e("v_and_b32 v57, 3, v1")
        tagpat(10, 57, 14)

    def uk_dma(bar):
        e(f"""
        s_mov_b32 s{SRD_A}, s{P_WUK}
        s_mov_b32 s{SRD_A+1}, s{P_WUK+1}
        s_mov_b32 s{SRD_A+2}, 4194304
        s_mov_b32 s{SRD_A+3}, 0x20000
        s_and_b32 s66, s{S_W}, 1
        s_lshl_b32 s66, s66, 3
        v_lshlrev_b32 v7, 1, v2
        v_xor_b32 v7, v7, v3
        v_xor_b32 v7, s66, v7
        v_lshlrev_b32 v7, 4, v7
        v_lshl_add_u32 v7, v2, 13, v7
        s_lshl_b32 s64, s{S_J}, 5
        s_add_u32 s64, s64, s{S_W}
        s_lshl_b32 s64, s64, 15
        s_lshl_b32 s65, s{S_H}, 8
        s_add_u32 s64, s64, s65
        s_lshl_b32 s67, s{S_W}, 10
        s_add_u32 s67, s67, {L_WUK}
        """)
        if bar: e("s_barrier")
        for ii in range(8):
            e(f"""
            s_mov_b32 m0, s67
            s_add_u32 s67, s67, 4096
            buffer_load_dwordx4 v7, s[{SRD_A}:{SRD_A+3}], s64 offen{NT} lds
            s_add_u32 s64, s64, {4*4*8192}
            """)

    e(f"""
    s_cmp_ge_u32 s2, 256
    s_cbranch_scc1 L_exit
    s_load_dwordx16 s[8:23], s[0:1], 0
    s_load_dwordx4 s[32:35], s[0:1], 96
    s_load_dwordx8 s[24:31], s[0:1], 64
    """)
    if cfg.codepf:
        e(f"""
        s_cmp_lt_u32 s2, {cfg.codepf}
        s_cbranch_scc0 L_nopf
        s_getpc_b64 s[64:65]
        """)
        e.label("L_pc")
        e(f"""
        s_and_b32 s64, s64, 0xffffff00
        v_lshlrev_b32 v203, 7, v0
        v_min_u32 v203, L_end-L_pc-4, v203
        v_mov_b32 v201, s65
        v_add_co_u32 v200, vcc, s64, v203
        s_nop 1
        v_addc_co_u32 v201, vcc, 0, v201, vcc
        global_load_dword v202, v[200:201], off
        """)
        e.label("L_nopf")
    if cfg.stamps:
        e(f"s_memrealtime s[{S_STAMP}:{S_STAMP+1}]")
        for k in range(1, 15): e(f"s_mov_b32 s{S_STAMP+2*k}, 0")
    e(f"""
    v_and_b32 v1, 63, v0
    v_lshrrev_b32 v4, 6, v0
    v_lshrrev_b32 v2, 4, v1
    v_readfirstlane_b32 s{S_W}, v4
    v_and_b32 v3, 15, v1
    s_and_b32 s{S_X}, s2, 7
    s_bfe_u32 s{S_I}, s2, 0x40003
    s_lshr_b32 s{S_H}, s{S_I}, 2
    s_xor_b32 s{S_H}, s{S_H}, {cfg.hperm}
    s_lshl_b32 s3, s{S_X}, 2
    s_add_u32 s{S_H}, s{S_H}, s3
    s_and_b32 s{S_J}, s{S_I}, 3
    s_mov_b32 s{SRD_0+3}, 0x20000
    s_mov_b32 s{S_SPIN}, {cfg.spin}
    s_cmp_ge_u32 s2, 128
    s_cbranch_scc1 L_B0
    """)
    e(f"""
    s_lshl_b32 s66, s{S_W}, 2
    s_and_b32 s66, s66, 8
    s_mul_i32 s64, s{S_J}, 40
    s_add_u32 s64, s64, s{S_W}
    s_lshl_b32 s64, s64, 15
    s_lshl_b32 s65, s{S_H}, 8
    s_add_u32 s64, s64, s65
    s_lshl_b32 s67, s{S_W}, 10
    s_add_u32 s67, s67, {L_WQ}
    s_mov_b32 s{SRD_0+2}, 5242880
    v_lshlrev_b32 v7, 1, v2
    v_xor_b32 v7, v7, v3
    v_xor_b32 v7, s66, v7
    v_lshlrev_b32 v7, 4, v7
    v_lshl_add_u32 v7, v2, 13, v7
    v_lshlrev_b32 v6, 2, v1
    s_cmp_eq_u32 s{S_W}, 0
    s_waitcnt lgkmcnt(0)
    s_mov_b32 s{SRD_0}, s{P_WQ}
    s_mov_b32 s{SRD_0+1}, s{P_WQ+1}
    s_cbranch_scc0 L_f_nox
    """)
    for k in range(5):
        e(f"global_load_dword v{8+k}, v6, s[{P_X}:{P_X+1}] offset:{256*k}")
    e.label("L_f_nox")
    for ii in range(5):
        e(f"""
        s_mov_b32 m0, s67
        s_add_u32 s67, s67, 8192
        buffer_load_dwordx4 v7, s[{SRD_0}:{SRD_0+3}], s64 offen{NT} lds
        s_add_u32 s64, s64, {8*4*8192}
        """)
    if cfg.tlbk:
        e(f"""
        s_lshl_b32 s3, s{S_J}, 7
        s_lshl_b32 s64, s{S_W}, 4
        s_add_u32 s3, s3, s64
        s_lshl_b32 s3, s3, 13
        s_lshl_b32 s64, s{S_H}, 8
        s_add_u32 s3, s3, s64
        v_mov_b32 v4, s3
        s_mov_b64 exec, 1
        global_load_dword v200, v4, s[{P_WUK}:{P_WUK+1}] nt
        s_mov_b64 exec, -1
        """)
    if cfg.selftouch:
        e(f"""
        v_bfe_u32 v4, v1, 1, 4
        s_lshl_b32 s3, s{S_J}, 7
        s_lshl_b32 s64, s{S_W}, 4
        s_add_u32 s3, s3, s64
        v_add_u32 v4, s3, v4
        v_lshlrev_b32 v4, 13, v4
        v_and_b32 v5, 1, v1
        v_lshl_add_u32 v4, v5, 7, v4
        s_lshl_b32 s3, s{S_H}, 8
        v_add_u32 v4, s3, v4
        s_mov_b64 exec, 0xffffffff
        global_load_dword v200, v4, s[{P_WUK}:{P_WUK+1}] nt
        s_mov_b64 exec, -1
        """)
    if cfg.ukearly:
        e("s_barrier")
        e(f"s_cmp_lt_u32 s{S_W}, 4\ns_cbranch_scc0 L_f_nouk")
        uk_dma(False)
        e.label("L_f_nouk")
    e(f"""
    s_load_dword s{S_TAG}, {WS}, 0
    s_branch L_F1
    """)
    e.label("L_B0")
    if cfg.exp_nob: e("s_endpgm")
    e(f"""
    s_lshl_b32 s3, s{S_W}, 1
    v_xor_b32 v7, s3, v1
    v_lshlrev_b32 v7, 4, v7
    s_lshl_b32 s{S_CH}, s{S_X}, 2
    s_add_u32 s{S_CH}, s{S_CH}, s{S_J}
    s_lshl_b32 s66, s{S_CH}, 17
    s_and_b32 s67, s{S_I}, 12
    s_lshl_b32 s67, s67, 13
    s_lshl_b32 s65, s{S_W}, 10
    s_add_u32 s67, s67, s65
    s_mov_b32 s{SRD_0+2}, 4194304
    s_mov_b32 s68, 15
    v_bfe_u32 v4, v1, 1, 4
    s_lshl_b32 s3, s{S_J}, 7
    s_lshl_b32 s64, s{S_W}, 4
    s_add_u32 s3, s3, s64
    v_add_u32 v4, s3, v4
    v_lshlrev_b32 v4, 13, v4
    v_and_b32 v5, 1, v1
    v_lshl_add_u32 v4, v5, 7, v4
    s_lshl_b32 s3, s{S_H}, 8
    v_add_u32 v4, s3, v4
    s_waitcnt lgkmcnt(0)
    s_mov_b32 s{SRD_0}, s{P_CKV}
    s_mov_b32 s{SRD_0+1}, s{P_CKV+1}
    """)
    if cfg.tlbw:
        e(f"""
        s_cmp_eq_u32 s{S_I}, 0
        s_cselect_b32 s3, s{S_W}, 0
        s_cmp_eq_u32 s3, 7
        s_cbranch_scc0 L_notlb
        s_mov_b64 exec, 1
        v_mov_b32 v8, 0
        v_mov_b32 v9, 0x200000
        v_mov_b32 v10, 0x3ffffc
        v_mov_b32 v11, 0x4ffffc
        global_load_dword v204, v8, s[{P_WUK}:{P_WUK+1}] nt
        global_load_dword v204, v9, s[{P_WUK}:{P_WUK+1}] nt
        global_load_dword v204, v10, s[{P_WUK}:{P_WUK+1}] nt
        global_load_dword v204, v8, s[{P_WUV}:{P_WUV+1}] nt
        global_load_dword v204, v9, s[{P_WUV}:{P_WUV+1}] nt
        global_load_dword v204, v10, s[{P_WUV}:{P_WUV+1}] nt
        global_load_dword v204, v8, s[{P_WO}:{P_WO+1}] nt
        global_load_dword v204, v9, s[{P_WO}:{P_WO+1}] nt
        global_load_dword v204, v10, s[{P_WO}:{P_WO+1}] nt
        global_load_dword v204, v11, s[{P_WO}:{P_WO+1}] nt
        global_load_dword v204, v8, s[{P_W1}:{P_W1+1}]
        global_load_dword v204, v8, s[{P_B1}:{P_B1+1}]
        global_load_dword v204, v8, s[{P_W2}:{P_W2+1}]
        global_load_ushort v204, v8, s[{P_B2}:{P_B2+1}]
        global_load_dword v204, v8, s[{P_OUT}:{P_OUT+1}]
        s_mov_b64 exec, -1
        """)
        e.label("L_notlb")
    if cfg.tsleep: e(f"s_sleep {cfg.tsleep}")
    if cfg.touch: e(f"""
    s_mov_b64 exec, 0xffffffff
    global_load_dword v200, v4, s[{P_WUK}:{P_WUK+1}]{" nt" if cfg.uknt else ""}
    s_mov_b64 exec, -1
    """)
    if cfg.bdelay: e(f"s_load_dword s{S_TAG}, {WS}, 0\ns_waitcnt lgkmcnt(0)")
    if cfg.bsleep: e(f"s_sleep {cfg.bsleep}")
    e.label("L_b_dma")
    e(f"""
    s_mov_b32 m0, s67
    s_add_u32 s69, s67, s66
    buffer_load_dwordx4 v7, s[{SRD_0}:{SRD_0+3}], s69 offen{" nt" if cfg.ckvnt else ""} lds
    s_add_u32 s67, s67, 8192
    s_and_b32 s67, s67, 0x1ffff
    s_sub_u32 s68, s68, 1
    s_cbranch_scc0 L_b_dma
    """)
    if not cfg.bdelay: e(f"s_load_dword s{S_TAG}, {WS}, 0")
    e("s_branch L_B1")

    e.label("L_F1")
    e(f"s_mov_b32 s{S_ISB}, 0")
    stamp(1)
    tr_common()
    e(f"""
    v_and_b32 v41, 1, v2
    v_lshl_add_u32 v41, v41, 2, v62
    v_lshlrev_b32 v41, 1, v41
    s_and_b32 s65, s{S_W}, 3
    s_lshl_b32 s3, s65, 2
    v_add_u32 v42, s3, v63
    v_xor_b32 v41, v41, v42
    v_lshl_add_u32 v41, v41, 4, v59
    v_lshl_add_u32 v42, v2, 3, v62
    v_lshl_add_u32 v41, v42, 8, v41
    v_add_u32 v41, {L_WQ}, v41
    v_xor_b32 v40, 32, v41
    s_mul_i32 s3, s{S_J}, 320
    s_add_u32 s3, s3, {L_LNS}
    v_lshl_add_u32 v42, v2, 4, s3
    s_lshl_b32 s3, s{S_H}, 2
    s_add_u32 s3, s3, s{S_J}
    s_lshl_b32 s3, s3, 9
    s_lshl_b32 s64, s65, 7
    s_add_u32 s3, s3, s64
    s_add_u32 s65, s3, {WS_Q1}
    v_and_b32 v43, 1, v1
    v_lshlrev_b32 v43, 6, v43
    v_lshl_add_u32 v43, v2, 4, v43
    v_add_u32 v43, s65, v43
    v_add_u32 v44, {WS_Q1F-WS_Q1}, v43
    s_lshl_b32 s64, s{S_W}, 6
    s_lshl_b32 s3, s{S_H}, 2
    s_and_b32 s65, s{S_W}, 3
    s_add_u32 s3, s3, s65
    s_lshl_b32 s3, s3, 9
    s_add_u32 s3, s3, {WS_Q1}
    v_lshl_add_u32 v45, v1, 3, s3
    v_add_u32 v49, {WS_Q1F-WS_Q1}, v45
    s_mul_i32 s3, s65, {QP_STRIDE}
    s_add_u32 s3, s3, {L_QP}
    v_lshl_add_u32 v46, v1, 2, s3
    v_and_b32 v47, 3, v3
    v_mul_u32_u24 v47, {QP_STRIDE}, v47
    v_lshl_add_u32 v47, v2, 4, v47
    v_add_u32 v47, {L_QP}, v47
    s_and_b32 s66, s{S_W}, 3
    s_lshl_b32 s3, s{S_H}, 10
    s_lshl_b32 s65, s{S_J}, 8
    s_add_u32 s3, s3, s65
    s_lshl_b32 s64, s66, 6
    s_add_u32 s3, s3, s64
    s_add_u32 s65, s3, {WS_QA}
    v_and_b32 v50, 1, v1
    v_lshlrev_b32 v50, 1, v50
    v_lshrrev_b32 v51, 1, v2
    v_add_u32 v50, v50, v51
    v_lshl_add_u32 v48, v50, 4, s65
    s_lshl_b32 s3, s66, 5
    v_add_u32 v24, s3, v3
    v_lshlrev_b32 v24, 8, v24
    v_and_b32 v25, 7, v3
    v_lshlrev_b32 v25, 1, v25
    v_xor_b32 v25, v25, v2
    v_lshl_add_u32 v24, v25, 4, v24
    v_add_u32 v24, {L_WUK}, v24
    v_xor_b32 v25, 64, v24
    v_xor_b32 v26, 128, v24
    v_xor_b32 v27, 192, v24
    s_waitcnt lgkmcnt(0)
    """)
    mk_tag()
    e(f"v_mov_b32 v105, s{S_TAG}\nv_mov_b32 v107, s{S_TAG}")
    tagpat(52, 50, 56)
    e(f"""
    s_cmp_eq_u32 s{S_W}, 0
    s_cbranch_scc0 L_f_noln
    """)
    e(f"s_waitcnt vmcnt({13 if cfg.ukearly else 5 + cfg.selftouch + cfg.tlbk})")
    stamp(2)
    for k in range(5):
        e(f"v_lshlrev_b32 v{64+2*k}, 16, v{8+k}")
        e(f"v_and_b32 v{65+2*k}, 0xffff0000, v{8+k}")
    e(f"""
    v_pk_add_f32 v[74:75], v[64:65], v[66:67]
    v_pk_add_f32 v[76:77], v[68:69], v[70:71]
    v_pk_add_f32 v[74:75], v[74:75], v[72:73]
    v_pk_add_f32 v[74:75], v[74:75], v[76:77]
    v_mov_b32 v78, {F32(-1.0/640)}
    v_add_f32 v74, v74, v75
    """)
    dpp_reduce([74])
    e.nop(1)
    e("v_readlane_b32 s20, v74, 63")
    e(f"v_mov_b32 v80, {F32(1.0/640)}\nv_mov_b32 v81, {F32(1e-5)}")
    e("v_mul_f32 v78, s20, v78")
    for k in range(5):
        e(f"v_pk_add_f32 v[{64+2*k}:{65+2*k}], v[{64+2*k}:{65+2*k}], v[78:79] op_sel_hi:[1,0]")
    e("v_pk_mul_f32 v[74:75], v[64:65], v[64:65]")
    for k in range(1, 5):
        e(f"v_pk_fma_f32 v[74:75], v[{64+2*k}:{65+2*k}], v[{64+2*k}:{65+2*k}], v[74:75]")
    e("v_add_f32 v74, v74, v75")
    dpp_reduce([74])
    e.nop(1)
    e("v_readlane_b32 s21, v74, 63")
    e(f"v_mov_b32 v82, {F32(128**-0.5 * 1.4426950408889634 * LSB_DEBIAS)}")
    e(f"v_add_u32 v6, {L_LNS}, v6")
    e("v_fma_f32 v74, s21, v80, v81")
    e("v_rsq_f32 v74, v74")
    e.nop(1)
    e("v_mul_f32 v74, v74, v82")
    for k in range(5):
        e(f"v_pk_mul_f32 v[{64+2*k}:{65+2*k}], v[{64+2*k}:{65+2*k}], v[74:75] op_sel_hi:[1,0]")
    for k in range(5):
        e(f"v_cvt_pk_bf16_f32 v{8+k}, v{64+2*k}, v{65+2*k}")
        e(f"ds_write_b32 v6, v{8+k} offset:{256*k}")
    e.label("L_f_noln")
    if cfg.ukearly:
        e(f"s_cmp_lt_u32 s{S_W}, 4\ns_cbranch_scc0 L_f_w0\ns_waitcnt vmcnt(8)\ns_branch L_f_w1")
        e.label("L_f_w0")
        e("s_waitcnt vmcnt(0)")
        e.label("L_f_w1")
        e("s_waitcnt lgkmcnt(0)")
    else:
        e(f"s_waitcnt vmcnt({cfg.selftouch + cfg.tlbk}) lgkmcnt(0)")
    e("s_barrier")
    stamp(3)
    e(f"s_cmp_lt_u32 s{S_W}, 4\ns_cbranch_scc1 L_f_uk")
    for ks in range(5):
        e(f"ds_read_b128 v[{84+4*ks}:{87+4*ks}], v42 offset:{64*ks}")
        e(f"ds_read_b64_tr_b16 v[{64+4*ks}:{65+4*ks}], v41 offset:{8192*ks}")
        e(f"ds_read_b64_tr_b16 v[{66+4*ks}:{67+4*ks}], v41 offset:{8192*ks+1024}")
        e(f"ds_read_b64_tr_b16 v[{112+4*ks}:{113+4*ks}], v40 offset:{8192*ks}")
        e(f"ds_read_b64_tr_b16 v[{114+4*ks}:{115+4*ks}], v40 offset:{8192*ks+1024}")
    e("s_mov_b32 s64, 0xaaaaaaaa\ns_mov_b32 s65, 0xaaaaaaaa")
    for ks in range(5):
        e(f"s_waitcnt lgkmcnt({min(15, 20-5*ks)})")
        c = "0" if ks == 0 else "v[108:111]"
        e(f"v_mfma_f32_16x16x32_bf16 v[108:111], v[{64+4*ks}:{67+4*ks}], v[{84+4*ks}:{87+4*ks}], {c}")
        c = "0" if ks == 0 else "v[132:135]"
        e(f"v_mfma_f32_16x16x32_bf16 v[132:135], v[{112+4*ks}:{115+4*ks}], v[{84+4*ks}:{87+4*ks}], {c}")
    e("s_mov_b32 exec_lo, 0x00030003\ns_mov_b32 exec_hi, 0x00030003")
    e.nop(6)
    for r in range(4):
        e(f"v_cndmask_b32 v{108+r}, v{108+r}, v{132+r}, s[64:65]")
    e("""
    v_cvt_pk_bf16_f32 v104, v108, v109
    v_cvt_pk_bf16_f32 v106, v110, v111
    """)
    if cfg.fast1: e(f"global_store_dwordx4 v44, v[104:107], {WS}")
    e(f"global_store_dwordx4 v43, v[104:107], {WS} sc1\ns_mov_b64 exec, -1")
    stamp(4)
    e(("" if cfg.ukearly else "s_barrier\n") + "s_branch L_h1_bar")
    e.label("L_f_uk")
    if not cfg.ukearly: uk_dma(True)
    e.label("L_h1")
    if cfg.fast1:
        e(f"global_load_dwordx2 v[66:67], v49, {WS} sc1")
        e(f"global_load_dwordx2 v[64:65], v45, {WS} sc1\ns_waitcnt vmcnt(0)")
        e(f"v_cmp_eq_u32 vcc, s{S_TAG}, v67")
        e.nop(2)
        e("v_cndmask_b32 v64, v64, v66, vcc\nv_cndmask_b32 v65, v65, v67, vcc")
    else:
        e(f"global_load_dwordx2 v[64:65], v45, {WS} sc1\ns_waitcnt vmcnt(0)")
    e(f"v_cmp_ne_u32 vcc, s{S_TAG}, v65")
    e(f"s_cbranch_vccz L_h1_done")
    spin_back("L_h1")
    e.label("L_h1_done")
    stamp(8)
    stamp(7)
    e("ds_write_b32 v46, v64")
    e.label("L_h1_bar")
    e("s_waitcnt lgkmcnt(0)\ns_barrier")
    stamp(5)
    e(f"s_cmp_lt_u32 s{S_W}, 4\ns_cbranch_scc1 L_f_nos2")
    for t in range(4):
        e(f"ds_read_b128 v[{64+4*t}:{67+4*t}], v47 offset:{64*t}")
        e(f"ds_read_b128 v[{80+4*t}:{83+4*t}], v{24+t}")
        e(f"ds_read_b128 v[{112+4*t}:{115+4*t}], v{24+t} offset:4096")
    e("s_mov_b32 s64, 0xaaaaaaaa\ns_mov_b32 s65, 0xaaaaaaaa")
    for t in range(4):
        e(f"s_waitcnt lgkmcnt({9-3*t})")
        c = "0" if t == 0 else "v[108:111]"
        e(f"v_mfma_f32_16x16x32_bf16 v[108:111], v[{80+4*t}:{83+4*t}], v[{64+4*t}:{67+4*t}], {c}")
        c = "0" if t == 0 else "v[132:135]"
        e(f"v_mfma_f32_16x16x32_bf16 v[132:135], v[{112+4*t}:{115+4*t}], v[{64+4*t}:{67+4*t}], {c}")
    e.nop(7)
    for st in ("row_ror:1", "row_ror:2"):
        for r in list(range(108, 112)) + list(range(132, 136)):
            e(f"v_add_f32_dpp v{r}, v{r}, v{r} {st} row_mask:0xf bank_mask:0xf")
    for r in range(4):
        e(f"v_cndmask_b32 v{108+r}, v{108+r}, v{132+r}, s[64:65]")
    e("""
    v_cvt_pk_bf16_f32 v104, v108, v109
    v_cvt_pk_bf16_f32 v105, v110, v111
    s_mov_b32 s66, 0xfffefffe
    v_mov_b32 v106, v104
    v_mov_b32 v107, v105
    s_nop 1
    v_permlane16_swap_b32 v104, v106
    v_permlane16_swap_b32 v105, v107
    s_mov_b32 exec_lo, 3
    s_mov_b32 exec_hi, 3
    v_and_or_b32 v104, v104, s66, v52
    v_and_or_b32 v105, v105, s66, v53
    v_and_or_b32 v106, v106, s66, v54
    v_and_or_b32 v107, v107, s66, v55
    """)
    e(f"global_store_dwordx4 v48, v[104:107], {WS} sc1\ns_mov_b64 exec, -1")
    stamp(6)
    e.label("L_f_nos2")
    e("s_barrier")
    if cfg.uvpf:
        e(f"""
        v_lshrrev_b32 v4, 1, v1
        s_lshl_b32 s3, s{S_J}, 7
        s_lshl_b32 s64, s{S_W}, 4
        s_add_u32 s3, s3, s64
        v_and_b32 v4, 15, v4
        v_add_u32 v4, s3, v4
        v_lshlrev_b32 v4, 13, v4
        v_and_b32 v5, 1, v1
        v_lshl_add_u32 v4, v5, 7, v4
        s_lshl_b32 s3, s{S_H}, 8
        v_add_u32 v4, s3, v4
        s_mov_b64 exec, 0xffffffff
        global_load_dword v5, v4, s[{P_WUV}:{P_WUV+1}]{NT}
        s_mov_b64 exec, -1
        """)
    e(f"s_cmp_lt_u32 s{S_I}, 10\ns_cbranch_scc1 L_s6")
    s7_loads()
    e("s_waitcnt vmcnt(0)")
    s7_prep()
    if cfg.n5sleep:
        e(f"""
        s_cmp_lt_u32 s{S_W}, 5
        s_cbranch_scc0 L_S7
        s_lshl_b32 s3, s{S_H}, 2
        s_add_u32 s3, s3, s{S_J}
        s_lshl_b32 s3, s3, 9
        s_add_u32 s3, s3, {WS_CTX}
        v_mov_b32 v40, s3
        """)
        e.label("L_sent")
        e(f"""
        global_load_dwordx2 v[42:43], v40, {WS} sc1
        s_waitcnt vmcnt(0)
        v_cmp_ne_u32 vcc, s{S_TAG}, v43
        s_cbranch_vccz L_sent_done
        s_sleep 8
        """)
        spin_back("L_sent")
        e.label("L_sent_done")
        e(f"s_sleep {cfg.n5sleep}")
    e("s_branch L_S7")
    e.label("L_s6")
    e(f"""
    s_mov_b32 s{SRD_WO}, s{P_WO}
    s_mov_b32 s{SRD_WO+1}, s{P_WO+1}
    s_mov_b32 s{SRD_WO+2}, 5242880
    s_mov_b32 s{SRD_WO+3}, 0x20000
    v_lshrrev_b32 v12, 3, v1
    v_mul_u32_u24 v50, 1280, v12
    v_and_b32 v12, 2, v12
    v_and_b32 v13, 7, v1
    v_xor_b32 v12, v12, v13
    v_lshl_add_u32 v50, v12, 4, v50
    v_xor_b32 v51, 64, v50
    s_lshl_b32 s3, s{S_X}, 3
    s_add_u32 s3, s3, s{S_W}
    s_mul_i32 s20, s3, {64*1280}
    s_lshl_b32 s65, s{S_I}, 7
    s_add_u32 s20, s20, s65
    s_lshl_b32 s21, s{S_W}, 13
    """)
    for ii in range(8):
        e(f"""
        s_mov_b32 m0, s21
        s_add_u32 s21, s21, 1024
        buffer_load_dwordx4 v{50+(ii&1)}, s[{SRD_WO}:{SRD_WO+3}], s20 offen{NT} lds
        s_add_u32 s20, s20, {8*1280}
        """)
    s7_loads()
    tr_common()
    e(f"""
    v_lshl_add_u32 v12, v2, 3, v62
    v_lshlrev_b32 v12, 7, v12
    v_add_u32 v12, v12, v59
    s_lshl_b32 s3, s{S_W}, 13
    v_add_u32 v12, s3, v12
    v_and_b32 v13, 1, v2
    v_lshlrev_b32 v13, 2, v13
    v_and_b32 v14, 2, v62
    v_or_b32 v13, v13, v14
    v_xor_b32 v13, v13, v63
    v_lshl_add_u32 v249, v13, 4, v12
    v_xor_b32 v250, 32, v249
    v_xor_b32 v251, 64, v249
    v_xor_b32 v252, 96, v249
    s_lshr_b32 s3, s{S_W}, 1
    s_lshl_b32 s64, s{S_X}, 2
    s_add_u32 s3, s3, s64
    s_lshl_b32 s3, s3, 11
    s_and_b32 s64, s{S_W}, 1
    s_lshl_b32 s64, s64, 8
    s_add_u32 s3, s3, s64
    s_add_u32 s3, s3, {WS_CTX}
    v_lshlrev_b32 v52, 9, v2
    v_lshl_add_u32 v52, v3, 4, v52
    v_add_u32 v52, s3, v52
    v_add_u32 v53, {WS_CTXF-WS_CTX}, v52
    s_lshl_b32 s3, s{S_W}, 7
    s_add_u32 s3, s3, {L_BNC}
    v_lshl_add_u32 v54, v3, 2, v2
    v_lshlrev_b32 v54, 1, v54
    v_add_u32 v54, s3, v54
    v_lshl_add_u32 v55, v2, 4, s3
    s_lshl_b32 s3, s{S_W}, 8
    s_add_u32 s3, s3, {L_ORED}
    v_lshl_add_u32 v253, v2, 4, s3
    v_lshlrev_b32 v254, 3, v1
    v_add_u32 v254, {L_ORED}, v254
    s_mul_i32 s3, s{S_X}, 1280
    s_lshl_b32 s64, s{S_I}, 7
    s_add_u32 s3, s3, s64
    s_add_u32 s3, s3, {WS_OP}
    v_lshl_add_u32 v255, v1, 2, s3
    v_and_b32 v12, 15, v1
    v_lshlrev_b32 v12, 1, v12
    v_mov_b32 v13, s{S_TAG}
    v_lshrrev_b32 v12, v12, v13
    v_and_b32 v13, 1, v12
    v_and_b32 v12, 2, v12
    v_lshl_or_b32 v136, v12, 15, v13
    s_waitcnt vmcnt(0)
    """)
    stamp(9)
    for tt in range(4):
        for ks in range(2):
            r = 80 + 8 * tt + 4 * ks
            e(f"ds_read_b64_tr_b16 v[{r}:{r+1}], v{249+tt} offset:{4096*ks}")
            e(f"ds_read_b64_tr_b16 v[{r+2}:{r+3}], v{249+tt} offset:{4096*ks+512}")
    s7_prep()
    e.label("L_h4")
    if cfg.fast4:
        e(f"global_load_dwordx4 v[44:47], v53, {WS} sc1")
        e(f"global_load_dwordx4 v[40:43], v52, {WS} sc1\ns_waitcnt vmcnt(0)")
        tagchk(48, [45, 47])
        e("v_cmp_eq_u32 vcc, 0, v48")
        e.nop(2)
        for k in range(4): e(f"v_cndmask_b32 v{40+k}, v{40+k}, v{44+k}, vcc")
    else:
        e(f"global_load_dwordx4 v[40:43], v52, {WS} sc1\ns_waitcnt vmcnt(0)")
    tagchk(48, [41, 43])
    poll_tail("L_h4", "L_h4_done", 48, cfg.h4sleep)
    stamp(10)
    e("""
    v_lshlrev_b32 v44, 16, v40
    v_and_b32 v45, 0xffff0000, v40
    v_lshlrev_b32 v46, 16, v42
    v_and_b32 v47, 0xffff0000, v42
    s_nop 1
    v_permlane32_swap_b32 v44, v46
    v_permlane32_swap_b32 v45, v47
    v_add_f32 v44, v44, v46
    v_add_f32 v45, v45, v47
    s_nop 1
    v_permlane16_swap_b32 v44, v45
    v_add_f32 v44, v44, v45
    v_cvt_pk_bf16_f32 v44, v44, v44
    ds_write_b16 v54, v44
    s_waitcnt lgkmcnt(0)
    ds_read_b128 v[112:115], v55
    ds_read_b128 v[116:119], v55 offset:64
    """)
    for ks in range(2):
        e(f"s_waitcnt lgkmcnt({1-ks})")
        for tt in range(4):
            c = "0" if ks == 0 else f"v[{120+4*tt}:{123+4*tt}]"
            r = 80 + 8 * tt + 4 * ks
            e(f"v_mfma_f32_16x16x32_bf16 v[{120+4*tt}:{123+4*tt}], v[{r}:{r+3}], v[{112+4*ks}:{115+4*ks}], {c}")
    e("s_mov_b32 exec_lo, 0x00010001\ns_mov_b32 exec_hi, 0x00010001")
    e.nop(3)
    for tt in range(4):
        e(f"ds_write_b128 v253, v[{120+4*tt}:{123+4*tt}] offset:{64*tt}")
    e(f"""
    s_mov_b64 exec, -1
    s_waitcnt lgkmcnt(0)
    s_barrier
    s_cmp_eq_u32 s{S_W}, 7
    s_cbranch_scc0 L_s6_w
    s_mov_b64 exec, 0xffffffff
    """)
    for w in range(8):
        e(f"ds_read_b64 v[{40+2*w}:{41+2*w}], v254 offset:{256*w}")
    e(f"""
    s_mov_b32 s66, 0xfffefffe
    s_waitcnt lgkmcnt(0)
    v_pk_add_f32 v[40:41], v[40:41], v[42:43]
    v_pk_add_f32 v[44:45], v[44:45], v[46:47]
    v_pk_add_f32 v[48:49], v[48:49], v[50:51]
    v_pk_add_f32 v[52:53], v[52:53], v[54:55]
    v_pk_add_f32 v[40:41], v[40:41], v[44:45]
    v_pk_add_f32 v[48:49], v[48:49], v[52:53]
    v_pk_add_f32 v[40:41], v[40:41], v[48:49]
    v_cvt_pk_bf16_f32 v56, v40, v41
    v_lshrrev_b32 v57, 1, v56
    v_and_b32 v57, 0x00010001, v57
    v_add_u32 v56, v56, v57
    v_and_or_b32 v56, v56, s66, v136
    global_store_dword v255, v56, {WS} sc1
    s_mov_b64 exec, -1
    """)
    stamp(11)
    e("s_branch L_S7")
    e.label("L_s6_w")
    if cfg.f5sleep: e(f"s_sleep {cfg.f5sleep}")
    e("s_branch L_S7")

    e.label("L_B1")
    e(f"s_mov_b32 s{S_ISB}, 1")
    stamp(1)
    e(f"""
    s_lshr_b32 s3, s{S_I}, 2
    s_lshl_b32 s3, s3, 3
    s_add_u32 s3, s3, s{S_W}
    s_lshl_b32 s3, s3, 10
    s_add_u32 s3, s3, {WS_QA}
    v_lshl_add_u32 v5, v1, 4, s3
    s_mul_i32 s3, s{S_W}, {QAS_STRIDE}
    s_add_u32 s3, s3, {L_QAS}
    v_lshl_add_u32 v6, v1, 4, s3
    """)
    tr_common()
    e(f"s_cmp_lt_u32 s{S_W}, 4\ns_cbranch_scc0 L_bp_prep")
    def h2_poll(sfx):
        msk = "s66" if sfx == "q" else "s67"
        e("s_waitcnt vmcnt(0)\ns_branch L_h2_chk" + sfx)
        e.label("L_h2" + sfx)
        e(f"""
        global_load_dwordx4 v[40:43], v5, {WS} sc1
        s_waitcnt vmcnt(0)
        """)
        e.label("L_h2_chk" + sfx)
        for i in range(4):
            e(f"v_xor_b32 v{40+i}, v{40+i}, v{44+i}")
        e(f"v_or3_b32 v4, v40, v41, v42\nv_or_b32 v4, v4, v43\nv_and_b32 v4, {msk}, v4")
        poll_tail("L_h2" + sfx, "L_h2_done" + sfx, 4, cfg.h2sleep)
        stamp(5)
        e(f"""
        ds_write_b128 v6, v[40:43]
        s_waitcnt lgkmcnt(0)
        s_barrier
        """)
    e(f"""
    s_lshl_b32 s3, s{S_W}, 5
    v_add_u32 v12, s3, v3
    v_lshlrev_b32 v12, 10, v12
    v_and_b32 v13, 7, v1
    v_lshlrev_b32 v13, 1, v13
    v_xor_b32 v13, v13, v2
    v_lshl_add_u32 v8, v13, 4, v12
    v_xor_b32 v9, 64, v8
    v_xor_b32 v10, 128, v8
    v_xor_b32 v11, 192, v8
    v_and_b32 v216, 7, v3
    v_lshlrev_b32 v217, 4, v216
    v_mul_u32_u24 v216, {QAS_STRIDE}, v216
    v_lshl_add_u32 v216, v2, 4, v216
    v_add_u32 v216, {L_QAS}, v216
    v_add_u32 v217, {L_MX}, v217
    s_lshl_b32 s3, s{S_W}, 2
    v_add_u32 v218, s3, v217
    s_lshl_b32 s3, s{S_W}, 10
    s_add_u32 s3, s3, {L_PEX}
    v_lshl_add_u32 v219, v1, 4, s3
    v_and_b32 v220, 1, v2
    v_lshl_add_u32 v220, v220, 2, v62
    v_lshlrev_b32 v220, 1, v220
    s_lshl_b32 s3, s{S_W}, 2
    v_add_u32 v12, s3, v63
    v_xor_b32 v220, v220, v12
    v_lshl_add_u32 v220, v220, 4, v59
    v_lshl_add_u32 v12, v2, 3, v62
    v_lshl_add_u32 v220, v12, 8, v220
    v_xor_b32 v221, 32, v220
    s_lshl_b32 s3, s{S_H}, 10
    s_lshl_b32 s65, s{S_J}, 8
    s_add_u32 s3, s3, s65
    s_lshl_b32 s64, s{S_W}, 6
    s_add_u32 s3, s3, s64
    s_add_u32 s65, s3, {WS_PART}
    s_lshl_b32 s64, s{S_W}, 7
    v_lshrrev_b32 v12, 2, v1
    v_and_b32 v13, 3, v1
    v_lshlrev_b32 v222, 15, v12
    v_lshl_add_u32 v222, v13, 4, v222
    v_add_u32 v222, s65, v222
    s_lshl_b32 s3, s{S_H}, 7
    s_add_u32 s3, s3, {WS_ST}
    v_lshlrev_b32 v48, 12, v12
    v_lshl_add_u32 v48, v13, 4, v48
    v_add_u32 v48, s3, v48
    v_and_b32 v223, 1, v2
    v_lshlrev_b32 v223, 4, v223
    v_lshrrev_b32 v12, 1, v2
    v_lshl_add_u32 v223, v12, 1, v223
    v_lshl_add_u32 v223, v13, 2, v223
    s_lshl_b32 s3, s{S_W}, 5
    v_add_u32 v223, s3, v223
    v_lshlrev_b32 v223, 1, v223
    v_add_u32 v223, {L_CTXS}, v223
    v_lshlrev_b32 v49, 4, v2
    v_add_u32 v49, {L_CTXS}, v49
    s_lshl_b32 s3, s{S_H}, 2
    s_add_u32 s3, s3, s{S_J}
    s_lshl_b32 s3, s3, 9
    s_add_u32 s3, s3, s64
    s_add_u32 s3, s3, {WS_CTX}
    v_and_b32 v50, 1, v1
    v_lshlrev_b32 v50, 6, v50
    v_lshl_add_u32 v50, v2, 4, v50
    v_add_u32 v50, s3, v50
    v_add_u32 v51, {WS_CTXF-WS_CTX}, v50
    s_waitcnt lgkmcnt(0)
    """)
    mk_tag()
    e("v_and_b32 v16, 3, v1\ns_mov_b32 s66, 0x00010001")
    tagpat(44, 16, 12)
    e(f"s_waitcnt vmcnt(0)\nglobal_load_dwordx4 v[40:43], v5, {WS} sc1")
    e("s_barrier")
    stamp(14)
    for t in range(2):
        for j in range(16):
            e(f"ds_read_b128 v[{64+64*t+4*j}:{67+64*t+4*j}], v{8+(j&3)} offset:{256*(j>>2)+16384*t}")
    h2_poll("q")
    def qb(j):
        if j < 6: return 192 + 4 * j
        if j < 13: return 12 + 4 * (j - 6)
        if j < 15: return 40 + 4 * (j - 13)
        return 52
    stamp(4)
    for j in range(16):
        e(f"ds_read_b128 v[{qb(j)}:{qb(j)+3}], v216 offset:{64*j}")
    for j in range(16):
        if j % 2 == 0: e(f"s_waitcnt lgkmcnt({max(0, 14-j)})")
        for t in range(2):
            acc = f"v[{56+4*t}:{59+4*t}]"
            c = "0" if j == 0 else acc
            e(f"v_mfma_f32_16x16x32_bf16 {acc}, v[{64+64*t+4*j}:{67+64*t+4*j}], v[{qb(j)}:{qb(j)+3}], {c}")
    e.nop(7)
    stamp(10)
    e("""
    v_max3_f32 v12, v56, v57, v58
    s_nop 0
    v_max3_f32 v13, v60, v61, v62
    v_max3_f32 v12, v59, v63, v12
    v_max_f32 v12, v12, v13
    v_mov_b32 v13, v12
    """)
    e.nop(2)
    e("v_permlane16_swap_b32 v12, v13")
    e("v_max_f32 v12, v12, v13\nv_mov_b32 v13, v12")
    e.nop(2)
    e("v_permlane32_swap_b32 v12, v13")
    e("""
    v_max_f32 v12, v12, v13
    s_mov_b64 exec, 0xff
    ds_write_b32 v218, v12
    s_mov_b64 exec, -1
    s_waitcnt lgkmcnt(0)
    s_barrier
    """)
    stamp(11)
    e("""
    ds_read_b128 v[16:19], v217
    s_waitcnt lgkmcnt(0)
    v_max3_f32 v12, v16, v17, v18
    v_max_f32 v12, v12, v19
    """)
    for r in range(8): e(f"v_sub_f32 v{56+r}, v{56+r}, v12")
    for r in range(8): e(f"v_exp_f32 v{56+r}, v{56+r}")
    e("s_nop 0")
    for r in range(4): e(f"v_cvt_pk_bf16_f32 v{16+r}, v{56+2*r}, v{57+2*r}")
    e(f"""
    ds_write_b128 v219, v[16:19]
    s_cmp_eq_u32 s{S_W}, 0
    s_cbranch_scc0 L_bq_nom
    s_mov_b64 exec, 0xff
    ds_write_b32 v218, v12 offset:128
    s_mov_b64 exec, -1
    """)
    e.label("L_bq_nom")
    e("s_waitcnt lgkmcnt(0)\ns_barrier")
    stamp(6)
    e(f"""
    v_mov_b32 v105, s{S_TAG}
    v_mov_b32 v107, s{S_TAG}
    v_add_u32 v192, 0x80000, v222
    v_add_u32 v195, 0x10000, v48
    v_and_b32 v196, 3, v1
    s_mov_b32 s66, 0x00010001
    s_mov_b32 s67, {F32(LSB_DEBIAS)}
    s_mov_b32 s64, 0xaaaaaaaa
    s_mov_b32 s65, 0xaaaaaaaa
    """)
    e("s_barrier")
    for t in range(2):
        for ks in range(4):
            r = 128 + 16 * t + 4 * ks
            e(f"ds_read_b64_tr_b16 v[{r}:{r+1}], v{220+t} offset:{8192*ks}")
            e(f"ds_read_b64_tr_b16 v[{r+2}:{r+3}], v{220+t} offset:{8192*ks+1024}")
    tagpat(198, 196, 202)
    if cfg.h3sleep: e(f"s_sleep {cfg.h3sleep}")
    stamp(2)
    def datachk():
        for i in range(8):
            e(f"v_xor_b32 v{80+i}, v{80+i}, v{198+(i&3)}")
        e("v_or3_b32 v4, v80, v81, v82\nv_or3_b32 v5, v83, v84, v85\nv_or3_b32 v4, v86, v87, v4\nv_or_b32 v4, v4, v5\nv_and_b32 v4, s66, v4")
    e.label("L_h3")
    e(f"""
    global_load_dwordx4 v[64:67], v48, {WS} sc1
    global_load_dwordx4 v[68:71], v195, {WS} sc1
    global_load_dwordx4 v[80:83], v222, {WS} sc1
    global_load_dwordx4 v[84:87], v192, {WS} sc1
    s_waitcnt vmcnt(2)
    """)
    tagchk(4, [65, 67, 69, 71])
    e("v_cmp_ne_u32 vcc, 0, v4\ns_cbranch_vccz L_h3_st\ns_waitcnt vmcnt(0)")
    if cfg.h3psleep: e(f"s_sleep {cfg.h3psleep}")
    spin_back("L_h3")
    e.label("L_h3_st")
    stamp(3)
    e("""
    v_max_f32 v4, v64, v68
    s_nop 1
    v_max_f32_dpp v4, v4, v4 row_ror:4 row_mask:0xf bank_mask:0xf
    s_nop 1
    v_max_f32_dpp v4, v4, v4 row_ror:8 row_mask:0xf bank_mask:0xf
    s_nop 0
    v_mov_b32 v5, v4
    s_nop 1
    v_permlane16_swap_b32 v4, v5
    v_max_f32 v4, v4, v5
    v_mov_b32 v5, v4
    s_nop 1
    v_permlane32_swap_b32 v4, v5
    v_max_f32 v4, v4, v5
    v_sub_f32 v64, v64, v4
    v_sub_f32 v68, v68, v4
    v_exp_f32 v64, v64
    v_exp_f32 v68, v68
    s_nop 0
    v_mul_f32 v28, v64, v66
    v_fmac_f32 v28, v68, v70
    s_nop 1
    v_add_f32_dpp v28, v28, v28 row_ror:4 row_mask:0xf bank_mask:0xf
    s_nop 1
    v_add_f32_dpp v28, v28, v28 row_ror:8 row_mask:0xf bank_mask:0xf
    s_nop 0
    v_mov_b32 v29, v28
    s_nop 1
    v_permlane16_swap_b32 v28, v29
    v_add_f32 v28, v28, v29
    v_mov_b32 v29, v28
    s_nop 1
    v_permlane32_swap_b32 v28, v29
    v_add_f32 v28, v28, v29
    v_rcp_f32 v28, v28
    v_mul_f32 v64, s67, v64
    v_mul_f32 v68, s67, v68
    v_mul_f32 v64, v64, v28
    v_mul_f32 v68, v68, v28
    s_waitcnt vmcnt(0)
    s_branch L_h3_dchk
    """)
    e.label("L_h3d")
    e(f"""
    global_load_dwordx4 v[80:83], v222, {WS} sc1
    global_load_dwordx4 v[84:87], v192, {WS} sc1
    s_waitcnt vmcnt(0)
    """)
    e.label("L_h3_dchk")
    datachk()
    poll_tail("L_h3d", "L_h3_done", 4)
    stamp(8)
    for i in range(4):
        e(f"v_lshlrev_b32 v{12+2*i}, 16, v{80+i}\nv_and_b32 v{13+2*i}, 0xffff0000, v{80+i}")
    for i in range(4):
        e(f"v_lshlrev_b32 v{20+2*i}, 16, v{84+i}\nv_and_b32 v{21+2*i}, 0xffff0000, v{84+i}")
        e(f"v_pk_mul_f32 v[{12+2*i}:{13+2*i}], v[{12+2*i}:{13+2*i}], v[64:65] op_sel_hi:[1,0]")
    for i in range(4):
        e(f"v_pk_fma_f32 v[{12+2*i}:{13+2*i}], v[{20+2*i}:{21+2*i}], v[68:69], v[{12+2*i}:{13+2*i}] op_sel_hi:[1,0,1]")
    for st in ("row_ror:4", "row_ror:8"):
        for r in range(12, 20):
            e(f"v_add_f32_dpp v{r}, v{r}, v{r} {st} row_mask:0xf bank_mask:0xf")
    for i in range(4):
        e(f"v_permlane16_swap_b32 v{12+i}, v{16+i}")
    for i in range(4):
        e(f"v_add_f32 v{12+i}, v{12+i}, v{16+i}")
    e("""
    s_nop 0
    v_permlane32_swap_b32 v12, v14
    v_permlane32_swap_b32 v13, v15
    s_mov_b32 exec_lo, 0x000f000f
    s_mov_b32 exec_hi, 0x000f000f
    v_add_f32 v12, v12, v14
    v_add_f32 v13, v13, v15
    v_cvt_pk_bf16_f32 v12, v12, v13
    ds_write_b32 v223, v12
    s_mov_b64 exec, -1
    s_waitcnt lgkmcnt(0)
    s_barrier
    """)
    for ks in range(4):
        e(f"ds_read_b128 v[{112+4*ks}:{115+4*ks}], v49 offset:{64*ks}")
    for ks in range(4):
        e(f"s_waitcnt lgkmcnt({3-ks})")
        for t in range(2):
            acc = f"v[{96+4*t}:{99+4*t}]"
            c = "0" if ks == 0 else acc
            r = 128 + 16 * t + 4 * ks
            e(f"v_mfma_f32_16x16x32_bf16 {acc}, v[{r}:{r+3}], v[{112+4*ks}:{115+4*ks}], {c}")
    e("s_mov_b32 exec_lo, 0x00030003\ns_mov_b32 exec_hi, 0x00030003")
    e.nop(6)
    for r in range(4):
        e(f"v_cndmask_b32 v{96+r}, v{96+r}, v{100+r}, s[64:65]")
    e("""
    v_cvt_pk_bf16_f32 v104, v96, v97
    v_cvt_pk_bf16_f32 v106, v98, v99
    """)
    if cfg.fast4: e(f"global_store_dwordx4 v51, v[104:107], {WS}")
    e(f"global_store_dwordx4 v50, v[104:107], {WS} sc1\ns_mov_b64 exec, -1")
    stamp(9)
    e("s_branch L_b_tail")
    e.label("L_bp_prep")
    e(f"""
    v_lshl_add_u32 v58, v2, 2, v62
    v_and_b32 v13, 7, v58
    v_lshlrev_b32 v13, 1, v13
    v_lshlrev_b32 v58, 10, v58
    v_add_u32 v58, v58, v59
    s_and_b32 s66, s{S_W}, 3
    s_lshl_b32 s3, s66, 4
    v_add_u32 v12, s3, v63
    v_xor_b32 v12, v12, v13
    v_lshl_add_u32 v8, v12, 4, v58
    """)
    for tt in range(1, 8):
        e(f"v_xor_b32 v{8+tt}, {32*tt}, v8")
    e(f"""
    v_lshlrev_b32 v16, 4, v1
    v_add_u32 v16, {L_PEX}, v16
    s_mov_b32 s{SRD_A}, s{P_WUV}
    s_mov_b32 s{SRD_A+1}, s{P_WUV+1}
    s_mov_b32 s{SRD_A+2}, 4194304
    s_mov_b32 s{SRD_A+3}, 0x20000
    s_lshl_b32 s3, s{S_W}, 2
    s_and_b32 s3, s3, 8
    v_lshlrev_b32 v19, 1, v2
    v_xor_b32 v19, v19, v3
    v_xor_b32 v19, s3, v19
    v_lshlrev_b32 v19, 4, v19
    v_lshl_add_u32 v19, v2, 13, v19
    s_lshl_b32 s20, s{S_J}, 5
    s_add_u32 s20, s20, s66
    s_lshl_b32 s20, s20, 15
    s_lshl_b32 s21, s{S_H}, 8
    s_add_u32 s20, s20, s21
    s_lshl_b32 s21, s66, 10
    v_lshl_add_u32 v56, v1, 4, s21
    s_lshl_b32 s3, s{S_CH}, 15
    s_lshr_b32 s64, s{S_I}, 2
    s_lshl_b32 s65, s64, 13
    s_add_u32 s3, s3, s65
    s_lshl_b32 s65, s66, 8
    s_add_u32 s3, s3, s65
    s_add_u32 s3, s3, {WS_PART}
    v_and_b32 v17, 7, v3
    v_lshlrev_b32 v17, 10, v17
    v_lshl_add_u32 v17, v2, 4, v17
    v_lshrrev_b32 v20, 3, v3
    v_lshl_add_u32 v17, v20, 6, v17
    v_add_u32 v17, s3, v17
    s_lshl_b32 s64, s64, 10
    s_lshl_b32 s65, s{S_CH}, 12
    s_add_u32 s64, s64, s65
    s_add_u32 s64, s64, {WS_ST}
    v_lshrrev_b32 v18, 2, v1
    v_lshlrev_b32 v18, 7, v18
    v_and_b32 v20, 3, v1
    v_lshl_add_u32 v18, v20, 4, v18
    v_add_u32 v18, s64, v18
    v_mov_b32 v36, 0x3f803f80
    v_mov_b32 v37, 0x3f803f80
    v_mov_b32 v38, 0x3f803f80
    v_mov_b32 v39, 0x3f803f80
    s_waitcnt lgkmcnt(0)
    """)
    mk_tag()
    e("v_and_b32 v50, 3, v1\ns_mov_b32 s67, 0x00010001")
    tagpat(44, 50, 48)
    e(f"v_mov_b32 v53, s{S_TAG}\nv_mov_b32 v55, s{S_TAG}")
    tagpat(57, 2, 61)
    e(f"s_waitcnt vmcnt(0)\nglobal_load_dwordx4 v[40:43], v5, {WS} sc1")
    e("s_barrier")
    stamp(14)
    for half in range(2):
        for tt in range(8):
            for k2 in range(2):
                ks = 2 * half + k2
                for eb in range(2):
                    r = 64 + 16 * tt + 4 * ks + 2 * eb
                    e(f"ds_read_b64_tr_b16 v[{r}:{r+1}], v{8+tt} offset:{32768*k2+16384*eb}")
        if half == 0:
            for tt in range(8):
                e(f"v_add_u32 v{8+tt}, 0x10000, v{8+tt}")
    h2_poll("p")
    for ii in range(8):
        e(f"""
        s_mov_b32 m0, s21
        s_add_u32 s21, s21, 4096
        buffer_load_dwordx4 v19, s[{SRD_A}:{SRD_A+3}], s20 offen{NT} lds
        s_add_u32 s20, s20, {4*4*8192}
        """)
    e("s_barrier\ns_barrier")
    for ks in range(4):
        e(f"ds_read_b128 v[{20+4*ks}:{23+4*ks}], v16 offset:{1024*ks}")
    e(f"""
    v_bfe_u32 v5, v1, 2, 3
    v_lshlrev_b32 v4, 4, v5
    v_add_u32 v4, {L_MX+128}, v4
    v_lshlrev_b32 v5, 2, v5
    s_mov_b32 s64, 0xff00ff00
    s_mov_b32 s65, 0xff00ff00
    """)
    stamp(6)
    for pr in range(4):
        e(f"v_mov_b32 v{37+0}, v{37}") if False else None
    def epi(sg):
        g = 64 + 64 * sg
        out = []
        for t in range(4):
            a0 = 192 + 16 * sg + 4 * t
            out.append(f"v_cvt_pk_bf16_f32 v{44+2*t}, v{a0}, v{a0+1}")
            out.append(f"v_cvt_pk_bf16_f32 v{45+2*t}, v{a0+2}, v{a0+3}")
        for i in range(4):
            out.append(f"v_cndmask_b32 v{g+i}, v{44+i}, v{48+i}, s[64:65]")
        for i in range(4):
            out.append(f"v_and_or_b32 v{g+i}, v{g+i}, s66, v{57+i}")
        out.append(f"global_store_dwordx4 v17, v[{g}:{g+3}], {WS} offset:{128*sg} sc1")
        return out
    e("s_mov_b32 s66, 0xfffefffe")
    ep0 = epi(0)
    for sg in range(2):
        k = 0
        for ks in range(4):
            for t in range(4):
                tt = 4 * sg + t
                acc = f"v[{192+4*tt}:{195+4*tt}]"
                c = "0" if ks == 0 else acc
                r = 64 + 16 * tt + 4 * ks
                if sg == 0 and t == 0: e(f"s_waitcnt lgkmcnt({3-ks})")
                e(f"v_mfma_f32_16x16x32_bf16 {acc}, v[{r}:{r+3}], v[{20+4*ks}:{23+4*ks}], {c}")
                k += 1
                if sg == 1 and k >= 8:
                    for _ in range(2):
                        if ep0: e(ep0.pop(0))
        if sg == 1:
            while ep0: e(ep0.pop(0))
    e(f"s_cmp_eq_u32 s{S_W}, 4\ns_cbranch_scc0 L_b_nol")
    e("ds_read_b32 v52, v4")
    for ks in range(4):
        c = "0" if ks == 0 else "v[40:43]"
        e(f"v_mfma_f32_16x16x32_bf16 v[40:43], v[36:39], v[{20+4*ks}:{23+4*ks}], {c}")
    e.label("L_b_nol")
    e.nop(6)
    for ins in epi(1): e(ins)
    e(f"""
    s_cmp_eq_u32 s{S_W}, 4
    s_cbranch_scc0 L_b_nostat
    ds_bpermute_b32 v54, v5, v40
    s_mov_b64 exec, 0xffffffff
    s_waitcnt lgkmcnt(0)
    global_store_dwordx4 v18, v[52:55], {WS} sc1
    s_mov_b64 exec, -1
    """)
    stamp(7)
    e("s_waitcnt vmcnt(3)\ns_branch L_b_st2")
    e.label("L_b_nostat")
    stamp(7)
    e("s_waitcnt vmcnt(2)")
    e.label("L_b_st2")
    e("s_barrier\ns_barrier")
    e.label("L_b_tail")
    e("s_barrier")
    s7_loads()
    e("s_waitcnt vmcnt(0)")
    s7_prep()
    if cfg.b5sleep: e(f"s_sleep {cfg.b5sleep}")

    e.label("L_S7")
    e(f"s_cmp_lt_u32 s{S_W}, 5\ns_cbranch_scc0 L_s7_bar")
    e("s_mov_b32 s66, 0x00010001")
    e.label("L_h5")
    e(f"""
    global_load_dwordx4 v[40:43], v244, {WS} sc1
    global_load_dwordx4 v[44:47], v245, {WS} sc1
    s_waitcnt vmcnt(0)
    """)
    for i in range(8):
        e(f"v_xor_b32 v{40+i}, v{40+i}, v{10+(i&3)}")
    e("v_or3_b32 v56, v40, v41, v42\nv_or3_b32 v57, v43, v44, v45\nv_or3_b32 v56, v46, v47, v56\nv_or_b32 v56, v56, v57\nv_and_b32 v56, s66, v56")
    poll_tail("L_h5", "L_h5_done", 56, cfg.h5sleep)
    stamp(12)
    for i in range(4):
        e(f"v_lshlrev_b32 v{80+2*i}, 16, v{40+i}\nv_and_b32 v{81+2*i}, 0xffff0000, v{40+i}")
    for i in range(4):
        e(f"v_lshlrev_b32 v{88+2*i}, 16, v{44+i}\nv_and_b32 v{89+2*i}, 0xffff0000, v{44+i}")
        e(f"v_pk_add_f32 v[{80+2*i}:{81+2*i}], v[{80+2*i}:{81+2*i}], v[{88+2*i}:{89+2*i}]")
    e("s_nop 0")
    for i in range(4): e(f"v_permlane16_swap_b32 v{80+i}, v{84+i}")
    for i in range(4): e(f"v_add_f32 v{80+i}, v{80+i}, v{84+i}")
    e(f"""
    s_nop 0
    v_permlane32_swap_b32 v80, v82
    v_permlane32_swap_b32 v81, v83
    v_add_f32 v50, v80, v82
    v_add_f32 v51, v81, v83
    v_pk_add_f32 v[50:51], v[50:51], v[58:59]
    ds_write_b64 v248, v[50:51]
    v_add_f32 v52, v50, v51
    v_mul_f32 v53, v50, v50
    v_fmac_f32 v53, v51, v51
    """)
    dpp_reduce([52, 53])
    e(f"""
    s_mov_b32 exec_lo, 0
    s_mov_b32 exec_hi, 0x80000000
    ds_write_b64 v68, v[52:53]
    s_mov_b64 exec, -1
    """)
    e.label("L_s7_bar")
    e(f"""
    s_waitcnt lgkmcnt(0)
    s_barrier
    """)
    if cfg.s7stamps: stamp(1)
    e(f"""
    s_cmp_lt_u32 s2, {216 if cfg.outmap else 214}
    s_cbranch_scc0 L_fin
    ds_read_b128 v[40:43], v62
    ds_read_b128 v[44:47], v62 offset:16
    ds_read_b64 v[48:49], v62 offset:32
    ds_read_b32 v50, v63
    ds_read_b32 v52, v63 offset:4
    ds_read_b32 v54, v63 offset:8
    s_waitcnt lgkmcnt(3)
    v_pk_add_f32 v[40:41], v[40:41], v[42:43]
    v_pk_add_f32 v[44:45], v[44:45], v[46:47]
    v_pk_add_f32 v[40:41], v[40:41], v[48:49]
    v_pk_add_f32 v[40:41], v[40:41], v[44:45]
    v_pk_mul_f32 v[40:41], v[40:41], v[60:61] op_sel_hi:[1,0]
    v_fma_f32 v41, -v40, v40, v41
    v_max_f32 v41, 0, v41
    v_fma_f32 v42, v41, v61, v65
    s_waitcnt lgkmcnt(0)
    v_rsq_f32 v42, v42
    v_sub_f32 v70, v50, v40
    v_sub_f32 v72, v52, v40
    v_sub_f32 v74, v54, v40
    v_mul_f32 v70, v70, v42
    v_mul_f32 v72, v72, v42
    v_mul_f32 v74, v74, v42
    """)
    if cfg.s7stamps: stamp(2)
    combos = [(r, o) for o in range(3) for r in range(2)]
    for c, (r, o) in enumerate(combos):
        e(f"v_pk_fma_f32 v[{80+2*c}:{81+2*c}], v[{70+2*o}:{71+2*o}], v[{232+2*r}:{233+2*r}], v[{236+2*r}:{237+2*r}] op_sel_hi:[0,1,1]")
    for c in range(6):
        e(f"v_pk_mul_f32 v[{92+2*c}:{93+2*c}], v[{80+2*c}:{81+2*c}], v[{80+2*c}:{81+2*c}]")
    for c in range(6):
        e(f"v_pk_fma_f32 v[{92+2*c}:{93+2*c}], v[{92+2*c}:{93+2*c}], v[66:67], v[64:65] op_sel_hi:[1,0,0]")
    for c in range(6):
        e(f"v_pk_mul_f32 v[{92+2*c}:{93+2*c}], v[{92+2*c}:{93+2*c}], v[{80+2*c}:{81+2*c}]")
    for c in range(12):
        e(f"v_exp_f32 v{92+c}, v{92+c}")
    for c in range(6):
        e(f"v_pk_add_f32 v[{92+2*c}:{93+2*c}], v[{92+2*c}:{93+2*c}], 1.0 op_sel_hi:[1,0]")
    for c in range(12):
        e(f"v_rcp_f32 v{92+c}, v{92+c}")
    for c in range(6):
        e(f"v_pk_mul_f32 v[{80+2*c}:{81+2*c}], v[{80+2*c}:{81+2*c}], v[{92+2*c}:{93+2*c}]")
    for o in range(3):
        e(f"v_pk_mul_f32 v[{104+2*o}:{105+2*o}], v[{80+4*o}:{81+4*o}], v[240:241]")
    for o in range(3):
        e(f"v_pk_fma_f32 v[{104+2*o}:{105+2*o}], v[{82+4*o}:{83+4*o}], v[242:243], v[{104+2*o}:{105+2*o}]")
    if cfg.s7stamps: stamp(3)
    e("v_add_f32 v110, v104, v105\nv_add_f32 v111, v106, v107\nv_add_f32 v112, v108, v109")
    dpp_reduce([110, 111, 112])
    e(f"""
    s_mov_b32 exec_lo, 0
    s_mov_b32 exec_hi, 0x80000000
    ds_write_b128 v69, v[110:113]
    s_mov_b64 exec, -1
    {"s_mul_i32 s3, s5, 80" if cfg.outmap else "s_mov_b32 s3, 560"}
    s_add_u32 s3, s3, 80
    v_cmp_gt_u32 vcc, s3, v8
    v_lshlrev_b32 v8, 1, v8
    s_waitcnt lgkmcnt(0)
    s_barrier
    """)
    if cfg.s7stamps: stamp(4)
    e(f"""
    s_cmp_eq_u32 s{S_W}, 0
    s_cbranch_scc0 L_fin
    s_and_b64 vcc, vcc, 7
    s_and_saveexec_b64 s[64:65], vcc
    s_cbranch_execz L_fin0
    """)
    for w in range(8):
        e(f"ds_read_b32 v{40+w}, v6 offset:{16*w}")
    e(f"""
    ds_read_b32 v48, v7
    s_waitcnt lgkmcnt(0)
    v_add_f32 v40, v40, v41
    v_add_f32 v42, v42, v43
    v_add_f32 v44, v44, v45
    v_add_f32 v46, v46, v47
    v_add_f32 v48, v48, v9
    v_add_f32 v40, v40, v42
    v_add_f32 v44, v44, v46
    v_add_f32 v40, v40, v48
    v_add_f32 v40, v40, v44
    v_cvt_pk_bf16_f32 v40, v40, v40
    global_store_short v8, v40, s[{P_OUT}:{P_OUT+1}]
    """)
    e.label("L_fin0")
    e("s_mov_b64 exec, s[64:65]")
    e.label("L_fin")
    stamp(13)
    e(f"""
    s_cmp_eq_u32 s2, {0 if not cfg.noepoch else 100000}
    s_cbranch_scc0 L_noepoch
    s_cmp_eq_u32 s{S_W}, 0
    s_cbranch_scc0 L_noepoch
    v_lshlrev_b32 v6, 2, v1
    v_mov_b32 v7, s{S_TAG}
    s_mov_b64 exec, 0xffff
    global_store_dword v6, v7, {WS} sc1
    s_mov_b64 exec, -1
    """)
    e.label("L_noepoch")
    if cfg.stamps:
        e(f"""
        s_waitcnt lgkmcnt(0)
        s_lshl_b32 s3, s2, 3
        s_add_u32 s3, s3, s{S_W}
        s_lshl_b32 s3, s3, 6
        s_add_u32 s3, s3, {WS_DBG}
        v_mov_b32 v6, s3
        s_mov_b64 exec, 1
        """)
        for q in range(4):
            for k in range(4):
                e(f"v_mov_b32 v{8+k}, s{S_STAMP+2*min(4*q+k,14)}")
            e(f"global_store_dwordx4 v6, v[8:11], {WS} offset:{16*q}")
            e.nop(2)
        e("s_mov_b64 exec, -1")
    e.label("L_exit")
    e("s_endpgm")
    e.label("L_fail")
    if cfg.stamps: e("s_mov_b64 exec, -1\ns_branch L_noepoch")
    e("s_endpgm")
    e.label("L_end")
    return e

def render(cfg):
    e = gen(cfg)
    body = e.text()
    hdr = open("cdna_kernels/" + NAME[:-7] + ".s.ref").read().split("; Override launch geometry")[0]
    out = hdr + f"; @launch grid=(256,1,1) block=(512,1,1) lds={LDS_BYTES}\n"
    out += f""".amdgcn_target "amdgcn-amd-amdhsa--gfx950"
.text
.globl {NAME}
.p2align 8
.type {NAME},@function
{NAME}:
{body}.section .rodata,"a"
.p2align 6
.amdhsa_kernel {NAME}
  .amdhsa_next_free_vgpr 256
  .amdhsa_next_free_sgpr 102
  .amdhsa_accum_offset 256
  .amdhsa_group_segment_fixed_size 0
  .amdhsa_kernarg_size 112
  .amdhsa_user_sgpr_count 2
  .amdhsa_user_sgpr_kernarg_segment_ptr 1
  .amdhsa_system_sgpr_workgroup_id_x 1
.end_amdhsa_kernel
"""
    return out, body

if __name__ == "__main__":
    cfg = Cfg()
    outp = sys.argv[1] if len(sys.argv) > 1 else "cdna_kernels/" + NAME[:-7] + ".s"
    for a in sys.argv[2:]:
        k, v = a.split("=")
        setattr(cfg, k, int(v))
    out, body = render(cfg)
    probs = check_hazards(body) + check_kernarg_race(body)
    for p in probs: print("HAZARD", p)
    open(outp, "w").write(out)
    print("wrote", outp, len(out), "bytes;", len(body.splitlines()), "lines")
```

```python
import sys, struct
from asmlib import Emit, check_hazards, check_kernarg_race

NAME = "sequential_preLN__compressed_kv_cla__mixer_token_mlp__decode_kernel"

WS_Q1, WS_Q1F, WS_QA, WS_CTX, WS_OP, WS_CTXF, WS_ST, WS_PART, WS_DBG = 0x10000, 0x20000, 0x50000, 0x60000, 0x70000, 0x90000, 0xC0000, 0x100000, 0x400000
L_CKV = 0
L_WO = 0
L_WQ = 32768
L_WUK = 73728
L_QAS = 131072
QAS_STRIDE = 1056
L_PEX = L_QAS + 8 * QAS_STRIDE
L_MX = L_PEX + 4096
L_LNS = 143872
L_QP = 145152
QP_STRIDE = 288
L_CTXS = 146304
L_BNC = 146560
L_ORED = 147584
L_HS = 149632
L_ST7 = 152192
L_YRED = 152256
LDS_BYTES = 152384

S_W, S_X, S_I, S_ISB = 4, 5, 6, 7
P_X, P_CKV, P_WQ, P_WUK, P_WUV, P_WO, P_W1, P_B1, P_W2, P_B2, P_OUT, P_DBG, P_WS = 8, 10, 12, 14, 16, 18, 22, 24, 26, 28, 30, 32, 34
S_TAG, S_H, S_J, S_CH = 36, 37, 38, 39
SRD_0, SRD_A, SRD_WO, SRD_W1, SRD_B1, SRD_W2 = 40, 44, 48, 52, 56, 60
S_SPIN = 100
S_STAMP = 70

def F32(x): return "0x%08x" % struct.unpack("<I", struct.pack("<f", x))[0]
WS = f"s[{P_WS}:{P_WS+1}]"

LSB_DEBIAS = 1.0 + 0.5 * 2.0**-7 * 0.7213475

class Cfg:
    stamps = 0
    nt = 1
    spin = 1 << 17
    h3sleep = 16
    fast1 = 0
    fast4 = 0
    codepf = 16
    bdelay = 0
    exp_nob = 0
    s7warm = 0
    touchslow = 0
    spreadk = 0
    spreadq = 0
    earlyepoch = 1
    tlbw = 0
    tlbo = 0
    tlbk = 0
    selftouch = 0
    lsb3 = 1
    ukearly = 0
    outmap = 1
    noepoch = 0
    s7stamps = 0
    touch = 0
    uknt = 1
    tsleep = 0
    planeorder = 1
    hperm = 0
    h3psleep = 0
    b5sleep = 44
    f5sleep = 16
    n5sleep = 44
    ckvnt = 1
    ukbar = 1
    bsleep = 8
    uvpf = 1
    h5sleep = 0
    h4sleep = 0
    h2sleep = 0
    exp_nowuv = 0

def gen(cfg):
    e = Emit()
    NT = " nt" if cfg.nt else ""
    def stamp(k):
        if cfg.stamps:
            e(f"s_memrealtime s[{S_STAMP+2*k}:{S_STAMP+2*k+1}]")
    def dpp_reduce(regs, op="v_add_f32"):
        steps = ["row_shr:1 row_mask:0xf bank_mask:0xf bound_ctrl:0", "row_shr:2 row_mask:0xf bank_mask:0xf bound_ctrl:0",
                 "row_shr:4 row_mask:0xf bank_mask:0xf bound_ctrl:0", "row_shr:8 row_mask:0xf bank_mask:0xf bound_ctrl:0",
                 "row_bcast:15 row_mask:0xa bank_mask:0xf", "row_bcast:31 row_mask:0xc bank_mask:0xf"]
        pad = max(0, 2 - (len(regs) - 1))
        e.nop(2)
        for k, st in enumerate(steps):
            for r in regs:
                e(f"{op}_dpp v{r}, v{r}, v{r} {st}")
            if k < len(steps) - 1 and pad: e.nop(pad)
    def tagchk(acc, tags):
        for k, t in enumerate(tags):
            if k == 0:
                e(f"v_xor_b32 v{acc}, s{S_TAG}, v{t}")
            else:
                e(f"v_bitop3_b32 v{acc}, v{acc}, v{t}, s{S_TAG} bitop3:0xf6")
    def spin_back(lbl_loop):
        e(f"s_sub_u32 s{S_SPIN}, s{S_SPIN}, 1")
        e(f"s_cbranch_scc0 {lbl_loop}")
        e("s_branch L_fail")
    def poll_tail(lbl_loop, lbl_done, acc, sleep=0):
        e(f"v_cmp_ne_u32 vcc, 0, v{acc}")
        e(f"s_cbranch_vccz {lbl_done}")
        if sleep: e(f"s_sleep {sleep}")
        spin_back(lbl_loop)
        e.label(lbl_done)
    def tr_common():
        e("""
        v_bfe_u32 v62, v1, 2, 2
        v_bfe_u32 v63, v1, 1, 1
        v_and_b32 v59, 1, v1
        v_lshlrev_b32 v59, 3, v59
        """)
    def tr256_addr(dst, tmp):
        e(f"""
        v_and_b32 v{dst}, 1, v2
        v_lshl_add_u32 v{dst}, v{dst}, 2, v62
        v_lshlrev_b32 v{dst}, 1, v{dst}
        s_lshl_b32 s3, s{S_W}, 1
        v_add_u32 v{tmp}, s3, v63
        v_xor_b32 v{dst}, v{dst}, v{tmp}
        v_lshl_add_u32 v{dst}, v{dst}, 4, v59
        v_lshl_add_u32 v{tmp}, v2, 3, v62
        v_lshl_add_u32 v{dst}, v{tmp}, 8, v{dst}
        """)
    def tagpat(dst, vsel, tmp):
        e(f"v_lshlrev_b32 v{tmp}, 3, v{vsel}")
        e(f"v_lshrrev_b32 v{tmp}, v{tmp}, s{S_TAG}") if False else e(f"v_mov_b32 v{tmp+1}, s{S_TAG}\nv_lshrrev_b32 v{tmp}, v{tmp}, v{tmp+1}")
        for i in range(4):
            e(f"v_bfe_u32 v{dst+i}, v{tmp}, {2*i}, 1")
            e(f"v_bfe_u32 v{tmp+1}, v{tmp}, {2*i+1}, 1")
            e(f"v_lshl_or_b32 v{dst+i}, v{tmp+1}, 16, v{dst+i}")
    def mk_tag():
        e(f"s_mul_i32 s{S_TAG}, s{S_TAG}, 1664525\ns_add_u32 s{S_TAG}, s{S_TAG}, 1013904223")
    def s7_loads():
        e(f"""
        s_mov_b32 s{SRD_W1}, s{P_W1}
        s_mov_b32 s{SRD_W1+1}, s{P_W1+1}
        s_mov_b32 s{SRD_W1+2}, 3456
        s_mov_b32 s{SRD_W1+3}, 0x20000
        s_mov_b32 s{SRD_B1}, s{P_B1}
        s_mov_b32 s{SRD_B1+1}, s{P_B1+1}
        s_mov_b32 s{SRD_B1+2}, 3456
        s_mov_b32 s{SRD_B1+3}, 0x20000
        s_mov_b32 s{SRD_W2}, s{P_W2}
        s_mov_b32 s{SRD_W2+1}, s{P_W2+1}
        s_mov_b32 s{SRD_W2+2}, 3456
        s_mov_b32 s{SRD_W2+3}, 0x20000
        s_lshl_b32 s3, s{S_W}, 8
        v_lshl_add_u32 v4, v1, 2, s3
        buffer_load_dword v224, v4, s[{SRD_W1}:{SRD_W1+3}], 0 offen
        buffer_load_dword v225, v4, s[{SRD_W1}:{SRD_W1+3}], 0 offen offset:2048
        buffer_load_dword v226, v4, s[{SRD_B1}:{SRD_B1+3}], 0 offen
        buffer_load_dword v227, v4, s[{SRD_B1}:{SRD_B1+3}], 0 offen offset:2048
        buffer_load_dword v228, v4, s[{SRD_W2}:{SRD_W2+3}], 0 offen
        buffer_load_dword v229, v4, s[{SRD_W2}:{SRD_W2+3}], 0 offen offset:2048
        v_mov_b32 v4, 0
        global_load_ushort v231, v4, s[{P_B2}:{P_B2+1}]
        {"global_load_dword v138, v4, s[%d:%d]" % (P_OUT, P_OUT+1) if cfg.tlbo else ""}
        s_min_u32 s3, s{S_W}, 4
        s_lshl_b32 s3, s3, 8
        v_lshlrev_b32 v4, 4, v3
        v_and_b32 v230, 1, v2
        v_lshl_add_u32 v4, v230, 3, v4
        v_lshrrev_b32 v230, 1, v2
        v_lshl_add_u32 v4, v230, 2, v4
        v_add_u32 v4, s3, v4
        global_load_dword v230, v4, s[{P_X}:{P_X+1}]
        """)
    OUTIDX = ("s_lshr_b32 s101, s2, 3\ns_mul_i32 s101, s101, 3\ns_mul_i32 s3, s5, 80\ns_add_u32 s101, s101, s3" if cfg.outmap else "s_mul_i32 s101, s2, 3")
    def s7_prep():
        for k, (raw, dst) in enumerate([(224, 232), (225, 234), (226, 236), (227, 238), (228, 240), (229, 242)]):
            e(f"v_lshlrev_b32 v{dst}, 16, v{raw}\nv_and_b32 v{dst+1}, 0xffff0000, v{raw}")
        e(f"""
        v_mul_u32_u24 v244, 1280, v2
        v_lshl_add_u32 v244, v3, 4, v244
        s_lshl_b32 s3, s{S_W}, 8
        s_add_u32 s64, s3, {WS_OP}
        v_add_u32 v244, s64, v244
        v_add_u32 v245, 5120, v244
        s_lshl_b32 s3, s{S_W}, 9
        s_add_u32 s3, s3, {L_HS}
        v_lshlrev_b32 v248, 5, v3
        v_and_b32 v57, 1, v2
        v_lshl_add_u32 v248, v57, 4, v248
        v_lshrrev_b32 v57, 1, v2
        v_lshl_add_u32 v248, v57, 3, v248
        v_add_u32 v248, s3, v248
        v_lshlrev_b32 v58, 16, v230
        v_and_b32 v59, 0xffff0000, v230
        v_mov_b32 v60, {F32(1.0/640)}
        v_mov_b32 v61, {F32(1.0 + 1e-5)}
        v_mov_b32 v65, {F32(1e-10)}
        v_mov_b32 v64, {F32(-2.0*0.7978845608028654*1.4426950408889634)}
        v_mov_b32 v66, {F32(-2.0*0.7978845608028654*1.4426950408889634*0.044715)}
        v_mov_b32 v62, {L_ST7}
        {OUTIDX}
        s_lshl_b32 s3, s101, 2
        s_add_u32 s3, s3, {L_HS}
        v_mov_b32 v63, s3
        s_lshl_b32 s3, s{S_W}, 3
        s_add_u32 s3, s3, {L_ST7}
        v_mov_b32 v68, s3
        s_lshl_b32 s3, s{S_W}, 4
        s_add_u32 s3, s3, {L_YRED}
        v_mov_b32 v69, s3
        v_mov_b32 v113, 0
        v_add_u32 v8, s101, v1
        v_lshlrev_b32 v6, 2, v1
        v_add_u32 v6, {L_YRED}, v6
        v_lshlrev_b32 v7, 2, v8
        v_add_u32 v7, {L_HS}, v7
        v_lshlrev_b32 v9, 16, v231
        """)
        e("v_and_b32 v57, 3, v1")
        tagpat(10, 57, 14)
        if cfg.s7warm:
            lbl = f"L_wret{len(e.lines)}"
            e(f"s_mov_b32 s7, 1\ns_getpc_b64 s[68:69]\ns_add_u32 s68, s68, 12\ns_addc_u32 s69, s69, 0\ns_branch L_s7_body")
            e(f"v_lshlrev_b32 v58, 16, v230\nv_and_b32 v59, 0xffff0000, v230")

    def uk_dma(bar):
        e(f"""
        s_mov_b32 s{SRD_A}, s{P_WUK}
        s_mov_b32 s{SRD_A+1}, s{P_WUK+1}
        s_mov_b32 s{SRD_A+2}, 4194304
        s_mov_b32 s{SRD_A+3}, 0x20000
        s_and_b32 s66, s{S_W}, 1
        s_lshl_b32 s66, s66, 3
        v_lshlrev_b32 v7, 1, v2
        v_xor_b32 v7, v7, v3
        v_xor_b32 v7, s66, v7
        v_lshlrev_b32 v7, 4, v7
        v_lshl_add_u32 v7, v2, 13, v7
        s_lshl_b32 s64, s{S_J}, 5
        s_add_u32 s64, s64, s{S_W}
        s_lshl_b32 s64, s64, 15
        s_lshl_b32 s65, s{S_H}, 8
        s_add_u32 s64, s64, s65
        s_lshl_b32 s67, s{S_W}, 10
        s_add_u32 s67, s67, {L_WUK}
        """)
        if bar: e("s_barrier")
        for ii in range(8):
            e(f"""
            s_mov_b32 m0, s67
            s_add_u32 s67, s67, 4096
            buffer_load_dwordx4 v7, s[{SRD_A}:{SRD_A+3}], s64 offen{NT} lds
            s_add_u32 s64, s64, {4*4*8192}
            """)

    e(f"""
    s_cmp_ge_u32 s2, 256
    s_cbranch_scc1 L_exit
    s_load_dwordx16 s[8:23], s[0:1], 0
    s_load_dwordx4 s[32:35], s[0:1], 96
    s_load_dwordx8 s[24:31], s[0:1], 64
    """)
    if cfg.codepf:
        e(f"""
        s_cmp_lt_u32 s2, {cfg.codepf}
        s_cbranch_scc0 L_nopf
        s_getpc_b64 s[64:65]
        """)
        e.label("L_pc")
        e(f"""
        s_and_b32 s64, s64, 0xffffff00
        v_lshlrev_b32 v203, 7, v0
        v_min_u32 v203, L_end-L_pc-4, v203
        v_mov_b32 v201, s65
        v_add_co_u32 v200, vcc, s64, v203
        s_nop 1
        v_addc_co_u32 v201, vcc, 0, v201, vcc
        global_load_dword v202, v[200:201], off
        """)
        e.label("L_nopf")
    if cfg.stamps:
        e(f"s_memrealtime s[{S_STAMP}:{S_STAMP+1}]")
        for k in range(1, 15): e(f"s_mov_b32 s{S_STAMP+2*k}, 0")
    e(f"""
    v_and_b32 v1, 63, v0
    v_lshrrev_b32 v4, 6, v0
    v_lshrrev_b32 v2, 4, v1
    v_readfirstlane_b32 s{S_W}, v4
    v_and_b32 v3, 15, v1
    s_and_b32 s{S_X}, s2, 7
    s_bfe_u32 s{S_I}, s2, 0x40003
    s_lshr_b32 s{S_H}, s{S_I}, 2
    s_xor_b32 s{S_H}, s{S_H}, {cfg.hperm}
    s_lshl_b32 s3, s{S_X}, 2
    s_add_u32 s{S_H}, s{S_H}, s3
    s_and_b32 s{S_J}, s{S_I}, 3
    s_mov_b32 s{SRD_0+3}, 0x20000
    s_mov_b32 s{S_SPIN}, {cfg.spin}
    s_cmp_ge_u32 s2, 128
    s_cbranch_scc1 L_B0
    """)
    e(f"""
    s_lshl_b32 s66, s{S_W}, 2
    s_and_b32 s66, s66, 8
    s_mul_i32 s64, s{S_J}, 40
    s_add_u32 s64, s64, s{S_W}
    s_lshl_b32 s64, s64, 15
    s_lshl_b32 s65, s{S_H}, 8
    s_add_u32 s64, s64, s65
    s_lshl_b32 s67, s{S_W}, 10
    s_add_u32 s67, s67, {L_WQ}
    s_mov_b32 s{SRD_0+2}, 5242880
    v_lshlrev_b32 v7, 1, v2
    v_xor_b32 v7, v7, v3
    v_xor_b32 v7, s66, v7
    v_lshlrev_b32 v7, 4, v7
    v_lshl_add_u32 v7, v2, 13, v7
    v_lshlrev_b32 v6, 2, v1
    s_cmp_eq_u32 s{S_W}, 0
    s_waitcnt lgkmcnt(0)
    s_mov_b32 s{SRD_0}, s{P_WQ}
    s_mov_b32 s{SRD_0+1}, s{P_WQ+1}
    s_cbranch_scc0 L_f_nox
    """)
    for k in range(5):
        e(f"global_load_dword v{8+k}, v6, s[{P_X}:{P_X+1}] offset:{256*k}")
    e.label("L_f_nox")
    for ii in range(5):
        e(f"""
        s_mov_b32 m0, s67
        s_add_u32 s67, s67, 8192
        buffer_load_dwordx4 v7, s[{SRD_0}:{SRD_0+3}], s64 offen{NT} lds
        s_add_u32 s64, s64, {8*4*8192}
        """)
    if cfg.tlbk:
        e(f"""
        s_lshl_b32 s3, s{S_J}, 7
        s_lshl_b32 s64, s{S_W}, 4
        s_add_u32 s3, s3, s64
        s_lshl_b32 s3, s3, 13
        s_lshl_b32 s64, s{S_H}, 8
        s_add_u32 s3, s3, s64
        v_mov_b32 v4, s3
        s_mov_b64 exec, 1
        global_load_dword v200, v4, s[{P_WUK}:{P_WUK+1}] nt
        s_mov_b64 exec, -1
        """)
    if cfg.selftouch:
        e(f"""
        v_bfe_u32 v4, v1, 1, 4
        s_lshl_b32 s3, s{S_J}, 7
        s_lshl_b32 s64, s{S_W}, 4
        s_add_u32 s3, s3, s64
        v_add_u32 v4, s3, v4
        v_lshlrev_b32 v4, 13, v4
        v_and_b32 v5, 1, v1
        v_lshl_add_u32 v4, v5, 7, v4
        s_lshl_b32 s3, s{S_H}, 8
        v_add_u32 v4, s3, v4
        s_mov_b64 exec, 0xffffffff
        global_load_dword v200, v4, s[{P_WUK}:{P_WUK+1}] nt
        s_mov_b64 exec, -1
        """)
    if cfg.ukearly:
        e("s_barrier")
        e(f"s_cmp_lt_u32 s{S_W}, 4\ns_cbranch_scc0 L_f_nouk")
        uk_dma(False)
        e.label("L_f_nouk")
    e(f"""
    s_load_dword s{S_TAG}, {WS}, 0
    s_branch L_F1
    """)
    e.label("L_B0")
    if cfg.exp_nob: e("s_endpgm")
    e(f"""
    s_lshl_b32 s3, s{S_W}, 1
    v_xor_b32 v7, s3, v1
    v_lshlrev_b32 v7, 4, v7
    s_lshl_b32 s{S_CH}, s{S_X}, 2
    s_add_u32 s{S_CH}, s{S_CH}, s{S_J}
    s_lshl_b32 s66, s{S_CH}, 17
    s_and_b32 s67, s{S_I}, 12
    s_lshl_b32 s67, s67, 13
    s_lshl_b32 s65, s{S_W}, 10
    s_add_u32 s67, s67, s65
    s_mov_b32 s{SRD_0+2}, 4194304
    s_mov_b32 s68, 15
    v_bfe_u32 v4, v1, 1, 4
    s_lshl_b32 s3, s{S_J}, 7
    s_lshl_b32 s64, s{S_W}, 4
    s_add_u32 s3, s3, s64
    v_add_u32 v4, s3, v4
    v_lshlrev_b32 v4, 13, v4
    v_and_b32 v5, 1, v1
    v_lshl_add_u32 v4, v5, 7, v4
    s_lshl_b32 s3, s{S_H}, 8
    v_add_u32 v4, s3, v4
    s_waitcnt lgkmcnt(0)
    s_mov_b32 s{SRD_0}, s{P_CKV}
    s_mov_b32 s{SRD_0+1}, s{P_CKV+1}
    """)
    if cfg.tlbw:
        e(f"""
        s_cmp_eq_u32 s{S_I}, 0
        s_cselect_b32 s3, s{S_W}, 0
        s_cmp_eq_u32 s3, 7
        s_cbranch_scc0 L_notlb
        s_mov_b64 exec, 1
        v_mov_b32 v8, 0
        v_mov_b32 v9, 0x200000
        v_mov_b32 v10, 0x3ffffc
        v_mov_b32 v11, 0x4ffffc
        global_load_dword v204, v8, s[{P_WUK}:{P_WUK+1}] nt
        global_load_dword v204, v9, s[{P_WUK}:{P_WUK+1}] nt
        global_load_dword v204, v10, s[{P_WUK}:{P_WUK+1}] nt
        global_load_dword v204, v8, s[{P_WUV}:{P_WUV+1}] nt
        global_load_dword v204, v9, s[{P_WUV}:{P_WUV+1}] nt
        global_load_dword v204, v10, s[{P_WUV}:{P_WUV+1}] nt
        global_load_dword v204, v8, s[{P_WO}:{P_WO+1}] nt
        global_load_dword v204, v9, s[{P_WO}:{P_WO+1}] nt
        global_load_dword v204, v10, s[{P_WO}:{P_WO+1}] nt
        global_load_dword v204, v11, s[{P_WO}:{P_WO+1}] nt
        global_load_dword v204, v8, s[{P_W1}:{P_W1+1}]
        global_load_dword v204, v8, s[{P_B1}:{P_B1+1}]
        global_load_dword v204, v8, s[{P_W2}:{P_W2+1}]
        global_load_ushort v204, v8, s[{P_B2}:{P_B2+1}]
        global_load_dword v204, v8, s[{P_OUT}:{P_OUT+1}]
        s_mov_b64 exec, -1
        """)
        e.label("L_notlb")
    if cfg.tsleep: e(f"s_sleep {cfg.tsleep}")
    if cfg.spreadq or cfg.spreadk:
        e(f"""
        s_lshl_b32 s3, s{S_X}, 2
        s_add_u32 s3, s3, 1
        s_lshl_b32 s3, s3, 8
        v_lshrrev_b32 v8, 1, v1
        v_and_b32 v9, 1, v1
        v_lshlrev_b32 v9, 7, v9
        v_add_u32 v9, s3, v9
        """)
        if cfg.spreadq:
            e(f"""
            s_mul_i32 s3, s{S_I}, 40
            s_mul_i32 s64, s{S_W}, 5
            s_add_u32 s3, s3, s64
            v_add_u32 v10, s3, v8
            v_lshl_add_u32 v10, v10, 13, v9
            s_mov_b64 exec, 0x3ff
            global_load_dword v200, v10, s[{P_WQ}:{P_WQ+1}] nt
            s_mov_b64 exec, -1
            """)
        if cfg.spreadk:
            e(f"""
            s_lshl_b32 s3, s{S_I}, 5
            s_lshl_b32 s64, s{S_W}, 2
            s_add_u32 s3, s3, s64
            v_add_u32 v10, s3, v8
            v_lshl_add_u32 v10, v10, 13, v9
            s_mov_b64 exec, 0xff
            global_load_dword v200, v10, s[{P_WUK}:{P_WUK+1}] nt
            s_mov_b64 exec, -1
            """)
    if cfg.touchslow:
        e(f"""
        s_and_b32 s3, s{S_H}, 3
        s_cmp_eq_u32 s3, {cfg.touchslow - 1}
        s_cbranch_scc0 L_notouch
        s_mov_b64 exec, 0xffffffff
        global_load_dword v200, v4, s[{P_WUK}:{P_WUK+1}] nt
        s_mov_b64 exec, -1
        """)
        e.label("L_notouch")
    if cfg.touch: e(f"""
    s_mov_b64 exec, 0xffffffff
    global_load_dword v200, v4, s[{P_WUK}:{P_WUK+1}]{" nt" if cfg.uknt else ""}
    s_mov_b64 exec, -1
    """)
    if cfg.bdelay: e(f"s_load_dword s{S_TAG}, {WS}, 0\ns_waitcnt lgkmcnt(0)")
    if cfg.bsleep: e(f"s_sleep {cfg.bsleep}")
    e.label("L_b_dma")
    e(f"""
    s_mov_b32 m0, s67
    s_add_u32 s69, s67, s66
    buffer_load_dwordx4 v7, s[{SRD_0}:{SRD_0+3}], s69 offen{" nt" if cfg.ckvnt else ""} lds
    s_add_u32 s67, s67, 8192
    s_and_b32 s67, s67, 0x1ffff
    s_sub_u32 s68, s68, 1
    s_cbranch_scc0 L_b_dma
    """)
    if not cfg.bdelay: e(f"s_load_dword s{S_TAG}, {WS}, 0")
    e("s_branch L_B1")

    e.label("L_F1")
    e(f"s_mov_b32 s{S_ISB}, 0")
    stamp(1)
    tr_common()
    e(f"""
    v_and_b32 v41, 1, v2
    v_lshl_add_u32 v41, v41, 2, v62
    v_lshlrev_b32 v41, 1, v41
    s_and_b32 s65, s{S_W}, 3
    s_lshl_b32 s3, s65, 2
    v_add_u32 v42, s3, v63
    v_xor_b32 v41, v41, v42
    v_lshl_add_u32 v41, v41, 4, v59
    v_lshl_add_u32 v42, v2, 3, v62
    v_lshl_add_u32 v41, v42, 8, v41
    v_add_u32 v41, {L_WQ}, v41
    v_xor_b32 v40, 32, v41
    s_mul_i32 s3, s{S_J}, 320
    s_add_u32 s3, s3, {L_LNS}
    v_lshl_add_u32 v42, v2, 4, s3
    s_lshl_b32 s3, s{S_H}, 2
    s_add_u32 s3, s3, s{S_J}
    s_lshl_b32 s3, s3, 9
    s_lshl_b32 s64, s65, 7
    s_add_u32 s3, s3, s64
    s_add_u32 s65, s3, {WS_Q1}
    v_and_b32 v43, 1, v1
    v_lshlrev_b32 v43, 6, v43
    v_lshl_add_u32 v43, v2, 4, v43
    v_add_u32 v43, s65, v43
    v_add_u32 v44, {WS_Q1F-WS_Q1}, v43
    s_lshl_b32 s64, s{S_W}, 6
    s_lshl_b32 s3, s{S_H}, 2
    s_and_b32 s65, s{S_W}, 3
    s_add_u32 s3, s3, s65
    s_lshl_b32 s3, s3, 9
    s_add_u32 s3, s3, {WS_Q1}
    v_lshl_add_u32 v45, v1, 3, s3
    v_add_u32 v49, {WS_Q1F-WS_Q1}, v45
    s_mul_i32 s3, s65, {QP_STRIDE}
    s_add_u32 s3, s3, {L_QP}
    v_lshl_add_u32 v46, v1, 2, s3
    v_and_b32 v47, 3, v3
    v_mul_u32_u24 v47, {QP_STRIDE}, v47
    v_lshl_add_u32 v47, v2, 4, v47
    v_add_u32 v47, {L_QP}, v47
    s_and_b32 s66, s{S_W}, 3
    s_lshl_b32 s3, s{S_H}, 10
    s_lshl_b32 s65, s{S_J}, 8
    s_add_u32 s3, s3, s65
    s_lshl_b32 s64, s66, 6
    s_add_u32 s3, s3, s64
    s_add_u32 s65, s3, {WS_QA}
    v_and_b32 v50, 1, v1
    v_lshlrev_b32 v50, 1, v50
    v_lshrrev_b32 v51, 1, v2
    v_add_u32 v50, v50, v51
    v_lshl_add_u32 v48, v50, 4, s65
    s_lshl_b32 s3, s66, 5
    v_add_u32 v24, s3, v3
    v_lshlrev_b32 v24, 8, v24
    v_and_b32 v25, 7, v3
    v_lshlrev_b32 v25, 1, v25
    v_xor_b32 v25, v25, v2
    v_lshl_add_u32 v24, v25, 4, v24
    v_add_u32 v24, {L_WUK}, v24
    v_xor_b32 v25, 64, v24
    v_xor_b32 v26, 128, v24
    v_xor_b32 v27, 192, v24
    s_waitcnt lgkmcnt(0)
    """)
    mk_tag()
    e(f"v_mov_b32 v105, s{S_TAG}\nv_mov_b32 v107, s{S_TAG}")
    tagpat(52, 50, 56)
    e(f"""
    s_cmp_eq_u32 s{S_W}, 0
    s_cbranch_scc0 L_f_noln
    """)
    e(f"s_waitcnt vmcnt({13 if cfg.ukearly else 5 + cfg.selftouch + cfg.tlbk})")
    stamp(2)
    for k in range(5):
        e(f"v_lshlrev_b32 v{64+2*k}, 16, v{8+k}")
        e(f"v_and_b32 v{65+2*k}, 0xffff0000, v{8+k}")
    e(f"""
    v_pk_add_f32 v[74:75], v[64:65], v[66:67]
    v_pk_add_f32 v[76:77], v[68:69], v[70:71]
    v_pk_add_f32 v[74:75], v[74:75], v[72:73]
    v_pk_add_f32 v[74:75], v[74:75], v[76:77]
    v_mov_b32 v78, {F32(-1.0/640)}
    v_add_f32 v74, v74, v75
    """)
    dpp_reduce([74])
    e.nop(1)
    e("v_readlane_b32 s20, v74, 63")
    e(f"v_mov_b32 v80, {F32(1.0/640)}\nv_mov_b32 v81, {F32(1e-5)}")
    e("v_mul_f32 v78, s20, v78")
    for k in range(5):
        e(f"v_pk_add_f32 v[{64+2*k}:{65+2*k}], v[{64+2*k}:{65+2*k}], v[78:79] op_sel_hi:[1,0]")
    e("v_pk_mul_f32 v[74:75], v[64:65], v[64:65]")
    for k in range(1, 5):
        e(f"v_pk_fma_f32 v[74:75], v[{64+2*k}:{65+2*k}], v[{64+2*k}:{65+2*k}], v[74:75]")
    e("v_add_f32 v74, v74, v75")
    dpp_reduce([74])
    e.nop(1)
    e("v_readlane_b32 s21, v74, 63")
    e(f"v_mov_b32 v82, {F32(128**-0.5 * 1.4426950408889634 * LSB_DEBIAS)}")
    e(f"v_add_u32 v6, {L_LNS}, v6")
    e("v_fma_f32 v74, s21, v80, v81")
    e("v_rsq_f32 v74, v74")
    e.nop(1)
    e("v_mul_f32 v74, v74, v82")
    for k in range(5):
        e(f"v_pk_mul_f32 v[{64+2*k}:{65+2*k}], v[{64+2*k}:{65+2*k}], v[74:75] op_sel_hi:[1,0]")
    for k in range(5):
        e(f"v_cvt_pk_bf16_f32 v{8+k}, v{64+2*k}, v{65+2*k}")
        e(f"ds_write_b32 v6, v{8+k} offset:{256*k}")
    e.label("L_f_noln")
    if cfg.ukearly:
        e(f"s_cmp_lt_u32 s{S_W}, 4\ns_cbranch_scc0 L_f_w0\ns_waitcnt vmcnt(8)\ns_branch L_f_w1")
        e.label("L_f_w0")
        e("s_waitcnt vmcnt(0)")
        e.label("L_f_w1")
        e("s_waitcnt lgkmcnt(0)")
    else:
        e(f"s_waitcnt vmcnt({cfg.selftouch + cfg.tlbk}) lgkmcnt(0)")
    e("s_barrier")
    stamp(3)
    e(f"s_cmp_lt_u32 s{S_W}, 4\ns_cbranch_scc1 L_f_uk")
    for ks in range(5):
        e(f"ds_read_b128 v[{84+4*ks}:{87+4*ks}], v42 offset:{64*ks}")
        e(f"ds_read_b64_tr_b16 v[{64+4*ks}:{65+4*ks}], v41 offset:{8192*ks}")
        e(f"ds_read_b64_tr_b16 v[{66+4*ks}:{67+4*ks}], v41 offset:{8192*ks+1024}")
        e(f"ds_read_b64_tr_b16 v[{112+4*ks}:{113+4*ks}], v40 offset:{8192*ks}")
        e(f"ds_read_b64_tr_b16 v[{114+4*ks}:{115+4*ks}], v40 offset:{8192*ks+1024}")
    e("s_mov_b32 s64, 0xaaaaaaaa\ns_mov_b32 s65, 0xaaaaaaaa")
    for ks in range(5):
        e(f"s_waitcnt lgkmcnt({min(15, 20-5*ks)})")
        c = "0" if ks == 0 else "v[108:111]"
        e(f"v_mfma_f32_16x16x32_bf16 v[108:111], v[{64+4*ks}:{67+4*ks}], v[{84+4*ks}:{87+4*ks}], {c}")
        c = "0" if ks == 0 else "v[132:135]"
        e(f"v_mfma_f32_16x16x32_bf16 v[132:135], v[{112+4*ks}:{115+4*ks}], v[{84+4*ks}:{87+4*ks}], {c}")
    e("s_mov_b32 exec_lo, 0x00030003\ns_mov_b32 exec_hi, 0x00030003")
    e.nop(6)
    for r in range(4):
        e(f"v_cndmask_b32 v{108+r}, v{108+r}, v{132+r}, s[64:65]")
    e("""
    v_cvt_pk_bf16_f32 v104, v108, v109
    v_cvt_pk_bf16_f32 v106, v110, v111
    """)
    if cfg.fast1: e(f"global_store_dwordx4 v44, v[104:107], {WS}")
    e(f"global_store_dwordx4 v43, v[104:107], {WS} sc1\ns_mov_b64 exec, -1")
    stamp(4)
    e(("" if cfg.ukearly else "s_barrier\n") + "s_branch L_h1_bar")
    e.label("L_f_uk")
    if not cfg.ukearly: uk_dma(True)
    e.label("L_h1")
    if cfg.fast1:
        e(f"global_load_dwordx2 v[66:67], v49, {WS} sc1")
        e(f"global_load_dwordx2 v[64:65], v45, {WS} sc1\ns_waitcnt vmcnt(0)")
        e(f"v_cmp_eq_u32 vcc, s{S_TAG}, v67")
        e.nop(2)
        e("v_cndmask_b32 v64, v64, v66, vcc\nv_cndmask_b32 v65, v65, v67, vcc")
    else:
        e(f"global_load_dwordx2 v[64:65], v45, {WS} sc1\ns_waitcnt vmcnt(0)")
    e(f"v_cmp_ne_u32 vcc, s{S_TAG}, v65")
    e(f"s_cbranch_vccz L_h1_done")
    spin_back("L_h1")
    e.label("L_h1_done")
    stamp(8)
    stamp(7)
    e("ds_write_b32 v46, v64")
    e.label("L_h1_bar")
    e("s_waitcnt lgkmcnt(0)\ns_barrier")
    stamp(5)
    e(f"s_cmp_lt_u32 s{S_W}, 4\ns_cbranch_scc1 L_f_nos2")
    for t in range(4):
        e(f"ds_read_b128 v[{64+4*t}:{67+4*t}], v47 offset:{64*t}")
        e(f"ds_read_b128 v[{80+4*t}:{83+4*t}], v{24+t}")
        e(f"ds_read_b128 v[{112+4*t}:{115+4*t}], v{24+t} offset:4096")
    e("s_mov_b32 s64, 0xaaaaaaaa\ns_mov_b32 s65, 0xaaaaaaaa")
    for t in range(4):
        e(f"s_waitcnt lgkmcnt({9-3*t})")
        c = "0" if t == 0 else "v[108:111]"
        e(f"v_mfma_f32_16x16x32_bf16 v[108:111], v[{80+4*t}:{83+4*t}], v[{64+4*t}:{67+4*t}], {c}")
        c = "0" if t == 0 else "v[132:135]"
        e(f"v_mfma_f32_16x16x32_bf16 v[132:135], v[{112+4*t}:{115+4*t}], v[{64+4*t}:{67+4*t}], {c}")
    e.nop(7)
    for st in ("row_ror:1", "row_ror:2"):
        for r in list(range(108, 112)) + list(range(132, 136)):
            e(f"v_add_f32_dpp v{r}, v{r}, v{r} {st} row_mask:0xf bank_mask:0xf")
    for r in range(4):
        e(f"v_cndmask_b32 v{108+r}, v{108+r}, v{132+r}, s[64:65]")
    e("""
    v_cvt_pk_bf16_f32 v104, v108, v109
    v_cvt_pk_bf16_f32 v105, v110, v111
    s_mov_b32 s66, 0xfffefffe
    v_mov_b32 v106, v104
    v_mov_b32 v107, v105
    s_nop 1
    v_permlane16_swap_b32 v104, v106
    v_permlane16_swap_b32 v105, v107
    s_mov_b32 exec_lo, 3
    s_mov_b32 exec_hi, 3
    v_and_or_b32 v104, v104, s66, v52
    v_and_or_b32 v105, v105, s66, v53
    v_and_or_b32 v106, v106, s66, v54
    v_and_or_b32 v107, v107, s66, v55
    """)
    e(f"global_store_dwordx4 v48, v[104:107], {WS} sc1\ns_mov_b64 exec, -1")
    stamp(6)
    e.label("L_f_nos2")
    e("s_barrier")
    if cfg.uvpf:
        e(f"""
        v_lshrrev_b32 v4, 1, v1
        s_lshl_b32 s3, s{S_J}, 7
        s_lshl_b32 s64, s{S_W}, 4
        s_add_u32 s3, s3, s64
        v_and_b32 v4, 15, v4
        v_add_u32 v4, s3, v4
        v_lshlrev_b32 v4, 13, v4
        v_and_b32 v5, 1, v1
        v_lshl_add_u32 v4, v5, 7, v4
        s_lshl_b32 s3, s{S_H}, 8
        v_add_u32 v4, s3, v4
        s_mov_b64 exec, 0xffffffff
        global_load_dword v5, v4, s[{P_WUV}:{P_WUV+1}]{NT}
        s_mov_b64 exec, -1
        """)
    e(f"s_cmp_lt_u32 s{S_I}, 10\ns_cbranch_scc1 L_s6")
    s7_loads()
    e("s_waitcnt vmcnt(0)")
    s7_prep()
    if cfg.n5sleep:
        e(f"""
        s_cmp_lt_u32 s{S_W}, 5
        s_cbranch_scc0 L_S7
        s_lshl_b32 s3, s{S_H}, 2
        s_add_u32 s3, s3, s{S_J}
        s_lshl_b32 s3, s3, 9
        s_add_u32 s3, s3, {WS_CTX}
        v_mov_b32 v40, s3
        """)
        e.label("L_sent")
        e(f"""
        global_load_dwordx2 v[42:43], v40, {WS} sc1
        s_waitcnt vmcnt(0)
        v_cmp_ne_u32 vcc, s{S_TAG}, v43
        s_cbranch_vccz L_sent_done
        s_sleep 8
        """)
        spin_back("L_sent")
        e.label("L_sent_done")
        e(f"s_sleep {cfg.n5sleep}")
    e("s_branch L_S7")
    e.label("L_s6")
    e(f"""
    s_mov_b32 s{SRD_WO}, s{P_WO}
    s_mov_b32 s{SRD_WO+1}, s{P_WO+1}
    s_mov_b32 s{SRD_WO+2}, 5242880
    s_mov_b32 s{SRD_WO+3}, 0x20000
    v_lshrrev_b32 v12, 3, v1
    v_mul_u32_u24 v50, 1280, v12
    v_and_b32 v12, 2, v12
    v_and_b32 v13, 7, v1
    v_xor_b32 v12, v12, v13
    v_lshl_add_u32 v50, v12, 4, v50
    v_xor_b32 v51, 64, v50
    s_lshl_b32 s3, s{S_X}, 3
    s_add_u32 s3, s3, s{S_W}
    s_mul_i32 s20, s3, {64*1280}
    s_lshl_b32 s65, s{S_I}, 7
    s_add_u32 s20, s20, s65
    s_lshl_b32 s21, s{S_W}, 13
    """)
    for ii in range(8):
        e(f"""
        s_mov_b32 m0, s21
        s_add_u32 s21, s21, 1024
        buffer_load_dwordx4 v{50+(ii&1)}, s[{SRD_WO}:{SRD_WO+3}], s20 offen{NT} lds
        s_add_u32 s20, s20, {8*1280}
        """)
    s7_loads()
    tr_common()
    e(f"""
    v_lshl_add_u32 v12, v2, 3, v62
    v_lshlrev_b32 v12, 7, v12
    v_add_u32 v12, v12, v59
    s_lshl_b32 s3, s{S_W}, 13
    v_add_u32 v12, s3, v12
    v_and_b32 v13, 1, v2
    v_lshlrev_b32 v13, 2, v13
    v_and_b32 v14, 2, v62
    v_or_b32 v13, v13, v14
    v_xor_b32 v13, v13, v63
    v_lshl_add_u32 v249, v13, 4, v12
    v_xor_b32 v250, 32, v249
    v_xor_b32 v251, 64, v249
    v_xor_b32 v252, 96, v249
    s_lshr_b32 s3, s{S_W}, 1
    s_lshl_b32 s64, s{S_X}, 2
    s_add_u32 s3, s3, s64
    s_lshl_b32 s3, s3, 11
    s_and_b32 s64, s{S_W}, 1
    s_lshl_b32 s64, s64, 8
    s_add_u32 s3, s3, s64
    s_add_u32 s3, s3, {WS_CTX}
    v_lshlrev_b32 v140, 9, v2
    v_lshl_add_u32 v140, v3, 4, v140
    v_add_u32 v140, s3, v140
    v_add_u32 v141, {WS_CTXF-WS_CTX}, v140
    s_lshl_b32 s3, s{S_W}, 7
    s_add_u32 s3, s3, {L_BNC}
    v_lshl_add_u32 v142, v3, 2, v2
    v_lshlrev_b32 v142, 1, v142
    v_add_u32 v142, s3, v142
    v_lshl_add_u32 v143, v2, 4, s3
    s_lshl_b32 s3, s{S_W}, 8
    s_add_u32 s3, s3, {L_ORED}
    v_lshl_add_u32 v253, v2, 4, s3
    v_lshlrev_b32 v254, 3, v1
    v_add_u32 v254, {L_ORED}, v254
    s_mul_i32 s3, s{S_X}, 1280
    s_lshl_b32 s64, s{S_I}, 7
    s_add_u32 s3, s3, s64
    s_add_u32 s3, s3, {WS_OP}
    v_lshl_add_u32 v255, v1, 2, s3
    v_and_b32 v12, 15, v1
    v_lshlrev_b32 v12, 1, v12
    v_mov_b32 v13, s{S_TAG}
    v_lshrrev_b32 v12, v12, v13
    v_and_b32 v13, 1, v12
    v_and_b32 v12, 2, v12
    v_lshl_or_b32 v136, v12, 15, v13
    s_waitcnt vmcnt(0)
    """)
    stamp(9)
    s7_prep()
    for tt in range(4):
        for ks in range(2):
            r = 80 + 8 * tt + 4 * ks
            e(f"ds_read_b64_tr_b16 v[{r}:{r+1}], v{249+tt} offset:{4096*ks}")
            e(f"ds_read_b64_tr_b16 v[{r+2}:{r+3}], v{249+tt} offset:{4096*ks+512}")
    e.label("L_h4")
    if cfg.fast4:
        e(f"global_load_dwordx4 v[44:47], v141, {WS} sc1")
        e(f"global_load_dwordx4 v[40:43], v140, {WS} sc1\ns_waitcnt vmcnt(0)")
        tagchk(48, [45, 47])
        e("v_cmp_eq_u32 vcc, 0, v48")
        e.nop(2)
        for k in range(4): e(f"v_cndmask_b32 v{40+k}, v{40+k}, v{44+k}, vcc")
    else:
        e(f"global_load_dwordx4 v[40:43], v140, {WS} sc1\ns_waitcnt vmcnt(0)")
    tagchk(48, [41, 43])
    poll_tail("L_h4", "L_h4_done", 48, cfg.h4sleep)
    stamp(10)
    e("""
    v_lshlrev_b32 v44, 16, v40
    v_and_b32 v45, 0xffff0000, v40
    v_lshlrev_b32 v46, 16, v42
    v_and_b32 v47, 0xffff0000, v42
    s_nop 1
    v_permlane32_swap_b32 v44, v46
    v_permlane32_swap_b32 v45, v47
    v_add_f32 v44, v44, v46
    v_add_f32 v45, v45, v47
    s_nop 1
    v_permlane16_swap_b32 v44, v45
    v_add_f32 v44, v44, v45
    v_cvt_pk_bf16_f32 v44, v44, v44
    ds_write_b16 v142, v44
    s_waitcnt lgkmcnt(0)
    ds_read_b128 v[112:115], v143
    ds_read_b128 v[116:119], v143 offset:64
    """)
    for ks in range(2):
        e(f"s_waitcnt lgkmcnt({1-ks})")
        for tt in range(4):
            c = "0" if ks == 0 else f"v[{120+4*tt}:{123+4*tt}]"
            r = 80 + 8 * tt + 4 * ks
            e(f"v_mfma_f32_16x16x32_bf16 v[{120+4*tt}:{123+4*tt}], v[{r}:{r+3}], v[{112+4*ks}:{115+4*ks}], {c}")
    e("s_mov_b32 exec_lo, 0x00010001\ns_mov_b32 exec_hi, 0x00010001")
    e.nop(3)
    for tt in range(4):
        e(f"ds_write_b128 v253, v[{120+4*tt}:{123+4*tt}] offset:{64*tt}")
    e(f"""
    s_mov_b64 exec, -1
    s_waitcnt lgkmcnt(0)
    s_barrier
    s_cmp_eq_u32 s{S_W}, 7
    s_cbranch_scc0 L_s6_w
    s_mov_b64 exec, 0xffffffff
    """)
    for w in range(8):
        e(f"ds_read_b64 v[{40+2*w}:{41+2*w}], v254 offset:{256*w}")
    e(f"""
    s_mov_b32 s66, 0xfffefffe
    s_waitcnt lgkmcnt(0)
    v_pk_add_f32 v[40:41], v[40:41], v[42:43]
    v_pk_add_f32 v[44:45], v[44:45], v[46:47]
    v_pk_add_f32 v[48:49], v[48:49], v[50:51]
    v_pk_add_f32 v[52:53], v[52:53], v[54:55]
    v_pk_add_f32 v[40:41], v[40:41], v[44:45]
    v_pk_add_f32 v[48:49], v[48:49], v[52:53]
    v_pk_add_f32 v[40:41], v[40:41], v[48:49]
    v_cvt_pk_bf16_f32 v56, v40, v41
    v_lshrrev_b32 v57, 1, v56
    v_and_b32 v57, 0x00010001, v57
    v_add_u32 v56, v56, v57
    v_and_or_b32 v56, v56, s66, v136
    global_store_dword v255, v56, {WS} sc1
    s_mov_b64 exec, -1
    """)
    stamp(11)
    e("s_branch L_S7")
    e.label("L_s6_w")
    if cfg.f5sleep: e(f"s_sleep {cfg.f5sleep}")
    e("s_branch L_S7")

    e.label("L_B1")
    e(f"s_mov_b32 s{S_ISB}, 1")
    stamp(1)
    e(f"""
    s_lshr_b32 s3, s{S_I}, 2
    s_lshl_b32 s3, s3, 3
    s_add_u32 s3, s3, s{S_W}
    s_lshl_b32 s3, s3, 10
    s_add_u32 s3, s3, {WS_QA}
    v_lshl_add_u32 v5, v1, 4, s3
    s_mul_i32 s3, s{S_W}, {QAS_STRIDE}
    s_add_u32 s3, s3, {L_QAS}
    v_lshl_add_u32 v6, v1, 4, s3
    """)
    tr_common()
    e(f"s_cmp_lt_u32 s{S_W}, 4\ns_cbranch_scc0 L_bp_prep")
    def h2_poll(sfx):
        msk = "s66" if sfx == "q" else "s67"
        e("s_waitcnt vmcnt(0)\ns_branch L_h2_chk" + sfx)
        e.label("L_h2" + sfx)
        e(f"""
        global_load_dwordx4 v[40:43], v5, {WS} sc1
        s_waitcnt vmcnt(0)
        """)
        e.label("L_h2_chk" + sfx)
        for i in range(4):
            e(f"v_xor_b32 v{40+i}, v{40+i}, v{44+i}")
        e(f"v_or3_b32 v4, v40, v41, v42\nv_or_b32 v4, v4, v43\nv_and_b32 v4, {msk}, v4")
        poll_tail("L_h2" + sfx, "L_h2_done" + sfx, 4, cfg.h2sleep)
        stamp(5)
        e(f"""
        ds_write_b128 v6, v[40:43]
        s_waitcnt lgkmcnt(0)
        s_barrier
        """)
    e(f"""
    s_lshl_b32 s3, s{S_W}, 5
    v_add_u32 v12, s3, v3
    v_lshlrev_b32 v12, 10, v12
    v_and_b32 v13, 7, v1
    v_lshlrev_b32 v13, 1, v13
    v_xor_b32 v13, v13, v2
    v_lshl_add_u32 v8, v13, 4, v12
    v_xor_b32 v9, 64, v8
    v_xor_b32 v10, 128, v8
    v_xor_b32 v11, 192, v8
    v_and_b32 v216, 7, v3
    v_lshlrev_b32 v217, 4, v216
    v_mul_u32_u24 v216, {QAS_STRIDE}, v216
    v_lshl_add_u32 v216, v2, 4, v216
    v_add_u32 v216, {L_QAS}, v216
    v_add_u32 v217, {L_MX}, v217
    s_lshl_b32 s3, s{S_W}, 2
    v_add_u32 v218, s3, v217
    s_lshl_b32 s3, s{S_W}, 10
    s_add_u32 s3, s3, {L_PEX}
    v_lshl_add_u32 v219, v1, 4, s3
    v_and_b32 v220, 1, v2
    v_lshl_add_u32 v220, v220, 2, v62
    v_lshlrev_b32 v220, 1, v220
    s_lshl_b32 s3, s{S_W}, 2
    v_add_u32 v12, s3, v63
    v_xor_b32 v220, v220, v12
    v_lshl_add_u32 v220, v220, 4, v59
    v_lshl_add_u32 v12, v2, 3, v62
    v_lshl_add_u32 v220, v12, 8, v220
    v_xor_b32 v221, 32, v220
    s_lshl_b32 s3, s{S_H}, 10
    s_lshl_b32 s65, s{S_J}, 8
    s_add_u32 s3, s3, s65
    s_lshl_b32 s64, s{S_W}, 6
    s_add_u32 s3, s3, s64
    s_add_u32 s65, s3, {WS_PART}
    s_lshl_b32 s64, s{S_W}, 7
    v_lshrrev_b32 v12, 2, v1
    v_and_b32 v13, 3, v1
    v_lshlrev_b32 v222, 15, v12
    v_lshl_add_u32 v222, v13, 4, v222
    v_add_u32 v222, s65, v222
    s_lshl_b32 s3, s{S_H}, 7
    s_add_u32 s3, s3, {WS_ST}
    v_lshlrev_b32 v48, 12, v12
    v_lshl_add_u32 v48, v13, 4, v48
    v_add_u32 v48, s3, v48
    v_and_b32 v223, 1, v2
    v_lshlrev_b32 v223, 4, v223
    v_lshrrev_b32 v12, 1, v2
    v_lshl_add_u32 v223, v12, 1, v223
    v_lshl_add_u32 v223, v13, 2, v223
    s_lshl_b32 s3, s{S_W}, 5
    v_add_u32 v223, s3, v223
    v_lshlrev_b32 v223, 1, v223
    v_add_u32 v223, {L_CTXS}, v223
    v_lshlrev_b32 v49, 4, v2
    v_add_u32 v49, {L_CTXS}, v49
    s_lshl_b32 s3, s{S_H}, 2
    s_add_u32 s3, s3, s{S_J}
    s_lshl_b32 s3, s3, 9
    s_add_u32 s3, s3, s64
    s_add_u32 s3, s3, {WS_CTX}
    v_and_b32 v50, 1, v1
    v_lshlrev_b32 v50, 6, v50
    v_lshl_add_u32 v50, v2, 4, v50
    v_add_u32 v50, s3, v50
    v_add_u32 v51, {WS_CTXF-WS_CTX}, v50
    s_waitcnt lgkmcnt(0)
    """)
    mk_tag()
    e("v_and_b32 v16, 3, v1\ns_mov_b32 s66, 0x00010001")
    tagpat(44, 16, 12)
    e(f"s_waitcnt vmcnt(0)\nglobal_load_dwordx4 v[40:43], v5, {WS} sc1")
    e("s_barrier")
    stamp(14)
    for t in range(2):
        for j in range(16):
            e(f"ds_read_b128 v[{64+64*t+4*j}:{67+64*t+4*j}], v{8+(j&3)} offset:{256*(j>>2)+16384*t}")
    h2_poll("q")
    def qb(j):
        if j < 6: return 192 + 4 * j
        if j < 13: return 12 + 4 * (j - 6)
        if j < 15: return 40 + 4 * (j - 13)
        return 52
    stamp(4)
    for j in range(16):
        e(f"ds_read_b128 v[{qb(j)}:{qb(j)+3}], v216 offset:{64*j}")
    for j in range(16):
        if j % 2 == 0: e(f"s_waitcnt lgkmcnt({max(0, 14-j)})")
        for t in range(2):
            acc = f"v[{56+4*t}:{59+4*t}]"
            c = "0" if j == 0 else acc
            e(f"v_mfma_f32_16x16x32_bf16 {acc}, v[{64+64*t+4*j}:{67+64*t+4*j}], v[{qb(j)}:{qb(j)+3}], {c}")
    e.nop(7)
    stamp(10)
    e("""
    v_max3_f32 v12, v56, v57, v58
    s_nop 0
    v_max3_f32 v13, v60, v61, v62
    v_max3_f32 v12, v59, v63, v12
    v_max_f32 v12, v12, v13
    v_mov_b32 v13, v12
    """)
    e.nop(2)
    e("v_permlane16_swap_b32 v12, v13")
    e("v_max_f32 v12, v12, v13\nv_mov_b32 v13, v12")
    e.nop(2)
    e("v_permlane32_swap_b32 v12, v13")
    e("""
    v_max_f32 v12, v12, v13
    s_mov_b64 exec, 0xff
    ds_write_b32 v218, v12
    s_mov_b64 exec, -1
    s_waitcnt lgkmcnt(0)
    s_barrier
    """)
    stamp(11)
    e("""
    ds_read_b128 v[16:19], v217
    s_waitcnt lgkmcnt(0)
    v_max3_f32 v12, v16, v17, v18
    v_max_f32 v12, v12, v19
    """)
    for r in range(8): e(f"v_sub_f32 v{56+r}, v{56+r}, v12")
    for r in range(8): e(f"v_exp_f32 v{56+r}, v{56+r}")
    e("s_nop 0")
    for r in range(4): e(f"v_cvt_pk_bf16_f32 v{16+r}, v{56+2*r}, v{57+2*r}")
    e(f"""
    ds_write_b128 v219, v[16:19]
    s_cmp_eq_u32 s{S_W}, 0
    s_cbranch_scc0 L_bq_nom
    s_mov_b64 exec, 0xff
    ds_write_b32 v218, v12 offset:128
    s_mov_b64 exec, -1
    """)
    e.label("L_bq_nom")
    e("s_waitcnt lgkmcnt(0)\ns_barrier")
    stamp(6)
    e(f"""
    v_mov_b32 v105, s{S_TAG}
    v_mov_b32 v107, s{S_TAG}
    v_add_u32 v192, 0x80000, v222
    v_add_u32 v195, 0x10000, v48
    v_and_b32 v196, 3, v1
    s_mov_b32 s66, 0x00010001
    s_mov_b32 s67, {F32(LSB_DEBIAS)}
    s_mov_b32 s64, 0xaaaaaaaa
    s_mov_b32 s65, 0xaaaaaaaa
    """)
    e("s_barrier")
    for t in range(2):
        for ks in range(4):
            r = 128 + 16 * t + 4 * ks
            e(f"ds_read_b64_tr_b16 v[{r}:{r+1}], v{220+t} offset:{8192*ks}")
            e(f"ds_read_b64_tr_b16 v[{r+2}:{r+3}], v{220+t} offset:{8192*ks+1024}")
    tagpat(198, 196, 202)
    if cfg.h3sleep: e(f"s_sleep {cfg.h3sleep}")
    stamp(2)
    def datachk():
        for i in range(8):
            e(f"v_xor_b32 v{80+i}, v{80+i}, v{198+(i&3)}")
        e("v_or3_b32 v4, v80, v81, v82\nv_or3_b32 v5, v83, v84, v85\nv_or3_b32 v4, v86, v87, v4\nv_or_b32 v4, v4, v5\nv_and_b32 v4, s66, v4")
    e.label("L_h3")
    e(f"""
    global_load_dwordx4 v[64:67], v48, {WS} sc1
    global_load_dwordx4 v[68:71], v195, {WS} sc1
    global_load_dwordx4 v[80:83], v222, {WS} sc1
    global_load_dwordx4 v[84:87], v192, {WS} sc1
    s_waitcnt vmcnt(2)
    """)
    tagchk(4, [65, 67, 69, 71])
    e("v_cmp_ne_u32 vcc, 0, v4\ns_cbranch_vccz L_h3_st\ns_waitcnt vmcnt(0)")
    if cfg.h3psleep: e(f"s_sleep {cfg.h3psleep}")
    spin_back("L_h3")
    e.label("L_h3_st")
    stamp(3)
    e("""
    v_max_f32 v4, v64, v68
    s_nop 1
    v_max_f32_dpp v4, v4, v4 row_ror:4 row_mask:0xf bank_mask:0xf
    s_nop 1
    v_max_f32_dpp v4, v4, v4 row_ror:8 row_mask:0xf bank_mask:0xf
    s_nop 0
    v_mov_b32 v5, v4
    s_nop 1
    v_permlane16_swap_b32 v4, v5
    v_max_f32 v4, v4, v5
    v_mov_b32 v5, v4
    s_nop 1
    v_permlane32_swap_b32 v4, v5
    v_max_f32 v4, v4, v5
    v_sub_f32 v64, v64, v4
    v_sub_f32 v68, v68, v4
    v_exp_f32 v64, v64
    v_exp_f32 v68, v68
    s_nop 0
    v_mul_f32 v28, v64, v66
    v_fmac_f32 v28, v68, v70
    s_nop 1
    v_add_f32_dpp v28, v28, v28 row_ror:4 row_mask:0xf bank_mask:0xf
    s_nop 1
    v_add_f32_dpp v28, v28, v28 row_ror:8 row_mask:0xf bank_mask:0xf
    s_nop 0
    v_mov_b32 v29, v28
    s_nop 1
    v_permlane16_swap_b32 v28, v29
    v_add_f32 v28, v28, v29
    v_mov_b32 v29, v28
    s_nop 1
    v_permlane32_swap_b32 v28, v29
    v_add_f32 v28, v28, v29
    v_rcp_f32 v28, v28
    v_mul_f32 v64, s67, v64
    v_mul_f32 v68, s67, v68
    v_mul_f32 v64, v64, v28
    v_mul_f32 v68, v68, v28
    s_waitcnt vmcnt(0)
    s_branch L_h3_dchk
    """)
    e.label("L_h3d")
    e(f"""
    global_load_dwordx4 v[80:83], v222, {WS} sc1
    global_load_dwordx4 v[84:87], v192, {WS} sc1
    s_waitcnt vmcnt(0)
    """)
    e.label("L_h3_dchk")
    datachk()
    poll_tail("L_h3d", "L_h3_done", 4)
    stamp(8)
    for i in range(4):
        e(f"v_lshlrev_b32 v{12+2*i}, 16, v{80+i}\nv_and_b32 v{13+2*i}, 0xffff0000, v{80+i}")
    for i in range(4):
        e(f"v_lshlrev_b32 v{20+2*i}, 16, v{84+i}\nv_and_b32 v{21+2*i}, 0xffff0000, v{84+i}")
        e(f"v_pk_mul_f32 v[{12+2*i}:{13+2*i}], v[{12+2*i}:{13+2*i}], v[64:65] op_sel_hi:[1,0]")
    for i in range(4):
        e(f"v_pk_fma_f32 v[{12+2*i}:{13+2*i}], v[{20+2*i}:{21+2*i}], v[68:69], v[{12+2*i}:{13+2*i}] op_sel_hi:[1,0,1]")
    for st in ("row_ror:4", "row_ror:8"):
        for r in range(12, 20):
            e(f"v_add_f32_dpp v{r}, v{r}, v{r} {st} row_mask:0xf bank_mask:0xf")
    for i in range(4):
        e(f"v_permlane16_swap_b32 v{12+i}, v{16+i}")
    for i in range(4):
        e(f"v_add_f32 v{12+i}, v{12+i}, v{16+i}")
    e("""
    s_nop 0
    v_permlane32_swap_b32 v12, v14
    v_permlane32_swap_b32 v13, v15
    s_mov_b32 exec_lo, 0x000f000f
    s_mov_b32 exec_hi, 0x000f000f
    v_add_f32 v12, v12, v14
    v_add_f32 v13, v13, v15
    v_cvt_pk_bf16_f32 v12, v12, v13
    ds_write_b32 v223, v12
    s_mov_b64 exec, -1
    s_waitcnt lgkmcnt(0)
    s_barrier
    """)
    for ks in range(4):
        e(f"ds_read_b128 v[{112+4*ks}:{115+4*ks}], v49 offset:{64*ks}")
    for ks in range(4):
        e(f"s_waitcnt lgkmcnt({3-ks})")
        for t in range(2):
            acc = f"v[{96+4*t}:{99+4*t}]"
            c = "0" if ks == 0 else acc
            r = 128 + 16 * t + 4 * ks
            e(f"v_mfma_f32_16x16x32_bf16 {acc}, v[{r}:{r+3}], v[{112+4*ks}:{115+4*ks}], {c}")
    e("s_mov_b32 exec_lo, 0x00030003\ns_mov_b32 exec_hi, 0x00030003")
    e.nop(6)
    for r in range(4):
        e(f"v_cndmask_b32 v{96+r}, v{96+r}, v{100+r}, s[64:65]")
    e("""
    v_cvt_pk_bf16_f32 v104, v96, v97
    v_cvt_pk_bf16_f32 v106, v98, v99
    """)
    if cfg.fast4: e(f"global_store_dwordx4 v51, v[104:107], {WS}")
    e(f"global_store_dwordx4 v50, v[104:107], {WS} sc1\ns_mov_b64 exec, -1")
    stamp(9)
    e("s_branch L_b_tail")
    e.label("L_bp_prep")
    e(f"""
    v_lshl_add_u32 v58, v2, 2, v62
    v_and_b32 v13, 7, v58
    v_lshlrev_b32 v13, 1, v13
    v_lshlrev_b32 v58, 10, v58
    v_add_u32 v58, v58, v59
    s_and_b32 s66, s{S_W}, 3
    s_lshl_b32 s3, s66, 4
    v_add_u32 v12, s3, v63
    v_xor_b32 v12, v12, v13
    v_lshl_add_u32 v8, v12, 4, v58
    """)
    for tt in range(1, 8):
        e(f"v_xor_b32 v{8+tt}, {32*tt}, v8")
    e(f"""
    v_lshlrev_b32 v16, 4, v1
    v_add_u32 v16, {L_PEX}, v16
    s_mov_b32 s{SRD_A}, s{P_WUV}
    s_mov_b32 s{SRD_A+1}, s{P_WUV+1}
    s_mov_b32 s{SRD_A+2}, 4194304
    s_mov_b32 s{SRD_A+3}, 0x20000
    s_lshl_b32 s3, s{S_W}, 2
    s_and_b32 s3, s3, 8
    v_lshlrev_b32 v19, 1, v2
    v_xor_b32 v19, v19, v3
    v_xor_b32 v19, s3, v19
    v_lshlrev_b32 v19, 4, v19
    v_lshl_add_u32 v19, v2, 13, v19
    s_lshl_b32 s20, s{S_J}, 5
    s_add_u32 s20, s20, s66
    s_lshl_b32 s20, s20, 15
    s_lshl_b32 s21, s{S_H}, 8
    s_add_u32 s20, s20, s21
    s_lshl_b32 s21, s66, 10
    v_lshl_add_u32 v56, v1, 4, s21
    s_lshl_b32 s3, s{S_CH}, 15
    s_lshr_b32 s64, s{S_I}, 2
    s_lshl_b32 s65, s64, 13
    s_add_u32 s3, s3, s65
    s_lshl_b32 s65, s66, 8
    s_add_u32 s3, s3, s65
    s_add_u32 s3, s3, {WS_PART}
    v_and_b32 v17, 7, v3
    v_lshlrev_b32 v17, 10, v17
    v_lshl_add_u32 v17, v2, 4, v17
    v_lshrrev_b32 v20, 3, v3
    v_lshl_add_u32 v17, v20, 6, v17
    v_add_u32 v17, s3, v17
    s_lshl_b32 s64, s64, 10
    s_lshl_b32 s65, s{S_CH}, 12
    s_add_u32 s64, s64, s65
    s_add_u32 s64, s64, {WS_ST}
    v_lshrrev_b32 v18, 2, v1
    v_lshlrev_b32 v18, 7, v18
    v_and_b32 v20, 3, v1
    v_lshl_add_u32 v18, v20, 4, v18
    v_add_u32 v18, s64, v18
    v_mov_b32 v36, 0x3f803f80
    v_mov_b32 v37, 0x3f803f80
    v_mov_b32 v38, 0x3f803f80
    v_mov_b32 v39, 0x3f803f80
    s_waitcnt lgkmcnt(0)
    """)
    mk_tag()
    e("v_and_b32 v50, 3, v1\ns_mov_b32 s67, 0x00010001")
    tagpat(44, 50, 48)
    e(f"v_mov_b32 v53, s{S_TAG}\nv_mov_b32 v55, s{S_TAG}")
    tagpat(57, 2, 61)
    e(f"s_waitcnt vmcnt(0)\nglobal_load_dwordx4 v[40:43], v5, {WS} sc1")
    e("s_barrier")
    stamp(14)
    for half in range(2):
        for tt in range(8):
            for k2 in range(2):
                ks = 2 * half + k2
                for eb in range(2):
                    r = 64 + 16 * tt + 4 * ks + 2 * eb
                    e(f"ds_read_b64_tr_b16 v[{r}:{r+1}], v{8+tt} offset:{32768*k2+16384*eb}")
        if half == 0:
            for tt in range(8):
                e(f"v_add_u32 v{8+tt}, 0x10000, v{8+tt}")
    h2_poll("p")
    for ii in range(8):
        e(f"""
        s_mov_b32 m0, s21
        s_add_u32 s21, s21, 4096
        buffer_load_dwordx4 v19, s[{SRD_A}:{SRD_A+3}], s20 offen{NT} lds
        s_add_u32 s20, s20, {4*4*8192}
        """)
    e("s_barrier\ns_barrier")
    for ks in range(4):
        e(f"ds_read_b128 v[{20+4*ks}:{23+4*ks}], v16 offset:{1024*ks}")
    e(f"""
    v_bfe_u32 v5, v1, 2, 3
    v_lshlrev_b32 v4, 4, v5
    v_add_u32 v4, {L_MX+128}, v4
    v_lshlrev_b32 v5, 2, v5
    s_mov_b32 s64, 0xff00ff00
    s_mov_b32 s65, 0xff00ff00
    """)
    stamp(6)
    for pr in range(4):
        e(f"v_mov_b32 v{37+0}, v{37}") if False else None
    def epi(sg):
        g = 64 + 64 * sg
        out = []
        for t in range(4):
            a0 = 192 + 16 * sg + 4 * t
            out.append(f"v_cvt_pk_bf16_f32 v{44+2*t}, v{a0}, v{a0+1}")
            out.append(f"v_cvt_pk_bf16_f32 v{45+2*t}, v{a0+2}, v{a0+3}")
        for i in range(4):
            out.append(f"v_cndmask_b32 v{g+i}, v{44+i}, v{48+i}, s[64:65]")
        for i in range(4):
            out.append(f"v_and_or_b32 v{g+i}, v{g+i}, s66, v{57+i}")
        out.append(f"global_store_dwordx4 v17, v[{g}:{g+3}], {WS} offset:{128*sg} sc1")
        return out
    e("s_mov_b32 s66, 0xfffefffe")
    ep0 = epi(0)
    for sg in range(2):
        k = 0
        for ks in range(4):
            for t in range(4):
                tt = 4 * sg + t
                acc = f"v[{192+4*tt}:{195+4*tt}]"
                c = "0" if ks == 0 else acc
                r = 64 + 16 * tt + 4 * ks
                if sg == 0 and t == 0: e(f"s_waitcnt lgkmcnt({3-ks})")
                e(f"v_mfma_f32_16x16x32_bf16 {acc}, v[{r}:{r+3}], v[{20+4*ks}:{23+4*ks}], {c}")
                k += 1
                if sg == 1 and k >= 8:
                    for _ in range(2):
                        if ep0: e(ep0.pop(0))
        if sg == 1:
            while ep0: e(ep0.pop(0))
    e(f"s_cmp_eq_u32 s{S_W}, 4\ns_cbranch_scc0 L_b_nol")
    e("ds_read_b32 v52, v4")
    for ks in range(4):
        c = "0" if ks == 0 else "v[40:43]"
        e(f"v_mfma_f32_16x16x32_bf16 v[40:43], v[36:39], v[{20+4*ks}:{23+4*ks}], {c}")
    e.label("L_b_nol")
    e.nop(6)
    for ins in epi(1): e(ins)
    e(f"""
    s_cmp_eq_u32 s{S_W}, 4
    s_cbranch_scc0 L_b_nostat
    ds_bpermute_b32 v54, v5, v40
    s_mov_b64 exec, 0xffffffff
    s_waitcnt lgkmcnt(0)
    global_store_dwordx4 v18, v[52:55], {WS} sc1
    s_mov_b64 exec, -1
    """)
    stamp(7)
    e("s_waitcnt vmcnt(3)\ns_branch L_b_st2")
    e.label("L_b_nostat")
    stamp(7)
    e("s_waitcnt vmcnt(2)")
    e.label("L_b_st2")
    e("s_barrier\ns_barrier")
    e.label("L_b_tail")
    e("s_barrier")
    s7_loads()
    e("s_waitcnt vmcnt(0)")
    s7_prep()
    if cfg.b5sleep: e(f"s_sleep {cfg.b5sleep}")

    e.label("L_S7")
    if cfg.s7warm:
        e("s_mov_b32 s7, 0")
    e(f"s_cmp_lt_u32 s{S_W}, 5\ns_cbranch_scc0 L_s7_bar")
    e("s_mov_b32 s66, 0x00010001")
    e.label("L_h5")
    e(f"""
    global_load_dwordx4 v[40:43], v244, {WS} sc1
    global_load_dwordx4 v[44:47], v245, {WS} sc1
    s_waitcnt vmcnt(0)
    """)
    for i in range(8):
        e(f"v_xor_b32 v{40+i}, v{40+i}, v{10+(i&3)}")
    e("v_or3_b32 v56, v40, v41, v42\nv_or3_b32 v57, v43, v44, v45\nv_or3_b32 v56, v46, v47, v56\nv_or_b32 v56, v56, v57\nv_and_b32 v56, s66, v56")
    poll_tail("L_h5", "L_h5_done", 56, cfg.h5sleep)
    stamp(12)
    if cfg.earlyepoch:
        e(f"""
        s_or_b32 s3, s2, s{S_W}
        s_cmp_eq_u32 s3, 0
        s_cbranch_scc0 L_h5_noep
        v_lshlrev_b32 v48, 2, v1
        v_mov_b32 v49, s{S_TAG}
        s_mov_b64 exec, 0xffff
        global_store_dword v48, v49, {WS} sc1
        s_mov_b64 exec, -1
        """)
        e.label("L_h5_noep")
    for i in range(4):
        e(f"v_lshlrev_b32 v{80+2*i}, 16, v{40+i}\nv_and_b32 v{81+2*i}, 0xffff0000, v{40+i}")
    for i in range(4):
        e(f"v_lshlrev_b32 v{88+2*i}, 16, v{44+i}\nv_and_b32 v{89+2*i}, 0xffff0000, v{44+i}")
        e(f"v_pk_add_f32 v[{80+2*i}:{81+2*i}], v[{80+2*i}:{81+2*i}], v[{88+2*i}:{89+2*i}]")
    e("s_nop 0")
    for i in range(4): e(f"v_permlane16_swap_b32 v{80+i}, v{84+i}")
    for i in range(4): e(f"v_add_f32 v{80+i}, v{80+i}, v{84+i}")
    e(f"""
    s_nop 0
    v_permlane32_swap_b32 v80, v82
    v_permlane32_swap_b32 v81, v83
    v_add_f32 v50, v80, v82
    v_add_f32 v51, v81, v83
    v_pk_add_f32 v[50:51], v[50:51], v[58:59]
    ds_write_b64 v248, v[50:51]
    v_add_f32 v52, v50, v51
    v_mul_f32 v53, v50, v50
    v_fmac_f32 v53, v51, v51
    """)
    dpp_reduce([52, 53])
    e(f"""
    s_mov_b32 exec_lo, 0
    s_mov_b32 exec_hi, 0x80000000
    ds_write_b64 v68, v[52:53]
    s_mov_b64 exec, -1
    """)
    e.label("L_s7_bar")
    e(f"""
    s_waitcnt lgkmcnt(0)
    s_barrier
    """)
    if cfg.s7stamps: stamp(1)
    e(f"""
    s_cmp_lt_u32 s2, {216 if cfg.outmap else 214}
    s_cbranch_scc0 L_fin
    """)
    e.label("L_s7_body")
    e(f"""
    ds_read_b128 v[40:43], v62
    ds_read_b128 v[44:47], v62 offset:16
    ds_read_b64 v[48:49], v62 offset:32
    ds_read_b32 v50, v63
    ds_read_b32 v52, v63 offset:4
    ds_read_b32 v54, v63 offset:8
    s_waitcnt lgkmcnt(3)
    v_pk_add_f32 v[40:41], v[40:41], v[42:43]
    v_pk_add_f32 v[44:45], v[44:45], v[46:47]
    v_pk_add_f32 v[40:41], v[40:41], v[48:49]
    v_pk_add_f32 v[40:41], v[40:41], v[44:45]
    v_pk_mul_f32 v[40:41], v[40:41], v[60:61] op_sel_hi:[1,0]
    v_fma_f32 v41, -v40, v40, v41
    v_max_f32 v41, 0, v41
    v_fma_f32 v42, v41, v61, v65
    s_waitcnt lgkmcnt(0)
    v_rsq_f32 v42, v42
    v_sub_f32 v70, v50, v40
    v_sub_f32 v72, v52, v40
    v_sub_f32 v74, v54, v40
    v_mul_f32 v70, v70, v42
    v_mul_f32 v72, v72, v42
    v_mul_f32 v74, v74, v42
    """)
    if cfg.s7stamps: stamp(2)
    combos = [(r, o) for o in range(3) for r in range(2)]
    for c, (r, o) in enumerate(combos):
        e(f"v_pk_fma_f32 v[{80+2*c}:{81+2*c}], v[{70+2*o}:{71+2*o}], v[{232+2*r}:{233+2*r}], v[{236+2*r}:{237+2*r}] op_sel_hi:[0,1,1]")
    for c in range(6):
        e(f"v_pk_mul_f32 v[{92+2*c}:{93+2*c}], v[{80+2*c}:{81+2*c}], v[{80+2*c}:{81+2*c}]")
    for c in range(6):
        e(f"v_pk_fma_f32 v[{92+2*c}:{93+2*c}], v[{92+2*c}:{93+2*c}], v[66:67], v[64:65] op_sel_hi:[1,0,0]")
    for c in range(6):
        e(f"v_pk_mul_f32 v[{92+2*c}:{93+2*c}], v[{92+2*c}:{93+2*c}], v[{80+2*c}:{81+2*c}]")
    for c in range(12):
        e(f"v_exp_f32 v{92+c}, v{92+c}")
    for c in range(6):
        e(f"v_pk_add_f32 v[{92+2*c}:{93+2*c}], v[{92+2*c}:{93+2*c}], 1.0 op_sel_hi:[1,0]")
    for c in range(12):
        e(f"v_rcp_f32 v{92+c}, v{92+c}")
    for c in range(6):
        e(f"v_pk_mul_f32 v[{80+2*c}:{81+2*c}], v[{80+2*c}:{81+2*c}], v[{92+2*c}:{93+2*c}]")
    for o in range(3):
        e(f"v_pk_mul_f32 v[{104+2*o}:{105+2*o}], v[{80+4*o}:{81+4*o}], v[240:241]")
    for o in range(3):
        e(f"v_pk_fma_f32 v[{104+2*o}:{105+2*o}], v[{82+4*o}:{83+4*o}], v[242:243], v[{104+2*o}:{105+2*o}]")
    if cfg.s7stamps: stamp(3)
    e("v_add_f32 v110, v104, v105\nv_add_f32 v111, v106, v107\nv_add_f32 v112, v108, v109")
    dpp_reduce([110, 111, 112])
    e(f"""
    s_mov_b32 exec_lo, 0
    s_mov_b32 exec_hi, 0x80000000
    ds_write_b128 v69, v[110:113]
    s_mov_b64 exec, -1
    """)
    if cfg.s7warm:
        e("s_cmp_eq_u32 s7, 1\ns_cbranch_scc1 L_s7_warm_ret")
    e(f"""
    {"s_mul_i32 s3, s5, 80" if cfg.outmap else "s_mov_b32 s3, 560"}
    s_add_u32 s3, s3, 80
    v_cmp_gt_u32 vcc, s3, v8
    v_lshlrev_b32 v8, 1, v8
    s_waitcnt lgkmcnt(0)
    s_barrier
    """)
    if cfg.s7stamps: stamp(4)
    e(f"""
    s_cmp_eq_u32 s{S_W}, 0
    s_cbranch_scc0 L_fin
    s_and_b64 vcc, vcc, 7
    s_and_saveexec_b64 s[64:65], vcc
    s_cbranch_execz L_fin0
    """)
    for w in range(8):
        e(f"ds_read_b32 v{40+w}, v6 offset:{16*w}")
    e(f"""
    ds_read_b32 v48, v7
    s_waitcnt lgkmcnt(0)
    v_add_f32 v40, v40, v41
    v_add_f32 v42, v42, v43
    v_add_f32 v44, v44, v45
    v_add_f32 v46, v46, v47
    v_add_f32 v48, v48, v9
    v_add_f32 v40, v40, v42
    v_add_f32 v44, v44, v46
    v_add_f32 v40, v40, v48
    v_add_f32 v40, v40, v44
    v_cvt_pk_bf16_f32 v40, v40, v40
    global_store_short v8, v40, s[{P_OUT}:{P_OUT+1}]
    """)
    e.label("L_fin0")
    e("s_mov_b64 exec, s[64:65]")
    e.label("L_fin")
    stamp(13)
    e(f"""
    s_cmp_eq_u32 s2, {0 if not (cfg.noepoch or cfg.earlyepoch) else 100000}
    s_cbranch_scc0 L_noepoch
    s_cmp_eq_u32 s{S_W}, 0
    s_cbranch_scc0 L_noepoch
    v_lshlrev_b32 v6, 2, v1
    v_mov_b32 v7, s{S_TAG}
    s_mov_b64 exec, 0xffff
    global_store_dword v6, v7, {WS} sc1
    s_mov_b64 exec, -1
    """)
    e.label("L_noepoch")
    if cfg.stamps:
        e(f"""
        s_waitcnt lgkmcnt(0)
        s_lshl_b32 s3, s2, 3
        s_add_u32 s3, s3, s{S_W}
        s_lshl_b32 s3, s3, 6
        s_add_u32 s3, s3, {WS_DBG}
        v_mov_b32 v6, s3
        s_mov_b64 exec, 1
        """)
        for q in range(4):
            for k in range(4):
                e(f"v_mov_b32 v{8+k}, s{S_STAMP+2*min(4*q+k,14)}")
            e(f"global_store_dwordx4 v6, v[8:11], {WS} offset:{16*q}")
            e.nop(2)
        e("s_mov_b64 exec, -1")
    e.label("L_exit")
    e("s_endpgm")
    if cfg.s7warm:
        e.label("L_s7_warm_ret")
        e("s_waitcnt lgkmcnt(0)\ns_setpc_b64 s[68:69]")
    e.label("L_fail")
    if cfg.stamps: e("s_mov_b64 exec, -1\ns_branch L_noepoch")
    e("s_endpgm")
    e.label("L_end")
    return e

def render(cfg):
    e = gen(cfg)
    body = e.text()
    hdr = open("cdna_kernels/" + NAME[:-7] + ".s.ref").read().split("; Override launch geometry")[0]
    out = hdr + f"; @launch grid=(256,1,1) block=(512,1,1) lds={LDS_BYTES}\n"
    out += f""".amdgcn_target "amdgcn-amd-amdhsa--gfx950"
.text
.globl {NAME}
.p2align 8
.type {NAME},@function
{NAME}:
{body}.section .rodata,"a"
.p2align 6
.amdhsa_kernel {NAME}
  .amdhsa_next_free_vgpr 256
  .amdhsa_next_free_sgpr 102
  .amdhsa_accum_offset 256
  .amdhsa_group_segment_fixed_size 0
  .amdhsa_kernarg_size 112
  .amdhsa_user_sgpr_count 2
  .amdhsa_user_sgpr_kernarg_segment_ptr 1
  .amdhsa_system_sgpr_workgroup_id_x 1
.end_amdhsa_kernel
"""
    return out, body

if __name__ == "__main__":
    cfg = Cfg()
    outp = sys.argv[1] if len(sys.argv) > 1 else "cdna_kernels/" + NAME[:-7] + ".s"
    for a in sys.argv[2:]:
        k, v = a.split("=")
        setattr(cfg, k, int(v))
    out, body = render(cfg)
    probs = check_hazards(body) + check_kernarg_race(body)
    for p in probs: print("HAZARD", p)
    open(outp, "w").write(out)
    print("wrote", outp, len(out), "bytes;", len(body.splitlines()), "lines")
```

```python
import sys, struct
from asmlib import Emit, check_hazards, check_kernarg_race

NAME = "sequential_preLN__compressed_kv_cla__mixer_token_mlp__decode_kernel"

WS_Q1, WS_Q1F, WS_QA, WS_CTX, WS_OP, WS_CTXF, WS_ST, WS_PART, WS_DBG = 0x10000, 0x20000, 0x50000, 0x60000, 0x70000, 0x90000, 0xC0000, 0x100000, 0x400000
L_CKV = 0
L_WO = 0
L_WQ = 32768
L_WUK = 73728
L_QAS = 131072
QAS_STRIDE = 1056
L_PEX = L_QAS + 8 * QAS_STRIDE
L_MX = L_PEX + 4096
L_LNS = 143872
L_QP = 145152
QP_STRIDE = 288
L_CTXS = 146304
L_BNC = 146560
L_ORED = 147584
L_HS = 149632
L_ST7 = 152192
L_YRED = 152256
LDS_BYTES = 152384

S_W, S_X, S_I, S_ISB = 4, 5, 6, 7
P_X, P_CKV, P_WQ, P_WUK, P_WUV, P_WO, P_W1, P_B1, P_W2, P_B2, P_OUT, P_DBG, P_WS = 8, 10, 12, 14, 16, 18, 22, 24, 26, 28, 30, 32, 34
S_TAG, S_H, S_J, S_CH = 36, 37, 38, 39
SRD_0, SRD_A, SRD_WO, SRD_W1, SRD_B1, SRD_W2 = 40, 44, 48, 52, 56, 60
S_SPIN = 100
S_STAMP = 70

def F32(x): return "0x%08x" % struct.unpack("<I", struct.pack("<f", x))[0]
WS = f"s[{P_WS}:{P_WS+1}]"

LSB_DEBIAS = 1.0 + 0.5 * 2.0**-7 * 0.7213475

class Cfg:
    stamps = 0
    nt = 1
    spin = 1 << 17
    h3sleep = 16
    fast1 = 0
    fast4 = 0
    codepf = 16
    bdelay = 0
    exp_nob = 0
    s7warm = 0
    ukdelay = 0
    touchslow = 0
    spreadk = 0
    spreadq = 0
    earlyepoch = 1
    tlbw = 0
    tlbo = 0
    tlbk = 0
    selftouch = 0
    lsb3 = 1
    ukearly = 0
    outmap = 1
    noepoch = 0
    s7stamps = 0
    touch = 0
    uknt = 1
    tsleep = 0
    planeorder = 1
    hperm = 0
    h3psleep = 0
    b5sleep = 44
    f5sleep = 16
    n5sleep = 44
    ckvnt = 0
    ukbar = 1
    bsleep = 8
    uvpf = 1
    h5sleep = 0
    h4sleep = 0
    h2sleep = 0
    exp_nowuv = 0

def gen(cfg):
    e = Emit()
    NT = " nt" if cfg.nt else ""
    def stamp(k):
        if cfg.stamps:
            e(f"s_memrealtime s[{S_STAMP+2*k}:{S_STAMP+2*k+1}]")
    def dpp_reduce(regs, op="v_add_f32"):
        steps = ["row_shr:1 row_mask:0xf bank_mask:0xf bound_ctrl:0", "row_shr:2 row_mask:0xf bank_mask:0xf bound_ctrl:0",
                 "row_shr:4 row_mask:0xf bank_mask:0xf bound_ctrl:0", "row_shr:8 row_mask:0xf bank_mask:0xf bound_ctrl:0",
                 "row_bcast:15 row_mask:0xa bank_mask:0xf", "row_bcast:31 row_mask:0xc bank_mask:0xf"]
        pad = max(0, 2 - (len(regs) - 1))
        e.nop(2)
        for k, st in enumerate(steps):
            for r in regs:
                e(f"{op}_dpp v{r}, v{r}, v{r} {st}")
            if k < len(steps) - 1 and pad: e.nop(pad)
    def tagchk(acc, tags):
        for k, t in enumerate(tags):
            if k == 0:
                e(f"v_xor_b32 v{acc}, s{S_TAG}, v{t}")
            else:
                e(f"v_bitop3_b32 v{acc}, v{acc}, v{t}, s{S_TAG} bitop3:0xf6")
    def spin_back(lbl_loop):
        e(f"s_sub_u32 s{S_SPIN}, s{S_SPIN}, 1")
        e(f"s_cbranch_scc0 {lbl_loop}")
        e("s_branch L_fail")
    def poll_tail(lbl_loop, lbl_done, acc, sleep=0):
        e(f"v_cmp_ne_u32 vcc, 0, v{acc}")
        e(f"s_cbranch_vccz {lbl_done}")
        if sleep: e(f"s_sleep {sleep}")
        spin_back(lbl_loop)
        e.label(lbl_done)
    def tr_common():
        e("""
        v_bfe_u32 v62, v1, 2, 2
        v_bfe_u32 v63, v1, 1, 1
        v_and_b32 v59, 1, v1
        v_lshlrev_b32 v59, 3, v59
        """)
    def tr256_addr(dst, tmp):
        e(f"""
        v_and_b32 v{dst}, 1, v2
        v_lshl_add_u32 v{dst}, v{dst}, 2, v62
        v_lshlrev_b32 v{dst}, 1, v{dst}
        s_lshl_b32 s3, s{S_W}, 1
        v_add_u32 v{tmp}, s3, v63
        v_xor_b32 v{dst}, v{dst}, v{tmp}
        v_lshl_add_u32 v{dst}, v{dst}, 4, v59
        v_lshl_add_u32 v{tmp}, v2, 3, v62
        v_lshl_add_u32 v{dst}, v{tmp}, 8, v{dst}
        """)
    def tagpat(dst, vsel, tmp):
        e(f"v_lshlrev_b32 v{tmp}, 3, v{vsel}")
        e(f"v_lshrrev_b32 v{tmp}, v{tmp}, s{S_TAG}") if False else e(f"v_mov_b32 v{tmp+1}, s{S_TAG}\nv_lshrrev_b32 v{tmp}, v{tmp}, v{tmp+1}")
        for i in range(4):
            e(f"v_bfe_u32 v{dst+i}, v{tmp}, {2*i}, 1")
            e(f"v_bfe_u32 v{tmp+1}, v{tmp}, {2*i+1}, 1")
            e(f"v_lshl_or_b32 v{dst+i}, v{tmp+1}, 16, v{dst+i}")
    def mk_tag():
        e(f"s_mul_i32 s{S_TAG}, s{S_TAG}, 1664525\ns_add_u32 s{S_TAG}, s{S_TAG}, 1013904223")
    def s7_loads():
        e(f"""
        s_mov_b32 s{SRD_W1}, s{P_W1}
        s_mov_b32 s{SRD_W1+1}, s{P_W1+1}
        s_mov_b32 s{SRD_W1+2}, 3456
        s_mov_b32 s{SRD_W1+3}, 0x20000
        s_mov_b32 s{SRD_B1}, s{P_B1}
        s_mov_b32 s{SRD_B1+1}, s{P_B1+1}
        s_mov_b32 s{SRD_B1+2}, 3456
        s_mov_b32 s{SRD_B1+3}, 0x20000
        s_mov_b32 s{SRD_W2}, s{P_W2}
        s_mov_b32 s{SRD_W2+1}, s{P_W2+1}
        s_mov_b32 s{SRD_W2+2}, 3456
        s_mov_b32 s{SRD_W2+3}, 0x20000
        s_lshl_b32 s3, s{S_W}, 8
        v_lshl_add_u32 v4, v1, 2, s3
        buffer_load_dword v224, v4, s[{SRD_W1}:{SRD_W1+3}], 0 offen
        buffer_load_dword v225, v4, s[{SRD_W1}:{SRD_W1+3}], 0 offen offset:2048
        buffer_load_dword v226, v4, s[{SRD_B1}:{SRD_B1+3}], 0 offen
        buffer_load_dword v227, v4, s[{SRD_B1}:{SRD_B1+3}], 0 offen offset:2048
        buffer_load_dword v228, v4, s[{SRD_W2}:{SRD_W2+3}], 0 offen
        buffer_load_dword v229, v4, s[{SRD_W2}:{SRD_W2+3}], 0 offen offset:2048
        v_mov_b32 v4, 0
        global_load_ushort v231, v4, s[{P_B2}:{P_B2+1}]
        {"global_load_dword v138, v4, s[%d:%d]" % (P_OUT, P_OUT+1) if cfg.tlbo else ""}
        s_min_u32 s3, s{S_W}, 4
        s_lshl_b32 s3, s3, 8
        v_lshlrev_b32 v4, 4, v3
        v_and_b32 v230, 1, v2
        v_lshl_add_u32 v4, v230, 3, v4
        v_lshrrev_b32 v230, 1, v2
        v_lshl_add_u32 v4, v230, 2, v4
        v_add_u32 v4, s3, v4
        global_load_dword v230, v4, s[{P_X}:{P_X+1}]
        """)
    OUTIDX = ("s_lshr_b32 s101, s2, 3\ns_mul_i32 s101, s101, 3\ns_mul_i32 s3, s5, 80\ns_add_u32 s101, s101, s3" if cfg.outmap else "s_mul_i32 s101, s2, 3")
    def s7_prep():
        for k, (raw, dst) in enumerate([(224, 232), (225, 234), (226, 236), (227, 238), (228, 240), (229, 242)]):
            e(f"v_lshlrev_b32 v{dst}, 16, v{raw}\nv_and_b32 v{dst+1}, 0xffff0000, v{raw}")
        e(f"""
        v_mul_u32_u24 v244, 1280, v2
        v_lshl_add_u32 v244, v3, 4, v244
        s_lshl_b32 s3, s{S_W}, 8
        s_add_u32 s64, s3, {WS_OP}
        v_add_u32 v244, s64, v244
        v_add_u32 v245, 5120, v244
        s_lshl_b32 s3, s{S_W}, 9
        s_add_u32 s3, s3, {L_HS}
        v_lshlrev_b32 v248, 5, v3
        v_and_b32 v57, 1, v2
        v_lshl_add_u32 v248, v57, 4, v248
        v_lshrrev_b32 v57, 1, v2
        v_lshl_add_u32 v248, v57, 3, v248
        v_add_u32 v248, s3, v248
        v_lshlrev_b32 v58, 16, v230
        v_and_b32 v59, 0xffff0000, v230
        v_mov_b32 v60, {F32(1.0/640)}
        v_mov_b32 v61, {F32(1.0 + 1e-5)}
        v_mov_b32 v65, {F32(1e-10)}
        v_mov_b32 v64, {F32(-2.0*0.7978845608028654*1.4426950408889634)}
        v_mov_b32 v66, {F32(-2.0*0.7978845608028654*1.4426950408889634*0.044715)}
        v_mov_b32 v62, {L_ST7}
        {OUTIDX}
        s_lshl_b32 s3, s101, 2
        s_add_u32 s3, s3, {L_HS}
        v_mov_b32 v63, s3
        s_lshl_b32 s3, s{S_W}, 3
        s_add_u32 s3, s3, {L_ST7}
        v_mov_b32 v68, s3
        s_lshl_b32 s3, s{S_W}, 4
        s_add_u32 s3, s3, {L_YRED}
        v_mov_b32 v69, s3
        v_mov_b32 v113, 0
        v_add_u32 v8, s101, v1
        v_lshlrev_b32 v6, 2, v1
        v_add_u32 v6, {L_YRED}, v6
        v_lshlrev_b32 v7, 2, v8
        v_add_u32 v7, {L_HS}, v7
        v_lshlrev_b32 v9, 16, v231
        """)
        e("v_and_b32 v57, 3, v1")
        tagpat(10, 57, 14)
        if cfg.s7warm:
            lbl = f"L_wret{len(e.lines)}"
            e(f"s_mov_b32 s7, 1\ns_getpc_b64 s[68:69]\ns_add_u32 s68, s68, 12\ns_addc_u32 s69, s69, 0\ns_branch L_s7_body")
            e(f"v_lshlrev_b32 v58, 16, v230\nv_and_b32 v59, 0xffff0000, v230")

    def uk_dma(bar):
        e(f"""
        s_mov_b32 s{SRD_A}, s{P_WUK}
        s_mov_b32 s{SRD_A+1}, s{P_WUK+1}
        s_mov_b32 s{SRD_A+2}, 4194304
        s_mov_b32 s{SRD_A+3}, 0x20000
        s_and_b32 s66, s{S_W}, 1
        s_lshl_b32 s66, s66, 3
        v_lshlrev_b32 v7, 1, v2
        v_xor_b32 v7, v7, v3
        v_xor_b32 v7, s66, v7
        v_lshlrev_b32 v7, 4, v7
        v_lshl_add_u32 v7, v2, 13, v7
        s_lshl_b32 s64, s{S_J}, 5
        s_add_u32 s64, s64, s{S_W}
        s_lshl_b32 s64, s64, 15
        s_lshl_b32 s65, s{S_H}, 8
        s_add_u32 s64, s64, s65
        s_lshl_b32 s67, s{S_W}, 10
        s_add_u32 s67, s67, {L_WUK}
        """)
        if bar: e("s_barrier")
        for ii in range(8):
            e(f"""
            s_mov_b32 m0, s67
            s_add_u32 s67, s67, 4096
            buffer_load_dwordx4 v7, s[{SRD_A}:{SRD_A+3}], s64 offen{NT} lds
            s_add_u32 s64, s64, {4*4*8192}
            """)

    e(f"""
    s_cmp_ge_u32 s2, 256
    s_cbranch_scc1 L_exit
    s_load_dwordx16 s[8:23], s[0:1], 0
    s_load_dwordx4 s[32:35], s[0:1], 96
    s_load_dwordx8 s[24:31], s[0:1], 64
    """)
    if cfg.codepf:
        e(f"""
        s_cmp_lt_u32 s2, {cfg.codepf}
        s_cbranch_scc0 L_nopf
        s_getpc_b64 s[64:65]
        """)
        e.label("L_pc")
        e(f"""
        s_and_b32 s64, s64, 0xffffff00
        v_lshlrev_b32 v203, 7, v0
        v_min_u32 v203, L_end-L_pc-4, v203
        v_mov_b32 v201, s65
        v_add_co_u32 v200, vcc, s64, v203
        s_nop 1
        v_addc_co_u32 v201, vcc, 0, v201, vcc
        global_load_dword v202, v[200:201], off
        """)
        e.label("L_nopf")
    if cfg.stamps:
        e(f"s_memrealtime s[{S_STAMP}:{S_STAMP+1}]")
        for k in range(1, 15): e(f"s_mov_b32 s{S_STAMP+2*k}, 0")
    e(f"""
    v_and_b32 v1, 63, v0
    v_lshrrev_b32 v4, 6, v0
    v_lshrrev_b32 v2, 4, v1
    v_readfirstlane_b32 s{S_W}, v4
    v_and_b32 v3, 15, v1
    s_and_b32 s{S_X}, s2, 7
    s_bfe_u32 s{S_I}, s2, 0x40003
    s_lshr_b32 s{S_H}, s{S_I}, 2
    s_xor_b32 s{S_H}, s{S_H}, {cfg.hperm}
    s_lshl_b32 s3, s{S_X}, 2
    s_add_u32 s{S_H}, s{S_H}, s3
    s_and_b32 s{S_J}, s{S_I}, 3
    s_mov_b32 s{SRD_0+3}, 0x20000
    s_mov_b32 s{S_SPIN}, {cfg.spin}
    s_cmp_ge_u32 s2, 128
    s_cbranch_scc1 L_B0
    """)
    e(f"""
    s_lshl_b32 s66, s{S_W}, 2
    s_and_b32 s66, s66, 8
    s_mul_i32 s64, s{S_J}, 40
    s_add_u32 s64, s64, s{S_W}
    s_lshl_b32 s64, s64, 15
    s_lshl_b32 s65, s{S_H}, 8
    s_add_u32 s64, s64, s65
    s_lshl_b32 s67, s{S_W}, 10
    s_add_u32 s67, s67, {L_WQ}
    s_mov_b32 s{SRD_0+2}, 5242880
    v_lshlrev_b32 v7, 1, v2
    v_xor_b32 v7, v7, v3
    v_xor_b32 v7, s66, v7
    v_lshlrev_b32 v7, 4, v7
    v_lshl_add_u32 v7, v2, 13, v7
    v_lshlrev_b32 v6, 2, v1
    s_cmp_eq_u32 s{S_W}, 0
    s_waitcnt lgkmcnt(0)
    s_mov_b32 s{SRD_0}, s{P_WQ}
    s_mov_b32 s{SRD_0+1}, s{P_WQ+1}
    s_cbranch_scc0 L_f_nox
    """)
    for k in range(5):
        e(f"global_load_dword v{8+k}, v6, s[{P_X}:{P_X+1}] offset:{256*k}")
    e.label("L_f_nox")
    for ii in range(5):
        e(f"""
        s_mov_b32 m0, s67
        s_add_u32 s67, s67, 8192
        buffer_load_dwordx4 v7, s[{SRD_0}:{SRD_0+3}], s64 offen{NT} lds
        s_add_u32 s64, s64, {8*4*8192}
        """)
    if cfg.tlbk:
        e(f"""
        s_lshl_b32 s3, s{S_J}, 7
        s_lshl_b32 s64, s{S_W}, 4
        s_add_u32 s3, s3, s64
        s_lshl_b32 s3, s3, 13
        s_lshl_b32 s64, s{S_H}, 8
        s_add_u32 s3, s3, s64
        v_mov_b32 v4, s3
        s_mov_b64 exec, 1
        global_load_dword v200, v4, s[{P_WUK}:{P_WUK+1}] nt
        s_mov_b64 exec, -1
        """)
    if cfg.selftouch:
        e(f"""
        v_bfe_u32 v4, v1, 1, 4
        s_lshl_b32 s3, s{S_J}, 7
        s_lshl_b32 s64, s{S_W}, 4
        s_add_u32 s3, s3, s64
        v_add_u32 v4, s3, v4
        v_lshlrev_b32 v4, 13, v4
        v_and_b32 v5, 1, v1
        v_lshl_add_u32 v4, v5, 7, v4
        s_lshl_b32 s3, s{S_H}, 8
        v_add_u32 v4, s3, v4
        s_mov_b64 exec, 0xffffffff
        global_load_dword v200, v4, s[{P_WUK}:{P_WUK+1}] nt
        s_mov_b64 exec, -1
        """)
    if cfg.ukearly and not cfg.ukdelay:
        e("s_barrier")
        e(f"s_cmp_lt_u32 s{S_W}, 4\ns_cbranch_scc0 L_f_nouk")
        uk_dma(False)
        e.label("L_f_nouk")
    e(f"""
    s_load_dword s{S_TAG}, {WS}, 0
    s_branch L_F1
    """)
    e.label("L_B0")
    if cfg.exp_nob: e("s_endpgm")
    e(f"""
    s_lshl_b32 s3, s{S_W}, 1
    v_xor_b32 v7, s3, v1
    v_lshlrev_b32 v7, 4, v7
    s_lshl_b32 s{S_CH}, s{S_X}, 2
    s_add_u32 s{S_CH}, s{S_CH}, s{S_J}
    s_lshl_b32 s66, s{S_CH}, 17
    s_and_b32 s67, s{S_I}, 12
    s_lshl_b32 s67, s67, 13
    s_lshl_b32 s65, s{S_W}, 10
    s_add_u32 s67, s67, s65
    s_mov_b32 s{SRD_0+2}, 4194304
    s_mov_b32 s68, 15
    v_bfe_u32 v4, v1, 1, 4
    s_lshl_b32 s3, s{S_J}, 7
    s_lshl_b32 s64, s{S_W}, 4
    s_add_u32 s3, s3, s64
    v_add_u32 v4, s3, v4
    v_lshlrev_b32 v4, 13, v4
    v_and_b32 v5, 1, v1
    v_lshl_add_u32 v4, v5, 7, v4
    s_lshl_b32 s3, s{S_H}, 8
    v_add_u32 v4, s3, v4
    s_waitcnt lgkmcnt(0)
    s_mov_b32 s{SRD_0}, s{P_CKV}
    s_mov_b32 s{SRD_0+1}, s{P_CKV+1}
    """)
    if cfg.tlbw:
        e(f"""
        s_cmp_eq_u32 s{S_I}, 0
        s_cselect_b32 s3, s{S_W}, 0
        s_cmp_eq_u32 s3, 7
        s_cbranch_scc0 L_notlb
        s_mov_b64 exec, 1
        v_mov_b32 v8, 0
        v_mov_b32 v9, 0x200000
        v_mov_b32 v10, 0x3ffffc
        v_mov_b32 v11, 0x4ffffc
        global_load_dword v204, v8, s[{P_WUK}:{P_WUK+1}] nt
        global_load_dword v204, v9, s[{P_WUK}:{P_WUK+1}] nt
        global_load_dword v204, v10, s[{P_WUK}:{P_WUK+1}] nt
        global_load_dword v204, v8, s[{P_WUV}:{P_WUV+1}] nt
        global_load_dword v204, v9, s[{P_WUV}:{P_WUV+1}] nt
        global_load_dword v204, v10, s[{P_WUV}:{P_WUV+1}] nt
        global_load_dword v204, v8, s[{P_WO}:{P_WO+1}] nt
        global_load_dword v204, v9, s[{P_WO}:{P_WO+1}] nt
        global_load_dword v204, v10, s[{P_WO}:{P_WO+1}] nt
        global_load_dword v204, v11, s[{P_WO}:{P_WO+1}] nt
        global_load_dword v204, v8, s[{P_W1}:{P_W1+1}]
        global_load_dword v204, v8, s[{P_B1}:{P_B1+1}]
        global_load_dword v204, v8, s[{P_W2}:{P_W2+1}]
        global_load_ushort v204, v8, s[{P_B2}:{P_B2+1}]
        global_load_dword v204, v8, s[{P_OUT}:{P_OUT+1}]
        s_mov_b64 exec, -1
        """)
        e.label("L_notlb")
    if cfg.tsleep: e(f"s_sleep {cfg.tsleep}")
    if cfg.spreadq or cfg.spreadk:
        e(f"""
        s_lshl_b32 s3, s{S_X}, 2
        s_add_u32 s3, s3, 1
        s_lshl_b32 s3, s3, 8
        v_lshrrev_b32 v8, 1, v1
        v_and_b32 v9, 1, v1
        v_lshlrev_b32 v9, 7, v9
        v_add_u32 v9, s3, v9
        """)
        if cfg.spreadq:
            e(f"""
            s_mul_i32 s3, s{S_I}, 40
            s_mul_i32 s64, s{S_W}, 5
            s_add_u32 s3, s3, s64
            v_add_u32 v10, s3, v8
            v_lshl_add_u32 v10, v10, 13, v9
            s_mov_b64 exec, 0x3ff
            global_load_dword v200, v10, s[{P_WQ}:{P_WQ+1}] nt
            s_mov_b64 exec, -1
            """)
        if cfg.spreadk:
            e(f"""
            s_lshl_b32 s3, s{S_I}, 5
            s_lshl_b32 s64, s{S_W}, 2
            s_add_u32 s3, s3, s64
            v_add_u32 v10, s3, v8
            v_lshl_add_u32 v10, v10, 13, v9
            s_mov_b64 exec, 0xff
            global_load_dword v200, v10, s[{P_WUK}:{P_WUK+1}] nt
            s_mov_b64 exec, -1
            """)
    if cfg.touchslow:
        e(f"""
        s_and_b32 s3, s{S_H}, 3
        s_cmp_eq_u32 s3, {cfg.touchslow - 1}
        s_cbranch_scc0 L_notouch
        s_mov_b64 exec, 0xffffffff
        global_load_dword v200, v4, s[{P_WUK}:{P_WUK+1}] nt
        s_mov_b64 exec, -1
        """)
        e.label("L_notouch")
    if cfg.touch: e(f"""
    s_mov_b64 exec, 0xffffffff
    global_load_dword v200, v4, s[{P_WUK}:{P_WUK+1}]{" nt" if cfg.uknt else ""}
    s_mov_b64 exec, -1
    """)
    if cfg.bdelay: e(f"s_load_dword s{S_TAG}, {WS}, 0\ns_waitcnt lgkmcnt(0)")
    if cfg.bsleep: e(f"s_sleep {cfg.bsleep}")
    e.label("L_b_dma")
    e(f"""
    s_mov_b32 m0, s67
    s_add_u32 s69, s67, s66
    buffer_load_dwordx4 v7, s[{SRD_0}:{SRD_0+3}], s69 offen{" nt" if cfg.ckvnt else ""} lds
    s_add_u32 s67, s67, 8192
    s_and_b32 s67, s67, 0x1ffff
    s_sub_u32 s68, s68, 1
    s_cbranch_scc0 L_b_dma
    """)
    if not cfg.bdelay: e(f"s_load_dword s{S_TAG}, {WS}, 0")
    e("s_branch L_B1")

    e.label("L_F1")
    e(f"s_mov_b32 s{S_ISB}, 0")
    stamp(1)
    tr_common()
    e(f"""
    v_and_b32 v41, 1, v2
    v_lshl_add_u32 v41, v41, 2, v62
    v_lshlrev_b32 v41, 1, v41
    s_and_b32 s65, s{S_W}, 3
    s_lshl_b32 s3, s65, 2
    v_add_u32 v42, s3, v63
    v_xor_b32 v41, v41, v42
    v_lshl_add_u32 v41, v41, 4, v59
    v_lshl_add_u32 v42, v2, 3, v62
    v_lshl_add_u32 v41, v42, 8, v41
    v_add_u32 v41, {L_WQ}, v41
    v_xor_b32 v40, 32, v41
    s_mul_i32 s3, s{S_J}, 320
    s_add_u32 s3, s3, {L_LNS}
    v_lshl_add_u32 v42, v2, 4, s3
    s_lshl_b32 s3, s{S_H}, 2
    s_add_u32 s3, s3, s{S_J}
    s_lshl_b32 s3, s3, 9
    s_lshl_b32 s64, s65, 7
    s_add_u32 s3, s3, s64
    s_add_u32 s65, s3, {WS_Q1}
    v_and_b32 v43, 1, v1
    v_lshlrev_b32 v43, 6, v43
    v_lshl_add_u32 v43, v2, 4, v43
    v_add_u32 v43, s65, v43
    v_add_u32 v44, {WS_Q1F-WS_Q1}, v43
    s_lshl_b32 s64, s{S_W}, 6
    s_lshl_b32 s3, s{S_H}, 2
    s_and_b32 s65, s{S_W}, 3
    s_add_u32 s3, s3, s65
    s_lshl_b32 s3, s3, 9
    s_add_u32 s3, s3, {WS_Q1}
    v_lshl_add_u32 v45, v1, 3, s3
    v_add_u32 v49, {WS_Q1F-WS_Q1}, v45
    s_mul_i32 s3, s65, {QP_STRIDE}
    s_add_u32 s3, s3, {L_QP}
    v_lshl_add_u32 v46, v1, 2, s3
    v_and_b32 v47, 3, v3
    v_mul_u32_u24 v47, {QP_STRIDE}, v47
    v_lshl_add_u32 v47, v2, 4, v47
    v_add_u32 v47, {L_QP}, v47
    s_and_b32 s66, s{S_W}, 3
    s_lshl_b32 s3, s{S_H}, 10
    s_lshl_b32 s65, s{S_J}, 8
    s_add_u32 s3, s3, s65
    s_lshl_b32 s64, s66, 6
    s_add_u32 s3, s3, s64
    s_add_u32 s65, s3, {WS_QA}
    v_and_b32 v50, 1, v1
    v_lshlrev_b32 v50, 1, v50
    v_lshrrev_b32 v51, 1, v2
    v_add_u32 v50, v50, v51
    v_lshl_add_u32 v48, v50, 4, s65
    s_lshl_b32 s3, s66, 5
    v_add_u32 v24, s3, v3
    v_lshlrev_b32 v24, 8, v24
    v_and_b32 v25, 7, v3
    v_lshlrev_b32 v25, 1, v25
    v_xor_b32 v25, v25, v2
    v_lshl_add_u32 v24, v25, 4, v24
    v_add_u32 v24, {L_WUK}, v24
    v_xor_b32 v25, 64, v24
    v_xor_b32 v26, 128, v24
    v_xor_b32 v27, 192, v24
    s_waitcnt lgkmcnt(0)
    """)
    mk_tag()
    e(f"v_mov_b32 v105, s{S_TAG}\nv_mov_b32 v107, s{S_TAG}")
    tagpat(52, 50, 56)
    e(f"""
    s_cmp_eq_u32 s{S_W}, 0
    s_cbranch_scc0 L_f_noln
    """)
    e(f"s_waitcnt vmcnt({13 if (cfg.ukearly and not cfg.ukdelay) else 5 + cfg.selftouch + cfg.tlbk})")
    stamp(2)
    for k in range(5):
        e(f"v_lshlrev_b32 v{64+2*k}, 16, v{8+k}")
        e(f"v_and_b32 v{65+2*k}, 0xffff0000, v{8+k}")
    e(f"""
    v_pk_add_f32 v[74:75], v[64:65], v[66:67]
    v_pk_add_f32 v[76:77], v[68:69], v[70:71]
    v_pk_add_f32 v[74:75], v[74:75], v[72:73]
    v_pk_add_f32 v[74:75], v[74:75], v[76:77]
    v_mov_b32 v78, {F32(-1.0/640)}
    v_add_f32 v74, v74, v75
    """)
    dpp_reduce([74])
    e.nop(1)
    e("v_readlane_b32 s20, v74, 63")
    e(f"v_mov_b32 v80, {F32(1.0/640)}\nv_mov_b32 v81, {F32(1e-5)}")
    e("v_mul_f32 v78, s20, v78")
    for k in range(5):
        e(f"v_pk_add_f32 v[{64+2*k}:{65+2*k}], v[{64+2*k}:{65+2*k}], v[78:79] op_sel_hi:[1,0]")
    e("v_pk_mul_f32 v[74:75], v[64:65], v[64:65]")
    for k in range(1, 5):
        e(f"v_pk_fma_f32 v[74:75], v[{64+2*k}:{65+2*k}], v[{64+2*k}:{65+2*k}], v[74:75]")
    e("v_add_f32 v74, v74, v75")
    dpp_reduce([74])
    e.nop(1)
    e("v_readlane_b32 s21, v74, 63")
    e(f"v_mov_b32 v82, {F32(128**-0.5 * 1.4426950408889634 * LSB_DEBIAS)}")
    e(f"v_add_u32 v6, {L_LNS}, v6")
    e("v_fma_f32 v74, s21, v80, v81")
    e("v_rsq_f32 v74, v74")
    e.nop(1)
    e("v_mul_f32 v74, v74, v82")
    for k in range(5):
        e(f"v_pk_mul_f32 v[{64+2*k}:{65+2*k}], v[{64+2*k}:{65+2*k}], v[74:75] op_sel_hi:[1,0]")
    for k in range(5):
        e(f"v_cvt_pk_bf16_f32 v{8+k}, v{64+2*k}, v{65+2*k}")
        e(f"ds_write_b32 v6, v{8+k} offset:{256*k}")
    e.label("L_f_noln")
    if cfg.ukearly and cfg.ukdelay:
        e(f"s_cmp_lt_u32 s{S_W}, 4\ns_cbranch_scc0 L_f_nouk\ns_cmp_eq_u32 s{S_W}, 0\ns_cbranch_scc1 L_f_uk0\ns_sleep {cfg.ukdelay}")
        e.label("L_f_uk0")
        uk_dma(False)
        e.label("L_f_nouk")
    if cfg.ukearly:
        e(f"s_cmp_lt_u32 s{S_W}, 4\ns_cbranch_scc0 L_f_w0\ns_waitcnt vmcnt(8)\ns_branch L_f_w1")
        e.label("L_f_w0")
        e("s_waitcnt vmcnt(0)")
        e.label("L_f_w1")
        e("s_waitcnt lgkmcnt(0)")
    else:
        e(f"s_waitcnt vmcnt({cfg.selftouch + cfg.tlbk}) lgkmcnt(0)")
    e("s_barrier")
    stamp(3)
    e(f"s_cmp_lt_u32 s{S_W}, 4\ns_cbranch_scc1 L_f_uk")
    for ks in range(5):
        e(f"ds_read_b128 v[{84+4*ks}:{87+4*ks}], v42 offset:{64*ks}")
        e(f"ds_read_b64_tr_b16 v[{64+4*ks}:{65+4*ks}], v41 offset:{8192*ks}")
        e(f"ds_read_b64_tr_b16 v[{66+4*ks}:{67+4*ks}], v41 offset:{8192*ks+1024}")
        e(f"ds_read_b64_tr_b16 v[{112+4*ks}:{113+4*ks}], v40 offset:{8192*ks}")
        e(f"ds_read_b64_tr_b16 v[{114+4*ks}:{115+4*ks}], v40 offset:{8192*ks+1024}")
    e("s_mov_b32 s64, 0xaaaaaaaa\ns_mov_b32 s65, 0xaaaaaaaa")
    for ks in range(5):
        e(f"s_waitcnt lgkmcnt({min(15, 20-5*ks)})")
        c = "0" if ks == 0 else "v[108:111]"
        e(f"v_mfma_f32_16x16x32_bf16 v[108:111], v[{64+4*ks}:{67+4*ks}], v[{84+4*ks}:{87+4*ks}], {c}")
        c = "0" if ks == 0 else "v[132:135]"
        e(f"v_mfma_f32_16x16x32_bf16 v[132:135], v[{112+4*ks}:{115+4*ks}], v[{84+4*ks}:{87+4*ks}], {c}")
    e("s_mov_b32 exec_lo, 0x00030003\ns_mov_b32 exec_hi, 0x00030003")
    e.nop(6)
    for r in range(4):
        e(f"v_cndmask_b32 v{108+r}, v{108+r}, v{132+r}, s[64:65]")
    e("""
    v_cvt_pk_bf16_f32 v104, v108, v109
    v_cvt_pk_bf16_f32 v106, v110, v111
    """)
    if cfg.fast1: e(f"global_store_dwordx4 v44, v[104:107], {WS}")
    e(f"global_store_dwordx4 v43, v[104:107], {WS} sc1\ns_mov_b64 exec, -1")
    stamp(4)
    e(("" if cfg.ukearly else "s_barrier\n") + "s_branch L_h1_bar")
    e.label("L_f_uk")
    if not cfg.ukearly: uk_dma(True)
    e.label("L_h1")
    if cfg.fast1:
        e(f"global_load_dwordx2 v[66:67], v49, {WS} sc1")
        e(f"global_load_dwordx2 v[64:65], v45, {WS} sc1\ns_waitcnt vmcnt(0)")
        e(f"v_cmp_eq_u32 vcc, s{S_TAG}, v67")
        e.nop(2)
        e("v_cndmask_b32 v64, v64, v66, vcc\nv_cndmask_b32 v65, v65, v67, vcc")
    else:
        e(f"global_load_dwordx2 v[64:65], v45, {WS} sc1\ns_waitcnt vmcnt(0)")
    e(f"v_cmp_ne_u32 vcc, s{S_TAG}, v65")
    e(f"s_cbranch_vccz L_h1_done")
    spin_back("L_h1")
    e.label("L_h1_done")
    stamp(8)
    stamp(7)
    e("ds_write_b32 v46, v64")
    e.label("L_h1_bar")
    e("s_waitcnt lgkmcnt(0)\ns_barrier")
    stamp(5)
    e(f"s_cmp_lt_u32 s{S_W}, 4\ns_cbranch_scc1 L_f_nos2")
    for t in range(4):
        e(f"ds_read_b128 v[{64+4*t}:{67+4*t}], v47 offset:{64*t}")
        e(f"ds_read_b128 v[{80+4*t}:{83+4*t}], v{24+t}")
        e(f"ds_read_b128 v[{112+4*t}:{115+4*t}], v{24+t} offset:4096")
    e("s_mov_b32 s64, 0xaaaaaaaa\ns_mov_b32 s65, 0xaaaaaaaa")
    for t in range(4):
        e(f"s_waitcnt lgkmcnt({9-3*t})")
        c = "0" if t == 0 else "v[108:111]"
        e(f"v_mfma_f32_16x16x32_bf16 v[108:111], v[{80+4*t}:{83+4*t}], v[{64+4*t}:{67+4*t}], {c}")
        c = "0" if t == 0 else "v[132:135]"
        e(f"v_mfma_f32_16x16x32_bf16 v[132:135], v[{112+4*t}:{115+4*t}], v[{64+4*t}:{67+4*t}], {c}")
    e.nop(7)
    for st in ("row_ror:1", "row_ror:2"):
        for r in list(range(108, 112)) + list(range(132, 136)):
            e(f"v_add_f32_dpp v{r}, v{r}, v{r} {st} row_mask:0xf bank_mask:0xf")
    for r in range(4):
        e(f"v_cndmask_b32 v{108+r}, v{108+r}, v{132+r}, s[64:65]")
    e("""
    v_cvt_pk_bf16_f32 v104, v108, v109
    v_cvt_pk_bf16_f32 v105, v110, v111
    s_mov_b32 s66, 0xfffefffe
    v_mov_b32 v106, v104
    v_mov_b32 v107, v105
    s_nop 1
    v_permlane16_swap_b32 v104, v106
    v_permlane16_swap_b32 v105, v107
    s_mov_b32 exec_lo, 3
    s_mov_b32 exec_hi, 3
    v_and_or_b32 v104, v104, s66, v52
    v_and_or_b32 v105, v105, s66, v53
    v_and_or_b32 v106, v106, s66, v54
    v_and_or_b32 v107, v107, s66, v55
    """)
    e(f"global_store_dwordx4 v48, v[104:107], {WS} sc1\ns_mov_b64 exec, -1")
    stamp(6)
    e.label("L_f_nos2")
    e("s_barrier")
    if cfg.uvpf:
        e(f"""
        v_lshrrev_b32 v4, 1, v1
        s_lshl_b32 s3, s{S_J}, 7
        s_lshl_b32 s64, s{S_W}, 4
        s_add_u32 s3, s3, s64
        v_and_b32 v4, 15, v4
        v_add_u32 v4, s3, v4
        v_lshlrev_b32 v4, 13, v4
        v_and_b32 v5, 1, v1
        v_lshl_add_u32 v4, v5, 7, v4
        s_lshl_b32 s3, s{S_H}, 8
        v_add_u32 v4, s3, v4
        s_mov_b64 exec, 0xffffffff
        global_load_dword v5, v4, s[{P_WUV}:{P_WUV+1}]{NT}
        s_mov_b64 exec, -1
        """)
    e(f"s_cmp_lt_u32 s{S_I}, 10\ns_cbranch_scc1 L_s6")
    s7_loads()
    e("s_waitcnt vmcnt(0)")
    s7_prep()
    if cfg.n5sleep:
        e(f"""
        s_cmp_lt_u32 s{S_W}, 5
        s_cbranch_scc0 L_S7
        s_lshl_b32 s3, s{S_H}, 2
        s_add_u32 s3, s3, s{S_J}
        s_lshl_b32 s3, s3, 9
        s_add_u32 s3, s3, {WS_CTX}
        v_mov_b32 v40, s3
        """)
        e.label("L_sent")
        e(f"""
        global_load_dwordx2 v[42:43], v40, {WS} sc1
        s_waitcnt vmcnt(0)
        v_cmp_ne_u32 vcc, s{S_TAG}, v43
        s_cbranch_vccz L_sent_done
        s_sleep 8
        """)
        spin_back("L_sent")
        e.label("L_sent_done")
        e(f"s_sleep {cfg.n5sleep}")
    e("s_branch L_S7")
    e.label("L_s6")
    e(f"""
    s_mov_b32 s{SRD_WO}, s{P_WO}
    s_mov_b32 s{SRD_WO+1}, s{P_WO+1}
    s_mov_b32 s{SRD_WO+2}, 5242880
    s_mov_b32 s{SRD_WO+3}, 0x20000
    v_lshrrev_b32 v12, 3, v1
    v_mul_u32_u24 v50, 1280, v12
    v_and_b32 v12, 2, v12
    v_and_b32 v13, 7, v1
    v_xor_b32 v12, v12, v13
    v_lshl_add_u32 v50, v12, 4, v50
    v_xor_b32 v51, 64, v50
    s_lshl_b32 s3, s{S_X}, 3
    s_add_u32 s3, s3, s{S_W}
    s_mul_i32 s20, s3, {64*1280}
    s_lshl_b32 s65, s{S_I}, 7
    s_add_u32 s20, s20, s65
    s_lshl_b32 s21, s{S_W}, 13
    """)
    for ii in range(8):
        e(f"""
        s_mov_b32 m0, s21
        s_add_u32 s21, s21, 1024
        buffer_load_dwordx4 v{50+(ii&1)}, s[{SRD_WO}:{SRD_WO+3}], s20 offen{NT} lds
        s_add_u32 s20, s20, {8*1280}
        """)
    s7_loads()
    tr_common()
    e(f"""
    v_lshl_add_u32 v12, v2, 3, v62
    v_lshlrev_b32 v12, 7, v12
    v_add_u32 v12, v12, v59
    s_lshl_b32 s3, s{S_W}, 13
    v_add_u32 v12, s3, v12
    v_and_b32 v13, 1, v2
    v_lshlrev_b32 v13, 2, v13
    v_and_b32 v14, 2, v62
    v_or_b32 v13, v13, v14
    v_xor_b32 v13, v13, v63
    v_lshl_add_u32 v249, v13, 4, v12
    v_xor_b32 v250, 32, v249
    v_xor_b32 v251, 64, v249
    v_xor_b32 v252, 96, v249
    s_lshr_b32 s3, s{S_W}, 1
    s_lshl_b32 s64, s{S_X}, 2
    s_add_u32 s3, s3, s64
    s_lshl_b32 s3, s3, 11
    s_and_b32 s64, s{S_W}, 1
    s_lshl_b32 s64, s64, 8
    s_add_u32 s3, s3, s64
    s_add_u32 s3, s3, {WS_CTX}
    v_lshlrev_b32 v140, 9, v2
    v_lshl_add_u32 v140, v3, 4, v140
    v_add_u32 v140, s3, v140
    v_add_u32 v141, {WS_CTXF-WS_CTX}, v140
    s_lshl_b32 s3, s{S_W}, 7
    s_add_u32 s3, s3, {L_BNC}
    v_lshl_add_u32 v142, v3, 2, v2
    v_lshlrev_b32 v142, 1, v142
    v_add_u32 v142, s3, v142
    v_lshl_add_u32 v143, v2, 4, s3
    s_lshl_b32 s3, s{S_W}, 8
    s_add_u32 s3, s3, {L_ORED}
    v_lshl_add_u32 v253, v2, 4, s3
    v_lshlrev_b32 v254, 3, v1
    v_add_u32 v254, {L_ORED}, v254
    s_mul_i32 s3, s{S_X}, 1280
    s_lshl_b32 s64, s{S_I}, 7
    s_add_u32 s3, s3, s64
    s_add_u32 s3, s3, {WS_OP}
    v_lshl_add_u32 v255, v1, 2, s3
    v_and_b32 v12, 15, v1
    v_lshlrev_b32 v12, 1, v12
    v_mov_b32 v13, s{S_TAG}
    v_lshrrev_b32 v12, v12, v13
    v_and_b32 v13, 1, v12
    v_and_b32 v12, 2, v12
    v_lshl_or_b32 v136, v12, 15, v13
    s_waitcnt vmcnt(0)
    """)
    stamp(9)
    s7_prep()
    for tt in range(4):
        for ks in range(2):
            r = 80 + 8 * tt + 4 * ks
            e(f"ds_read_b64_tr_b16 v[{r}:{r+1}], v{249+tt} offset:{4096*ks}")
            e(f"ds_read_b64_tr_b16 v[{r+2}:{r+3}], v{249+tt} offset:{4096*ks+512}")
    e.label("L_h4")
    if cfg.fast4:
        e(f"global_load_dwordx4 v[44:47], v141, {WS} sc1")
        e(f"global_load_dwordx4 v[40:43], v140, {WS} sc1\ns_waitcnt vmcnt(0)")
        tagchk(48, [45, 47])
        e("v_cmp_eq_u32 vcc, 0, v48")
        e.nop(2)
        for k in range(4): e(f"v_cndmask_b32 v{40+k}, v{40+k}, v{44+k}, vcc")
    else:
        e(f"global_load_dwordx4 v[40:43], v140, {WS} sc1\ns_waitcnt vmcnt(0)")
    tagchk(48, [41, 43])
    poll_tail("L_h4", "L_h4_done", 48, cfg.h4sleep)
    stamp(10)
    e("""
    v_lshlrev_b32 v44, 16, v40
    v_and_b32 v45, 0xffff0000, v40
    v_lshlrev_b32 v46, 16, v42
    v_and_b32 v47, 0xffff0000, v42
    s_nop 1
    v_permlane32_swap_b32 v44, v46
    v_permlane32_swap_b32 v45, v47
    v_add_f32 v44, v44, v46
    v_add_f32 v45, v45, v47
    s_nop 1
    v_permlane16_swap_b32 v44, v45
    v_add_f32 v44, v44, v45
    v_cvt_pk_bf16_f32 v44, v44, v44
    ds_write_b16 v142, v44
    s_waitcnt lgkmcnt(0)
    ds_read_b128 v[112:115], v143
    ds_read_b128 v[116:119], v143 offset:64
    """)
    for ks in range(2):
        e(f"s_waitcnt lgkmcnt({1-ks})")
        for tt in range(4):
            c = "0" if ks == 0 else f"v[{120+4*tt}:{123+4*tt}]"
            r = 80 + 8 * tt + 4 * ks
            e(f"v_mfma_f32_16x16x32_bf16 v[{120+4*tt}:{123+4*tt}], v[{r}:{r+3}], v[{112+4*ks}:{115+4*ks}], {c}")
    e("s_mov_b32 exec_lo, 0x00010001\ns_mov_b32 exec_hi, 0x00010001")
    e.nop(3)
    for tt in range(4):
        e(f"ds_write_b128 v253, v[{120+4*tt}:{123+4*tt}] offset:{64*tt}")
    e(f"""
    s_mov_b64 exec, -1
    s_waitcnt lgkmcnt(0)
    s_barrier
    s_cmp_eq_u32 s{S_W}, 7
    s_cbranch_scc0 L_s6_w
    s_mov_b64 exec, 0xffffffff
    """)
    for w in range(8):
        e(f"ds_read_b64 v[{40+2*w}:{41+2*w}], v254 offset:{256*w}")
    e(f"""
    s_mov_b32 s66, 0xfffefffe
    s_waitcnt lgkmcnt(0)
    v_pk_add_f32 v[40:41], v[40:41], v[42:43]
    v_pk_add_f32 v[44:45], v[44:45], v[46:47]
    v_pk_add_f32 v[48:49], v[48:49], v[50:51]
    v_pk_add_f32 v[52:53], v[52:53], v[54:55]
    v_pk_add_f32 v[40:41], v[40:41], v[44:45]
    v_pk_add_f32 v[48:49], v[48:49], v[52:53]
    v_pk_add_f32 v[40:41], v[40:41], v[48:49]
    v_cvt_pk_bf16_f32 v56, v40, v41
    v_lshrrev_b32 v57, 1, v56
    v_and_b32 v57, 0x00010001, v57
    v_add_u32 v56, v56, v57
    v_and_or_b32 v56, v56, s66, v136
    global_store_dword v255, v56, {WS} sc1
    s_mov_b64 exec, -1
    """)
    stamp(11)
    e("s_branch L_S7")
    e.label("L_s6_w")
    if cfg.f5sleep: e(f"s_sleep {cfg.f5sleep}")
    e("s_branch L_S7")

    e.label("L_B1")
    e(f"s_mov_b32 s{S_ISB}, 1")
    stamp(1)
    e(f"""
    s_lshr_b32 s3, s{S_I}, 2
    s_lshl_b32 s3, s3, 3
    s_add_u32 s3, s3, s{S_W}
    s_lshl_b32 s3, s3, 10
    s_add_u32 s3, s3, {WS_QA}
    v_lshl_add_u32 v5, v1, 4, s3
    s_mul_i32 s3, s{S_W}, {QAS_STRIDE}
    s_add_u32 s3, s3, {L_QAS}
    v_lshl_add_u32 v6, v1, 4, s3
    """)
    tr_common()
    e(f"s_cmp_lt_u32 s{S_W}, 4\ns_cbranch_scc0 L_bp_prep")
    def h2_poll(sfx):
        msk = "s66" if sfx == "q" else "s67"
        e("s_waitcnt vmcnt(0)\ns_branch L_h2_chk" + sfx)
        e.label("L_h2" + sfx)
        e(f"""
        global_load_dwordx4 v[40:43], v5, {WS} sc1
        s_waitcnt vmcnt(0)
        """)
        e.label("L_h2_chk" + sfx)
        for i in range(4):
            e(f"v_xor_b32 v{40+i}, v{40+i}, v{44+i}")
        e(f"v_or3_b32 v4, v40, v41, v42\nv_or_b32 v4, v4, v43\nv_and_b32 v4, {msk}, v4")
        poll_tail("L_h2" + sfx, "L_h2_done" + sfx, 4, cfg.h2sleep)
        stamp(5)
        e(f"""
        ds_write_b128 v6, v[40:43]
        s_waitcnt lgkmcnt(0)
        s_barrier
        """)
    e(f"""
    s_lshl_b32 s3, s{S_W}, 5
    v_add_u32 v12, s3, v3
    v_lshlrev_b32 v12, 10, v12
    v_and_b32 v13, 7, v1
    v_lshlrev_b32 v13, 1, v13
    v_xor_b32 v13, v13, v2
    v_lshl_add_u32 v8, v13, 4, v12
    v_xor_b32 v9, 64, v8
    v_xor_b32 v10, 128, v8
    v_xor_b32 v11, 192, v8
    v_and_b32 v216, 7, v3
    v_lshlrev_b32 v217, 4, v216
    v_mul_u32_u24 v216, {QAS_STRIDE}, v216
    v_lshl_add_u32 v216, v2, 4, v216
    v_add_u32 v216, {L_QAS}, v216
    v_add_u32 v217, {L_MX}, v217
    s_lshl_b32 s3, s{S_W}, 2
    v_add_u32 v218, s3, v217
    s_lshl_b32 s3, s{S_W}, 10
    s_add_u32 s3, s3, {L_PEX}
    v_lshl_add_u32 v219, v1, 4, s3
    v_and_b32 v220, 1, v2
    v_lshl_add_u32 v220, v220, 2, v62
    v_lshlrev_b32 v220, 1, v220
    s_lshl_b32 s3, s{S_W}, 2
    v_add_u32 v12, s3, v63
    v_xor_b32 v220, v220, v12
    v_lshl_add_u32 v220, v220, 4, v59
    v_lshl_add_u32 v12, v2, 3, v62
    v_lshl_add_u32 v220, v12, 8, v220
    v_xor_b32 v221, 32, v220
    s_lshl_b32 s3, s{S_H}, 10
    s_lshl_b32 s65, s{S_J}, 8
    s_add_u32 s3, s3, s65
    s_lshl_b32 s64, s{S_W}, 6
    s_add_u32 s3, s3, s64
    s_add_u32 s65, s3, {WS_PART}
    s_lshl_b32 s64, s{S_W}, 7
    v_lshrrev_b32 v12, 2, v1
    v_and_b32 v13, 3, v1
    v_lshlrev_b32 v222, 15, v12
    v_lshl_add_u32 v222, v13, 4, v222
    v_add_u32 v222, s65, v222
    s_lshl_b32 s3, s{S_H}, 7
    s_add_u32 s3, s3, {WS_ST}
    v_lshlrev_b32 v48, 12, v12
    v_lshl_add_u32 v48, v13, 4, v48
    v_add_u32 v48, s3, v48
    v_and_b32 v223, 1, v2
    v_lshlrev_b32 v223, 4, v223
    v_lshrrev_b32 v12, 1, v2
    v_lshl_add_u32 v223, v12, 1, v223
    v_lshl_add_u32 v223, v13, 2, v223
    s_lshl_b32 s3, s{S_W}, 5
    v_add_u32 v223, s3, v223
    v_lshlrev_b32 v223, 1, v223
    v_add_u32 v223, {L_CTXS}, v223
    v_lshlrev_b32 v49, 4, v2
    v_add_u32 v49, {L_CTXS}, v49
    s_lshl_b32 s3, s{S_H}, 2
    s_add_u32 s3, s3, s{S_J}
    s_lshl_b32 s3, s3, 9
    s_add_u32 s3, s3, s64
    s_add_u32 s3, s3, {WS_CTX}
    v_and_b32 v50, 1, v1
    v_lshlrev_b32 v50, 6, v50
    v_lshl_add_u32 v50, v2, 4, v50
    v_add_u32 v50, s3, v50
    v_add_u32 v51, {WS_CTXF-WS_CTX}, v50
    s_waitcnt lgkmcnt(0)
    """)
    mk_tag()
    e("v_and_b32 v16, 3, v1\ns_mov_b32 s66, 0x00010001")
    tagpat(44, 16, 12)
    e(f"s_waitcnt vmcnt(0)\nglobal_load_dwordx4 v[40:43], v5, {WS} sc1")
    e("s_barrier")
    stamp(14)
    for t in range(2):
        for j in range(16):
            e(f"ds_read_b128 v[{64+64*t+4*j}:{67+64*t+4*j}], v{8+(j&3)} offset:{256*(j>>2)+16384*t}")
    h2_poll("q")
    def qb(j):
        if j < 6: return 192 + 4 * j
        if j < 13: return 12 + 4 * (j - 6)
        if j < 15: return 40 + 4 * (j - 13)
        return 52
    stamp(4)
    for j in range(16):
        e(f"ds_read_b128 v[{qb(j)}:{qb(j)+3}], v216 offset:{64*j}")
    for j in range(16):
        if j % 2 == 0: e(f"s_waitcnt lgkmcnt({max(0, 14-j)})")
        for t in range(2):
            acc = f"v[{56+4*t}:{59+4*t}]"
            c = "0" if j == 0 else acc
            e(f"v_mfma_f32_16x16x32_bf16 {acc}, v[{64+64*t+4*j}:{67+64*t+4*j}], v[{qb(j)}:{qb(j)+3}], {c}")
    e.nop(7)
    stamp(10)
    e("""
    v_max3_f32 v12, v56, v57, v58
    s_nop 0
    v_max3_f32 v13, v60, v61, v62
    v_max3_f32 v12, v59, v63, v12
    v_max_f32 v12, v12, v13
    v_mov_b32 v13, v12
    """)
    e.nop(2)
    e("v_permlane16_swap_b32 v12, v13")
    e("v_max_f32 v12, v12, v13\nv_mov_b32 v13, v12")
    e.nop(2)
    e("v_permlane32_swap_b32 v12, v13")
    e("""
    v_max_f32 v12, v12, v13
    s_mov_b64 exec, 0xff
    ds_write_b32 v218, v12
    s_mov_b64 exec, -1
    s_waitcnt lgkmcnt(0)
    s_barrier
    """)
    stamp(11)
    e("""
    ds_read_b128 v[16:19], v217
    s_waitcnt lgkmcnt(0)
    v_max3_f32 v12, v16, v17, v18
    v_max_f32 v12, v12, v19
    """)
    for r in range(8): e(f"v_sub_f32 v{56+r}, v{56+r}, v12")
    for r in range(8): e(f"v_exp_f32 v{56+r}, v{56+r}")
    e("s_nop 0")
    for r in range(4): e(f"v_cvt_pk_bf16_f32 v{16+r}, v{56+2*r}, v{57+2*r}")
    e(f"""
    ds_write_b128 v219, v[16:19]
    s_cmp_eq_u32 s{S_W}, 0
    s_cbranch_scc0 L_bq_nom
    s_mov_b64 exec, 0xff
    ds_write_b32 v218, v12 offset:128
    s_mov_b64 exec, -1
    """)
    e.label("L_bq_nom")
    e("s_waitcnt lgkmcnt(0)\ns_barrier")
    stamp(6)
    e(f"""
    v_mov_b32 v105, s{S_TAG}
    v_mov_b32 v107, s{S_TAG}
    v_add_u32 v192, 0x80000, v222
    v_add_u32 v195, 0x10000, v48
    v_and_b32 v196, 3, v1
    s_mov_b32 s66, 0x00010001
    s_mov_b32 s67, {F32(LSB_DEBIAS)}
    s_mov_b32 s64, 0xaaaaaaaa
    s_mov_b32 s65, 0xaaaaaaaa
    """)
    e("s_barrier")
    for t in range(2):
        for ks in range(4):
            r = 128 + 16 * t + 4 * ks
            e(f"ds_read_b64_tr_b16 v[{r}:{r+1}], v{220+t} offset:{8192*ks}")
            e(f"ds_read_b64_tr_b16 v[{r+2}:{r+3}], v{220+t} offset:{8192*ks+1024}")
    tagpat(198, 196, 202)
    if cfg.h3sleep: e(f"s_sleep {cfg.h3sleep}")
    stamp(2)
    def datachk():
        for i in range(8):
            e(f"v_xor_b32 v{80+i}, v{80+i}, v{198+(i&3)}")
        e("v_or3_b32 v4, v80, v81, v82\nv_or3_b32 v5, v83, v84, v85\nv_or3_b32 v4, v86, v87, v4\nv_or_b32 v4, v4, v5\nv_and_b32 v4, s66, v4")
    e.label("L_h3")
    e(f"""
    global_load_dwordx4 v[64:67], v48, {WS} sc1
    global_load_dwordx4 v[68:71], v195, {WS} sc1
    global_load_dwordx4 v[80:83], v222, {WS} sc1
    global_load_dwordx4 v[84:87], v192, {WS} sc1
    s_waitcnt vmcnt(2)
    """)
    tagchk(4, [65, 67, 69, 71])
    e("v_cmp_ne_u32 vcc, 0, v4\ns_cbranch_vccz L_h3_st\ns_waitcnt vmcnt(0)")
    if cfg.h3psleep: e(f"s_sleep {cfg.h3psleep}")
    spin_back("L_h3")
    e.label("L_h3_st")
    stamp(3)
    e("""
    v_max_f32 v4, v64, v68
    s_nop 1
    v_max_f32_dpp v4, v4, v4 row_ror:4 row_mask:0xf bank_mask:0xf
    s_nop 1
    v_max_f32_dpp v4, v4, v4 row_ror:8 row_mask:0xf bank_mask:0xf
    s_nop 0
    v_mov_b32 v5, v4
    s_nop 1
    v_permlane16_swap_b32 v4, v5
    v_max_f32 v4, v4, v5
    v_mov_b32 v5, v4
    s_nop 1
    v_permlane32_swap_b32 v4, v5
    v_max_f32 v4, v4, v5
    v_sub_f32 v64, v64, v4
    v_sub_f32 v68, v68, v4
    v_exp_f32 v64, v64
    v_exp_f32 v68, v68
    s_nop 0
    v_mul_f32 v28, v64, v66
    v_fmac_f32 v28, v68, v70
    s_nop 1
    v_add_f32_dpp v28, v28, v28 row_ror:4 row_mask:0xf bank_mask:0xf
    s_nop 1
    v_add_f32_dpp v28, v28, v28 row_ror:8 row_mask:0xf bank_mask:0xf
    s_nop 0
    v_mov_b32 v29, v28
    s_nop 1
    v_permlane16_swap_b32 v28, v29
    v_add_f32 v28, v28, v29
    v_mov_b32 v29, v28
    s_nop 1
    v_permlane32_swap_b32 v28, v29
    v_add_f32 v28, v28, v29
    v_rcp_f32 v28, v28
    v_mul_f32 v64, s67, v64
    v_mul_f32 v68, s67, v68
    v_mul_f32 v64, v64, v28
    v_mul_f32 v68, v68, v28
    s_waitcnt vmcnt(0)
    s_branch L_h3_dchk
    """)
    e.label("L_h3d")
    e(f"""
    global_load_dwordx4 v[80:83], v222, {WS} sc1
    global_load_dwordx4 v[84:87], v192, {WS} sc1
    s_waitcnt vmcnt(0)
    """)
    e.label("L_h3_dchk")
    datachk()
    poll_tail("L_h3d", "L_h3_done", 4)
    stamp(8)
    for i in range(4):
        e(f"v_lshlrev_b32 v{12+2*i}, 16, v{80+i}\nv_and_b32 v{13+2*i}, 0xffff0000, v{80+i}")
    for i in range(4):
        e(f"v_lshlrev_b32 v{20+2*i}, 16, v{84+i}\nv_and_b32 v{21+2*i}, 0xffff0000, v{84+i}")
        e(f"v_pk_mul_f32 v[{12+2*i}:{13+2*i}], v[{12+2*i}:{13+2*i}], v[64:65] op_sel_hi:[1,0]")
    for i in range(4):
        e(f"v_pk_fma_f32 v[{12+2*i}:{13+2*i}], v[{20+2*i}:{21+2*i}], v[68:69], v[{12+2*i}:{13+2*i}] op_sel_hi:[1,0,1]")
    for st in ("row_ror:4", "row_ror:8"):
        for r in range(12, 20):
            e(f"v_add_f32_dpp v{r}, v{r}, v{r} {st} row_mask:0xf bank_mask:0xf")
    for i in range(4):
        e(f"v_permlane16_swap_b32 v{12+i}, v{16+i}")
    for i in range(4):
        e(f"v_add_f32 v{12+i}, v{12+i}, v{16+i}")
    e("""
    s_nop 0
    v_permlane32_swap_b32 v12, v14
    v_permlane32_swap_b32 v13, v15
    s_mov_b32 exec_lo, 0x000f000f
    s_mov_b32 exec_hi, 0x000f000f
    v_add_f32 v12, v12, v14
    v_add_f32 v13, v13, v15
    v_cvt_pk_bf16_f32 v12, v12, v13
    ds_write_b32 v223, v12
    s_mov_b64 exec, -1
    s_waitcnt lgkmcnt(0)
    s_barrier
    """)
    for ks in range(4):
        e(f"ds_read_b128 v[{112+4*ks}:{115+4*ks}], v49 offset:{64*ks}")
    for ks in range(4):
        e(f"s_waitcnt lgkmcnt({3-ks})")
        for t in range(2):
            acc = f"v[{96+4*t}:{99+4*t}]"
            c = "0" if ks == 0 else acc
            r = 128 + 16 * t + 4 * ks
            e(f"v_mfma_f32_16x16x32_bf16 {acc}, v[{r}:{r+3}], v[{112+4*ks}:{115+4*ks}], {c}")
    e("s_mov_b32 exec_lo, 0x00030003\ns_mov_b32 exec_hi, 0x00030003")
    e.nop(6)
    for r in range(4):
        e(f"v_cndmask_b32 v{96+r}, v{96+r}, v{100+r}, s[64:65]")
    e("""
    v_cvt_pk_bf16_f32 v104, v96, v97
    v_cvt_pk_bf16_f32 v106, v98, v99
    """)
    if cfg.fast4: e(f"global_store_dwordx4 v51, v[104:107], {WS}")
    e(f"global_store_dwordx4 v50, v[104:107], {WS} sc1\ns_mov_b64 exec, -1")
    stamp(9)
    e("s_branch L_b_tail")
    e.label("L_bp_prep")
    e(f"""
    v_lshl_add_u32 v58, v2, 2, v62
    v_and_b32 v13, 7, v58
    v_lshlrev_b32 v13, 1, v13
    v_lshlrev_b32 v58, 10, v58
    v_add_u32 v58, v58, v59
    s_and_b32 s66, s{S_W}, 3
    s_lshl_b32 s3, s66, 4
    v_add_u32 v12, s3, v63
    v_xor_b32 v12, v12, v13
    v_lshl_add_u32 v8, v12, 4, v58
    """)
    for tt in range(1, 8):
        e(f"v_xor_b32 v{8+tt}, {32*tt}, v8")
    e(f"""
    v_lshlrev_b32 v16, 4, v1
    v_add_u32 v16, {L_PEX}, v16
    s_mov_b32 s{SRD_A}, s{P_WUV}
    s_mov_b32 s{SRD_A+1}, s{P_WUV+1}
    s_mov_b32 s{SRD_A+2}, 4194304
    s_mov_b32 s{SRD_A+3}, 0x20000
    s_lshl_b32 s3, s{S_W}, 2
    s_and_b32 s3, s3, 8
    v_lshlrev_b32 v19, 1, v2
    v_xor_b32 v19, v19, v3
    v_xor_b32 v19, s3, v19
    v_lshlrev_b32 v19, 4, v19
    v_lshl_add_u32 v19, v2, 13, v19
    s_lshl_b32 s20, s{S_J}, 5
    s_add_u32 s20, s20, s66
    s_lshl_b32 s20, s20, 15
    s_lshl_b32 s21, s{S_H}, 8
    s_add_u32 s20, s20, s21
    s_lshl_b32 s21, s66, 10
    v_lshl_add_u32 v56, v1, 4, s21
    s_lshl_b32 s3, s{S_CH}, 15
    s_lshr_b32 s64, s{S_I}, 2
    s_lshl_b32 s65, s64, 13
    s_add_u32 s3, s3, s65
    s_lshl_b32 s65, s66, 8
    s_add_u32 s3, s3, s65
    s_add_u32 s3, s3, {WS_PART}
    v_and_b32 v17, 7, v3
    v_lshlrev_b32 v17, 10, v17
    v_lshl_add_u32 v17, v2, 4, v17
    v_lshrrev_b32 v20, 3, v3
    v_lshl_add_u32 v17, v20, 6, v17
    v_add_u32 v17, s3, v17
    s_lshl_b32 s64, s64, 10
    s_lshl_b32 s65, s{S_CH}, 12
    s_add_u32 s64, s64, s65
    s_add_u32 s64, s64, {WS_ST}
    v_lshrrev_b32 v18, 2, v1
    v_lshlrev_b32 v18, 7, v18
    v_and_b32 v20, 3, v1
    v_lshl_add_u32 v18, v20, 4, v18
    v_add_u32 v18, s64, v18
    v_mov_b32 v36, 0x3f803f80
    v_mov_b32 v37, 0x3f803f80
    v_mov_b32 v38, 0x3f803f80
    v_mov_b32 v39, 0x3f803f80
    s_waitcnt lgkmcnt(0)
    """)
    mk_tag()
    e("v_and_b32 v50, 3, v1\ns_mov_b32 s67, 0x00010001")
    tagpat(44, 50, 48)
    e(f"v_mov_b32 v53, s{S_TAG}\nv_mov_b32 v55, s{S_TAG}")
    tagpat(57, 2, 61)
    e(f"s_waitcnt vmcnt(0)\nglobal_load_dwordx4 v[40:43], v5, {WS} sc1")
    e("s_barrier")
    stamp(14)
    for half in range(2):
        for tt in range(8):
            for k2 in range(2):
                ks = 2 * half + k2
                for eb in range(2):
                    r = 64 + 16 * tt + 4 * ks + 2 * eb
                    e(f"ds_read_b64_tr_b16 v[{r}:{r+1}], v{8+tt} offset:{32768*k2+16384*eb}")
        if half == 0:
            for tt in range(8):
                e(f"v_add_u32 v{8+tt}, 0x10000, v{8+tt}")
    h2_poll("p")
    for ii in range(8):
        e(f"""
        s_mov_b32 m0, s21
        s_add_u32 s21, s21, 4096
        buffer_load_dwordx4 v19, s[{SRD_A}:{SRD_A+3}], s20 offen{NT} lds
        s_add_u32 s20, s20, {4*4*8192}
        """)
    e("s_barrier\ns_barrier")
    for ks in range(4):
        e(f"ds_read_b128 v[{20+4*ks}:{23+4*ks}], v16 offset:{1024*ks}")
    e(f"""
    v_bfe_u32 v5, v1, 2, 3
    v_lshlrev_b32 v4, 4, v5
    v_add_u32 v4, {L_MX+128}, v4
    v_lshlrev_b32 v5, 2, v5
    s_mov_b32 s64, 0xff00ff00
    s_mov_b32 s65, 0xff00ff00
    """)
    stamp(6)
    for pr in range(4):
        e(f"v_mov_b32 v{37+0}, v{37}") if False else None
    def epi(sg):
        g = 64 + 64 * sg
        out = []
        for t in range(4):
            a0 = 192 + 16 * sg + 4 * t
            out.append(f"v_cvt_pk_bf16_f32 v{44+2*t}, v{a0}, v{a0+1}")
            out.append(f"v_cvt_pk_bf16_f32 v{45+2*t}, v{a0+2}, v{a0+3}")
        for i in range(4):
            out.append(f"v_cndmask_b32 v{g+i}, v{44+i}, v{48+i}, s[64:65]")
        for i in range(4):
            out.append(f"v_and_or_b32 v{g+i}, v{g+i}, s66, v{57+i}")
        out.append(f"global_store_dwordx4 v17, v[{g}:{g+3}], {WS} offset:{128*sg} sc1")
        return out
    e("s_mov_b32 s66, 0xfffefffe")
    ep0 = epi(0)
    for sg in range(2):
        k = 0
        for ks in range(4):
            for t in range(4):
                tt = 4 * sg + t
                acc = f"v[{192+4*tt}:{195+4*tt}]"
                c = "0" if ks == 0 else acc
                r = 64 + 16 * tt + 4 * ks
                if sg == 0 and t == 0: e(f"s_waitcnt lgkmcnt({3-ks})")
                e(f"v_mfma_f32_16x16x32_bf16 {acc}, v[{r}:{r+3}], v[{20+4*ks}:{23+4*ks}], {c}")
                k += 1
                if sg == 1 and k >= 8:
                    for _ in range(2):
                        if ep0: e(ep0.pop(0))
        if sg == 1:
            while ep0: e(ep0.pop(0))
    e(f"s_cmp_eq_u32 s{S_W}, 4\ns_cbranch_scc0 L_b_nol")
    e("ds_read_b32 v52, v4")
    for ks in range(4):
        c = "0" if ks == 0 else "v[40:43]"
        e(f"v_mfma_f32_16x16x32_bf16 v[40:43], v[36:39], v[{20+4*ks}:{23+4*ks}], {c}")
    e.label("L_b_nol")
    e.nop(6)
    for ins in epi(1): e(ins)
    e(f"""
    s_cmp_eq_u32 s{S_W}, 4
    s_cbranch_scc0 L_b_nostat
    ds_bpermute_b32 v54, v5, v40
    s_mov_b64 exec, 0xffffffff
    s_waitcnt lgkmcnt(0)
    global_store_dwordx4 v18, v[52:55], {WS} sc1
    s_mov_b64 exec, -1
    """)
    stamp(7)
    e("s_waitcnt vmcnt(3)\ns_branch L_b_st2")
    e.label("L_b_nostat")
    stamp(7)
    e("s_waitcnt vmcnt(2)")
    e.label("L_b_st2")
    e("s_barrier\ns_barrier")
    e.label("L_b_tail")
    e("s_barrier")
    s7_loads()
    e("s_waitcnt vmcnt(0)")
    s7_prep()
    if cfg.b5sleep: e(f"s_sleep {cfg.b5sleep}")

    e.label("L_S7")
    if cfg.s7warm:
        e("s_mov_b32 s7, 0")
    e(f"s_cmp_lt_u32 s{S_W}, 5\ns_cbranch_scc0 L_s7_bar")
    e("s_mov_b32 s66, 0x00010001")
    e.label("L_h5")
    e(f"""
    global_load_dwordx4 v[40:43], v244, {WS} sc1
    global_load_dwordx4 v[44:47], v245, {WS} sc1
    s_waitcnt vmcnt(0)
    """)
    for i in range(8):
        e(f"v_xor_b32 v{40+i}, v{40+i}, v{10+(i&3)}")
    e("v_or3_b32 v56, v40, v41, v42\nv_or3_b32 v57, v43, v44, v45\nv_or3_b32 v56, v46, v47, v56\nv_or_b32 v56, v56, v57\nv_and_b32 v56, s66, v56")
    poll_tail("L_h5", "L_h5_done", 56, cfg.h5sleep)
    stamp(12)
    if cfg.earlyepoch:
        e(f"""
        s_or_b32 s3, s2, s{S_W}
        s_cmp_eq_u32 s3, 0
        s_cbranch_scc0 L_h5_noep
        v_lshlrev_b32 v48, 2, v1
        v_mov_b32 v49, s{S_TAG}
        s_mov_b64 exec, 0xffff
        global_store_dword v48, v49, {WS} sc1
        s_mov_b64 exec, -1
        """)
        e.label("L_h5_noep")
    for i in range(4):
        e(f"v_lshlrev_b32 v{80+2*i}, 16, v{40+i}\nv_and_b32 v{81+2*i}, 0xffff0000, v{40+i}")
    for i in range(4):
        e(f"v_lshlrev_b32 v{88+2*i}, 16, v{44+i}\nv_and_b32 v{89+2*i}, 0xffff0000, v{44+i}")
        e(f"v_pk_add_f32 v[{80+2*i}:{81+2*i}], v[{80+2*i}:{81+2*i}], v[{88+2*i}:{89+2*i}]")
    e("s_nop 0")
    for i in range(4): e(f"v_permlane16_swap_b32 v{80+i}, v{84+i}")
    for i in range(4): e(f"v_add_f32 v{80+i}, v{80+i}, v{84+i}")
    e(f"""
    s_nop 0
    v_permlane32_swap_b32 v80, v82
    v_permlane32_swap_b32 v81, v83
    v_add_f32 v50, v80, v82
    v_add_f32 v51, v81, v83
    v_pk_add_f32 v[50:51], v[50:51], v[58:59]
    ds_write_b64 v248, v[50:51]
    v_add_f32 v52, v50, v51
    v_mul_f32 v53, v50, v50
    v_fmac_f32 v53, v51, v51
    """)
    dpp_reduce([52, 53])
    e(f"""
    s_mov_b32 exec_lo, 0
    s_mov_b32 exec_hi, 0x80000000
    ds_write_b64 v68, v[52:53]
    s_mov_b64 exec, -1
    """)
    e.label("L_s7_bar")
    e(f"""
    s_waitcnt lgkmcnt(0)
    s_barrier
    """)
    if cfg.s7stamps: stamp(1)
    e(f"""
    s_cmp_lt_u32 s2, {216 if cfg.outmap else 214}
    s_cbranch_scc0 L_fin
    """)
    e.label("L_s7_body")
    e(f"""
    ds_read_b128 v[40:43], v62
    ds_read_b128 v[44:47], v62 offset:16
    ds_read_b64 v[48:49], v62 offset:32
    ds_read_b32 v50, v63
    ds_read_b32 v52, v63 offset:4
    ds_read_b32 v54, v63 offset:8
    s_waitcnt lgkmcnt(3)
    v_pk_add_f32 v[40:41], v[40:41], v[42:43]
    v_pk_add_f32 v[44:45], v[44:45], v[46:47]
    v_pk_add_f32 v[40:41], v[40:41], v[48:49]
    v_pk_add_f32 v[40:41], v[40:41], v[44:45]
    v_pk_mul_f32 v[40:41], v[40:41], v[60:61] op_sel_hi:[1,0]
    v_fma_f32 v41, -v40, v40, v41
    v_max_f32 v41, 0, v41
    v_fma_f32 v42, v41, v61, v65
    s_waitcnt lgkmcnt(0)
    v_rsq_f32 v42, v42
    v_sub_f32 v70, v50, v40
    v_sub_f32 v72, v52, v40
    v_sub_f32 v74, v54, v40
    v_mul_f32 v70, v70, v42
    v_mul_f32 v72, v72, v42
    v_mul_f32 v74, v74, v42
    """)
    if cfg.s7stamps: stamp(2)
    combos = [(r, o) for o in range(3) for r in range(2)]
    for c, (r, o) in enumerate(combos):
        e(f"v_pk_fma_f32 v[{80+2*c}:{81+2*c}], v[{70+2*o}:{71+2*o}], v[{232+2*r}:{233+2*r}], v[{236+2*r}:{237+2*r}] op_sel_hi:[0,1,1]")
    for c in range(6):
        e(f"v_pk_mul_f32 v[{92+2*c}:{93+2*c}], v[{80+2*c}:{81+2*c}], v[{80+2*c}:{81+2*c}]")
    for c in range(6):
        e(f"v_pk_fma_f32 v[{92+2*c}:{93+2*c}], v[{92+2*c}:{93+2*c}], v[66:67], v[64:65] op_sel_hi:[1,0,0]")
    for c in range(6):
        e(f"v_pk_mul_f32 v[{92+2*c}:{93+2*c}], v[{92+2*c}:{93+2*c}], v[{80+2*c}:{81+2*c}]")
    for c in range(12):
        e(f"v_exp_f32 v{92+c}, v{92+c}")
    for c in range(6):
        e(f"v_pk_add_f32 v[{92+2*c}:{93+2*c}], v[{92+2*c}:{93+2*c}], 1.0 op_sel_hi:[1,0]")
    for c in range(12):
        e(f"v_rcp_f32 v{92+c}, v{92+c}")
    for c in range(6):
        e(f"v_pk_mul_f32 v[{80+2*c}:{81+2*c}], v[{80+2*c}:{81+2*c}], v[{92+2*c}:{93+2*c}]")
    for o in range(3):
        e(f"v_pk_mul_f32 v[{104+2*o}:{105+2*o}], v[{80+4*o}:{81+4*o}], v[240:241]")
    for o in range(3):
        e(f"v_pk_fma_f32 v[{104+2*o}:{105+2*o}], v[{82+4*o}:{83+4*o}], v[242:243], v[{104+2*o}:{105+2*o}]")
    if cfg.s7stamps: stamp(3)
    e("v_add_f32 v110, v104, v105\nv_add_f32 v111, v106, v107\nv_add_f32 v112, v108, v109")
    dpp_reduce([110, 111, 112])
    e(f"""
    s_mov_b32 exec_lo, 0
    s_mov_b32 exec_hi, 0x80000000
    ds_write_b128 v69, v[110:113]
    s_mov_b64 exec, -1
    """)
    if cfg.s7warm:
        e("s_cmp_eq_u32 s7, 1\ns_cbranch_scc1 L_s7_warm_ret")
    e(f"""
    {"s_mul_i32 s3, s5, 80" if cfg.outmap else "s_mov_b32 s3, 560"}
    s_add_u32 s3, s3, 80
    v_cmp_gt_u32 vcc, s3, v8
    v_lshlrev_b32 v8, 1, v8
    s_waitcnt lgkmcnt(0)
    s_barrier
    """)
    if cfg.s7stamps: stamp(4)
    e(f"""
    s_cmp_eq_u32 s{S_W}, 0
    s_cbranch_scc0 L_fin
    s_and_b64 vcc, vcc, 7
    s_and_saveexec_b64 s[64:65], vcc
    s_cbranch_execz L_fin0
    """)
    for w in range(8):
        e(f"ds_read_b32 v{40+w}, v6 offset:{16*w}")
    e(f"""
    ds_read_b32 v48, v7
    s_waitcnt lgkmcnt(0)
    v_add_f32 v40, v40, v41
    v_add_f32 v42, v42, v43
    v_add_f32 v44, v44, v45
    v_add_f32 v46, v46, v47
    v_add_f32 v48, v48, v9
    v_add_f32 v40, v40, v42
    v_add_f32 v44, v44, v46
    v_add_f32 v40, v40, v48
    v_add_f32 v40, v40, v44
    v_cvt_pk_bf16_f32 v40, v40, v40
    global_store_short v8, v40, s[{P_OUT}:{P_OUT+1}]
    """)
    e.label("L_fin0")
    e("s_mov_b64 exec, s[64:65]")
    e.label("L_fin")
    stamp(13)
    e(f"""
    s_cmp_eq_u32 s2, {0 if not (cfg.noepoch or cfg.earlyepoch) else 100000}
    s_cbranch_scc0 L_noepoch
    s_cmp_eq_u32 s{S_W}, 0
    s_cbranch_scc0 L_noepoch
    v_lshlrev_b32 v6, 2, v1
    v_mov_b32 v7, s{S_TAG}
    s_mov_b64 exec, 0xffff
    global_store_dword v6, v7, {WS} sc1
    s_mov_b64 exec, -1
    """)
    e.label("L_noepoch")
    if cfg.stamps:
        e(f"""
        s_waitcnt lgkmcnt(0)
        s_lshl_b32 s3, s2, 3
        s_add_u32 s3, s3, s{S_W}
        s_lshl_b32 s3, s3, 6
        s_add_u32 s3, s3, {WS_DBG}
        v_mov_b32 v6, s3
        s_mov_b64 exec, 1
        """)
        for q in range(4):
            for k in range(4):
                e(f"v_mov_b32 v{8+k}, s{S_STAMP+2*min(4*q+k,14)}")
            e(f"global_store_dwordx4 v6, v[8:11], {WS} offset:{16*q}")
            e.nop(2)
        e("s_mov_b64 exec, -1")
    e.label("L_exit")
    e("s_endpgm")
    if cfg.s7warm:
        e.label("L_s7_warm_ret")
        e("s_waitcnt lgkmcnt(0)\ns_setpc_b64 s[68:69]")
    e.label("L_fail")
    if cfg.stamps: e("s_mov_b64 exec, -1\ns_branch L_noepoch")
    e("s_endpgm")
    e.label("L_end")
    return e

def render(cfg):
    e = gen(cfg)
    body = e.text()
    hdr = open("cdna_kernels/" + NAME[:-7] + ".s.ref").read().split("; Override launch geometry")[0]
    out = hdr + f"; @launch grid=(256,1,1) block=(512,1,1) lds={LDS_BYTES}\n"
    out += f""".amdgcn_target "amdgcn-amd-amdhsa--gfx950"
.text
.globl {NAME}
.p2align 8
.type {NAME},@function
{NAME}:
{body}.section .rodata,"a"
.p2align 6
.amdhsa_kernel {NAME}
  .amdhsa_next_free_vgpr 256
  .amdhsa_next_free_sgpr 102
  .amdhsa_accum_offset 256
  .amdhsa_group_segment_fixed_size 0
  .amdhsa_kernarg_size 112
  .amdhsa_user_sgpr_count 2
  .amdhsa_user_sgpr_kernarg_segment_ptr 1
  .amdhsa_system_sgpr_workgroup_id_x 1
.end_amdhsa_kernel
"""
    return out, body

if __name__ == "__main__":
    cfg = Cfg()
    outp = sys.argv[1] if len(sys.argv) > 1 else "cdna_kernels/" + NAME[:-7] + ".s"
    for a in sys.argv[2:]:
        k, v = a.split("=")
        setattr(cfg, k, int(v))
    out, body = render(cfg)
    probs = check_hazards(body) + check_kernarg_race(body)
    for p in probs: print("HAZARD", p)
    open(outp, "w").write(out)
    print("wrote", outp, len(out), "bytes;", len(body.splitlines()), "lines")
```

```python
import sys, struct
from asmlib import Emit, check_hazards, check_kernarg_race

NAME = "sequential_preLN__compressed_kv_cla__mixer_token_mlp__decode_kernel"

WS_Q1, WS_Q1F, WS_QA, WS_CTX, WS_OP, WS_CTXF, WS_ST, WS_PART, WS_DBG = 0x10000, 0x20000, 0x50000, 0x60000, 0x70000, 0x90000, 0xC0000, 0x100000, 0x400000
WS_XID = 0x30000
L_CKV = 0
L_WO = 0
L_WQ = 32768
L_WUK = 73728
L_QAS = 131072
QAS_STRIDE = 1056
L_PEX = L_QAS + 8 * QAS_STRIDE
L_MX = L_PEX + 4096
L_LNS = 143872
L_QP = 145152
QP_STRIDE = 288
L_CTXS = 146304
L_BNC = 146560
L_ORED = 147584
L_HS = 149632
L_ST7 = 152192
L_YRED = 152256
LDS_BYTES = 152384

S_W, S_X, S_I, S_ISB = 4, 5, 6, 7
P_X, P_CKV, P_WQ, P_WUK, P_WUV, P_WO, P_W1, P_B1, P_W2, P_B2, P_OUT, P_DBG, P_WS = 8, 10, 12, 14, 16, 18, 22, 24, 26, 28, 30, 32, 34
S_TAG, S_H, S_J, S_CH = 36, 37, 38, 39
SRD_0, SRD_A, SRD_WO, SRD_W1, SRD_B1, SRD_W2 = 40, 44, 48, 52, 56, 60
S_SPIN = 100
S_STAMP = 70

def F32(x): return "0x%08x" % struct.unpack("<I", struct.pack("<f", x))[0]
WS = f"s[{P_WS}:{P_WS+1}]"

LSB_DEBIAS = 1.0 + 0.5 * 2.0**-7 * 0.7213475

class Cfg:
    stamps = 0
    nt = 1
    spin = 1 << 17
    h3sleep = 16
    fast1 = 0
    fast4 = 0
    codepf = 16
    bdelay = 0
    exp_nob = 0
    s7warm = 0
    xfast = 1
    prio = 0
    ukdelay = 0
    touchslow = 0
    spreadk = 0
    spreadq = 0
    earlyepoch = 1
    tlbw = 0
    tlbo = 0
    tlbk = 0
    selftouch = 0
    lsb3 = 1
    ukearly = 0
    outmap = 1
    noepoch = 0
    s7stamps = 0
    touch = 0
    uknt = 1
    tsleep = 0
    planeorder = 1
    hperm = 0
    h3psleep = 0
    b5sleep = 44
    f5sleep = 16
    n5sleep = 44
    ckvnt = 0
    ukbar = 1
    bsleep = 8
    uvpf = 1
    h5sleep = 0
    h4sleep = 0
    h2sleep = 0
    exp_nowuv = 0

def gen(cfg):
    e = Emit()
    NT = " nt" if cfg.nt else ""
    def stamp(k):
        if cfg.stamps:
            e(f"s_memrealtime s[{S_STAMP+2*k}:{S_STAMP+2*k+1}]")
    def dpp_reduce(regs, op="v_add_f32"):
        steps = ["row_shr:1 row_mask:0xf bank_mask:0xf bound_ctrl:0", "row_shr:2 row_mask:0xf bank_mask:0xf bound_ctrl:0",
                 "row_shr:4 row_mask:0xf bank_mask:0xf bound_ctrl:0", "row_shr:8 row_mask:0xf bank_mask:0xf bound_ctrl:0",
                 "row_bcast:15 row_mask:0xa bank_mask:0xf", "row_bcast:31 row_mask:0xc bank_mask:0xf"]
        pad = max(0, 2 - (len(regs) - 1))
        e.nop(2)
        for k, st in enumerate(steps):
            for r in regs:
                e(f"{op}_dpp v{r}, v{r}, v{r} {st}")
            if k < len(steps) - 1 and pad: e.nop(pad)
    def tagchk(acc, tags):
        for k, t in enumerate(tags):
            if k == 0:
                e(f"v_xor_b32 v{acc}, s{S_TAG}, v{t}")
            else:
                e(f"v_bitop3_b32 v{acc}, v{acc}, v{t}, s{S_TAG} bitop3:0xf6")
    def spin_back(lbl_loop):
        e(f"s_sub_u32 s{S_SPIN}, s{S_SPIN}, 1")
        e(f"s_cbranch_scc0 {lbl_loop}")
        e("s_branch L_fail")
    def poll_tail(lbl_loop, lbl_done, acc, sleep=0):
        e(f"v_cmp_ne_u32 vcc, 0, v{acc}")
        e(f"s_cbranch_vccz {lbl_done}")
        if sleep: e(f"s_sleep {sleep}")
        spin_back(lbl_loop)
        e.label(lbl_done)
    def tr_common():
        e("""
        v_bfe_u32 v62, v1, 2, 2
        v_bfe_u32 v63, v1, 1, 1
        v_and_b32 v59, 1, v1
        v_lshlrev_b32 v59, 3, v59
        """)
    def tr256_addr(dst, tmp):
        e(f"""
        v_and_b32 v{dst}, 1, v2
        v_lshl_add_u32 v{dst}, v{dst}, 2, v62
        v_lshlrev_b32 v{dst}, 1, v{dst}
        s_lshl_b32 s3, s{S_W}, 1
        v_add_u32 v{tmp}, s3, v63
        v_xor_b32 v{dst}, v{dst}, v{tmp}
        v_lshl_add_u32 v{dst}, v{dst}, 4, v59
        v_lshl_add_u32 v{tmp}, v2, 3, v62
        v_lshl_add_u32 v{dst}, v{tmp}, 8, v{dst}
        """)
    def tagpat(dst, vsel, tmp):
        e(f"v_lshlrev_b32 v{tmp}, 3, v{vsel}")
        e(f"v_lshrrev_b32 v{tmp}, v{tmp}, s{S_TAG}") if False else e(f"v_mov_b32 v{tmp+1}, s{S_TAG}\nv_lshrrev_b32 v{tmp}, v{tmp}, v{tmp+1}")
        for i in range(4):
            e(f"v_bfe_u32 v{dst+i}, v{tmp}, {2*i}, 1")
            e(f"v_bfe_u32 v{tmp+1}, v{tmp}, {2*i+1}, 1")
            e(f"v_lshl_or_b32 v{dst+i}, v{tmp+1}, 16, v{dst+i}")
    def mk_tag():
        e(f"s_mul_i32 s{S_TAG}, s{S_TAG}, 1664525\ns_add_u32 s{S_TAG}, s{S_TAG}, 1013904223")
    def s7_loads():
        e(f"""
        s_mov_b32 s{SRD_W1}, s{P_W1}
        s_mov_b32 s{SRD_W1+1}, s{P_W1+1}
        s_mov_b32 s{SRD_W1+2}, 3456
        s_mov_b32 s{SRD_W1+3}, 0x20000
        s_mov_b32 s{SRD_B1}, s{P_B1}
        s_mov_b32 s{SRD_B1+1}, s{P_B1+1}
        s_mov_b32 s{SRD_B1+2}, 3456
        s_mov_b32 s{SRD_B1+3}, 0x20000
        s_mov_b32 s{SRD_W2}, s{P_W2}
        s_mov_b32 s{SRD_W2+1}, s{P_W2+1}
        s_mov_b32 s{SRD_W2+2}, 3456
        s_mov_b32 s{SRD_W2+3}, 0x20000
        s_lshl_b32 s3, s{S_W}, 8
        v_lshl_add_u32 v4, v1, 2, s3
        buffer_load_dword v224, v4, s[{SRD_W1}:{SRD_W1+3}], 0 offen
        buffer_load_dword v225, v4, s[{SRD_W1}:{SRD_W1+3}], 0 offen offset:2048
        buffer_load_dword v226, v4, s[{SRD_B1}:{SRD_B1+3}], 0 offen
        buffer_load_dword v227, v4, s[{SRD_B1}:{SRD_B1+3}], 0 offen offset:2048
        buffer_load_dword v228, v4, s[{SRD_W2}:{SRD_W2+3}], 0 offen
        buffer_load_dword v229, v4, s[{SRD_W2}:{SRD_W2+3}], 0 offen offset:2048
        v_mov_b32 v4, 0
        global_load_ushort v231, v4, s[{P_B2}:{P_B2+1}]
        {"global_load_dword v138, v4, s[%d:%d]" % (P_OUT, P_OUT+1) if cfg.tlbo else ""}
        s_min_u32 s3, s{S_W}, 4
        s_lshl_b32 s3, s3, 8
        v_lshlrev_b32 v4, 4, v3
        v_and_b32 v230, 1, v2
        v_lshl_add_u32 v4, v230, 3, v4
        v_lshrrev_b32 v230, 1, v2
        v_lshl_add_u32 v4, v230, 2, v4
        v_add_u32 v4, s3, v4
        global_load_dword v230, v4, s[{P_X}:{P_X+1}]
        """)
    OUTIDX = ("s_lshr_b32 s101, s2, 3\ns_mul_i32 s101, s101, 3\ns_mul_i32 s3, s5, 80\ns_add_u32 s101, s101, s3" if cfg.outmap else "s_mul_i32 s101, s2, 3")
    def s7_prep():
        for k, (raw, dst) in enumerate([(224, 232), (225, 234), (226, 236), (227, 238), (228, 240), (229, 242)]):
            e(f"v_lshlrev_b32 v{dst}, 16, v{raw}\nv_and_b32 v{dst+1}, 0xffff0000, v{raw}")
        e(f"""
        v_mul_u32_u24 v244, 1280, v2
        v_lshl_add_u32 v244, v3, 4, v244
        s_lshl_b32 s3, s{S_W}, 8
        s_add_u32 s64, s3, {WS_OP}
        v_add_u32 v244, s64, v244
        v_add_u32 v245, 5120, v244
        s_lshl_b32 s3, s{S_W}, 9
        s_add_u32 s3, s3, {L_HS}
        v_lshlrev_b32 v248, 5, v3
        v_and_b32 v57, 1, v2
        v_lshl_add_u32 v248, v57, 4, v248
        v_lshrrev_b32 v57, 1, v2
        v_lshl_add_u32 v248, v57, 3, v248
        v_add_u32 v248, s3, v248
        v_lshlrev_b32 v58, 16, v230
        v_and_b32 v59, 0xffff0000, v230
        v_mov_b32 v60, {F32(1.0/640)}
        v_mov_b32 v61, {F32(1.0 + 1e-5)}
        v_mov_b32 v65, {F32(1e-10)}
        v_mov_b32 v64, {F32(-2.0*0.7978845608028654*1.4426950408889634)}
        v_mov_b32 v66, {F32(-2.0*0.7978845608028654*1.4426950408889634*0.044715)}
        v_mov_b32 v62, {L_ST7}
        {OUTIDX}
        s_lshl_b32 s3, s101, 2
        s_add_u32 s3, s3, {L_HS}
        v_mov_b32 v63, s3
        s_lshl_b32 s3, s{S_W}, 3
        s_add_u32 s3, s3, {L_ST7}
        v_mov_b32 v68, s3
        s_lshl_b32 s3, s{S_W}, 4
        s_add_u32 s3, s3, {L_YRED}
        v_mov_b32 v69, s3
        v_mov_b32 v113, 0
        v_add_u32 v8, s101, v1
        v_lshlrev_b32 v6, 2, v1
        v_add_u32 v6, {L_YRED}, v6
        v_lshlrev_b32 v7, 2, v8
        v_add_u32 v7, {L_HS}, v7
        v_lshlrev_b32 v9, 16, v231
        """)
        e("v_and_b32 v57, 3, v1")
        tagpat(10, 57, 14)
        if cfg.s7warm:
            lbl = f"L_wret{len(e.lines)}"
            e(f"s_mov_b32 s7, 1\ns_getpc_b64 s[68:69]\ns_add_u32 s68, s68, 12\ns_addc_u32 s69, s69, 0\ns_branch L_s7_body")
            e(f"v_lshlrev_b32 v58, 16, v230\nv_and_b32 v59, 0xffff0000, v230")

    def uk_dma(bar):
        e(f"""
        s_mov_b32 s{SRD_A}, s{P_WUK}
        s_mov_b32 s{SRD_A+1}, s{P_WUK+1}
        s_mov_b32 s{SRD_A+2}, 4194304
        s_mov_b32 s{SRD_A+3}, 0x20000
        s_and_b32 s66, s{S_W}, 1
        s_lshl_b32 s66, s66, 3
        v_lshlrev_b32 v7, 1, v2
        v_xor_b32 v7, v7, v3
        v_xor_b32 v7, s66, v7
        v_lshlrev_b32 v7, 4, v7
        v_lshl_add_u32 v7, v2, 13, v7
        s_lshl_b32 s64, s{S_J}, 5
        s_add_u32 s64, s64, s{S_W}
        s_lshl_b32 s64, s64, 15
        s_lshl_b32 s65, s{S_H}, 8
        s_add_u32 s64, s64, s65
        s_lshl_b32 s67, s{S_W}, 10
        s_add_u32 s67, s67, {L_WUK}
        """)
        if bar: e("s_barrier")
        for ii in range(8):
            e(f"""
            s_mov_b32 m0, s67
            s_add_u32 s67, s67, 4096
            buffer_load_dwordx4 v7, s[{SRD_A}:{SRD_A+3}], s64 offen{NT} lds
            s_add_u32 s64, s64, {4*4*8192}
            """)

    e(f"""
    s_cmp_ge_u32 s2, 256
    s_cbranch_scc1 L_exit
    s_load_dwordx16 s[8:23], s[0:1], 0
    s_load_dwordx4 s[32:35], s[0:1], 96
    s_load_dwordx8 s[24:31], s[0:1], 64
    """)
    if cfg.codepf:
        e(f"""
        s_cmp_lt_u32 s2, {cfg.codepf}
        s_cbranch_scc0 L_nopf
        s_getpc_b64 s[64:65]
        """)
        e.label("L_pc")
        e(f"""
        s_and_b32 s64, s64, 0xffffff00
        v_lshlrev_b32 v203, 7, v0
        v_min_u32 v203, L_end-L_pc-4, v203
        v_mov_b32 v201, s65
        v_add_co_u32 v200, vcc, s64, v203
        s_nop 1
        v_addc_co_u32 v201, vcc, 0, v201, vcc
        global_load_dword v202, v[200:201], off
        """)
        e.label("L_nopf")
    if cfg.stamps:
        e(f"s_memrealtime s[{S_STAMP}:{S_STAMP+1}]")
        for k in range(1, 15): e(f"s_mov_b32 s{S_STAMP+2*k}, 0")
    e(f"""
    v_and_b32 v1, 63, v0
    v_lshrrev_b32 v4, 6, v0
    v_lshrrev_b32 v2, 4, v1
    v_readfirstlane_b32 s{S_W}, v4
    v_and_b32 v3, 15, v1
    s_and_b32 s{S_X}, s2, 7
    s_bfe_u32 s{S_I}, s2, 0x40003
    s_lshr_b32 s{S_H}, s{S_I}, 2
    s_xor_b32 s{S_H}, s{S_H}, {cfg.hperm}
    s_lshl_b32 s3, s{S_X}, 2
    s_add_u32 s{S_H}, s{S_H}, s3
    s_and_b32 s{S_J}, s{S_I}, 3
    s_mov_b32 s{SRD_0+3}, 0x20000
    s_mov_b32 s{S_SPIN}, {cfg.spin}
    s_cmp_ge_u32 s2, 128
    s_cbranch_scc1 L_B0
    """)
    e(f"""
    s_lshl_b32 s66, s{S_W}, 2
    s_and_b32 s66, s66, 8
    s_mul_i32 s64, s{S_J}, 40
    s_add_u32 s64, s64, s{S_W}
    s_lshl_b32 s64, s64, 15
    s_lshl_b32 s65, s{S_H}, 8
    s_add_u32 s64, s64, s65
    s_lshl_b32 s67, s{S_W}, 10
    s_add_u32 s67, s67, {L_WQ}
    s_mov_b32 s{SRD_0+2}, 5242880
    v_lshlrev_b32 v7, 1, v2
    v_xor_b32 v7, v7, v3
    v_xor_b32 v7, s66, v7
    v_lshlrev_b32 v7, 4, v7
    v_lshl_add_u32 v7, v2, 13, v7
    v_lshlrev_b32 v6, 2, v1
    s_cmp_eq_u32 s{S_W}, 0
    s_waitcnt lgkmcnt(0)
    s_mov_b32 s{SRD_0}, s{P_WQ}
    s_mov_b32 s{SRD_0+1}, s{P_WQ+1}
    s_cbranch_scc0 L_f_nox
    """)
    for k in range(5):
        e(f"global_load_dword v{8+k}, v6, s[{P_X}:{P_X+1}] offset:{256*k}")
    e.label("L_f_nox")
    for ii in range(5):
        e(f"""
        s_mov_b32 m0, s67
        s_add_u32 s67, s67, 8192
        buffer_load_dwordx4 v7, s[{SRD_0}:{SRD_0+3}], s64 offen{NT} lds
        s_add_u32 s64, s64, {8*4*8192}
        """)
    if cfg.tlbk:
        e(f"""
        s_lshl_b32 s3, s{S_J}, 7
        s_lshl_b32 s64, s{S_W}, 4
        s_add_u32 s3, s3, s64
        s_lshl_b32 s3, s3, 13
        s_lshl_b32 s64, s{S_H}, 8
        s_add_u32 s3, s3, s64
        v_mov_b32 v4, s3
        s_mov_b64 exec, 1
        global_load_dword v200, v4, s[{P_WUK}:{P_WUK+1}] nt
        s_mov_b64 exec, -1
        """)
    if cfg.selftouch:
        e(f"""
        v_bfe_u32 v4, v1, 1, 4
        s_lshl_b32 s3, s{S_J}, 7
        s_lshl_b32 s64, s{S_W}, 4
        s_add_u32 s3, s3, s64
        v_add_u32 v4, s3, v4
        v_lshlrev_b32 v4, 13, v4
        v_and_b32 v5, 1, v1
        v_lshl_add_u32 v4, v5, 7, v4
        s_lshl_b32 s3, s{S_H}, 8
        v_add_u32 v4, s3, v4
        s_mov_b64 exec, 0xffffffff
        global_load_dword v200, v4, s[{P_WUK}:{P_WUK+1}] nt
        s_mov_b64 exec, -1
        """)
    if cfg.ukearly and not cfg.ukdelay:
        e("s_barrier")
        e(f"s_cmp_lt_u32 s{S_W}, 4\ns_cbranch_scc0 L_f_nouk")
        uk_dma(False)
        e.label("L_f_nouk")
    e(f"""
    s_load_dword s{S_TAG}, {WS}, 0
    s_branch L_F1
    """)
    e.label("L_B0")
    if cfg.exp_nob: e("s_endpgm")
    e(f"""
    s_lshl_b32 s3, s{S_W}, 1
    v_xor_b32 v7, s3, v1
    v_lshlrev_b32 v7, 4, v7
    s_lshl_b32 s{S_CH}, s{S_X}, 2
    s_add_u32 s{S_CH}, s{S_CH}, s{S_J}
    s_lshl_b32 s66, s{S_CH}, 17
    s_and_b32 s67, s{S_I}, 12
    s_lshl_b32 s67, s67, 13
    s_lshl_b32 s65, s{S_W}, 10
    s_add_u32 s67, s67, s65
    s_mov_b32 s{SRD_0+2}, 4194304
    s_mov_b32 s68, 15
    v_bfe_u32 v4, v1, 1, 4
    s_lshl_b32 s3, s{S_J}, 7
    s_lshl_b32 s64, s{S_W}, 4
    s_add_u32 s3, s3, s64
    v_add_u32 v4, s3, v4
    v_lshlrev_b32 v4, 13, v4
    v_and_b32 v5, 1, v1
    v_lshl_add_u32 v4, v5, 7, v4
    s_lshl_b32 s3, s{S_H}, 8
    v_add_u32 v4, s3, v4
    s_waitcnt lgkmcnt(0)
    s_mov_b32 s{SRD_0}, s{P_CKV}
    s_mov_b32 s{SRD_0+1}, s{P_CKV+1}
    """)
    if cfg.tlbw:
        e(f"""
        s_cmp_eq_u32 s{S_I}, 0
        s_cselect_b32 s3, s{S_W}, 0
        s_cmp_eq_u32 s3, 7
        s_cbranch_scc0 L_notlb
        s_mov_b64 exec, 1
        v_mov_b32 v8, 0
        v_mov_b32 v9, 0x200000
        v_mov_b32 v10, 0x3ffffc
        v_mov_b32 v11, 0x4ffffc
        global_load_dword v204, v8, s[{P_WUK}:{P_WUK+1}] nt
        global_load_dword v204, v9, s[{P_WUK}:{P_WUK+1}] nt
        global_load_dword v204, v10, s[{P_WUK}:{P_WUK+1}] nt
        global_load_dword v204, v8, s[{P_WUV}:{P_WUV+1}] nt
        global_load_dword v204, v9, s[{P_WUV}:{P_WUV+1}] nt
        global_load_dword v204, v10, s[{P_WUV}:{P_WUV+1}] nt
        global_load_dword v204, v8, s[{P_WO}:{P_WO+1}] nt
        global_load_dword v204, v9, s[{P_WO}:{P_WO+1}] nt
        global_load_dword v204, v10, s[{P_WO}:{P_WO+1}] nt
        global_load_dword v204, v11, s[{P_WO}:{P_WO+1}] nt
        global_load_dword v204, v8, s[{P_W1}:{P_W1+1}]
        global_load_dword v204, v8, s[{P_B1}:{P_B1+1}]
        global_load_dword v204, v8, s[{P_W2}:{P_W2+1}]
        global_load_ushort v204, v8, s[{P_B2}:{P_B2+1}]
        global_load_dword v204, v8, s[{P_OUT}:{P_OUT+1}]
        s_mov_b64 exec, -1
        """)
        e.label("L_notlb")
    if cfg.tsleep: e(f"s_sleep {cfg.tsleep}")
    if cfg.spreadq or cfg.spreadk:
        e(f"""
        s_lshl_b32 s3, s{S_X}, 2
        s_add_u32 s3, s3, 1
        s_lshl_b32 s3, s3, 8
        v_lshrrev_b32 v8, 1, v1
        v_and_b32 v9, 1, v1
        v_lshlrev_b32 v9, 7, v9
        v_add_u32 v9, s3, v9
        """)
        if cfg.spreadq:
            e(f"""
            s_mul_i32 s3, s{S_I}, 40
            s_mul_i32 s64, s{S_W}, 5
            s_add_u32 s3, s3, s64
            v_add_u32 v10, s3, v8
            v_lshl_add_u32 v10, v10, 13, v9
            s_mov_b64 exec, 0x3ff
            global_load_dword v200, v10, s[{P_WQ}:{P_WQ+1}] nt
            s_mov_b64 exec, -1
            """)
        if cfg.spreadk:
            e(f"""
            s_lshl_b32 s3, s{S_I}, 5
            s_lshl_b32 s64, s{S_W}, 2
            s_add_u32 s3, s3, s64
            v_add_u32 v10, s3, v8
            v_lshl_add_u32 v10, v10, 13, v9
            s_mov_b64 exec, 0xff
            global_load_dword v200, v10, s[{P_WUK}:{P_WUK+1}] nt
            s_mov_b64 exec, -1
            """)
    if cfg.touchslow:
        e(f"""
        s_and_b32 s3, s{S_H}, 3
        s_cmp_eq_u32 s3, {cfg.touchslow - 1}
        s_cbranch_scc0 L_notouch
        s_mov_b64 exec, 0xffffffff
        global_load_dword v200, v4, s[{P_WUK}:{P_WUK+1}] nt
        s_mov_b64 exec, -1
        """)
        e.label("L_notouch")
    if cfg.touch: e(f"""
    s_mov_b64 exec, 0xffffffff
    global_load_dword v200, v4, s[{P_WUK}:{P_WUK+1}]{" nt" if cfg.uknt else ""}
    s_mov_b64 exec, -1
    """)
    if cfg.bdelay: e(f"s_load_dword s{S_TAG}, {WS}, 0\ns_waitcnt lgkmcnt(0)")
    if cfg.bsleep: e(f"s_sleep {cfg.bsleep}")
    e.label("L_b_dma")
    e(f"""
    s_mov_b32 m0, s67
    s_add_u32 s69, s67, s66
    buffer_load_dwordx4 v7, s[{SRD_0}:{SRD_0+3}], s69 offen{" nt" if cfg.ckvnt else ""} lds
    s_add_u32 s67, s67, 8192
    s_and_b32 s67, s67, 0x1ffff
    s_sub_u32 s68, s68, 1
    s_cbranch_scc0 L_b_dma
    """)
    if not cfg.bdelay: e(f"s_load_dword s{S_TAG}, {WS}, 0")
    e("s_branch L_B1")

    e.label("L_F1")
    e(f"s_mov_b32 s{S_ISB}, 0")
    stamp(1)
    tr_common()
    e(f"""
    v_and_b32 v41, 1, v2
    v_lshl_add_u32 v41, v41, 2, v62
    v_lshlrev_b32 v41, 1, v41
    s_and_b32 s65, s{S_W}, 3
    s_lshl_b32 s3, s65, 2
    v_add_u32 v42, s3, v63
    v_xor_b32 v41, v41, v42
    v_lshl_add_u32 v41, v41, 4, v59
    v_lshl_add_u32 v42, v2, 3, v62
    v_lshl_add_u32 v41, v42, 8, v41
    v_add_u32 v41, {L_WQ}, v41
    v_xor_b32 v40, 32, v41
    s_mul_i32 s3, s{S_J}, 320
    s_add_u32 s3, s3, {L_LNS}
    v_lshl_add_u32 v42, v2, 4, s3
    s_lshl_b32 s3, s{S_H}, 2
    s_add_u32 s3, s3, s{S_J}
    s_lshl_b32 s3, s3, 9
    s_lshl_b32 s64, s65, 7
    s_add_u32 s3, s3, s64
    s_add_u32 s65, s3, {WS_Q1}
    v_and_b32 v43, 1, v1
    v_lshlrev_b32 v43, 6, v43
    v_lshl_add_u32 v43, v2, 4, v43
    v_add_u32 v43, s65, v43
    v_add_u32 v44, {WS_Q1F-WS_Q1}, v43
    s_lshl_b32 s64, s{S_W}, 6
    s_lshl_b32 s3, s{S_H}, 2
    s_and_b32 s65, s{S_W}, 3
    s_add_u32 s3, s3, s65
    s_lshl_b32 s3, s3, 9
    s_add_u32 s3, s3, {WS_Q1}
    v_lshl_add_u32 v45, v1, 3, s3
    v_add_u32 v49, {WS_Q1F-WS_Q1}, v45
    s_mul_i32 s3, s65, {QP_STRIDE}
    s_add_u32 s3, s3, {L_QP}
    v_lshl_add_u32 v46, v1, 2, s3
    v_and_b32 v47, 3, v3
    v_mul_u32_u24 v47, {QP_STRIDE}, v47
    v_lshl_add_u32 v47, v2, 4, v47
    v_add_u32 v47, {L_QP}, v47
    s_and_b32 s66, s{S_W}, 3
    s_lshl_b32 s3, s{S_H}, 10
    s_lshl_b32 s65, s{S_J}, 8
    s_add_u32 s3, s3, s65
    s_lshl_b32 s64, s66, 6
    s_add_u32 s3, s3, s64
    s_add_u32 s65, s3, {WS_QA}
    v_and_b32 v50, 1, v1
    v_lshlrev_b32 v50, 1, v50
    v_lshrrev_b32 v51, 1, v2
    v_add_u32 v50, v50, v51
    v_lshl_add_u32 v48, v50, 4, s65
    s_lshl_b32 s3, s66, 5
    v_add_u32 v24, s3, v3
    v_lshlrev_b32 v24, 8, v24
    v_and_b32 v25, 7, v3
    v_lshlrev_b32 v25, 1, v25
    v_xor_b32 v25, v25, v2
    v_lshl_add_u32 v24, v25, 4, v24
    v_add_u32 v24, {L_WUK}, v24
    v_xor_b32 v25, 64, v24
    v_xor_b32 v26, 128, v24
    v_xor_b32 v27, 192, v24
    s_waitcnt lgkmcnt(0)
    """)
    mk_tag()
    e(f"v_mov_b32 v105, s{S_TAG}\nv_mov_b32 v107, s{S_TAG}")
    tagpat(52, 50, 56)
    e(f"""
    s_cmp_eq_u32 s{S_W}, 0
    s_cbranch_scc0 L_f_noln
    """)
    e(f"s_waitcnt vmcnt({13 if (cfg.ukearly and not cfg.ukdelay) else 5 + cfg.selftouch + cfg.tlbk})")
    stamp(2)
    for k in range(5):
        e(f"v_lshlrev_b32 v{64+2*k}, 16, v{8+k}")
        e(f"v_and_b32 v{65+2*k}, 0xffff0000, v{8+k}")
    e(f"""
    v_pk_add_f32 v[74:75], v[64:65], v[66:67]
    v_pk_add_f32 v[76:77], v[68:69], v[70:71]
    v_pk_add_f32 v[74:75], v[74:75], v[72:73]
    v_pk_add_f32 v[74:75], v[74:75], v[76:77]
    v_mov_b32 v78, {F32(-1.0/640)}
    v_add_f32 v74, v74, v75
    """)
    dpp_reduce([74])
    e.nop(1)
    e("v_readlane_b32 s20, v74, 63")
    e(f"v_mov_b32 v80, {F32(1.0/640)}\nv_mov_b32 v81, {F32(1e-5)}")
    e("v_mul_f32 v78, s20, v78")
    for k in range(5):
        e(f"v_pk_add_f32 v[{64+2*k}:{65+2*k}], v[{64+2*k}:{65+2*k}], v[78:79] op_sel_hi:[1,0]")
    e("v_pk_mul_f32 v[74:75], v[64:65], v[64:65]")
    for k in range(1, 5):
        e(f"v_pk_fma_f32 v[74:75], v[{64+2*k}:{65+2*k}], v[{64+2*k}:{65+2*k}], v[74:75]")
    e("v_add_f32 v74, v74, v75")
    dpp_reduce([74])
    e.nop(1)
    e("v_readlane_b32 s21, v74, 63")
    e(f"v_mov_b32 v82, {F32(128**-0.5 * 1.4426950408889634 * LSB_DEBIAS)}")
    e(f"v_add_u32 v6, {L_LNS}, v6")
    e("v_fma_f32 v74, s21, v80, v81")
    e("v_rsq_f32 v74, v74")
    e.nop(1)
    e("v_mul_f32 v74, v74, v82")
    for k in range(5):
        e(f"v_pk_mul_f32 v[{64+2*k}:{65+2*k}], v[{64+2*k}:{65+2*k}], v[74:75] op_sel_hi:[1,0]")
    for k in range(5):
        e(f"v_cvt_pk_bf16_f32 v{8+k}, v{64+2*k}, v{65+2*k}")
        e(f"ds_write_b32 v6, v{8+k} offset:{256*k}")
    e.label("L_f_noln")
    if cfg.ukearly and cfg.ukdelay:
        e(f"s_cmp_lt_u32 s{S_W}, 4\ns_cbranch_scc0 L_f_nouk\ns_cmp_eq_u32 s{S_W}, 0\ns_cbranch_scc1 L_f_uk0\ns_sleep {cfg.ukdelay}")
        e.label("L_f_uk0")
        uk_dma(False)
        e.label("L_f_nouk")
    if cfg.ukearly:
        e(f"s_cmp_lt_u32 s{S_W}, 4\ns_cbranch_scc0 L_f_w0\ns_waitcnt vmcnt(8)\ns_branch L_f_w1")
        e.label("L_f_w0")
        e("s_waitcnt vmcnt(0)")
        e.label("L_f_w1")
        e("s_waitcnt lgkmcnt(0)")
    else:
        e(f"s_waitcnt vmcnt({cfg.selftouch + cfg.tlbk}) lgkmcnt(0)")
    e("s_barrier")
    stamp(3)
    e(f"s_cmp_lt_u32 s{S_W}, 4\ns_cbranch_scc1 L_f_uk")
    if cfg.prio: e("s_setprio 2")
    for ks in range(5):
        e(f"ds_read_b128 v[{84+4*ks}:{87+4*ks}], v42 offset:{64*ks}")
        e(f"ds_read_b64_tr_b16 v[{64+4*ks}:{65+4*ks}], v41 offset:{8192*ks}")
        e(f"ds_read_b64_tr_b16 v[{66+4*ks}:{67+4*ks}], v41 offset:{8192*ks+1024}")
        e(f"ds_read_b64_tr_b16 v[{112+4*ks}:{113+4*ks}], v40 offset:{8192*ks}")
        e(f"ds_read_b64_tr_b16 v[{114+4*ks}:{115+4*ks}], v40 offset:{8192*ks+1024}")
    e("s_mov_b32 s64, 0xaaaaaaaa\ns_mov_b32 s65, 0xaaaaaaaa")
    for ks in range(5):
        e(f"s_waitcnt lgkmcnt({min(15, 20-5*ks)})")
        c = "0" if ks == 0 else "v[108:111]"
        e(f"v_mfma_f32_16x16x32_bf16 v[108:111], v[{64+4*ks}:{67+4*ks}], v[{84+4*ks}:{87+4*ks}], {c}")
        c = "0" if ks == 0 else "v[132:135]"
        e(f"v_mfma_f32_16x16x32_bf16 v[132:135], v[{112+4*ks}:{115+4*ks}], v[{84+4*ks}:{87+4*ks}], {c}")
    e("s_mov_b32 exec_lo, 0x00030003\ns_mov_b32 exec_hi, 0x00030003")
    e.nop(6)
    for r in range(4):
        e(f"v_cndmask_b32 v{108+r}, v{108+r}, v{132+r}, s[64:65]")
    e("""
    v_cvt_pk_bf16_f32 v104, v108, v109
    v_cvt_pk_bf16_f32 v106, v110, v111
    """)
    if cfg.fast1: e(f"global_store_dwordx4 v44, v[104:107], {WS}")
    e(f"global_store_dwordx4 v43, v[104:107], {WS} sc1\ns_mov_b64 exec, -1")
    stamp(4)
    e(("" if cfg.ukearly else "s_barrier\n") + "s_branch L_h1_bar")
    e.label("L_f_uk")
    if not cfg.ukearly: uk_dma(True)
    e.label("L_h1")
    if cfg.fast1:
        e(f"global_load_dwordx2 v[66:67], v49, {WS} sc1")
        e(f"global_load_dwordx2 v[64:65], v45, {WS} sc1\ns_waitcnt vmcnt(0)")
        e(f"v_cmp_eq_u32 vcc, s{S_TAG}, v67")
        e.nop(2)
        e("v_cndmask_b32 v64, v64, v66, vcc\nv_cndmask_b32 v65, v65, v67, vcc")
    else:
        e(f"global_load_dwordx2 v[64:65], v45, {WS} sc1\ns_waitcnt vmcnt(0)")
    e(f"v_cmp_ne_u32 vcc, s{S_TAG}, v65")
    e(f"s_cbranch_vccz L_h1_done")
    spin_back("L_h1")
    e.label("L_h1_done")
    stamp(8)
    stamp(7)
    e("ds_write_b32 v46, v64")
    e.label("L_h1_bar")
    e("s_waitcnt lgkmcnt(0)\ns_barrier")
    stamp(5)
    e(f"s_cmp_lt_u32 s{S_W}, 4\ns_cbranch_scc1 L_f_nos2")
    for t in range(4):
        e(f"ds_read_b128 v[{64+4*t}:{67+4*t}], v47 offset:{64*t}")
        e(f"ds_read_b128 v[{80+4*t}:{83+4*t}], v{24+t}")
        e(f"ds_read_b128 v[{112+4*t}:{115+4*t}], v{24+t} offset:4096")
    e("s_mov_b32 s64, 0xaaaaaaaa\ns_mov_b32 s65, 0xaaaaaaaa")
    for t in range(4):
        e(f"s_waitcnt lgkmcnt({9-3*t})")
        c = "0" if t == 0 else "v[108:111]"
        e(f"v_mfma_f32_16x16x32_bf16 v[108:111], v[{80+4*t}:{83+4*t}], v[{64+4*t}:{67+4*t}], {c}")
        c = "0" if t == 0 else "v[132:135]"
        e(f"v_mfma_f32_16x16x32_bf16 v[132:135], v[{112+4*t}:{115+4*t}], v[{64+4*t}:{67+4*t}], {c}")
    e.nop(7)
    for st in ("row_ror:1", "row_ror:2"):
        for r in list(range(108, 112)) + list(range(132, 136)):
            e(f"v_add_f32_dpp v{r}, v{r}, v{r} {st} row_mask:0xf bank_mask:0xf")
    for r in range(4):
        e(f"v_cndmask_b32 v{108+r}, v{108+r}, v{132+r}, s[64:65]")
    e("""
    v_cvt_pk_bf16_f32 v104, v108, v109
    v_cvt_pk_bf16_f32 v105, v110, v111
    s_mov_b32 s66, 0xfffefffe
    v_mov_b32 v106, v104
    v_mov_b32 v107, v105
    s_nop 1
    v_permlane16_swap_b32 v104, v106
    v_permlane16_swap_b32 v105, v107
    s_mov_b32 exec_lo, 3
    s_mov_b32 exec_hi, 3
    v_and_or_b32 v104, v104, s66, v52
    v_and_or_b32 v105, v105, s66, v53
    v_and_or_b32 v106, v106, s66, v54
    v_and_or_b32 v107, v107, s66, v55
    """)
    e(f"global_store_dwordx4 v48, v[104:107], {WS} sc1\ns_mov_b64 exec, -1")
    stamp(6)
    e.label("L_f_nos2")
    e("s_barrier")
    if cfg.uvpf:
        e(f"""
        v_lshrrev_b32 v4, 1, v1
        s_lshl_b32 s3, s{S_J}, 7
        s_lshl_b32 s64, s{S_W}, 4
        s_add_u32 s3, s3, s64
        v_and_b32 v4, 15, v4
        v_add_u32 v4, s3, v4
        v_lshlrev_b32 v4, 13, v4
        v_and_b32 v5, 1, v1
        v_lshl_add_u32 v4, v5, 7, v4
        s_lshl_b32 s3, s{S_H}, 8
        v_add_u32 v4, s3, v4
        s_mov_b64 exec, 0xffffffff
        global_load_dword v5, v4, s[{P_WUV}:{P_WUV+1}]{NT}
        s_mov_b64 exec, -1
        """)
    e(f"s_cmp_lt_u32 s{S_I}, 10\ns_cbranch_scc1 L_s6")
    s7_loads()
    e("s_waitcnt vmcnt(0)")
    s7_prep()
    if cfg.n5sleep:
        e(f"""
        s_cmp_lt_u32 s{S_W}, 5
        s_cbranch_scc0 L_S7
        s_lshl_b32 s3, s{S_H}, 2
        s_add_u32 s3, s3, s{S_J}
        s_lshl_b32 s3, s3, 9
        s_add_u32 s3, s3, {WS_CTX}
        v_mov_b32 v40, s3
        """)
        e.label("L_sent")
        e(f"""
        global_load_dwordx2 v[42:43], v40, {WS} sc1
        s_waitcnt vmcnt(0)
        v_cmp_ne_u32 vcc, s{S_TAG}, v43
        s_cbranch_vccz L_sent_done
        s_sleep 8
        """)
        spin_back("L_sent")
        e.label("L_sent_done")
        e(f"s_sleep {cfg.n5sleep}")
    e("s_branch L_S7")
    e.label("L_s6")
    e(f"""
    s_mov_b32 s{SRD_WO}, s{P_WO}
    s_mov_b32 s{SRD_WO+1}, s{P_WO+1}
    s_mov_b32 s{SRD_WO+2}, 5242880
    s_mov_b32 s{SRD_WO+3}, 0x20000
    v_lshrrev_b32 v12, 3, v1
    v_mul_u32_u24 v50, 1280, v12
    v_and_b32 v12, 2, v12
    v_and_b32 v13, 7, v1
    v_xor_b32 v12, v12, v13
    v_lshl_add_u32 v50, v12, 4, v50
    v_xor_b32 v51, 64, v50
    s_lshl_b32 s3, s{S_X}, 3
    s_add_u32 s3, s3, s{S_W}
    s_mul_i32 s20, s3, {64*1280}
    s_lshl_b32 s65, s{S_I}, 7
    s_add_u32 s20, s20, s65
    s_lshl_b32 s21, s{S_W}, 13
    """)
    for ii in range(8):
        e(f"""
        s_mov_b32 m0, s21
        s_add_u32 s21, s21, 1024
        buffer_load_dwordx4 v{50+(ii&1)}, s[{SRD_WO}:{SRD_WO+3}], s20 offen{NT} lds
        s_add_u32 s20, s20, {8*1280}
        """)
    s7_loads()
    tr_common()
    e(f"""
    v_lshl_add_u32 v12, v2, 3, v62
    v_lshlrev_b32 v12, 7, v12
    v_add_u32 v12, v12, v59
    s_lshl_b32 s3, s{S_W}, 13
    v_add_u32 v12, s3, v12
    v_and_b32 v13, 1, v2
    v_lshlrev_b32 v13, 2, v13
    v_and_b32 v14, 2, v62
    v_or_b32 v13, v13, v14
    v_xor_b32 v13, v13, v63
    v_lshl_add_u32 v249, v13, 4, v12
    v_xor_b32 v250, 32, v249
    v_xor_b32 v251, 64, v249
    v_xor_b32 v252, 96, v249
    s_lshr_b32 s3, s{S_W}, 1
    s_lshl_b32 s64, s{S_X}, 2
    s_add_u32 s3, s3, s64
    s_lshl_b32 s3, s3, 11
    s_and_b32 s64, s{S_W}, 1
    s_lshl_b32 s64, s64, 8
    s_add_u32 s3, s3, s64
    s_add_u32 s3, s3, {WS_CTX}
    v_lshlrev_b32 v140, 9, v2
    v_lshl_add_u32 v140, v3, 4, v140
    v_add_u32 v140, s3, v140
    v_add_u32 v141, {WS_CTXF-WS_CTX}, v140
    s_lshl_b32 s3, s{S_W}, 7
    s_add_u32 s3, s3, {L_BNC}
    v_lshl_add_u32 v142, v3, 2, v2
    v_lshlrev_b32 v142, 1, v142
    v_add_u32 v142, s3, v142
    v_lshl_add_u32 v143, v2, 4, s3
    s_lshl_b32 s3, s{S_W}, 8
    s_add_u32 s3, s3, {L_ORED}
    v_lshl_add_u32 v253, v2, 4, s3
    v_lshlrev_b32 v254, 3, v1
    v_add_u32 v254, {L_ORED}, v254
    s_mul_i32 s3, s{S_X}, 1280
    s_lshl_b32 s64, s{S_I}, 7
    s_add_u32 s3, s3, s64
    s_add_u32 s3, s3, {WS_OP}
    v_lshl_add_u32 v255, v1, 2, s3
    v_and_b32 v12, 15, v1
    v_lshlrev_b32 v12, 1, v12
    v_mov_b32 v13, s{S_TAG}
    v_lshrrev_b32 v12, v12, v13
    v_and_b32 v13, 1, v12
    v_and_b32 v12, 2, v12
    v_lshl_or_b32 v136, v12, 15, v13
    s_waitcnt vmcnt(0)
    """)
    stamp(9)
    s7_prep()
    for tt in range(4):
        for ks in range(2):
            r = 80 + 8 * tt + 4 * ks
            e(f"ds_read_b64_tr_b16 v[{r}:{r+1}], v{249+tt} offset:{4096*ks}")
            e(f"ds_read_b64_tr_b16 v[{r+2}:{r+3}], v{249+tt} offset:{4096*ks+512}")
    if cfg.xfast:
        e(f"""
        v_and_b32 v40, 15, v1
        v_lshlrev_b32 v40, 10, v40
        s_lshl_b32 s3, s{S_X}, 7
        s_add_u32 s3, s3, {WS_XID}
        v_add_u32 v40, s3, v40
        s_getreg_b32 s64, hwreg(HW_REG_XCC_ID, 0, 4)
        """)
        e.label("L_xid")
        e(f"""
        global_load_dwordx2 v[42:43], v40, {WS} sc1
        s_waitcnt vmcnt(0)
        v_cmp_ne_u32 vcc, s{S_TAG}, v43
        s_cbranch_vccz L_xid_ok
        s_sleep 4
        """)
        spin_back("L_xid")
        e.label("L_xid_ok")
        e(f"""
        v_cmp_ne_u32 vcc, s64, v42
        s_cbranch_vccnz L_xid_slow
        v_mov_b32 v140, v141
        """)
        e.label("L_xid_slow")
    e.label("L_h4")
    if cfg.fast4 == 2:
        e(f"global_load_dwordx4 v[40:43], v141, {WS} sc1\ns_waitcnt vmcnt(0)")
    elif cfg.fast4:
        e(f"global_load_dwordx4 v[44:47], v141, {WS} sc1")
        e(f"global_load_dwordx4 v[40:43], v140, {WS} sc1\ns_waitcnt vmcnt(0)")
        tagchk(48, [45, 47])
        e("v_cmp_eq_u32 vcc, 0, v48")
        e.nop(2)
        for k in range(4): e(f"v_cndmask_b32 v{40+k}, v{40+k}, v{44+k}, vcc")
    else:
        e(f"global_load_dwordx4 v[40:43], v140, {WS} sc1\ns_waitcnt vmcnt(0)")
    tagchk(48, [41, 43])
    poll_tail("L_h4", "L_h4_done", 48, cfg.h4sleep)
    stamp(10)
    e("""
    v_lshlrev_b32 v44, 16, v40
    v_and_b32 v45, 0xffff0000, v40
    v_lshlrev_b32 v46, 16, v42
    v_and_b32 v47, 0xffff0000, v42
    s_nop 1
    v_permlane32_swap_b32 v44, v46
    v_permlane32_swap_b32 v45, v47
    v_add_f32 v44, v44, v46
    v_add_f32 v45, v45, v47
    s_nop 1
    v_permlane16_swap_b32 v44, v45
    v_add_f32 v44, v44, v45
    v_cvt_pk_bf16_f32 v44, v44, v44
    ds_write_b16 v142, v44
    s_waitcnt lgkmcnt(0)
    ds_read_b128 v[112:115], v143
    ds_read_b128 v[116:119], v143 offset:64
    """)
    for ks in range(2):
        e(f"s_waitcnt lgkmcnt({1-ks})")
        for tt in range(4):
            c = "0" if ks == 0 else f"v[{120+4*tt}:{123+4*tt}]"
            r = 80 + 8 * tt + 4 * ks
            e(f"v_mfma_f32_16x16x32_bf16 v[{120+4*tt}:{123+4*tt}], v[{r}:{r+3}], v[{112+4*ks}:{115+4*ks}], {c}")
    e("s_mov_b32 exec_lo, 0x00010001\ns_mov_b32 exec_hi, 0x00010001")
    e.nop(3)
    for tt in range(4):
        e(f"ds_write_b128 v253, v[{120+4*tt}:{123+4*tt}] offset:{64*tt}")
    e(f"""
    s_mov_b64 exec, -1
    s_waitcnt lgkmcnt(0)
    s_barrier
    s_cmp_eq_u32 s{S_W}, 7
    s_cbranch_scc0 L_s6_w
    s_mov_b64 exec, 0xffffffff
    """)
    for w in range(8):
        e(f"ds_read_b64 v[{40+2*w}:{41+2*w}], v254 offset:{256*w}")
    e(f"""
    s_mov_b32 s66, 0xfffefffe
    s_waitcnt lgkmcnt(0)
    v_pk_add_f32 v[40:41], v[40:41], v[42:43]
    v_pk_add_f32 v[44:45], v[44:45], v[46:47]
    v_pk_add_f32 v[48:49], v[48:49], v[50:51]
    v_pk_add_f32 v[52:53], v[52:53], v[54:55]
    v_pk_add_f32 v[40:41], v[40:41], v[44:45]
    v_pk_add_f32 v[48:49], v[48:49], v[52:53]
    v_pk_add_f32 v[40:41], v[40:41], v[48:49]
    v_cvt_pk_bf16_f32 v56, v40, v41
    v_lshrrev_b32 v57, 1, v56
    v_and_b32 v57, 0x00010001, v57
    v_add_u32 v56, v56, v57
    v_and_or_b32 v56, v56, s66, v136
    global_store_dword v255, v56, {WS} sc1
    s_mov_b64 exec, -1
    """)
    stamp(11)
    e("s_branch L_S7")
    e.label("L_s6_w")
    if cfg.f5sleep: e(f"s_sleep {cfg.f5sleep}")
    e("s_branch L_S7")

    e.label("L_B1")
    e(f"s_mov_b32 s{S_ISB}, 1")
    stamp(1)
    e(f"""
    s_lshr_b32 s3, s{S_I}, 2
    s_lshl_b32 s3, s3, 3
    s_add_u32 s3, s3, s{S_W}
    s_lshl_b32 s3, s3, 10
    s_add_u32 s3, s3, {WS_QA}
    v_lshl_add_u32 v5, v1, 4, s3
    s_mul_i32 s3, s{S_W}, {QAS_STRIDE}
    s_add_u32 s3, s3, {L_QAS}
    v_lshl_add_u32 v6, v1, 4, s3
    """)
    tr_common()
    e(f"s_cmp_lt_u32 s{S_W}, 4\ns_cbranch_scc0 L_bp_prep")
    def h2_poll(sfx):
        msk = "s66" if sfx == "q" else "s67"
        e("s_waitcnt vmcnt(0)\ns_branch L_h2_chk" + sfx)
        e.label("L_h2" + sfx)
        e(f"""
        global_load_dwordx4 v[40:43], v5, {WS} sc1
        s_waitcnt vmcnt(0)
        """)
        e.label("L_h2_chk" + sfx)
        for i in range(4):
            e(f"v_xor_b32 v{40+i}, v{40+i}, v{44+i}")
        e(f"v_or3_b32 v4, v40, v41, v42\nv_or_b32 v4, v4, v43\nv_and_b32 v4, {msk}, v4")
        poll_tail("L_h2" + sfx, "L_h2_done" + sfx, 4, cfg.h2sleep)
        stamp(5)
        e(f"""
        ds_write_b128 v6, v[40:43]
        s_waitcnt lgkmcnt(0)
        s_barrier
        """)
    e(f"""
    s_lshl_b32 s3, s{S_W}, 5
    v_add_u32 v12, s3, v3
    v_lshlrev_b32 v12, 10, v12
    v_and_b32 v13, 7, v1
    v_lshlrev_b32 v13, 1, v13
    v_xor_b32 v13, v13, v2
    v_lshl_add_u32 v8, v13, 4, v12
    v_xor_b32 v9, 64, v8
    v_xor_b32 v10, 128, v8
    v_xor_b32 v11, 192, v8
    v_and_b32 v216, 7, v3
    v_lshlrev_b32 v217, 4, v216
    v_mul_u32_u24 v216, {QAS_STRIDE}, v216
    v_lshl_add_u32 v216, v2, 4, v216
    v_add_u32 v216, {L_QAS}, v216
    v_add_u32 v217, {L_MX}, v217
    s_lshl_b32 s3, s{S_W}, 2
    v_add_u32 v218, s3, v217
    s_lshl_b32 s3, s{S_W}, 10
    s_add_u32 s3, s3, {L_PEX}
    v_lshl_add_u32 v219, v1, 4, s3
    v_and_b32 v220, 1, v2
    v_lshl_add_u32 v220, v220, 2, v62
    v_lshlrev_b32 v220, 1, v220
    s_lshl_b32 s3, s{S_W}, 2
    v_add_u32 v12, s3, v63
    v_xor_b32 v220, v220, v12
    v_lshl_add_u32 v220, v220, 4, v59
    v_lshl_add_u32 v12, v2, 3, v62
    v_lshl_add_u32 v220, v12, 8, v220
    v_xor_b32 v221, 32, v220
    s_lshl_b32 s3, s{S_H}, 10
    s_lshl_b32 s65, s{S_J}, 8
    s_add_u32 s3, s3, s65
    s_lshl_b32 s64, s{S_W}, 6
    s_add_u32 s3, s3, s64
    s_add_u32 s65, s3, {WS_PART}
    s_lshl_b32 s64, s{S_W}, 7
    v_lshrrev_b32 v12, 2, v1
    v_and_b32 v13, 3, v1
    v_lshlrev_b32 v222, 15, v12
    v_lshl_add_u32 v222, v13, 4, v222
    v_add_u32 v222, s65, v222
    s_lshl_b32 s3, s{S_H}, 7
    s_add_u32 s3, s3, {WS_ST}
    v_lshlrev_b32 v48, 12, v12
    v_lshl_add_u32 v48, v13, 4, v48
    v_add_u32 v48, s3, v48
    v_and_b32 v223, 1, v2
    v_lshlrev_b32 v223, 4, v223
    v_lshrrev_b32 v12, 1, v2
    v_lshl_add_u32 v223, v12, 1, v223
    v_lshl_add_u32 v223, v13, 2, v223
    s_lshl_b32 s3, s{S_W}, 5
    v_add_u32 v223, s3, v223
    v_lshlrev_b32 v223, 1, v223
    v_add_u32 v223, {L_CTXS}, v223
    v_lshlrev_b32 v49, 4, v2
    v_add_u32 v49, {L_CTXS}, v49
    s_lshl_b32 s3, s{S_H}, 2
    s_add_u32 s3, s3, s{S_J}
    s_lshl_b32 s3, s3, 9
    s_add_u32 s3, s3, s64
    s_add_u32 s3, s3, {WS_CTX}
    v_and_b32 v50, 1, v1
    v_lshlrev_b32 v50, 6, v50
    v_lshl_add_u32 v50, v2, 4, v50
    v_add_u32 v50, s3, v50
    v_add_u32 v51, {WS_CTXF-WS_CTX}, v50
    s_waitcnt lgkmcnt(0)
    """)
    mk_tag()
    e("v_and_b32 v16, 3, v1\ns_mov_b32 s66, 0x00010001")
    tagpat(44, 16, 12)
    e(f"s_waitcnt vmcnt(0)\nglobal_load_dwordx4 v[40:43], v5, {WS} sc1")
    e("s_barrier")
    stamp(14)
    for t in range(2):
        for j in range(16):
            e(f"ds_read_b128 v[{64+64*t+4*j}:{67+64*t+4*j}], v{8+(j&3)} offset:{256*(j>>2)+16384*t}")
    h2_poll("q")
    def qb(j):
        if j < 6: return 192 + 4 * j
        if j < 13: return 12 + 4 * (j - 6)
        if j < 15: return 40 + 4 * (j - 13)
        return 52
    stamp(4)
    if cfg.prio: e("s_setprio 2")
    for j in range(16):
        e(f"ds_read_b128 v[{qb(j)}:{qb(j)+3}], v216 offset:{64*j}")
    for j in range(16):
        if j % 2 == 0: e(f"s_waitcnt lgkmcnt({max(0, 14-j)})")
        for t in range(2):
            acc = f"v[{56+4*t}:{59+4*t}]"
            c = "0" if j == 0 else acc
            e(f"v_mfma_f32_16x16x32_bf16 {acc}, v[{64+64*t+4*j}:{67+64*t+4*j}], v[{qb(j)}:{qb(j)+3}], {c}")
    e.nop(7)
    stamp(10)
    e("""
    v_max3_f32 v12, v56, v57, v58
    s_nop 0
    v_max3_f32 v13, v60, v61, v62
    v_max3_f32 v12, v59, v63, v12
    v_max_f32 v12, v12, v13
    v_mov_b32 v13, v12
    """)
    e.nop(2)
    e("v_permlane16_swap_b32 v12, v13")
    e("v_max_f32 v12, v12, v13\nv_mov_b32 v13, v12")
    e.nop(2)
    e("v_permlane32_swap_b32 v12, v13")
    e("""
    v_max_f32 v12, v12, v13
    s_mov_b64 exec, 0xff
    ds_write_b32 v218, v12
    s_mov_b64 exec, -1
    s_waitcnt lgkmcnt(0)
    s_barrier
    """)
    stamp(11)
    e("""
    ds_read_b128 v[16:19], v217
    s_waitcnt lgkmcnt(0)
    v_max3_f32 v12, v16, v17, v18
    v_max_f32 v12, v12, v19
    """)
    for r in range(8): e(f"v_sub_f32 v{56+r}, v{56+r}, v12")
    for r in range(8): e(f"v_exp_f32 v{56+r}, v{56+r}")
    e("s_nop 0")
    for r in range(4): e(f"v_cvt_pk_bf16_f32 v{16+r}, v{56+2*r}, v{57+2*r}")
    e(f"""
    ds_write_b128 v219, v[16:19]
    s_cmp_eq_u32 s{S_W}, 0
    s_cbranch_scc0 L_bq_nom
    s_mov_b64 exec, 0xff
    ds_write_b32 v218, v12 offset:128
    s_mov_b64 exec, -1
    """)
    e.label("L_bq_nom")
    e("s_waitcnt lgkmcnt(0)\ns_barrier")
    stamp(6)
    e(f"""
    v_mov_b32 v105, s{S_TAG}
    v_mov_b32 v107, s{S_TAG}
    v_add_u32 v192, 0x80000, v222
    v_add_u32 v195, 0x10000, v48
    v_and_b32 v196, 3, v1
    s_mov_b32 s66, 0x00010001
    s_mov_b32 s67, {F32(LSB_DEBIAS)}
    s_mov_b32 s64, 0xaaaaaaaa
    s_mov_b32 s65, 0xaaaaaaaa
    """)
    e("s_barrier")
    for t in range(2):
        for ks in range(4):
            r = 128 + 16 * t + 4 * ks
            e(f"ds_read_b64_tr_b16 v[{r}:{r+1}], v{220+t} offset:{8192*ks}")
            e(f"ds_read_b64_tr_b16 v[{r+2}:{r+3}], v{220+t} offset:{8192*ks+1024}")
    tagpat(198, 196, 202)
    if cfg.h3sleep: e(f"s_sleep {cfg.h3sleep}")
    stamp(2)
    def datachk():
        for i in range(8):
            e(f"v_xor_b32 v{80+i}, v{80+i}, v{198+(i&3)}")
        e("v_or3_b32 v4, v80, v81, v82\nv_or3_b32 v5, v83, v84, v85\nv_or3_b32 v4, v86, v87, v4\nv_or_b32 v4, v4, v5\nv_and_b32 v4, s66, v4")
    e.label("L_h3")
    e(f"""
    global_load_dwordx4 v[64:67], v48, {WS} sc1
    global_load_dwordx4 v[68:71], v195, {WS} sc1
    global_load_dwordx4 v[80:83], v222, {WS} sc1
    global_load_dwordx4 v[84:87], v192, {WS} sc1
    s_waitcnt vmcnt(2)
    """)
    tagchk(4, [65, 67, 69, 71])
    e("v_cmp_ne_u32 vcc, 0, v4\ns_cbranch_vccz L_h3_st\ns_waitcnt vmcnt(0)")
    if cfg.h3psleep: e(f"s_sleep {cfg.h3psleep}")
    spin_back("L_h3")
    e.label("L_h3_st")
    stamp(3)
    e("""
    v_max_f32 v4, v64, v68
    s_nop 1
    v_max_f32_dpp v4, v4, v4 row_ror:4 row_mask:0xf bank_mask:0xf
    s_nop 1
    v_max_f32_dpp v4, v4, v4 row_ror:8 row_mask:0xf bank_mask:0xf
    s_nop 0
    v_mov_b32 v5, v4
    s_nop 1
    v_permlane16_swap_b32 v4, v5
    v_max_f32 v4, v4, v5
    v_mov_b32 v5, v4
    s_nop 1
    v_permlane32_swap_b32 v4, v5
    v_max_f32 v4, v4, v5
    v_sub_f32 v64, v64, v4
    v_sub_f32 v68, v68, v4
    v_exp_f32 v64, v64
    v_exp_f32 v68, v68
    s_nop 0
    v_mul_f32 v28, v64, v66
    v_fmac_f32 v28, v68, v70
    s_nop 1
    v_add_f32_dpp v28, v28, v28 row_ror:4 row_mask:0xf bank_mask:0xf
    s_nop 1
    v_add_f32_dpp v28, v28, v28 row_ror:8 row_mask:0xf bank_mask:0xf
    s_nop 0
    v_mov_b32 v29, v28
    s_nop 1
    v_permlane16_swap_b32 v28, v29
    v_add_f32 v28, v28, v29
    v_mov_b32 v29, v28
    s_nop 1
    v_permlane32_swap_b32 v28, v29
    v_add_f32 v28, v28, v29
    v_rcp_f32 v28, v28
    v_mul_f32 v64, s67, v64
    v_mul_f32 v68, s67, v68
    v_mul_f32 v64, v64, v28
    v_mul_f32 v68, v68, v28
    s_waitcnt vmcnt(0)
    s_branch L_h3_dchk
    """)
    e.label("L_h3d")
    e(f"""
    global_load_dwordx4 v[80:83], v222, {WS} sc1
    global_load_dwordx4 v[84:87], v192, {WS} sc1
    s_waitcnt vmcnt(0)
    """)
    e.label("L_h3_dchk")
    datachk()
    poll_tail("L_h3d", "L_h3_done", 4)
    stamp(8)
    for i in range(4):
        e(f"v_lshlrev_b32 v{12+2*i}, 16, v{80+i}\nv_and_b32 v{13+2*i}, 0xffff0000, v{80+i}")
    for i in range(4):
        e(f"v_lshlrev_b32 v{20+2*i}, 16, v{84+i}\nv_and_b32 v{21+2*i}, 0xffff0000, v{84+i}")
        e(f"v_pk_mul_f32 v[{12+2*i}:{13+2*i}], v[{12+2*i}:{13+2*i}], v[64:65] op_sel_hi:[1,0]")
    for i in range(4):
        e(f"v_pk_fma_f32 v[{12+2*i}:{13+2*i}], v[{20+2*i}:{21+2*i}], v[68:69], v[{12+2*i}:{13+2*i}] op_sel_hi:[1,0,1]")
    for st in ("row_ror:4", "row_ror:8"):
        for r in range(12, 20):
            e(f"v_add_f32_dpp v{r}, v{r}, v{r} {st} row_mask:0xf bank_mask:0xf")
    for i in range(4):
        e(f"v_permlane16_swap_b32 v{12+i}, v{16+i}")
    for i in range(4):
        e(f"v_add_f32 v{12+i}, v{12+i}, v{16+i}")
    e("""
    s_nop 0
    v_permlane32_swap_b32 v12, v14
    v_permlane32_swap_b32 v13, v15
    s_mov_b32 exec_lo, 0x000f000f
    s_mov_b32 exec_hi, 0x000f000f
    v_add_f32 v12, v12, v14
    v_add_f32 v13, v13, v15
    v_cvt_pk_bf16_f32 v12, v12, v13
    ds_write_b32 v223, v12
    s_mov_b64 exec, -1
    s_waitcnt lgkmcnt(0)
    s_barrier
    """)
    for ks in range(4):
        e(f"ds_read_b128 v[{112+4*ks}:{115+4*ks}], v49 offset:{64*ks}")
    for ks in range(4):
        e(f"s_waitcnt lgkmcnt({3-ks})")
        for t in range(2):
            acc = f"v[{96+4*t}:{99+4*t}]"
            c = "0" if ks == 0 else acc
            r = 128 + 16 * t + 4 * ks
            e(f"v_mfma_f32_16x16x32_bf16 {acc}, v[{r}:{r+3}], v[{112+4*ks}:{115+4*ks}], {c}")
    e("s_mov_b32 exec_lo, 0x00030003\ns_mov_b32 exec_hi, 0x00030003")
    e.nop(6)
    for r in range(4):
        e(f"v_cndmask_b32 v{96+r}, v{96+r}, v{100+r}, s[64:65]")
    e("""
    v_cvt_pk_bf16_f32 v104, v96, v97
    v_cvt_pk_bf16_f32 v106, v98, v99
    """)
    if cfg.fast4 or cfg.xfast: e(f"global_store_dwordx4 v51, v[104:107], {WS}")
    e(f"global_store_dwordx4 v50, v[104:107], {WS} sc1\ns_mov_b64 exec, -1")
    stamp(9)
    e("s_branch L_b_tail")
    e.label("L_bp_prep")
    e(f"""
    v_lshl_add_u32 v58, v2, 2, v62
    v_and_b32 v13, 7, v58
    v_lshlrev_b32 v13, 1, v13
    v_lshlrev_b32 v58, 10, v58
    v_add_u32 v58, v58, v59
    s_and_b32 s66, s{S_W}, 3
    s_lshl_b32 s3, s66, 4
    v_add_u32 v12, s3, v63
    v_xor_b32 v12, v12, v13
    v_lshl_add_u32 v8, v12, 4, v58
    """)
    for tt in range(1, 8):
        e(f"v_xor_b32 v{8+tt}, {32*tt}, v8")
    e(f"""
    v_lshlrev_b32 v16, 4, v1
    v_add_u32 v16, {L_PEX}, v16
    s_mov_b32 s{SRD_A}, s{P_WUV}
    s_mov_b32 s{SRD_A+1}, s{P_WUV+1}
    s_mov_b32 s{SRD_A+2}, 4194304
    s_mov_b32 s{SRD_A+3}, 0x20000
    s_lshl_b32 s3, s{S_W}, 2
    s_and_b32 s3, s3, 8
    v_lshlrev_b32 v19, 1, v2
    v_xor_b32 v19, v19, v3
    v_xor_b32 v19, s3, v19
    v_lshlrev_b32 v19, 4, v19
    v_lshl_add_u32 v19, v2, 13, v19
    s_lshl_b32 s20, s{S_J}, 5
    s_add_u32 s20, s20, s66
    s_lshl_b32 s20, s20, 15
    s_lshl_b32 s21, s{S_H}, 8
    s_add_u32 s20, s20, s21
    s_lshl_b32 s21, s66, 10
    v_lshl_add_u32 v56, v1, 4, s21
    s_lshl_b32 s3, s{S_CH}, 15
    s_lshr_b32 s64, s{S_I}, 2
    s_lshl_b32 s65, s64, 13
    s_add_u32 s3, s3, s65
    s_lshl_b32 s65, s66, 8
    s_add_u32 s3, s3, s65
    s_add_u32 s3, s3, {WS_PART}
    v_and_b32 v17, 7, v3
    v_lshlrev_b32 v17, 10, v17
    v_lshl_add_u32 v17, v2, 4, v17
    v_lshrrev_b32 v20, 3, v3
    v_lshl_add_u32 v17, v20, 6, v17
    v_add_u32 v17, s3, v17
    s_lshl_b32 s64, s64, 10
    s_lshl_b32 s65, s{S_CH}, 12
    s_add_u32 s64, s64, s65
    s_add_u32 s64, s64, {WS_ST}
    v_lshrrev_b32 v18, 2, v1
    v_lshlrev_b32 v18, 7, v18
    v_and_b32 v20, 3, v1
    v_lshl_add_u32 v18, v20, 4, v18
    v_add_u32 v18, s64, v18
    v_mov_b32 v36, 0x3f803f80
    v_mov_b32 v37, 0x3f803f80
    v_mov_b32 v38, 0x3f803f80
    v_mov_b32 v39, 0x3f803f80
    s_waitcnt lgkmcnt(0)
    """)
    mk_tag()
    e("v_and_b32 v50, 3, v1\ns_mov_b32 s67, 0x00010001")
    tagpat(44, 50, 48)
    e(f"v_mov_b32 v53, s{S_TAG}\nv_mov_b32 v55, s{S_TAG}")
    tagpat(57, 2, 61)
    e(f"s_waitcnt vmcnt(0)\nglobal_load_dwordx4 v[40:43], v5, {WS} sc1")
    e("s_barrier")
    stamp(14)
    if cfg.xfast:
        e(f"""
        s_cmp_eq_u32 s{S_W}, 7
        s_cbranch_scc0 L_noxid
        s_getreg_b32 s3, hwreg(HW_REG_XCC_ID, 0, 4)
        v_mov_b32 v224, s3
        v_mov_b32 v225, s{S_TAG}
        v_mov_b32 v226, s3
        v_mov_b32 v227, s{S_TAG}
        s_and_b32 s3, s2, 127
        s_lshl_b32 s3, s3, 7
        s_add_u32 s3, s3, {WS_XID}
        v_lshl_add_u32 v228, v1, 4, s3
        s_mov_b64 exec, 0xf
        global_store_dwordx4 v228, v[224:227], {WS} sc1
        s_mov_b64 exec, -1
        """)
        e.label("L_noxid")
    for half in range(2):
        for tt in range(8):
            for k2 in range(2):
                ks = 2 * half + k2
                for eb in range(2):
                    r = 64 + 16 * tt + 4 * ks + 2 * eb
                    e(f"ds_read_b64_tr_b16 v[{r}:{r+1}], v{8+tt} offset:{32768*k2+16384*eb}")
        if half == 0:
            for tt in range(8):
                e(f"v_add_u32 v{8+tt}, 0x10000, v{8+tt}")
    h2_poll("p")
    for ii in range(8):
        e(f"""
        s_mov_b32 m0, s21
        s_add_u32 s21, s21, 4096
        buffer_load_dwordx4 v19, s[{SRD_A}:{SRD_A+3}], s20 offen{NT} lds
        s_add_u32 s20, s20, {4*4*8192}
        """)
    e("s_barrier\ns_barrier")
    for ks in range(4):
        e(f"ds_read_b128 v[{20+4*ks}:{23+4*ks}], v16 offset:{1024*ks}")
    e(f"""
    v_bfe_u32 v5, v1, 2, 3
    v_lshlrev_b32 v4, 4, v5
    v_add_u32 v4, {L_MX+128}, v4
    v_lshlrev_b32 v5, 2, v5
    s_mov_b32 s64, 0xff00ff00
    s_mov_b32 s65, 0xff00ff00
    """)
    stamp(6)
    for pr in range(4):
        e(f"v_mov_b32 v{37+0}, v{37}") if False else None
    def epi(sg):
        g = 64 + 64 * sg
        out = []
        for t in range(4):
            a0 = 192 + 16 * sg + 4 * t
            out.append(f"v_cvt_pk_bf16_f32 v{44+2*t}, v{a0}, v{a0+1}")
            out.append(f"v_cvt_pk_bf16_f32 v{45+2*t}, v{a0+2}, v{a0+3}")
        for i in range(4):
            out.append(f"v_cndmask_b32 v{g+i}, v{44+i}, v{48+i}, s[64:65]")
        for i in range(4):
            out.append(f"v_and_or_b32 v{g+i}, v{g+i}, s66, v{57+i}")
        out.append(f"global_store_dwordx4 v17, v[{g}:{g+3}], {WS} offset:{128*sg} sc1")
        return out
    e("s_mov_b32 s66, 0xfffefffe")
    if cfg.prio: e("s_setprio 3")
    ep0 = epi(0)
    for sg in range(2):
        k = 0
        for ks in range(4):
            for t in range(4):
                tt = 4 * sg + t
                acc = f"v[{192+4*tt}:{195+4*tt}]"
                c = "0" if ks == 0 else acc
                r = 64 + 16 * tt + 4 * ks
                if sg == 0 and t == 0: e(f"s_waitcnt lgkmcnt({3-ks})")
                e(f"v_mfma_f32_16x16x32_bf16 {acc}, v[{r}:{r+3}], v[{20+4*ks}:{23+4*ks}], {c}")
                k += 1
                if sg == 1 and k >= 8:
                    for _ in range(2):
                        if ep0: e(ep0.pop(0))
        if sg == 1:
            while ep0: e(ep0.pop(0))
    e(f"s_cmp_eq_u32 s{S_W}, 4\ns_cbranch_scc0 L_b_nol")
    e("ds_read_b32 v52, v4")
    for ks in range(4):
        c = "0" if ks == 0 else "v[40:43]"
        e(f"v_mfma_f32_16x16x32_bf16 v[40:43], v[36:39], v[{20+4*ks}:{23+4*ks}], {c}")
    e.label("L_b_nol")
    e.nop(6)
    for ins in epi(1): e(ins)
    e(f"""
    s_cmp_eq_u32 s{S_W}, 4
    s_cbranch_scc0 L_b_nostat
    ds_bpermute_b32 v54, v5, v40
    s_mov_b64 exec, 0xffffffff
    s_waitcnt lgkmcnt(0)
    global_store_dwordx4 v18, v[52:55], {WS} sc1
    s_mov_b64 exec, -1
    """)
    stamp(7)
    e("s_waitcnt vmcnt(3)\ns_branch L_b_st2")
    e.label("L_b_nostat")
    stamp(7)
    e("s_waitcnt vmcnt(2)")
    e.label("L_b_st2")
    e("s_barrier\ns_barrier")
    e.label("L_b_tail")
    e("s_barrier")
    s7_loads()
    e("s_waitcnt vmcnt(0)")
    s7_prep()
    if cfg.b5sleep: e(f"s_sleep {cfg.b5sleep}")

    e.label("L_S7")
    if cfg.s7warm:
        e("s_mov_b32 s7, 0")
    e(f"s_cmp_lt_u32 s{S_W}, 5\ns_cbranch_scc0 L_s7_bar")
    e("s_mov_b32 s66, 0x00010001")
    e.label("L_h5")
    e(f"""
    global_load_dwordx4 v[40:43], v244, {WS} sc1
    global_load_dwordx4 v[44:47], v245, {WS} sc1
    s_waitcnt vmcnt(0)
    """)
    for i in range(8):
        e(f"v_xor_b32 v{40+i}, v{40+i}, v{10+(i&3)}")
    e("v_or3_b32 v56, v40, v41, v42\nv_or3_b32 v57, v43, v44, v45\nv_or3_b32 v56, v46, v47, v56\nv_or_b32 v56, v56, v57\nv_and_b32 v56, s66, v56")
    poll_tail("L_h5", "L_h5_done", 56, cfg.h5sleep)
    stamp(12)
    if cfg.earlyepoch:
        e(f"""
        s_or_b32 s3, s2, s{S_W}
        s_cmp_eq_u32 s3, 0
        s_cbranch_scc0 L_h5_noep
        v_lshlrev_b32 v48, 2, v1
        v_mov_b32 v49, s{S_TAG}
        s_mov_b64 exec, 0xffff
        global_store_dword v48, v49, {WS} sc1
        s_mov_b64 exec, -1
        """)
        e.label("L_h5_noep")
    for i in range(4):
        e(f"v_lshlrev_b32 v{80+2*i}, 16, v{40+i}\nv_and_b32 v{81+2*i}, 0xffff0000, v{40+i}")
    for i in range(4):
        e(f"v_lshlrev_b32 v{88+2*i}, 16, v{44+i}\nv_and_b32 v{89+2*i}, 0xffff0000, v{44+i}")
        e(f"v_pk_add_f32 v[{80+2*i}:{81+2*i}], v[{80+2*i}:{81+2*i}], v[{88+2*i}:{89+2*i}]")
    e("s_nop 0")
    for i in range(4): e(f"v_permlane16_swap_b32 v{80+i}, v{84+i}")
    for i in range(4): e(f"v_add_f32 v{80+i}, v{80+i}, v{84+i}")
    e(f"""
    s_nop 0
    v_permlane32_swap_b32 v80, v82
    v_permlane32_swap_b32 v81, v83
    v_add_f32 v50, v80, v82
    v_add_f32 v51, v81, v83
    v_pk_add_f32 v[50:51], v[50:51], v[58:59]
    ds_write_b64 v248, v[50:51]
    v_add_f32 v52, v50, v51
    v_mul_f32 v53, v50, v50
    v_fmac_f32 v53, v51, v51
    """)
    dpp_reduce([52, 53])
    e(f"""
    s_mov_b32 exec_lo, 0
    s_mov_b32 exec_hi, 0x80000000
    ds_write_b64 v68, v[52:53]
    s_mov_b64 exec, -1
    """)
    e.label("L_s7_bar")
    e(f"""
    s_waitcnt lgkmcnt(0)
    s_barrier
    """)
    if cfg.s7stamps: stamp(1)
    e(f"""
    s_cmp_lt_u32 s2, {216 if cfg.outmap else 214}
    s_cbranch_scc0 L_fin
    """)
    e.label("L_s7_body")
    e(f"""
    ds_read_b128 v[40:43], v62
    ds_read_b128 v[44:47], v62 offset:16
    ds_read_b64 v[48:49], v62 offset:32
    ds_read_b32 v50, v63
    ds_read_b32 v52, v63 offset:4
    ds_read_b32 v54, v63 offset:8
    s_waitcnt lgkmcnt(3)
    v_pk_add_f32 v[40:41], v[40:41], v[42:43]
    v_pk_add_f32 v[44:45], v[44:45], v[46:47]
    v_pk_add_f32 v[40:41], v[40:41], v[48:49]
    v_pk_add_f32 v[40:41], v[40:41], v[44:45]
    v_pk_mul_f32 v[40:41], v[40:41], v[60:61] op_sel_hi:[1,0]
    v_fma_f32 v41, -v40, v40, v41
    v_max_f32 v41, 0, v41
    v_fma_f32 v42, v41, v61, v65
    s_waitcnt lgkmcnt(0)
    v_rsq_f32 v42, v42
    v_sub_f32 v70, v50, v40
    v_sub_f32 v72, v52, v40
    v_sub_f32 v74, v54, v40
    v_mul_f32 v70, v70, v42
    v_mul_f32 v72, v72, v42
    v_mul_f32 v74, v74, v42
    """)
    if cfg.s7stamps: stamp(2)
    combos = [(r, o) for o in range(3) for r in range(2)]
    for c, (r, o) in enumerate(combos):
        e(f"v_pk_fma_f32 v[{80+2*c}:{81+2*c}], v[{70+2*o}:{71+2*o}], v[{232+2*r}:{233+2*r}], v[{236+2*r}:{237+2*r}] op_sel_hi:[0,1,1]")
    for c in range(6):
        e(f"v_pk_mul_f32 v[{92+2*c}:{93+2*c}], v[{80+2*c}:{81+2*c}], v[{80+2*c}:{81+2*c}]")
    for c in range(6):
        e(f"v_pk_fma_f32 v[{92+2*c}:{93+2*c}], v[{92+2*c}:{93+2*c}], v[66:67], v[64:65] op_sel_hi:[1,0,0]")
    for c in range(6):
        e(f"v_pk_mul_f32 v[{92+2*c}:{93+2*c}], v[{92+2*c}:{93+2*c}], v[{80+2*c}:{81+2*c}]")
    for c in range(12):
        e(f"v_exp_f32 v{92+c}, v{92+c}")
    for c in range(6):
        e(f"v_pk_add_f32 v[{92+2*c}:{93+2*c}], v[{92+2*c}:{93+2*c}], 1.0 op_sel_hi:[1,0]")
    for c in range(12):
        e(f"v_rcp_f32 v{92+c}, v{92+c}")
    for c in range(6):
        e(f"v_pk_mul_f32 v[{80+2*c}:{81+2*c}], v[{80+2*c}:{81+2*c}], v[{92+2*c}:{93+2*c}]")
    for o in range(3):
        e(f"v_pk_mul_f32 v[{104+2*o}:{105+2*o}], v[{80+4*o}:{81+4*o}], v[240:241]")
    for o in range(3):
        e(f"v_pk_fma_f32 v[{104+2*o}:{105+2*o}], v[{82+4*o}:{83+4*o}], v[242:243], v[{104+2*o}:{105+2*o}]")
    if cfg.s7stamps: stamp(3)
    e("v_add_f32 v110, v104, v105\nv_add_f32 v111, v106, v107\nv_add_f32 v112, v108, v109")
    dpp_reduce([110, 111, 112])
    e(f"""
    s_mov_b32 exec_lo, 0
    s_mov_b32 exec_hi, 0x80000000
    ds_write_b128 v69, v[110:113]
    s_mov_b64 exec, -1
    """)
    if cfg.s7warm:
        e("s_cmp_eq_u32 s7, 1\ns_cbranch_scc1 L_s7_warm_ret")
    e(f"""
    {"s_mul_i32 s3, s5, 80" if cfg.outmap else "s_mov_b32 s3, 560"}
    s_add_u32 s3, s3, 80
    v_cmp_gt_u32 vcc, s3, v8
    v_lshlrev_b32 v8, 1, v8
    s_waitcnt lgkmcnt(0)
    s_barrier
    """)
    if cfg.s7stamps: stamp(4)
    e(f"""
    s_cmp_eq_u32 s{S_W}, 0
    s_cbranch_scc0 L_fin
    s_and_b64 vcc, vcc, 7
    s_and_saveexec_b64 s[64:65], vcc
    s_cbranch_execz L_fin0
    """)
    for w in range(8):
        e(f"ds_read_b32 v{40+w}, v6 offset:{16*w}")
    e(f"""
    ds_read_b32 v48, v7
    s_waitcnt lgkmcnt(0)
    v_add_f32 v40, v40, v41
    v_add_f32 v42, v42, v43
    v_add_f32 v44, v44, v45
    v_add_f32 v46, v46, v47
    v_add_f32 v48, v48, v9
    v_add_f32 v40, v40, v42
    v_add_f32 v44, v44, v46
    v_add_f32 v40, v40, v48
    v_add_f32 v40, v40, v44
    v_cvt_pk_bf16_f32 v40, v40, v40
    global_store_short v8, v40, s[{P_OUT}:{P_OUT+1}]
    """)
    e.label("L_fin0")
    e("s_mov_b64 exec, s[64:65]")
    e.label("L_fin")
    stamp(13)
    e(f"""
    s_cmp_eq_u32 s2, {0 if not (cfg.noepoch or cfg.earlyepoch) else 100000}
    s_cbranch_scc0 L_noepoch
    s_cmp_eq_u32 s{S_W}, 0
    s_cbranch_scc0 L_noepoch
    v_lshlrev_b32 v6, 2, v1
    v_mov_b32 v7, s{S_TAG}
    s_mov_b64 exec, 0xffff
    global_store_dword v6, v7, {WS} sc1
    s_mov_b64 exec, -1
    """)
    e.label("L_noepoch")
    if cfg.stamps:
        e(f"""
        s_waitcnt lgkmcnt(0)
        s_lshl_b32 s3, s2, 3
        s_add_u32 s3, s3, s{S_W}
        s_lshl_b32 s3, s3, 6
        s_add_u32 s3, s3, {WS_DBG}
        v_mov_b32 v6, s3
        s_mov_b64 exec, 1
        """)
        for q in range(4):
            for k in range(4):
                e(f"v_mov_b32 v{8+k}, s{S_STAMP+2*min(4*q+k,14)}")
            e(f"global_store_dwordx4 v6, v[8:11], {WS} offset:{16*q}")
            e.nop(2)
        e("s_mov_b64 exec, -1")
    e.label("L_exit")
    e("s_endpgm")
    if cfg.s7warm:
        e.label("L_s7_warm_ret")
        e("s_waitcnt lgkmcnt(0)\ns_setpc_b64 s[68:69]")
    e.label("L_fail")
    if cfg.stamps: e("s_mov_b64 exec, -1\ns_branch L_noepoch")
    e("s_endpgm")
    e.label("L_end")
    return e

def render(cfg):
    e = gen(cfg)
    body = e.text()
    hdr = open("cdna_kernels/" + NAME[:-7] + ".s.ref").read().split("; Override launch geometry")[0]
    out = hdr + f"; @launch grid=(256,1,1) block=(512,1,1) lds={LDS_BYTES}\n"
    out += f""".amdgcn_target "amdgcn-amd-amdhsa--gfx950"
.text
.globl {NAME}
.p2align 8
.type {NAME},@function
{NAME}:
{body}.section .rodata,"a"
.p2align 6
.amdhsa_kernel {NAME}
  .amdhsa_next_free_vgpr 256
  .amdhsa_next_free_sgpr 102
  .amdhsa_accum_offset 256
  .amdhsa_group_segment_fixed_size 0
  .amdhsa_kernarg_size 112
  .amdhsa_user_sgpr_count 2
  .amdhsa_user_sgpr_kernarg_segment_ptr 1
  .amdhsa_system_sgpr_workgroup_id_x 1
.end_amdhsa_kernel
"""
    return out, body

if __name__ == "__main__":
    cfg = Cfg()
    outp = sys.argv[1] if len(sys.argv) > 1 else "cdna_kernels/" + NAME[:-7] + ".s"
    for a in sys.argv[2:]:
        k, v = a.split("=")
        setattr(cfg, k, int(v))
    out, body = render(cfg)
    probs = check_hazards(body) + check_kernarg_race(body)
    for p in probs: print("HAZARD", p)
    open(outp, "w").write(out)
    print("wrote", outp, len(out), "bytes;", len(body.splitlines()), "lines")
```

```python
import sys, struct
from asmlib import Emit, check_hazards, check_kernarg_race

NAME = "sequential_preLN__compressed_kv_cla__mixer_token_mlp__decode_kernel"

WS_Q1, WS_Q1F, WS_QA, WS_CTX, WS_OP, WS_CTXF, WS_ST, WS_PART, WS_DBG = 0x10000, 0x20000, 0x50000, 0x60000, 0x70000, 0x90000, 0xC0000, 0x100000, 0x400000
WS_XID = 0x30000
L_CKV = 0
L_WO = 0
L_WQ = 32768
L_WUK = 73728
L_QAS = 131072
QAS_STRIDE = 1056
L_PEX = L_QAS + 8 * QAS_STRIDE
L_MX = L_PEX + 4096
L_LNS = 143872
L_QP = 145152
QP_STRIDE = 288
L_CTXS = 146304
L_BNC = 146560
L_ORED = 147584
L_HS = 149632
L_ST7 = 152192
L_YRED = 152256
LDS_BYTES = 152384

S_W, S_X, S_I, S_ISB = 4, 5, 6, 7
P_X, P_CKV, P_WQ, P_WUK, P_WUV, P_WO, P_W1, P_B1, P_W2, P_B2, P_OUT, P_DBG, P_WS = 8, 10, 12, 14, 16, 18, 22, 24, 26, 28, 30, 32, 34
S_TAG, S_H, S_J, S_CH = 36, 37, 38, 39
SRD_0, SRD_A, SRD_WO, SRD_W1, SRD_B1, SRD_W2 = 40, 44, 48, 52, 56, 60
S_SPIN = 100
S_STAMP = 70

def F32(x): return "0x%08x" % struct.unpack("<I", struct.pack("<f", x))[0]
WS = f"s[{P_WS}:{P_WS+1}]"

LSB_DEBIAS = 1.0 + 0.5 * 2.0**-7 * 0.7213475

class Cfg:
    stamps = 0
    nt = 1
    spin = 1 << 17
    h3sleep = 16
    fast1 = 0
    fast4 = 0
    codepf = 16
    bdelay = 0
    exp_nob = 0
    s7warm = 0
    ff1 = 10
    h2init = 0
    xfast = 1
    prio = 0
    ukdelay = 0
    touchslow = 0
    spreadk = 0
    spreadq = 0
    earlyepoch = 1
    tlbw = 0
    tlbo = 0
    tlbk = 0
    selftouch = 0
    lsb3 = 1
    ukearly = 0
    outmap = 1
    noepoch = 0
    s7stamps = 0
    touch = 0
    uknt = 1
    tsleep = 0
    planeorder = 1
    hperm = 0
    h3psleep = 0
    b5sleep = 44
    f5sleep = 16
    n5sleep = 44
    ckvnt = 0
    ukbar = 1
    bsleep = 8
    uvpf = 1
    h5sleep = 0
    h4sleep = 0
    h2sleep = 0
    exp_nowuv = 0

def gen(cfg):
    e = Emit()
    NT = " nt" if cfg.nt else ""
    def stamp(k):
        if cfg.stamps:
            e(f"s_memrealtime s[{S_STAMP+2*k}:{S_STAMP+2*k+1}]")
    def dpp_reduce(regs, op="v_add_f32"):
        steps = ["row_shr:1 row_mask:0xf bank_mask:0xf bound_ctrl:0", "row_shr:2 row_mask:0xf bank_mask:0xf bound_ctrl:0",
                 "row_shr:4 row_mask:0xf bank_mask:0xf bound_ctrl:0", "row_shr:8 row_mask:0xf bank_mask:0xf bound_ctrl:0",
                 "row_bcast:15 row_mask:0xa bank_mask:0xf", "row_bcast:31 row_mask:0xc bank_mask:0xf"]
        pad = max(0, 2 - (len(regs) - 1))
        e.nop(2)
        for k, st in enumerate(steps):
            for r in regs:
                e(f"{op}_dpp v{r}, v{r}, v{r} {st}")
            if k < len(steps) - 1 and pad: e.nop(pad)
    def tagchk(acc, tags):
        for k, t in enumerate(tags):
            if k == 0:
                e(f"v_xor_b32 v{acc}, s{S_TAG}, v{t}")
            else:
                e(f"v_bitop3_b32 v{acc}, v{acc}, v{t}, s{S_TAG} bitop3:0xf6")
    def spin_back(lbl_loop):
        e(f"s_sub_u32 s{S_SPIN}, s{S_SPIN}, 1")
        e(f"s_cbranch_scc0 {lbl_loop}")
        e("s_branch L_fail")
    def poll_tail(lbl_loop, lbl_done, acc, sleep=0):
        e(f"v_cmp_ne_u32 vcc, 0, v{acc}")
        e(f"s_cbranch_vccz {lbl_done}")
        if sleep: e(f"s_sleep {sleep}")
        spin_back(lbl_loop)
        e.label(lbl_done)
    def tr_common():
        e("""
        v_bfe_u32 v62, v1, 2, 2
        v_bfe_u32 v63, v1, 1, 1
        v_and_b32 v59, 1, v1
        v_lshlrev_b32 v59, 3, v59
        """)
    def tr256_addr(dst, tmp):
        e(f"""
        v_and_b32 v{dst}, 1, v2
        v_lshl_add_u32 v{dst}, v{dst}, 2, v62
        v_lshlrev_b32 v{dst}, 1, v{dst}
        s_lshl_b32 s3, s{S_W}, 1
        v_add_u32 v{tmp}, s3, v63
        v_xor_b32 v{dst}, v{dst}, v{tmp}
        v_lshl_add_u32 v{dst}, v{dst}, 4, v59
        v_lshl_add_u32 v{tmp}, v2, 3, v62
        v_lshl_add_u32 v{dst}, v{tmp}, 8, v{dst}
        """)
    def tagpat(dst, vsel, tmp):
        e(f"v_lshlrev_b32 v{tmp}, 3, v{vsel}")
        e(f"v_lshrrev_b32 v{tmp}, v{tmp}, s{S_TAG}") if False else e(f"v_mov_b32 v{tmp+1}, s{S_TAG}\nv_lshrrev_b32 v{tmp}, v{tmp}, v{tmp+1}")
        for i in range(4):
            e(f"v_bfe_u32 v{dst+i}, v{tmp}, {2*i}, 1")
            e(f"v_bfe_u32 v{tmp+1}, v{tmp}, {2*i+1}, 1")
            e(f"v_lshl_or_b32 v{dst+i}, v{tmp+1}, 16, v{dst+i}")
    def mk_tag():
        e(f"s_mul_i32 s{S_TAG}, s{S_TAG}, 1664525\ns_add_u32 s{S_TAG}, s{S_TAG}, 1013904223")
    def s7_loads():
        e(f"""
        s_mov_b32 s{SRD_W1}, s{P_W1}
        s_mov_b32 s{SRD_W1+1}, s{P_W1+1}
        s_mov_b32 s{SRD_W1+2}, 3456
        s_mov_b32 s{SRD_W1+3}, 0x20000
        s_mov_b32 s{SRD_B1}, s{P_B1}
        s_mov_b32 s{SRD_B1+1}, s{P_B1+1}
        s_mov_b32 s{SRD_B1+2}, 3456
        s_mov_b32 s{SRD_B1+3}, 0x20000
        s_mov_b32 s{SRD_W2}, s{P_W2}
        s_mov_b32 s{SRD_W2+1}, s{P_W2+1}
        s_mov_b32 s{SRD_W2+2}, 3456
        s_mov_b32 s{SRD_W2+3}, 0x20000
        s_lshl_b32 s3, s{S_W}, 8
        v_lshl_add_u32 v4, v1, 2, s3
        buffer_load_dword v224, v4, s[{SRD_W1}:{SRD_W1+3}], 0 offen
        buffer_load_dword v225, v4, s[{SRD_W1}:{SRD_W1+3}], 0 offen offset:2048
        buffer_load_dword v226, v4, s[{SRD_B1}:{SRD_B1+3}], 0 offen
        buffer_load_dword v227, v4, s[{SRD_B1}:{SRD_B1+3}], 0 offen offset:2048
        buffer_load_dword v228, v4, s[{SRD_W2}:{SRD_W2+3}], 0 offen
        buffer_load_dword v229, v4, s[{SRD_W2}:{SRD_W2+3}], 0 offen offset:2048
        v_mov_b32 v4, 0
        global_load_ushort v231, v4, s[{P_B2}:{P_B2+1}]
        {"global_load_dword v138, v4, s[%d:%d]" % (P_OUT, P_OUT+1) if cfg.tlbo else ""}
        s_min_u32 s3, s{S_W}, 4
        s_lshl_b32 s3, s3, 8
        v_lshlrev_b32 v4, 4, v3
        v_and_b32 v230, 1, v2
        v_lshl_add_u32 v4, v230, 3, v4
        v_lshrrev_b32 v230, 1, v2
        v_lshl_add_u32 v4, v230, 2, v4
        v_add_u32 v4, s3, v4
        global_load_dword v230, v4, s[{P_X}:{P_X+1}]
        """)
    OUTIDX = ("s_lshr_b32 s101, s2, 3\ns_mul_i32 s101, s101, 3\ns_mul_i32 s3, s5, 80\ns_add_u32 s101, s101, s3" if cfg.outmap else "s_mul_i32 s101, s2, 3")
    def s7_prep():
        for k, (raw, dst) in enumerate([(224, 232), (225, 234), (226, 236), (227, 238), (228, 240), (229, 242)]):
            e(f"v_lshlrev_b32 v{dst}, 16, v{raw}\nv_and_b32 v{dst+1}, 0xffff0000, v{raw}")
        e(f"""
        v_mul_u32_u24 v244, 1280, v2
        v_lshl_add_u32 v244, v3, 4, v244
        s_lshl_b32 s3, s{S_W}, 8
        s_add_u32 s64, s3, {WS_OP}
        v_add_u32 v244, s64, v244
        v_add_u32 v245, 5120, v244
        s_lshl_b32 s3, s{S_W}, 9
        s_add_u32 s3, s3, {L_HS}
        v_lshlrev_b32 v248, 5, v3
        v_and_b32 v57, 1, v2
        v_lshl_add_u32 v248, v57, 4, v248
        v_lshrrev_b32 v57, 1, v2
        v_lshl_add_u32 v248, v57, 3, v248
        v_add_u32 v248, s3, v248
        v_lshlrev_b32 v58, 16, v230
        v_and_b32 v59, 0xffff0000, v230
        v_mov_b32 v60, {F32(1.0/640)}
        v_mov_b32 v61, {F32(1.0 + 1e-5)}
        v_mov_b32 v65, {F32(1e-10)}
        v_mov_b32 v64, {F32(-2.0*0.7978845608028654*1.4426950408889634)}
        v_mov_b32 v66, {F32(-2.0*0.7978845608028654*1.4426950408889634*0.044715)}
        v_mov_b32 v62, {L_ST7}
        {OUTIDX}
        s_lshl_b32 s3, s101, 2
        s_add_u32 s3, s3, {L_HS}
        v_mov_b32 v63, s3
        s_lshl_b32 s3, s{S_W}, 3
        s_add_u32 s3, s3, {L_ST7}
        v_mov_b32 v68, s3
        s_lshl_b32 s3, s{S_W}, 4
        s_add_u32 s3, s3, {L_YRED}
        v_mov_b32 v69, s3
        v_mov_b32 v113, 0
        v_add_u32 v8, s101, v1
        v_lshlrev_b32 v6, 2, v1
        v_add_u32 v6, {L_YRED}, v6
        v_lshlrev_b32 v7, 2, v8
        v_add_u32 v7, {L_HS}, v7
        v_lshlrev_b32 v9, 16, v231
        """)
        e("v_and_b32 v57, 3, v1")
        tagpat(10, 57, 14)
        if cfg.s7warm:
            lbl = f"L_wret{len(e.lines)}"
            e(f"s_mov_b32 s7, 1\ns_getpc_b64 s[68:69]\ns_add_u32 s68, s68, 12\ns_addc_u32 s69, s69, 0\ns_branch L_s7_body")
            e(f"v_lshlrev_b32 v58, 16, v230\nv_and_b32 v59, 0xffff0000, v230")

    def uk_dma(bar):
        e(f"""
        s_mov_b32 s{SRD_A}, s{P_WUK}
        s_mov_b32 s{SRD_A+1}, s{P_WUK+1}
        s_mov_b32 s{SRD_A+2}, 4194304
        s_mov_b32 s{SRD_A+3}, 0x20000
        s_and_b32 s66, s{S_W}, 1
        s_lshl_b32 s66, s66, 3
        v_lshlrev_b32 v7, 1, v2
        v_xor_b32 v7, v7, v3
        v_xor_b32 v7, s66, v7
        v_lshlrev_b32 v7, 4, v7
        v_lshl_add_u32 v7, v2, 13, v7
        s_lshl_b32 s64, s{S_J}, 5
        s_add_u32 s64, s64, s{S_W}
        s_lshl_b32 s64, s64, 15
        s_lshl_b32 s65, s{S_H}, 8
        s_add_u32 s64, s64, s65
        s_lshl_b32 s67, s{S_W}, 10
        s_add_u32 s67, s67, {L_WUK}
        """)
        if bar: e("s_barrier")
        for ii in range(8):
            e(f"""
            s_mov_b32 m0, s67
            s_add_u32 s67, s67, 4096
            buffer_load_dwordx4 v7, s[{SRD_A}:{SRD_A+3}], s64 offen{NT} lds
            s_add_u32 s64, s64, {4*4*8192}
            """)

    e(f"""
    s_cmp_ge_u32 s2, 256
    s_cbranch_scc1 L_exit
    s_load_dwordx16 s[8:23], s[0:1], 0
    s_load_dwordx4 s[32:35], s[0:1], 96
    s_load_dwordx8 s[24:31], s[0:1], 64
    """)
    if cfg.codepf:
        e(f"""
        s_cmp_lt_u32 s2, {cfg.codepf}
        s_cbranch_scc0 L_nopf
        s_getpc_b64 s[64:65]
        """)
        e.label("L_pc")
        e(f"""
        s_and_b32 s64, s64, 0xffffff00
        v_lshlrev_b32 v203, 7, v0
        v_min_u32 v203, L_end-L_pc-4, v203
        v_mov_b32 v201, s65
        v_add_co_u32 v200, vcc, s64, v203
        s_nop 1
        v_addc_co_u32 v201, vcc, 0, v201, vcc
        global_load_dword v202, v[200:201], off
        """)
        e.label("L_nopf")
    if cfg.stamps:
        e(f"s_memrealtime s[{S_STAMP}:{S_STAMP+1}]")
        for k in range(1, 15): e(f"s_mov_b32 s{S_STAMP+2*k}, 0")
    e(f"""
    v_and_b32 v1, 63, v0
    v_lshrrev_b32 v4, 6, v0
    v_lshrrev_b32 v2, 4, v1
    v_readfirstlane_b32 s{S_W}, v4
    v_and_b32 v3, 15, v1
    s_and_b32 s{S_X}, s2, 7
    s_bfe_u32 s{S_I}, s2, 0x40003
    s_lshr_b32 s{S_H}, s{S_I}, 2
    s_xor_b32 s{S_H}, s{S_H}, {cfg.hperm}
    s_lshl_b32 s3, s{S_X}, 2
    s_add_u32 s{S_H}, s{S_H}, s3
    s_and_b32 s{S_J}, s{S_I}, 3
    s_mov_b32 s{SRD_0+3}, 0x20000
    s_mov_b32 s{S_SPIN}, {cfg.spin}
    s_cmp_ge_u32 s2, 128
    s_cbranch_scc1 L_B0
    """)
    e(f"""
    s_lshl_b32 s66, s{S_W}, 2
    s_and_b32 s66, s66, 8
    s_mul_i32 s64, s{S_J}, 40
    s_add_u32 s64, s64, s{S_W}
    s_lshl_b32 s64, s64, 15
    s_lshl_b32 s65, s{S_H}, 8
    s_add_u32 s64, s64, s65
    s_lshl_b32 s67, s{S_W}, 10
    s_add_u32 s67, s67, {L_WQ}
    s_mov_b32 s{SRD_0+2}, 5242880
    v_lshlrev_b32 v7, 1, v2
    v_xor_b32 v7, v7, v3
    v_xor_b32 v7, s66, v7
    v_lshlrev_b32 v7, 4, v7
    v_lshl_add_u32 v7, v2, 13, v7
    v_lshlrev_b32 v6, 2, v1
    s_cmp_eq_u32 s{S_W}, 0
    s_waitcnt lgkmcnt(0)
    s_mov_b32 s{SRD_0}, s{P_WQ}
    s_mov_b32 s{SRD_0+1}, s{P_WQ+1}
    s_cbranch_scc0 L_f_nox
    """)
    for k in range(5):
        e(f"global_load_dword v{8+k}, v6, s[{P_X}:{P_X+1}] offset:{256*k}")
    e.label("L_f_nox")
    for ii in range(5):
        e(f"""
        s_mov_b32 m0, s67
        s_add_u32 s67, s67, 8192
        buffer_load_dwordx4 v7, s[{SRD_0}:{SRD_0+3}], s64 offen{NT} lds
        s_add_u32 s64, s64, {8*4*8192}
        """)
    if cfg.tlbk:
        e(f"""
        s_lshl_b32 s3, s{S_J}, 7
        s_lshl_b32 s64, s{S_W}, 4
        s_add_u32 s3, s3, s64
        s_lshl_b32 s3, s3, 13
        s_lshl_b32 s64, s{S_H}, 8
        s_add_u32 s3, s3, s64
        v_mov_b32 v4, s3
        s_mov_b64 exec, 1
        global_load_dword v200, v4, s[{P_WUK}:{P_WUK+1}] nt
        s_mov_b64 exec, -1
        """)
    if cfg.selftouch:
        e(f"""
        v_bfe_u32 v4, v1, 1, 4
        s_lshl_b32 s3, s{S_J}, 7
        s_lshl_b32 s64, s{S_W}, 4
        s_add_u32 s3, s3, s64
        v_add_u32 v4, s3, v4
        v_lshlrev_b32 v4, 13, v4
        v_and_b32 v5, 1, v1
        v_lshl_add_u32 v4, v5, 7, v4
        s_lshl_b32 s3, s{S_H}, 8
        v_add_u32 v4, s3, v4
        s_mov_b64 exec, 0xffffffff
        global_load_dword v200, v4, s[{P_WUK}:{P_WUK+1}] nt
        s_mov_b64 exec, -1
        """)
    if cfg.ukearly and not cfg.ukdelay:
        e("s_barrier")
        e(f"s_cmp_lt_u32 s{S_W}, 4\ns_cbranch_scc0 L_f_nouk")
        uk_dma(False)
        e.label("L_f_nouk")
    e(f"""
    s_load_dword s{S_TAG}, {WS}, 0
    s_branch L_F1
    """)
    e.label("L_B0")
    if cfg.exp_nob: e("s_endpgm")
    e(f"""
    s_lshl_b32 s3, s{S_W}, 1
    v_xor_b32 v7, s3, v1
    v_lshlrev_b32 v7, 4, v7
    s_lshl_b32 s{S_CH}, s{S_X}, 2
    s_add_u32 s{S_CH}, s{S_CH}, s{S_J}
    s_lshl_b32 s66, s{S_CH}, 17
    s_and_b32 s67, s{S_I}, 12
    s_lshl_b32 s67, s67, 13
    s_lshl_b32 s65, s{S_W}, 10
    s_add_u32 s67, s67, s65
    s_mov_b32 s{SRD_0+2}, 4194304
    s_mov_b32 s68, 15
    v_bfe_u32 v4, v1, 1, 4
    s_lshl_b32 s3, s{S_J}, 7
    s_lshl_b32 s64, s{S_W}, 4
    s_add_u32 s3, s3, s64
    v_add_u32 v4, s3, v4
    v_lshlrev_b32 v4, 13, v4
    v_and_b32 v5, 1, v1
    v_lshl_add_u32 v4, v5, 7, v4
    s_lshl_b32 s3, s{S_H}, 8
    v_add_u32 v4, s3, v4
    s_waitcnt lgkmcnt(0)
    s_mov_b32 s{SRD_0}, s{P_CKV}
    s_mov_b32 s{SRD_0+1}, s{P_CKV+1}
    """)
    if cfg.tlbw:
        e(f"""
        s_cmp_eq_u32 s{S_I}, 0
        s_cselect_b32 s3, s{S_W}, 0
        s_cmp_eq_u32 s3, 7
        s_cbranch_scc0 L_notlb
        s_mov_b64 exec, 1
        v_mov_b32 v8, 0
        v_mov_b32 v9, 0x200000
        v_mov_b32 v10, 0x3ffffc
        v_mov_b32 v11, 0x4ffffc
        global_load_dword v204, v8, s[{P_WUK}:{P_WUK+1}] nt
        global_load_dword v204, v9, s[{P_WUK}:{P_WUK+1}] nt
        global_load_dword v204, v10, s[{P_WUK}:{P_WUK+1}] nt
        global_load_dword v204, v8, s[{P_WUV}:{P_WUV+1}] nt
        global_load_dword v204, v9, s[{P_WUV}:{P_WUV+1}] nt
        global_load_dword v204, v10, s[{P_WUV}:{P_WUV+1}] nt
        global_load_dword v204, v8, s[{P_WO}:{P_WO+1}] nt
        global_load_dword v204, v9, s[{P_WO}:{P_WO+1}] nt
        global_load_dword v204, v10, s[{P_WO}:{P_WO+1}] nt
        global_load_dword v204, v11, s[{P_WO}:{P_WO+1}] nt
        global_load_dword v204, v8, s[{P_W1}:{P_W1+1}]
        global_load_dword v204, v8, s[{P_B1}:{P_B1+1}]
        global_load_dword v204, v8, s[{P_W2}:{P_W2+1}]
        global_load_ushort v204, v8, s[{P_B2}:{P_B2+1}]
        global_load_dword v204, v8, s[{P_OUT}:{P_OUT+1}]
        s_mov_b64 exec, -1
        """)
        e.label("L_notlb")
    if cfg.tsleep: e(f"s_sleep {cfg.tsleep}")
    if cfg.spreadq or cfg.spreadk:
        e(f"""
        s_lshl_b32 s3, s{S_X}, 2
        s_add_u32 s3, s3, 1
        s_lshl_b32 s3, s3, 8
        v_lshrrev_b32 v8, 1, v1
        v_and_b32 v9, 1, v1
        v_lshlrev_b32 v9, 7, v9
        v_add_u32 v9, s3, v9
        """)
        if cfg.spreadq:
            e(f"""
            s_mul_i32 s3, s{S_I}, 40
            s_mul_i32 s64, s{S_W}, 5
            s_add_u32 s3, s3, s64
            v_add_u32 v10, s3, v8
            v_lshl_add_u32 v10, v10, 13, v9
            s_mov_b64 exec, 0x3ff
            global_load_dword v200, v10, s[{P_WQ}:{P_WQ+1}] nt
            s_mov_b64 exec, -1
            """)
        if cfg.spreadk:
            e(f"""
            s_lshl_b32 s3, s{S_I}, 5
            s_lshl_b32 s64, s{S_W}, 2
            s_add_u32 s3, s3, s64
            v_add_u32 v10, s3, v8
            v_lshl_add_u32 v10, v10, 13, v9
            s_mov_b64 exec, 0xff
            global_load_dword v200, v10, s[{P_WUK}:{P_WUK+1}] nt
            s_mov_b64 exec, -1
            """)
    if cfg.touchslow:
        e(f"""
        s_and_b32 s3, s{S_H}, 3
        s_cmp_eq_u32 s3, {cfg.touchslow - 1}
        s_cbranch_scc0 L_notouch
        s_mov_b64 exec, 0xffffffff
        global_load_dword v200, v4, s[{P_WUK}:{P_WUK+1}] nt
        s_mov_b64 exec, -1
        """)
        e.label("L_notouch")
    if cfg.touch: e(f"""
    s_mov_b64 exec, 0xffffffff
    global_load_dword v200, v4, s[{P_WUK}:{P_WUK+1}]{" nt" if cfg.uknt else ""}
    s_mov_b64 exec, -1
    """)
    if cfg.bdelay: e(f"s_load_dword s{S_TAG}, {WS}, 0\ns_waitcnt lgkmcnt(0)")
    if cfg.bsleep: e(f"s_sleep {cfg.bsleep}")
    e.label("L_b_dma")
    e(f"""
    s_mov_b32 m0, s67
    s_add_u32 s69, s67, s66
    buffer_load_dwordx4 v7, s[{SRD_0}:{SRD_0+3}], s69 offen{" nt" if cfg.ckvnt else ""} lds
    s_add_u32 s67, s67, 8192
    s_and_b32 s67, s67, 0x1ffff
    s_sub_u32 s68, s68, 1
    s_cbranch_scc0 L_b_dma
    """)
    if not cfg.bdelay: e(f"s_load_dword s{S_TAG}, {WS}, 0")
    e("s_branch L_B1")

    e.label("L_F1")
    e(f"s_mov_b32 s{S_ISB}, 0")
    stamp(1)
    tr_common()
    e(f"""
    v_and_b32 v41, 1, v2
    v_lshl_add_u32 v41, v41, 2, v62
    v_lshlrev_b32 v41, 1, v41
    s_and_b32 s65, s{S_W}, 3
    s_lshl_b32 s3, s65, 2
    v_add_u32 v42, s3, v63
    v_xor_b32 v41, v41, v42
    v_lshl_add_u32 v41, v41, 4, v59
    v_lshl_add_u32 v42, v2, 3, v62
    v_lshl_add_u32 v41, v42, 8, v41
    v_add_u32 v41, {L_WQ}, v41
    v_xor_b32 v40, 32, v41
    s_mul_i32 s3, s{S_J}, 320
    s_add_u32 s3, s3, {L_LNS}
    v_lshl_add_u32 v42, v2, 4, s3
    s_lshl_b32 s3, s{S_H}, 2
    s_add_u32 s3, s3, s{S_J}
    s_lshl_b32 s3, s3, 9
    s_lshl_b32 s64, s65, 7
    s_add_u32 s3, s3, s64
    s_add_u32 s65, s3, {WS_Q1}
    v_and_b32 v43, 1, v1
    v_lshlrev_b32 v43, 6, v43
    v_lshl_add_u32 v43, v2, 4, v43
    v_add_u32 v43, s65, v43
    v_add_u32 v44, {WS_Q1F-WS_Q1}, v43
    s_lshl_b32 s64, s{S_W}, 6
    s_lshl_b32 s3, s{S_H}, 2
    s_and_b32 s65, s{S_W}, 3
    s_add_u32 s3, s3, s65
    s_lshl_b32 s3, s3, 9
    s_add_u32 s3, s3, {WS_Q1}
    v_lshl_add_u32 v45, v1, 3, s3
    v_add_u32 v49, {WS_Q1F-WS_Q1}, v45
    s_mul_i32 s3, s65, {QP_STRIDE}
    s_add_u32 s3, s3, {L_QP}
    v_lshl_add_u32 v46, v1, 2, s3
    v_and_b32 v47, 3, v3
    v_mul_u32_u24 v47, {QP_STRIDE}, v47
    v_lshl_add_u32 v47, v2, 4, v47
    v_add_u32 v47, {L_QP}, v47
    s_and_b32 s66, s{S_W}, 3
    s_lshl_b32 s3, s{S_H}, 10
    s_lshl_b32 s65, s{S_J}, 8
    s_add_u32 s3, s3, s65
    s_lshl_b32 s64, s66, 6
    s_add_u32 s3, s3, s64
    s_add_u32 s65, s3, {WS_QA}
    v_and_b32 v50, 1, v1
    v_lshlrev_b32 v50, 1, v50
    v_lshrrev_b32 v51, 1, v2
    v_add_u32 v50, v50, v51
    v_lshl_add_u32 v48, v50, 4, s65
    s_lshl_b32 s3, s66, 5
    v_add_u32 v24, s3, v3
    v_lshlrev_b32 v24, 8, v24
    v_and_b32 v25, 7, v3
    v_lshlrev_b32 v25, 1, v25
    v_xor_b32 v25, v25, v2
    v_lshl_add_u32 v24, v25, 4, v24
    v_add_u32 v24, {L_WUK}, v24
    v_xor_b32 v25, 64, v24
    v_xor_b32 v26, 128, v24
    v_xor_b32 v27, 192, v24
    s_waitcnt lgkmcnt(0)
    """)
    mk_tag()
    e(f"v_mov_b32 v105, s{S_TAG}\nv_mov_b32 v107, s{S_TAG}")
    tagpat(52, 50, 56)
    e(f"""
    s_cmp_eq_u32 s{S_W}, 0
    s_cbranch_scc0 L_f_noln
    """)
    e(f"s_waitcnt vmcnt({13 if (cfg.ukearly and not cfg.ukdelay) else 5 + cfg.selftouch + cfg.tlbk})")
    stamp(2)
    for k in range(5):
        e(f"v_lshlrev_b32 v{64+2*k}, 16, v{8+k}")
        e(f"v_and_b32 v{65+2*k}, 0xffff0000, v{8+k}")
    e(f"""
    v_pk_add_f32 v[74:75], v[64:65], v[66:67]
    v_pk_add_f32 v[76:77], v[68:69], v[70:71]
    v_pk_add_f32 v[74:75], v[74:75], v[72:73]
    v_pk_add_f32 v[74:75], v[74:75], v[76:77]
    v_mov_b32 v78, {F32(-1.0/640)}
    v_add_f32 v74, v74, v75
    """)
    dpp_reduce([74])
    e.nop(1)
    e("v_readlane_b32 s20, v74, 63")
    e(f"v_mov_b32 v80, {F32(1.0/640)}\nv_mov_b32 v81, {F32(1e-5)}")
    e("v_mul_f32 v78, s20, v78")
    for k in range(5):
        e(f"v_pk_add_f32 v[{64+2*k}:{65+2*k}], v[{64+2*k}:{65+2*k}], v[78:79] op_sel_hi:[1,0]")
    e("v_pk_mul_f32 v[74:75], v[64:65], v[64:65]")
    for k in range(1, 5):
        e(f"v_pk_fma_f32 v[74:75], v[{64+2*k}:{65+2*k}], v[{64+2*k}:{65+2*k}], v[74:75]")
    e("v_add_f32 v74, v74, v75")
    dpp_reduce([74])
    e.nop(1)
    e("v_readlane_b32 s21, v74, 63")
    e(f"v_mov_b32 v82, {F32(128**-0.5 * 1.4426950408889634 * LSB_DEBIAS)}")
    e(f"v_add_u32 v6, {L_LNS}, v6")
    e("v_fma_f32 v74, s21, v80, v81")
    e("v_rsq_f32 v74, v74")
    e.nop(1)
    e("v_mul_f32 v74, v74, v82")
    for k in range(5):
        e(f"v_pk_mul_f32 v[{64+2*k}:{65+2*k}], v[{64+2*k}:{65+2*k}], v[74:75] op_sel_hi:[1,0]")
    for k in range(5):
        e(f"v_cvt_pk_bf16_f32 v{8+k}, v{64+2*k}, v{65+2*k}")
        e(f"ds_write_b32 v6, v{8+k} offset:{256*k}")
    e.label("L_f_noln")
    if cfg.ukearly and cfg.ukdelay:
        e(f"s_cmp_lt_u32 s{S_W}, 4\ns_cbranch_scc0 L_f_nouk\ns_cmp_eq_u32 s{S_W}, 0\ns_cbranch_scc1 L_f_uk0\ns_sleep {cfg.ukdelay}")
        e.label("L_f_uk0")
        uk_dma(False)
        e.label("L_f_nouk")
    if cfg.ukearly:
        e(f"s_cmp_lt_u32 s{S_W}, 4\ns_cbranch_scc0 L_f_w0\ns_waitcnt vmcnt(8)\ns_branch L_f_w1")
        e.label("L_f_w0")
        e("s_waitcnt vmcnt(0)")
        e.label("L_f_w1")
        e("s_waitcnt lgkmcnt(0)")
    else:
        e(f"s_waitcnt vmcnt({cfg.selftouch + cfg.tlbk}) lgkmcnt(0)")
    e("s_barrier")
    stamp(3)
    e(f"s_cmp_lt_u32 s{S_W}, 4\ns_cbranch_scc1 L_f_uk")
    if cfg.prio: e("s_setprio 2")
    for ks in range(5):
        e(f"ds_read_b128 v[{84+4*ks}:{87+4*ks}], v42 offset:{64*ks}")
        e(f"ds_read_b64_tr_b16 v[{64+4*ks}:{65+4*ks}], v41 offset:{8192*ks}")
        e(f"ds_read_b64_tr_b16 v[{66+4*ks}:{67+4*ks}], v41 offset:{8192*ks+1024}")
        e(f"ds_read_b64_tr_b16 v[{112+4*ks}:{113+4*ks}], v40 offset:{8192*ks}")
        e(f"ds_read_b64_tr_b16 v[{114+4*ks}:{115+4*ks}], v40 offset:{8192*ks+1024}")
    e("s_mov_b32 s64, 0xaaaaaaaa\ns_mov_b32 s65, 0xaaaaaaaa")
    for ks in range(5):
        e(f"s_waitcnt lgkmcnt({min(15, 20-5*ks)})")
        c = "0" if ks == 0 else "v[108:111]"
        e(f"v_mfma_f32_16x16x32_bf16 v[108:111], v[{64+4*ks}:{67+4*ks}], v[{84+4*ks}:{87+4*ks}], {c}")
        c = "0" if ks == 0 else "v[132:135]"
        e(f"v_mfma_f32_16x16x32_bf16 v[132:135], v[{112+4*ks}:{115+4*ks}], v[{84+4*ks}:{87+4*ks}], {c}")
    e("s_mov_b32 exec_lo, 0x00030003\ns_mov_b32 exec_hi, 0x00030003")
    e.nop(6)
    for r in range(4):
        e(f"v_cndmask_b32 v{108+r}, v{108+r}, v{132+r}, s[64:65]")
    e("""
    v_cvt_pk_bf16_f32 v104, v108, v109
    v_cvt_pk_bf16_f32 v106, v110, v111
    """)
    if cfg.fast1 or cfg.ff1: e(f"global_store_dwordx4 v44, v[104:107], {WS}")
    e(f"global_store_dwordx4 v43, v[104:107], {WS} sc1\ns_mov_b64 exec, -1")
    stamp(4)
    e(("" if cfg.ukearly else "s_barrier\n") + "s_branch L_h1_bar")
    e.label("L_f_uk")
    if not cfg.ukearly: uk_dma(True)
    if cfg.ff1:
        e(f"s_mov_b32 s20, {cfg.ff1}")
    e.label("L_h1")
    if cfg.ff1:
        e(f"global_load_dwordx2 v[64:65], v49, {WS} sc1\ns_waitcnt vmcnt(0)")
        e(f"v_cmp_ne_u32 vcc, s{S_TAG}, v65\ns_cbranch_vccz L_h1_done")
        e(f"s_sub_u32 s{S_SPIN}, s{S_SPIN}, 1\ns_cbranch_scc1 L_fail")
        e("s_sub_u32 s20, s20, 1\ns_cbranch_scc0 L_h1\nv_mov_b32 v49, v45\ns_mov_b32 s20, 0x7fffffff\ns_branch L_h1")
    elif cfg.fast1:
        e(f"global_load_dwordx2 v[66:67], v49, {WS} sc1")
        e(f"global_load_dwordx2 v[64:65], v45, {WS} sc1\ns_waitcnt vmcnt(0)")
        e(f"v_cmp_eq_u32 vcc, s{S_TAG}, v67")
        e.nop(2)
        e("v_cndmask_b32 v64, v64, v66, vcc\nv_cndmask_b32 v65, v65, v67, vcc")
    else:
        e(f"global_load_dwordx2 v[64:65], v45, {WS} sc1\ns_waitcnt vmcnt(0)")
    if not cfg.ff1:
        e(f"v_cmp_ne_u32 vcc, s{S_TAG}, v65")
        e(f"s_cbranch_vccz L_h1_done")
        spin_back("L_h1")
    e.label("L_h1_done")
    stamp(8)
    stamp(7)
    e("ds_write_b32 v46, v64")
    e.label("L_h1_bar")
    e("s_waitcnt lgkmcnt(0)\ns_barrier")
    stamp(5)
    e(f"s_cmp_lt_u32 s{S_W}, 4\ns_cbranch_scc1 L_f_nos2")
    for t in range(4):
        e(f"ds_read_b128 v[{64+4*t}:{67+4*t}], v47 offset:{64*t}")
        e(f"ds_read_b128 v[{80+4*t}:{83+4*t}], v{24+t}")
        e(f"ds_read_b128 v[{112+4*t}:{115+4*t}], v{24+t} offset:4096")
    e("s_mov_b32 s64, 0xaaaaaaaa\ns_mov_b32 s65, 0xaaaaaaaa")
    for t in range(4):
        e(f"s_waitcnt lgkmcnt({9-3*t})")
        c = "0" if t == 0 else "v[108:111]"
        e(f"v_mfma_f32_16x16x32_bf16 v[108:111], v[{80+4*t}:{83+4*t}], v[{64+4*t}:{67+4*t}], {c}")
        c = "0" if t == 0 else "v[132:135]"
        e(f"v_mfma_f32_16x16x32_bf16 v[132:135], v[{112+4*t}:{115+4*t}], v[{64+4*t}:{67+4*t}], {c}")
    e.nop(7)
    for st in ("row_ror:1", "row_ror:2"):
        for r in list(range(108, 112)) + list(range(132, 136)):
            e(f"v_add_f32_dpp v{r}, v{r}, v{r} {st} row_mask:0xf bank_mask:0xf")
    for r in range(4):
        e(f"v_cndmask_b32 v{108+r}, v{108+r}, v{132+r}, s[64:65]")
    e("""
    v_cvt_pk_bf16_f32 v104, v108, v109
    v_cvt_pk_bf16_f32 v105, v110, v111
    s_mov_b32 s66, 0xfffefffe
    v_mov_b32 v106, v104
    v_mov_b32 v107, v105
    s_nop 1
    v_permlane16_swap_b32 v104, v106
    v_permlane16_swap_b32 v105, v107
    s_mov_b32 exec_lo, 3
    s_mov_b32 exec_hi, 3
    v_and_or_b32 v104, v104, s66, v52
    v_and_or_b32 v105, v105, s66, v53
    v_and_or_b32 v106, v106, s66, v54
    v_and_or_b32 v107, v107, s66, v55
    """)
    e(f"global_store_dwordx4 v48, v[104:107], {WS} sc1\ns_mov_b64 exec, -1")
    stamp(6)
    e.label("L_f_nos2")
    e("s_barrier")
    if cfg.uvpf:
        e(f"""
        v_lshrrev_b32 v4, 1, v1
        s_lshl_b32 s3, s{S_J}, 7
        s_lshl_b32 s64, s{S_W}, 4
        s_add_u32 s3, s3, s64
        v_and_b32 v4, 15, v4
        v_add_u32 v4, s3, v4
        v_lshlrev_b32 v4, 13, v4
        v_and_b32 v5, 1, v1
        v_lshl_add_u32 v4, v5, 7, v4
        s_lshl_b32 s3, s{S_H}, 8
        v_add_u32 v4, s3, v4
        s_mov_b64 exec, 0xffffffff
        global_load_dword v5, v4, s[{P_WUV}:{P_WUV+1}]{NT}
        s_mov_b64 exec, -1
        """)
    e(f"s_cmp_lt_u32 s{S_I}, 10\ns_cbranch_scc1 L_s6")
    s7_loads()
    e("s_waitcnt vmcnt(0)")
    s7_prep()
    if cfg.n5sleep:
        e(f"""
        s_cmp_lt_u32 s{S_W}, 5
        s_cbranch_scc0 L_S7
        s_lshl_b32 s3, s{S_H}, 2
        s_add_u32 s3, s3, s{S_J}
        s_lshl_b32 s3, s3, 9
        s_add_u32 s3, s3, {WS_CTX}
        v_mov_b32 v40, s3
        """)
        e.label("L_sent")
        e(f"""
        global_load_dwordx2 v[42:43], v40, {WS} sc1
        s_waitcnt vmcnt(0)
        v_cmp_ne_u32 vcc, s{S_TAG}, v43
        s_cbranch_vccz L_sent_done
        s_sleep 8
        """)
        spin_back("L_sent")
        e.label("L_sent_done")
        e(f"s_sleep {cfg.n5sleep}")
    e("s_branch L_S7")
    e.label("L_s6")
    e(f"""
    s_mov_b32 s{SRD_WO}, s{P_WO}
    s_mov_b32 s{SRD_WO+1}, s{P_WO+1}
    s_mov_b32 s{SRD_WO+2}, 5242880
    s_mov_b32 s{SRD_WO+3}, 0x20000
    v_lshrrev_b32 v12, 3, v1
    v_mul_u32_u24 v50, 1280, v12
    v_and_b32 v12, 2, v12
    v_and_b32 v13, 7, v1
    v_xor_b32 v12, v12, v13
    v_lshl_add_u32 v50, v12, 4, v50
    v_xor_b32 v51, 64, v50
    s_lshl_b32 s3, s{S_X}, 3
    s_add_u32 s3, s3, s{S_W}
    s_mul_i32 s20, s3, {64*1280}
    s_lshl_b32 s65, s{S_I}, 7
    s_add_u32 s20, s20, s65
    s_lshl_b32 s21, s{S_W}, 13
    """)
    for ii in range(8):
        e(f"""
        s_mov_b32 m0, s21
        s_add_u32 s21, s21, 1024
        buffer_load_dwordx4 v{50+(ii&1)}, s[{SRD_WO}:{SRD_WO+3}], s20 offen{NT} lds
        s_add_u32 s20, s20, {8*1280}
        """)
    s7_loads()
    tr_common()
    e(f"""
    v_lshl_add_u32 v12, v2, 3, v62
    v_lshlrev_b32 v12, 7, v12
    v_add_u32 v12, v12, v59
    s_lshl_b32 s3, s{S_W}, 13
    v_add_u32 v12, s3, v12
    v_and_b32 v13, 1, v2
    v_lshlrev_b32 v13, 2, v13
    v_and_b32 v14, 2, v62
    v_or_b32 v13, v13, v14
    v_xor_b32 v13, v13, v63
    v_lshl_add_u32 v249, v13, 4, v12
    v_xor_b32 v250, 32, v249
    v_xor_b32 v251, 64, v249
    v_xor_b32 v252, 96, v249
    s_lshr_b32 s3, s{S_W}, 1
    s_lshl_b32 s64, s{S_X}, 2
    s_add_u32 s3, s3, s64
    s_lshl_b32 s3, s3, 11
    s_and_b32 s64, s{S_W}, 1
    s_lshl_b32 s64, s64, 8
    s_add_u32 s3, s3, s64
    s_add_u32 s3, s3, {WS_CTX}
    v_lshlrev_b32 v140, 9, v2
    v_lshl_add_u32 v140, v3, 4, v140
    v_add_u32 v140, s3, v140
    v_add_u32 v141, {WS_CTXF-WS_CTX}, v140
    s_lshl_b32 s3, s{S_W}, 7
    s_add_u32 s3, s3, {L_BNC}
    v_lshl_add_u32 v142, v3, 2, v2
    v_lshlrev_b32 v142, 1, v142
    v_add_u32 v142, s3, v142
    v_lshl_add_u32 v143, v2, 4, s3
    s_lshl_b32 s3, s{S_W}, 8
    s_add_u32 s3, s3, {L_ORED}
    v_lshl_add_u32 v253, v2, 4, s3
    v_lshlrev_b32 v254, 3, v1
    v_add_u32 v254, {L_ORED}, v254
    s_mul_i32 s3, s{S_X}, 1280
    s_lshl_b32 s64, s{S_I}, 7
    s_add_u32 s3, s3, s64
    s_add_u32 s3, s3, {WS_OP}
    v_lshl_add_u32 v255, v1, 2, s3
    v_and_b32 v12, 15, v1
    v_lshlrev_b32 v12, 1, v12
    v_mov_b32 v13, s{S_TAG}
    v_lshrrev_b32 v12, v12, v13
    v_and_b32 v13, 1, v12
    v_and_b32 v12, 2, v12
    v_lshl_or_b32 v136, v12, 15, v13
    s_waitcnt vmcnt(0)
    """)
    stamp(9)
    s7_prep()
    for tt in range(4):
        for ks in range(2):
            r = 80 + 8 * tt + 4 * ks
            e(f"ds_read_b64_tr_b16 v[{r}:{r+1}], v{249+tt} offset:{4096*ks}")
            e(f"ds_read_b64_tr_b16 v[{r+2}:{r+3}], v{249+tt} offset:{4096*ks+512}")
    if cfg.xfast:
        e(f"""
        v_and_b32 v40, 15, v1
        v_lshlrev_b32 v40, 10, v40
        s_lshl_b32 s3, s{S_X}, 7
        s_add_u32 s3, s3, {WS_XID}
        v_add_u32 v40, s3, v40
        s_getreg_b32 s64, hwreg(HW_REG_XCC_ID, 0, 4)
        """)
        e.label("L_xid")
        e(f"""
        global_load_dwordx2 v[42:43], v40, {WS} sc1
        s_waitcnt vmcnt(0)
        v_cmp_ne_u32 vcc, s{S_TAG}, v43
        s_cbranch_vccz L_xid_ok
        s_sleep 4
        """)
        spin_back("L_xid")
        e.label("L_xid_ok")
        e(f"""
        v_cmp_ne_u32 vcc, s64, v42
        s_cbranch_vccnz L_xid_slow
        v_mov_b32 v140, v141
        """)
        e.label("L_xid_slow")
    e.label("L_h4")
    if cfg.fast4 == 2:
        e(f"global_load_dwordx4 v[40:43], v141, {WS} sc1\ns_waitcnt vmcnt(0)")
    elif cfg.fast4:
        e(f"global_load_dwordx4 v[44:47], v141, {WS} sc1")
        e(f"global_load_dwordx4 v[40:43], v140, {WS} sc1\ns_waitcnt vmcnt(0)")
        tagchk(48, [45, 47])
        e("v_cmp_eq_u32 vcc, 0, v48")
        e.nop(2)
        for k in range(4): e(f"v_cndmask_b32 v{40+k}, v{40+k}, v{44+k}, vcc")
    else:
        e(f"global_load_dwordx4 v[40:43], v140, {WS} sc1\ns_waitcnt vmcnt(0)")
    tagchk(48, [41, 43])
    poll_tail("L_h4", "L_h4_done", 48, cfg.h4sleep)
    stamp(10)
    e("""
    v_lshlrev_b32 v44, 16, v40
    v_and_b32 v45, 0xffff0000, v40
    v_lshlrev_b32 v46, 16, v42
    v_and_b32 v47, 0xffff0000, v42
    s_nop 1
    v_permlane32_swap_b32 v44, v46
    v_permlane32_swap_b32 v45, v47
    v_add_f32 v44, v44, v46
    v_add_f32 v45, v45, v47
    s_nop 1
    v_permlane16_swap_b32 v44, v45
    v_add_f32 v44, v44, v45
    v_cvt_pk_bf16_f32 v44, v44, v44
    ds_write_b16 v142, v44
    s_waitcnt lgkmcnt(0)
    ds_read_b128 v[112:115], v143
    ds_read_b128 v[116:119], v143 offset:64
    """)
    for ks in range(2):
        e(f"s_waitcnt lgkmcnt({1-ks})")
        for tt in range(4):
            c = "0" if ks == 0 else f"v[{120+4*tt}:{123+4*tt}]"
            r = 80 + 8 * tt + 4 * ks
            e(f"v_mfma_f32_16x16x32_bf16 v[{120+4*tt}:{123+4*tt}], v[{r}:{r+3}], v[{112+4*ks}:{115+4*ks}], {c}")
    e("s_mov_b32 exec_lo, 0x00010001\ns_mov_b32 exec_hi, 0x00010001")
    e.nop(3)
    for tt in range(4):
        e(f"ds_write_b128 v253, v[{120+4*tt}:{123+4*tt}] offset:{64*tt}")
    e(f"""
    s_mov_b64 exec, -1
    s_waitcnt lgkmcnt(0)
    s_barrier
    s_cmp_eq_u32 s{S_W}, 7
    s_cbranch_scc0 L_s6_w
    s_mov_b64 exec, 0xffffffff
    """)
    for w in range(8):
        e(f"ds_read_b64 v[{40+2*w}:{41+2*w}], v254 offset:{256*w}")
    e(f"""
    s_mov_b32 s66, 0xfffefffe
    s_waitcnt lgkmcnt(0)
    v_pk_add_f32 v[40:41], v[40:41], v[42:43]
    v_pk_add_f32 v[44:45], v[44:45], v[46:47]
    v_pk_add_f32 v[48:49], v[48:49], v[50:51]
    v_pk_add_f32 v[52:53], v[52:53], v[54:55]
    v_pk_add_f32 v[40:41], v[40:41], v[44:45]
    v_pk_add_f32 v[48:49], v[48:49], v[52:53]
    v_pk_add_f32 v[40:41], v[40:41], v[48:49]
    v_cvt_pk_bf16_f32 v56, v40, v41
    v_lshrrev_b32 v57, 1, v56
    v_and_b32 v57, 0x00010001, v57
    v_add_u32 v56, v56, v57
    v_and_or_b32 v56, v56, s66, v136
    global_store_dword v255, v56, {WS} sc1
    s_mov_b64 exec, -1
    """)
    stamp(11)
    e("s_branch L_S7")
    e.label("L_s6_w")
    if cfg.f5sleep: e(f"s_sleep {cfg.f5sleep}")
    e("s_branch L_S7")

    e.label("L_B1")
    e(f"s_mov_b32 s{S_ISB}, 1")
    stamp(1)
    e(f"""
    s_lshr_b32 s3, s{S_I}, 2
    s_lshl_b32 s3, s3, 3
    s_add_u32 s3, s3, s{S_W}
    s_lshl_b32 s3, s3, 10
    s_add_u32 s3, s3, {WS_QA}
    v_lshl_add_u32 v5, v1, 4, s3
    s_mul_i32 s3, s{S_W}, {QAS_STRIDE}
    s_add_u32 s3, s3, {L_QAS}
    v_lshl_add_u32 v6, v1, 4, s3
    """)
    tr_common()
    e(f"s_cmp_lt_u32 s{S_W}, 4\ns_cbranch_scc0 L_bp_prep")
    def h2_poll(sfx):
        msk = "s66" if sfx == "q" else "s67"
        if cfg.h2init:
            e(f"s_sleep {cfg.h2init}")
        else:
            e("s_waitcnt vmcnt(0)\ns_branch L_h2_chk" + sfx)
        e.label("L_h2" + sfx)
        e(f"""
        global_load_dwordx4 v[40:43], v5, {WS} sc1
        s_waitcnt vmcnt(0)
        """)
        e.label("L_h2_chk" + sfx)
        for i in range(4):
            e(f"v_xor_b32 v{40+i}, v{40+i}, v{44+i}")
        e(f"v_or3_b32 v4, v40, v41, v42\nv_or_b32 v4, v4, v43\nv_and_b32 v4, {msk}, v4")
        poll_tail("L_h2" + sfx, "L_h2_done" + sfx, 4, cfg.h2sleep)
        stamp(5)
        e(f"""
        ds_write_b128 v6, v[40:43]
        s_waitcnt lgkmcnt(0)
        s_barrier
        """)
    e(f"""
    s_lshl_b32 s3, s{S_W}, 5
    v_add_u32 v12, s3, v3
    v_lshlrev_b32 v12, 10, v12
    v_and_b32 v13, 7, v1
    v_lshlrev_b32 v13, 1, v13
    v_xor_b32 v13, v13, v2
    v_lshl_add_u32 v8, v13, 4, v12
    v_xor_b32 v9, 64, v8
    v_xor_b32 v10, 128, v8
    v_xor_b32 v11, 192, v8
    v_and_b32 v216, 7, v3
    v_lshlrev_b32 v217, 4, v216
    v_mul_u32_u24 v216, {QAS_STRIDE}, v216
    v_lshl_add_u32 v216, v2, 4, v216
    v_add_u32 v216, {L_QAS}, v216
    v_add_u32 v217, {L_MX}, v217
    s_lshl_b32 s3, s{S_W}, 2
    v_add_u32 v218, s3, v217
    s_lshl_b32 s3, s{S_W}, 10
    s_add_u32 s3, s3, {L_PEX}
    v_lshl_add_u32 v219, v1, 4, s3
    v_and_b32 v220, 1, v2
    v_lshl_add_u32 v220, v220, 2, v62
    v_lshlrev_b32 v220, 1, v220
    s_lshl_b32 s3, s{S_W}, 2
    v_add_u32 v12, s3, v63
    v_xor_b32 v220, v220, v12
    v_lshl_add_u32 v220, v220, 4, v59
    v_lshl_add_u32 v12, v2, 3, v62
    v_lshl_add_u32 v220, v12, 8, v220
    v_xor_b32 v221, 32, v220
    s_lshl_b32 s3, s{S_H}, 10
    s_lshl_b32 s65, s{S_J}, 8
    s_add_u32 s3, s3, s65
    s_lshl_b32 s64, s{S_W}, 6
    s_add_u32 s3, s3, s64
    s_add_u32 s65, s3, {WS_PART}
    s_lshl_b32 s64, s{S_W}, 7
    v_lshrrev_b32 v12, 2, v1
    v_and_b32 v13, 3, v1
    v_lshlrev_b32 v222, 15, v12
    v_lshl_add_u32 v222, v13, 4, v222
    v_add_u32 v222, s65, v222
    s_lshl_b32 s3, s{S_H}, 7
    s_add_u32 s3, s3, {WS_ST}
    v_lshlrev_b32 v48, 12, v12
    v_lshl_add_u32 v48, v13, 4, v48
    v_add_u32 v48, s3, v48
    v_and_b32 v223, 1, v2
    v_lshlrev_b32 v223, 4, v223
    v_lshrrev_b32 v12, 1, v2
    v_lshl_add_u32 v223, v12, 1, v223
    v_lshl_add_u32 v223, v13, 2, v223
    s_lshl_b32 s3, s{S_W}, 5
    v_add_u32 v223, s3, v223
    v_lshlrev_b32 v223, 1, v223
    v_add_u32 v223, {L_CTXS}, v223
    v_lshlrev_b32 v49, 4, v2
    v_add_u32 v49, {L_CTXS}, v49
    s_lshl_b32 s3, s{S_H}, 2
    s_add_u32 s3, s3, s{S_J}
    s_lshl_b32 s3, s3, 9
    s_add_u32 s3, s3, s64
    s_add_u32 s3, s3, {WS_CTX}
    v_and_b32 v50, 1, v1
    v_lshlrev_b32 v50, 6, v50
    v_lshl_add_u32 v50, v2, 4, v50
    v_add_u32 v50, s3, v50
    v_add_u32 v51, {WS_CTXF-WS_CTX}, v50
    s_waitcnt lgkmcnt(0)
    """)
    mk_tag()
    e("v_and_b32 v16, 3, v1\ns_mov_b32 s66, 0x00010001")
    tagpat(44, 16, 12)
    e(f"s_waitcnt vmcnt(0)" + ("" if cfg.h2init else f"\nglobal_load_dwordx4 v[40:43], v5, {WS} sc1"))
    e("s_barrier")
    stamp(14)
    for t in range(2):
        for j in range(16):
            e(f"ds_read_b128 v[{64+64*t+4*j}:{67+64*t+4*j}], v{8+(j&3)} offset:{256*(j>>2)+16384*t}")
    h2_poll("q")
    def qb(j):
        if j < 6: return 192 + 4 * j
        if j < 13: return 12 + 4 * (j - 6)
        if j < 15: return 40 + 4 * (j - 13)
        return 52
    stamp(4)
    if cfg.prio: e("s_setprio 2")
    for j in range(16):
        e(f"ds_read_b128 v[{qb(j)}:{qb(j)+3}], v216 offset:{64*j}")
    for j in range(16):
        if j % 2 == 0: e(f"s_waitcnt lgkmcnt({max(0, 14-j)})")
        for t in range(2):
            acc = f"v[{56+4*t}:{59+4*t}]"
            c = "0" if j == 0 else acc
            e(f"v_mfma_f32_16x16x32_bf16 {acc}, v[{64+64*t+4*j}:{67+64*t+4*j}], v[{qb(j)}:{qb(j)+3}], {c}")
    e.nop(7)
    stamp(10)
    e("""
    v_max3_f32 v12, v56, v57, v58
    s_nop 0
    v_max3_f32 v13, v60, v61, v62
    v_max3_f32 v12, v59, v63, v12
    v_max_f32 v12, v12, v13
    v_mov_b32 v13, v12
    """)
    e.nop(2)
    e("v_permlane16_swap_b32 v12, v13")
    e("v_max_f32 v12, v12, v13\nv_mov_b32 v13, v12")
    e.nop(2)
    e("v_permlane32_swap_b32 v12, v13")
    e("""
    v_max_f32 v12, v12, v13
    s_mov_b64 exec, 0xff
    ds_write_b32 v218, v12
    s_mov_b64 exec, -1
    s_waitcnt lgkmcnt(0)
    s_barrier
    """)
    stamp(11)
    e("""
    ds_read_b128 v[16:19], v217
    s_waitcnt lgkmcnt(0)
    v_max3_f32 v12, v16, v17, v18
    v_max_f32 v12, v12, v19
    """)
    for r in range(8): e(f"v_sub_f32 v{56+r}, v{56+r}, v12")
    for r in range(8): e(f"v_exp_f32 v{56+r}, v{56+r}")
    e("s_nop 0")
    for r in range(4): e(f"v_cvt_pk_bf16_f32 v{16+r}, v{56+2*r}, v{57+2*r}")
    e(f"""
    ds_write_b128 v219, v[16:19]
    s_cmp_eq_u32 s{S_W}, 0
    s_cbranch_scc0 L_bq_nom
    s_mov_b64 exec, 0xff
    ds_write_b32 v218, v12 offset:128
    s_mov_b64 exec, -1
    """)
    e.label("L_bq_nom")
    e("s_waitcnt lgkmcnt(0)\ns_barrier")
    stamp(6)
    e(f"""
    v_mov_b32 v105, s{S_TAG}
    v_mov_b32 v107, s{S_TAG}
    v_add_u32 v192, 0x80000, v222
    v_add_u32 v195, 0x10000, v48
    v_and_b32 v196, 3, v1
    s_mov_b32 s66, 0x00010001
    s_mov_b32 s67, {F32(LSB_DEBIAS)}
    s_mov_b32 s64, 0xaaaaaaaa
    s_mov_b32 s65, 0xaaaaaaaa
    """)
    e("s_barrier")
    for t in range(2):
        for ks in range(4):
            r = 128 + 16 * t + 4 * ks
            e(f"ds_read_b64_tr_b16 v[{r}:{r+1}], v{220+t} offset:{8192*ks}")
            e(f"ds_read_b64_tr_b16 v[{r+2}:{r+3}], v{220+t} offset:{8192*ks+1024}")
    tagpat(198, 196, 202)
    if cfg.h3sleep: e(f"s_sleep {cfg.h3sleep}")
    stamp(2)
    def datachk():
        for i in range(8):
            e(f"v_xor_b32 v{80+i}, v{80+i}, v{198+(i&3)}")
        e("v_or3_b32 v4, v80, v81, v82\nv_or3_b32 v5, v83, v84, v85\nv_or3_b32 v4, v86, v87, v4\nv_or_b32 v4, v4, v5\nv_and_b32 v4, s66, v4")
    e.label("L_h3")
    e(f"""
    global_load_dwordx4 v[64:67], v48, {WS} sc1
    global_load_dwordx4 v[68:71], v195, {WS} sc1
    global_load_dwordx4 v[80:83], v222, {WS} sc1
    global_load_dwordx4 v[84:87], v192, {WS} sc1
    s_waitcnt vmcnt(2)
    """)
    tagchk(4, [65, 67, 69, 71])
    e("v_cmp_ne_u32 vcc, 0, v4\ns_cbranch_vccz L_h3_st\ns_waitcnt vmcnt(0)")
    if cfg.h3psleep: e(f"s_sleep {cfg.h3psleep}")
    spin_back("L_h3")
    e.label("L_h3_st")
    stamp(3)
    e("""
    v_max_f32 v4, v64, v68
    s_nop 1
    v_max_f32_dpp v4, v4, v4 row_ror:4 row_mask:0xf bank_mask:0xf
    s_nop 1
    v_max_f32_dpp v4, v4, v4 row_ror:8 row_mask:0xf bank_mask:0xf
    s_nop 0
    v_mov_b32 v5, v4
    s_nop 1
    v_permlane16_swap_b32 v4, v5
    v_max_f32 v4, v4, v5
    v_mov_b32 v5, v4
    s_nop 1
    v_permlane32_swap_b32 v4, v5
    v_max_f32 v4, v4, v5
    v_sub_f32 v64, v64, v4
    v_sub_f32 v68, v68, v4
    v_exp_f32 v64, v64
    v_exp_f32 v68, v68
    s_nop 0
    v_mul_f32 v28, v64, v66
    v_fmac_f32 v28, v68, v70
    s_nop 1
    v_add_f32_dpp v28, v28, v28 row_ror:4 row_mask:0xf bank_mask:0xf
    s_nop 1
    v_add_f32_dpp v28, v28, v28 row_ror:8 row_mask:0xf bank_mask:0xf
    s_nop 0
    v_mov_b32 v29, v28
    s_nop 1
    v_permlane16_swap_b32 v28, v29
    v_add_f32 v28, v28, v29
    v_mov_b32 v29, v28
    s_nop 1
    v_permlane32_swap_b32 v28, v29
    v_add_f32 v28, v28, v29
    v_rcp_f32 v28, v28
    v_mul_f32 v64, s67, v64
    v_mul_f32 v68, s67, v68
    v_mul_f32 v64, v64, v28
    v_mul_f32 v68, v68, v28
    s_waitcnt vmcnt(0)
    s_branch L_h3_dchk
    """)
    e.label("L_h3d")
    e(f"""
    global_load_dwordx4 v[80:83], v222, {WS} sc1
    global_load_dwordx4 v[84:87], v192, {WS} sc1
    s_waitcnt vmcnt(0)
    """)
    e.label("L_h3_dchk")
    datachk()
    poll_tail("L_h3d", "L_h3_done", 4)
    stamp(8)
    for i in range(4):
        e(f"v_lshlrev_b32 v{12+2*i}, 16, v{80+i}\nv_and_b32 v{13+2*i}, 0xffff0000, v{80+i}")
    for i in range(4):
        e(f"v_lshlrev_b32 v{20+2*i}, 16, v{84+i}\nv_and_b32 v{21+2*i}, 0xffff0000, v{84+i}")
        e(f"v_pk_mul_f32 v[{12+2*i}:{13+2*i}], v[{12+2*i}:{13+2*i}], v[64:65] op_sel_hi:[1,0]")
    for i in range(4):
        e(f"v_pk_fma_f32 v[{12+2*i}:{13+2*i}], v[{20+2*i}:{21+2*i}], v[68:69], v[{12+2*i}:{13+2*i}] op_sel_hi:[1,0,1]")
    for st in ("row_ror:4", "row_ror:8"):
        for r in range(12, 20):
            e(f"v_add_f32_dpp v{r}, v{r}, v{r} {st} row_mask:0xf bank_mask:0xf")
    for i in range(4):
        e(f"v_permlane16_swap_b32 v{12+i}, v{16+i}")
    for i in range(4):
        e(f"v_add_f32 v{12+i}, v{12+i}, v{16+i}")
    e("""
    s_nop 0
    v_permlane32_swap_b32 v12, v14
    v_permlane32_swap_b32 v13, v15
    s_mov_b32 exec_lo, 0x000f000f
    s_mov_b32 exec_hi, 0x000f000f
    v_add_f32 v12, v12, v14
    v_add_f32 v13, v13, v15
    v_cvt_pk_bf16_f32 v12, v12, v13
    ds_write_b32 v223, v12
    s_mov_b64 exec, -1
    s_waitcnt lgkmcnt(0)
    s_barrier
    """)
    for ks in range(4):
        e(f"ds_read_b128 v[{112+4*ks}:{115+4*ks}], v49 offset:{64*ks}")
    for ks in range(4):
        e(f"s_waitcnt lgkmcnt({3-ks})")
        for t in range(2):
            acc = f"v[{96+4*t}:{99+4*t}]"
            c = "0" if ks == 0 else acc
            r = 128 + 16 * t + 4 * ks
            e(f"v_mfma_f32_16x16x32_bf16 {acc}, v[{r}:{r+3}], v[{112+4*ks}:{115+4*ks}], {c}")
    e("s_mov_b32 exec_lo, 0x00030003\ns_mov_b32 exec_hi, 0x00030003")
    e.nop(6)
    for r in range(4):
        e(f"v_cndmask_b32 v{96+r}, v{96+r}, v{100+r}, s[64:65]")
    e("""
    v_cvt_pk_bf16_f32 v104, v96, v97
    v_cvt_pk_bf16_f32 v106, v98, v99
    """)
    if cfg.fast4 or cfg.xfast: e(f"global_store_dwordx4 v51, v[104:107], {WS}")
    e(f"global_store_dwordx4 v50, v[104:107], {WS} sc1\ns_mov_b64 exec, -1")
    stamp(9)
    e("s_branch L_b_tail")
    e.label("L_bp_prep")
    e(f"""
    v_lshl_add_u32 v58, v2, 2, v62
    v_and_b32 v13, 7, v58
    v_lshlrev_b32 v13, 1, v13
    v_lshlrev_b32 v58, 10, v58
    v_add_u32 v58, v58, v59
    s_and_b32 s66, s{S_W}, 3
    s_lshl_b32 s3, s66, 4
    v_add_u32 v12, s3, v63
    v_xor_b32 v12, v12, v13
    v_lshl_add_u32 v8, v12, 4, v58
    """)
    for tt in range(1, 8):
        e(f"v_xor_b32 v{8+tt}, {32*tt}, v8")
    e(f"""
    v_lshlrev_b32 v16, 4, v1
    v_add_u32 v16, {L_PEX}, v16
    s_mov_b32 s{SRD_A}, s{P_WUV}
    s_mov_b32 s{SRD_A+1}, s{P_WUV+1}
    s_mov_b32 s{SRD_A+2}, 4194304
    s_mov_b32 s{SRD_A+3}, 0x20000
    s_lshl_b32 s3, s{S_W}, 2
    s_and_b32 s3, s3, 8
    v_lshlrev_b32 v19, 1, v2
    v_xor_b32 v19, v19, v3
    v_xor_b32 v19, s3, v19
    v_lshlrev_b32 v19, 4, v19
    v_lshl_add_u32 v19, v2, 13, v19
    s_lshl_b32 s20, s{S_J}, 5
    s_add_u32 s20, s20, s66
    s_lshl_b32 s20, s20, 15
    s_lshl_b32 s21, s{S_H}, 8
    s_add_u32 s20, s20, s21
    s_lshl_b32 s21, s66, 10
    v_lshl_add_u32 v56, v1, 4, s21
    s_lshl_b32 s3, s{S_CH}, 15
    s_lshr_b32 s64, s{S_I}, 2
    s_lshl_b32 s65, s64, 13
    s_add_u32 s3, s3, s65
    s_lshl_b32 s65, s66, 8
    s_add_u32 s3, s3, s65
    s_add_u32 s3, s3, {WS_PART}
    v_and_b32 v17, 7, v3
    v_lshlrev_b32 v17, 10, v17
    v_lshl_add_u32 v17, v2, 4, v17
    v_lshrrev_b32 v20, 3, v3
    v_lshl_add_u32 v17, v20, 6, v17
    v_add_u32 v17, s3, v17
    s_lshl_b32 s64, s64, 10
    s_lshl_b32 s65, s{S_CH}, 12
    s_add_u32 s64, s64, s65
    s_add_u32 s64, s64, {WS_ST}
    v_lshrrev_b32 v18, 2, v1
    v_lshlrev_b32 v18, 7, v18
    v_and_b32 v20, 3, v1
    v_lshl_add_u32 v18, v20, 4, v18
    v_add_u32 v18, s64, v18
    v_mov_b32 v36, 0x3f803f80
    v_mov_b32 v37, 0x3f803f80
    v_mov_b32 v38, 0x3f803f80
    v_mov_b32 v39, 0x3f803f80
    s_waitcnt lgkmcnt(0)
    """)
    mk_tag()
    e("v_and_b32 v50, 3, v1\ns_mov_b32 s67, 0x00010001")
    tagpat(44, 50, 48)
    e(f"v_mov_b32 v53, s{S_TAG}\nv_mov_b32 v55, s{S_TAG}")
    tagpat(57, 2, 61)
    e(f"s_waitcnt vmcnt(0)" + ("" if cfg.h2init else f"\nglobal_load_dwordx4 v[40:43], v5, {WS} sc1"))
    e("s_barrier")
    stamp(14)
    if cfg.xfast:
        e(f"""
        s_cmp_eq_u32 s{S_W}, 7
        s_cbranch_scc0 L_noxid
        s_getreg_b32 s3, hwreg(HW_REG_XCC_ID, 0, 4)
        v_mov_b32 v224, s3
        v_mov_b32 v225, s{S_TAG}
        v_mov_b32 v226, s3
        v_mov_b32 v227, s{S_TAG}
        s_and_b32 s3, s2, 127
        s_lshl_b32 s3, s3, 7
        s_add_u32 s3, s3, {WS_XID}
        v_lshl_add_u32 v228, v1, 4, s3
        s_mov_b64 exec, 0xf
        global_store_dwordx4 v228, v[224:227], {WS} sc1
        s_mov_b64 exec, -1
        """)
        e.label("L_noxid")
    for half in range(2):
        for tt in range(8):
            for k2 in range(2):
                ks = 2 * half + k2
                for eb in range(2):
                    r = 64 + 16 * tt + 4 * ks + 2 * eb
                    e(f"ds_read_b64_tr_b16 v[{r}:{r+1}], v{8+tt} offset:{32768*k2+16384*eb}")
        if half == 0:
            for tt in range(8):
                e(f"v_add_u32 v{8+tt}, 0x10000, v{8+tt}")
    h2_poll("p")
    for ii in range(8):
        e(f"""
        s_mov_b32 m0, s21
        s_add_u32 s21, s21, 4096
        buffer_load_dwordx4 v19, s[{SRD_A}:{SRD_A+3}], s20 offen{NT} lds
        s_add_u32 s20, s20, {4*4*8192}
        """)
    e("s_barrier\ns_barrier")
    for ks in range(4):
        e(f"ds_read_b128 v[{20+4*ks}:{23+4*ks}], v16 offset:{1024*ks}")
    e(f"""
    v_bfe_u32 v5, v1, 2, 3
    v_lshlrev_b32 v4, 4, v5
    v_add_u32 v4, {L_MX+128}, v4
    v_lshlrev_b32 v5, 2, v5
    s_mov_b32 s64, 0xff00ff00
    s_mov_b32 s65, 0xff00ff00
    """)
    stamp(6)
    for pr in range(4):
        e(f"v_mov_b32 v{37+0}, v{37}") if False else None
    def epi(sg):
        g = 64 + 64 * sg
        out = []
        for t in range(4):
            a0 = 192 + 16 * sg + 4 * t
            out.append(f"v_cvt_pk_bf16_f32 v{44+2*t}, v{a0}, v{a0+1}")
            out.append(f"v_cvt_pk_bf16_f32 v{45+2*t}, v{a0+2}, v{a0+3}")
        for i in range(4):
            out.append(f"v_cndmask_b32 v{g+i}, v{44+i}, v{48+i}, s[64:65]")
        for i in range(4):
            out.append(f"v_and_or_b32 v{g+i}, v{g+i}, s66, v{57+i}")
        out.append(f"global_store_dwordx4 v17, v[{g}:{g+3}], {WS} offset:{128*sg} sc1")
        return out
    e("s_mov_b32 s66, 0xfffefffe")
    if cfg.prio: e("s_setprio 3")
    ep0 = epi(0)
    for sg in range(2):
        k = 0
        for ks in range(4):
            for t in range(4):
                tt = 4 * sg + t
                acc = f"v[{192+4*tt}:{195+4*tt}]"
                c = "0" if ks == 0 else acc
                r = 64 + 16 * tt + 4 * ks
                if sg == 0 and t == 0: e(f"s_waitcnt lgkmcnt({3-ks})")
                e(f"v_mfma_f32_16x16x32_bf16 {acc}, v[{r}:{r+3}], v[{20+4*ks}:{23+4*ks}], {c}")
                k += 1
                if sg == 1 and k >= 8:
                    for _ in range(2):
                        if ep0: e(ep0.pop(0))
        if sg == 1:
            while ep0: e(ep0.pop(0))
    e(f"s_cmp_eq_u32 s{S_W}, 4\ns_cbranch_scc0 L_b_nol")
    e("ds_read_b32 v52, v4")
    for ks in range(4):
        c = "0" if ks == 0 else "v[40:43]"
        e(f"v_mfma_f32_16x16x32_bf16 v[40:43], v[36:39], v[{20+4*ks}:{23+4*ks}], {c}")
    e.label("L_b_nol")
    e.nop(6)
    for ins in epi(1): e(ins)
    e(f"""
    s_cmp_eq_u32 s{S_W}, 4
    s_cbranch_scc0 L_b_nostat
    ds_bpermute_b32 v54, v5, v40
    s_mov_b64 exec, 0xffffffff
    s_waitcnt lgkmcnt(0)
    global_store_dwordx4 v18, v[52:55], {WS} sc1
    s_mov_b64 exec, -1
    """)
    stamp(7)
    e("s_waitcnt vmcnt(3)\ns_branch L_b_st2")
    e.label("L_b_nostat")
    stamp(7)
    e("s_waitcnt vmcnt(2)")
    e.label("L_b_st2")
    e("s_barrier\ns_barrier")
    e.label("L_b_tail")
    e("s_barrier")
    s7_loads()
    e("s_waitcnt vmcnt(0)")
    s7_prep()
    if cfg.b5sleep: e(f"s_sleep {cfg.b5sleep}")

    e.label("L_S7")
    if cfg.s7warm:
        e("s_mov_b32 s7, 0")
    e(f"s_cmp_lt_u32 s{S_W}, 5\ns_cbranch_scc0 L_s7_bar")
    e("s_mov_b32 s66, 0x00010001")
    e.label("L_h5")
    e(f"""
    global_load_dwordx4 v[40:43], v244, {WS} sc1
    global_load_dwordx4 v[44:47], v245, {WS} sc1
    s_waitcnt vmcnt(0)
    """)
    for i in range(8):
        e(f"v_xor_b32 v{40+i}, v{40+i}, v{10+(i&3)}")
    e("v_or3_b32 v56, v40, v41, v42\nv_or3_b32 v57, v43, v44, v45\nv_or3_b32 v56, v46, v47, v56\nv_or_b32 v56, v56, v57\nv_and_b32 v56, s66, v56")
    poll_tail("L_h5", "L_h5_done", 56, cfg.h5sleep)
    stamp(12)
    if cfg.earlyepoch:
        e(f"""
        s_or_b32 s3, s2, s{S_W}
        s_cmp_eq_u32 s3, 0
        s_cbranch_scc0 L_h5_noep
        v_lshlrev_b32 v48, 2, v1
        v_mov_b32 v49, s{S_TAG}
        s_mov_b64 exec, 0xffff
        global_store_dword v48, v49, {WS} sc1
        s_mov_b64 exec, -1
        """)
        e.label("L_h5_noep")
    for i in range(4):
        e(f"v_lshlrev_b32 v{80+2*i}, 16, v{40+i}\nv_and_b32 v{81+2*i}, 0xffff0000, v{40+i}")
    for i in range(4):
        e(f"v_lshlrev_b32 v{88+2*i}, 16, v{44+i}\nv_and_b32 v{89+2*i}, 0xffff0000, v{44+i}")
        e(f"v_pk_add_f32 v[{80+2*i}:{81+2*i}], v[{80+2*i}:{81+2*i}], v[{88+2*i}:{89+2*i}]")
    e("s_nop 0")
    for i in range(4): e(f"v_permlane16_swap_b32 v{80+i}, v{84+i}")
    for i in range(4): e(f"v_add_f32 v{80+i}, v{80+i}, v{84+i}")
    e(f"""
    s_nop 0
    v_permlane32_swap_b32 v80, v82
    v_permlane32_swap_b32 v81, v83
    v_add_f32 v50, v80, v82
    v_add_f32 v51, v81, v83
    v_pk_add_f32 v[50:51], v[50:51], v[58:59]
    ds_write_b64 v248, v[50:51]
    v_add_f32 v52, v50, v51
    v_mul_f32 v53, v50, v50
    v_fmac_f32 v53, v51, v51
    """)
    dpp_reduce([52, 53])
    e(f"""
    s_mov_b32 exec_lo, 0
    s_mov_b32 exec_hi, 0x80000000
    ds_write_b64 v68, v[52:53]
    s_mov_b64 exec, -1
    """)
    e.label("L_s7_bar")
    e(f"""
    s_waitcnt lgkmcnt(0)
    s_barrier
    """)
    if cfg.s7stamps: stamp(1)
    e(f"""
    s_cmp_lt_u32 s2, {216 if cfg.outmap else 214}
    s_cbranch_scc0 L_fin
    """)
    e.label("L_s7_body")
    e(f"""
    ds_read_b128 v[40:43], v62
    ds_read_b128 v[44:47], v62 offset:16
    ds_read_b64 v[48:49], v62 offset:32
    ds_read_b32 v50, v63
    ds_read_b32 v52, v63 offset:4
    ds_read_b32 v54, v63 offset:8
    s_waitcnt lgkmcnt(3)
    v_pk_add_f32 v[40:41], v[40:41], v[42:43]
    v_pk_add_f32 v[44:45], v[44:45], v[46:47]
    v_pk_add_f32 v[40:41], v[40:41], v[48:49]
    v_pk_add_f32 v[40:41], v[40:41], v[44:45]
    v_pk_mul_f32 v[40:41], v[40:41], v[60:61] op_sel_hi:[1,0]
    v_fma_f32 v41, -v40, v40, v41
    v_max_f32 v41, 0, v41
    v_fma_f32 v42, v41, v61, v65
    s_waitcnt lgkmcnt(0)
    v_rsq_f32 v42, v42
    v_sub_f32 v70, v50, v40
    v_sub_f32 v72, v52, v40
    v_sub_f32 v74, v54, v40
    v_mul_f32 v70, v70, v42
    v_mul_f32 v72, v72, v42
    v_mul_f32 v74, v74, v42
    """)
    if cfg.s7stamps: stamp(2)
    combos = [(r, o) for o in range(3) for r in range(2)]
    for c, (r, o) in enumerate(combos):
        e(f"v_pk_fma_f32 v[{80+2*c}:{81+2*c}], v[{70+2*o}:{71+2*o}], v[{232+2*r}:{233+2*r}], v[{236+2*r}:{237+2*r}] op_sel_hi:[0,1,1]")
    for c in range(6):
        e(f"v_pk_mul_f32 v[{92+2*c}:{93+2*c}], v[{80+2*c}:{81+2*c}], v[{80+2*c}:{81+2*c}]")
    for c in range(6):
        e(f"v_pk_fma_f32 v[{92+2*c}:{93+2*c}], v[{92+2*c}:{93+2*c}], v[66:67], v[64:65] op_sel_hi:[1,0,0]")
    for c in range(6):
        e(f"v_pk_mul_f32 v[{92+2*c}:{93+2*c}], v[{92+2*c}:{93+2*c}], v[{80+2*c}:{81+2*c}]")
    for c in range(12):
        e(f"v_exp_f32 v{92+c}, v{92+c}")
    for c in range(6):
        e(f"v_pk_add_f32 v[{92+2*c}:{93+2*c}], v[{92+2*c}:{93+2*c}], 1.0 op_sel_hi:[1,0]")
    for c in range(12):
        e(f"v_rcp_f32 v{92+c}, v{92+c}")
    for c in range(6):
        e(f"v_pk_mul_f32 v[{80+2*c}:{81+2*c}], v[{80+2*c}:{81+2*c}], v[{92+2*c}:{93+2*c}]")
    for o in range(3):
        e(f"v_pk_mul_f32 v[{104+2*o}:{105+2*o}], v[{80+4*o}:{81+4*o}], v[240:241]")
    for o in range(3):
        e(f"v_pk_fma_f32 v[{104+2*o}:{105+2*o}], v[{82+4*o}:{83+4*o}], v[242:243], v[{104+2*o}:{105+2*o}]")
    if cfg.s7stamps: stamp(3)
    e("v_add_f32 v110, v104, v105\nv_add_f32 v111, v106, v107\nv_add_f32 v112, v108, v109")
    dpp_reduce([110, 111, 112])
    e(f"""
    s_mov_b32 exec_lo, 0
    s_mov_b32 exec_hi, 0x80000000
    ds_write_b128 v69, v[110:113]
    s_mov_b64 exec, -1
    """)
    if cfg.s7warm:
        e("s_cmp_eq_u32 s7, 1\ns_cbranch_scc1 L_s7_warm_ret")
    e(f"""
    {"s_mul_i32 s3, s5, 80" if cfg.outmap else "s_mov_b32 s3, 560"}
    s_add_u32 s3, s3, 80
    v_cmp_gt_u32 vcc, s3, v8
    v_lshlrev_b32 v8, 1, v8
    s_waitcnt lgkmcnt(0)
    s_barrier
    """)
    if cfg.s7stamps: stamp(4)
    e(f"""
    s_cmp_eq_u32 s{S_W}, 0
    s_cbranch_scc0 L_fin
    s_and_b64 vcc, vcc, 7
    s_and_saveexec_b64 s[64:65], vcc
    s_cbranch_execz L_fin0
    """)
    for w in range(8):
        e(f"ds_read_b32 v{40+w}, v6 offset:{16*w}")
    e(f"""
    ds_read_b32 v48, v7
    s_waitcnt lgkmcnt(0)
    v_add_f32 v40, v40, v41
    v_add_f32 v42, v42, v43
    v_add_f32 v44, v44, v45
    v_add_f32 v46, v46, v47
    v_add_f32 v48, v48, v9
    v_add_f32 v40, v40, v42
    v_add_f32 v44, v44, v46
    v_add_f32 v40, v40, v48
    v_add_f32 v40, v40, v44
    v_cvt_pk_bf16_f32 v40, v40, v40
    global_store_short v8, v40, s[{P_OUT}:{P_OUT+1}]
    """)
    e.label("L_fin0")
    e("s_mov_b64 exec, s[64:65]")
    e.label("L_fin")
    stamp(13)
    e(f"""
    s_cmp_eq_u32 s2, {0 if not (cfg.noepoch or cfg.earlyepoch) else 100000}
    s_cbranch_scc0 L_noepoch
    s_cmp_eq_u32 s{S_W}, 0
    s_cbranch_scc0 L_noepoch
    v_lshlrev_b32 v6, 2, v1
    v_mov_b32 v7, s{S_TAG}
    s_mov_b64 exec, 0xffff
    global_store_dword v6, v7, {WS} sc1
    s_mov_b64 exec, -1
    """)
    e.label("L_noepoch")
    if cfg.stamps:
        e(f"""
        s_waitcnt lgkmcnt(0)
        s_lshl_b32 s3, s2, 3
        s_add_u32 s3, s3, s{S_W}
        s_lshl_b32 s3, s3, 6
        s_add_u32 s3, s3, {WS_DBG}
        v_mov_b32 v6, s3
        s_mov_b64 exec, 1
        """)
        for q in range(4):
            for k in range(4):
                e(f"v_mov_b32 v{8+k}, s{S_STAMP+2*min(4*q+k,14)}")
            e(f"global_store_dwordx4 v6, v[8:11], {WS} offset:{16*q}")
            e.nop(2)
        e("s_mov_b64 exec, -1")
    e.label("L_exit")
    e("s_endpgm")
    if cfg.s7warm:
        e.label("L_s7_warm_ret")
        e("s_waitcnt lgkmcnt(0)\ns_setpc_b64 s[68:69]")
    e.label("L_fail")
    if cfg.stamps: e("s_mov_b64 exec, -1\ns_branch L_noepoch")
    e("s_endpgm")
    e.label("L_end")
    return e

def render(cfg):
    e = gen(cfg)
    body = e.text()
    hdr = open("cdna_kernels/" + NAME[:-7] + ".s.ref").read().split("; Override launch geometry")[0]
    out = hdr + f"; @launch grid=(256,1,1) block=(512,1,1) lds={LDS_BYTES}\n"
    out += f""".amdgcn_target "amdgcn-amd-amdhsa--gfx950"
.text
.globl {NAME}
.p2align 8
.type {NAME},@function
{NAME}:
{body}.section .rodata,"a"
.p2align 6
.amdhsa_kernel {NAME}
  .amdhsa_next_free_vgpr 256
  .amdhsa_next_free_sgpr 102
  .amdhsa_accum_offset 256
  .amdhsa_group_segment_fixed_size 0
  .amdhsa_kernarg_size 112
  .amdhsa_user_sgpr_count 2
  .amdhsa_user_sgpr_kernarg_segment_ptr 1
  .amdhsa_system_sgpr_workgroup_id_x 1
.end_amdhsa_kernel
"""
    return out, body

if __name__ == "__main__":
    cfg = Cfg()
    outp = sys.argv[1] if len(sys.argv) > 1 else "cdna_kernels/" + NAME[:-7] + ".s"
    for a in sys.argv[2:]:
        k, v = a.split("=")
        setattr(cfg, k, int(v))
    out, body = render(cfg)
    probs = check_hazards(body) + check_kernarg_race(body)
    for p in probs: print("HAZARD", p)
    open(outp, "w").write(out)
    print("wrote", outp, len(out), "bytes;", len(body.splitlines()), "lines")
```

```python
import sys, struct
from asmlib import Emit, check_hazards, check_kernarg_race

NAME = "sequential_preLN__compressed_kv_cla__mixer_token_mlp__decode_kernel"

WS_Q1, WS_Q1F, WS_QA, WS_CTX, WS_OP, WS_CTXF, WS_ST, WS_PART, WS_DBG = 0x10000, 0x20000, 0x50000, 0x60000, 0x70000, 0x90000, 0xC0000, 0x100000, 0x400000
WS_XID = 0x30000
L_CKV = 0
L_WO = 0
L_WQ = 32768
L_WUK = 73728
L_QAS = 131072
QAS_STRIDE = 1056
L_PEX = L_QAS + 8 * QAS_STRIDE
L_MX = L_PEX + 4096
L_LNS = 143872
L_QP = 145152
QP_STRIDE = 288
L_CTXS = 146304
L_BNC = 146560
L_ORED = 147584
L_HS = 149632
L_ST7 = 152192
L_YRED = 152256
LDS_BYTES = 152384

S_W, S_X, S_I, S_ISB = 4, 5, 6, 7
P_X, P_CKV, P_WQ, P_WUK, P_WUV, P_WO, P_W1, P_B1, P_W2, P_B2, P_OUT, P_DBG, P_WS = 8, 10, 12, 14, 16, 18, 22, 24, 26, 28, 30, 32, 34
S_TAG, S_H, S_J, S_CH = 36, 37, 38, 39
SRD_0, SRD_A, SRD_WO, SRD_W1, SRD_B1, SRD_W2 = 40, 44, 48, 52, 56, 60
S_SPIN = 100
S_STAMP = 70

def F32(x): return "0x%08x" % struct.unpack("<I", struct.pack("<f", x))[0]
WS = f"s[{P_WS}:{P_WS+1}]"

LSB_DEBIAS = 1.0 + 0.5 * 2.0**-7 * 0.7213475

class Cfg:
    stamps = 0
    nt = 1
    spin = 1 << 17
    h3sleep = 16
    fast1 = 0
    fast4 = 0
    codepf = 16
    bdelay = 0
    exp_nob = 0
    s7warm = 0
    ff1 = 10
    h2init = 0
    xfast = 1
    prio = 0
    ukdelay = 0
    touchslow = 0
    spreadk = 0
    spreadq = 0
    earlyepoch = 1
    tlbw = 0
    tlbo = 0
    tlbk = 0
    selftouch = 0
    lsb3 = 1
    ukearly = 0
    outmap = 1
    noepoch = 0
    s7stamps = 0
    touch = 0
    uknt = 1
    tsleep = 0
    planeorder = 1
    hperm = 0
    h3psleep = 0
    b5sleep = 44
    f5sleep = 16
    n5sleep = 44
    ckvnt = 0
    ukbar = 1
    bsleep = 8
    uvpf = 1
    h5sleep = 0
    h4sleep = 0
    h2sleep = 0
    exp_nowuv = 0

def gen(cfg):
    e = Emit()
    NT = " nt" if cfg.nt else ""
    def stamp(k):
        if cfg.stamps:
            e(f"s_memrealtime s[{S_STAMP+2*k}:{S_STAMP+2*k+1}]")
    def dpp_reduce(regs, op="v_add_f32"):
        steps = ["row_shr:1 row_mask:0xf bank_mask:0xf bound_ctrl:0", "row_shr:2 row_mask:0xf bank_mask:0xf bound_ctrl:0",
                 "row_shr:4 row_mask:0xf bank_mask:0xf bound_ctrl:0", "row_shr:8 row_mask:0xf bank_mask:0xf bound_ctrl:0",
                 "row_bcast:15 row_mask:0xa bank_mask:0xf", "row_bcast:31 row_mask:0xc bank_mask:0xf"]
        pad = max(0, 2 - (len(regs) - 1))
        e.nop(2)
        for k, st in enumerate(steps):
            for r in regs:
                e(f"{op}_dpp v{r}, v{r}, v{r} {st}")
            if k < len(steps) - 1 and pad: e.nop(pad)
    def tagchk(acc, tags):
        for k, t in enumerate(tags):
            if k == 0:
                e(f"v_xor_b32 v{acc}, s{S_TAG}, v{t}")
            else:
                e(f"v_bitop3_b32 v{acc}, v{acc}, v{t}, s{S_TAG} bitop3:0xf6")
    def spin_back(lbl_loop):
        e(f"s_sub_u32 s{S_SPIN}, s{S_SPIN}, 1")
        e(f"s_cbranch_scc0 {lbl_loop}")
        e("s_branch L_fail")
    def poll_tail(lbl_loop, lbl_done, acc, sleep=0):
        e(f"v_cmp_ne_u32 vcc, 0, v{acc}")
        e(f"s_cbranch_vccz {lbl_done}")
        if sleep: e(f"s_sleep {sleep}")
        spin_back(lbl_loop)
        e.label(lbl_done)
    def tr_common():
        e("""
        v_bfe_u32 v62, v1, 2, 2
        v_bfe_u32 v63, v1, 1, 1
        v_and_b32 v59, 1, v1
        v_lshlrev_b32 v59, 3, v59
        """)
    def tr256_addr(dst, tmp):
        e(f"""
        v_and_b32 v{dst}, 1, v2
        v_lshl_add_u32 v{dst}, v{dst}, 2, v62
        v_lshlrev_b32 v{dst}, 1, v{dst}
        s_lshl_b32 s3, s{S_W}, 1
        v_add_u32 v{tmp}, s3, v63
        v_xor_b32 v{dst}, v{dst}, v{tmp}
        v_lshl_add_u32 v{dst}, v{dst}, 4, v59
        v_lshl_add_u32 v{tmp}, v2, 3, v62
        v_lshl_add_u32 v{dst}, v{tmp}, 8, v{dst}
        """)
    def tagpat(dst, vsel, tmp):
        e(f"v_lshlrev_b32 v{tmp}, 3, v{vsel}")
        e(f"v_lshrrev_b32 v{tmp}, v{tmp}, s{S_TAG}") if False else e(f"v_mov_b32 v{tmp+1}, s{S_TAG}\nv_lshrrev_b32 v{tmp}, v{tmp}, v{tmp+1}")
        for i in range(4):
            e(f"v_bfe_u32 v{dst+i}, v{tmp}, {2*i}, 1")
            e(f"v_bfe_u32 v{tmp+1}, v{tmp}, {2*i+1}, 1")
            e(f"v_lshl_or_b32 v{dst+i}, v{tmp+1}, 16, v{dst+i}")
    def mk_tag():
        e(f"s_mul_i32 s{S_TAG}, s{S_TAG}, 1664525\ns_add_u32 s{S_TAG}, s{S_TAG}, 1013904223")
    def s7_loads():
        e(f"""
        s_mov_b32 s{SRD_W1}, s{P_W1}
        s_mov_b32 s{SRD_W1+1}, s{P_W1+1}
        s_mov_b32 s{SRD_W1+2}, 3456
        s_mov_b32 s{SRD_W1+3}, 0x20000
        s_mov_b32 s{SRD_B1}, s{P_B1}
        s_mov_b32 s{SRD_B1+1}, s{P_B1+1}
        s_mov_b32 s{SRD_B1+2}, 3456
        s_mov_b32 s{SRD_B1+3}, 0x20000
        s_mov_b32 s{SRD_W2}, s{P_W2}
        s_mov_b32 s{SRD_W2+1}, s{P_W2+1}
        s_mov_b32 s{SRD_W2+2}, 3456
        s_mov_b32 s{SRD_W2+3}, 0x20000
        s_lshl_b32 s3, s{S_W}, 8
        v_lshl_add_u32 v4, v1, 2, s3
        buffer_load_dword v224, v4, s[{SRD_W1}:{SRD_W1+3}], 0 offen
        buffer_load_dword v225, v4, s[{SRD_W1}:{SRD_W1+3}], 0 offen offset:2048
        buffer_load_dword v226, v4, s[{SRD_B1}:{SRD_B1+3}], 0 offen
        buffer_load_dword v227, v4, s[{SRD_B1}:{SRD_B1+3}], 0 offen offset:2048
        buffer_load_dword v228, v4, s[{SRD_W2}:{SRD_W2+3}], 0 offen
        buffer_load_dword v229, v4, s[{SRD_W2}:{SRD_W2+3}], 0 offen offset:2048
        v_mov_b32 v4, 0
        global_load_ushort v231, v4, s[{P_B2}:{P_B2+1}]
        {"global_load_dword v138, v4, s[%d:%d]" % (P_OUT, P_OUT+1) if cfg.tlbo else ""}
        s_min_u32 s3, s{S_W}, 4
        s_lshl_b32 s3, s3, 8
        v_lshlrev_b32 v4, 4, v3
        v_and_b32 v230, 1, v2
        v_lshl_add_u32 v4, v230, 3, v4
        v_lshrrev_b32 v230, 1, v2
        v_lshl_add_u32 v4, v230, 2, v4
        v_add_u32 v4, s3, v4
        global_load_dword v230, v4, s[{P_X}:{P_X+1}]
        """)
    OUTIDX = ("s_lshr_b32 s101, s2, 3\ns_mul_i32 s101, s101, 3\ns_mul_i32 s3, s5, 80\ns_add_u32 s101, s101, s3" if cfg.outmap else "s_mul_i32 s101, s2, 3")
    def s7_prep():
        for k, (raw, dst) in enumerate([(224, 232), (225, 234), (226, 236), (227, 238), (228, 240), (229, 242)]):
            e(f"v_lshlrev_b32 v{dst}, 16, v{raw}\nv_and_b32 v{dst+1}, 0xffff0000, v{raw}")
        e(f"""
        v_mul_u32_u24 v244, 1280, v2
        v_lshl_add_u32 v244, v3, 4, v244
        s_lshl_b32 s3, s{S_W}, 8
        s_add_u32 s64, s3, {WS_OP}
        v_add_u32 v244, s64, v244
        v_add_u32 v245, 5120, v244
        s_lshl_b32 s3, s{S_W}, 9
        s_add_u32 s3, s3, {L_HS}
        v_lshlrev_b32 v248, 5, v3
        v_and_b32 v57, 1, v2
        v_lshl_add_u32 v248, v57, 4, v248
        v_lshrrev_b32 v57, 1, v2
        v_lshl_add_u32 v248, v57, 3, v248
        v_add_u32 v248, s3, v248
        v_lshlrev_b32 v58, 16, v230
        v_and_b32 v59, 0xffff0000, v230
        v_mov_b32 v60, {F32(1.0/640)}
        v_mov_b32 v61, {F32(1.0 + 1e-5)}
        v_mov_b32 v65, {F32(1e-10)}
        v_mov_b32 v64, {F32(-2.0*0.7978845608028654*1.4426950408889634)}
        v_mov_b32 v66, {F32(-2.0*0.7978845608028654*1.4426950408889634*0.044715)}
        v_mov_b32 v62, {L_ST7}
        {OUTIDX}
        s_lshl_b32 s3, s101, 2
        s_add_u32 s3, s3, {L_HS}
        v_mov_b32 v63, s3
        s_lshl_b32 s3, s{S_W}, 3
        s_add_u32 s3, s3, {L_ST7}
        v_mov_b32 v68, s3
        s_lshl_b32 s3, s{S_W}, 4
        s_add_u32 s3, s3, {L_YRED}
        v_mov_b32 v69, s3
        v_mov_b32 v113, 0
        v_add_u32 v8, s101, v1
        v_lshlrev_b32 v6, 2, v1
        v_add_u32 v6, {L_YRED}, v6
        v_lshlrev_b32 v7, 2, v8
        v_add_u32 v7, {L_HS}, v7
        v_lshlrev_b32 v9, 16, v231
        """)
        e("v_and_b32 v57, 3, v1")
        tagpat(10, 57, 14)
        if cfg.s7warm:
            lbl = f"L_wret{len(e.lines)}"
            e(f"s_mov_b32 s7, 1\ns_getpc_b64 s[68:69]\ns_add_u32 s68, s68, 12\ns_addc_u32 s69, s69, 0\ns_branch L_s7_body")
            e(f"v_lshlrev_b32 v58, 16, v230\nv_and_b32 v59, 0xffff0000, v230")

    def uk_dma(bar):
        e(f"""
        s_mov_b32 s{SRD_A}, s{P_WUK}
        s_mov_b32 s{SRD_A+1}, s{P_WUK+1}
        s_mov_b32 s{SRD_A+2}, 4194304
        s_mov_b32 s{SRD_A+3}, 0x20000
        s_and_b32 s66, s{S_W}, 1
        s_lshl_b32 s66, s66, 3
        v_lshlrev_b32 v7, 1, v2
        v_xor_b32 v7, v7, v3
        v_xor_b32 v7, s66, v7
        v_lshlrev_b32 v7, 4, v7
        v_lshl_add_u32 v7, v2, 13, v7
        s_lshl_b32 s64, s{S_J}, 5
        s_add_u32 s64, s64, s{S_W}
        s_lshl_b32 s64, s64, 15
        s_lshl_b32 s65, s{S_H}, 8
        s_add_u32 s64, s64, s65
        s_lshl_b32 s67, s{S_W}, 10
        s_add_u32 s67, s67, {L_WUK}
        """)
        if bar: e("s_barrier")
        for ii in range(8):
            e(f"""
            s_mov_b32 m0, s67
            s_add_u32 s67, s67, 4096
            buffer_load_dwordx4 v7, s[{SRD_A}:{SRD_A+3}], s64 offen{NT} lds
            s_add_u32 s64, s64, {4*4*8192}
            """)

    e(f"""
    s_cmp_ge_u32 s2, 256
    s_cbranch_scc1 L_exit
    s_load_dwordx16 s[8:23], s[0:1], 0
    s_load_dwordx4 s[32:35], s[0:1], 96
    s_load_dwordx8 s[24:31], s[0:1], 64
    """)
    if cfg.codepf:
        e(f"""
        s_cmp_lt_u32 s2, {cfg.codepf}
        s_cbranch_scc0 L_nopf
        s_getpc_b64 s[64:65]
        """)
        e.label("L_pc")
        e(f"""
        s_and_b32 s64, s64, 0xffffff00
        v_lshlrev_b32 v203, 7, v0
        v_min_u32 v203, L_end-L_pc-4, v203
        v_mov_b32 v201, s65
        v_add_co_u32 v200, vcc, s64, v203
        s_nop 1
        v_addc_co_u32 v201, vcc, 0, v201, vcc
        global_load_dword v202, v[200:201], off
        """)
        e.label("L_nopf")
    if cfg.stamps:
        e(f"s_memrealtime s[{S_STAMP}:{S_STAMP+1}]")
        for k in range(1, 15): e(f"s_mov_b32 s{S_STAMP+2*k}, 0")
    e(f"""
    v_and_b32 v1, 63, v0
    v_lshrrev_b32 v4, 6, v0
    v_lshrrev_b32 v2, 4, v1
    v_readfirstlane_b32 s{S_W}, v4
    v_and_b32 v3, 15, v1
    s_and_b32 s{S_X}, s2, 7
    s_bfe_u32 s{S_I}, s2, 0x40003
    s_lshr_b32 s{S_H}, s{S_I}, 2
    s_xor_b32 s{S_H}, s{S_H}, {cfg.hperm}
    s_lshl_b32 s3, s{S_X}, 2
    s_add_u32 s{S_H}, s{S_H}, s3
    s_and_b32 s{S_J}, s{S_I}, 3
    s_mov_b32 s{SRD_0+3}, 0x20000
    s_mov_b32 s{S_SPIN}, {cfg.spin}
    s_cmp_ge_u32 s2, 128
    s_cbranch_scc1 L_B0
    """)
    e(f"""
    s_lshl_b32 s66, s{S_W}, 2
    s_and_b32 s66, s66, 8
    s_mul_i32 s64, s{S_J}, 40
    s_add_u32 s64, s64, s{S_W}
    s_lshl_b32 s64, s64, 15
    s_lshl_b32 s65, s{S_H}, 8
    s_add_u32 s64, s64, s65
    s_lshl_b32 s67, s{S_W}, 10
    s_add_u32 s67, s67, {L_WQ}
    s_mov_b32 s{SRD_0+2}, 5242880
    v_lshlrev_b32 v7, 1, v2
    v_xor_b32 v7, v7, v3
    v_xor_b32 v7, s66, v7
    v_lshlrev_b32 v7, 4, v7
    v_lshl_add_u32 v7, v2, 13, v7
    v_lshlrev_b32 v6, 2, v1
    s_cmp_eq_u32 s{S_W}, 0
    s_waitcnt lgkmcnt(0)
    s_mov_b32 s{SRD_0}, s{P_WQ}
    s_mov_b32 s{SRD_0+1}, s{P_WQ+1}
    s_cbranch_scc0 L_f_nox
    """)
    for k in range(5):
        e(f"global_load_dword v{8+k}, v6, s[{P_X}:{P_X+1}] offset:{256*k}")
    e.label("L_f_nox")
    for ii in range(5):
        e(f"""
        s_mov_b32 m0, s67
        s_add_u32 s67, s67, 8192
        buffer_load_dwordx4 v7, s[{SRD_0}:{SRD_0+3}], s64 offen{NT} lds
        s_add_u32 s64, s64, {8*4*8192}
        """)
    if cfg.tlbk:
        e(f"""
        s_lshl_b32 s3, s{S_J}, 7
        s_lshl_b32 s64, s{S_W}, 4
        s_add_u32 s3, s3, s64
        s_lshl_b32 s3, s3, 13
        s_lshl_b32 s64, s{S_H}, 8
        s_add_u32 s3, s3, s64
        v_mov_b32 v4, s3
        s_mov_b64 exec, 1
        global_load_dword v200, v4, s[{P_WUK}:{P_WUK+1}] nt
        s_mov_b64 exec, -1
        """)
    if cfg.selftouch:
        e(f"""
        v_bfe_u32 v4, v1, 1, 4
        s_lshl_b32 s3, s{S_J}, 7
        s_lshl_b32 s64, s{S_W}, 4
        s_add_u32 s3, s3, s64
        v_add_u32 v4, s3, v4
        v_lshlrev_b32 v4, 13, v4
        v_and_b32 v5, 1, v1
        v_lshl_add_u32 v4, v5, 7, v4
        s_lshl_b32 s3, s{S_H}, 8
        v_add_u32 v4, s3, v4
        s_mov_b64 exec, 0xffffffff
        global_load_dword v200, v4, s[{P_WUK}:{P_WUK+1}] nt
        s_mov_b64 exec, -1
        """)
    if cfg.ukearly and not cfg.ukdelay:
        e("s_barrier")
        e(f"s_cmp_lt_u32 s{S_W}, 4\ns_cbranch_scc0 L_f_nouk")
        uk_dma(False)
        e.label("L_f_nouk")
    e(f"""
    s_load_dword s{S_TAG}, {WS}, 0
    s_branch L_F1
    """)
    e.label("L_B0")
    if cfg.exp_nob: e("s_endpgm")
    e(f"""
    s_lshl_b32 s3, s{S_W}, 1
    v_xor_b32 v7, s3, v1
    v_lshlrev_b32 v7, 4, v7
    s_lshl_b32 s{S_CH}, s{S_X}, 2
    s_add_u32 s{S_CH}, s{S_CH}, s{S_J}
    s_lshl_b32 s66, s{S_CH}, 17
    s_and_b32 s67, s{S_I}, 12
    s_lshl_b32 s67, s67, 13
    s_lshl_b32 s65, s{S_W}, 10
    s_add_u32 s67, s67, s65
    s_mov_b32 s{SRD_0+2}, 4194304
    s_mov_b32 s68, 15
    v_bfe_u32 v4, v1, 1, 4
    s_lshl_b32 s3, s{S_J}, 7
    s_lshl_b32 s64, s{S_W}, 4
    s_add_u32 s3, s3, s64
    v_add_u32 v4, s3, v4
    v_lshlrev_b32 v4, 13, v4
    v_and_b32 v5, 1, v1
    v_lshl_add_u32 v4, v5, 7, v4
    s_lshl_b32 s3, s{S_H}, 8
    v_add_u32 v4, s3, v4
    s_waitcnt lgkmcnt(0)
    s_mov_b32 s{SRD_0}, s{P_CKV}
    s_mov_b32 s{SRD_0+1}, s{P_CKV+1}
    """)
    if cfg.tlbw:
        e(f"""
        s_cmp_eq_u32 s{S_I}, 0
        s_cselect_b32 s3, s{S_W}, 0
        s_cmp_eq_u32 s3, 7
        s_cbranch_scc0 L_notlb
        s_mov_b64 exec, 1
        v_mov_b32 v8, 0
        v_mov_b32 v9, 0x200000
        v_mov_b32 v10, 0x3ffffc
        v_mov_b32 v11, 0x4ffffc
        global_load_dword v204, v8, s[{P_WUK}:{P_WUK+1}] nt
        global_load_dword v204, v9, s[{P_WUK}:{P_WUK+1}] nt
        global_load_dword v204, v10, s[{P_WUK}:{P_WUK+1}] nt
        global_load_dword v204, v8, s[{P_WUV}:{P_WUV+1}] nt
        global_load_dword v204, v9, s[{P_WUV}:{P_WUV+1}] nt
        global_load_dword v204, v10, s[{P_WUV}:{P_WUV+1}] nt
        global_load_dword v204, v8, s[{P_WO}:{P_WO+1}] nt
        global_load_dword v204, v9, s[{P_WO}:{P_WO+1}] nt
        global_load_dword v204, v10, s[{P_WO}:{P_WO+1}] nt
        global_load_dword v204, v11, s[{P_WO}:{P_WO+1}] nt
        global_load_dword v204, v8, s[{P_W1}:{P_W1+1}]
        global_load_dword v204, v8, s[{P_B1}:{P_B1+1}]
        global_load_dword v204, v8, s[{P_W2}:{P_W2+1}]
        global_load_ushort v204, v8, s[{P_B2}:{P_B2+1}]
        global_load_dword v204, v8, s[{P_OUT}:{P_OUT+1}]
        s_mov_b64 exec, -1
        """)
        e.label("L_notlb")
    if cfg.tsleep: e(f"s_sleep {cfg.tsleep}")
    if cfg.spreadq or cfg.spreadk:
        e(f"""
        s_lshl_b32 s3, s{S_X}, 2
        s_add_u32 s3, s3, 1
        s_lshl_b32 s3, s3, 8
        v_lshrrev_b32 v8, 1, v1
        v_and_b32 v9, 1, v1
        v_lshlrev_b32 v9, 7, v9
        v_add_u32 v9, s3, v9
        """)
        if cfg.spreadq:
            e(f"""
            s_mul_i32 s3, s{S_I}, 40
            s_mul_i32 s64, s{S_W}, 5
            s_add_u32 s3, s3, s64
            v_add_u32 v10, s3, v8
            v_lshl_add_u32 v10, v10, 13, v9
            s_mov_b64 exec, 0x3ff
            global_load_dword v200, v10, s[{P_WQ}:{P_WQ+1}] nt
            s_mov_b64 exec, -1
            """)
        if cfg.spreadk:
            e(f"""
            s_lshl_b32 s3, s{S_I}, 5
            s_lshl_b32 s64, s{S_W}, 2
            s_add_u32 s3, s3, s64
            v_add_u32 v10, s3, v8
            v_lshl_add_u32 v10, v10, 13, v9
            s_mov_b64 exec, 0xff
            global_load_dword v200, v10, s[{P_WUK}:{P_WUK+1}] nt
            s_mov_b64 exec, -1
            """)
    if cfg.touchslow:
        e(f"""
        s_and_b32 s3, s{S_H}, 3
        s_cmp_eq_u32 s3, {cfg.touchslow - 1}
        s_cbranch_scc0 L_notouch
        s_mov_b64 exec, 0xffffffff
        global_load_dword v200, v4, s[{P_WUK}:{P_WUK+1}] nt
        s_mov_b64 exec, -1
        """)
        e.label("L_notouch")
    if cfg.touch: e(f"""
    s_mov_b64 exec, 0xffffffff
    global_load_dword v200, v4, s[{P_WUK}:{P_WUK+1}]{" nt" if cfg.uknt else ""}
    s_mov_b64 exec, -1
    """)
    if cfg.bdelay: e(f"s_load_dword s{S_TAG}, {WS}, 0\ns_waitcnt lgkmcnt(0)")
    if cfg.bsleep: e(f"s_sleep {cfg.bsleep}")
    e.label("L_b_dma")
    e(f"""
    s_mov_b32 m0, s67
    s_add_u32 s69, s67, s66
    buffer_load_dwordx4 v7, s[{SRD_0}:{SRD_0+3}], s69 offen{" nt" if cfg.ckvnt else ""} lds
    s_add_u32 s67, s67, 8192
    s_and_b32 s67, s67, 0x1ffff
    s_sub_u32 s68, s68, 1
    s_cbranch_scc0 L_b_dma
    """)
    if not cfg.bdelay: e(f"s_load_dword s{S_TAG}, {WS}, 0")
    e("s_branch L_B1")

    e.label("L_F1")
    e(f"s_mov_b32 s{S_ISB}, 0")
    stamp(1)
    tr_common()
    e(f"""
    v_and_b32 v41, 1, v2
    v_lshl_add_u32 v41, v41, 2, v62
    v_lshlrev_b32 v41, 1, v41
    s_and_b32 s65, s{S_W}, 3
    s_lshl_b32 s3, s65, 2
    v_add_u32 v42, s3, v63
    v_xor_b32 v41, v41, v42
    v_lshl_add_u32 v41, v41, 4, v59
    v_lshl_add_u32 v42, v2, 3, v62
    v_lshl_add_u32 v41, v42, 8, v41
    v_add_u32 v41, {L_WQ}, v41
    v_xor_b32 v40, 32, v41
    s_mul_i32 s3, s{S_J}, 320
    s_add_u32 s3, s3, {L_LNS}
    v_lshl_add_u32 v42, v2, 4, s3
    s_lshl_b32 s3, s{S_H}, 2
    s_add_u32 s3, s3, s{S_J}
    s_lshl_b32 s3, s3, 9
    s_lshl_b32 s64, s65, 7
    s_add_u32 s3, s3, s64
    s_add_u32 s65, s3, {WS_Q1}
    v_and_b32 v43, 1, v1
    v_lshlrev_b32 v43, 6, v43
    v_lshl_add_u32 v43, v2, 4, v43
    v_add_u32 v43, s65, v43
    v_add_u32 v44, {WS_Q1F-WS_Q1}, v43
    s_lshl_b32 s64, s{S_W}, 6
    s_lshl_b32 s3, s{S_H}, 2
    s_and_b32 s65, s{S_W}, 3
    s_add_u32 s3, s3, s65
    s_lshl_b32 s3, s3, 9
    s_add_u32 s3, s3, {WS_Q1}
    v_lshl_add_u32 v45, v1, 3, s3
    v_add_u32 v49, {WS_Q1F-WS_Q1}, v45
    s_mul_i32 s3, s65, {QP_STRIDE}
    s_add_u32 s3, s3, {L_QP}
    v_lshl_add_u32 v46, v1, 2, s3
    v_bfe_u32 v47, v3, 1, 2
    v_mul_u32_u24 v47, {QP_STRIDE}, v47
    v_lshl_add_u32 v47, v2, 4, v47
    v_add_u32 v47, {L_QP}, v47
    s_and_b32 s66, s{S_W}, 3
    s_lshl_b32 s3, s{S_H}, 10
    s_lshl_b32 s65, s{S_J}, 8
    s_add_u32 s3, s3, s65
    s_lshl_b32 s64, s66, 6
    s_add_u32 s3, s3, s64
    s_add_u32 s65, s3, {WS_QA}
    v_and_b32 v50, 1, v1
    v_lshlrev_b32 v50, 1, v50
    v_lshrrev_b32 v51, 1, v2
    v_add_u32 v50, v50, v51
    v_lshl_add_u32 v48, v50, 4, s65
    s_lshl_b32 s3, s66, 5
    v_add_u32 v24, s3, v3
    v_lshlrev_b32 v24, 8, v24
    v_and_b32 v25, 7, v3
    v_lshlrev_b32 v25, 1, v25
    v_xor_b32 v25, v25, v2
    v_lshl_add_u32 v24, v25, 4, v24
    v_add_u32 v24, {L_WUK}, v24
    v_xor_b32 v25, 64, v24
    v_xor_b32 v26, 128, v24
    v_xor_b32 v27, 192, v24
    s_waitcnt lgkmcnt(0)
    """)
    mk_tag()
    e(f"v_mov_b32 v105, s{S_TAG}\nv_mov_b32 v107, s{S_TAG}")
    tagpat(52, 50, 56)
    e(f"""
    s_cmp_eq_u32 s{S_W}, 0
    s_cbranch_scc0 L_f_noln
    """)
    e(f"s_waitcnt vmcnt({13 if (cfg.ukearly and not cfg.ukdelay) else 5 + cfg.selftouch + cfg.tlbk})")
    stamp(2)
    for k in range(5):
        e(f"v_lshlrev_b32 v{64+2*k}, 16, v{8+k}")
        e(f"v_and_b32 v{65+2*k}, 0xffff0000, v{8+k}")
    e(f"""
    v_pk_add_f32 v[74:75], v[64:65], v[66:67]
    v_pk_add_f32 v[76:77], v[68:69], v[70:71]
    v_pk_add_f32 v[74:75], v[74:75], v[72:73]
    v_pk_add_f32 v[74:75], v[74:75], v[76:77]
    v_mov_b32 v78, {F32(-1.0/640)}
    v_add_f32 v74, v74, v75
    """)
    dpp_reduce([74])
    e.nop(1)
    e("v_readlane_b32 s20, v74, 63")
    e(f"v_mov_b32 v80, {F32(1.0/640)}\nv_mov_b32 v81, {F32(1e-5)}")
    e("v_mul_f32 v78, s20, v78")
    for k in range(5):
        e(f"v_pk_add_f32 v[{64+2*k}:{65+2*k}], v[{64+2*k}:{65+2*k}], v[78:79] op_sel_hi:[1,0]")
    e("v_pk_mul_f32 v[74:75], v[64:65], v[64:65]")
    for k in range(1, 5):
        e(f"v_pk_fma_f32 v[74:75], v[{64+2*k}:{65+2*k}], v[{64+2*k}:{65+2*k}], v[74:75]")
    e("v_add_f32 v74, v74, v75")
    dpp_reduce([74])
    e.nop(1)
    e("v_readlane_b32 s21, v74, 63")
    e(f"v_mov_b32 v82, {F32(128**-0.5 * 1.4426950408889634 * LSB_DEBIAS)}")
    e(f"v_add_u32 v6, {L_LNS}, v6")
    e("v_fma_f32 v74, s21, v80, v81")
    e("v_rsq_f32 v74, v74")
    e.nop(1)
    e("v_mul_f32 v74, v74, v82")
    for k in range(5):
        e(f"v_pk_mul_f32 v[{64+2*k}:{65+2*k}], v[{64+2*k}:{65+2*k}], v[74:75] op_sel_hi:[1,0]")
    for k in range(5):
        e(f"v_cvt_pk_bf16_f32 v{8+k}, v{64+2*k}, v{65+2*k}")
        e(f"ds_write_b32 v6, v{8+k} offset:{256*k}")
    e.label("L_f_noln")
    if cfg.ukearly and cfg.ukdelay:
        e(f"s_cmp_lt_u32 s{S_W}, 4\ns_cbranch_scc0 L_f_nouk\ns_cmp_eq_u32 s{S_W}, 0\ns_cbranch_scc1 L_f_uk0\ns_sleep {cfg.ukdelay}")
        e.label("L_f_uk0")
        uk_dma(False)
        e.label("L_f_nouk")
    if cfg.ukearly:
        e(f"s_cmp_lt_u32 s{S_W}, 4\ns_cbranch_scc0 L_f_w0\ns_waitcnt vmcnt(8)\ns_branch L_f_w1")
        e.label("L_f_w0")
        e("s_waitcnt vmcnt(0)")
        e.label("L_f_w1")
        e("s_waitcnt lgkmcnt(0)")
    else:
        e(f"s_waitcnt vmcnt({cfg.selftouch + cfg.tlbk}) lgkmcnt(0)")
    e("s_barrier")
    stamp(3)
    e(f"s_cmp_lt_u32 s{S_W}, 4\ns_cbranch_scc1 L_f_uk")
    if cfg.prio: e("s_setprio 2")
    for ks in range(5):
        e(f"ds_read_b128 v[{84+4*ks}:{87+4*ks}], v42 offset:{64*ks}")
        e(f"ds_read_b64_tr_b16 v[{64+4*ks}:{65+4*ks}], v41 offset:{8192*ks}")
        e(f"ds_read_b64_tr_b16 v[{66+4*ks}:{67+4*ks}], v41 offset:{8192*ks+1024}")
        e(f"ds_read_b64_tr_b16 v[{112+4*ks}:{113+4*ks}], v40 offset:{8192*ks}")
        e(f"ds_read_b64_tr_b16 v[{114+4*ks}:{115+4*ks}], v40 offset:{8192*ks+1024}")
    e("s_mov_b32 s64, 0xaaaaaaaa\ns_mov_b32 s65, 0xaaaaaaaa")
    for ks in range(5):
        e(f"s_waitcnt lgkmcnt({min(15, 20-5*ks)})")
        c = "0" if ks == 0 else "v[108:111]"
        e(f"v_mfma_f32_16x16x32_bf16 v[108:111], v[{64+4*ks}:{67+4*ks}], v[{84+4*ks}:{87+4*ks}], {c}")
        c = "0" if ks == 0 else "v[132:135]"
        e(f"v_mfma_f32_16x16x32_bf16 v[132:135], v[{112+4*ks}:{115+4*ks}], v[{84+4*ks}:{87+4*ks}], {c}")
    e("s_mov_b32 exec_lo, 0x00030003\ns_mov_b32 exec_hi, 0x00030003")
    e.nop(6)
    for r in range(4):
        e(f"v_cndmask_b32 v{108+r}, v{108+r}, v{132+r}, s[64:65]")
    e("""
    v_cvt_pk_bf16_f32 v104, v108, v109
    v_cvt_pk_bf16_f32 v106, v110, v111
    """)
    if cfg.fast1 or cfg.ff1: e(f"global_store_dwordx4 v44, v[104:107], {WS}")
    e(f"global_store_dwordx4 v43, v[104:107], {WS} sc1\ns_mov_b64 exec, -1")
    stamp(4)
    e(("" if cfg.ukearly else "s_barrier\n") + "s_branch L_h1_bar")
    e.label("L_f_uk")
    if not cfg.ukearly: uk_dma(True)
    if cfg.ff1:
        e(f"s_mov_b32 s20, {cfg.ff1}")
    e.label("L_h1")
    if cfg.ff1:
        e(f"global_load_dwordx2 v[64:65], v49, {WS} sc1\ns_waitcnt vmcnt(0)")
        e(f"v_cmp_ne_u32 vcc, s{S_TAG}, v65\ns_cbranch_vccz L_h1_done")
        e(f"s_sub_u32 s{S_SPIN}, s{S_SPIN}, 1\ns_cbranch_scc1 L_fail")
        e("s_sub_u32 s20, s20, 1\ns_cbranch_scc0 L_h1\nv_mov_b32 v49, v45\ns_mov_b32 s20, 0x7fffffff\ns_branch L_h1")
    elif cfg.fast1:
        e(f"global_load_dwordx2 v[66:67], v49, {WS} sc1")
        e(f"global_load_dwordx2 v[64:65], v45, {WS} sc1\ns_waitcnt vmcnt(0)")
        e(f"v_cmp_eq_u32 vcc, s{S_TAG}, v67")
        e.nop(2)
        e("v_cndmask_b32 v64, v64, v66, vcc\nv_cndmask_b32 v65, v65, v67, vcc")
    else:
        e(f"global_load_dwordx2 v[64:65], v45, {WS} sc1\ns_waitcnt vmcnt(0)")
    if not cfg.ff1:
        e(f"v_cmp_ne_u32 vcc, s{S_TAG}, v65")
        e(f"s_cbranch_vccz L_h1_done")
        spin_back("L_h1")
    e.label("L_h1_done")
    stamp(8)
    stamp(7)
    e("ds_write_b32 v46, v64")
    e.label("L_h1_bar")
    e("s_waitcnt lgkmcnt(0)\ns_barrier")
    stamp(5)
    e(f"s_cmp_lt_u32 s{S_W}, 4\ns_cbranch_scc1 L_f_nos2")
    for t in range(4):
        e(f"ds_read_b128 v[{64+4*t}:{67+4*t}], v47 offset:{64*t}")
        e(f"ds_read_b128 v[{80+4*t}:{83+4*t}], v{24+t}")
        e(f"ds_read_b128 v[{112+4*t}:{115+4*t}], v{24+t} offset:4096")
    e("s_mov_b32 s64, 0xaaaaaaaa\ns_mov_b32 s65, 0xaaaaaaaa")
    for t in range(4):
        e(f"s_waitcnt lgkmcnt({9-3*t})")
        c = "0" if t == 0 else "v[108:111]"
        e(f"v_mfma_f32_16x16x32_bf16 v[108:111], v[{80+4*t}:{83+4*t}], v[{64+4*t}:{67+4*t}], {c}")
        c = "0" if t == 0 else "v[132:135]"
        e(f"v_mfma_f32_16x16x32_bf16 v[132:135], v[{112+4*t}:{115+4*t}], v[{64+4*t}:{67+4*t}], {c}")
    e.nop(8)
    for r in range(4):
        e(f"v_cndmask_b32 v{108+r}, v{108+r}, v{132+r}, s[64:65]")
    for st in ("row_ror:2", "row_ror:4"):
        for r in range(108, 112):
            e(f"v_add_f32_dpp v{r}, v{r}, v{r} {st} row_mask:0xf bank_mask:0xf")
    e("""
    v_cvt_pk_bf16_f32 v104, v108, v109
    v_cvt_pk_bf16_f32 v105, v110, v111
    s_mov_b32 s66, 0xfffefffe
    v_mov_b32 v106, v104
    v_mov_b32 v107, v105
    s_nop 1
    v_permlane16_swap_b32 v104, v106
    v_permlane16_swap_b32 v105, v107
    s_mov_b32 exec_lo, 3
    s_mov_b32 exec_hi, 3
    v_and_or_b32 v104, v104, s66, v52
    v_and_or_b32 v105, v105, s66, v53
    v_and_or_b32 v106, v106, s66, v54
    v_and_or_b32 v107, v107, s66, v55
    """)
    e(f"global_store_dwordx4 v48, v[104:107], {WS} sc1\ns_mov_b64 exec, -1")
    stamp(6)
    e.label("L_f_nos2")
    e("s_barrier")
    if cfg.uvpf:
        e(f"""
        v_lshrrev_b32 v4, 1, v1
        s_lshl_b32 s3, s{S_J}, 7
        s_lshl_b32 s64, s{S_W}, 4
        s_add_u32 s3, s3, s64
        v_and_b32 v4, 15, v4
        v_add_u32 v4, s3, v4
        v_lshlrev_b32 v4, 13, v4
        v_and_b32 v5, 1, v1
        v_lshl_add_u32 v4, v5, 7, v4
        s_lshl_b32 s3, s{S_H}, 8
        v_add_u32 v4, s3, v4
        s_mov_b64 exec, 0xffffffff
        global_load_dword v5, v4, s[{P_WUV}:{P_WUV+1}]{NT}
        s_mov_b64 exec, -1
        """)
    e(f"s_cmp_lt_u32 s{S_I}, 10\ns_cbranch_scc1 L_s6")
    s7_loads()
    e("s_waitcnt vmcnt(0)")
    s7_prep()
    if cfg.n5sleep:
        e(f"""
        s_cmp_lt_u32 s{S_W}, 5
        s_cbranch_scc0 L_S7
        s_lshl_b32 s3, s{S_H}, 2
        s_add_u32 s3, s3, s{S_J}
        s_lshl_b32 s3, s3, 9
        s_add_u32 s3, s3, {WS_CTX}
        v_mov_b32 v40, s3
        """)
        e.label("L_sent")
        e(f"""
        global_load_dwordx2 v[42:43], v40, {WS} sc1
        s_waitcnt vmcnt(0)
        v_cmp_ne_u32 vcc, s{S_TAG}, v43
        s_cbranch_vccz L_sent_done
        s_sleep 8
        """)
        spin_back("L_sent")
        e.label("L_sent_done")
        e(f"s_sleep {cfg.n5sleep}")
    e("s_branch L_S7")
    e.label("L_s6")
    e(f"""
    s_mov_b32 s{SRD_WO}, s{P_WO}
    s_mov_b32 s{SRD_WO+1}, s{P_WO+1}
    s_mov_b32 s{SRD_WO+2}, 5242880
    s_mov_b32 s{SRD_WO+3}, 0x20000
    v_lshrrev_b32 v12, 3, v1
    v_mul_u32_u24 v50, 1280, v12
    v_and_b32 v12, 2, v12
    v_and_b32 v13, 7, v1
    v_xor_b32 v12, v12, v13
    v_lshl_add_u32 v50, v12, 4, v50
    v_xor_b32 v51, 64, v50
    s_lshl_b32 s3, s{S_X}, 3
    s_add_u32 s3, s3, s{S_W}
    s_mul_i32 s20, s3, {64*1280}
    s_lshl_b32 s65, s{S_I}, 7
    s_add_u32 s20, s20, s65
    s_lshl_b32 s21, s{S_W}, 13
    """)
    for ii in range(8):
        e(f"""
        s_mov_b32 m0, s21
        s_add_u32 s21, s21, 1024
        buffer_load_dwordx4 v{50+(ii&1)}, s[{SRD_WO}:{SRD_WO+3}], s20 offen{NT} lds
        s_add_u32 s20, s20, {8*1280}
        """)
    s7_loads()
    tr_common()
    e(f"""
    v_lshl_add_u32 v12, v2, 3, v62
    v_lshlrev_b32 v12, 7, v12
    v_add_u32 v12, v12, v59
    s_lshl_b32 s3, s{S_W}, 13
    v_add_u32 v12, s3, v12
    v_and_b32 v13, 1, v2
    v_lshlrev_b32 v13, 2, v13
    v_and_b32 v14, 2, v62
    v_or_b32 v13, v13, v14
    v_xor_b32 v13, v13, v63
    v_lshl_add_u32 v249, v13, 4, v12
    v_xor_b32 v250, 32, v249
    v_xor_b32 v251, 64, v249
    v_xor_b32 v252, 96, v249
    s_lshr_b32 s3, s{S_W}, 1
    s_lshl_b32 s64, s{S_X}, 2
    s_add_u32 s3, s3, s64
    s_lshl_b32 s3, s3, 11
    s_and_b32 s64, s{S_W}, 1
    s_lshl_b32 s64, s64, 8
    s_add_u32 s3, s3, s64
    s_add_u32 s3, s3, {WS_CTX}
    v_lshlrev_b32 v140, 9, v2
    v_lshl_add_u32 v140, v3, 4, v140
    v_add_u32 v140, s3, v140
    v_add_u32 v141, {WS_CTXF-WS_CTX}, v140
    s_lshl_b32 s3, s{S_W}, 7
    s_add_u32 s3, s3, {L_BNC}
    v_lshl_add_u32 v142, v3, 2, v2
    v_lshlrev_b32 v142, 1, v142
    v_add_u32 v142, s3, v142
    v_lshl_add_u32 v143, v2, 4, s3
    s_lshl_b32 s3, s{S_W}, 8
    s_add_u32 s3, s3, {L_ORED}
    v_lshl_add_u32 v253, v2, 4, s3
    v_lshlrev_b32 v254, 3, v1
    v_add_u32 v254, {L_ORED}, v254
    s_mul_i32 s3, s{S_X}, 1280
    s_lshl_b32 s64, s{S_I}, 7
    s_add_u32 s3, s3, s64
    s_add_u32 s3, s3, {WS_OP}
    v_lshl_add_u32 v255, v1, 2, s3
    v_and_b32 v12, 15, v1
    v_lshlrev_b32 v12, 1, v12
    v_mov_b32 v13, s{S_TAG}
    v_lshrrev_b32 v12, v12, v13
    v_and_b32 v13, 1, v12
    v_and_b32 v12, 2, v12
    v_lshl_or_b32 v136, v12, 15, v13
    s_waitcnt vmcnt(0)
    """)
    stamp(9)
    s7_prep()
    for tt in range(4):
        for ks in range(2):
            r = 80 + 8 * tt + 4 * ks
            e(f"ds_read_b64_tr_b16 v[{r}:{r+1}], v{249+tt} offset:{4096*ks}")
            e(f"ds_read_b64_tr_b16 v[{r+2}:{r+3}], v{249+tt} offset:{4096*ks+512}")
    if cfg.xfast:
        e(f"""
        v_and_b32 v40, 15, v1
        v_lshlrev_b32 v40, 10, v40
        s_lshl_b32 s3, s{S_X}, 7
        s_add_u32 s3, s3, {WS_XID}
        v_add_u32 v40, s3, v40
        s_getreg_b32 s64, hwreg(HW_REG_XCC_ID, 0, 4)
        """)
        e.label("L_xid")
        e(f"""
        global_load_dwordx2 v[42:43], v40, {WS} sc1
        s_waitcnt vmcnt(0)
        v_cmp_ne_u32 vcc, s{S_TAG}, v43
        s_cbranch_vccz L_xid_ok
        s_sleep 4
        """)
        spin_back("L_xid")
        e.label("L_xid_ok")
        e(f"""
        v_cmp_ne_u32 vcc, s64, v42
        s_cbranch_vccnz L_xid_slow
        v_mov_b32 v140, v141
        """)
        e.label("L_xid_slow")
    e.label("L_h4")
    if cfg.fast4 == 2:
        e(f"global_load_dwordx4 v[40:43], v141, {WS} sc1\ns_waitcnt vmcnt(0)")
    elif cfg.fast4:
        e(f"global_load_dwordx4 v[44:47], v141, {WS} sc1")
        e(f"global_load_dwordx4 v[40:43], v140, {WS} sc1\ns_waitcnt vmcnt(0)")
        tagchk(48, [45, 47])
        e("v_cmp_eq_u32 vcc, 0, v48")
        e.nop(2)
        for k in range(4): e(f"v_cndmask_b32 v{40+k}, v{40+k}, v{44+k}, vcc")
    else:
        e(f"global_load_dwordx4 v[40:43], v140, {WS} sc1\ns_waitcnt vmcnt(0)")
    tagchk(48, [41, 43])
    poll_tail("L_h4", "L_h4_done", 48, cfg.h4sleep)
    stamp(10)
    e("""
    v_lshlrev_b32 v44, 16, v40
    v_and_b32 v45, 0xffff0000, v40
    v_lshlrev_b32 v46, 16, v42
    v_and_b32 v47, 0xffff0000, v42
    s_nop 1
    v_permlane32_swap_b32 v44, v46
    v_permlane32_swap_b32 v45, v47
    v_add_f32 v44, v44, v46
    v_add_f32 v45, v45, v47
    s_nop 1
    v_permlane16_swap_b32 v44, v45
    v_add_f32 v44, v44, v45
    v_cvt_pk_bf16_f32 v44, v44, v44
    ds_write_b16 v142, v44
    s_waitcnt lgkmcnt(0)
    ds_read_b128 v[112:115], v143
    ds_read_b128 v[116:119], v143 offset:64
    """)
    for ks in range(2):
        e(f"s_waitcnt lgkmcnt({1-ks})")
        for tt in range(4):
            c = "0" if ks == 0 else f"v[{120+4*tt}:{123+4*tt}]"
            r = 80 + 8 * tt + 4 * ks
            e(f"v_mfma_f32_16x16x32_bf16 v[{120+4*tt}:{123+4*tt}], v[{r}:{r+3}], v[{112+4*ks}:{115+4*ks}], {c}")
    e("s_mov_b32 exec_lo, 0x00010001\ns_mov_b32 exec_hi, 0x00010001")
    e.nop(3)
    for tt in range(4):
        e(f"ds_write_b128 v253, v[{120+4*tt}:{123+4*tt}] offset:{64*tt}")
    e(f"""
    s_mov_b64 exec, -1
    s_waitcnt lgkmcnt(0)
    s_barrier
    s_cmp_eq_u32 s{S_W}, 7
    s_cbranch_scc0 L_s6_w
    s_mov_b64 exec, 0xffffffff
    """)
    for w in range(8):
        e(f"ds_read_b64 v[{40+2*w}:{41+2*w}], v254 offset:{256*w}")
    e(f"""
    s_mov_b32 s66, 0xfffefffe
    s_waitcnt lgkmcnt(0)
    v_pk_add_f32 v[40:41], v[40:41], v[42:43]
    v_pk_add_f32 v[44:45], v[44:45], v[46:47]
    v_pk_add_f32 v[48:49], v[48:49], v[50:51]
    v_pk_add_f32 v[52:53], v[52:53], v[54:55]
    v_pk_add_f32 v[40:41], v[40:41], v[44:45]
    v_pk_add_f32 v[48:49], v[48:49], v[52:53]
    v_pk_add_f32 v[40:41], v[40:41], v[48:49]
    v_cvt_pk_bf16_f32 v56, v40, v41
    v_lshrrev_b32 v57, 1, v56
    v_and_b32 v57, 0x00010001, v57
    v_add_u32 v56, v56, v57
    v_and_or_b32 v56, v56, s66, v136
    global_store_dword v255, v56, {WS} sc1
    s_mov_b64 exec, -1
    """)
    stamp(11)
    e("s_branch L_S7")
    e.label("L_s6_w")
    if cfg.f5sleep: e(f"s_sleep {cfg.f5sleep}")
    e("s_branch L_S7")

    e.label("L_B1")
    e(f"s_mov_b32 s{S_ISB}, 1")
    stamp(1)
    e(f"""
    s_lshr_b32 s3, s{S_I}, 2
    s_lshl_b32 s3, s3, 3
    s_add_u32 s3, s3, s{S_W}
    s_lshl_b32 s3, s3, 10
    s_add_u32 s3, s3, {WS_QA}
    v_lshl_add_u32 v5, v1, 4, s3
    s_mul_i32 s3, s{S_W}, {QAS_STRIDE}
    s_add_u32 s3, s3, {L_QAS}
    v_lshl_add_u32 v6, v1, 4, s3
    """)
    tr_common()
    e(f"s_cmp_lt_u32 s{S_W}, 4\ns_cbranch_scc0 L_bp_prep")
    def h2_poll(sfx):
        msk = "s66" if sfx == "q" else "s67"
        if cfg.h2init:
            e(f"s_sleep {cfg.h2init}")
        else:
            e("s_waitcnt vmcnt(0)\ns_branch L_h2_chk" + sfx)
        e.label("L_h2" + sfx)
        e(f"""
        global_load_dwordx4 v[40:43], v5, {WS} sc1
        s_waitcnt vmcnt(0)
        """)
        e.label("L_h2_chk" + sfx)
        for i in range(4):
            e(f"v_xor_b32 v{40+i}, v{40+i}, v{44+i}")
        e(f"v_or3_b32 v4, v40, v41, v42\nv_or_b32 v4, v4, v43\nv_and_b32 v4, {msk}, v4")
        poll_tail("L_h2" + sfx, "L_h2_done" + sfx, 4, cfg.h2sleep)
        stamp(5)
        e(f"""
        ds_write_b128 v6, v[40:43]
        s_waitcnt lgkmcnt(0)
        s_barrier
        """)
    e(f"""
    s_lshl_b32 s3, s{S_W}, 5
    v_add_u32 v12, s3, v3
    v_lshlrev_b32 v12, 10, v12
    v_and_b32 v13, 7, v1
    v_lshlrev_b32 v13, 1, v13
    v_xor_b32 v13, v13, v2
    v_lshl_add_u32 v8, v13, 4, v12
    v_xor_b32 v9, 64, v8
    v_xor_b32 v10, 128, v8
    v_xor_b32 v11, 192, v8
    v_and_b32 v216, 7, v3
    v_lshlrev_b32 v217, 4, v216
    v_mul_u32_u24 v216, {QAS_STRIDE}, v216
    v_lshl_add_u32 v216, v2, 4, v216
    v_add_u32 v216, {L_QAS}, v216
    v_add_u32 v217, {L_MX}, v217
    s_lshl_b32 s3, s{S_W}, 2
    v_add_u32 v218, s3, v217
    s_lshl_b32 s3, s{S_W}, 10
    s_add_u32 s3, s3, {L_PEX}
    v_lshl_add_u32 v219, v1, 4, s3
    v_and_b32 v220, 1, v2
    v_lshl_add_u32 v220, v220, 2, v62
    v_lshlrev_b32 v220, 1, v220
    s_lshl_b32 s3, s{S_W}, 2
    v_add_u32 v12, s3, v63
    v_xor_b32 v220, v220, v12
    v_lshl_add_u32 v220, v220, 4, v59
    v_lshl_add_u32 v12, v2, 3, v62
    v_lshl_add_u32 v220, v12, 8, v220
    v_xor_b32 v221, 32, v220
    s_lshl_b32 s3, s{S_H}, 10
    s_lshl_b32 s65, s{S_J}, 8
    s_add_u32 s3, s3, s65
    s_lshl_b32 s64, s{S_W}, 6
    s_add_u32 s3, s3, s64
    s_add_u32 s65, s3, {WS_PART}
    s_lshl_b32 s64, s{S_W}, 7
    v_lshrrev_b32 v12, 2, v1
    v_and_b32 v13, 3, v1
    v_lshlrev_b32 v222, 15, v12
    v_lshl_add_u32 v222, v13, 4, v222
    v_add_u32 v222, s65, v222
    s_lshl_b32 s3, s{S_H}, 7
    s_add_u32 s3, s3, {WS_ST}
    v_lshlrev_b32 v48, 12, v12
    v_lshl_add_u32 v48, v13, 4, v48
    v_add_u32 v48, s3, v48
    v_bfe_u32 v223, v1, 3, 1
    v_lshlrev_b32 v223, 4, v223
    v_bfe_u32 v12, v1, 2, 1
    v_lshl_add_u32 v223, v12, 1, v223
    v_and_b32 v12, 1, v2
    v_add_u32 v223, v223, v12
    v_lshl_add_u32 v223, v13, 2, v223
    s_lshl_b32 s3, s{S_W}, 5
    v_add_u32 v223, s3, v223
    v_lshlrev_b32 v223, 1, v223
    v_add_u32 v223, {L_CTXS}, v223
    v_lshlrev_b32 v49, 4, v2
    v_add_u32 v49, {L_CTXS}, v49
    s_lshl_b32 s3, s{S_H}, 2
    s_add_u32 s3, s3, s{S_J}
    s_lshl_b32 s3, s3, 9
    s_add_u32 s3, s3, s64
    s_add_u32 s3, s3, {WS_CTX}
    v_and_b32 v50, 1, v1
    v_lshlrev_b32 v50, 6, v50
    v_lshl_add_u32 v50, v2, 4, v50
    v_add_u32 v50, s3, v50
    v_add_u32 v51, {WS_CTXF-WS_CTX}, v50
    s_waitcnt lgkmcnt(0)
    """)
    mk_tag()
    e("v_and_b32 v16, 3, v1\ns_mov_b32 s66, 0x00010001")
    tagpat(44, 16, 12)
    e(f"s_waitcnt vmcnt(0)" + ("" if cfg.h2init else f"\nglobal_load_dwordx4 v[40:43], v5, {WS} sc1"))
    e("s_barrier")
    stamp(14)
    for t in range(2):
        for j in range(16):
            e(f"ds_read_b128 v[{64+64*t+4*j}:{67+64*t+4*j}], v{8+(j&3)} offset:{256*(j>>2)+16384*t}")
    h2_poll("q")
    def qb(j):
        if j < 6: return 192 + 4 * j
        if j < 13: return 12 + 4 * (j - 6)
        if j < 15: return 40 + 4 * (j - 13)
        return 52
    stamp(4)
    if cfg.prio: e("s_setprio 2")
    for j in range(16):
        e(f"ds_read_b128 v[{qb(j)}:{qb(j)+3}], v216 offset:{64*j}")
    for j in range(16):
        if j % 2 == 0: e(f"s_waitcnt lgkmcnt({max(0, 14-j)})")
        for t in range(2):
            acc = f"v[{56+4*t}:{59+4*t}]"
            c = "0" if j == 0 else acc
            e(f"v_mfma_f32_16x16x32_bf16 {acc}, v[{64+64*t+4*j}:{67+64*t+4*j}], v[{qb(j)}:{qb(j)+3}], {c}")
    e.nop(7)
    stamp(10)
    e("""
    v_max3_f32 v12, v56, v57, v58
    s_nop 0
    v_max3_f32 v13, v60, v61, v62
    v_max3_f32 v12, v59, v63, v12
    v_max_f32 v12, v12, v13
    v_mov_b32 v13, v12
    """)
    e.nop(2)
    e("v_permlane16_swap_b32 v12, v13")
    e("v_max_f32 v12, v12, v13\nv_mov_b32 v13, v12")
    e.nop(2)
    e("v_permlane32_swap_b32 v12, v13")
    e("""
    v_max_f32 v12, v12, v13
    s_mov_b64 exec, 0xff
    ds_write_b32 v218, v12
    s_mov_b64 exec, -1
    s_waitcnt lgkmcnt(0)
    s_barrier
    """)
    stamp(11)
    e("""
    ds_read_b128 v[16:19], v217
    s_waitcnt lgkmcnt(0)
    v_max3_f32 v12, v16, v17, v18
    v_max_f32 v12, v12, v19
    """)
    for r in range(8): e(f"v_sub_f32 v{56+r}, v{56+r}, v12")
    for r in range(8): e(f"v_exp_f32 v{56+r}, v{56+r}")
    e("s_nop 0")
    for r in range(4): e(f"v_cvt_pk_bf16_f32 v{16+r}, v{56+2*r}, v{57+2*r}")
    e(f"""
    ds_write_b128 v219, v[16:19]
    s_cmp_eq_u32 s{S_W}, 0
    s_cbranch_scc0 L_bq_nom
    s_mov_b64 exec, 0xff
    ds_write_b32 v218, v12 offset:128
    s_mov_b64 exec, -1
    """)
    e.label("L_bq_nom")
    e("s_waitcnt lgkmcnt(0)\ns_barrier")
    stamp(6)
    e(f"""
    v_mov_b32 v105, s{S_TAG}
    v_mov_b32 v107, s{S_TAG}
    v_add_u32 v192, 0x80000, v222
    v_add_u32 v195, 0x10000, v48
    v_and_b32 v196, 3, v1
    s_mov_b32 s66, 0x00010001
    s_mov_b32 s67, {F32(LSB_DEBIAS)}
    s_mov_b32 s64, 0xaaaaaaaa
    s_mov_b32 s65, 0xaaaaaaaa
    """)
    e("s_barrier")
    for t in range(2):
        for ks in range(4):
            r = 128 + 16 * t + 4 * ks
            e(f"ds_read_b64_tr_b16 v[{r}:{r+1}], v{220+t} offset:{8192*ks}")
            e(f"ds_read_b64_tr_b16 v[{r+2}:{r+3}], v{220+t} offset:{8192*ks+1024}")
    tagpat(198, 196, 202)
    if cfg.h3sleep: e(f"s_sleep {cfg.h3sleep}")
    stamp(2)
    def datachk():
        for i in range(8):
            e(f"v_xor_b32 v{80+i}, v{80+i}, v{198+(i&3)}")
        e("v_or3_b32 v4, v80, v81, v82\nv_or3_b32 v5, v83, v84, v85\nv_or3_b32 v4, v86, v87, v4\nv_or_b32 v4, v4, v5\nv_and_b32 v4, s66, v4")
    e.label("L_h3")
    e(f"""
    global_load_dwordx4 v[64:67], v48, {WS} sc1
    global_load_dwordx4 v[68:71], v195, {WS} sc1
    global_load_dwordx4 v[80:83], v222, {WS} sc1
    global_load_dwordx4 v[84:87], v192, {WS} sc1
    s_waitcnt vmcnt(2)
    """)
    tagchk(4, [65, 67, 69, 71])
    e("v_cmp_ne_u32 vcc, 0, v4\ns_cbranch_vccz L_h3_st\ns_waitcnt vmcnt(0)")
    if cfg.h3psleep: e(f"s_sleep {cfg.h3psleep}")
    spin_back("L_h3")
    e.label("L_h3_st")
    stamp(3)
    e("""
    v_max_f32 v4, v64, v68
    s_nop 1
    v_max_f32_dpp v4, v4, v4 row_ror:4 row_mask:0xf bank_mask:0xf
    s_nop 1
    v_max_f32_dpp v4, v4, v4 row_ror:8 row_mask:0xf bank_mask:0xf
    s_nop 0
    v_mov_b32 v5, v4
    s_nop 1
    v_permlane16_swap_b32 v4, v5
    v_max_f32 v4, v4, v5
    v_mov_b32 v5, v4
    s_nop 1
    v_permlane32_swap_b32 v4, v5
    v_max_f32 v4, v4, v5
    v_sub_f32 v64, v64, v4
    v_sub_f32 v68, v68, v4
    v_exp_f32 v64, v64
    v_exp_f32 v68, v68
    s_nop 0
    v_mul_f32 v28, v64, v66
    v_fmac_f32 v28, v68, v70
    s_nop 1
    v_add_f32_dpp v28, v28, v28 row_ror:4 row_mask:0xf bank_mask:0xf
    s_nop 1
    v_add_f32_dpp v28, v28, v28 row_ror:8 row_mask:0xf bank_mask:0xf
    s_nop 0
    v_mov_b32 v29, v28
    s_nop 1
    v_permlane16_swap_b32 v28, v29
    v_add_f32 v28, v28, v29
    v_mov_b32 v29, v28
    s_nop 1
    v_permlane32_swap_b32 v28, v29
    v_add_f32 v28, v28, v29
    v_rcp_f32 v28, v28
    v_mul_f32 v64, s67, v64
    v_mul_f32 v68, s67, v68
    v_mul_f32 v64, v64, v28
    v_mul_f32 v68, v68, v28
    s_waitcnt vmcnt(0)
    s_branch L_h3_dchk
    """)
    e.label("L_h3d")
    e(f"""
    global_load_dwordx4 v[80:83], v222, {WS} sc1
    global_load_dwordx4 v[84:87], v192, {WS} sc1
    s_waitcnt vmcnt(0)
    """)
    e.label("L_h3_dchk")
    datachk()
    poll_tail("L_h3d", "L_h3_done", 4)
    stamp(8)
    for i in range(4):
        e(f"v_lshlrev_b32 v{12+2*i}, 16, v{80+i}\nv_and_b32 v{13+2*i}, 0xffff0000, v{80+i}")
    for i in range(4):
        e(f"v_lshlrev_b32 v{20+2*i}, 16, v{84+i}\nv_and_b32 v{21+2*i}, 0xffff0000, v{84+i}")
        e(f"v_pk_mul_f32 v[{12+2*i}:{13+2*i}], v[{12+2*i}:{13+2*i}], v[64:65] op_sel_hi:[1,0]")
    for i in range(4):
        e(f"v_pk_fma_f32 v[{12+2*i}:{13+2*i}], v[{20+2*i}:{21+2*i}], v[68:69], v[{12+2*i}:{13+2*i}] op_sel_hi:[1,0,1]")
    e("s_nop 0")
    for i in range(4):
        e(f"v_add_f32_dpp v{28+i}, v{12+i}, v{12+i} row_ror:8 row_mask:0xf bank_mask:0x3")
        e(f"v_add_f32_dpp v{28+i}, v{16+i}, v{16+i} row_ror:8 row_mask:0xf bank_mask:0xc")
    e("s_nop 0")
    for i in range(2):
        e(f"v_add_f32_dpp v{12+i}, v{28+i}, v{28+i} row_ror:12 row_mask:0xf bank_mask:0x5")
        e(f"v_add_f32_dpp v{12+i}, v{30+i}, v{30+i} row_ror:4 row_mask:0xf bank_mask:0xa")
    e("""
    s_nop 1
    v_permlane16_swap_b32 v12, v13
    v_add_f32 v12, v12, v13
    v_mov_b32 v13, v12
    s_nop 1
    v_permlane32_swap_b32 v12, v13
    s_mov_b64 exec, 0xffffffff
    v_add_f32 v12, v12, v13
    v_cvt_pk_bf16_f32 v12, v12, v12
    ds_write_b16 v223, v12
    s_mov_b64 exec, -1
    s_waitcnt lgkmcnt(0)
    s_barrier
    """)
    for ks in range(4):
        e(f"ds_read_b128 v[{112+4*ks}:{115+4*ks}], v49 offset:{64*ks}")
    for ks in range(4):
        e(f"s_waitcnt lgkmcnt({3-ks})")
        for t in range(2):
            acc = f"v[{96+4*t}:{99+4*t}]"
            c = "0" if ks == 0 else acc
            r = 128 + 16 * t + 4 * ks
            e(f"v_mfma_f32_16x16x32_bf16 {acc}, v[{r}:{r+3}], v[{112+4*ks}:{115+4*ks}], {c}")
    e("s_mov_b32 exec_lo, 0x00030003\ns_mov_b32 exec_hi, 0x00030003")
    e.nop(6)
    for r in range(4):
        e(f"v_cndmask_b32 v{96+r}, v{96+r}, v{100+r}, s[64:65]")
    e("""
    v_cvt_pk_bf16_f32 v104, v96, v97
    v_cvt_pk_bf16_f32 v106, v98, v99
    """)
    if cfg.fast4 or cfg.xfast: e(f"global_store_dwordx4 v51, v[104:107], {WS}")
    e(f"global_store_dwordx4 v50, v[104:107], {WS} sc1\ns_mov_b64 exec, -1")
    stamp(9)
    e("s_branch L_b_tail")
    e.label("L_bp_prep")
    e(f"""
    v_lshl_add_u32 v58, v2, 2, v62
    v_and_b32 v13, 7, v58
    v_lshlrev_b32 v13, 1, v13
    v_lshlrev_b32 v58, 10, v58
    v_add_u32 v58, v58, v59
    s_and_b32 s66, s{S_W}, 3
    s_lshl_b32 s3, s66, 4
    v_add_u32 v12, s3, v63
    v_xor_b32 v12, v12, v13
    v_lshl_add_u32 v8, v12, 4, v58
    """)
    for tt in range(1, 8):
        e(f"v_xor_b32 v{8+tt}, {32*tt}, v8")
    e(f"""
    v_lshlrev_b32 v16, 4, v1
    v_add_u32 v16, {L_PEX}, v16
    s_mov_b32 s{SRD_A}, s{P_WUV}
    s_mov_b32 s{SRD_A+1}, s{P_WUV+1}
    s_mov_b32 s{SRD_A+2}, 4194304
    s_mov_b32 s{SRD_A+3}, 0x20000
    s_lshl_b32 s3, s{S_W}, 2
    s_and_b32 s3, s3, 8
    v_lshlrev_b32 v19, 1, v2
    v_xor_b32 v19, v19, v3
    v_xor_b32 v19, s3, v19
    v_lshlrev_b32 v19, 4, v19
    v_lshl_add_u32 v19, v2, 13, v19
    s_lshl_b32 s20, s{S_J}, 5
    s_add_u32 s20, s20, s66
    s_lshl_b32 s20, s20, 15
    s_lshl_b32 s21, s{S_H}, 8
    s_add_u32 s20, s20, s21
    s_lshl_b32 s21, s66, 10
    v_lshl_add_u32 v56, v1, 4, s21
    s_lshl_b32 s3, s{S_CH}, 15
    s_lshr_b32 s64, s{S_I}, 2
    s_lshl_b32 s65, s64, 13
    s_add_u32 s3, s3, s65
    s_lshl_b32 s65, s66, 8
    s_add_u32 s3, s3, s65
    s_add_u32 s3, s3, {WS_PART}
    v_and_b32 v17, 7, v3
    v_lshlrev_b32 v17, 10, v17
    v_lshl_add_u32 v17, v2, 4, v17
    v_lshrrev_b32 v20, 3, v3
    v_lshl_add_u32 v17, v20, 6, v17
    v_add_u32 v17, s3, v17
    s_lshl_b32 s64, s64, 10
    s_lshl_b32 s65, s{S_CH}, 12
    s_add_u32 s64, s64, s65
    s_add_u32 s64, s64, {WS_ST}
    v_lshrrev_b32 v18, 2, v1
    v_lshlrev_b32 v18, 7, v18
    v_and_b32 v20, 3, v1
    v_lshl_add_u32 v18, v20, 4, v18
    v_add_u32 v18, s64, v18
    v_mov_b32 v36, 0x3f803f80
    v_mov_b32 v37, 0x3f803f80
    v_mov_b32 v38, 0x3f803f80
    v_mov_b32 v39, 0x3f803f80
    s_waitcnt lgkmcnt(0)
    """)
    mk_tag()
    e("v_and_b32 v50, 3, v1\ns_mov_b32 s67, 0x00010001")
    tagpat(44, 50, 48)
    e(f"v_mov_b32 v53, s{S_TAG}\nv_mov_b32 v55, s{S_TAG}")
    tagpat(57, 2, 61)
    e(f"s_waitcnt vmcnt(0)" + ("" if cfg.h2init else f"\nglobal_load_dwordx4 v[40:43], v5, {WS} sc1"))
    e("s_barrier")
    stamp(14)
    if cfg.xfast:
        e(f"""
        s_cmp_eq_u32 s{S_W}, 7
        s_cbranch_scc0 L_noxid
        s_getreg_b32 s3, hwreg(HW_REG_XCC_ID, 0, 4)
        v_mov_b32 v224, s3
        v_mov_b32 v225, s{S_TAG}
        v_mov_b32 v226, s3
        v_mov_b32 v227, s{S_TAG}
        s_and_b32 s3, s2, 127
        s_lshl_b32 s3, s3, 7
        s_add_u32 s3, s3, {WS_XID}
        v_lshl_add_u32 v228, v1, 4, s3
        s_mov_b64 exec, 0xf
        global_store_dwordx4 v228, v[224:227], {WS} sc1
        s_mov_b64 exec, -1
        """)
        e.label("L_noxid")
    for half in range(2):
        for tt in range(8):
            for k2 in range(2):
                ks = 2 * half + k2
                for eb in range(2):
                    r = 64 + 16 * tt + 4 * ks + 2 * eb
                    e(f"ds_read_b64_tr_b16 v[{r}:{r+1}], v{8+tt} offset:{32768*k2+16384*eb}")
        if half == 0:
            for tt in range(8):
                e(f"v_add_u32 v{8+tt}, 0x10000, v{8+tt}")
    h2_poll("p")
    for ii in range(8):
        e(f"""
        s_mov_b32 m0, s21
        s_add_u32 s21, s21, 4096
        buffer_load_dwordx4 v19, s[{SRD_A}:{SRD_A+3}], s20 offen{NT} lds
        s_add_u32 s20, s20, {4*4*8192}
        """)
    e("s_barrier\ns_barrier")
    for ks in range(4):
        e(f"ds_read_b128 v[{20+4*ks}:{23+4*ks}], v16 offset:{1024*ks}")
    e(f"""
    v_bfe_u32 v5, v1, 2, 3
    v_lshlrev_b32 v4, 4, v5
    v_add_u32 v4, {L_MX+128}, v4
    v_lshlrev_b32 v5, 2, v5
    s_mov_b32 s64, 0xff00ff00
    s_mov_b32 s65, 0xff00ff00
    """)
    stamp(6)
    for pr in range(4):
        e(f"v_mov_b32 v{37+0}, v{37}") if False else None
    def epi(sg):
        g = 64 + 64 * sg
        out = []
        for t in range(4):
            a0 = 192 + 16 * sg + 4 * t
            out.append(f"v_cvt_pk_bf16_f32 v{44+2*t}, v{a0}, v{a0+1}")
            out.append(f"v_cvt_pk_bf16_f32 v{45+2*t}, v{a0+2}, v{a0+3}")
        for i in range(4):
            out.append(f"v_cndmask_b32 v{g+i}, v{44+i}, v{48+i}, s[64:65]")
        for i in range(4):
            out.append(f"v_and_or_b32 v{g+i}, v{g+i}, s66, v{57+i}")
        out.append(f"global_store_dwordx4 v17, v[{g}:{g+3}], {WS} offset:{128*sg} sc1")
        return out
    e("s_mov_b32 s66, 0xfffefffe")
    if cfg.prio: e("s_setprio 3")
    ep0 = epi(0)
    for sg in range(2):
        k = 0
        for ks in range(4):
            for t in range(4):
                tt = 4 * sg + t
                acc = f"v[{192+4*tt}:{195+4*tt}]"
                c = "0" if ks == 0 else acc
                r = 64 + 16 * tt + 4 * ks
                if sg == 0 and t == 0: e(f"s_waitcnt lgkmcnt({3-ks})")
                e(f"v_mfma_f32_16x16x32_bf16 {acc}, v[{r}:{r+3}], v[{20+4*ks}:{23+4*ks}], {c}")
                k += 1
                if sg == 1 and k >= 8:
                    for _ in range(2):
                        if ep0: e(ep0.pop(0))
        if sg == 1:
            while ep0: e(ep0.pop(0))
    e(f"s_cmp_eq_u32 s{S_W}, 4\ns_cbranch_scc0 L_b_nol")
    e("ds_read_b32 v52, v4")
    for ks in range(4):
        c = "0" if ks == 0 else "v[40:43]"
        e(f"v_mfma_f32_16x16x32_bf16 v[40:43], v[36:39], v[{20+4*ks}:{23+4*ks}], {c}")
    e.label("L_b_nol")
    e.nop(6)
    for ins in epi(1): e(ins)
    e(f"""
    s_cmp_eq_u32 s{S_W}, 4
    s_cbranch_scc0 L_b_nostat
    ds_bpermute_b32 v54, v5, v40
    s_mov_b64 exec, 0xffffffff
    s_waitcnt lgkmcnt(0)
    global_store_dwordx4 v18, v[52:55], {WS} sc1
    s_mov_b64 exec, -1
    """)
    stamp(7)
    e("s_waitcnt vmcnt(3)\ns_branch L_b_st2")
    e.label("L_b_nostat")
    stamp(7)
    e("s_waitcnt vmcnt(2)")
    e.label("L_b_st2")
    e("s_barrier\ns_barrier")
    e.label("L_b_tail")
    e("s_barrier")
    s7_loads()
    e("s_waitcnt vmcnt(0)")
    s7_prep()
    if cfg.b5sleep: e(f"s_sleep {cfg.b5sleep}")

    e.label("L_S7")
    if cfg.s7warm:
        e("s_mov_b32 s7, 0")
    e(f"s_cmp_lt_u32 s{S_W}, 5\ns_cbranch_scc0 L_s7_bar")
    e("s_mov_b32 s66, 0x00010001")
    e.label("L_h5")
    e(f"""
    global_load_dwordx4 v[40:43], v244, {WS} sc1
    global_load_dwordx4 v[44:47], v245, {WS} sc1
    s_waitcnt vmcnt(0)
    """)
    for i in range(8):
        e(f"v_xor_b32 v{40+i}, v{40+i}, v{10+(i&3)}")
    e("v_or3_b32 v56, v40, v41, v42\nv_or3_b32 v57, v43, v44, v45\nv_or3_b32 v56, v46, v47, v56\nv_or_b32 v56, v56, v57\nv_and_b32 v56, s66, v56")
    poll_tail("L_h5", "L_h5_done", 56, cfg.h5sleep)
    stamp(12)
    if cfg.earlyepoch:
        e(f"""
        s_or_b32 s3, s2, s{S_W}
        s_cmp_eq_u32 s3, 0
        s_cbranch_scc0 L_h5_noep
        v_lshlrev_b32 v48, 2, v1
        v_mov_b32 v49, s{S_TAG}
        s_mov_b64 exec, 0xffff
        global_store_dword v48, v49, {WS} sc1
        s_mov_b64 exec, -1
        """)
        e.label("L_h5_noep")
    for i in range(4):
        e(f"v_lshlrev_b32 v{80+2*i}, 16, v{40+i}\nv_and_b32 v{81+2*i}, 0xffff0000, v{40+i}")
    for i in range(4):
        e(f"v_lshlrev_b32 v{88+2*i}, 16, v{44+i}\nv_and_b32 v{89+2*i}, 0xffff0000, v{44+i}")
        e(f"v_pk_add_f32 v[{80+2*i}:{81+2*i}], v[{80+2*i}:{81+2*i}], v[{88+2*i}:{89+2*i}]")
    e("s_nop 0")
    for i in range(4): e(f"v_permlane16_swap_b32 v{80+i}, v{84+i}")
    for i in range(4): e(f"v_add_f32 v{80+i}, v{80+i}, v{84+i}")
    e(f"""
    s_nop 0
    v_permlane32_swap_b32 v80, v82
    v_permlane32_swap_b32 v81, v83
    v_add_f32 v50, v80, v82
    v_add_f32 v51, v81, v83
    v_pk_add_f32 v[50:51], v[50:51], v[58:59]
    ds_write_b64 v248, v[50:51]
    v_add_f32 v52, v50, v51
    v_mul_f32 v53, v50, v50
    v_fmac_f32 v53, v51, v51
    """)
    dpp_reduce([52, 53])
    e(f"""
    s_mov_b32 exec_lo, 0
    s_mov_b32 exec_hi, 0x80000000
    ds_write_b64 v68, v[52:53]
    s_mov_b64 exec, -1
    """)
    e.label("L_s7_bar")
    e(f"""
    s_waitcnt lgkmcnt(0)
    s_barrier
    """)
    if cfg.s7stamps: stamp(1)
    e(f"""
    s_cmp_lt_u32 s2, {216 if cfg.outmap else 214}
    s_cbranch_scc0 L_fin
    """)
    e.label("L_s7_body")
    e(f"""
    ds_read_b128 v[40:43], v62
    ds_read_b128 v[44:47], v62 offset:16
    ds_read_b64 v[48:49], v62 offset:32
    ds_read_b32 v50, v63
    ds_read_b32 v52, v63 offset:4
    ds_read_b32 v54, v63 offset:8
    s_waitcnt lgkmcnt(3)
    v_pk_add_f32 v[40:41], v[40:41], v[42:43]
    v_pk_add_f32 v[44:45], v[44:45], v[46:47]
    v_pk_add_f32 v[40:41], v[40:41], v[48:49]
    v_pk_add_f32 v[40:41], v[40:41], v[44:45]
    v_pk_mul_f32 v[40:41], v[40:41], v[60:61] op_sel_hi:[1,0]
    v_fma_f32 v41, -v40, v40, v41
    v_max_f32 v41, 0, v41
    v_fma_f32 v42, v41, v61, v65
    s_waitcnt lgkmcnt(0)
    v_rsq_f32 v42, v42
    v_sub_f32 v70, v50, v40
    v_sub_f32 v72, v52, v40
    v_sub_f32 v74, v54, v40
    v_mul_f32 v70, v70, v42
    v_mul_f32 v72, v72, v42
    v_mul_f32 v74, v74, v42
    """)
    if cfg.s7stamps: stamp(2)
    combos = [(r, o) for o in range(3) for r in range(2)]
    for c, (r, o) in enumerate(combos):
        e(f"v_pk_fma_f32 v[{80+2*c}:{81+2*c}], v[{70+2*o}:{71+2*o}], v[{232+2*r}:{233+2*r}], v[{236+2*r}:{237+2*r}] op_sel_hi:[0,1,1]")
    for c in range(6):
        e(f"v_pk_mul_f32 v[{92+2*c}:{93+2*c}], v[{80+2*c}:{81+2*c}], v[{80+2*c}:{81+2*c}]")
    for c in range(6):
        e(f"v_pk_fma_f32 v[{92+2*c}:{93+2*c}], v[{92+2*c}:{93+2*c}], v[66:67], v[64:65] op_sel_hi:[1,0,0]")
    for c in range(6):
        e(f"v_pk_mul_f32 v[{92+2*c}:{93+2*c}], v[{92+2*c}:{93+2*c}], v[{80+2*c}:{81+2*c}]")
    for c in range(12):
        e(f"v_exp_f32 v{92+c}, v{92+c}")
    for c in range(6):
        e(f"v_pk_add_f32 v[{92+2*c}:{93+2*c}], v[{92+2*c}:{93+2*c}], 1.0 op_sel_hi:[1,0]")
    for c in range(12):
        e(f"v_rcp_f32 v{92+c}, v{92+c}")
    for c in range(6):
        e(f"v_pk_mul_f32 v[{80+2*c}:{81+2*c}], v[{80+2*c}:{81+2*c}], v[{92+2*c}:{93+2*c}]")
    for o in range(3):
        e(f"v_pk_mul_f32 v[{104+2*o}:{105+2*o}], v[{80+4*o}:{81+4*o}], v[240:241]")
    for o in range(3):
        e(f"v_pk_fma_f32 v[{104+2*o}:{105+2*o}], v[{82+4*o}:{83+4*o}], v[242:243], v[{104+2*o}:{105+2*o}]")
    if cfg.s7stamps: stamp(3)
    e("v_add_f32 v110, v104, v105\nv_add_f32 v111, v106, v107\nv_add_f32 v112, v108, v109")
    dpp_reduce([110, 111, 112])
    e(f"""
    s_mov_b32 exec_lo, 0
    s_mov_b32 exec_hi, 0x80000000
    ds_write_b128 v69, v[110:113]
    s_mov_b64 exec, -1
    """)
    if cfg.s7warm:
        e("s_cmp_eq_u32 s7, 1\ns_cbranch_scc1 L_s7_warm_ret")
    e(f"""
    {"s_mul_i32 s3, s5, 80" if cfg.outmap else "s_mov_b32 s3, 560"}
    s_add_u32 s3, s3, 80
    v_cmp_gt_u32 vcc, s3, v8
    v_lshlrev_b32 v8, 1, v8
    s_waitcnt lgkmcnt(0)
    s_barrier
    """)
    if cfg.s7stamps: stamp(4)
    e(f"""
    s_cmp_eq_u32 s{S_W}, 0
    s_cbranch_scc0 L_fin
    s_and_b64 vcc, vcc, 7
    s_and_saveexec_b64 s[64:65], vcc
    s_cbranch_execz L_fin0
    """)
    for w in range(8):
        e(f"ds_read_b32 v{40+w}, v6 offset:{16*w}")
    e(f"""
    ds_read_b32 v48, v7
    s_waitcnt lgkmcnt(0)
    v_add_f32 v40, v40, v41
    v_add_f32 v42, v42, v43
    v_add_f32 v44, v44, v45
    v_add_f32 v46, v46, v47
    v_add_f32 v48, v48, v9
    v_add_f32 v40, v40, v42
    v_add_f32 v44, v44, v46
    v_add_f32 v40, v40, v48
    v_add_f32 v40, v40, v44
    v_cvt_pk_bf16_f32 v40, v40, v40
    global_store_short v8, v40, s[{P_OUT}:{P_OUT+1}]
    """)
    e.label("L_fin0")
    e("s_mov_b64 exec, s[64:65]")
    e.label("L_fin")
    stamp(13)
    e(f"""
    s_cmp_eq_u32 s2, {0 if not (cfg.noepoch or cfg.earlyepoch) else 100000}
    s_cbranch_scc0 L_noepoch
    s_cmp_eq_u32 s{S_W}, 0
    s_cbranch_scc0 L_noepoch
    v_lshlrev_b32 v6, 2, v1
    v_mov_b32 v7, s{S_TAG}
    s_mov_b64 exec, 0xffff
    global_store_dword v6, v7, {WS} sc1
    s_mov_b64 exec, -1
    """)
    e.label("L_noepoch")
    if cfg.stamps:
        e(f"""
        s_waitcnt lgkmcnt(0)
        s_lshl_b32 s3, s2, 3
        s_add_u32 s3, s3, s{S_W}
        s_lshl_b32 s3, s3, 6
        s_add_u32 s3, s3, {WS_DBG}
        v_mov_b32 v6, s3
        s_mov_b64 exec, 1
        """)
        for q in range(4):
            for k in range(4):
                e(f"v_mov_b32 v{8+k}, s{S_STAMP+2*min(4*q+k,14)}")
            e(f"global_store_dwordx4 v6, v[8:11], {WS} offset:{16*q}")
            e.nop(2)
        e("s_mov_b64 exec, -1")
    e.label("L_exit")
    e("s_endpgm")
    if cfg.s7warm:
        e.label("L_s7_warm_ret")
        e("s_waitcnt lgkmcnt(0)\ns_setpc_b64 s[68:69]")
    e.label("L_fail")
    if cfg.stamps: e("s_mov_b64 exec, -1\ns_branch L_noepoch")
    e("s_endpgm")
    e.label("L_end")
    return e

def render(cfg):
    e = gen(cfg)
    body = e.text()
    hdr = open("cdna_kernels/" + NAME[:-7] + ".s.ref").read().split("; Override launch geometry")[0]
    out = hdr + f"; @launch grid=(256,1,1) block=(512,1,1) lds={LDS_BYTES}\n"
    out += f""".amdgcn_target "amdgcn-amd-amdhsa--gfx950"
.text
.globl {NAME}
.p2align 8
.type {NAME},@function
{NAME}:
{body}.section .rodata,"a"
.p2align 6
.amdhsa_kernel {NAME}
  .amdhsa_next_free_vgpr 256
  .amdhsa_next_free_sgpr 102
  .amdhsa_accum_offset 256
  .amdhsa_group_segment_fixed_size 0
  .amdhsa_kernarg_size 112
  .amdhsa_user_sgpr_count 2
  .amdhsa_user_sgpr_kernarg_segment_ptr 1
  .amdhsa_system_sgpr_workgroup_id_x 1
.end_amdhsa_kernel
"""
    return out, body

if __name__ == "__main__":
    cfg = Cfg()
    outp = sys.argv[1] if len(sys.argv) > 1 else "cdna_kernels/" + NAME[:-7] + ".s"
    for a in sys.argv[2:]:
        k, v = a.split("=")
        setattr(cfg, k, int(v))
    out, body = render(cfg)
    probs = check_hazards(body) + check_kernarg_race(body)
    for p in probs: print("HAZARD", p)
    open(outp, "w").write(out)
    print("wrote", outp, len(out), "bytes;", len(body.splitlines()), "lines")
```

```python
import sys, struct
from asmlib import Emit, check_hazards, check_kernarg_race

NAME = "sequential_preLN__compressed_kv_cla__mixer_token_mlp__decode_kernel"

WS_Q1, WS_Q1F, WS_QA, WS_CTX, WS_OP, WS_CTXF, WS_ST, WS_PART, WS_DBG = 0x10000, 0x20000, 0x50000, 0x60000, 0x70000, 0x90000, 0xC0000, 0x100000, 0x400000
WS_XID = 0x30000
L_CKV = 0
L_WO = 0
L_WQ = 32768
L_WUK = 73728
L_QAS = 131072
QAS_STRIDE = 1056
L_PEX = L_QAS + 8 * QAS_STRIDE
L_MX = L_PEX + 4096
L_LNS = 143872
L_QP = 145152
QP_STRIDE = 288
L_CTXS = 146304
L_BNC = 146560
L_ORED = 147584
L_HS = 149632
L_ST7 = 152192
L_YRED = 152256
LDS_BYTES = 152384

S_W, S_X, S_I, S_ISB = 4, 5, 6, 7
P_X, P_CKV, P_WQ, P_WUK, P_WUV, P_WO, P_W1, P_B1, P_W2, P_B2, P_OUT, P_DBG, P_WS = 8, 10, 12, 14, 16, 18, 22, 24, 26, 28, 30, 32, 34
S_TAG, S_H, S_J, S_CH = 36, 37, 38, 39
SRD_0, SRD_A, SRD_WO, SRD_W1, SRD_B1, SRD_W2 = 40, 44, 48, 52, 56, 60
S_SPIN = 100
S_STAMP = 70

def F32(x): return "0x%08x" % struct.unpack("<I", struct.pack("<f", x))[0]
WS = f"s[{P_WS}:{P_WS+1}]"

LSB_DEBIAS = 1.0 + 0.5 * 2.0**-7 * 0.7213475

class Cfg:
    stamps = 0
    nt = 1
    spin = 1 << 17
    h3sleep = 13
    fast1 = 0
    fast4 = 0
    codepf = 16
    bdelay = 0
    exp_nob = 0
    s7warm = 0
    qstat = 1
    ff1 = 10
    h2init = 0
    xfast = 1
    prio = 0
    ukdelay = 0
    touchslow = 0
    spreadk = 0
    spreadq = 0
    earlyepoch = 1
    tlbw = 0
    tlbo = 0
    tlbk = 0
    selftouch = 0
    lsb3 = 1
    ukearly = 0
    outmap = 1
    noepoch = 0
    s7stamps = 0
    touch = 0
    uknt = 1
    tsleep = 0
    planeorder = 1
    hperm = 0
    h3psleep = 0
    b5sleep = 40
    f5sleep = 14
    n5sleep = 40
    ckvnt = 0
    ukbar = 1
    bsleep = 8
    uvpf = 1
    h5sleep = 0
    h4sleep = 0
    h2sleep = 0
    exp_nowuv = 0

def gen(cfg):
    e = Emit()
    NT = " nt" if cfg.nt else ""
    def stamp(k):
        if cfg.stamps:
            e(f"s_memrealtime s[{S_STAMP+2*k}:{S_STAMP+2*k+1}]")
    def dpp_reduce(regs, op="v_add_f32"):
        steps = ["row_shr:1 row_mask:0xf bank_mask:0xf bound_ctrl:0", "row_shr:2 row_mask:0xf bank_mask:0xf bound_ctrl:0",
                 "row_shr:4 row_mask:0xf bank_mask:0xf bound_ctrl:0", "row_shr:8 row_mask:0xf bank_mask:0xf bound_ctrl:0",
                 "row_bcast:15 row_mask:0xa bank_mask:0xf", "row_bcast:31 row_mask:0xc bank_mask:0xf"]
        pad = max(0, 2 - (len(regs) - 1))
        e.nop(2)
        for k, st in enumerate(steps):
            for r in regs:
                e(f"{op}_dpp v{r}, v{r}, v{r} {st}")
            if k < len(steps) - 1 and pad: e.nop(pad)
    def tagchk(acc, tags):
        for k, t in enumerate(tags):
            if k == 0:
                e(f"v_xor_b32 v{acc}, s{S_TAG}, v{t}")
            else:
                e(f"v_bitop3_b32 v{acc}, v{acc}, v{t}, s{S_TAG} bitop3:0xf6")
    def spin_back(lbl_loop):
        e(f"s_sub_u32 s{S_SPIN}, s{S_SPIN}, 1")
        e(f"s_cbranch_scc0 {lbl_loop}")
        e("s_branch L_fail")
    def poll_tail(lbl_loop, lbl_done, acc, sleep=0):
        e(f"v_cmp_ne_u32 vcc, 0, v{acc}")
        e(f"s_cbranch_vccz {lbl_done}")
        if sleep: e(f"s_sleep {sleep}")
        spin_back(lbl_loop)
        e.label(lbl_done)
    def tr_common():
        e("""
        v_bfe_u32 v62, v1, 2, 2
        v_bfe_u32 v63, v1, 1, 1
        v_and_b32 v59, 1, v1
        v_lshlrev_b32 v59, 3, v59
        """)
    def tr256_addr(dst, tmp):
        e(f"""
        v_and_b32 v{dst}, 1, v2
        v_lshl_add_u32 v{dst}, v{dst}, 2, v62
        v_lshlrev_b32 v{dst}, 1, v{dst}
        s_lshl_b32 s3, s{S_W}, 1
        v_add_u32 v{tmp}, s3, v63
        v_xor_b32 v{dst}, v{dst}, v{tmp}
        v_lshl_add_u32 v{dst}, v{dst}, 4, v59
        v_lshl_add_u32 v{tmp}, v2, 3, v62
        v_lshl_add_u32 v{dst}, v{tmp}, 8, v{dst}
        """)
    def tagpat(dst, vsel, tmp):
        e(f"v_lshlrev_b32 v{tmp}, 3, v{vsel}")
        e(f"v_lshrrev_b32 v{tmp}, v{tmp}, s{S_TAG}") if False else e(f"v_mov_b32 v{tmp+1}, s{S_TAG}\nv_lshrrev_b32 v{tmp}, v{tmp}, v{tmp+1}")
        for i in range(4):
            e(f"v_bfe_u32 v{dst+i}, v{tmp}, {2*i}, 1")
            e(f"v_bfe_u32 v{tmp+1}, v{tmp}, {2*i+1}, 1")
            e(f"v_lshl_or_b32 v{dst+i}, v{tmp+1}, 16, v{dst+i}")
    def mk_tag():
        e(f"s_mul_i32 s{S_TAG}, s{S_TAG}, 1664525\ns_add_u32 s{S_TAG}, s{S_TAG}, 1013904223")
    def s7_loads():
        e(f"""
        s_mov_b32 s{SRD_W1}, s{P_W1}
        s_mov_b32 s{SRD_W1+1}, s{P_W1+1}
        s_mov_b32 s{SRD_W1+2}, 3456
        s_mov_b32 s{SRD_W1+3}, 0x20000
        s_mov_b32 s{SRD_B1}, s{P_B1}
        s_mov_b32 s{SRD_B1+1}, s{P_B1+1}
        s_mov_b32 s{SRD_B1+2}, 3456
        s_mov_b32 s{SRD_B1+3}, 0x20000
        s_mov_b32 s{SRD_W2}, s{P_W2}
        s_mov_b32 s{SRD_W2+1}, s{P_W2+1}
        s_mov_b32 s{SRD_W2+2}, 3456
        s_mov_b32 s{SRD_W2+3}, 0x20000
        s_lshl_b32 s3, s{S_W}, 8
        v_lshl_add_u32 v4, v1, 2, s3
        buffer_load_dword v224, v4, s[{SRD_W1}:{SRD_W1+3}], 0 offen
        buffer_load_dword v225, v4, s[{SRD_W1}:{SRD_W1+3}], 0 offen offset:2048
        buffer_load_dword v226, v4, s[{SRD_B1}:{SRD_B1+3}], 0 offen
        buffer_load_dword v227, v4, s[{SRD_B1}:{SRD_B1+3}], 0 offen offset:2048
        buffer_load_dword v228, v4, s[{SRD_W2}:{SRD_W2+3}], 0 offen
        buffer_load_dword v229, v4, s[{SRD_W2}:{SRD_W2+3}], 0 offen offset:2048
        v_mov_b32 v4, 0
        global_load_ushort v231, v4, s[{P_B2}:{P_B2+1}]
        {"global_load_dword v138, v4, s[%d:%d]" % (P_OUT, P_OUT+1) if cfg.tlbo else ""}
        s_min_u32 s3, s{S_W}, 4
        s_lshl_b32 s3, s3, 8
        v_lshlrev_b32 v4, 4, v3
        v_and_b32 v230, 1, v2
        v_lshl_add_u32 v4, v230, 3, v4
        v_lshrrev_b32 v230, 1, v2
        v_lshl_add_u32 v4, v230, 2, v4
        v_add_u32 v4, s3, v4
        global_load_dword v230, v4, s[{P_X}:{P_X+1}]
        """)
    OUTIDX = ("s_lshr_b32 s101, s2, 3\ns_mul_i32 s101, s101, 3\ns_mul_i32 s3, s5, 80\ns_add_u32 s101, s101, s3" if cfg.outmap else "s_mul_i32 s101, s2, 3")
    def s7_prep():
        for k, (raw, dst) in enumerate([(224, 232), (225, 234), (226, 236), (227, 238), (228, 240), (229, 242)]):
            e(f"v_lshlrev_b32 v{dst}, 16, v{raw}\nv_and_b32 v{dst+1}, 0xffff0000, v{raw}")
        e(f"""
        v_mul_u32_u24 v244, 1280, v2
        v_lshl_add_u32 v244, v3, 4, v244
        s_lshl_b32 s3, s{S_W}, 8
        s_add_u32 s64, s3, {WS_OP}
        v_add_u32 v244, s64, v244
        v_add_u32 v245, 5120, v244
        s_lshl_b32 s3, s{S_W}, 9
        s_add_u32 s3, s3, {L_HS}
        v_lshlrev_b32 v248, 5, v3
        v_and_b32 v57, 1, v2
        v_lshl_add_u32 v248, v57, 4, v248
        v_lshrrev_b32 v57, 1, v2
        v_lshl_add_u32 v248, v57, 3, v248
        v_add_u32 v248, s3, v248
        v_lshlrev_b32 v58, 16, v230
        v_and_b32 v59, 0xffff0000, v230
        v_mov_b32 v60, {F32(1.0/640)}
        v_mov_b32 v61, {F32(1.0 + 1e-5)}
        v_mov_b32 v65, {F32(1e-10)}
        v_mov_b32 v64, {F32(-2.0*0.7978845608028654*1.4426950408889634)}
        v_mov_b32 v66, {F32(-2.0*0.7978845608028654*1.4426950408889634*0.044715)}
        v_mov_b32 v62, {L_ST7}
        {OUTIDX}
        s_lshl_b32 s3, s101, 2
        s_add_u32 s3, s3, {L_HS}
        v_mov_b32 v63, s3
        s_lshl_b32 s3, s{S_W}, 3
        s_add_u32 s3, s3, {L_ST7}
        v_mov_b32 v68, s3
        s_lshl_b32 s3, s{S_W}, 4
        s_add_u32 s3, s3, {L_YRED}
        v_mov_b32 v69, s3
        v_mov_b32 v113, 0
        v_add_u32 v8, s101, v1
        v_lshlrev_b32 v6, 2, v1
        v_add_u32 v6, {L_YRED}, v6
        v_lshlrev_b32 v7, 2, v8
        v_add_u32 v7, {L_HS}, v7
        v_lshlrev_b32 v9, 16, v231
        """)
        e("v_and_b32 v57, 3, v1")
        tagpat(10, 57, 14)
        if cfg.s7warm:
            lbl = f"L_wret{len(e.lines)}"
            e(f"s_mov_b32 s7, 1\ns_getpc_b64 s[68:69]\ns_add_u32 s68, s68, 12\ns_addc_u32 s69, s69, 0\ns_branch L_s7_body")
            e(f"v_lshlrev_b32 v58, 16, v230\nv_and_b32 v59, 0xffff0000, v230")

    def uk_dma(bar):
        e(f"""
        s_mov_b32 s{SRD_A}, s{P_WUK}
        s_mov_b32 s{SRD_A+1}, s{P_WUK+1}
        s_mov_b32 s{SRD_A+2}, 4194304
        s_mov_b32 s{SRD_A+3}, 0x20000
        s_and_b32 s66, s{S_W}, 1
        s_lshl_b32 s66, s66, 3
        v_lshlrev_b32 v7, 1, v2
        v_xor_b32 v7, v7, v3
        v_xor_b32 v7, s66, v7
        v_lshlrev_b32 v7, 4, v7
        v_lshl_add_u32 v7, v2, 13, v7
        s_lshl_b32 s64, s{S_J}, 5
        s_add_u32 s64, s64, s{S_W}
        s_lshl_b32 s64, s64, 15
        s_lshl_b32 s65, s{S_H}, 8
        s_add_u32 s64, s64, s65
        s_lshl_b32 s67, s{S_W}, 10
        s_add_u32 s67, s67, {L_WUK}
        """)
        if bar: e("s_barrier")
        for ii in range(8):
            e(f"""
            s_mov_b32 m0, s67
            s_add_u32 s67, s67, 4096
            buffer_load_dwordx4 v7, s[{SRD_A}:{SRD_A+3}], s64 offen{NT} lds
            s_add_u32 s64, s64, {4*4*8192}
            """)

    e(f"""
    s_cmp_ge_u32 s2, 256
    s_cbranch_scc1 L_exit
    s_load_dwordx16 s[8:23], s[0:1], 0
    s_load_dwordx4 s[32:35], s[0:1], 96
    s_load_dwordx8 s[24:31], s[0:1], 64
    """)
    if cfg.codepf:
        e(f"""
        s_cmp_lt_u32 s2, {cfg.codepf}
        s_cbranch_scc0 L_nopf
        s_getpc_b64 s[64:65]
        """)
        e.label("L_pc")
        e(f"""
        s_and_b32 s64, s64, 0xffffff00
        v_lshlrev_b32 v203, 7, v0
        v_min_u32 v203, L_end-L_pc-4, v203
        v_mov_b32 v201, s65
        v_add_co_u32 v200, vcc, s64, v203
        s_nop 1
        v_addc_co_u32 v201, vcc, 0, v201, vcc
        global_load_dword v202, v[200:201], off
        """)
        e.label("L_nopf")
    if cfg.stamps:
        e(f"s_memrealtime s[{S_STAMP}:{S_STAMP+1}]")
        for k in range(1, 15): e(f"s_mov_b32 s{S_STAMP+2*k}, 0")
    e(f"""
    v_and_b32 v1, 63, v0
    v_lshrrev_b32 v4, 6, v0
    v_lshrrev_b32 v2, 4, v1
    v_readfirstlane_b32 s{S_W}, v4
    v_and_b32 v3, 15, v1
    s_and_b32 s{S_X}, s2, 7
    s_bfe_u32 s{S_I}, s2, 0x40003
    s_lshr_b32 s{S_H}, s{S_I}, 2
    s_xor_b32 s{S_H}, s{S_H}, {cfg.hperm}
    s_lshl_b32 s3, s{S_X}, 2
    s_add_u32 s{S_H}, s{S_H}, s3
    s_and_b32 s{S_J}, s{S_I}, 3
    s_mov_b32 s{SRD_0+3}, 0x20000
    s_mov_b32 s{S_SPIN}, {cfg.spin}
    s_cmp_ge_u32 s2, 128
    s_cbranch_scc1 L_B0
    """)
    e(f"""
    s_lshl_b32 s66, s{S_W}, 2
    s_and_b32 s66, s66, 8
    s_mul_i32 s64, s{S_J}, 40
    s_add_u32 s64, s64, s{S_W}
    s_lshl_b32 s64, s64, 15
    s_lshl_b32 s65, s{S_H}, 8
    s_add_u32 s64, s64, s65
    s_lshl_b32 s67, s{S_W}, 10
    s_add_u32 s67, s67, {L_WQ}
    s_mov_b32 s{SRD_0+2}, 5242880
    v_lshlrev_b32 v7, 1, v2
    v_xor_b32 v7, v7, v3
    v_xor_b32 v7, s66, v7
    v_lshlrev_b32 v7, 4, v7
    v_lshl_add_u32 v7, v2, 13, v7
    v_lshlrev_b32 v6, 2, v1
    s_cmp_eq_u32 s{S_W}, 0
    s_waitcnt lgkmcnt(0)
    s_mov_b32 s{SRD_0}, s{P_WQ}
    s_mov_b32 s{SRD_0+1}, s{P_WQ+1}
    s_cbranch_scc0 L_f_nox
    """)
    for k in range(5):
        e(f"global_load_dword v{8+k}, v6, s[{P_X}:{P_X+1}] offset:{256*k}")
    e.label("L_f_nox")
    for ii in range(5):
        e(f"""
        s_mov_b32 m0, s67
        s_add_u32 s67, s67, 8192
        buffer_load_dwordx4 v7, s[{SRD_0}:{SRD_0+3}], s64 offen{NT} lds
        s_add_u32 s64, s64, {8*4*8192}
        """)
    if cfg.tlbk:
        e(f"""
        s_lshl_b32 s3, s{S_J}, 7
        s_lshl_b32 s64, s{S_W}, 4
        s_add_u32 s3, s3, s64
        s_lshl_b32 s3, s3, 13
        s_lshl_b32 s64, s{S_H}, 8
        s_add_u32 s3, s3, s64
        v_mov_b32 v4, s3
        s_mov_b64 exec, 1
        global_load_dword v200, v4, s[{P_WUK}:{P_WUK+1}] nt
        s_mov_b64 exec, -1
        """)
    if cfg.selftouch:
        e(f"""
        v_bfe_u32 v4, v1, 1, 4
        s_lshl_b32 s3, s{S_J}, 7
        s_lshl_b32 s64, s{S_W}, 4
        s_add_u32 s3, s3, s64
        v_add_u32 v4, s3, v4
        v_lshlrev_b32 v4, 13, v4
        v_and_b32 v5, 1, v1
        v_lshl_add_u32 v4, v5, 7, v4
        s_lshl_b32 s3, s{S_H}, 8
        v_add_u32 v4, s3, v4
        s_mov_b64 exec, 0xffffffff
        global_load_dword v200, v4, s[{P_WUK}:{P_WUK+1}] nt
        s_mov_b64 exec, -1
        """)
    if cfg.ukearly and not cfg.ukdelay:
        e("s_barrier")
        e(f"s_cmp_lt_u32 s{S_W}, 4\ns_cbranch_scc0 L_f_nouk")
        uk_dma(False)
        e.label("L_f_nouk")
    e(f"""
    s_load_dword s{S_TAG}, {WS}, 0
    s_branch L_F1
    """)
    e.label("L_B0")
    if cfg.exp_nob: e("s_endpgm")
    e(f"""
    s_lshl_b32 s3, s{S_W}, 1
    v_xor_b32 v7, s3, v1
    v_lshlrev_b32 v7, 4, v7
    s_lshl_b32 s{S_CH}, s{S_X}, 2
    s_add_u32 s{S_CH}, s{S_CH}, s{S_J}
    s_lshl_b32 s66, s{S_CH}, 17
    s_and_b32 s67, s{S_I}, 12
    s_lshl_b32 s67, s67, 13
    s_lshl_b32 s65, s{S_W}, 10
    s_add_u32 s67, s67, s65
    s_mov_b32 s{SRD_0+2}, 4194304
    s_mov_b32 s68, 15
    v_bfe_u32 v4, v1, 1, 4
    s_lshl_b32 s3, s{S_J}, 7
    s_lshl_b32 s64, s{S_W}, 4
    s_add_u32 s3, s3, s64
    v_add_u32 v4, s3, v4
    v_lshlrev_b32 v4, 13, v4
    v_and_b32 v5, 1, v1
    v_lshl_add_u32 v4, v5, 7, v4
    s_lshl_b32 s3, s{S_H}, 8
    v_add_u32 v4, s3, v4
    s_waitcnt lgkmcnt(0)
    s_mov_b32 s{SRD_0}, s{P_CKV}
    s_mov_b32 s{SRD_0+1}, s{P_CKV+1}
    """)
    if cfg.tlbw:
        e(f"""
        s_cmp_eq_u32 s{S_I}, 0
        s_cselect_b32 s3, s{S_W}, 0
        s_cmp_eq_u32 s3, 7
        s_cbranch_scc0 L_notlb
        s_mov_b64 exec, 1
        v_mov_b32 v8, 0
        v_mov_b32 v9, 0x200000
        v_mov_b32 v10, 0x3ffffc
        v_mov_b32 v11, 0x4ffffc
        global_load_dword v204, v8, s[{P_WUK}:{P_WUK+1}] nt
        global_load_dword v204, v9, s[{P_WUK}:{P_WUK+1}] nt
        global_load_dword v204, v10, s[{P_WUK}:{P_WUK+1}] nt
        global_load_dword v204, v8, s[{P_WUV}:{P_WUV+1}] nt
        global_load_dword v204, v9, s[{P_WUV}:{P_WUV+1}] nt
        global_load_dword v204, v10, s[{P_WUV}:{P_WUV+1}] nt
        global_load_dword v204, v8, s[{P_WO}:{P_WO+1}] nt
        global_load_dword v204, v9, s[{P_WO}:{P_WO+1}] nt
        global_load_dword v204, v10, s[{P_WO}:{P_WO+1}] nt
        global_load_dword v204, v11, s[{P_WO}:{P_WO+1}] nt
        global_load_dword v204, v8, s[{P_W1}:{P_W1+1}]
        global_load_dword v204, v8, s[{P_B1}:{P_B1+1}]
        global_load_dword v204, v8, s[{P_W2}:{P_W2+1}]
        global_load_ushort v204, v8, s[{P_B2}:{P_B2+1}]
        global_load_dword v204, v8, s[{P_OUT}:{P_OUT+1}]
        s_mov_b64 exec, -1
        """)
        e.label("L_notlb")
    if cfg.tsleep: e(f"s_sleep {cfg.tsleep}")
    if cfg.spreadq or cfg.spreadk:
        e(f"""
        s_lshl_b32 s3, s{S_X}, 2
        s_add_u32 s3, s3, 1
        s_lshl_b32 s3, s3, 8
        v_lshrrev_b32 v8, 1, v1
        v_and_b32 v9, 1, v1
        v_lshlrev_b32 v9, 7, v9
        v_add_u32 v9, s3, v9
        """)
        if cfg.spreadq:
            e(f"""
            s_mul_i32 s3, s{S_I}, 40
            s_mul_i32 s64, s{S_W}, 5
            s_add_u32 s3, s3, s64
            v_add_u32 v10, s3, v8
            v_lshl_add_u32 v10, v10, 13, v9
            s_mov_b64 exec, 0x3ff
            global_load_dword v200, v10, s[{P_WQ}:{P_WQ+1}] nt
            s_mov_b64 exec, -1
            """)
        if cfg.spreadk:
            e(f"""
            s_lshl_b32 s3, s{S_I}, 5
            s_lshl_b32 s64, s{S_W}, 2
            s_add_u32 s3, s3, s64
            v_add_u32 v10, s3, v8
            v_lshl_add_u32 v10, v10, 13, v9
            s_mov_b64 exec, 0xff
            global_load_dword v200, v10, s[{P_WUK}:{P_WUK+1}] nt
            s_mov_b64 exec, -1
            """)
    if cfg.touchslow:
        e(f"""
        s_and_b32 s3, s{S_H}, 3
        s_cmp_eq_u32 s3, {cfg.touchslow - 1}
        s_cbranch_scc0 L_notouch
        s_mov_b64 exec, 0xffffffff
        global_load_dword v200, v4, s[{P_WUK}:{P_WUK+1}] nt
        s_mov_b64 exec, -1
        """)
        e.label("L_notouch")
    if cfg.touch: e(f"""
    s_mov_b64 exec, 0xffffffff
    global_load_dword v200, v4, s[{P_WUK}:{P_WUK+1}]{" nt" if cfg.uknt else ""}
    s_mov_b64 exec, -1
    """)
    if cfg.bdelay: e(f"s_load_dword s{S_TAG}, {WS}, 0\ns_waitcnt lgkmcnt(0)")
    if cfg.bsleep: e(f"s_sleep {cfg.bsleep}")
    e.label("L_b_dma")
    e(f"""
    s_mov_b32 m0, s67
    s_add_u32 s69, s67, s66
    buffer_load_dwordx4 v7, s[{SRD_0}:{SRD_0+3}], s69 offen{" nt" if cfg.ckvnt else ""} lds
    s_add_u32 s67, s67, 8192
    s_and_b32 s67, s67, 0x1ffff
    s_sub_u32 s68, s68, 1
    s_cbranch_scc0 L_b_dma
    """)
    if not cfg.bdelay: e(f"s_load_dword s{S_TAG}, {WS}, 0")
    e("s_branch L_B1")

    e.label("L_F1")
    e(f"s_mov_b32 s{S_ISB}, 0")
    stamp(1)
    tr_common()
    e(f"""
    v_and_b32 v41, 1, v2
    v_lshl_add_u32 v41, v41, 2, v62
    v_lshlrev_b32 v41, 1, v41
    s_and_b32 s65, s{S_W}, 3
    s_lshl_b32 s3, s65, 2
    v_add_u32 v42, s3, v63
    v_xor_b32 v41, v41, v42
    v_lshl_add_u32 v41, v41, 4, v59
    v_lshl_add_u32 v42, v2, 3, v62
    v_lshl_add_u32 v41, v42, 8, v41
    v_add_u32 v41, {L_WQ}, v41
    v_xor_b32 v40, 32, v41
    s_mul_i32 s3, s{S_J}, 320
    s_add_u32 s3, s3, {L_LNS}
    v_lshl_add_u32 v42, v2, 4, s3
    s_lshl_b32 s3, s{S_H}, 2
    s_add_u32 s3, s3, s{S_J}
    s_lshl_b32 s3, s3, 9
    s_lshl_b32 s64, s65, 7
    s_add_u32 s3, s3, s64
    s_add_u32 s65, s3, {WS_Q1}
    v_and_b32 v43, 1, v1
    v_lshlrev_b32 v43, 6, v43
    v_lshl_add_u32 v43, v2, 4, v43
    v_add_u32 v43, s65, v43
    v_add_u32 v44, {WS_Q1F-WS_Q1}, v43
    s_lshl_b32 s64, s{S_W}, 6
    s_lshl_b32 s3, s{S_H}, 2
    s_and_b32 s65, s{S_W}, 3
    s_add_u32 s3, s3, s65
    s_lshl_b32 s3, s3, 9
    s_add_u32 s3, s3, {WS_Q1}
    v_lshl_add_u32 v45, v1, 3, s3
    v_add_u32 v49, {WS_Q1F-WS_Q1}, v45
    s_mul_i32 s3, s65, {QP_STRIDE}
    s_add_u32 s3, s3, {L_QP}
    v_lshl_add_u32 v46, v1, 2, s3
    v_bfe_u32 v47, v3, 1, 2
    v_mul_u32_u24 v47, {QP_STRIDE}, v47
    v_lshl_add_u32 v47, v2, 4, v47
    v_add_u32 v47, {L_QP}, v47
    s_and_b32 s66, s{S_W}, 3
    s_lshl_b32 s3, s{S_H}, 10
    s_lshl_b32 s65, s{S_J}, 8
    s_add_u32 s3, s3, s65
    s_lshl_b32 s64, s66, 6
    s_add_u32 s3, s3, s64
    s_add_u32 s65, s3, {WS_QA}
    v_and_b32 v50, 1, v1
    v_lshlrev_b32 v50, 1, v50
    v_lshrrev_b32 v51, 1, v2
    v_add_u32 v50, v50, v51
    v_lshl_add_u32 v48, v50, 4, s65
    s_lshl_b32 s3, s66, 5
    v_add_u32 v24, s3, v3
    v_lshlrev_b32 v24, 8, v24
    v_and_b32 v25, 7, v3
    v_lshlrev_b32 v25, 1, v25
    v_xor_b32 v25, v25, v2
    v_lshl_add_u32 v24, v25, 4, v24
    v_add_u32 v24, {L_WUK}, v24
    v_xor_b32 v25, 64, v24
    v_xor_b32 v26, 128, v24
    v_xor_b32 v27, 192, v24
    s_waitcnt lgkmcnt(0)
    """)
    mk_tag()
    e(f"v_mov_b32 v105, s{S_TAG}\nv_mov_b32 v107, s{S_TAG}")
    tagpat(52, 50, 56)
    e(f"""
    s_cmp_eq_u32 s{S_W}, 0
    s_cbranch_scc0 L_f_noln
    """)
    e(f"s_waitcnt vmcnt({13 if (cfg.ukearly and not cfg.ukdelay) else 5 + cfg.selftouch + cfg.tlbk})")
    stamp(2)
    for k in range(5):
        e(f"v_lshlrev_b32 v{64+2*k}, 16, v{8+k}")
        e(f"v_and_b32 v{65+2*k}, 0xffff0000, v{8+k}")
    e(f"""
    v_pk_add_f32 v[74:75], v[64:65], v[66:67]
    v_pk_add_f32 v[76:77], v[68:69], v[70:71]
    v_pk_add_f32 v[74:75], v[74:75], v[72:73]
    v_pk_add_f32 v[74:75], v[74:75], v[76:77]
    v_mov_b32 v78, {F32(-1.0/640)}
    v_add_f32 v74, v74, v75
    """)
    dpp_reduce([74])
    e.nop(1)
    e("v_readlane_b32 s20, v74, 63")
    e(f"v_mov_b32 v80, {F32(1.0/640)}\nv_mov_b32 v81, {F32(1e-5)}")
    e("v_mul_f32 v78, s20, v78")
    for k in range(5):
        e(f"v_pk_add_f32 v[{64+2*k}:{65+2*k}], v[{64+2*k}:{65+2*k}], v[78:79] op_sel_hi:[1,0]")
    e("v_pk_mul_f32 v[74:75], v[64:65], v[64:65]")
    for k in range(1, 5):
        e(f"v_pk_fma_f32 v[74:75], v[{64+2*k}:{65+2*k}], v[{64+2*k}:{65+2*k}], v[74:75]")
    e("v_add_f32 v74, v74, v75")
    dpp_reduce([74])
    e.nop(1)
    e("v_readlane_b32 s21, v74, 63")
    e(f"v_mov_b32 v82, {F32(128**-0.5 * 1.4426950408889634 * LSB_DEBIAS)}")
    e(f"v_add_u32 v6, {L_LNS}, v6")
    e("v_fma_f32 v74, s21, v80, v81")
    e("v_rsq_f32 v74, v74")
    e.nop(1)
    e("v_mul_f32 v74, v74, v82")
    for k in range(5):
        e(f"v_pk_mul_f32 v[{64+2*k}:{65+2*k}], v[{64+2*k}:{65+2*k}], v[74:75] op_sel_hi:[1,0]")
    for k in range(5):
        e(f"v_cvt_pk_bf16_f32 v{8+k}, v{64+2*k}, v{65+2*k}")
        e(f"ds_write_b32 v6, v{8+k} offset:{256*k}")
    e.label("L_f_noln")
    if cfg.ukearly and cfg.ukdelay:
        e(f"s_cmp_lt_u32 s{S_W}, 4\ns_cbranch_scc0 L_f_nouk\ns_cmp_eq_u32 s{S_W}, 0\ns_cbranch_scc1 L_f_uk0\ns_sleep {cfg.ukdelay}")
        e.label("L_f_uk0")
        uk_dma(False)
        e.label("L_f_nouk")
    if cfg.ukearly:
        e(f"s_cmp_lt_u32 s{S_W}, 4\ns_cbranch_scc0 L_f_w0\ns_waitcnt vmcnt(8)\ns_branch L_f_w1")
        e.label("L_f_w0")
        e("s_waitcnt vmcnt(0)")
        e.label("L_f_w1")
        e("s_waitcnt lgkmcnt(0)")
    else:
        e(f"s_waitcnt vmcnt({cfg.selftouch + cfg.tlbk}) lgkmcnt(0)")
    e("s_barrier")
    stamp(3)
    e(f"s_cmp_lt_u32 s{S_W}, 4\ns_cbranch_scc1 L_f_uk")
    if cfg.prio: e("s_setprio 2")
    for ks in range(5):
        e(f"ds_read_b128 v[{84+4*ks}:{87+4*ks}], v42 offset:{64*ks}")
        e(f"ds_read_b64_tr_b16 v[{64+4*ks}:{65+4*ks}], v41 offset:{8192*ks}")
        e(f"ds_read_b64_tr_b16 v[{66+4*ks}:{67+4*ks}], v41 offset:{8192*ks+1024}")
        e(f"ds_read_b64_tr_b16 v[{112+4*ks}:{113+4*ks}], v40 offset:{8192*ks}")
        e(f"ds_read_b64_tr_b16 v[{114+4*ks}:{115+4*ks}], v40 offset:{8192*ks+1024}")
    e("s_mov_b32 s64, 0xaaaaaaaa\ns_mov_b32 s65, 0xaaaaaaaa")
    for ks in range(5):
        e(f"s_waitcnt lgkmcnt({min(15, 20-5*ks)})")
        c = "0" if ks == 0 else "v[108:111]"
        e(f"v_mfma_f32_16x16x32_bf16 v[108:111], v[{64+4*ks}:{67+4*ks}], v[{84+4*ks}:{87+4*ks}], {c}")
        c = "0" if ks == 0 else "v[132:135]"
        e(f"v_mfma_f32_16x16x32_bf16 v[132:135], v[{112+4*ks}:{115+4*ks}], v[{84+4*ks}:{87+4*ks}], {c}")
    e("s_mov_b32 exec_lo, 0x00030003\ns_mov_b32 exec_hi, 0x00030003")
    e.nop(6)
    for r in range(4):
        e(f"v_cndmask_b32 v{108+r}, v{108+r}, v{132+r}, s[64:65]")
    e("""
    v_cvt_pk_bf16_f32 v104, v108, v109
    v_cvt_pk_bf16_f32 v106, v110, v111
    """)
    if cfg.fast1 or cfg.ff1: e(f"global_store_dwordx4 v44, v[104:107], {WS}")
    e(f"global_store_dwordx4 v43, v[104:107], {WS} sc1\ns_mov_b64 exec, -1")
    stamp(4)
    e(("" if cfg.ukearly else "s_barrier\n") + "s_branch L_h1_bar")
    e.label("L_f_uk")
    if not cfg.ukearly: uk_dma(True)
    if cfg.ff1:
        e(f"s_mov_b32 s20, {cfg.ff1}")
    e.label("L_h1")
    if cfg.ff1:
        e(f"global_load_dwordx2 v[64:65], v49, {WS} sc1\ns_waitcnt vmcnt(0)")
        e(f"v_cmp_ne_u32 vcc, s{S_TAG}, v65\ns_cbranch_vccz L_h1_done")
        e(f"s_sub_u32 s{S_SPIN}, s{S_SPIN}, 1\ns_cbranch_scc1 L_fail")
        e("s_sub_u32 s20, s20, 1\ns_cbranch_scc0 L_h1\nv_mov_b32 v49, v45\ns_mov_b32 s20, 0x7fffffff\ns_branch L_h1")
    elif cfg.fast1:
        e(f"global_load_dwordx2 v[66:67], v49, {WS} sc1")
        e(f"global_load_dwordx2 v[64:65], v45, {WS} sc1\ns_waitcnt vmcnt(0)")
        e(f"v_cmp_eq_u32 vcc, s{S_TAG}, v67")
        e.nop(2)
        e("v_cndmask_b32 v64, v64, v66, vcc\nv_cndmask_b32 v65, v65, v67, vcc")
    else:
        e(f"global_load_dwordx2 v[64:65], v45, {WS} sc1\ns_waitcnt vmcnt(0)")
    if not cfg.ff1:
        e(f"v_cmp_ne_u32 vcc, s{S_TAG}, v65")
        e(f"s_cbranch_vccz L_h1_done")
        spin_back("L_h1")
    e.label("L_h1_done")
    stamp(8)
    stamp(7)
    e("ds_write_b32 v46, v64")
    e.label("L_h1_bar")
    e("s_waitcnt lgkmcnt(0)\ns_barrier")
    stamp(5)
    e(f"s_cmp_lt_u32 s{S_W}, 4\ns_cbranch_scc1 L_f_nos2")
    for t in range(4):
        e(f"ds_read_b128 v[{64+4*t}:{67+4*t}], v47 offset:{64*t}")
        e(f"ds_read_b128 v[{80+4*t}:{83+4*t}], v{24+t}")
        e(f"ds_read_b128 v[{112+4*t}:{115+4*t}], v{24+t} offset:4096")
    e("s_mov_b32 s64, 0xaaaaaaaa\ns_mov_b32 s65, 0xaaaaaaaa")
    for t in range(4):
        e(f"s_waitcnt lgkmcnt({9-3*t})")
        c = "0" if t == 0 else "v[108:111]"
        e(f"v_mfma_f32_16x16x32_bf16 v[108:111], v[{80+4*t}:{83+4*t}], v[{64+4*t}:{67+4*t}], {c}")
        c = "0" if t == 0 else "v[132:135]"
        e(f"v_mfma_f32_16x16x32_bf16 v[132:135], v[{112+4*t}:{115+4*t}], v[{64+4*t}:{67+4*t}], {c}")
    e.nop(8)
    for r in range(4):
        e(f"v_cndmask_b32 v{108+r}, v{108+r}, v{132+r}, s[64:65]")
    for st in ("row_ror:2", "row_ror:4"):
        for r in range(108, 112):
            e(f"v_add_f32_dpp v{r}, v{r}, v{r} {st} row_mask:0xf bank_mask:0xf")
    e("""
    v_cvt_pk_bf16_f32 v104, v108, v109
    v_cvt_pk_bf16_f32 v105, v110, v111
    s_mov_b32 s66, 0xfffefffe
    v_mov_b32 v106, v104
    v_mov_b32 v107, v105
    s_nop 1
    v_permlane16_swap_b32 v104, v106
    v_permlane16_swap_b32 v105, v107
    s_mov_b32 exec_lo, 3
    s_mov_b32 exec_hi, 3
    v_and_or_b32 v104, v104, s66, v52
    v_and_or_b32 v105, v105, s66, v53
    v_and_or_b32 v106, v106, s66, v54
    v_and_or_b32 v107, v107, s66, v55
    """)
    e(f"global_store_dwordx4 v48, v[104:107], {WS} sc1\ns_mov_b64 exec, -1")
    stamp(6)
    e.label("L_f_nos2")
    e("s_barrier")
    if cfg.uvpf:
        e(f"""
        v_lshrrev_b32 v4, 1, v1
        s_lshl_b32 s3, s{S_J}, 7
        s_lshl_b32 s64, s{S_W}, 4
        s_add_u32 s3, s3, s64
        v_and_b32 v4, 15, v4
        v_add_u32 v4, s3, v4
        v_lshlrev_b32 v4, 13, v4
        v_and_b32 v5, 1, v1
        v_lshl_add_u32 v4, v5, 7, v4
        s_lshl_b32 s3, s{S_H}, 8
        v_add_u32 v4, s3, v4
        s_mov_b64 exec, 0xffffffff
        global_load_dword v5, v4, s[{P_WUV}:{P_WUV+1}]{NT}
        s_mov_b64 exec, -1
        """)
    e(f"s_cmp_lt_u32 s{S_I}, 10\ns_cbranch_scc1 L_s6")
    s7_loads()
    e("s_waitcnt vmcnt(0)")
    s7_prep()
    if cfg.n5sleep:
        e(f"""
        s_cmp_lt_u32 s{S_W}, 5
        s_cbranch_scc0 L_S7
        s_lshl_b32 s3, s{S_H}, 2
        s_add_u32 s3, s3, s{S_J}
        s_lshl_b32 s3, s3, 9
        s_add_u32 s3, s3, {WS_CTX}
        v_mov_b32 v40, s3
        """)
        e.label("L_sent")
        e(f"""
        global_load_dwordx2 v[42:43], v40, {WS} sc1
        s_waitcnt vmcnt(0)
        v_cmp_ne_u32 vcc, s{S_TAG}, v43
        s_cbranch_vccz L_sent_done
        s_sleep 8
        """)
        spin_back("L_sent")
        e.label("L_sent_done")
        e(f"s_sleep {cfg.n5sleep}")
    e("s_branch L_S7")
    e.label("L_s6")
    e(f"""
    s_mov_b32 s{SRD_WO}, s{P_WO}
    s_mov_b32 s{SRD_WO+1}, s{P_WO+1}
    s_mov_b32 s{SRD_WO+2}, 5242880
    s_mov_b32 s{SRD_WO+3}, 0x20000
    v_lshrrev_b32 v12, 3, v1
    v_mul_u32_u24 v50, 1280, v12
    v_and_b32 v12, 2, v12
    v_and_b32 v13, 7, v1
    v_xor_b32 v12, v12, v13
    v_lshl_add_u32 v50, v12, 4, v50
    v_xor_b32 v51, 64, v50
    s_lshl_b32 s3, s{S_X}, 3
    s_add_u32 s3, s3, s{S_W}
    s_mul_i32 s20, s3, {64*1280}
    s_lshl_b32 s65, s{S_I}, 7
    s_add_u32 s20, s20, s65
    s_lshl_b32 s21, s{S_W}, 13
    """)
    for ii in range(8):
        e(f"""
        s_mov_b32 m0, s21
        s_add_u32 s21, s21, 1024
        buffer_load_dwordx4 v{50+(ii&1)}, s[{SRD_WO}:{SRD_WO+3}], s20 offen{NT} lds
        s_add_u32 s20, s20, {8*1280}
        """)
    s7_loads()
    tr_common()
    e(f"""
    v_lshl_add_u32 v12, v2, 3, v62
    v_lshlrev_b32 v12, 7, v12
    v_add_u32 v12, v12, v59
    s_lshl_b32 s3, s{S_W}, 13
    v_add_u32 v12, s3, v12
    v_and_b32 v13, 1, v2
    v_lshlrev_b32 v13, 2, v13
    v_and_b32 v14, 2, v62
    v_or_b32 v13, v13, v14
    v_xor_b32 v13, v13, v63
    v_lshl_add_u32 v249, v13, 4, v12
    v_xor_b32 v250, 32, v249
    v_xor_b32 v251, 64, v249
    v_xor_b32 v252, 96, v249
    s_lshr_b32 s3, s{S_W}, 1
    s_lshl_b32 s64, s{S_X}, 2
    s_add_u32 s3, s3, s64
    s_lshl_b32 s3, s3, 11
    s_and_b32 s64, s{S_W}, 1
    s_lshl_b32 s64, s64, 8
    s_add_u32 s3, s3, s64
    s_add_u32 s3, s3, {WS_CTX}
    v_lshlrev_b32 v140, 9, v2
    v_lshl_add_u32 v140, v3, 4, v140
    v_add_u32 v140, s3, v140
    v_add_u32 v141, {WS_CTXF-WS_CTX}, v140
    s_lshl_b32 s3, s{S_W}, 7
    s_add_u32 s3, s3, {L_BNC}
    v_lshl_add_u32 v142, v3, 2, v2
    v_lshlrev_b32 v142, 1, v142
    v_add_u32 v142, s3, v142
    v_lshl_add_u32 v143, v2, 4, s3
    s_lshl_b32 s3, s{S_W}, 8
    s_add_u32 s3, s3, {L_ORED}
    v_lshl_add_u32 v253, v2, 4, s3
    v_lshlrev_b32 v254, 3, v1
    v_add_u32 v254, {L_ORED}, v254
    s_mul_i32 s3, s{S_X}, 1280
    s_lshl_b32 s64, s{S_I}, 7
    s_add_u32 s3, s3, s64
    s_add_u32 s3, s3, {WS_OP}
    v_lshl_add_u32 v255, v1, 2, s3
    v_and_b32 v12, 15, v1
    v_lshlrev_b32 v12, 1, v12
    v_mov_b32 v13, s{S_TAG}
    v_lshrrev_b32 v12, v12, v13
    v_and_b32 v13, 1, v12
    v_and_b32 v12, 2, v12
    v_lshl_or_b32 v136, v12, 15, v13
    s_waitcnt vmcnt(0)
    """)
    stamp(9)
    s7_prep()
    for tt in range(4):
        for ks in range(2):
            r = 80 + 8 * tt + 4 * ks
            e(f"ds_read_b64_tr_b16 v[{r}:{r+1}], v{249+tt} offset:{4096*ks}")
            e(f"ds_read_b64_tr_b16 v[{r+2}:{r+3}], v{249+tt} offset:{4096*ks+512}")
    if cfg.xfast:
        e(f"""
        v_and_b32 v40, 15, v1
        v_lshlrev_b32 v40, 10, v40
        s_lshl_b32 s3, s{S_X}, 7
        s_add_u32 s3, s3, {WS_XID}
        v_add_u32 v40, s3, v40
        s_getreg_b32 s64, hwreg(HW_REG_XCC_ID, 0, 4)
        """)
        e.label("L_xid")
        e(f"""
        global_load_dwordx2 v[42:43], v40, {WS} sc1
        s_waitcnt vmcnt(0)
        v_cmp_ne_u32 vcc, s{S_TAG}, v43
        s_cbranch_vccz L_xid_ok
        s_sleep 4
        """)
        spin_back("L_xid")
        e.label("L_xid_ok")
        e(f"""
        v_cmp_ne_u32 vcc, s64, v42
        s_cbranch_vccnz L_xid_slow
        v_mov_b32 v140, v141
        """)
        e.label("L_xid_slow")
    e.label("L_h4")
    if cfg.fast4 == 2:
        e(f"global_load_dwordx4 v[40:43], v141, {WS} sc1\ns_waitcnt vmcnt(0)")
    elif cfg.fast4:
        e(f"global_load_dwordx4 v[44:47], v141, {WS} sc1")
        e(f"global_load_dwordx4 v[40:43], v140, {WS} sc1\ns_waitcnt vmcnt(0)")
        tagchk(48, [45, 47])
        e("v_cmp_eq_u32 vcc, 0, v48")
        e.nop(2)
        for k in range(4): e(f"v_cndmask_b32 v{40+k}, v{40+k}, v{44+k}, vcc")
    else:
        e(f"global_load_dwordx4 v[40:43], v140, {WS} sc1\ns_waitcnt vmcnt(0)")
    tagchk(48, [41, 43])
    poll_tail("L_h4", "L_h4_done", 48, cfg.h4sleep)
    stamp(10)
    e("""
    v_lshlrev_b32 v44, 16, v40
    v_and_b32 v45, 0xffff0000, v40
    v_lshlrev_b32 v46, 16, v42
    v_and_b32 v47, 0xffff0000, v42
    s_nop 1
    v_permlane32_swap_b32 v44, v46
    v_permlane32_swap_b32 v45, v47
    v_add_f32 v44, v44, v46
    v_add_f32 v45, v45, v47
    s_nop 1
    v_permlane16_swap_b32 v44, v45
    v_add_f32 v44, v44, v45
    v_cvt_pk_bf16_f32 v44, v44, v44
    ds_write_b16 v142, v44
    s_waitcnt lgkmcnt(0)
    ds_read_b128 v[112:115], v143
    ds_read_b128 v[116:119], v143 offset:64
    """)
    for ks in range(2):
        e(f"s_waitcnt lgkmcnt({1-ks})")
        for tt in range(4):
            c = "0" if ks == 0 else f"v[{120+4*tt}:{123+4*tt}]"
            r = 80 + 8 * tt + 4 * ks
            e(f"v_mfma_f32_16x16x32_bf16 v[{120+4*tt}:{123+4*tt}], v[{r}:{r+3}], v[{112+4*ks}:{115+4*ks}], {c}")
    e("s_mov_b32 exec_lo, 0x00010001\ns_mov_b32 exec_hi, 0x00010001")
    e.nop(3)
    for tt in range(4):
        e(f"ds_write_b128 v253, v[{120+4*tt}:{123+4*tt}] offset:{64*tt}")
    e(f"""
    s_mov_b64 exec, -1
    s_waitcnt lgkmcnt(0)
    s_barrier
    s_cmp_eq_u32 s{S_W}, 7
    s_cbranch_scc0 L_s6_w
    s_mov_b64 exec, 0xffffffff
    """)
    for w in range(8):
        e(f"ds_read_b64 v[{40+2*w}:{41+2*w}], v254 offset:{256*w}")
    e(f"""
    s_mov_b32 s66, 0xfffefffe
    s_waitcnt lgkmcnt(0)
    v_pk_add_f32 v[40:41], v[40:41], v[42:43]
    v_pk_add_f32 v[44:45], v[44:45], v[46:47]
    v_pk_add_f32 v[48:49], v[48:49], v[50:51]
    v_pk_add_f32 v[52:53], v[52:53], v[54:55]
    v_pk_add_f32 v[40:41], v[40:41], v[44:45]
    v_pk_add_f32 v[48:49], v[48:49], v[52:53]
    v_pk_add_f32 v[40:41], v[40:41], v[48:49]
    v_cvt_pk_bf16_f32 v56, v40, v41
    v_lshrrev_b32 v57, 1, v56
    v_and_b32 v57, 0x00010001, v57
    v_add_u32 v56, v56, v57
    v_and_or_b32 v56, v56, s66, v136
    global_store_dword v255, v56, {WS} sc1
    s_mov_b64 exec, -1
    """)
    stamp(11)
    e("s_branch L_S7")
    e.label("L_s6_w")
    if cfg.f5sleep: e(f"s_sleep {cfg.f5sleep}")
    e("s_branch L_S7")

    e.label("L_B1")
    e(f"s_mov_b32 s{S_ISB}, 1")
    stamp(1)
    e(f"""
    s_lshr_b32 s3, s{S_I}, 2
    s_lshl_b32 s3, s3, 3
    s_add_u32 s3, s3, s{S_W}
    s_lshl_b32 s3, s3, 10
    s_add_u32 s3, s3, {WS_QA}
    v_lshl_add_u32 v5, v1, 4, s3
    s_mul_i32 s3, s{S_W}, {QAS_STRIDE}
    s_add_u32 s3, s3, {L_QAS}
    v_lshl_add_u32 v6, v1, 4, s3
    """)
    tr_common()
    e(f"s_cmp_lt_u32 s{S_W}, 4\ns_cbranch_scc0 L_bp_prep")
    def h2_poll(sfx):
        msk = "s66" if sfx == "q" else "s67"
        if cfg.h2init:
            e(f"s_sleep {cfg.h2init}")
        else:
            e("s_waitcnt vmcnt(0)\ns_branch L_h2_chk" + sfx)
        e.label("L_h2" + sfx)
        e(f"""
        global_load_dwordx4 v[40:43], v5, {WS} sc1
        s_waitcnt vmcnt(0)
        """)
        e.label("L_h2_chk" + sfx)
        for i in range(4):
            e(f"v_xor_b32 v{40+i}, v{40+i}, v{44+i}")
        e(f"v_or3_b32 v4, v40, v41, v42\nv_or_b32 v4, v4, v43\nv_and_b32 v4, {msk}, v4")
        poll_tail("L_h2" + sfx, "L_h2_done" + sfx, 4, cfg.h2sleep)
        stamp(5)
        e(f"""
        ds_write_b128 v6, v[40:43]
        s_waitcnt lgkmcnt(0)
        s_barrier
        """)
    e(f"""
    s_lshl_b32 s3, s{S_W}, 5
    v_add_u32 v12, s3, v3
    v_lshlrev_b32 v12, 10, v12
    v_and_b32 v13, 7, v1
    v_lshlrev_b32 v13, 1, v13
    v_xor_b32 v13, v13, v2
    v_lshl_add_u32 v8, v13, 4, v12
    v_xor_b32 v9, 64, v8
    v_xor_b32 v10, 128, v8
    v_xor_b32 v11, 192, v8
    v_and_b32 v216, 7, v3
    v_lshlrev_b32 v217, 4, v216
    v_mul_u32_u24 v216, {QAS_STRIDE}, v216
    v_lshl_add_u32 v216, v2, 4, v216
    v_add_u32 v216, {L_QAS}, v216
    v_add_u32 v217, {L_MX}, v217
    s_lshl_b32 s3, s{S_W}, 2
    v_add_u32 v218, s3, v217
    s_lshl_b32 s3, s{S_W}, 10
    s_add_u32 s3, s3, {L_PEX}
    v_lshl_add_u32 v219, v1, 4, s3
    v_and_b32 v220, 1, v2
    v_lshl_add_u32 v220, v220, 2, v62
    v_lshlrev_b32 v220, 1, v220
    s_lshl_b32 s3, s{S_W}, 2
    v_add_u32 v12, s3, v63
    v_xor_b32 v220, v220, v12
    v_lshl_add_u32 v220, v220, 4, v59
    v_lshl_add_u32 v12, v2, 3, v62
    v_lshl_add_u32 v220, v12, 8, v220
    v_xor_b32 v221, 32, v220
    s_lshl_b32 s3, s{S_H}, 10
    s_lshl_b32 s65, s{S_J}, 8
    s_add_u32 s3, s3, s65
    s_lshl_b32 s64, s{S_W}, 6
    s_add_u32 s3, s3, s64
    s_add_u32 s65, s3, {WS_PART}
    s_lshl_b32 s64, s{S_W}, 7
    v_lshrrev_b32 v12, 2, v1
    v_and_b32 v13, 3, v1
    v_lshlrev_b32 v222, 15, v12
    v_lshl_add_u32 v222, v13, 4, v222
    v_add_u32 v222, s65, v222
    s_lshl_b32 s3, s{S_H}, 7
    s_add_u32 s3, s3, {WS_ST}
    v_lshlrev_b32 v48, 12, v12
    v_lshl_add_u32 v48, v13, 4, v48
    v_add_u32 v48, s3, v48
    v_bfe_u32 v223, v1, 3, 1
    v_lshlrev_b32 v223, 4, v223
    v_bfe_u32 v12, v1, 2, 1
    v_lshl_add_u32 v223, v12, 1, v223
    v_and_b32 v12, 1, v2
    v_add_u32 v223, v223, v12
    v_lshl_add_u32 v223, v13, 2, v223
    s_lshl_b32 s3, s{S_W}, 5
    v_add_u32 v223, s3, v223
    v_lshlrev_b32 v223, 1, v223
    v_add_u32 v223, {L_CTXS}, v223
    v_lshlrev_b32 v49, 4, v2
    v_add_u32 v49, {L_CTXS}, v49
    s_lshl_b32 s3, s{S_H}, 2
    s_add_u32 s3, s3, s{S_J}
    s_lshl_b32 s3, s3, 9
    s_add_u32 s3, s3, s64
    s_add_u32 s3, s3, {WS_CTX}
    v_and_b32 v50, 1, v1
    v_lshlrev_b32 v50, 6, v50
    v_lshl_add_u32 v50, v2, 4, v50
    v_add_u32 v50, s3, v50
    v_add_u32 v51, {WS_CTXF-WS_CTX}, v50
    s_waitcnt lgkmcnt(0)
    """)
    mk_tag()
    e("v_and_b32 v16, 3, v1\ns_mov_b32 s66, 0x00010001")
    tagpat(44, 16, 12)
    e(f"s_waitcnt vmcnt(0)" + ("" if cfg.h2init else f"\nglobal_load_dwordx4 v[40:43], v5, {WS} sc1"))
    e("s_barrier")
    stamp(14)
    for t in range(2):
        for j in range(16):
            e(f"ds_read_b128 v[{64+64*t+4*j}:{67+64*t+4*j}], v{8+(j&3)} offset:{256*(j>>2)+16384*t}")
    h2_poll("q")
    def qb(j):
        if j < 6: return 192 + 4 * j
        if j < 13: return 12 + 4 * (j - 6)
        if j < 15: return 40 + 4 * (j - 13)
        return 52
    stamp(4)
    if cfg.prio: e("s_setprio 2")
    for j in range(16):
        e(f"ds_read_b128 v[{qb(j)}:{qb(j)+3}], v216 offset:{64*j}")
    for j in range(16):
        if j % 2 == 0: e(f"s_waitcnt lgkmcnt({max(0, 14-j)})")
        for t in range(2):
            acc = f"v[{56+4*t}:{59+4*t}]"
            c = "0" if j == 0 else acc
            e(f"v_mfma_f32_16x16x32_bf16 {acc}, v[{64+64*t+4*j}:{67+64*t+4*j}], v[{qb(j)}:{qb(j)+3}], {c}")
    e.nop(7)
    stamp(10)
    e("""
    v_max3_f32 v12, v56, v57, v58
    s_nop 0
    v_max3_f32 v13, v60, v61, v62
    v_max3_f32 v12, v59, v63, v12
    v_max_f32 v12, v12, v13
    v_mov_b32 v13, v12
    """)
    e.nop(2)
    e("v_permlane16_swap_b32 v12, v13")
    e("v_max_f32 v12, v12, v13\nv_mov_b32 v13, v12")
    e.nop(2)
    e("v_permlane32_swap_b32 v12, v13")
    e("""
    v_max_f32 v12, v12, v13
    s_mov_b64 exec, 0xff
    ds_write_b32 v218, v12
    s_mov_b64 exec, -1
    s_waitcnt lgkmcnt(0)
    s_barrier
    """)
    stamp(11)
    e("""
    ds_read_b128 v[16:19], v217
    s_waitcnt lgkmcnt(0)
    v_max3_f32 v12, v16, v17, v18
    v_max_f32 v12, v12, v19
    """)
    for r in range(8): e(f"v_sub_f32 v{56+r}, v{56+r}, v12")
    for r in range(8): e(f"v_exp_f32 v{56+r}, v{56+r}")
    e("s_nop 0")
    for r in range(4): e(f"v_cvt_pk_bf16_f32 v{16+r}, v{56+2*r}, v{57+2*r}")
    e(f"""
    ds_write_b128 v219, v[16:19]
    """)
    e("s_waitcnt lgkmcnt(0)\ns_barrier")
    stamp(6)
    e(f"""
    s_cmp_eq_u32 s{S_W}, 0
    s_cbranch_scc0 L_bq_nostat
    v_lshlrev_b32 v4, 4, v1
    v_add_u32 v4, {L_PEX}, v4
    ds_read_b128 v[20:23], v4
    ds_read_b128 v[24:27], v4 offset:1024
    ds_read_b128 v[28:31], v4 offset:2048
    ds_read_b128 v[32:35], v4 offset:3072
    v_mov_b32 v36, 0x3f803f80
    v_mov_b32 v37, 0x3f803f80
    v_mov_b32 v38, 0x3f803f80
    v_mov_b32 v39, 0x3f803f80
    v_bfe_u32 v5, v1, 2, 3
    v_lshlrev_b32 v5, 2, v5
    ds_bpermute_b32 v52, v5, v12
    v_mov_b32 v53, s{S_TAG}
    v_mov_b32 v55, s{S_TAG}
    s_lshr_b32 s64, s{S_I}, 2
    s_lshl_b32 s64, s64, 10
    s_lshl_b32 s65, s{S_CH}, 12
    s_add_u32 s64, s64, s65
    s_add_u32 s64, s64, {WS_ST}
    v_lshrrev_b32 v6, 2, v1
    v_lshlrev_b32 v6, 7, v6
    v_and_b32 v4, 3, v1
    v_lshl_add_u32 v6, v4, 4, v6
    v_add_u32 v6, s64, v6
    """)
    for ks in range(4):
        e(f"s_waitcnt lgkmcnt({4-ks if ks < 3 else 0})")
        c = "0" if ks == 0 else "v[40:43]"
        e(f"v_mfma_f32_16x16x32_bf16 v[40:43], v[36:39], v[{20+4*ks}:{23+4*ks}], {c}")
    e.nop(8)
    e(f"""
    ds_bpermute_b32 v54, v5, v40
    s_mov_b64 exec, 0xffffffff
    s_waitcnt lgkmcnt(0)
    global_store_dwordx4 v6, v[52:55], {WS} sc1
    s_mov_b64 exec, -1
    """)
    e.label("L_bq_nostat")
    e(f"""
    v_mov_b32 v105, s{S_TAG}
    v_mov_b32 v107, s{S_TAG}
    v_add_u32 v192, 0x80000, v222
    v_add_u32 v195, 0x10000, v48
    v_and_b32 v196, 3, v1
    s_mov_b32 s66, 0x00010001
    s_mov_b32 s67, {F32(LSB_DEBIAS)}
    s_mov_b32 s64, 0xaaaaaaaa
    s_mov_b32 s65, 0xaaaaaaaa
    """)
    e("s_barrier")
    for t in range(2):
        for ks in range(4):
            r = 128 + 16 * t + 4 * ks
            e(f"ds_read_b64_tr_b16 v[{r}:{r+1}], v{220+t} offset:{8192*ks}")
            e(f"ds_read_b64_tr_b16 v[{r+2}:{r+3}], v{220+t} offset:{8192*ks+1024}")
    tagpat(198, 196, 202)
    if cfg.h3sleep: e(f"s_sleep {cfg.h3sleep}")
    stamp(2)
    def datachk():
        for i in range(8):
            e(f"v_xor_b32 v{80+i}, v{80+i}, v{198+(i&3)}")
        e("v_or3_b32 v4, v80, v81, v82\nv_or3_b32 v5, v83, v84, v85\nv_or3_b32 v4, v86, v87, v4\nv_or_b32 v4, v4, v5\nv_and_b32 v4, s66, v4")
    e.label("L_h3")
    e(f"""
    global_load_dwordx4 v[64:67], v48, {WS} sc1
    global_load_dwordx4 v[68:71], v195, {WS} sc1
    global_load_dwordx4 v[80:83], v222, {WS} sc1
    global_load_dwordx4 v[84:87], v192, {WS} sc1
    s_waitcnt vmcnt(2)
    """)
    tagchk(4, [65, 67, 69, 71])
    e("v_cmp_ne_u32 vcc, 0, v4\ns_cbranch_vccz L_h3_st\ns_waitcnt vmcnt(0)")
    if cfg.h3psleep: e(f"s_sleep {cfg.h3psleep}")
    spin_back("L_h3")
    e.label("L_h3_st")
    stamp(3)
    e("""
    v_max_f32 v4, v64, v68
    s_nop 1
    v_max_f32_dpp v4, v4, v4 row_ror:4 row_mask:0xf bank_mask:0xf
    s_nop 1
    v_max_f32_dpp v4, v4, v4 row_ror:8 row_mask:0xf bank_mask:0xf
    s_nop 0
    v_mov_b32 v5, v4
    s_nop 1
    v_permlane16_swap_b32 v4, v5
    v_max_f32 v4, v4, v5
    v_mov_b32 v5, v4
    s_nop 1
    v_permlane32_swap_b32 v4, v5
    v_max_f32 v4, v4, v5
    v_sub_f32 v64, v64, v4
    v_sub_f32 v68, v68, v4
    v_exp_f32 v64, v64
    v_exp_f32 v68, v68
    s_nop 0
    v_mul_f32 v28, v64, v66
    v_fmac_f32 v28, v68, v70
    s_nop 1
    v_add_f32_dpp v28, v28, v28 row_ror:4 row_mask:0xf bank_mask:0xf
    s_nop 1
    v_add_f32_dpp v28, v28, v28 row_ror:8 row_mask:0xf bank_mask:0xf
    s_nop 0
    v_mov_b32 v29, v28
    s_nop 1
    v_permlane16_swap_b32 v28, v29
    v_add_f32 v28, v28, v29
    v_mov_b32 v29, v28
    s_nop 1
    v_permlane32_swap_b32 v28, v29
    v_add_f32 v28, v28, v29
    v_rcp_f32 v28, v28
    v_mul_f32 v64, s67, v64
    v_mul_f32 v68, s67, v68
    v_mul_f32 v64, v64, v28
    v_mul_f32 v68, v68, v28
    s_waitcnt vmcnt(0)
    s_branch L_h3_dchk
    """)
    e.label("L_h3d")
    e(f"""
    global_load_dwordx4 v[80:83], v222, {WS} sc1
    global_load_dwordx4 v[84:87], v192, {WS} sc1
    s_waitcnt vmcnt(0)
    """)
    e.label("L_h3_dchk")
    datachk()
    poll_tail("L_h3d", "L_h3_done", 4)
    stamp(8)
    for i in range(4):
        e(f"v_lshlrev_b32 v{12+2*i}, 16, v{80+i}\nv_and_b32 v{13+2*i}, 0xffff0000, v{80+i}")
    for i in range(4):
        e(f"v_lshlrev_b32 v{20+2*i}, 16, v{84+i}\nv_and_b32 v{21+2*i}, 0xffff0000, v{84+i}")
        e(f"v_pk_mul_f32 v[{12+2*i}:{13+2*i}], v[{12+2*i}:{13+2*i}], v[64:65] op_sel_hi:[1,0]")
    for i in range(4):
        e(f"v_pk_fma_f32 v[{12+2*i}:{13+2*i}], v[{20+2*i}:{21+2*i}], v[68:69], v[{12+2*i}:{13+2*i}] op_sel_hi:[1,0,1]")
    e("s_nop 0")
    for i in range(4):
        e(f"v_add_f32_dpp v{28+i}, v{12+i}, v{12+i} row_ror:8 row_mask:0xf bank_mask:0x3")
        e(f"v_add_f32_dpp v{28+i}, v{16+i}, v{16+i} row_ror:8 row_mask:0xf bank_mask:0xc")
    e("s_nop 0")
    for i in range(2):
        e(f"v_add_f32_dpp v{12+i}, v{28+i}, v{28+i} row_ror:12 row_mask:0xf bank_mask:0x5")
        e(f"v_add_f32_dpp v{12+i}, v{30+i}, v{30+i} row_ror:4 row_mask:0xf bank_mask:0xa")
    e("""
    s_nop 1
    v_permlane16_swap_b32 v12, v13
    v_add_f32 v12, v12, v13
    v_mov_b32 v13, v12
    s_nop 1
    v_permlane32_swap_b32 v12, v13
    s_mov_b64 exec, 0xffffffff
    v_add_f32 v12, v12, v13
    v_cvt_pk_bf16_f32 v12, v12, v12
    ds_write_b16 v223, v12
    s_mov_b64 exec, -1
    s_waitcnt lgkmcnt(0)
    s_barrier
    """)
    for ks in range(4):
        e(f"ds_read_b128 v[{112+4*ks}:{115+4*ks}], v49 offset:{64*ks}")
    for ks in range(4):
        e(f"s_waitcnt lgkmcnt({3-ks})")
        for t in range(2):
            acc = f"v[{96+4*t}:{99+4*t}]"
            c = "0" if ks == 0 else acc
            r = 128 + 16 * t + 4 * ks
            e(f"v_mfma_f32_16x16x32_bf16 {acc}, v[{r}:{r+3}], v[{112+4*ks}:{115+4*ks}], {c}")
    e("s_mov_b32 exec_lo, 0x00030003\ns_mov_b32 exec_hi, 0x00030003")
    e.nop(6)
    for r in range(4):
        e(f"v_cndmask_b32 v{96+r}, v{96+r}, v{100+r}, s[64:65]")
    e("""
    v_cvt_pk_bf16_f32 v104, v96, v97
    v_cvt_pk_bf16_f32 v106, v98, v99
    """)
    if cfg.fast4 or cfg.xfast: e(f"global_store_dwordx4 v51, v[104:107], {WS}")
    e(f"global_store_dwordx4 v50, v[104:107], {WS} sc1\ns_mov_b64 exec, -1")
    stamp(9)
    e("s_branch L_b_tail")
    e.label("L_bp_prep")
    e(f"""
    v_lshl_add_u32 v58, v2, 2, v62
    v_and_b32 v13, 7, v58
    v_lshlrev_b32 v13, 1, v13
    v_lshlrev_b32 v58, 10, v58
    v_add_u32 v58, v58, v59
    s_and_b32 s66, s{S_W}, 3
    s_lshl_b32 s3, s66, 4
    v_add_u32 v12, s3, v63
    v_xor_b32 v12, v12, v13
    v_lshl_add_u32 v8, v12, 4, v58
    """)
    for tt in range(1, 8):
        e(f"v_xor_b32 v{8+tt}, {32*tt}, v8")
    e(f"""
    v_lshlrev_b32 v16, 4, v1
    v_add_u32 v16, {L_PEX}, v16
    s_mov_b32 s{SRD_A}, s{P_WUV}
    s_mov_b32 s{SRD_A+1}, s{P_WUV+1}
    s_mov_b32 s{SRD_A+2}, 4194304
    s_mov_b32 s{SRD_A+3}, 0x20000
    s_lshl_b32 s3, s{S_W}, 2
    s_and_b32 s3, s3, 8
    v_lshlrev_b32 v19, 1, v2
    v_xor_b32 v19, v19, v3
    v_xor_b32 v19, s3, v19
    v_lshlrev_b32 v19, 4, v19
    v_lshl_add_u32 v19, v2, 13, v19
    s_lshl_b32 s20, s{S_J}, 5
    s_add_u32 s20, s20, s66
    s_lshl_b32 s20, s20, 15
    s_lshl_b32 s21, s{S_H}, 8
    s_add_u32 s20, s20, s21
    s_lshl_b32 s21, s66, 10
    v_lshl_add_u32 v56, v1, 4, s21
    s_lshl_b32 s3, s{S_CH}, 15
    s_lshr_b32 s64, s{S_I}, 2
    s_lshl_b32 s65, s64, 13
    s_add_u32 s3, s3, s65
    s_lshl_b32 s65, s66, 8
    s_add_u32 s3, s3, s65
    s_add_u32 s3, s3, {WS_PART}
    v_and_b32 v17, 7, v3
    v_lshlrev_b32 v17, 10, v17
    v_lshl_add_u32 v17, v2, 4, v17
    v_lshrrev_b32 v20, 3, v3
    v_lshl_add_u32 v17, v20, 6, v17
    v_add_u32 v17, s3, v17
    s_lshl_b32 s64, s64, 10
    s_lshl_b32 s65, s{S_CH}, 12
    s_add_u32 s64, s64, s65
    s_add_u32 s64, s64, {WS_ST}
    v_lshrrev_b32 v18, 2, v1
    v_lshlrev_b32 v18, 7, v18
    v_and_b32 v20, 3, v1
    v_lshl_add_u32 v18, v20, 4, v18
    v_add_u32 v18, s64, v18
    v_mov_b32 v36, 0x3f803f80
    v_mov_b32 v37, 0x3f803f80
    v_mov_b32 v38, 0x3f803f80
    v_mov_b32 v39, 0x3f803f80
    s_waitcnt lgkmcnt(0)
    """)
    mk_tag()
    e("v_and_b32 v50, 3, v1\ns_mov_b32 s67, 0x00010001")
    tagpat(44, 50, 48)
    e(f"v_mov_b32 v53, s{S_TAG}\nv_mov_b32 v55, s{S_TAG}")
    tagpat(57, 2, 61)
    e(f"s_waitcnt vmcnt(0)" + ("" if cfg.h2init else f"\nglobal_load_dwordx4 v[40:43], v5, {WS} sc1"))
    e("s_barrier")
    stamp(14)
    if cfg.xfast:
        e(f"""
        s_cmp_eq_u32 s{S_W}, 7
        s_cbranch_scc0 L_noxid
        s_getreg_b32 s3, hwreg(HW_REG_XCC_ID, 0, 4)
        v_mov_b32 v224, s3
        v_mov_b32 v225, s{S_TAG}
        v_mov_b32 v226, s3
        v_mov_b32 v227, s{S_TAG}
        s_and_b32 s3, s2, 127
        s_lshl_b32 s3, s3, 7
        s_add_u32 s3, s3, {WS_XID}
        v_lshl_add_u32 v228, v1, 4, s3
        s_mov_b64 exec, 0xf
        global_store_dwordx4 v228, v[224:227], {WS} sc1
        s_mov_b64 exec, -1
        """)
        e.label("L_noxid")
    for half in range(2):
        for tt in range(8):
            for k2 in range(2):
                ks = 2 * half + k2
                for eb in range(2):
                    r = 64 + 16 * tt + 4 * ks + 2 * eb
                    e(f"ds_read_b64_tr_b16 v[{r}:{r+1}], v{8+tt} offset:{32768*k2+16384*eb}")
        if half == 0:
            for tt in range(8):
                e(f"v_add_u32 v{8+tt}, 0x10000, v{8+tt}")
    h2_poll("p")
    for ii in range(8):
        e(f"""
        s_mov_b32 m0, s21
        s_add_u32 s21, s21, 4096
        buffer_load_dwordx4 v19, s[{SRD_A}:{SRD_A+3}], s20 offen{NT} lds
        s_add_u32 s20, s20, {4*4*8192}
        """)
    e("s_barrier\ns_barrier")
    for ks in range(4):
        e(f"ds_read_b128 v[{20+4*ks}:{23+4*ks}], v16 offset:{1024*ks}")
    e(f"""
    v_bfe_u32 v5, v1, 2, 3
    v_lshlrev_b32 v4, 4, v5
    v_add_u32 v4, {L_MX+128}, v4
    v_lshlrev_b32 v5, 2, v5
    s_mov_b32 s64, 0xff00ff00
    s_mov_b32 s65, 0xff00ff00
    """)
    stamp(6)
    for pr in range(4):
        e(f"v_mov_b32 v{37+0}, v{37}") if False else None
    def epi(sg):
        g = 64 + 64 * sg
        out = []
        for t in range(4):
            a0 = 192 + 16 * sg + 4 * t
            out.append(f"v_cvt_pk_bf16_f32 v{44+2*t}, v{a0}, v{a0+1}")
            out.append(f"v_cvt_pk_bf16_f32 v{45+2*t}, v{a0+2}, v{a0+3}")
        for i in range(4):
            out.append(f"v_cndmask_b32 v{g+i}, v{44+i}, v{48+i}, s[64:65]")
        for i in range(4):
            out.append(f"v_and_or_b32 v{g+i}, v{g+i}, s66, v{57+i}")
        out.append(f"global_store_dwordx4 v17, v[{g}:{g+3}], {WS} offset:{128*sg} sc1")
        return out
    e("s_mov_b32 s66, 0xfffefffe")
    if cfg.prio: e("s_setprio 3")
    ep0 = epi(0)
    for sg in range(2):
        k = 0
        for ks in range(4):
            for t in range(4):
                tt = 4 * sg + t
                acc = f"v[{192+4*tt}:{195+4*tt}]"
                c = "0" if ks == 0 else acc
                r = 64 + 16 * tt + 4 * ks
                if sg == 0 and t == 0: e(f"s_waitcnt lgkmcnt({3-ks})")
                e(f"v_mfma_f32_16x16x32_bf16 {acc}, v[{r}:{r+3}], v[{20+4*ks}:{23+4*ks}], {c}")
                k += 1
                if sg == 1 and k >= 8:
                    for _ in range(2):
                        if ep0: e(ep0.pop(0))
        if sg == 1:
            while ep0: e(ep0.pop(0))
    e.nop(8)
    for ins in epi(1): e(ins)
    stamp(7)
    e("s_waitcnt vmcnt(2)")
    e.label("L_b_st2")
    e("s_barrier\ns_barrier")
    e.label("L_b_tail")
    e("s_barrier")
    s7_loads()
    e("s_waitcnt vmcnt(0)")
    s7_prep()
    if cfg.b5sleep: e(f"s_sleep {cfg.b5sleep}")

    e.label("L_S7")
    if cfg.s7warm:
        e("s_mov_b32 s7, 0")
    e(f"s_cmp_lt_u32 s{S_W}, 5\ns_cbranch_scc0 L_s7_bar")
    e("s_mov_b32 s66, 0x00010001")
    e.label("L_h5")
    e(f"""
    global_load_dwordx4 v[40:43], v244, {WS} sc1
    global_load_dwordx4 v[44:47], v245, {WS} sc1
    s_waitcnt vmcnt(0)
    """)
    for i in range(8):
        e(f"v_xor_b32 v{40+i}, v{40+i}, v{10+(i&3)}")
    e("v_or3_b32 v56, v40, v41, v42\nv_or3_b32 v57, v43, v44, v45\nv_or3_b32 v56, v46, v47, v56\nv_or_b32 v56, v56, v57\nv_and_b32 v56, s66, v56")
    poll_tail("L_h5", "L_h5_done", 56, cfg.h5sleep)
    stamp(12)
    if cfg.earlyepoch:
        e(f"""
        s_or_b32 s3, s2, s{S_W}
        s_cmp_eq_u32 s3, 0
        s_cbranch_scc0 L_h5_noep
        v_lshlrev_b32 v48, 2, v1
        v_mov_b32 v49, s{S_TAG}
        s_mov_b64 exec, 0xffff
        global_store_dword v48, v49, {WS} sc1
        s_mov_b64 exec, -1
        """)
        e.label("L_h5_noep")
    for i in range(4):
        e(f"v_lshlrev_b32 v{80+2*i}, 16, v{40+i}\nv_and_b32 v{81+2*i}, 0xffff0000, v{40+i}")
    for i in range(4):
        e(f"v_lshlrev_b32 v{88+2*i}, 16, v{44+i}\nv_and_b32 v{89+2*i}, 0xffff0000, v{44+i}")
        e(f"v_pk_add_f32 v[{80+2*i}:{81+2*i}], v[{80+2*i}:{81+2*i}], v[{88+2*i}:{89+2*i}]")
    e("s_nop 0")
    for i in range(4): e(f"v_permlane16_swap_b32 v{80+i}, v{84+i}")
    for i in range(4): e(f"v_add_f32 v{80+i}, v{80+i}, v{84+i}")
    e(f"""
    s_nop 0
    v_permlane32_swap_b32 v80, v82
    v_permlane32_swap_b32 v81, v83
    v_add_f32 v50, v80, v82
    v_add_f32 v51, v81, v83
    v_pk_add_f32 v[50:51], v[50:51], v[58:59]
    ds_write_b64 v248, v[50:51]
    v_add_f32 v52, v50, v51
    v_mul_f32 v53, v50, v50
    v_fmac_f32 v53, v51, v51
    """)
    dpp_reduce([52, 53])
    e(f"""
    s_mov_b32 exec_lo, 0
    s_mov_b32 exec_hi, 0x80000000
    ds_write_b64 v68, v[52:53]
    s_mov_b64 exec, -1
    """)
    e.label("L_s7_bar")
    e(f"""
    s_waitcnt lgkmcnt(0)
    s_barrier
    """)
    if cfg.s7stamps: stamp(1)
    e(f"""
    s_cmp_lt_u32 s2, {216 if cfg.outmap else 214}
    s_cbranch_scc0 L_fin
    """)
    e.label("L_s7_body")
    e(f"""
    ds_read_b128 v[40:43], v62
    ds_read_b128 v[44:47], v62 offset:16
    ds_read_b64 v[48:49], v62 offset:32
    ds_read_b32 v50, v63
    ds_read_b32 v52, v63 offset:4
    ds_read_b32 v54, v63 offset:8
    s_waitcnt lgkmcnt(3)
    v_pk_add_f32 v[40:41], v[40:41], v[42:43]
    v_pk_add_f32 v[44:45], v[44:45], v[46:47]
    v_pk_add_f32 v[40:41], v[40:41], v[48:49]
    v_pk_add_f32 v[40:41], v[40:41], v[44:45]
    v_pk_mul_f32 v[40:41], v[40:41], v[60:61] op_sel_hi:[1,0]
    v_fma_f32 v41, -v40, v40, v41
    v_max_f32 v41, 0, v41
    v_fma_f32 v42, v41, v61, v65
    s_waitcnt lgkmcnt(0)
    v_rsq_f32 v42, v42
    v_sub_f32 v70, v50, v40
    v_sub_f32 v72, v52, v40
    v_sub_f32 v74, v54, v40
    v_mul_f32 v70, v70, v42
    v_mul_f32 v72, v72, v42
    v_mul_f32 v74, v74, v42
    """)
    if cfg.s7stamps: stamp(2)
    combos = [(r, o) for o in range(3) for r in range(2)]
    for c, (r, o) in enumerate(combos):
        e(f"v_pk_fma_f32 v[{80+2*c}:{81+2*c}], v[{70+2*o}:{71+2*o}], v[{232+2*r}:{233+2*r}], v[{236+2*r}:{237+2*r}] op_sel_hi:[0,1,1]")
    for c in range(6):
        e(f"v_pk_mul_f32 v[{92+2*c}:{93+2*c}], v[{80+2*c}:{81+2*c}], v[{80+2*c}:{81+2*c}]")
    for c in range(6):
        e(f"v_pk_fma_f32 v[{92+2*c}:{93+2*c}], v[{92+2*c}:{93+2*c}], v[66:67], v[64:65] op_sel_hi:[1,0,0]")
    for c in range(6):
        e(f"v_pk_mul_f32 v[{92+2*c}:{93+2*c}], v[{92+2*c}:{93+2*c}], v[{80+2*c}:{81+2*c}]")
    for c in range(12):
        e(f"v_exp_f32 v{92+c}, v{92+c}")
    for c in range(6):
        e(f"v_pk_add_f32 v[{92+2*c}:{93+2*c}], v[{92+2*c}:{93+2*c}], 1.0 op_sel_hi:[1,0]")
    for c in range(12):
        e(f"v_rcp_f32 v{92+c}, v{92+c}")
    for c in range(6):
        e(f"v_pk_mul_f32 v[{80+2*c}:{81+2*c}], v[{80+2*c}:{81+2*c}], v[{92+2*c}:{93+2*c}]")
    for o in range(3):
        e(f"v_pk_mul_f32 v[{104+2*o}:{105+2*o}], v[{80+4*o}:{81+4*o}], v[240:241]")
    for o in range(3):
        e(f"v_pk_fma_f32 v[{104+2*o}:{105+2*o}], v[{82+4*o}:{83+4*o}], v[242:243], v[{104+2*o}:{105+2*o}]")
    if cfg.s7stamps: stamp(3)
    e("v_add_f32 v110, v104, v105\nv_add_f32 v111, v106, v107\nv_add_f32 v112, v108, v109")
    dpp_reduce([110, 111, 112])
    e(f"""
    s_mov_b32 exec_lo, 0
    s_mov_b32 exec_hi, 0x80000000
    ds_write_b128 v69, v[110:113]
    s_mov_b64 exec, -1
    """)
    if cfg.s7warm:
        e("s_cmp_eq_u32 s7, 1\ns_cbranch_scc1 L_s7_warm_ret")
    e(f"""
    {"s_mul_i32 s3, s5, 80" if cfg.outmap else "s_mov_b32 s3, 560"}
    s_add_u32 s3, s3, 80
    v_cmp_gt_u32 vcc, s3, v8
    v_lshlrev_b32 v8, 1, v8
    s_waitcnt lgkmcnt(0)
    s_barrier
    """)
    if cfg.s7stamps: stamp(4)
    e(f"""
    s_cmp_eq_u32 s{S_W}, 0
    s_cbranch_scc0 L_fin
    s_and_b64 vcc, vcc, 7
    s_and_saveexec_b64 s[64:65], vcc
    s_cbranch_execz L_fin0
    """)
    for w in range(8):
        e(f"ds_read_b32 v{40+w}, v6 offset:{16*w}")
    e(f"""
    ds_read_b32 v48, v7
    s_waitcnt lgkmcnt(0)
    v_add_f32 v40, v40, v41
    v_add_f32 v42, v42, v43
    v_add_f32 v44, v44, v45
    v_add_f32 v46, v46, v47
    v_add_f32 v48, v48, v9
    v_add_f32 v40, v40, v42
    v_add_f32 v44, v44, v46
    v_add_f32 v40, v40, v48
    v_add_f32 v40, v40, v44
    v_cvt_pk_bf16_f32 v40, v40, v40
    global_store_short v8, v40, s[{P_OUT}:{P_OUT+1}]
    """)
    e.label("L_fin0")
    e("s_mov_b64 exec, s[64:65]")
    e.label("L_fin")
    stamp(13)
    e(f"""
    s_cmp_eq_u32 s2, {0 if not (cfg.noepoch or cfg.earlyepoch) else 100000}
    s_cbranch_scc0 L_noepoch
    s_cmp_eq_u32 s{S_W}, 0
    s_cbranch_scc0 L_noepoch
    v_lshlrev_b32 v6, 2, v1
    v_mov_b32 v7, s{S_TAG}
    s_mov_b64 exec, 0xffff
    global_store_dword v6, v7, {WS} sc1
    s_mov_b64 exec, -1
    """)
    e.label("L_noepoch")
    if cfg.stamps:
        e(f"""
        s_waitcnt lgkmcnt(0)
        s_lshl_b32 s3, s2, 3
        s_add_u32 s3, s3, s{S_W}
        s_lshl_b32 s3, s3, 6
        s_add_u32 s3, s3, {WS_DBG}
        v_mov_b32 v6, s3
        s_mov_b64 exec, 1
        """)
        for q in range(4):
            for k in range(4):
                e(f"v_mov_b32 v{8+k}, s{S_STAMP+2*min(4*q+k,14)}")
            e(f"global_store_dwordx4 v6, v[8:11], {WS} offset:{16*q}")
            e.nop(2)
        e("s_mov_b64 exec, -1")
    e.label("L_exit")
    e("s_endpgm")
    if cfg.s7warm:
        e.label("L_s7_warm_ret")
        e("s_waitcnt lgkmcnt(0)\ns_setpc_b64 s[68:69]")
    e.label("L_fail")
    if cfg.stamps: e("s_mov_b64 exec, -1\ns_branch L_noepoch")
    e("s_endpgm")
    e.label("L_end")
    return e

def render(cfg):
    e = gen(cfg)
    body = e.text()
    hdr = open("cdna_kernels/" + NAME[:-7] + ".s.ref").read().split("; Override launch geometry")[0]
    out = hdr + f"; @launch grid=(256,1,1) block=(512,1,1) lds={LDS_BYTES}\n"
    out += f""".amdgcn_target "amdgcn-amd-amdhsa--gfx950"
.text
.globl {NAME}
.p2align 8
.type {NAME},@function
{NAME}:
{body}.section .rodata,"a"
.p2align 6
.amdhsa_kernel {NAME}
  .amdhsa_next_free_vgpr 256
  .amdhsa_next_free_sgpr 102
  .amdhsa_accum_offset 256
  .amdhsa_group_segment_fixed_size 0
  .amdhsa_kernarg_size 112
  .amdhsa_user_sgpr_count 2
  .amdhsa_user_sgpr_kernarg_segment_ptr 1
  .amdhsa_system_sgpr_workgroup_id_x 1
.end_amdhsa_kernel
"""
    return out, body

if __name__ == "__main__":
    cfg = Cfg()
    outp = sys.argv[1] if len(sys.argv) > 1 else "cdna_kernels/" + NAME[:-7] + ".s"
    for a in sys.argv[2:]:
        k, v = a.split("=")
        setattr(cfg, k, int(v))
    out, body = render(cfg)
    probs = check_hazards(body) + check_kernarg_race(body)
    for p in probs: print("HAZARD", p)
    open(outp, "w").write(out)
    print("wrote", outp, len(out), "bytes;", len(body.splitlines()), "lines")
```

```python
import sys, struct
from asmlib import Emit, check_hazards, check_kernarg_race

NAME = "sequential_preLN__compressed_kv_cla__mixer_token_mlp__decode_kernel"

WS_Q1, WS_Q1F, WS_QA, WS_CTX, WS_OP, WS_CTXF, WS_ST, WS_PART, WS_DBG = 0x10000, 0x20000, 0x50000, 0x60000, 0x70000, 0x90000, 0xC0000, 0x100000, 0x400000
WS_XID = 0x30000
L_CKV = 0
L_WO = 0
L_WQ = 32768
L_WUK = 73728
L_QAS = 131072
QAS_STRIDE = 1056
L_PEX = L_QAS + 8 * QAS_STRIDE
L_MX = L_PEX + 4096
L_LNS = 143872
L_QP = 145152
QP_STRIDE = 288
L_CTXS = 146304
L_BNC = 146560
L_ORED = 147584
L_HS = 149632
L_ST7 = 152192
L_YRED = 152256
LDS_BYTES = 152384

S_W, S_X, S_I, S_ISB = 4, 5, 6, 7
P_X, P_CKV, P_WQ, P_WUK, P_WUV, P_WO, P_W1, P_B1, P_W2, P_B2, P_OUT, P_DBG, P_WS = 8, 10, 12, 14, 16, 18, 22, 24, 26, 28, 30, 32, 34
S_TAG, S_H, S_J, S_CH = 36, 37, 38, 39
SRD_0, SRD_A, SRD_WO, SRD_W1, SRD_B1, SRD_W2 = 40, 44, 48, 52, 56, 60
S_SPIN = 100
S_STAMP = 70

def F32(x): return "0x%08x" % struct.unpack("<I", struct.pack("<f", x))[0]
WS = f"s[{P_WS}:{P_WS+1}]"

LSB_DEBIAS = 1.0 + 0.5 * 2.0**-7 * 0.7213475

DESCR = """; One persistent launch, one workgroup per CU, MLA weight absorption (q is pushed through w_uk, ctx stays in latent space until w_uv).
; Hand-offs go through d_ws; every record carries a per-launch tag (LCG of the epoch word found in d_ws[0]): either {data, tag} 8-byte
"""

class Cfg:
    stamps = 0
    nt = 1
    spin = 1 << 17
    h3sleep = 13
    fast1 = 0
    fast4 = 0
    codepf = 16
    bdelay = 0
    exp_nob = 0
    s7warm = 0
    qstat = 1
    ff1 = 10
    h2init = 0
    xfast = 1
    prio = 0
    ukdelay = 0
    touchslow = 0
    spreadk = 0
    spreadq = 0
    earlyepoch = 1
    tlbw = 0
    tlbo = 0
    tlbk = 0
    selftouch = 0
    lsb3 = 1
    ukearly = 0
    outmap = 1
    noepoch = 0
    s7stamps = 0
    touch = 0
    uknt = 1
    tsleep = 0
    planeorder = 1
    hperm = 0
    h3psleep = 0
    b5sleep = 40
    f5sleep = 14
    n5sleep = 40
    ckvnt = 0
    ukbar = 1
    bsleep = 14
    uvpf = 1
    h5sleep = 0
    h4sleep = 0
    h2sleep = 0
    exp_nowuv = 0

def gen(cfg):
    e = Emit()
    NT = " nt" if cfg.nt else ""
    def stamp(k):
        if cfg.stamps:
            e(f"s_memrealtime s[{S_STAMP+2*k}:{S_STAMP+2*k+1}]")
    def dpp_reduce(regs, op="v_add_f32"):
        steps = ["row_shr:1 row_mask:0xf bank_mask:0xf bound_ctrl:0", "row_shr:2 row_mask:0xf bank_mask:0xf bound_ctrl:0",
                 "row_shr:4 row_mask:0xf bank_mask:0xf bound_ctrl:0", "row_shr:8 row_mask:0xf bank_mask:0xf bound_ctrl:0",
                 "row_bcast:15 row_mask:0xa bank_mask:0xf", "row_bcast:31 row_mask:0xc bank_mask:0xf"]
        pad = max(0, 2 - (len(regs) - 1))
        e.nop(2)
        for k, st in enumerate(steps):
            for r in regs:
                e(f"{op}_dpp v{r}, v{r}, v{r} {st}")
            if k < len(steps) - 1 and pad: e.nop(pad)
    def tagchk(acc, tags):
        for k, t in enumerate(tags):
            if k == 0:
                e(f"v_xor_b32 v{acc}, s{S_TAG}, v{t}")
            else:
                e(f"v_bitop3_b32 v{acc}, v{acc}, v{t}, s{S_TAG} bitop3:0xf6")
    def spin_back(lbl_loop):
        e(f"s_sub_u32 s{S_SPIN}, s{S_SPIN}, 1")
        e(f"s_cbranch_scc0 {lbl_loop}")
        e("s_branch L_fail")
    def poll_tail(lbl_loop, lbl_done, acc, sleep=0):
        e(f"v_cmp_ne_u32 vcc, 0, v{acc}")
        e(f"s_cbranch_vccz {lbl_done}")
        if sleep: e(f"s_sleep {sleep}")
        spin_back(lbl_loop)
        e.label(lbl_done)
    def tr_common():
        e("""
        v_bfe_u32 v62, v1, 2, 2
        v_bfe_u32 v63, v1, 1, 1
        v_and_b32 v59, 1, v1
        v_lshlrev_b32 v59, 3, v59
        """)
    def tr256_addr(dst, tmp):
        e(f"""
        v_and_b32 v{dst}, 1, v2
        v_lshl_add_u32 v{dst}, v{dst}, 2, v62
        v_lshlrev_b32 v{dst}, 1, v{dst}
        s_lshl_b32 s3, s{S_W}, 1
        v_add_u32 v{tmp}, s3, v63
        v_xor_b32 v{dst}, v{dst}, v{tmp}
        v_lshl_add_u32 v{dst}, v{dst}, 4, v59
        v_lshl_add_u32 v{tmp}, v2, 3, v62
        v_lshl_add_u32 v{dst}, v{tmp}, 8, v{dst}
        """)
    def tagpat(dst, vsel, tmp):
        e(f"v_lshlrev_b32 v{tmp}, 3, v{vsel}")
        e(f"v_lshrrev_b32 v{tmp}, v{tmp}, s{S_TAG}") if False else e(f"v_mov_b32 v{tmp+1}, s{S_TAG}\nv_lshrrev_b32 v{tmp}, v{tmp}, v{tmp+1}")
        for i in range(4):
            e(f"v_bfe_u32 v{dst+i}, v{tmp}, {2*i}, 1")
            e(f"v_bfe_u32 v{tmp+1}, v{tmp}, {2*i+1}, 1")
            e(f"v_lshl_or_b32 v{dst+i}, v{tmp+1}, 16, v{dst+i}")
    def mk_tag():
        e(f"s_mul_i32 s{S_TAG}, s{S_TAG}, 1664525\ns_add_u32 s{S_TAG}, s{S_TAG}, 1013904223")
    def s7_loads():
        e(f"""
        s_mov_b32 s{SRD_W1}, s{P_W1}
        s_mov_b32 s{SRD_W1+1}, s{P_W1+1}
        s_mov_b32 s{SRD_W1+2}, 3456
        s_mov_b32 s{SRD_W1+3}, 0x20000
        s_mov_b32 s{SRD_B1}, s{P_B1}
        s_mov_b32 s{SRD_B1+1}, s{P_B1+1}
        s_mov_b32 s{SRD_B1+2}, 3456
        s_mov_b32 s{SRD_B1+3}, 0x20000
        s_mov_b32 s{SRD_W2}, s{P_W2}
        s_mov_b32 s{SRD_W2+1}, s{P_W2+1}
        s_mov_b32 s{SRD_W2+2}, 3456
        s_mov_b32 s{SRD_W2+3}, 0x20000
        s_lshl_b32 s3, s{S_W}, 8
        v_lshl_add_u32 v4, v1, 2, s3
        buffer_load_dword v224, v4, s[{SRD_W1}:{SRD_W1+3}], 0 offen
        buffer_load_dword v225, v4, s[{SRD_W1}:{SRD_W1+3}], 0 offen offset:2048
        buffer_load_dword v226, v4, s[{SRD_B1}:{SRD_B1+3}], 0 offen
        buffer_load_dword v227, v4, s[{SRD_B1}:{SRD_B1+3}], 0 offen offset:2048
        buffer_load_dword v228, v4, s[{SRD_W2}:{SRD_W2+3}], 0 offen
        buffer_load_dword v229, v4, s[{SRD_W2}:{SRD_W2+3}], 0 offen offset:2048
        v_mov_b32 v4, 0
        global_load_ushort v231, v4, s[{P_B2}:{P_B2+1}]
        {"global_load_dword v138, v4, s[%d:%d]" % (P_OUT, P_OUT+1) if cfg.tlbo else ""}
        s_min_u32 s3, s{S_W}, 4
        s_lshl_b32 s3, s3, 8
        v_lshlrev_b32 v4, 4, v3
        v_and_b32 v230, 1, v2
        v_lshl_add_u32 v4, v230, 3, v4
        v_lshrrev_b32 v230, 1, v2
        v_lshl_add_u32 v4, v230, 2, v4
        v_add_u32 v4, s3, v4
        global_load_dword v230, v4, s[{P_X}:{P_X+1}]
        """)
    OUTIDX = ("s_lshr_b32 s101, s2, 3\ns_mul_i32 s101, s101, 3\ns_mul_i32 s3, s5, 80\ns_add_u32 s101, s101, s3" if cfg.outmap else "s_mul_i32 s101, s2, 3")
    def s7_prep():
        for k, (raw, dst) in enumerate([(224, 232), (225, 234), (226, 236), (227, 238), (228, 240), (229, 242)]):
            e(f"v_lshlrev_b32 v{dst}, 16, v{raw}\nv_and_b32 v{dst+1}, 0xffff0000, v{raw}")
        e(f"""
        v_mul_u32_u24 v244, 1280, v2
        v_lshl_add_u32 v244, v3, 4, v244
        s_lshl_b32 s3, s{S_W}, 8
        s_add_u32 s64, s3, {WS_OP}
        v_add_u32 v244, s64, v244
        v_add_u32 v245, 5120, v244
        s_lshl_b32 s3, s{S_W}, 9
        s_add_u32 s3, s3, {L_HS}
        v_lshlrev_b32 v248, 5, v3
        v_and_b32 v57, 1, v2
        v_lshl_add_u32 v248, v57, 4, v248
        v_lshrrev_b32 v57, 1, v2
        v_lshl_add_u32 v248, v57, 3, v248
        v_add_u32 v248, s3, v248
        v_lshlrev_b32 v58, 16, v230
        v_and_b32 v59, 0xffff0000, v230
        v_mov_b32 v60, {F32(1.0/640)}
        v_mov_b32 v61, {F32(1.0 + 1e-5)}
        v_mov_b32 v65, {F32(1e-10)}
        v_mov_b32 v64, {F32(-2.0*0.7978845608028654*1.4426950408889634)}
        v_mov_b32 v66, {F32(-2.0*0.7978845608028654*1.4426950408889634*0.044715)}
        v_mov_b32 v62, {L_ST7}
        {OUTIDX}
        s_lshl_b32 s3, s101, 2
        s_add_u32 s3, s3, {L_HS}
        v_mov_b32 v63, s3
        s_lshl_b32 s3, s{S_W}, 3
        s_add_u32 s3, s3, {L_ST7}
        v_mov_b32 v68, s3
        s_lshl_b32 s3, s{S_W}, 4
        s_add_u32 s3, s3, {L_YRED}
        v_mov_b32 v69, s3
        v_mov_b32 v113, 0
        v_add_u32 v8, s101, v1
        v_lshlrev_b32 v6, 2, v1
        v_add_u32 v6, {L_YRED}, v6
        v_lshlrev_b32 v7, 2, v8
        v_add_u32 v7, {L_HS}, v7
        v_lshlrev_b32 v9, 16, v231
        """)
        e("v_and_b32 v57, 3, v1")
        tagpat(10, 57, 14)
        if cfg.s7warm:
            lbl = f"L_wret{len(e.lines)}"
            e(f"s_mov_b32 s7, 1\ns_getpc_b64 s[68:69]\ns_add_u32 s68, s68, 12\ns_addc_u32 s69, s69, 0\ns_branch L_s7_body")
            e(f"v_lshlrev_b32 v58, 16, v230\nv_and_b32 v59, 0xffff0000, v230")

    def uk_dma(bar):
        e(f"""
        s_mov_b32 s{SRD_A}, s{P_WUK}
        s_mov_b32 s{SRD_A+1}, s{P_WUK+1}
        s_mov_b32 s{SRD_A+2}, 4194304
        s_mov_b32 s{SRD_A+3}, 0x20000
        s_and_b32 s66, s{S_W}, 1
        s_lshl_b32 s66, s66, 3
        v_lshlrev_b32 v7, 1, v2
        v_xor_b32 v7, v7, v3
        v_xor_b32 v7, s66, v7
        v_lshlrev_b32 v7, 4, v7
        v_lshl_add_u32 v7, v2, 13, v7
        s_lshl_b32 s64, s{S_J}, 5
        s_add_u32 s64, s64, s{S_W}
        s_lshl_b32 s64, s64, 15
        s_lshl_b32 s65, s{S_H}, 8
        s_add_u32 s64, s64, s65
        s_lshl_b32 s67, s{S_W}, 10
        s_add_u32 s67, s67, {L_WUK}
        """)
        if bar: e("s_barrier")
        for ii in range(8):
            e(f"""
            s_mov_b32 m0, s67
            s_add_u32 s67, s67, 4096
            buffer_load_dwordx4 v7, s[{SRD_A}:{SRD_A+3}], s64 offen{NT} lds
            s_add_u32 s64, s64, {4*4*8192}
            """)

    e(f"""
    s_cmp_ge_u32 s2, 256
    s_cbranch_scc1 L_exit
    s_load_dwordx16 s[8:23], s[0:1], 0
    s_load_dwordx4 s[32:35], s[0:1], 96
    s_load_dwordx8 s[24:31], s[0:1], 64
    """)
    if cfg.codepf:
        e(f"""
        s_cmp_lt_u32 s2, {cfg.codepf}
        s_cbranch_scc0 L_nopf
        s_getpc_b64 s[64:65]
        """)
        e.label("L_pc")
        e(f"""
        s_and_b32 s64, s64, 0xffffff00
        v_lshlrev_b32 v203, 7, v0
        v_min_u32 v203, L_end-L_pc-4, v203
        v_mov_b32 v201, s65
        v_add_co_u32 v200, vcc, s64, v203
        s_nop 1
        v_addc_co_u32 v201, vcc, 0, v201, vcc
        global_load_dword v202, v[200:201], off
        """)
        e.label("L_nopf")
    if cfg.stamps:
        e(f"s_memrealtime s[{S_STAMP}:{S_STAMP+1}]")
        for k in range(1, 15): e(f"s_mov_b32 s{S_STAMP+2*k}, 0")
    e(f"""
    v_and_b32 v1, 63, v0
    v_lshrrev_b32 v4, 6, v0
    v_lshrrev_b32 v2, 4, v1
    v_readfirstlane_b32 s{S_W}, v4
    v_and_b32 v3, 15, v1
    s_and_b32 s{S_X}, s2, 7
    s_bfe_u32 s{S_I}, s2, 0x40003
    s_lshr_b32 s{S_H}, s{S_I}, 2
    s_xor_b32 s{S_H}, s{S_H}, {cfg.hperm}
    s_lshl_b32 s3, s{S_X}, 2
    s_add_u32 s{S_H}, s{S_H}, s3
    s_and_b32 s{S_J}, s{S_I}, 3
    s_mov_b32 s{SRD_0+3}, 0x20000
    s_mov_b32 s{S_SPIN}, {cfg.spin}
    s_cmp_ge_u32 s2, 128
    s_cbranch_scc1 L_B0
    """)
    e(f"""
    s_lshl_b32 s66, s{S_W}, 2
    s_and_b32 s66, s66, 8
    s_mul_i32 s64, s{S_J}, 40
    s_add_u32 s64, s64, s{S_W}
    s_lshl_b32 s64, s64, 15
    s_lshl_b32 s65, s{S_H}, 8
    s_add_u32 s64, s64, s65
    s_lshl_b32 s67, s{S_W}, 10
    s_add_u32 s67, s67, {L_WQ}
    s_mov_b32 s{SRD_0+2}, 5242880
    v_lshlrev_b32 v7, 1, v2
    v_xor_b32 v7, v7, v3
    v_xor_b32 v7, s66, v7
    v_lshlrev_b32 v7, 4, v7
    v_lshl_add_u32 v7, v2, 13, v7
    v_lshlrev_b32 v6, 2, v1
    s_cmp_eq_u32 s{S_W}, 0
    s_waitcnt lgkmcnt(0)
    s_mov_b32 s{SRD_0}, s{P_WQ}
    s_mov_b32 s{SRD_0+1}, s{P_WQ+1}
    s_cbranch_scc0 L_f_nox
    """)
    for k in range(5):
        e(f"global_load_dword v{8+k}, v6, s[{P_X}:{P_X+1}] offset:{256*k}")
    e.label("L_f_nox")
    for ii in range(5):
        e(f"""
        s_mov_b32 m0, s67
        s_add_u32 s67, s67, 8192
        buffer_load_dwordx4 v7, s[{SRD_0}:{SRD_0+3}], s64 offen{NT} lds
        s_add_u32 s64, s64, {8*4*8192}
        """)
    if cfg.tlbk:
        e(f"""
        s_lshl_b32 s3, s{S_J}, 7
        s_lshl_b32 s64, s{S_W}, 4
        s_add_u32 s3, s3, s64
        s_lshl_b32 s3, s3, 13
        s_lshl_b32 s64, s{S_H}, 8
        s_add_u32 s3, s3, s64
        v_mov_b32 v4, s3
        s_mov_b64 exec, 1
        global_load_dword v200, v4, s[{P_WUK}:{P_WUK+1}] nt
        s_mov_b64 exec, -1
        """)
    if cfg.selftouch:
        e(f"""
        v_bfe_u32 v4, v1, 1, 4
        s_lshl_b32 s3, s{S_J}, 7
        s_lshl_b32 s64, s{S_W}, 4
        s_add_u32 s3, s3, s64
        v_add_u32 v4, s3, v4
        v_lshlrev_b32 v4, 13, v4
        v_and_b32 v5, 1, v1
        v_lshl_add_u32 v4, v5, 7, v4
        s_lshl_b32 s3, s{S_H}, 8
        v_add_u32 v4, s3, v4
        s_mov_b64 exec, 0xffffffff
        global_load_dword v200, v4, s[{P_WUK}:{P_WUK+1}] nt
        s_mov_b64 exec, -1
        """)
    if cfg.ukearly and not cfg.ukdelay:
        e("s_barrier")
        e(f"s_cmp_lt_u32 s{S_W}, 4\ns_cbranch_scc0 L_f_nouk")
        uk_dma(False)
        e.label("L_f_nouk")
    e(f"""
    s_load_dword s{S_TAG}, {WS}, 0
    s_branch L_F1
    """)
    e.label("L_B0")
    if cfg.exp_nob: e("s_endpgm")
    e(f"""
    s_lshl_b32 s3, s{S_W}, 1
    v_xor_b32 v7, s3, v1
    v_lshlrev_b32 v7, 4, v7
    s_lshl_b32 s{S_CH}, s{S_X}, 2
    s_add_u32 s{S_CH}, s{S_CH}, s{S_J}
    s_lshl_b32 s66, s{S_CH}, 17
    s_and_b32 s67, s{S_I}, 12
    s_lshl_b32 s67, s67, 13
    s_lshl_b32 s65, s{S_W}, 10
    s_add_u32 s67, s67, s65
    s_mov_b32 s{SRD_0+2}, 4194304
    s_mov_b32 s68, 15
    v_bfe_u32 v4, v1, 1, 4
    s_lshl_b32 s3, s{S_J}, 7
    s_lshl_b32 s64, s{S_W}, 4
    s_add_u32 s3, s3, s64
    v_add_u32 v4, s3, v4
    v_lshlrev_b32 v4, 13, v4
    v_and_b32 v5, 1, v1
    v_lshl_add_u32 v4, v5, 7, v4
    s_lshl_b32 s3, s{S_H}, 8
    v_add_u32 v4, s3, v4
    s_waitcnt lgkmcnt(0)
    s_mov_b32 s{SRD_0}, s{P_CKV}
    s_mov_b32 s{SRD_0+1}, s{P_CKV+1}
    """)
    if cfg.tlbw:
        e(f"""
        s_cmp_eq_u32 s{S_I}, 0
        s_cselect_b32 s3, s{S_W}, 0
        s_cmp_eq_u32 s3, 7
        s_cbranch_scc0 L_notlb
        s_mov_b64 exec, 1
        v_mov_b32 v8, 0
        v_mov_b32 v9, 0x200000
        v_mov_b32 v10, 0x3ffffc
        v_mov_b32 v11, 0x4ffffc
        global_load_dword v204, v8, s[{P_WUK}:{P_WUK+1}] nt
        global_load_dword v204, v9, s[{P_WUK}:{P_WUK+1}] nt
        global_load_dword v204, v10, s[{P_WUK}:{P_WUK+1}] nt
        global_load_dword v204, v8, s[{P_WUV}:{P_WUV+1}] nt
        global_load_dword v204, v9, s[{P_WUV}:{P_WUV+1}] nt
        global_load_dword v204, v10, s[{P_WUV}:{P_WUV+1}] nt
        global_load_dword v204, v8, s[{P_WO}:{P_WO+1}] nt
        global_load_dword v204, v9, s[{P_WO}:{P_WO+1}] nt
        global_load_dword v204, v10, s[{P_WO}:{P_WO+1}] nt
        global_load_dword v204, v11, s[{P_WO}:{P_WO+1}] nt
        global_load_dword v204, v8, s[{P_W1}:{P_W1+1}]
        global_load_dword v204, v8, s[{P_B1}:{P_B1+1}]
        global_load_dword v204, v8, s[{P_W2}:{P_W2+1}]
        global_load_ushort v204, v8, s[{P_B2}:{P_B2+1}]
        global_load_dword v204, v8, s[{P_OUT}:{P_OUT+1}]
        s_mov_b64 exec, -1
        """)
        e.label("L_notlb")
    if cfg.tsleep: e(f"s_sleep {cfg.tsleep}")
    if cfg.spreadq or cfg.spreadk:
        e(f"""
        s_lshl_b32 s3, s{S_X}, 2
        s_add_u32 s3, s3, 1
        s_lshl_b32 s3, s3, 8
        v_lshrrev_b32 v8, 1, v1
        v_and_b32 v9, 1, v1
        v_lshlrev_b32 v9, 7, v9
        v_add_u32 v9, s3, v9
        """)
        if cfg.spreadq:
            e(f"""
            s_mul_i32 s3, s{S_I}, 40
            s_mul_i32 s64, s{S_W}, 5
            s_add_u32 s3, s3, s64
            v_add_u32 v10, s3, v8
            v_lshl_add_u32 v10, v10, 13, v9
            s_mov_b64 exec, 0x3ff
            global_load_dword v200, v10, s[{P_WQ}:{P_WQ+1}] nt
            s_mov_b64 exec, -1
            """)
        if cfg.spreadk:
            e(f"""
            s_lshl_b32 s3, s{S_I}, 5
            s_lshl_b32 s64, s{S_W}, 2
            s_add_u32 s3, s3, s64
            v_add_u32 v10, s3, v8
            v_lshl_add_u32 v10, v10, 13, v9
            s_mov_b64 exec, 0xff
            global_load_dword v200, v10, s[{P_WUK}:{P_WUK+1}] nt
            s_mov_b64 exec, -1
            """)
    if cfg.touchslow:
        e(f"""
        s_and_b32 s3, s{S_H}, 3
        s_cmp_eq_u32 s3, {cfg.touchslow - 1}
        s_cbranch_scc0 L_notouch
        s_mov_b64 exec, 0xffffffff
        global_load_dword v200, v4, s[{P_WUK}:{P_WUK+1}] nt
        s_mov_b64 exec, -1
        """)
        e.label("L_notouch")
    if cfg.touch: e(f"""
    s_mov_b64 exec, 0xffffffff
    global_load_dword v200, v4, s[{P_WUK}:{P_WUK+1}]{" nt" if cfg.uknt else ""}
    s_mov_b64 exec, -1
    """)
    if cfg.bdelay: e(f"s_load_dword s{S_TAG}, {WS}, 0\ns_waitcnt lgkmcnt(0)")
    if cfg.bsleep: e(f"s_sleep {cfg.bsleep}")
    e.label("L_b_dma")
    e(f"""
    s_mov_b32 m0, s67
    s_add_u32 s69, s67, s66
    buffer_load_dwordx4 v7, s[{SRD_0}:{SRD_0+3}], s69 offen{" nt" if cfg.ckvnt else ""} lds
    s_add_u32 s67, s67, 8192
    s_and_b32 s67, s67, 0x1ffff
    s_sub_u32 s68, s68, 1
    s_cbranch_scc0 L_b_dma
    """)
    if not cfg.bdelay: e(f"s_load_dword s{S_TAG}, {WS}, 0")
    e("s_branch L_B1")

    e.label("L_F1")
    e(f"s_mov_b32 s{S_ISB}, 0")
    stamp(1)
    tr_common()
    e(f"""
    v_and_b32 v41, 1, v2
    v_lshl_add_u32 v41, v41, 2, v62
    v_lshlrev_b32 v41, 1, v41
    s_and_b32 s65, s{S_W}, 3
    s_lshl_b32 s3, s65, 2
    v_add_u32 v42, s3, v63
    v_xor_b32 v41, v41, v42
    v_lshl_add_u32 v41, v41, 4, v59
    v_lshl_add_u32 v42, v2, 3, v62
    v_lshl_add_u32 v41, v42, 8, v41
    v_add_u32 v41, {L_WQ}, v41
    v_xor_b32 v40, 32, v41
    s_mul_i32 s3, s{S_J}, 320
    s_add_u32 s3, s3, {L_LNS}
    v_lshl_add_u32 v42, v2, 4, s3
    s_lshl_b32 s3, s{S_H}, 2
    s_add_u32 s3, s3, s{S_J}
    s_lshl_b32 s3, s3, 9
    s_lshl_b32 s64, s65, 7
    s_add_u32 s3, s3, s64
    s_add_u32 s65, s3, {WS_Q1}
    v_and_b32 v43, 1, v1
    v_lshlrev_b32 v43, 6, v43
    v_lshl_add_u32 v43, v2, 4, v43
    v_add_u32 v43, s65, v43
    v_add_u32 v44, {WS_Q1F-WS_Q1}, v43
    s_lshl_b32 s64, s{S_W}, 6
    s_lshl_b32 s3, s{S_H}, 2
    s_and_b32 s65, s{S_W}, 3
    s_add_u32 s3, s3, s65
    s_lshl_b32 s3, s3, 9
    s_add_u32 s3, s3, {WS_Q1}
    v_lshl_add_u32 v45, v1, 3, s3
    v_add_u32 v49, {WS_Q1F-WS_Q1}, v45
    s_mul_i32 s3, s65, {QP_STRIDE}
    s_add_u32 s3, s3, {L_QP}
    v_lshl_add_u32 v46, v1, 2, s3
    v_bfe_u32 v47, v3, 1, 2
    v_mul_u32_u24 v47, {QP_STRIDE}, v47
    v_lshl_add_u32 v47, v2, 4, v47
    v_add_u32 v47, {L_QP}, v47
    s_and_b32 s66, s{S_W}, 3
    s_lshl_b32 s3, s{S_H}, 10
    s_lshl_b32 s65, s{S_J}, 8
    s_add_u32 s3, s3, s65
    s_lshl_b32 s64, s66, 6
    s_add_u32 s3, s3, s64
    s_add_u32 s65, s3, {WS_QA}
    v_and_b32 v50, 1, v1
    v_lshlrev_b32 v50, 1, v50
    v_lshrrev_b32 v51, 1, v2
    v_add_u32 v50, v50, v51
    v_lshl_add_u32 v48, v50, 4, s65
    s_lshl_b32 s3, s66, 5
    v_add_u32 v24, s3, v3
    v_lshlrev_b32 v24, 8, v24
    v_and_b32 v25, 7, v3
    v_lshlrev_b32 v25, 1, v25
    v_xor_b32 v25, v25, v2
    v_lshl_add_u32 v24, v25, 4, v24
    v_add_u32 v24, {L_WUK}, v24
    v_xor_b32 v25, 64, v24
    v_xor_b32 v26, 128, v24
    v_xor_b32 v27, 192, v24
    s_waitcnt lgkmcnt(0)
    """)
    mk_tag()
    e(f"v_mov_b32 v105, s{S_TAG}\nv_mov_b32 v107, s{S_TAG}")
    tagpat(52, 50, 56)
    e(f"""
    s_cmp_eq_u32 s{S_W}, 0
    s_cbranch_scc0 L_f_noln
    """)
    e(f"s_waitcnt vmcnt({13 if (cfg.ukearly and not cfg.ukdelay) else 5 + cfg.selftouch + cfg.tlbk})")
    stamp(2)
    for k in range(5):
        e(f"v_lshlrev_b32 v{64+2*k}, 16, v{8+k}")
        e(f"v_and_b32 v{65+2*k}, 0xffff0000, v{8+k}")
    e(f"""
    v_pk_add_f32 v[74:75], v[64:65], v[66:67]
    v_pk_add_f32 v[76:77], v[68:69], v[70:71]
    v_pk_add_f32 v[74:75], v[74:75], v[72:73]
    v_pk_add_f32 v[74:75], v[74:75], v[76:77]
    v_mov_b32 v78, {F32(-1.0/640)}
    v_add_f32 v74, v74, v75
    """)
    dpp_reduce([74])
    e.nop(1)
    e("v_readlane_b32 s20, v74, 63")
    e(f"v_mov_b32 v80, {F32(1.0/640)}\nv_mov_b32 v81, {F32(1e-5)}")
    e("v_mul_f32 v78, s20, v78")
    for k in range(5):
        e(f"v_pk_add_f32 v[{64+2*k}:{65+2*k}], v[{64+2*k}:{65+2*k}], v[78:79] op_sel_hi:[1,0]")
    e("v_pk_mul_f32 v[74:75], v[64:65], v[64:65]")
    for k in range(1, 5):
        e(f"v_pk_fma_f32 v[74:75], v[{64+2*k}:{65+2*k}], v[{64+2*k}:{65+2*k}], v[74:75]")
    e("v_add_f32 v74, v74, v75")
    dpp_reduce([74])
    e.nop(1)
    e("v_readlane_b32 s21, v74, 63")
    e(f"v_mov_b32 v82, {F32(128**-0.5 * 1.4426950408889634 * LSB_DEBIAS)}")
    e(f"v_add_u32 v6, {L_LNS}, v6")
    e("v_fma_f32 v74, s21, v80, v81")
    e("v_rsq_f32 v74, v74")
    e.nop(1)
    e("v_mul_f32 v74, v74, v82")
    for k in range(5):
        e(f"v_pk_mul_f32 v[{64+2*k}:{65+2*k}], v[{64+2*k}:{65+2*k}], v[74:75] op_sel_hi:[1,0]")
    for k in range(5):
        e(f"v_cvt_pk_bf16_f32 v{8+k}, v{64+2*k}, v{65+2*k}")
        e(f"ds_write_b32 v6, v{8+k} offset:{256*k}")
    e.label("L_f_noln")
    if cfg.ukearly and cfg.ukdelay:
        e(f"s_cmp_lt_u32 s{S_W}, 4\ns_cbranch_scc0 L_f_nouk\ns_cmp_eq_u32 s{S_W}, 0\ns_cbranch_scc1 L_f_uk0\ns_sleep {cfg.ukdelay}")
        e.label("L_f_uk0")
        uk_dma(False)
        e.label("L_f_nouk")
    if cfg.ukearly:
        e(f"s_cmp_lt_u32 s{S_W}, 4\ns_cbranch_scc0 L_f_w0\ns_waitcnt vmcnt(8)\ns_branch L_f_w1")
        e.label("L_f_w0")
        e("s_waitcnt vmcnt(0)")
        e.label("L_f_w1")
        e("s_waitcnt lgkmcnt(0)")
    else:
        e(f"s_waitcnt vmcnt({cfg.selftouch + cfg.tlbk}) lgkmcnt(0)")
    e("s_barrier")
    stamp(3)
    e(f"s_cmp_lt_u32 s{S_W}, 4\ns_cbranch_scc1 L_f_uk")
    if cfg.prio: e("s_setprio 2")
    for ks in range(5):
        e(f"ds_read_b128 v[{84+4*ks}:{87+4*ks}], v42 offset:{64*ks}")
        e(f"ds_read_b64_tr_b16 v[{64+4*ks}:{65+4*ks}], v41 offset:{8192*ks}")
        e(f"ds_read_b64_tr_b16 v[{66+4*ks}:{67+4*ks}], v41 offset:{8192*ks+1024}")
        e(f"ds_read_b64_tr_b16 v[{112+4*ks}:{113+4*ks}], v40 offset:{8192*ks}")
        e(f"ds_read_b64_tr_b16 v[{114+4*ks}:{115+4*ks}], v40 offset:{8192*ks+1024}")
    e("s_mov_b32 s64, 0xaaaaaaaa\ns_mov_b32 s65, 0xaaaaaaaa")
    for ks in range(5):
        e(f"s_waitcnt lgkmcnt({min(15, 20-5*ks)})")
        c = "0" if ks == 0 else "v[108:111]"
        e(f"v_mfma_f32_16x16x32_bf16 v[108:111], v[{64+4*ks}:{67+4*ks}], v[{84+4*ks}:{87+4*ks}], {c}")
        c = "0" if ks == 0 else "v[132:135]"
        e(f"v_mfma_f32_16x16x32_bf16 v[132:135], v[{112+4*ks}:{115+4*ks}], v[{84+4*ks}:{87+4*ks}], {c}")
    e("s_mov_b32 exec_lo, 0x00030003\ns_mov_b32 exec_hi, 0x00030003")
    e.nop(6)
    for r in range(4):
        e(f"v_cndmask_b32 v{108+r}, v{108+r}, v{132+r}, s[64:65]")
    e("""
    v_cvt_pk_bf16_f32 v104, v108, v109
    v_cvt_pk_bf16_f32 v106, v110, v111
    """)
    if cfg.fast1 or cfg.ff1: e(f"global_store_dwordx4 v44, v[104:107], {WS}")
    e(f"global_store_dwordx4 v43, v[104:107], {WS} sc1\ns_mov_b64 exec, -1")
    stamp(4)
    e(("" if cfg.ukearly else "s_barrier\n") + "s_branch L_h1_bar")
    e.label("L_f_uk")
    if not cfg.ukearly: uk_dma(True)
    if cfg.ff1:
        e(f"s_mov_b32 s20, {cfg.ff1}")
    e.label("L_h1")
    if cfg.ff1:
        e(f"global_load_dwordx2 v[64:65], v49, {WS} sc1\ns_waitcnt vmcnt(0)")
        e(f"v_cmp_ne_u32 vcc, s{S_TAG}, v65\ns_cbranch_vccz L_h1_done")
        e(f"s_sub_u32 s{S_SPIN}, s{S_SPIN}, 1\ns_cbranch_scc1 L_fail")
        e("s_sub_u32 s20, s20, 1\ns_cbranch_scc0 L_h1\nv_mov_b32 v49, v45\ns_mov_b32 s20, 0x7fffffff\ns_branch L_h1")
    elif cfg.fast1:
        e(f"global_load_dwordx2 v[66:67], v49, {WS} sc1")
        e(f"global_load_dwordx2 v[64:65], v45, {WS} sc1\ns_waitcnt vmcnt(0)")
        e(f"v_cmp_eq_u32 vcc, s{S_TAG}, v67")
        e.nop(2)
        e("v_cndmask_b32 v64, v64, v66, vcc\nv_cndmask_b32 v65, v65, v67, vcc")
    else:
        e(f"global_load_dwordx2 v[64:65], v45, {WS} sc1\ns_waitcnt vmcnt(0)")
    if not cfg.ff1:
        e(f"v_cmp_ne_u32 vcc, s{S_TAG}, v65")
        e(f"s_cbranch_vccz L_h1_done")
        spin_back("L_h1")
    e.label("L_h1_done")
    stamp(8)
    stamp(7)
    e("ds_write_b32 v46, v64")
    e.label("L_h1_bar")
    e("s_waitcnt lgkmcnt(0)\ns_barrier")
    stamp(5)
    e(f"s_cmp_lt_u32 s{S_W}, 4\ns_cbranch_scc1 L_f_nos2")
    for t in range(4):
        e(f"ds_read_b128 v[{64+4*t}:{67+4*t}], v47 offset:{64*t}")
        e(f"ds_read_b128 v[{80+4*t}:{83+4*t}], v{24+t}")
        e(f"ds_read_b128 v[{112+4*t}:{115+4*t}], v{24+t} offset:4096")
    e("s_mov_b32 s64, 0xaaaaaaaa\ns_mov_b32 s65, 0xaaaaaaaa")
    for t in range(4):
        e(f"s_waitcnt lgkmcnt({9-3*t})")
        c = "0" if t == 0 else "v[108:111]"
        e(f"v_mfma_f32_16x16x32_bf16 v[108:111], v[{80+4*t}:{83+4*t}], v[{64+4*t}:{67+4*t}], {c}")
        c = "0" if t == 0 else "v[132:135]"
        e(f"v_mfma_f32_16x16x32_bf16 v[132:135], v[{112+4*t}:{115+4*t}], v[{64+4*t}:{67+4*t}], {c}")
    e.nop(8)
    for r in range(4):
        e(f"v_cndmask_b32 v{108+r}, v{108+r}, v{132+r}, s[64:65]")
    for st in ("row_ror:2", "row_ror:4"):
        for r in range(108, 112):
            e(f"v_add_f32_dpp v{r}, v{r}, v{r} {st} row_mask:0xf bank_mask:0xf")
    e("""
    v_cvt_pk_bf16_f32 v104, v108, v109
    v_cvt_pk_bf16_f32 v105, v110, v111
    s_mov_b32 s66, 0xfffefffe
    v_mov_b32 v106, v104
    v_mov_b32 v107, v105
    s_nop 1
    v_permlane16_swap_b32 v104, v106
    v_permlane16_swap_b32 v105, v107
    s_mov_b32 exec_lo, 3
    s_mov_b32 exec_hi, 3
    v_and_or_b32 v104, v104, s66, v52
    v_and_or_b32 v105, v105, s66, v53
    v_and_or_b32 v106, v106, s66, v54
    v_and_or_b32 v107, v107, s66, v55
    """)
    e(f"global_store_dwordx4 v48, v[104:107], {WS} sc1\ns_mov_b64 exec, -1")
    stamp(6)
    e.label("L_f_nos2")
    e("s_barrier")
    if cfg.uvpf:
        e(f"""
        v_lshrrev_b32 v4, 1, v1
        s_lshl_b32 s3, s{S_J}, 7
        s_lshl_b32 s64, s{S_W}, 4
        s_add_u32 s3, s3, s64
        v_and_b32 v4, 15, v4
        v_add_u32 v4, s3, v4
        v_lshlrev_b32 v4, 13, v4
        v_and_b32 v5, 1, v1
        v_lshl_add_u32 v4, v5, 7, v4
        s_lshl_b32 s3, s{S_H}, 8
        v_add_u32 v4, s3, v4
        s_mov_b64 exec, 0xffffffff
        global_load_dword v5, v4, s[{P_WUV}:{P_WUV+1}]{NT}
        s_mov_b64 exec, -1
        """)
    e(f"s_cmp_lt_u32 s{S_I}, 10\ns_cbranch_scc1 L_s6")
    s7_loads()
    e("s_waitcnt vmcnt(0)")
    s7_prep()
    if cfg.n5sleep:
        e(f"""
        s_cmp_lt_u32 s{S_W}, 5
        s_cbranch_scc0 L_S7
        s_lshl_b32 s3, s{S_H}, 2
        s_add_u32 s3, s3, s{S_J}
        s_lshl_b32 s3, s3, 9
        s_add_u32 s3, s3, {WS_CTX}
        v_mov_b32 v40, s3
        """)
        e.label("L_sent")
        e(f"""
        global_load_dwordx2 v[42:43], v40, {WS} sc1
        s_waitcnt vmcnt(0)
        v_cmp_ne_u32 vcc, s{S_TAG}, v43
        s_cbranch_vccz L_sent_done
        s_sleep 8
        """)
        spin_back("L_sent")
        e.label("L_sent_done")
        e(f"s_sleep {cfg.n5sleep}")
    e("s_branch L_S7")
    e.label("L_s6")
    e(f"""
    s_mov_b32 s{SRD_WO}, s{P_WO}
    s_mov_b32 s{SRD_WO+1}, s{P_WO+1}
    s_mov_b32 s{SRD_WO+2}, 5242880
    s_mov_b32 s{SRD_WO+3}, 0x20000
    v_lshrrev_b32 v12, 3, v1
    v_mul_u32_u24 v50, 1280, v12
    v_and_b32 v12, 2, v12
    v_and_b32 v13, 7, v1
    v_xor_b32 v12, v12, v13
    v_lshl_add_u32 v50, v12, 4, v50
    v_xor_b32 v51, 64, v50
    s_lshl_b32 s3, s{S_X}, 3
    s_add_u32 s3, s3, s{S_W}
    s_mul_i32 s20, s3, {64*1280}
    s_lshl_b32 s65, s{S_I}, 7
    s_add_u32 s20, s20, s65
    s_lshl_b32 s21, s{S_W}, 13
    """)
    for ii in range(8):
        e(f"""
        s_mov_b32 m0, s21
        s_add_u32 s21, s21, 1024
        buffer_load_dwordx4 v{50+(ii&1)}, s[{SRD_WO}:{SRD_WO+3}], s20 offen{NT} lds
        s_add_u32 s20, s20, {8*1280}
        """)
    s7_loads()
    tr_common()
    e(f"""
    v_lshl_add_u32 v12, v2, 3, v62
    v_lshlrev_b32 v12, 7, v12
    v_add_u32 v12, v12, v59
    s_lshl_b32 s3, s{S_W}, 13
    v_add_u32 v12, s3, v12
    v_and_b32 v13, 1, v2
    v_lshlrev_b32 v13, 2, v13
    v_and_b32 v14, 2, v62
    v_or_b32 v13, v13, v14
    v_xor_b32 v13, v13, v63
    v_lshl_add_u32 v249, v13, 4, v12
    v_xor_b32 v250, 32, v249
    v_xor_b32 v251, 64, v249
    v_xor_b32 v252, 96, v249
    s_lshr_b32 s3, s{S_W}, 1
    s_lshl_b32 s64, s{S_X}, 2
    s_add_u32 s3, s3, s64
    s_lshl_b32 s3, s3, 11
    s_and_b32 s64, s{S_W}, 1
    s_lshl_b32 s64, s64, 8
    s_add_u32 s3, s3, s64
    s_add_u32 s3, s3, {WS_CTX}
    v_lshlrev_b32 v140, 9, v2
    v_lshl_add_u32 v140, v3, 4, v140
    v_add_u32 v140, s3, v140
    v_add_u32 v141, {WS_CTXF-WS_CTX}, v140
    s_lshl_b32 s3, s{S_W}, 7
    s_add_u32 s3, s3, {L_BNC}
    v_lshl_add_u32 v142, v3, 2, v2
    v_lshlrev_b32 v142, 1, v142
    v_add_u32 v142, s3, v142
    v_lshl_add_u32 v143, v2, 4, s3
    s_lshl_b32 s3, s{S_W}, 8
    s_add_u32 s3, s3, {L_ORED}
    v_lshl_add_u32 v253, v2, 4, s3
    v_lshlrev_b32 v254, 3, v1
    v_add_u32 v254, {L_ORED}, v254
    s_mul_i32 s3, s{S_X}, 1280
    s_lshl_b32 s64, s{S_I}, 7
    s_add_u32 s3, s3, s64
    s_add_u32 s3, s3, {WS_OP}
    v_lshl_add_u32 v255, v1, 2, s3
    v_and_b32 v12, 15, v1
    v_lshlrev_b32 v12, 1, v12
    v_mov_b32 v13, s{S_TAG}
    v_lshrrev_b32 v12, v12, v13
    v_and_b32 v13, 1, v12
    v_and_b32 v12, 2, v12
    v_lshl_or_b32 v136, v12, 15, v13
    s_waitcnt vmcnt(0)
    """)
    stamp(9)
    s7_prep()
    for tt in range(4):
        for ks in range(2):
            r = 80 + 8 * tt + 4 * ks
            e(f"ds_read_b64_tr_b16 v[{r}:{r+1}], v{249+tt} offset:{4096*ks}")
            e(f"ds_read_b64_tr_b16 v[{r+2}:{r+3}], v{249+tt} offset:{4096*ks+512}")
    if cfg.xfast:
        e(f"""
        v_and_b32 v40, 15, v1
        v_lshlrev_b32 v40, 10, v40
        s_lshl_b32 s3, s{S_X}, 7
        s_add_u32 s3, s3, {WS_XID}
        v_add_u32 v40, s3, v40
        s_getreg_b32 s64, hwreg(HW_REG_XCC_ID, 0, 4)
        """)
        e.label("L_xid")
        e(f"""
        global_load_dwordx2 v[42:43], v40, {WS} sc1
        s_waitcnt vmcnt(0)
        v_cmp_ne_u32 vcc, s{S_TAG}, v43
        s_cbranch_vccz L_xid_ok
        s_sleep 4
        """)
        spin_back("L_xid")
        e.label("L_xid_ok")
        e(f"""
        v_cmp_ne_u32 vcc, s64, v42
        s_cbranch_vccnz L_xid_slow
        v_mov_b32 v140, v141
        """)
        e.label("L_xid_slow")
    e.label("L_h4")
    if cfg.fast4 == 2:
        e(f"global_load_dwordx4 v[40:43], v141, {WS} sc1\ns_waitcnt vmcnt(0)")
    elif cfg.fast4:
        e(f"global_load_dwordx4 v[44:47], v141, {WS} sc1")
        e(f"global_load_dwordx4 v[40:43], v140, {WS} sc1\ns_waitcnt vmcnt(0)")
        tagchk(48, [45, 47])
        e("v_cmp_eq_u32 vcc, 0, v48")
        e.nop(2)
        for k in range(4): e(f"v_cndmask_b32 v{40+k}, v{40+k}, v{44+k}, vcc")
    else:
        e(f"global_load_dwordx4 v[40:43], v140, {WS} sc1\ns_waitcnt vmcnt(0)")
    tagchk(48, [41, 43])
    poll_tail("L_h4", "L_h4_done", 48, cfg.h4sleep)
    stamp(10)
    e("""
    v_lshlrev_b32 v44, 16, v40
    v_and_b32 v45, 0xffff0000, v40
    v_lshlrev_b32 v46, 16, v42
    v_and_b32 v47, 0xffff0000, v42
    s_nop 1
    v_permlane32_swap_b32 v44, v46
    v_permlane32_swap_b32 v45, v47
    v_add_f32 v44, v44, v46
    v_add_f32 v45, v45, v47
    s_nop 1
    v_permlane16_swap_b32 v44, v45
    v_add_f32 v44, v44, v45
    v_cvt_pk_bf16_f32 v44, v44, v44
    ds_write_b16 v142, v44
    s_waitcnt lgkmcnt(0)
    ds_read_b128 v[112:115], v143
    ds_read_b128 v[116:119], v143 offset:64
    """)
    for ks in range(2):
        e(f"s_waitcnt lgkmcnt({1-ks})")
        for tt in range(4):
            c = "0" if ks == 0 else f"v[{120+4*tt}:{123+4*tt}]"
            r = 80 + 8 * tt + 4 * ks
            e(f"v_mfma_f32_16x16x32_bf16 v[{120+4*tt}:{123+4*tt}], v[{r}:{r+3}], v[{112+4*ks}:{115+4*ks}], {c}")
    e("s_mov_b32 exec_lo, 0x00010001\ns_mov_b32 exec_hi, 0x00010001")
    e.nop(3)
    for tt in range(4):
        e(f"ds_write_b128 v253, v[{120+4*tt}:{123+4*tt}] offset:{64*tt}")
    e(f"""
    s_mov_b64 exec, -1
    s_waitcnt lgkmcnt(0)
    s_barrier
    s_cmp_eq_u32 s{S_W}, 7
    s_cbranch_scc0 L_s6_w
    s_mov_b64 exec, 0xffffffff
    """)
    for w in range(8):
        e(f"ds_read_b64 v[{40+2*w}:{41+2*w}], v254 offset:{256*w}")
    e(f"""
    s_mov_b32 s66, 0xfffefffe
    s_waitcnt lgkmcnt(0)
    v_pk_add_f32 v[40:41], v[40:41], v[42:43]
    v_pk_add_f32 v[44:45], v[44:45], v[46:47]
    v_pk_add_f32 v[48:49], v[48:49], v[50:51]
    v_pk_add_f32 v[52:53], v[52:53], v[54:55]
    v_pk_add_f32 v[40:41], v[40:41], v[44:45]
    v_pk_add_f32 v[48:49], v[48:49], v[52:53]
    v_pk_add_f32 v[40:41], v[40:41], v[48:49]
    v_cvt_pk_bf16_f32 v56, v40, v41
    v_lshrrev_b32 v57, 1, v56
    v_and_b32 v57, 0x00010001, v57
    v_add_u32 v56, v56, v57
    v_and_or_b32 v56, v56, s66, v136
    global_store_dword v255, v56, {WS} sc1
    s_mov_b64 exec, -1
    """)
    stamp(11)
    e("s_branch L_S7")
    e.label("L_s6_w")
    if cfg.f5sleep: e(f"s_sleep {cfg.f5sleep}")
    e("s_branch L_S7")

    e.label("L_B1")
    e(f"s_mov_b32 s{S_ISB}, 1")
    stamp(1)
    e(f"""
    s_lshr_b32 s3, s{S_I}, 2
    s_lshl_b32 s3, s3, 3
    s_add_u32 s3, s3, s{S_W}
    s_lshl_b32 s3, s3, 10
    s_add_u32 s3, s3, {WS_QA}
    v_lshl_add_u32 v5, v1, 4, s3
    s_mul_i32 s3, s{S_W}, {QAS_STRIDE}
    s_add_u32 s3, s3, {L_QAS}
    v_lshl_add_u32 v6, v1, 4, s3
    """)
    tr_common()
    e(f"s_cmp_lt_u32 s{S_W}, 4\ns_cbranch_scc0 L_bp_prep")
    def h2_poll(sfx):
        msk = "s66" if sfx == "q" else "s67"
        if cfg.h2init:
            e(f"s_sleep {cfg.h2init}")
        else:
            e("s_waitcnt vmcnt(0)\ns_branch L_h2_chk" + sfx)
        e.label("L_h2" + sfx)
        e(f"""
        global_load_dwordx4 v[40:43], v5, {WS} sc1
        s_waitcnt vmcnt(0)
        """)
        e.label("L_h2_chk" + sfx)
        for i in range(4):
            e(f"v_xor_b32 v{40+i}, v{40+i}, v{44+i}")
        e(f"v_or3_b32 v4, v40, v41, v42\nv_or_b32 v4, v4, v43\nv_and_b32 v4, {msk}, v4")
        poll_tail("L_h2" + sfx, "L_h2_done" + sfx, 4, cfg.h2sleep)
        stamp(5)
        e(f"""
        ds_write_b128 v6, v[40:43]
        s_waitcnt lgkmcnt(0)
        s_barrier
        """)
    e(f"""
    s_lshl_b32 s3, s{S_W}, 5
    v_add_u32 v12, s3, v3
    v_lshlrev_b32 v12, 10, v12
    v_and_b32 v13, 7, v1
    v_lshlrev_b32 v13, 1, v13
    v_xor_b32 v13, v13, v2
    v_lshl_add_u32 v8, v13, 4, v12
    v_xor_b32 v9, 64, v8
    v_xor_b32 v10, 128, v8
    v_xor_b32 v11, 192, v8
    v_and_b32 v216, 7, v3
    v_lshlrev_b32 v217, 4, v216
    v_mul_u32_u24 v216, {QAS_STRIDE}, v216
    v_lshl_add_u32 v216, v2, 4, v216
    v_add_u32 v216, {L_QAS}, v216
    v_add_u32 v217, {L_MX}, v217
    s_lshl_b32 s3, s{S_W}, 2
    v_add_u32 v218, s3, v217
    s_lshl_b32 s3, s{S_W}, 10
    s_add_u32 s3, s3, {L_PEX}
    v_lshl_add_u32 v219, v1, 4, s3
    v_and_b32 v220, 1, v2
    v_lshl_add_u32 v220, v220, 2, v62
    v_lshlrev_b32 v220, 1, v220
    s_lshl_b32 s3, s{S_W}, 2
    v_add_u32 v12, s3, v63
    v_xor_b32 v220, v220, v12
    v_lshl_add_u32 v220, v220, 4, v59
    v_lshl_add_u32 v12, v2, 3, v62
    v_lshl_add_u32 v220, v12, 8, v220
    v_xor_b32 v221, 32, v220
    s_lshl_b32 s3, s{S_H}, 10
    s_lshl_b32 s65, s{S_J}, 8
    s_add_u32 s3, s3, s65
    s_lshl_b32 s64, s{S_W}, 6
    s_add_u32 s3, s3, s64
    s_add_u32 s65, s3, {WS_PART}
    s_lshl_b32 s64, s{S_W}, 7
    v_lshrrev_b32 v12, 2, v1
    v_and_b32 v13, 3, v1
    v_lshlrev_b32 v222, 15, v12
    v_lshl_add_u32 v222, v13, 4, v222
    v_add_u32 v222, s65, v222
    s_lshl_b32 s3, s{S_H}, 7
    s_add_u32 s3, s3, {WS_ST}
    v_lshlrev_b32 v48, 12, v12
    v_lshl_add_u32 v48, v13, 4, v48
    v_add_u32 v48, s3, v48
    v_bfe_u32 v223, v1, 3, 1
    v_lshlrev_b32 v223, 4, v223
    v_bfe_u32 v12, v1, 2, 1
    v_lshl_add_u32 v223, v12, 1, v223
    v_and_b32 v12, 1, v2
    v_add_u32 v223, v223, v12
    v_lshl_add_u32 v223, v13, 2, v223
    s_lshl_b32 s3, s{S_W}, 5
    v_add_u32 v223, s3, v223
    v_lshlrev_b32 v223, 1, v223
    v_add_u32 v223, {L_CTXS}, v223
    v_lshlrev_b32 v49, 4, v2
    v_add_u32 v49, {L_CTXS}, v49
    s_lshl_b32 s3, s{S_H}, 2
    s_add_u32 s3, s3, s{S_J}
    s_lshl_b32 s3, s3, 9
    s_add_u32 s3, s3, s64
    s_add_u32 s3, s3, {WS_CTX}
    v_and_b32 v50, 1, v1
    v_lshlrev_b32 v50, 6, v50
    v_lshl_add_u32 v50, v2, 4, v50
    v_add_u32 v50, s3, v50
    v_add_u32 v51, {WS_CTXF-WS_CTX}, v50
    s_waitcnt lgkmcnt(0)
    """)
    mk_tag()
    e("v_and_b32 v16, 3, v1\ns_mov_b32 s66, 0x00010001")
    tagpat(44, 16, 12)
    e(f"s_waitcnt vmcnt(0)" + ("" if cfg.h2init else f"\nglobal_load_dwordx4 v[40:43], v5, {WS} sc1"))
    e("s_barrier")
    stamp(14)
    for t in range(2):
        for j in range(16):
            e(f"ds_read_b128 v[{64+64*t+4*j}:{67+64*t+4*j}], v{8+(j&3)} offset:{256*(j>>2)+16384*t}")
    h2_poll("q")
    def qb(j):
        if j < 6: return 192 + 4 * j
        if j < 13: return 12 + 4 * (j - 6)
        if j < 15: return 40 + 4 * (j - 13)
        return 52
    stamp(4)
    if cfg.prio: e("s_setprio 2")
    for j in range(16):
        e(f"ds_read_b128 v[{qb(j)}:{qb(j)+3}], v216 offset:{64*j}")
    for j in range(16):
        if j % 2 == 0: e(f"s_waitcnt lgkmcnt({max(0, 14-j)})")
        for t in range(2):
            acc = f"v[{56+4*t}:{59+4*t}]"
            c = "0" if j == 0 else acc
            e(f"v_mfma_f32_16x16x32_bf16 {acc}, v[{64+64*t+4*j}:{67+64*t+4*j}], v[{qb(j)}:{qb(j)+3}], {c}")
    e.nop(7)
    stamp(10)
    e("""
    v_max3_f32 v12, v56, v57, v58
    s_nop 0
    v_max3_f32 v13, v60, v61, v62
    v_max3_f32 v12, v59, v63, v12
    v_max_f32 v12, v12, v13
    v_mov_b32 v13, v12
    """)
    e.nop(2)
    e("v_permlane16_swap_b32 v12, v13")
    e("v_max_f32 v12, v12, v13\nv_mov_b32 v13, v12")
    e.nop(2)
    e("v_permlane32_swap_b32 v12, v13")
    e("""
    v_max_f32 v12, v12, v13
    s_mov_b64 exec, 0xff
    ds_write_b32 v218, v12
    s_mov_b64 exec, -1
    s_waitcnt lgkmcnt(0)
    s_barrier
    """)
    stamp(11)
    e("""
    ds_read_b128 v[16:19], v217
    s_waitcnt lgkmcnt(0)
    v_max3_f32 v12, v16, v17, v18
    v_max_f32 v12, v12, v19
    """)
    for r in range(8): e(f"v_sub_f32 v{56+r}, v{56+r}, v12")
    for r in range(8): e(f"v_exp_f32 v{56+r}, v{56+r}")
    e("s_nop 0")
    for r in range(4): e(f"v_cvt_pk_bf16_f32 v{16+r}, v{56+2*r}, v{57+2*r}")
    e(f"""
    ds_write_b128 v219, v[16:19]
    """)
    e("s_waitcnt lgkmcnt(0)\ns_barrier")
    stamp(6)
    e(f"""
    s_cmp_eq_u32 s{S_W}, 0
    s_cbranch_scc0 L_bq_nostat
    v_lshlrev_b32 v4, 4, v1
    v_add_u32 v4, {L_PEX}, v4
    ds_read_b128 v[20:23], v4
    ds_read_b128 v[24:27], v4 offset:1024
    ds_read_b128 v[28:31], v4 offset:2048
    ds_read_b128 v[32:35], v4 offset:3072
    v_mov_b32 v36, 0x3f803f80
    v_mov_b32 v37, 0x3f803f80
    v_mov_b32 v38, 0x3f803f80
    v_mov_b32 v39, 0x3f803f80
    v_bfe_u32 v5, v1, 2, 3
    v_lshlrev_b32 v5, 2, v5
    ds_bpermute_b32 v52, v5, v12
    v_mov_b32 v53, s{S_TAG}
    v_mov_b32 v55, s{S_TAG}
    s_lshr_b32 s64, s{S_I}, 2
    s_lshl_b32 s64, s64, 10
    s_lshl_b32 s65, s{S_CH}, 12
    s_add_u32 s64, s64, s65
    s_add_u32 s64, s64, {WS_ST}
    v_lshrrev_b32 v6, 2, v1
    v_lshlrev_b32 v6, 7, v6
    v_and_b32 v4, 3, v1
    v_lshl_add_u32 v6, v4, 4, v6
    v_add_u32 v6, s64, v6
    """)
    for ks in range(4):
        e(f"s_waitcnt lgkmcnt({4-ks if ks < 3 else 0})")
        c = "0" if ks == 0 else "v[40:43]"
        e(f"v_mfma_f32_16x16x32_bf16 v[40:43], v[36:39], v[{20+4*ks}:{23+4*ks}], {c}")
    e.nop(8)
    e(f"""
    ds_bpermute_b32 v54, v5, v40
    s_mov_b64 exec, 0xffffffff
    s_waitcnt lgkmcnt(0)
    global_store_dwordx4 v6, v[52:55], {WS} sc1
    s_mov_b64 exec, -1
    """)
    e.label("L_bq_nostat")
    e(f"""
    v_mov_b32 v105, s{S_TAG}
    v_mov_b32 v107, s{S_TAG}
    v_add_u32 v192, 0x80000, v222
    v_add_u32 v195, 0x10000, v48
    v_and_b32 v196, 3, v1
    s_mov_b32 s66, 0x00010001
    s_mov_b32 s67, {F32(LSB_DEBIAS)}
    s_mov_b32 s64, 0xaaaaaaaa
    s_mov_b32 s65, 0xaaaaaaaa
    """)
    e("s_barrier")
    for t in range(2):
        for ks in range(4):
            r = 128 + 16 * t + 4 * ks
            e(f"ds_read_b64_tr_b16 v[{r}:{r+1}], v{220+t} offset:{8192*ks}")
            e(f"ds_read_b64_tr_b16 v[{r+2}:{r+3}], v{220+t} offset:{8192*ks+1024}")
    tagpat(198, 196, 202)
    if cfg.h3sleep: e(f"s_sleep {cfg.h3sleep}")
    stamp(2)
    def datachk():
        for i in range(8):
            e(f"v_xor_b32 v{80+i}, v{80+i}, v{198+(i&3)}")
        e("v_or3_b32 v4, v80, v81, v82\nv_or3_b32 v5, v83, v84, v85\nv_or3_b32 v4, v86, v87, v4\nv_or_b32 v4, v4, v5\nv_and_b32 v4, s66, v4")
    e.label("L_h3")
    e(f"""
    global_load_dwordx4 v[64:67], v48, {WS} sc1
    global_load_dwordx4 v[68:71], v195, {WS} sc1
    global_load_dwordx4 v[80:83], v222, {WS} sc1
    global_load_dwordx4 v[84:87], v192, {WS} sc1
    s_waitcnt vmcnt(2)
    """)
    tagchk(4, [65, 67, 69, 71])
    e("v_cmp_ne_u32 vcc, 0, v4\ns_cbranch_vccz L_h3_st\ns_waitcnt vmcnt(0)")
    if cfg.h3psleep: e(f"s_sleep {cfg.h3psleep}")
    spin_back("L_h3")
    e.label("L_h3_st")
    stamp(3)
    e("""
    v_max_f32 v4, v64, v68
    s_nop 1
    v_max_f32_dpp v4, v4, v4 row_ror:4 row_mask:0xf bank_mask:0xf
    s_nop 1
    v_max_f32_dpp v4, v4, v4 row_ror:8 row_mask:0xf bank_mask:0xf
    s_nop 0
    v_mov_b32 v5, v4
    s_nop 1
    v_permlane16_swap_b32 v4, v5
    v_max_f32 v4, v4, v5
    v_mov_b32 v5, v4
    s_nop 1
    v_permlane32_swap_b32 v4, v5
    v_max_f32 v4, v4, v5
    v_sub_f32 v64, v64, v4
    v_sub_f32 v68, v68, v4
    v_exp_f32 v64, v64
    v_exp_f32 v68, v68
    s_nop 0
    v_mul_f32 v28, v64, v66
    v_fmac_f32 v28, v68, v70
    s_nop 1
    v_add_f32_dpp v28, v28, v28 row_ror:4 row_mask:0xf bank_mask:0xf
    s_nop 1
    v_add_f32_dpp v28, v28, v28 row_ror:8 row_mask:0xf bank_mask:0xf
    s_nop 0
    v_mov_b32 v29, v28
    s_nop 1
    v_permlane16_swap_b32 v28, v29
    v_add_f32 v28, v28, v29
    v_mov_b32 v29, v28
    s_nop 1
    v_permlane32_swap_b32 v28, v29
    v_add_f32 v28, v28, v29
    v_rcp_f32 v28, v28
    v_mul_f32 v64, s67, v64
    v_mul_f32 v68, s67, v68
    v_mul_f32 v64, v64, v28
    v_mul_f32 v68, v68, v28
    s_waitcnt vmcnt(0)
    s_branch L_h3_dchk
    """)
    e.label("L_h3d")
    e(f"""
    global_load_dwordx4 v[80:83], v222, {WS} sc1
    global_load_dwordx4 v[84:87], v192, {WS} sc1
    s_waitcnt vmcnt(0)
    """)
    e.label("L_h3_dchk")
    datachk()
    poll_tail("L_h3d", "L_h3_done", 4)
    stamp(8)
    for i in range(4):
        e(f"v_lshlrev_b32 v{12+2*i}, 16, v{80+i}\nv_and_b32 v{13+2*i}, 0xffff0000, v{80+i}")
    for i in range(4):
        e(f"v_lshlrev_b32 v{20+2*i}, 16, v{84+i}\nv_and_b32 v{21+2*i}, 0xffff0000, v{84+i}")
        e(f"v_pk_mul_f32 v[{12+2*i}:{13+2*i}], v[{12+2*i}:{13+2*i}], v[64:65] op_sel_hi:[1,0]")
    for i in range(4):
        e(f"v_pk_fma_f32 v[{12+2*i}:{13+2*i}], v[{20+2*i}:{21+2*i}], v[68:69], v[{12+2*i}:{13+2*i}] op_sel_hi:[1,0,1]")
    e("s_nop 0")
    for i in range(4):
        e(f"v_add_f32_dpp v{28+i}, v{12+i}, v{12+i} row_ror:8 row_mask:0xf bank_mask:0x3")
        e(f"v_add_f32_dpp v{28+i}, v{16+i}, v{16+i} row_ror:8 row_mask:0xf bank_mask:0xc")
    e("s_nop 0")
    for i in range(2):
        e(f"v_add_f32_dpp v{12+i}, v{28+i}, v{28+i} row_ror:12 row_mask:0xf bank_mask:0x5")
        e(f"v_add_f32_dpp v{12+i}, v{30+i}, v{30+i} row_ror:4 row_mask:0xf bank_mask:0xa")
    e("""
    s_nop 1
    v_permlane16_swap_b32 v12, v13
    v_add_f32 v12, v12, v13
    v_mov_b32 v13, v12
    s_nop 1
    v_permlane32_swap_b32 v12, v13
    s_mov_b64 exec, 0xffffffff
    v_add_f32 v12, v12, v13
    v_cvt_pk_bf16_f32 v12, v12, v12
    ds_write_b16 v223, v12
    s_mov_b64 exec, -1
    s_waitcnt lgkmcnt(0)
    s_barrier
    """)
    for ks in range(4):
        e(f"ds_read_b128 v[{112+4*ks}:{115+4*ks}], v49 offset:{64*ks}")
    for ks in range(4):
        e(f"s_waitcnt lgkmcnt({3-ks})")
        for t in range(2):
            acc = f"v[{96+4*t}:{99+4*t}]"
            c = "0" if ks == 0 else acc
            r = 128 + 16 * t + 4 * ks
            e(f"v_mfma_f32_16x16x32_bf16 {acc}, v[{r}:{r+3}], v[{112+4*ks}:{115+4*ks}], {c}")
    e("s_mov_b32 exec_lo, 0x00030003\ns_mov_b32 exec_hi, 0x00030003")
    e.nop(6)
    for r in range(4):
        e(f"v_cndmask_b32 v{96+r}, v{96+r}, v{100+r}, s[64:65]")
    e("""
    v_cvt_pk_bf16_f32 v104, v96, v97
    v_cvt_pk_bf16_f32 v106, v98, v99
    """)
    if cfg.fast4 or cfg.xfast: e(f"global_store_dwordx4 v51, v[104:107], {WS}")
    e(f"global_store_dwordx4 v50, v[104:107], {WS} sc1\ns_mov_b64 exec, -1")
    stamp(9)
    e("s_branch L_b_tail")
    e.label("L_bp_prep")
    e(f"""
    v_lshl_add_u32 v58, v2, 2, v62
    v_and_b32 v13, 7, v58
    v_lshlrev_b32 v13, 1, v13
    v_lshlrev_b32 v58, 10, v58
    v_add_u32 v58, v58, v59
    s_and_b32 s66, s{S_W}, 3
    s_lshl_b32 s3, s66, 4
    v_add_u32 v12, s3, v63
    v_xor_b32 v12, v12, v13
    v_lshl_add_u32 v8, v12, 4, v58
    """)
    for tt in range(1, 8):
        e(f"v_xor_b32 v{8+tt}, {32*tt}, v8")
    e(f"""
    v_lshlrev_b32 v16, 4, v1
    v_add_u32 v16, {L_PEX}, v16
    s_mov_b32 s{SRD_A}, s{P_WUV}
    s_mov_b32 s{SRD_A+1}, s{P_WUV+1}
    s_mov_b32 s{SRD_A+2}, 4194304
    s_mov_b32 s{SRD_A+3}, 0x20000
    s_lshl_b32 s3, s{S_W}, 2
    s_and_b32 s3, s3, 8
    v_lshlrev_b32 v19, 1, v2
    v_xor_b32 v19, v19, v3
    v_xor_b32 v19, s3, v19
    v_lshlrev_b32 v19, 4, v19
    v_lshl_add_u32 v19, v2, 13, v19
    s_lshl_b32 s20, s{S_J}, 5
    s_add_u32 s20, s20, s66
    s_lshl_b32 s20, s20, 15
    s_lshl_b32 s21, s{S_H}, 8
    s_add_u32 s20, s20, s21
    s_lshl_b32 s21, s66, 10
    v_lshl_add_u32 v56, v1, 4, s21
    s_lshl_b32 s3, s{S_CH}, 15
    s_lshr_b32 s64, s{S_I}, 2
    s_lshl_b32 s65, s64, 13
    s_add_u32 s3, s3, s65
    s_lshl_b32 s65, s66, 8
    s_add_u32 s3, s3, s65
    s_add_u32 s3, s3, {WS_PART}
    v_and_b32 v17, 7, v3
    v_lshlrev_b32 v17, 10, v17
    v_lshl_add_u32 v17, v2, 4, v17
    v_lshrrev_b32 v20, 3, v3
    v_lshl_add_u32 v17, v20, 6, v17
    v_add_u32 v17, s3, v17
    s_lshl_b32 s64, s64, 10
    s_lshl_b32 s65, s{S_CH}, 12
    s_add_u32 s64, s64, s65
    s_add_u32 s64, s64, {WS_ST}
    v_lshrrev_b32 v18, 2, v1
    v_lshlrev_b32 v18, 7, v18
    v_and_b32 v20, 3, v1
    v_lshl_add_u32 v18, v20, 4, v18
    v_add_u32 v18, s64, v18
    v_mov_b32 v36, 0x3f803f80
    v_mov_b32 v37, 0x3f803f80
    v_mov_b32 v38, 0x3f803f80
    v_mov_b32 v39, 0x3f803f80
    s_waitcnt lgkmcnt(0)
    """)
    mk_tag()
    e("v_and_b32 v50, 3, v1\ns_mov_b32 s67, 0x00010001")
    tagpat(44, 50, 48)
    e(f"v_mov_b32 v53, s{S_TAG}\nv_mov_b32 v55, s{S_TAG}")
    tagpat(57, 2, 61)
    e(f"s_waitcnt vmcnt(0)" + ("" if cfg.h2init else f"\nglobal_load_dwordx4 v[40:43], v5, {WS} sc1"))
    e("s_barrier")
    stamp(14)
    if cfg.xfast:
        e(f"""
        s_cmp_eq_u32 s{S_W}, 7
        s_cbranch_scc0 L_noxid
        s_getreg_b32 s3, hwreg(HW_REG_XCC_ID, 0, 4)
        v_mov_b32 v224, s3
        v_mov_b32 v225, s{S_TAG}
        v_mov_b32 v226, s3
        v_mov_b32 v227, s{S_TAG}
        s_and_b32 s3, s2, 127
        s_lshl_b32 s3, s3, 7
        s_add_u32 s3, s3, {WS_XID}
        v_lshl_add_u32 v228, v1, 4, s3
        s_mov_b64 exec, 0xf
        global_store_dwordx4 v228, v[224:227], {WS} sc1
        s_mov_b64 exec, -1
        """)
        e.label("L_noxid")
    for half in range(2):
        for tt in range(8):
            for k2 in range(2):
                ks = 2 * half + k2
                for eb in range(2):
                    r = 64 + 16 * tt + 4 * ks + 2 * eb
                    e(f"ds_read_b64_tr_b16 v[{r}:{r+1}], v{8+tt} offset:{32768*k2+16384*eb}")
        if half == 0:
            for tt in range(8):
                e(f"v_add_u32 v{8+tt}, 0x10000, v{8+tt}")
    h2_poll("p")
    for ii in range(8):
        e(f"""
        s_mov_b32 m0, s21
        s_add_u32 s21, s21, 4096
        buffer_load_dwordx4 v19, s[{SRD_A}:{SRD_A+3}], s20 offen{NT} lds
        s_add_u32 s20, s20, {4*4*8192}
        """)
    e("s_barrier\ns_barrier")
    for ks in range(4):
        e(f"ds_read_b128 v[{20+4*ks}:{23+4*ks}], v16 offset:{1024*ks}")
    e(f"""
    v_bfe_u32 v5, v1, 2, 3
    v_lshlrev_b32 v4, 4, v5
    v_add_u32 v4, {L_MX+128}, v4
    v_lshlrev_b32 v5, 2, v5
    s_mov_b32 s64, 0xff00ff00
    s_mov_b32 s65, 0xff00ff00
    """)
    stamp(6)
    for pr in range(4):
        e(f"v_mov_b32 v{37+0}, v{37}") if False else None
    def epi(sg):
        g = 64 + 64 * sg
        out = []
        for t in range(4):
            a0 = 192 + 16 * sg + 4 * t
            out.append(f"v_cvt_pk_bf16_f32 v{44+2*t}, v{a0}, v{a0+1}")
            out.append(f"v_cvt_pk_bf16_f32 v{45+2*t}, v{a0+2}, v{a0+3}")
        for i in range(4):
            out.append(f"v_cndmask_b32 v{g+i}, v{44+i}, v{48+i}, s[64:65]")
        for i in range(4):
            out.append(f"v_and_or_b32 v{g+i}, v{g+i}, s66, v{57+i}")
        out.append(f"global_store_dwordx4 v17, v[{g}:{g+3}], {WS} offset:{128*sg} sc1")
        return out
    e("s_mov_b32 s66, 0xfffefffe")
    if cfg.prio: e("s_setprio 3")
    ep0 = epi(0)
    for sg in range(2):
        k = 0
        for ks in range(4):
            for t in range(4):
                tt = 4 * sg + t
                acc = f"v[{192+4*tt}:{195+4*tt}]"
                c = "0" if ks == 0 else acc
                r = 64 + 16 * tt + 4 * ks
                if sg == 0 and t == 0: e(f"s_waitcnt lgkmcnt({3-ks})")
                e(f"v_mfma_f32_16x16x32_bf16 {acc}, v[{r}:{r+3}], v[{20+4*ks}:{23+4*ks}], {c}")
                k += 1
                if sg == 1 and k >= 8:
                    for _ in range(2):
                        if ep0: e(ep0.pop(0))
        if sg == 1:
            while ep0: e(ep0.pop(0))
    e.nop(8)
    for ins in epi(1): e(ins)
    stamp(7)
    e("s_waitcnt vmcnt(2)")
    e.label("L_b_st2")
    e("s_barrier\ns_barrier")
    e.label("L_b_tail")
    e("s_barrier")
    s7_loads()
    e("s_waitcnt vmcnt(0)")
    s7_prep()
    if cfg.b5sleep: e(f"s_sleep {cfg.b5sleep}")

    e.label("L_S7")
    if cfg.s7warm:
        e("s_mov_b32 s7, 0")
    e(f"s_cmp_lt_u32 s{S_W}, 5\ns_cbranch_scc0 L_s7_bar")
    e("s_mov_b32 s66, 0x00010001")
    e.label("L_h5")
    e(f"""
    global_load_dwordx4 v[40:43], v244, {WS} sc1
    global_load_dwordx4 v[44:47], v245, {WS} sc1
    s_waitcnt vmcnt(0)
    """)
    for i in range(8):
        e(f"v_xor_b32 v{40+i}, v{40+i}, v{10+(i&3)}")
    e("v_or3_b32 v56, v40, v41, v42\nv_or3_b32 v57, v43, v44, v45\nv_or3_b32 v56, v46, v47, v56\nv_or_b32 v56, v56, v57\nv_and_b32 v56, s66, v56")
    poll_tail("L_h5", "L_h5_done", 56, cfg.h5sleep)
    stamp(12)
    if cfg.earlyepoch:
        e(f"""
        s_or_b32 s3, s2, s{S_W}
        s_cmp_eq_u32 s3, 0
        s_cbranch_scc0 L_h5_noep
        v_lshlrev_b32 v48, 2, v1
        v_mov_b32 v49, s{S_TAG}
        s_mov_b64 exec, 0xffff
        global_store_dword v48, v49, {WS} sc1
        s_mov_b64 exec, -1
        """)
        e.label("L_h5_noep")
    for i in range(4):
        e(f"v_lshlrev_b32 v{80+2*i}, 16, v{40+i}\nv_and_b32 v{81+2*i}, 0xffff0000, v{40+i}")
    for i in range(4):
        e(f"v_lshlrev_b32 v{88+2*i}, 16, v{44+i}\nv_and_b32 v{89+2*i}, 0xffff0000, v{44+i}")
        e(f"v_pk_add_f32 v[{80+2*i}:{81+2*i}], v[{80+2*i}:{81+2*i}], v[{88+2*i}:{89+2*i}]")
    e("s_nop 0")
    for i in range(4): e(f"v_permlane16_swap_b32 v{80+i}, v{84+i}")
    for i in range(4): e(f"v_add_f32 v{80+i}, v{80+i}, v{84+i}")
    e(f"""
    s_nop 0
    v_permlane32_swap_b32 v80, v82
    v_permlane32_swap_b32 v81, v83
    v_add_f32 v50, v80, v82
    v_add_f32 v51, v81, v83
    v_pk_add_f32 v[50:51], v[50:51], v[58:59]
    ds_write_b64 v248, v[50:51]
    v_add_f32 v52, v50, v51
    v_mul_f32 v53, v50, v50
    v_fmac_f32 v53, v51, v51
    """)
    dpp_reduce([52, 53])
    e(f"""
    s_mov_b32 exec_lo, 0
    s_mov_b32 exec_hi, 0x80000000
    ds_write_b64 v68, v[52:53]
    s_mov_b64 exec, -1
    """)
    e.label("L_s7_bar")
    e(f"""
    s_waitcnt lgkmcnt(0)
    s_barrier
    """)
    if cfg.s7stamps: stamp(1)
    e(f"""
    s_cmp_lt_u32 s2, {216 if cfg.outmap else 214}
    s_cbranch_scc0 L_fin
    """)
    e.label("L_s7_body")
    e(f"""
    ds_read_b128 v[40:43], v62
    ds_read_b128 v[44:47], v62 offset:16
    ds_read_b64 v[48:49], v62 offset:32
    ds_read_b32 v50, v63
    ds_read_b32 v52, v63 offset:4
    ds_read_b32 v54, v63 offset:8
    s_waitcnt lgkmcnt(3)
    v_pk_add_f32 v[40:41], v[40:41], v[42:43]
    v_pk_add_f32 v[44:45], v[44:45], v[46:47]
    v_pk_add_f32 v[40:41], v[40:41], v[48:49]
    v_pk_add_f32 v[40:41], v[40:41], v[44:45]
    v_pk_mul_f32 v[40:41], v[40:41], v[60:61] op_sel_hi:[1,0]
    v_fma_f32 v41, -v40, v40, v41
    v_max_f32 v41, 0, v41
    v_fma_f32 v42, v41, v61, v65
    s_waitcnt lgkmcnt(0)
    v_rsq_f32 v42, v42
    v_sub_f32 v70, v50, v40
    v_sub_f32 v72, v52, v40
    v_sub_f32 v74, v54, v40
    v_mul_f32 v70, v70, v42
    v_mul_f32 v72, v72, v42
    v_mul_f32 v74, v74, v42
    """)
    if cfg.s7stamps: stamp(2)
    combos = [(r, o) for o in range(3) for r in range(2)]
    for c, (r, o) in enumerate(combos):
        e(f"v_pk_fma_f32 v[{80+2*c}:{81+2*c}], v[{70+2*o}:{71+2*o}], v[{232+2*r}:{233+2*r}], v[{236+2*r}:{237+2*r}] op_sel_hi:[0,1,1]")
    for c in range(6):
        e(f"v_pk_mul_f32 v[{92+2*c}:{93+2*c}], v[{80+2*c}:{81+2*c}], v[{80+2*c}:{81+2*c}]")
    for c in range(6):
        e(f"v_pk_fma_f32 v[{92+2*c}:{93+2*c}], v[{92+2*c}:{93+2*c}], v[66:67], v[64:65] op_sel_hi:[1,0,0]")
    for c in range(6):
        e(f"v_pk_mul_f32 v[{92+2*c}:{93+2*c}], v[{92+2*c}:{93+2*c}], v[{80+2*c}:{81+2*c}]")
    for c in range(12):
        e(f"v_exp_f32 v{92+c}, v{92+c}")
    for c in range(6):
        e(f"v_pk_add_f32 v[{92+2*c}:{93+2*c}], v[{92+2*c}:{93+2*c}], 1.0 op_sel_hi:[1,0]")
    for c in range(12):
        e(f"v_rcp_f32 v{92+c}, v{92+c}")
    for c in range(6):
        e(f"v_pk_mul_f32 v[{80+2*c}:{81+2*c}], v[{80+2*c}:{81+2*c}], v[{92+2*c}:{93+2*c}]")
    for o in range(3):
        e(f"v_pk_mul_f32 v[{104+2*o}:{105+2*o}], v[{80+4*o}:{81+4*o}], v[240:241]")
    for o in range(3):
        e(f"v_pk_fma_f32 v[{104+2*o}:{105+2*o}], v[{82+4*o}:{83+4*o}], v[242:243], v[{104+2*o}:{105+2*o}]")
    if cfg.s7stamps: stamp(3)
    e("v_add_f32 v110, v104, v105\nv_add_f32 v111, v106, v107\nv_add_f32 v112, v108, v109")
    dpp_reduce([110, 111, 112])
    e(f"""
    s_mov_b32 exec_lo, 0
    s_mov_b32 exec_hi, 0x80000000
    ds_write_b128 v69, v[110:113]
    s_mov_b64 exec, -1
    """)
    if cfg.s7warm:
        e("s_cmp_eq_u32 s7, 1\ns_cbranch_scc1 L_s7_warm_ret")
    e(f"""
    {"s_mul_i32 s3, s5, 80" if cfg.outmap else "s_mov_b32 s3, 560"}
    s_add_u32 s3, s3, 80
    v_cmp_gt_u32 vcc, s3, v8
    v_lshlrev_b32 v8, 1, v8
    s_waitcnt lgkmcnt(0)
    s_barrier
    """)
    if cfg.s7stamps: stamp(4)
    e(f"""
    s_cmp_eq_u32 s{S_W}, 0
    s_cbranch_scc0 L_fin
    s_and_b64 vcc, vcc, 7
    s_and_saveexec_b64 s[64:65], vcc
    s_cbranch_execz L_fin0
    """)
    for w in range(8):
        e(f"ds_read_b32 v{40+w}, v6 offset:{16*w}")
    e(f"""
    ds_read_b32 v48, v7
    s_waitcnt lgkmcnt(0)
    v_add_f32 v40, v40, v41
    v_add_f32 v42, v42, v43
    v_add_f32 v44, v44, v45
    v_add_f32 v46, v46, v47
    v_add_f32 v48, v48, v9
    v_add_f32 v40, v40, v42
    v_add_f32 v44, v44, v46
    v_add_f32 v40, v40, v48
    v_add_f32 v40, v40, v44
    v_cvt_pk_bf16_f32 v40, v40, v40
    global_store_short v8, v40, s[{P_OUT}:{P_OUT+1}]
    """)
    e.label("L_fin0")
    e("s_mov_b64 exec, s[64:65]")
    e.label("L_fin")
    stamp(13)
    e(f"""
    s_cmp_eq_u32 s2, {0 if not (cfg.noepoch or cfg.earlyepoch) else 100000}
    s_cbranch_scc0 L_noepoch
    s_cmp_eq_u32 s{S_W}, 0
    s_cbranch_scc0 L_noepoch
    v_lshlrev_b32 v6, 2, v1
    v_mov_b32 v7, s{S_TAG}
    s_mov_b64 exec, 0xffff
    global_store_dword v6, v7, {WS} sc1
    s_mov_b64 exec, -1
    """)
    e.label("L_noepoch")
    if cfg.stamps:
        e(f"""
        s_waitcnt lgkmcnt(0)
        s_lshl_b32 s3, s2, 3
        s_add_u32 s3, s3, s{S_W}
        s_lshl_b32 s3, s3, 6
        s_add_u32 s3, s3, {WS_DBG}
        v_mov_b32 v6, s3
        s_mov_b64 exec, 1
        """)
        for q in range(4):
            for k in range(4):
                e(f"v_mov_b32 v{8+k}, s{S_STAMP+2*min(4*q+k,14)}")
            e(f"global_store_dwordx4 v6, v[8:11], {WS} offset:{16*q}")
            e.nop(2)
        e("s_mov_b64 exec, -1")
    e.label("L_exit")
    e("s_endpgm")
    if cfg.s7warm:
        e.label("L_s7_warm_ret")
        e("s_waitcnt lgkmcnt(0)\ns_setpc_b64 s[68:69]")
    e.label("L_fail")
    if cfg.stamps: e("s_mov_b64 exec, -1\ns_branch L_noepoch")
    e("s_endpgm")
    e.label("L_end")
    return e

def render(cfg):
    e = gen(cfg)
    body = e.text()
    hdr = open("cdna_kernels/" + NAME[:-7] + ".s.ref").read().split("; Override launch geometry")[0]
    out = hdr + f"; @launch grid=(256,1,1) block=(512,1,1) lds={LDS_BYTES}\n"
    out += DESCR
    out += f""".amdgcn_target "amdgcn-amd-amdhsa--gfx950"
.text
.globl {NAME}
.p2align 8
.type {NAME},@function
{NAME}:
{body}.section .rodata,"a"
.p2align 6
.amdhsa_kernel {NAME}
  .amdhsa_next_free_vgpr 256
  .amdhsa_next_free_sgpr 102
  .amdhsa_accum_offset 256
  .amdhsa_group_segment_fixed_size 0
  .amdhsa_kernarg_size 112
  .amdhsa_user_sgpr_count 2
  .amdhsa_user_sgpr_kernarg_segment_ptr 1
  .amdhsa_system_sgpr_workgroup_id_x 1
.end_amdhsa_kernel
"""
    return out, body

if __name__ == "__main__":
    cfg = Cfg()
    outp = sys.argv[1] if len(sys.argv) > 1 else "cdna_kernels/" + NAME[:-7] + ".s"
    for a in sys.argv[2:]:
        k, v = a.split("=")
        setattr(cfg, k, int(v))
    out, body = render(cfg)
    probs = check_hazards(body) + check_kernarg_race(body)
    for p in probs: print("HAZARD", p)
    open(outp, "w").write(out)
    print("wrote", outp, len(out), "bytes;", len(body.splitlines()), "lines")
```
